```python
import torch

def _softmax(x, axis=-1):
    return torch.softmax(x, dim=axis)
def _gelu(x):
    return torch.nn.functional.gelu(x, approximate="tanh")
def _silu(x):
    return torch.nn.functional.silu(x)
def _sigmoid(x):
    return torch.sigmoid(x)
def _layernorm(x, axis=-1, eps=1e-5):
    m = x.mean(dim=axis, keepdim=True)
    v = x.var(dim=axis, keepdim=True, unbiased=False)
    return (x - m) / torch.sqrt(v + eps)
def _scatter_add(tgt, idx, src, axis=0):
    return tgt.clone().index_add_(axis, idx, src)
def _segment_sum(src, seg, n):
    out = torch.zeros((n,) + src.shape[1:], dtype=src.dtype)
    return out.index_add_(0, seg, src)
def _pad(x, pw):
    flat = tuple(v for pair in reversed(pw) for v in pair)
    return torch.nn.functional.pad(x, flat)

kernel_name = 'concat_heads__sliding_block__softmax_full_mha__prompt'

def setup_inputs():

    _w = (lambda a: (lambda t: t.to(torch.bfloat16) if t.is_floating_point() else t)(torch.as_tensor(a)))
    def _A_setup():
        B, S, D = 1, 2048, 448
        return {
            "x": _w((lambda *s: torch.randn(*s, dtype=torch.bfloat16) * 0.2)(B, S, D)),
            "wqkv": _w((lambda *s: torch.randn(*s, dtype=torch.bfloat16) * 0.8)(D, 3 * D)),
            "wo": _w((lambda *s: torch.randn(*s, dtype=torch.bfloat16) * 3.2)(D, D)),
        }
    _A_in = _A_setup()

    def _B_setup():
        B, S, D = 1, 2048, 448
        return {
            "x": _w((lambda *s: torch.randn(*s, dtype=torch.bfloat16) * 0.2)(B, S, D)),
            "wqkv": _w((lambda *s: torch.randn(*s, dtype=torch.bfloat16) * 0.8)(D, 3 * D)),
            "wo": _w((lambda *s: torch.randn(*s, dtype=torch.bfloat16) * 3.2)(D, D)),
        }
    _B_in = _B_setup()

    return {
        "A_x": _A_in["x"],
        "A_wqkv": _A_in["wqkv"],
        "A_wo": _A_in["wo"],
        "B_x": _B_in["x"],
        "B_wqkv": _B_in["wqkv"],
        "B_wo": _B_in["wo"],
    }

def reference(A_x, A_wqkv, A_wo, B_x, B_wqkv, B_wo):
    def _A_ref(x, wqkv, wo):
        B, S, D = x.shape
        H = 16; Dh = D // H; W = 256
        qkv = (lambda x, *d: x.permute(*d))((x @ wqkv).reshape(B, S, 3, H, Dh), 2, 0, 3, 1, 4)
        q, k, v = qkv[0], qkv[1], qkv[2]
        scores = torch.einsum("bhqd,bhkd->bhqk", q, k) * (Dh ** -0.5)
        idx = torch.arange(S)
        mask = (idx[:, None] - idx[None, :] >= 0) & (idx[:, None] - idx[None, :] < W)
        scores = torch.where(mask[None, None], scores, -1e9)
        p = _softmax(scores, axis=-1)
        o = torch.einsum("bhqk,bhkd->bhqd", p, v)
        return (lambda x, *d: x.permute(*d))(o, 0, 2, 1, 3).reshape(B, S, D) @ wo

    def _B_ref(x, wqkv, wo):
        B, S, D = x.shape
        H = 16; Dh = D // H
        qkv = (lambda x, *d: x.permute(*d))((x @ wqkv).reshape(B, S, 3, H, Dh), 2, 0, 3, 1, 4)
        q, k, v = qkv[0], qkv[1], qkv[2]
        scale = Dh ** -0.5
        scores = torch.einsum("bhqd,bhkd->bhqk", q, k) * scale
        p = _softmax(scores, axis=-1)
        o = torch.einsum("bhqk,bhkd->bhqd", p, v)
        return (lambda x, *d: x.permute(*d))(o, 0, 2, 1, 3).reshape(B, S, D) @ wo

    a = _A_ref(A_x, A_wqkv, A_wo)
    b = _B_ref(B_x, B_wqkv, B_wo)
    return torch.concatenate([a, b], axis=-1)
```

```python
import sys, math, struct

def f32bits(x):
    return struct.unpack('<I', struct.pack('<f', x))[0]

class Gen:
    def __init__(self):
        self.lines = []
    def __call__(self, s):
        for l in s.split('\n'):
            l = l.strip()
            if l:
                self.lines.append('  ' + l)
    def label(self, s):
        self.lines.append(s + ':')
    def raw(self, s):
        self.lines.append(s)
    def text(self):
        return '\n'.join(self.lines) + '\n'

def vr(base, n):
    return f'v[{base}:{base+n-1}]'
def sr(base, n):
    return f's[{base}:{base+n-1}]'

def mfma(d, a, b, c):
    cs = '0' if c is None else vr(c, 16)
    return f'v_mfma_f32_32x32x16_bf16 {vr(d,16)}, {vr(a,4)}, {vr(b,4)}, {cs}'

WS_Q = 0
WS_KV = 0x400000
WS_O = 0xC00000
QSCALE = (28 ** -0.5) * math.log2(math.e)

def kernel_header(g, name):
    g.raw(f'.globl {name}')
    g.raw('.p2align 8')
    g.raw(f'.type {name},@function')
    g.label(name)

def kernel_desc(name, vgpr, sgpr=102):
    acc = (vgpr + 3) // 4 * 4
    return f'''.amdhsa_kernel {name}
  .amdhsa_next_free_vgpr {vgpr}
  .amdhsa_next_free_sgpr {sgpr}
  .amdhsa_accum_offset {acc}
  .amdhsa_group_segment_fixed_size 0
  .amdhsa_kernarg_size 72
  .amdhsa_user_sgpr_count 2
  .amdhsa_user_sgpr_kernarg_segment_ptr 1
  .amdhsa_system_sgpr_workgroup_id_x 1
.end_amdhsa_kernel
'''

def make_srd(g, dst, lo, hi, nbytes):
    g(f's_mov_b32 s{dst}, s{lo}')
    g(f's_mov_b32 s{dst+1}, s{hi}')
    g(f's_mov_b32 s{dst+2}, {nbytes}')
    g(f's_mov_b32 s{dst+3}, 0x20000')

def gen_qkv(g):
    name = 'qkv_kernel'
    kernel_header(g, name)
    g('s_cmp_ge_u32 s2, 256')
    g('s_cbranch_scc1 Lqkv_end')
    g('s_load_dwordx2 s[4:5], s[0:1], 0')
    g('s_load_dwordx2 s[6:7], s[0:1], 8')
    g('s_load_dwordx2 s[8:9], s[0:1], 24')
    g('s_load_dwordx2 s[10:11], s[0:1], 32')
    g('s_load_dwordx2 s[12:13], s[0:1], 64')
    g('s_and_b32 s33, s2, 7')
    g('s_lshr_b32 s34, s2, 3')
    g('s_lshr_b32 s35, s33, 2')
    g('s_bfe_u32 s36, s33, 0x10001')
    g('s_and_b32 s37, s33, 1')
    g('s_and_b32 s38, s34, 7')
    g('s_lshl_b32 s36, s36, 3')
    g('s_add_u32 s36, s36, s38')
    g('s_lshr_b32 s38, s34, 3')
    g('s_lshl_b32 s37, s37, 2')
    g('s_add_u32 s37, s37, s38')
    g('v_lshrrev_b32 v1, 6, v0')
    g('v_and_b32 v0, 63, v0')
    g('s_nop 0')
    g('v_readfirstlane_b32 s39, v1')
    g('s_waitcnt lgkmcnt(0)')
    g('s_cmp_eq_u32 s35, 0')
    g('s_cselect_b32 s4, s4, s8')
    g('s_cselect_b32 s5, s5, s9')
    g('s_cselect_b32 s6, s6, s10')
    g('s_cselect_b32 s7, s7, s11')
    make_srd(g, 16, 4, 5, 2048 * 896)
    make_srd(g, 20, 6, 7, 448 * 2688)
    make_srd(g, 24, 12, 13, 0x400000)
    g(f's_add_u32 s28, s12, {WS_KV}')
    g('s_addc_u32 s29, s13, 0')
    g('s_mov_b32 s30, 0x800000')
    g('s_mov_b32 s31, 0x20000')
    g('s_lshl_b32 s40, s36, 7')
    g('s_lshl_b32 s41, s39, 4')
    g('s_add_u32 s40, s40, s41')
    g('v_lshrrev_b32 v4, 3, v0')
    g('v_add_u32 v4, s40, v4')
    g('v_mul_u32_u24 v4, 896, v4')
    g('v_lshrrev_b32 v5, 4, v0')
    g('v_and_b32 v6, 7, v0')
    g('v_xor_b32 v7, v6, v5')
    g('v_lshl_add_u32 v2, v7, 4, v4')
    g('v_xor_b32 v7, 4, v7')
    g('v_lshl_add_u32 v3, v7, 4, v4')
    g('v_add_u32 v3, 7168, v3')
    for i in range(3):
        g(f'v_add_u32 v4, {64*i}, v0')
        g('v_mul_u32_u24 v5, 171, v4')
        g('v_lshrrev_b32 v5, 12, v5')
        g('v_mul_u32_u24 v6, 24, v5')
        g('v_sub_u32 v6, v4, v6')
        g('v_lshrrev_b32 v7, 3, v6')
        g('v_and_b32 v6, 7, v6')
        g('v_and_b32 v11, 2, v5')
        g('v_lshlrev_b32 v11, 1, v11')
        g('v_xor_b32 v6, v6, v11')
        g('s_lshl_b32 s40, s39, 3')
        g('v_add_u32 v5, s40, v5')
        g('v_mul_u32_u24 v5, 2688, v5')
        g('v_mul_u32_u24 v7, 896, v7')
        g('v_add_u32 v5, v5, v7')
        g('v_lshl_add_u32 v5, v6, 4, v5')
        g('s_mul_i32 s40, s37, 112')
        g(f'v_add_u32 v{8+i}, s40, v5')
    g('s_lshl_b32 s42, s39, 11')
    g('s_mul_i32 s43, s39, 3072')
    g('s_add_u32 s43, s43, 65536')

    def issue_chunk(kc):
        st = kc % 4
        g(f's_mov_b32 s44, {kc*128}')
        g(f's_mov_b32 s45, {kc*64*2688}')
        for e in range(2):
            g(f's_add_u32 m0, s42, {st*16384 + e*1024}')
            g('s_nop 0')
            g(f'buffer_load_dwordx4 v{2+e}, s[16:19], s44 offen lds')
        for i in range(3):
            g(f's_add_u32 m0, s43, {st*24576 + i*1024}')
            g('s_nop 0')
            g(f'buffer_load_dwordx4 v{8+i}, s[20:23], s45 offen lds')

    for kc in range(4):
        issue_chunk(kc)

    g('s_lshr_b32 s46, s39, 1')
    g('s_and_b32 s47, s39, 1')
    g('v_and_b32 v4, 31, v0')
    g('s_lshl_b32 s40, s46, 5')
    g('v_add_u32 v4, s40, v4')
    g('v_lshlrev_b32 v4, 7, v4')
    g('v_bfe_u32 v5, v0, 1, 3')
    g('v_lshrrev_b32 v6, 5, v0')
    for ks in range(4):
        g(f'v_add_u32 v7, {2*ks}, v6')
        g('v_xor_b32 v7, v7, v5')
        g(f'v_lshl_add_u32 v{12+ks}, v7, 4, v4')
    g('v_bfe_u32 v4, v0, 2, 2')
    g('v_and_b32 v5, 3, v0')
    g('v_bfe_u32 v7, v0, 4, 1')
    g('v_lshlrev_b32 v7, 5, v7')
    g('v_lshl_add_u32 v7, v5, 3, v7')
    g('s_mul_i32 s40, s47, 56')
    g('v_add_u32 v7, s40, v7')
    g('v_lshrrev_b32 v11, 4, v7')
    g('v_and_b32 v18, 2, v4')
    g('v_lshlrev_b32 v18, 1, v18')
    g('v_xor_b32 v11, v11, v18')
    g('v_and_b32 v7, 15, v7')
    g('v_lshl_add_u32 v7, v11, 4, v7')
    g('v_lshl_add_u32 v4, v6, 3, v4')
    g('v_mul_u32_u24 v4, 384, v4')
    g('v_add_u32 v16, v4, v7')
    g('v_add_u32 v16, 65536, v16')
    g('v_add_u32 v17, 49152, v16')

    ACC = 32
    XF = 80
    WF = 88
    def reads(kc, ks, buf):
        st = kc % 4
        g(f'ds_read_b128 {vr(XF+4*buf,4)}, v{12+ks} offset:{st*16384}')
        wb = 16 + (st >> 1)
        for seg in range(3):
            for jj in range(2):
                off = (st & 1) * 24576 + (ks*16 + jj*4) * 384 + seg * 128
                g(f'ds_read_b64_tr_b16 {vr(WF+12*buf+4*seg+2*jj,2)}, v{wb} offset:{off}')
    def mfmas(buf, first):
        x = XF + 4*buf
        for seg in range(3):
            wf = WF + 12*buf + 4*seg
            d = ACC + 16*seg
            c = None if first else d
            if seg < 2:
                g(mfma(d, wf, x, c))
            else:
                g(mfma(d, x, wf, c))

    for kc in range(7):
        if kc == 0: n = 15
        elif kc <= 4: n = 10
        elif kc == 5: n = 5
        else: n = 0
        g(f's_waitcnt vmcnt({n})')
        g('s_barrier')
        if 1 <= kc <= 3:
            issue_chunk(kc + 3)
        reads(kc, 0, 0)
        for ks in range(4):
            if ks < 3:
                reads(kc, ks + 1, (ks + 1) & 1)
                g('s_waitcnt lgkmcnt(7)')
            else:
                g('s_waitcnt lgkmcnt(0)')
            mfmas(ks & 1, kc == 0 and ks == 0)
    g('s_nop 15')
    g('s_nop 7')
    g('s_lshl_b32 s40, s37, 1')
    g('s_add_u32 s40, s40, s47')
    g('s_lshl_b32 s41, s35, 4')
    g('s_add_u32 s40, s40, s41')
    g('s_lshl_b32 s40, s40, 6')
    g('s_lshl_b32 s41, s36, 2')
    g('s_add_u32 s41, s41, s46')
    g('s_add_u32 s40, s40, s41')
    g('s_lshl_b32 s48, s40, 11')
    g('s_lshl_b32 s49, s40, 12')
    g('v_lshlrev_b32 v2, 4, v0')
    g(f's_mov_b32 s50, {f32bits(QSCALE):#x}')
    P = 88
    for r in range(16):
        g(f'v_mul_f32 v{ACC+r}, s50, v{ACC+r}')
    for i in range(8):
        g(f'v_cvt_pk_bf16_f32 v{P+i}, v{ACC+2*i}, v{ACC+2*i+1}')
    for i in range(8):
        g(f'v_cvt_pk_bf16_f32 v{P+8+i}, v{ACC+16+2*i}, v{ACC+16+2*i+1}')
    for i in range(8):
        g(f'v_cvt_pk_bf16_f32 v{P+16+i}, v{ACC+32+2*i}, v{ACC+32+2*i+1}')
    g('s_mov_b32 s52, 0')
    g('s_mov_b32 s53, -1')
    g('s_mov_b64 exec, s[52:53]')
    g(f'v_mov_b32 v{P+6}, 0')
    g(f'v_mov_b32 v{P+7}, 0')
    g(f'v_mov_b32 v{P+8+6}, 0x3f80')
    g(f'v_mov_b32 v{P+8+7}, 0')
    g('s_mov_b32 s52, 0xe0000000')
    g('s_mov_b32 s53, 0xe0000000')
    g('s_mov_b64 exec, s[52:53]')
    for i in range(8):
        g(f'v_mov_b32 v{P+16+i}, 0')
    g('s_mov_b32 s52, 0x10000000')
    g('s_mov_b32 s53, 0x10000000')
    g('s_mov_b64 exec, s[52:53]')
    for i in range(8):
        g(f'v_mov_b32 v{P+16+i}, 0x3f803f80')
    g('s_mov_b64 exec, -1')
    g('s_nop 1')
    g(f'buffer_store_dwordx4 {vr(P,4)}, v2, s[24:27], s48 offen')
    g(f'buffer_store_dwordx4 {vr(P+4,4)}, v2, s[24:27], s48 offen offset:1024')
    g(f'buffer_store_dwordx4 {vr(P+8,4)}, v2, s[28:31], s49 offen')
    g(f'buffer_store_dwordx4 {vr(P+12,4)}, v2, s[28:31], s49 offen offset:1024')
    g(f'buffer_store_dwordx4 {vr(P+16,4)}, v2, s[28:31], s49 offen offset:2048')
    g(f'buffer_store_dwordx4 {vr(P+20,4)}, v2, s[28:31], s49 offen offset:3072')
    g.label('Lqkv_end')
    g('s_endpgm')
    return name, 112

NEGBIG = 0xf149f2ca
def gen_attn(g):
    name = 'attn_kernel'
    kernel_header(g, name)
    g('s_cmp_ge_u32 s2, 256')
    g('s_cbranch_scc1 Lattn_end')
    g('s_load_dwordx2 s[12:13], s[0:1], 64')
    g('s_and_b32 s33, s2, 7')
    g('s_bfe_u32 s34, s2, 0x10003')
    g('s_lshl_b32 s33, s33, 1')
    g('s_add_u32 s33, s33, s34')
    g('s_lshr_b32 s34, s2, 4')
    g('v_lshrrev_b32 v1, 6, v0')
    g('v_and_b32 v0, 63, v0')
    g('s_nop 0')
    g('v_readfirstlane_b32 s35, v1')
    g('s_and_b32 s36, s35, 3')
    g('s_lshr_b32 s37, s35, 2')
    g('s_waitcnt lgkmcnt(0)')
    make_srd(g, 16, 12, 13, 0x400000)
    g('s_lshl_b32 s38, s33, 18')
    g(f's_add_u32 s38, s38, {WS_KV}')
    g('s_add_u32 s20, s12, s38')
    g('s_addc_u32 s21, s13, 0')
    g('s_mov_b32 s22, 0x40000')
    g('s_mov_b32 s23, 0x20000')
    g('s_add_u32 s24, s20, 0x400000')
    g('s_addc_u32 s25, s21, 0')
    g('s_mov_b32 s26, 0x40000')
    g('s_mov_b32 s27, 0x20000')
    g(f's_add_u32 s28, s12, {WS_O}')
    g('s_addc_u32 s29, s13, 0')
    g('s_mov_b32 s30, 0x400000')
    g('s_mov_b32 s31, 0x20000')
    g('v_lshlrev_b32 v2, 4, v0')
    QA = 8; QB = 16; S0 = 32; S1 = 48; P = 64; O = 72; KF = 88; VF = 96; T = 104
    SB = [S0, S1]
    g('s_lshl_b32 s38, s33, 6')
    g('s_lshl_b32 s39, s34, 2')
    g('s_add_u32 s39, s39, s36')
    g('s_add_u32 s38, s38, s39')
    g('s_lshl_b32 s38, s38, 11')
    g(f'buffer_load_dwordx4 {vr(QA,4)}, v2, s[16:19], s38 offen')
    g(f'buffer_load_dwordx4 {vr(QA+4,4)}, v2, s[16:19], s38 offen offset:1024')
    g('s_add_u32 s38, s38, 0x200000')
    g(f'buffer_load_dwordx4 {vr(QB,4)}, v2, s[16:19], s38 offen')
    g(f'buffer_load_dwordx4 {vr(QB+4,4)}, v2, s[16:19], s38 offen offset:1024')
    def dma_tile(srd, s_goff, s_m0):
        g(f's_mov_b32 m0, {s_m0}')
        g('s_nop 0')
        for i in range(4):
            g(f'buffer_load_dwordx4 v2, s[{srd}:{srd+3}], {s_goff} offen offset:{i*1024} lds')
    g('s_lshl_b32 s40, s34, 2')
    g('s_add_u32 s40, s40, s35')
    g('s_sub_u32 s40, s40, 8')
    g('s_cmp_lt_i32 s40, 0')
    g('s_cbranch_scc1 Lattn_skipA0')
    g('s_lshl_b32 s41, s40, 12')
    g('s_lshl_b32 s42, s35, 12')
    dma_tile(20, 's41', 's42')
    g.label('Lattn_skipA0')
    g('s_cmp_ge_u32 s35, 4')
    g('s_cbranch_scc1 Lattn_skipA1')
    g('s_add_u32 s40, s40, 8')
    g('s_lshl_b32 s41, s40, 12')
    g('s_lshl_b32 s42, s35, 12')
    g('s_add_u32 s42, s42, 32768')
    dma_tile(20, 's41', 's42')
    g.label('Lattn_skipA1')
    def dma_stage(s):
        slot = (s + 2) & 3
        g('s_lshl_b32 s42, s35, 12')
        g(f's_add_u32 s41, s42, {s*8*4096}')
        g(f's_add_u32 s42, s42, {slot*32768}')
        dma_tile(24, 's41', 's42')
    dma_stage(0)
    dma_stage(1)
    g('s_lshl_b32 s40, s36, 12')
    g('v_add_u32 v3, s40, v2')
    g('s_lshl_b32 s40, s37, 14')
    g('v_add_u32 v4, s40, v2')
    g('v_add_u32 v5, 65536, v4')
    g('v_add_u32 v6, 131072, v3')
    g('s_lshl_b32 s40, s36, 8')
    g(f's_add_u32 s40, s40, {131072+16384}')
    g('v_lshlrev_b32 v7, 2, v0')
    g('v_add_u32 v7, s40, v7')
    g('v_and_b32 v24, 31, v0')
    g('v_lshrrev_b32 v25, 5, v0')
    g('v_lshlrev_b32 v25, 2, v25')
    g('v_sub_u32 v24, v24, v25')
    g(f'v_mov_b32 v26, {NEGBIG:#x}')
    g('s_mov_b32 s60, 0')
    g('s_mov_b32 s61, -1')

    def set_mask(sbuf, kind):
        for r in range(16):
            br_ = (r & 3) + 8 * (r >> 2)
            if kind == 'diag':
                g(f'v_cmp_le_i32 vcc, {br_}, v24')
            else:
                g(f'v_cmp_gt_i32 vcc, {br_}, v24')
            g('s_nop 1')
            g(f'v_cndmask_b32_e64 v{sbuf+r}, v26, 0, vcc')

    def rowmax_to_q(sbuf, q, mneg):
        t = T
        g(f'v_max3_f32 v{t}, v{sbuf}, v{sbuf+1}, v{sbuf+2}')
        for r in range(3, 15, 2):
            g(f'v_max3_f32 v{t}, v{t}, v{sbuf+r}, v{sbuf+r+1}')
        g(f'v_max_f32 v{t}, v{t}, v{sbuf+15}')
        g(f'v_mov_b32 v{t+1}, v{t}')
        g('s_nop 1')
        g(f'v_permlane32_swap_b32 v{t}, v{t+1}')
        g('s_nop 1')
        g(f'v_max_f32 v{t}, v{t}, v{t+1}')
        g(f'v_sub_f32 v{t}, 0, v{t}')
        g(f'v_cvt_pk_bf16_f32 v{t}, v{t}, 0')
        g(f'v_lshlrev_b32 v{mneg}, 16, v{t}')
        g('s_mov_b64 exec, s[60:61]')
        g(f'v_mov_b32 v{q+4+2}, v{t}')
        g('s_mov_b64 exec, -1')

    def unit_simple(lbase, off, q, mask, first, mneg):
        for f in range(2):
            g(f'ds_read_b128 {vr(KF+4*f,4)}, v{lbase} offset:{off+f*1024}')
        for f in range(2):
            g(f'ds_read_b128 {vr(VF+4*f,4)}, v{lbase} offset:{off+2048+f*1024}')
        sb = S0
        reps = 2 if first else 1
        for rep in range(reps):
            if mask:
                set_mask(sb, mask)
            if rep == 0:
                g('s_waitcnt lgkmcnt(2)')
            g('s_nop 1')
            g(mfma(sb, KF, q, sb if mask else None))
            g(mfma(sb, KF+4, q+4, sb))
            g('s_nop 15')
            if first and rep == 0:
                rowmax_to_q(sb, q, mneg)
                g('s_nop 1')
        for r in range(16):
            g(f'v_exp_f32 v{sb+r}, v{sb+r}')
        g('s_nop 0')
        for i in range(8):
            g(f'v_cvt_pk_bf16_f32 v{P+i}, v{sb+2*i}, v{sb+2*i+1}')
        g('s_waitcnt lgkmcnt(0)')
        g('s_nop 1')
        g(mfma(O, VF, P, O))
        g(mfma(O, VF+4, P+4, O))

    MN = 27
    def combine_and_store(tag, br):
        g('s_nop 15')
        g('s_cmp_eq_u32 s37, 0')
        g(f's_cbranch_scc1 L{tag}_nowrite')
        for i in range(4):
            g(f'ds_write_b128 v6, {vr(O+4*i,4)} offset:{i*1024}')
        g(f'ds_write_b32 v7, v{MN}')
        g.label(f'L{tag}_nowrite')
        g('s_waitcnt lgkmcnt(0)')

    def combine2(tag, br):
        g('s_cmp_eq_u32 s37, 0')
        g(f's_cbranch_scc0 L{tag}_done')
        for i in range(4):
            g(f'ds_read_b128 {vr(S0+4*i,4)}, v6 offset:{i*1024}')
        g(f'ds_read_b32 v{T}, v7')
        g('s_waitcnt lgkmcnt(0)')
        g(f'v_min_f32 v{T+1}, v{MN}, v{T}')
        g(f'v_sub_f32 v{T+2}, v{T+1}, v{MN}')
        g(f'v_sub_f32 v{T+3}, v{T+1}, v{T}')
        g(f'v_exp_f32 v{T+2}, v{T+2}')
        g(f'v_exp_f32 v{T+3}, v{T+3}')
        g('s_nop 0')
        for r in range(16):
            g(f'v_mul_f32 v{O+r}, v{O+r}, v{T+2}')
        for r in range(16):
            g(f'v_fmac_f32 v{O+r}, v{S0+r}, v{T+3}')
        g(f'v_mov_b32 v{T}, v{O+12}')
        g(f'v_mov_b32 v{T+1}, v{O+12}')
        g('s_nop 1')
        g(f'v_permlane32_swap_b32 v{T}, v{T+1}')
        g('s_nop 1')
        g(f'v_rcp_f32 v{T+1}, v{T+1}')
        g('s_nop 0')
        for r in range(16):
            g(f'v_mul_f32 v{O+r}, v{O+r}, v{T+1}')
        for i in range(8):
            g(f'v_cvt_pk_bf16_f32 v{P+i}, v{O+2*i}, v{O+2*i+1}')
        g('s_mov_b64 exec, s[60:61]')
        g(f'v_mov_b32 v{P+6}, 0')
        g(f'v_mov_b32 v{P+7}, 0')
        g('s_mov_b64 exec, -1')
        g('s_lshl_b32 s40, s34, 2')
        g('s_add_u32 s40, s40, s36')
        g(f's_add_u32 s40, s40, {br*64}')
        g('s_lshl_b32 s40, s40, 4')
        g('s_add_u32 s40, s40, s33')
        g('s_lshl_b32 s40, s40, 11')
        g('s_nop 0')
        g(f'buffer_store_dwordx4 {vr(P,4)}, v2, s[28:31], s40 offen')
        g(f'buffer_store_dwordx4 {vr(P+4,4)}, v2, s[28:31], s40 offen offset:1024')
        g('s_nop 1')
        g.label(f'L{tag}_done')

    for r in range(16):
        g(f'v_mov_b32 v{O+r}, 0')
    g(f'v_mov_b32 v{MN}, 0x7149f2ca')
    g('s_waitcnt vmcnt(8)')
    g('s_barrier')
    g('s_lshl_b32 s40, s34, 2')
    g('s_add_u32 s40, s40, s36')
    g('s_sub_u32 s50, 8, s40')
    g('s_cmp_eq_u32 s37, 0')
    g('s_cbranch_scc0 LA_kh1')
    unit_simple(3, 8*4096, QA, 'diag', True, MN)
    for u in (7, 6, 5, 4):
        g(f's_cmp_gt_i32 s50, {u}')
        g('s_cbranch_scc1 LA_fin')
        unit_simple(3, u*4096, QA, None, False, MN)
    g('s_branch LA_fin')
    g.label('LA_kh1')
    for u in (3, 2, 1, 0):
        g(f's_cmp_gt_i32 s50, {u}')
        g('s_cbranch_scc1 LA_fin')
        unit_simple(3, u*4096, QA, 'first' if u == 0 else None, u == 3, MN)
    g.label('LA_fin')
    combine_and_store('CA', 0)
    g('s_waitcnt vmcnt(4)')
    g('s_barrier')
    dma_stage(2)
    dma_stage(3)
    combine2('CA', 0)

    def tile_addr(t):
        s = t >> 2
        slot = (s + 2) & 3
        base = 4 + (slot >> 1)
        off = (slot & 1) * 32768 + (t & 3) * 4096
        return base, off
    def rdK(t):
        b, off = tile_addr(t)
        g(f'ds_read_b128 {vr(KF,4)}, v{b} offset:{off}')
        g(f'ds_read_b128 {vr(KF+4,4)}, v{b} offset:{off+1024}')
    def rdV(t, f):
        b, off = tile_addr(t)
        g(f'ds_read_b128 {vr(VF+4*f,4)}, v{b} offset:{off+2048+f*1024}')
    NT = 32
    rdK(0)
    g('s_waitcnt lgkmcnt(0)')
    g(mfma(S0, KF, QB, None))
    g(mfma(S0, KF+4, QB+4, S0))
    g('s_nop 15')
    rowmax_to_q(S0, QB, MN)
    g('s_nop 1')
    g(mfma(S0, KF, QB, None))
    g(mfma(S0, KF+4, QB+4, S0))
    rdK(1)
    rdV(0, 0)
    g('s_nop 15')
    def body(t):
        sb = SB[t & 1]; sn = SB[(t + 1) & 1]
        e = [f'v_exp_f32 v{sb+r}, v{sb+r}' for r in range(16)]
        c = [f'v_cvt_pk_bf16_f32 v{P+i}, v{sb+2*i}, v{sb+2*i+1}' for i in range(8)]
        has_next = t + 1 < NT
        if (t & 3) == 2:
            s = t >> 2
            if s + 1 <= 7:
                if s == 0: n = 8
                elif s + 2 <= 7: n = 4
                else: n = 0
                g(f's_waitcnt vmcnt({n})')
                g('s_barrier')
                if s >= 1 and s + 3 <= 7:
                    dma_stage(s + 3)
        if t > 0:
            n = (2 if t + 1 < NT else 0) + 1
            g(f's_waitcnt lgkmcnt({n})')
            g('s_nop 0')
            g(mfma(O, VF+4, P+4, O))
        rdV(t, 1)
        for i in e[0:4]: g(i)
        g(c[0])
        if has_next:
            g('s_waitcnt lgkmcnt(2)')
            g(mfma(sn, KF, QB, None))
        g(e[4]); g(e[5]); g(c[1]); g(e[6]); g(e[7]); g(c[2])
        if has_next:
            g(mfma(sn, KF+4, QB+4, sn))
        if t + 2 < NT:
            rdK(t + 2)
        g(e[8]); g(c[3]); g(e[9]); g(e[10]); g(e[11])
        n = 1 + (2 if t + 2 < NT else 0)
        g(f's_waitcnt lgkmcnt({n})')
        g(mfma(O, VF, P, O if t > 0 else None))
        if has_next:
            rdV(t + 1, 0)
        for i in e[12:16]: g(i)
        g(c[4]); g(c[5]); g(c[6]); g(c[7])
    for t in range(NT):
        body(t)
    g('s_waitcnt lgkmcnt(0)')
    g('s_nop 1')
    g(mfma(O, VF+4, P+4, O))
    combine_and_store('CB', 1)
    g('s_barrier')
    combine2('CB', 1)
    g.label('Lattn_end')
    g('s_endpgm')
    return name, 112

def gen_proj(g):
    name = 'proj_kernel'
    kernel_header(g, name)
    g('s_cmp_ge_u32 s2, 224')
    g('s_cbranch_scc1 Lproj_end')
    g('s_load_dwordx2 s[4:5], s[0:1], 16')
    g('s_load_dwordx2 s[6:7], s[0:1], 40')
    g('s_load_dwordx2 s[8:9], s[0:1], 48')
    g('s_load_dwordx2 s[12:13], s[0:1], 64')
    g('s_and_b32 s33, s2, 7')
    g('s_lshr_b32 s34, s2, 3')
    g('s_lshr_b32 s35, s33, 2')
    g('s_and_b32 s36, s33, 3')
    g('s_lshl_b32 s36, s36, 2')
    g('s_and_b32 s37, s34, 3')
    g('s_add_u32 s36, s36, s37')
    g('s_lshr_b32 s37, s34, 2')
    g('v_lshrrev_b32 v1, 6, v0')
    g('v_and_b32 v0, 63, v0')
    g('s_nop 0')
    g('v_readfirstlane_b32 s39, v1')
    g('s_and_b32 s46, s39, 3')
    g('s_lshr_b32 s47, s39, 2')
    g('s_waitcnt lgkmcnt(0)')
    g('s_cmp_eq_u32 s35, 0')
    g('s_cselect_b32 s4, s4, s6')
    g('s_cselect_b32 s5, s5, s7')
    make_srd(g, 16, 4, 5, 448 * 896)
    make_srd(g, 20, 8, 9, 2048 * 1792)
    g(f's_add_u32 s28, s12, {WS_O}')
    g('s_addc_u32 s29, s13, 0')
    g('s_mov_b32 s30, 0x400000')
    g('s_mov_b32 s31, 0x20000')
    g('v_lshrrev_b32 v4, 3, v0')
    g('v_and_b32 v5, 7, v0')
    g('v_and_b32 v6, 2, v4')
    g('v_lshlrev_b32 v6, 1, v6')
    g('v_xor_b32 v5, v5, v6')
    g('s_lshl_b32 s40, s39, 3')
    g('v_add_u32 v4, s40, v4')
    g('v_mul_u32_u24 v4, 896, v4')
    g('v_lshl_add_u32 v4, v5, 4, v4')
    g('s_lshl_b32 s40, s37, 7')
    g('v_add_u32 v3, s40, v4')
    g('s_lshl_b32 s42, s39, 10')
    for it in range(8):
        if it == 7:
            g('s_cmp_ge_u32 s39, 1')
            g('s_cbranch_scc1 Lproj_skip')
        g(f's_add_u32 m0, s42, {it*8192}')
        g(f'v_add_u32 v4, {it*64*896}, v3')
        g('buffer_load_dwordx4 v4, s[16:19], 0 offen lds')
    g.label('Lproj_skip')
    g('v_lshlrev_b32 v2, 4, v0')
    g('s_lshl_b32 s40, s35, 6')
    g('s_lshl_b32 s41, s36, 2')
    g('s_add_u32 s40, s40, s41')
    g('s_add_u32 s40, s40, s46')
    g('s_lshl_b32 s40, s40, 15')
    OF = 64
    for n in range(32):
        if n % 4 == 0 and n > 0:
            g('s_add_u32 s40, s40, 4096')
        g(f'buffer_load_dwordx4 {vr(OF+4*n,4)}, v2, s[28:31], s40 offen offset:{(n%4)*1024}')
    g('v_bfe_u32 v4, v0, 2, 2')
    g('v_and_b32 v5, 3, v0')
    g('v_bfe_u32 v7, v0, 4, 1')
    g('v_lshrrev_b32 v6, 5, v0')
    g('v_lshlrev_b32 v7, 5, v7')
    g('v_lshl_add_u32 v7, v5, 3, v7')
    g('s_lshl_b32 s40, s47, 6')
    g('v_add_u32 v7, s40, v7')
    g('v_lshrrev_b32 v11, 4, v7')
    g('v_and_b32 v8, 2, v4')
    g('v_lshlrev_b32 v8, 1, v8')
    g('v_xor_b32 v11, v11, v8')
    g('v_and_b32 v7, 15, v7')
    g('v_lshl_add_u32 v7, v11, 4, v7')
    g('v_lshl_add_u32 v4, v6, 2, v4')
    g('v_lshl_add_u32 v9, v4, 7, v7')
    ACC = 16; WF = 32
    g('s_waitcnt vmcnt(32)')
    g('s_barrier')
    steps = [(h, i) for h in range(16) for i in range(2)]
    def rd(n, buf):
        h, i = steps[n]
        for jj in range(2):
            off = (28*h + 16*i + 8*jj) * 128
            g(f'ds_read_b64_tr_b16 {vr(WF+4*buf+2*jj,2)}, v9 offset:{off}')
    rd(0, 0); rd(1, 1); rd(2, 2)
    for n in range(32):
        if n + 3 < 32:
            rd(n + 3, (n + 3) & 3)
        rem = min(3, 31 - n)
        g(f's_waitcnt vmcnt({31-n}) lgkmcnt({2*rem})')
        g(mfma(ACC, WF + 4*(n & 3), OF + 4*n, None if n == 0 else ACC))
    g('s_nop 15')
    g('s_nop 7')
    P = 48
    for i in range(8):
        g(f'v_cvt_pk_bf16_f32 v{P+i}, v{ACC+2*i}, v{ACC+2*i+1}')
    g('s_nop 1')
    for k in range(2):
        a = P + 4*k
        g(f'v_permlane32_swap_b32 v{a}, v{a+2}')
        g(f'v_permlane32_swap_b32 v{a+1}, v{a+3}')
    g('v_and_b32 v4, 31, v0')
    g('s_lshl_b32 s40, s36, 7')
    g('s_lshl_b32 s41, s46, 5')
    g('s_add_u32 s40, s40, s41')
    g('v_add_u32 v4, s40, v4')
    g('v_mul_u32_u24 v4, 1792, v4')
    g('v_lshl_add_u32 v4, v6, 4, v4')
    g('s_mul_i32 s40, s35, 896')
    g('s_lshl_b32 s41, s37, 7')
    g('s_add_u32 s40, s40, s41')
    g('s_lshl_b32 s41, s47, 6')
    g('s_add_u32 s40, s40, s41')
    g(f'buffer_store_dwordx4 {vr(P,4)}, v4, s[20:23], s40 offen')
    g(f'buffer_store_dwordx4 {vr(P+4,4)}, v4, s[20:23], s40 offen offset:32')
    g.label('Lproj_end')
    g('s_endpgm')
    return name, 192

HEADER = '''; Kernarg layout for this problem (72 bytes, ptrs only, base s[0:1]):
'''

def main(out):
    g = Gen()
    launches = [
        ('qkv_kernel', 256, 512, 163840),
        ('attn_kernel', 256, 512, 131072 + 16384 + 1024),
        ('proj_kernel', 224, 512, 57 * 1024),
    ]
    txt = HEADER
    for n, gr, bl, lds in launches:
        txt += f'; @launch kernel={n} grid=({gr},1,1) block=({bl},1,1) lds={lds}\n'
    txt += '.amdgcn_target "amdgcn-amd-amdhsa--gfx950"\n.text\n'
    descs = []
    for fn in (gen_qkv, gen_attn, gen_proj):
        name, vg = fn(g)
        descs.append(kernel_desc(name, vg))
    txt += g.text()
    txt += '.section .rodata,"a"\n'
    for d in descs:
        txt += '.p2align 6\n' + d
    open(out, 'w').write(txt)

if __name__ == '__main__':
    main(sys.argv[1] if len(sys.argv) > 1 else 'concat_heads__sliding_block__softmax_full_mha__prompt.s')
```

```python
import sys, math, struct

def f32bits(x):
    return struct.unpack('<I', struct.pack('<f', x))[0]

class Gen:
    def __init__(self):
        self.lines = []
    def __call__(self, s):
        for l in s.split('\n'):
            l = l.strip()
            if l:
                self.lines.append('  ' + l)
    def label(self, s):
        self.lines.append(s + ':')
    def raw(self, s):
        self.lines.append(s)
    def text(self):
        return '\n'.join(self.lines) + '\n'

def vr(base, n):
    return f'v[{base}:{base+n-1}]'
def sr(base, n):
    return f's[{base}:{base+n-1}]'

def mfma(d, a, b, c):
    cs = '0' if c is None else vr(c, 16)
    return f'v_mfma_f32_32x32x16_bf16 {vr(d,16)}, {vr(a,4)}, {vr(b,4)}, {cs}'

STAMPS = False
STAMP_BASE = 0x2000000
def stamp(g, i, real=False):
    if not STAMPS: return
    op = 's_memrealtime' if real else 's_memtime'
    g(f'{op} s[{70+2*i}:{71+2*i}]')
def stamp_dump(g, kidx, ws_lo=12, ws_hi=13, nwaves=8):
    if not STAMPS: return
    g('s_waitcnt lgkmcnt(0) vmcnt(0)')
    g(f's_add_u32 s64, s{ws_lo}, {STAMP_BASE + kidx*0x100000}')
    g(f's_addc_u32 s65, s{ws_hi}, 0')
    g('s_mov_b32 s66, 0x100000')
    g('s_mov_b32 s67, 0x20000')
    g('s_mov_b64 exec, -1')
    g('v_mov_b32 v1, 0')
    for i in range(16):
        g(f'v_writelane_b32 v1, s{70+2*i}, {i}')
    g(f's_mul_i32 s68, s2, {nwaves}')
    g('s_add_u32 s68, s68, s69')
    g('s_lshl_b32 s68, s68, 6')
    g('v_lshlrev_b32 v3, 2, v0')
    g('v_cmp_gt_u32 vcc, 16, v0')
    g('s_and_saveexec_b64 s[62:63], vcc')
    g('buffer_store_dword v1, v3, s[64:67], s68 offen')
    g('s_waitcnt vmcnt(0)')

TL = False
def tl_start(g, k):
    if not TL: return
    g('s_memrealtime s[90:91]')
    g('s_load_dwordx2 s[92:93], s[0:1], 56')
    g('s_waitcnt lgkmcnt(0)')
    g(f's_add_u32 s92, s92, {512*(2-k)}')
    g('s_addc_u32 s93, s93, 0')
    g('s_mov_b32 s94, 256')
    g('s_mov_b32 s95, 0x20000')
def tl_mark(g, reg):
    if not TL: return
    g(f's_memrealtime s[{reg}:{reg+1}]')
def tl_end(g, k, marks=()):
    if not TL: return
    g('s_waitcnt vmcnt(0) lgkmcnt(0)')
    g('s_memrealtime s[96:97]')
    g('s_waitcnt lgkmcnt(0)')
    g('s_mov_b64 exec, 1')
    g('s_not_b32 s90, s90')
    g('v_mov_b32 v1, s90')
    g('v_mov_b32 v2, s96')
    g(f'v_mov_b32 v3, {k*20}')
    g('buffer_atomic_umax v1, v3, s[92:95], 0 offen')
    g('buffer_atomic_umax v2, v3, s[92:95], 0 offen offset:4')
    for i, m in enumerate(marks):
        g(f'v_mov_b32 v2, s{m}')
        g(f'buffer_atomic_umax v2, v3, s[92:95], 0 offen offset:{8+4*i}')
        g('s_nop 1')
    g('s_waitcnt vmcnt(0)')

WS_Q = 0
WS_KV = 0x400000
WS_O = 0xC00000
QSCALE = (28 ** -0.5) * math.log2(math.e)

def kernel_header(g, name):
    g.raw(f'.globl {name}')
    g.raw('.p2align 8')
    g.raw(f'.type {name},@function')
    g.label(name)

def kernel_desc(name, vgpr, sgpr=102):
    acc = (vgpr + 3) // 4 * 4
    return f'''.amdhsa_kernel {name}
  .amdhsa_next_free_vgpr {vgpr}
  .amdhsa_next_free_sgpr {sgpr}
  .amdhsa_accum_offset {acc}
  .amdhsa_group_segment_fixed_size 0
  .amdhsa_kernarg_size 72
  .amdhsa_user_sgpr_count 2
  .amdhsa_user_sgpr_kernarg_segment_ptr 1
  .amdhsa_system_sgpr_workgroup_id_x 1
.end_amdhsa_kernel
'''

def make_srd(g, dst, lo, hi, nbytes):
    g(f's_mov_b32 s{dst}, s{lo}')
    g(f's_mov_b32 s{dst+1}, s{hi}')
    g(f's_mov_b32 s{dst+2}, {nbytes}')
    g(f's_mov_b32 s{dst+3}, 0x20000')

def gen_qkv(g):
    name = 'qkv_kernel'
    kernel_header(g, name)
    g('s_cmp_ge_u32 s2, 256')
    g('s_cbranch_scc1 Lqkv_end')
    tl_start(g, 0)
    stamp(g, 0); stamp(g, 15, True)
    g('s_load_dwordx2 s[4:5], s[0:1], 0')
    g('s_load_dwordx2 s[6:7], s[0:1], 8')
    g('s_load_dwordx2 s[8:9], s[0:1], 24')
    g('s_load_dwordx2 s[10:11], s[0:1], 32')
    g('s_load_dwordx2 s[12:13], s[0:1], 64')
    g('s_and_b32 s33, s2, 7')
    g('s_lshr_b32 s34, s2, 3')
    g('s_lshr_b32 s35, s33, 2')
    g('s_bfe_u32 s36, s33, 0x10001')
    g('s_and_b32 s37, s33, 1')
    g('s_and_b32 s38, s34, 7')
    g('s_lshl_b32 s36, s36, 3')
    g('s_add_u32 s36, s36, s38')
    g('s_lshr_b32 s38, s34, 3')
    g('s_lshl_b32 s37, s37, 2')
    g('s_add_u32 s37, s37, s38')
    g('v_lshrrev_b32 v1, 6, v0')
    g('v_and_b32 v0, 63, v0')
    g('s_nop 0')
    g('v_readfirstlane_b32 s39, v1')
    if STAMPS: g('s_mov_b32 s69, s39')
    g('s_waitcnt lgkmcnt(0)')
    stamp(g, 1)
    g('s_cmp_eq_u32 s35, 0')
    g('s_cselect_b32 s4, s4, s8')
    g('s_cselect_b32 s5, s5, s9')
    g('s_cselect_b32 s6, s6, s10')
    g('s_cselect_b32 s7, s7, s11')
    make_srd(g, 16, 4, 5, 2048 * 896)
    make_srd(g, 20, 6, 7, 448 * 2688)
    make_srd(g, 24, 12, 13, 0x400000)
    g(f's_add_u32 s28, s12, {WS_KV}')
    g('s_addc_u32 s29, s13, 0')
    g('s_mov_b32 s30, 0x800000')
    g('s_mov_b32 s31, 0x20000')
    g('s_lshl_b32 s40, s36, 7')
    g('s_lshl_b32 s41, s39, 4')
    g('s_add_u32 s40, s40, s41')
    g('v_lshrrev_b32 v4, 3, v0')
    g('v_add_u32 v4, s40, v4')
    g('v_mul_u32_u24 v4, 896, v4')
    g('v_lshrrev_b32 v5, 4, v0')
    g('v_and_b32 v6, 7, v0')
    g('v_xor_b32 v7, v6, v5')
    g('v_lshl_add_u32 v2, v7, 4, v4')
    g('v_xor_b32 v7, 4, v7')
    g('v_lshl_add_u32 v3, v7, 4, v4')
    g('v_add_u32 v3, 7168, v3')
    for i in range(3):
        g(f'v_add_u32 v4, {64*i}, v0')
        g('v_mul_u32_u24 v5, 171, v4')
        g('v_lshrrev_b32 v5, 12, v5')
        g('v_mul_u32_u24 v6, 24, v5')
        g('v_sub_u32 v6, v4, v6')
        g('v_lshrrev_b32 v7, 3, v6')
        g('v_and_b32 v6, 7, v6')
        g('v_and_b32 v11, 2, v5')
        g('v_lshlrev_b32 v11, 1, v11')
        g('v_xor_b32 v6, v6, v11')
        g('s_lshl_b32 s40, s39, 3')
        g('v_add_u32 v5, s40, v5')
        g('v_mul_u32_u24 v5, 2688, v5')
        g('v_mul_u32_u24 v7, 896, v7')
        g('v_add_u32 v5, v5, v7')
        g('v_lshl_add_u32 v5, v6, 4, v5')
        g('s_mul_i32 s40, s37, 112')
        g(f'v_add_u32 v{8+i}, s40, v5')
    g('s_lshl_b32 s42, s39, 11')
    g('s_mul_i32 s43, s39, 3072')
    g('s_add_u32 s43, s43, 65536')

    def issue_chunk(kc):
        st = kc % 4
        g(f's_mov_b32 s44, {kc*128}')
        g(f's_mov_b32 s45, {kc*64*2688}')
        for e in range(2):
            g(f's_add_u32 m0, s42, {st*16384 + e*1024}')
            g('s_nop 0')
            g(f'buffer_load_dwordx4 v{2+e}, s[16:19], s44 offen lds')
        for i in range(3):
            g(f's_add_u32 m0, s43, {st*24576 + i*1024}')
            g('s_nop 0')
            g(f'buffer_load_dwordx4 v{8+i}, s[20:23], s45 offen lds')

    for kc in range(4):
        issue_chunk(kc)

    g('s_lshr_b32 s46, s39, 1')
    g('s_and_b32 s47, s39, 1')
    g('v_and_b32 v4, 31, v0')
    g('s_lshl_b32 s40, s46, 5')
    g('v_add_u32 v4, s40, v4')
    g('v_lshlrev_b32 v4, 7, v4')
    g('v_bfe_u32 v5, v0, 1, 3')
    g('v_lshrrev_b32 v6, 5, v0')
    for ks in range(4):
        g(f'v_add_u32 v7, {2*ks}, v6')
        g('v_xor_b32 v7, v7, v5')
        g(f'v_lshl_add_u32 v{12+ks}, v7, 4, v4')
    g('v_bfe_u32 v4, v0, 2, 2')
    g('v_and_b32 v5, 3, v0')
    g('v_bfe_u32 v7, v0, 4, 1')
    g('v_lshlrev_b32 v7, 5, v7')
    g('v_lshl_add_u32 v7, v5, 3, v7')
    g('s_mul_i32 s40, s47, 56')
    g('v_add_u32 v7, s40, v7')
    g('v_lshrrev_b32 v11, 4, v7')
    g('v_and_b32 v18, 2, v4')
    g('v_lshlrev_b32 v18, 1, v18')
    g('v_xor_b32 v11, v11, v18')
    g('v_and_b32 v7, 15, v7')
    g('v_lshl_add_u32 v7, v11, 4, v7')
    g('v_lshl_add_u32 v4, v6, 3, v4')
    g('v_mul_u32_u24 v4, 384, v4')
    g('v_add_u32 v16, v4, v7')
    g('v_add_u32 v16, 65536, v16')
    g('v_add_u32 v17, 49152, v16')

    ACC = 32
    XF = 80
    WF = 88
    def reads(kc, ks, buf):
        st = kc % 4
        g(f'ds_read_b128 {vr(XF+4*buf,4)}, v{12+ks} offset:{st*16384}')
        wb = 16 + (st >> 1)
        for seg in range(3):
            for jj in range(2):
                off = (st & 1) * 24576 + (ks*16 + jj*4) * 384 + seg * 128
                g(f'ds_read_b64_tr_b16 {vr(WF+12*buf+4*seg+2*jj,2)}, v{wb} offset:{off}')
    def mfmas(buf, first):
        x = XF + 4*buf
        for seg in range(3):
            wf = WF + 12*buf + 4*seg
            d = ACC + 16*seg
            c = None if first else d
            if seg < 2:
                g(mfma(d, wf, x, c))
            else:
                g(mfma(d, x, wf, c))

    for kc in range(7):
        if kc == 0: n = 15
        elif kc <= 4: n = 10
        elif kc == 5: n = 5
        else: n = 0
        if kc == 0: stamp(g, 2)
        g(f's_waitcnt vmcnt({n})')
        g('s_barrier')
        stamp(g, 3 + kc)
        if kc == 0: tl_mark(g, 98)
        if 1 <= kc <= 3:
            issue_chunk(kc + 3)
        reads(kc, 0, 0)
        for ks in range(4):
            if ks < 3:
                reads(kc, ks + 1, (ks + 1) & 1)
                g('s_waitcnt lgkmcnt(7)')
            else:
                g('s_waitcnt lgkmcnt(0)')
            mfmas(ks & 1, kc == 0 and ks == 0)
    g('s_nop 15')
    g('s_nop 7')
    stamp(g, 10)
    tl_mark(g, 100)
    g('s_lshl_b32 s40, s37, 1')
    g('s_add_u32 s40, s40, s47')
    g('s_lshl_b32 s41, s35, 4')
    g('s_add_u32 s40, s40, s41')
    g('s_lshl_b32 s40, s40, 6')
    g('s_lshl_b32 s41, s36, 2')
    g('s_add_u32 s41, s41, s46')
    g('s_add_u32 s40, s40, s41')
    g('s_lshl_b32 s48, s40, 11')
    g('s_lshl_b32 s49, s40, 12')
    g('v_lshlrev_b32 v2, 4, v0')
    g(f's_mov_b32 s50, {f32bits(QSCALE):#x}')
    P = 88
    for r in range(16):
        g(f'v_mul_f32 v{ACC+r}, s50, v{ACC+r}')
    for i in range(8):
        g(f'v_cvt_pk_bf16_f32 v{P+i}, v{ACC+2*i}, v{ACC+2*i+1}')
    for i in range(8):
        g(f'v_cvt_pk_bf16_f32 v{P+8+i}, v{ACC+16+2*i}, v{ACC+16+2*i+1}')
    for i in range(8):
        g(f'v_cvt_pk_bf16_f32 v{P+16+i}, v{ACC+32+2*i}, v{ACC+32+2*i+1}')
    g('s_mov_b32 s52, 0')
    g('s_mov_b32 s53, -1')
    g('s_mov_b64 exec, s[52:53]')
    g(f'v_mov_b32 v{P+6}, 0')
    g(f'v_mov_b32 v{P+7}, 0')
    g(f'v_mov_b32 v{P+8+6}, 0x3f80')
    g(f'v_mov_b32 v{P+8+7}, 0')
    g('s_mov_b32 s52, 0xe0000000')
    g('s_mov_b32 s53, 0xe0000000')
    g('s_mov_b64 exec, s[52:53]')
    for i in range(8):
        g(f'v_mov_b32 v{P+16+i}, 0')
    g('s_mov_b32 s52, 0x10000000')
    g('s_mov_b32 s53, 0x10000000')
    g('s_mov_b64 exec, s[52:53]')
    for i in range(8):
        g(f'v_mov_b32 v{P+16+i}, 0x3f803f80')
    g('s_mov_b64 exec, -1')
    g('s_nop 1')
    g(f'buffer_store_dwordx4 {vr(P,4)}, v2, s[24:27], s48 offen')
    g(f'buffer_store_dwordx4 {vr(P+4,4)}, v2, s[24:27], s48 offen offset:1024')
    g(f'buffer_store_dwordx4 {vr(P+8,4)}, v2, s[28:31], s49 offen')
    g(f'buffer_store_dwordx4 {vr(P+12,4)}, v2, s[28:31], s49 offen offset:1024')
    g(f'buffer_store_dwordx4 {vr(P+16,4)}, v2, s[28:31], s49 offen offset:2048')
    g(f'buffer_store_dwordx4 {vr(P+20,4)}, v2, s[28:31], s49 offen offset:3072')
    stamp(g, 11)
    if STAMPS: g('s_waitcnt vmcnt(0)')
    stamp(g, 12); stamp(g, 14, True)
    stamp_dump(g, 0)
    tl_end(g, 0, (98, 100))
    g.label('Lqkv_end')
    g('s_endpgm')
    return name, 112

NEGBIG = 0xf149f2ca
def gen_attn(g):
    name = 'attn_kernel'
    kernel_header(g, name)
    g('s_cmp_ge_u32 s2, 256')
    g('s_cbranch_scc1 Lattn_end')
    tl_start(g, 1)
    stamp(g, 0); stamp(g, 15, True)
    g('s_load_dwordx2 s[12:13], s[0:1], 64')
    g('s_and_b32 s33, s2, 7')
    g('s_bfe_u32 s34, s2, 0x10003')
    g('s_lshl_b32 s33, s33, 1')
    g('s_add_u32 s33, s33, s34')
    g('s_lshr_b32 s34, s2, 4')
    g('v_lshrrev_b32 v1, 6, v0')
    g('v_and_b32 v0, 63, v0')
    g('s_nop 0')
    g('v_readfirstlane_b32 s35, v1')
    if STAMPS: g('s_mov_b32 s69, s35')
    g('s_and_b32 s36, s35, 3')
    g('s_lshr_b32 s37, s35, 2')
    g('s_waitcnt lgkmcnt(0)')
    make_srd(g, 16, 12, 13, 0x400000)
    g('s_lshl_b32 s38, s33, 18')
    g(f's_add_u32 s38, s38, {WS_KV}')
    g('s_add_u32 s20, s12, s38')
    g('s_addc_u32 s21, s13, 0')
    g('s_mov_b32 s22, 0x40000')
    g('s_mov_b32 s23, 0x20000')
    g('s_add_u32 s24, s20, 0x400000')
    g('s_addc_u32 s25, s21, 0')
    g('s_mov_b32 s26, 0x40000')
    g('s_mov_b32 s27, 0x20000')
    g(f's_add_u32 s28, s12, {WS_O}')
    g('s_addc_u32 s29, s13, 0')
    g('s_mov_b32 s30, 0x400000')
    g('s_mov_b32 s31, 0x20000')
    g('v_lshlrev_b32 v2, 4, v0')
    QA = 8; QB = 16; S0 = 32; S1 = 48; P = 64; O = 72; KF = 88; VF = 96; T = 104
    SB = [S0, S1]
    g('s_lshl_b32 s38, s33, 6')
    g('s_lshl_b32 s39, s34, 2')
    g('s_add_u32 s39, s39, s36')
    g('s_add_u32 s38, s38, s39')
    g('s_lshl_b32 s38, s38, 11')
    g(f'buffer_load_dwordx4 {vr(QA,4)}, v2, s[16:19], s38 offen')
    g(f'buffer_load_dwordx4 {vr(QA+4,4)}, v2, s[16:19], s38 offen offset:1024')
    g('s_add_u32 s38, s38, 0x200000')
    g(f'buffer_load_dwordx4 {vr(QB,4)}, v2, s[16:19], s38 offen')
    g(f'buffer_load_dwordx4 {vr(QB+4,4)}, v2, s[16:19], s38 offen offset:1024')
    def dma_tile(srd, s_goff, s_m0):
        g(f's_mov_b32 m0, {s_m0}')
        g('s_nop 0')
        for i in range(4):
            g(f'buffer_load_dwordx4 v2, s[{srd}:{srd+3}], {s_goff} offen offset:{i*1024} lds')
    g('s_lshl_b32 s40, s34, 2')
    g('s_add_u32 s40, s40, s35')
    g('s_sub_u32 s40, s40, 8')
    g('s_cmp_lt_i32 s40, 0')
    g('s_cbranch_scc1 Lattn_skipA0')
    g('s_lshl_b32 s41, s40, 12')
    g('s_lshl_b32 s42, s35, 12')
    dma_tile(20, 's41', 's42')
    g.label('Lattn_skipA0')
    g('s_cmp_ge_u32 s35, 4')
    g('s_cbranch_scc1 Lattn_skipA1')
    g('s_add_u32 s40, s40, 8')
    g('s_lshl_b32 s41, s40, 12')
    g('s_lshl_b32 s42, s35, 12')
    g('s_add_u32 s42, s42, 32768')
    dma_tile(20, 's41', 's42')
    g.label('Lattn_skipA1')
    def dma_stage(s):
        slot = (s + 2) & 3
        g('s_lshl_b32 s42, s35, 12')
        g(f's_add_u32 s41, s42, {s*8*4096}')
        g(f's_add_u32 s42, s42, {slot*32768}')
        dma_tile(24, 's41', 's42')
    dma_stage(0)
    dma_stage(1)
    g('s_lshl_b32 s40, s36, 12')
    g('v_add_u32 v3, s40, v2')
    g('s_lshl_b32 s40, s37, 14')
    g('v_add_u32 v4, s40, v2')
    g('v_add_u32 v5, 65536, v4')
    g('v_add_u32 v6, 131072, v3')
    g('s_lshl_b32 s40, s36, 8')
    g(f's_add_u32 s40, s40, {131072+16384}')
    g('v_lshlrev_b32 v7, 2, v0')
    g('v_add_u32 v7, s40, v7')
    g('v_and_b32 v24, 31, v0')
    g('v_lshrrev_b32 v25, 5, v0')
    g('v_lshlrev_b32 v25, 2, v25')
    g('v_sub_u32 v24, v24, v25')
    g(f'v_mov_b32 v26, {NEGBIG:#x}')
    g('s_mov_b32 s60, 0')
    g('s_mov_b32 s61, -1')

    def set_mask(sbuf, kind):
        for r in range(16):
            br_ = (r & 3) + 8 * (r >> 2)
            if kind == 'diag':
                g(f'v_cmp_le_i32 vcc, {br_}, v24')
            else:
                g(f'v_cmp_gt_i32 vcc, {br_}, v24')
            g('s_nop 1')
            g(f'v_cndmask_b32_e64 v{sbuf+r}, v26, 0, vcc')

    def rowmax_to_q(sbuf, q, mneg):
        t = T
        g(f'v_max3_f32 v{t}, v{sbuf}, v{sbuf+1}, v{sbuf+2}')
        for r in range(3, 15, 2):
            g(f'v_max3_f32 v{t}, v{t}, v{sbuf+r}, v{sbuf+r+1}')
        g(f'v_max_f32 v{t}, v{t}, v{sbuf+15}')
        g(f'v_mov_b32 v{t+1}, v{t}')
        g('s_nop 1')
        g(f'v_permlane32_swap_b32 v{t}, v{t+1}')
        g('s_nop 1')
        g(f'v_max_f32 v{t}, v{t}, v{t+1}')
        g(f'v_sub_f32 v{t}, 0, v{t}')
        g(f'v_cvt_pk_bf16_f32 v{t}, v{t}, 0')
        g(f'v_lshlrev_b32 v{mneg}, 16, v{t}')
        g('s_mov_b64 exec, s[60:61]')
        g(f'v_mov_b32 v{q+4+2}, v{t}')
        g('s_mov_b64 exec, -1')

    def unit_simple(lbase, off, q, mask, first, mneg):
        for f in range(2):
            g(f'ds_read_b128 {vr(KF+4*f,4)}, v{lbase} offset:{off+f*1024}')
        for f in range(2):
            g(f'ds_read_b128 {vr(VF+4*f,4)}, v{lbase} offset:{off+2048+f*1024}')
        sb = S0
        reps = 2 if first else 1
        for rep in range(reps):
            if mask:
                set_mask(sb, mask)
            if rep == 0:
                g('s_waitcnt lgkmcnt(2)')
            g('s_nop 1')
            g(mfma(sb, KF, q, sb if mask else None))
            g(mfma(sb, KF+4, q+4, sb))
            g('s_nop 15')
            if first and rep == 0:
                rowmax_to_q(sb, q, mneg)
                g('s_nop 1')
        for r in range(16):
            g(f'v_exp_f32 v{sb+r}, v{sb+r}')
        g('s_nop 0')
        for i in range(8):
            g(f'v_cvt_pk_bf16_f32 v{P+i}, v{sb+2*i}, v{sb+2*i+1}')
        g('s_waitcnt lgkmcnt(0)')
        g('s_nop 1')
        g(mfma(O, VF, P, O))
        g(mfma(O, VF+4, P+4, O))

    MN = 27
    def combine_and_store(tag, br):
        g('s_nop 15')
        g('s_cmp_eq_u32 s37, 0')
        g(f's_cbranch_scc1 L{tag}_nowrite')
        for i in range(4):
            g(f'ds_write_b128 v6, {vr(O+4*i,4)} offset:{i*1024}')
        g(f'ds_write_b32 v7, v{MN}')
        g.label(f'L{tag}_nowrite')
        g('s_waitcnt lgkmcnt(0)')

    def combine2(tag, br):
        g('s_cmp_eq_u32 s37, 0')
        g(f's_cbranch_scc0 L{tag}_done')
        for i in range(4):
            g(f'ds_read_b128 {vr(S0+4*i,4)}, v6 offset:{i*1024}')
        g(f'ds_read_b32 v{T}, v7')
        g('s_waitcnt lgkmcnt(0)')
        g(f'v_min_f32 v{T+1}, v{MN}, v{T}')
        g(f'v_sub_f32 v{T+2}, v{T+1}, v{MN}')
        g(f'v_sub_f32 v{T+3}, v{T+1}, v{T}')
        g(f'v_exp_f32 v{T+2}, v{T+2}')
        g(f'v_exp_f32 v{T+3}, v{T+3}')
        g('s_nop 0')
        for r in range(16):
            g(f'v_mul_f32 v{O+r}, v{O+r}, v{T+2}')
        for r in range(16):
            g(f'v_fmac_f32 v{O+r}, v{S0+r}, v{T+3}')
        g(f'v_mov_b32 v{T}, v{O+12}')
        g(f'v_mov_b32 v{T+1}, v{O+12}')
        g('s_nop 1')
        g(f'v_permlane32_swap_b32 v{T}, v{T+1}')
        g('s_nop 1')
        g(f'v_rcp_f32 v{T+1}, v{T+1}')
        g('s_nop 0')
        for r in range(16):
            g(f'v_mul_f32 v{O+r}, v{O+r}, v{T+1}')
        for i in range(8):
            g(f'v_cvt_pk_bf16_f32 v{P+i}, v{O+2*i}, v{O+2*i+1}')
        g('s_mov_b64 exec, s[60:61]')
        g(f'v_mov_b32 v{P+6}, 0')
        g(f'v_mov_b32 v{P+7}, 0')
        g('s_mov_b64 exec, -1')
        g('s_lshl_b32 s40, s34, 2')
        g('s_add_u32 s40, s40, s36')
        g(f's_add_u32 s40, s40, {br*64}')
        g('s_lshl_b32 s40, s40, 4')
        g('s_add_u32 s40, s40, s33')
        g('s_lshl_b32 s40, s40, 11')
        g('s_nop 0')
        g(f'buffer_store_dwordx4 {vr(P,4)}, v2, s[28:31], s40 offen')
        g(f'buffer_store_dwordx4 {vr(P+4,4)}, v2, s[28:31], s40 offen offset:1024')
        g('s_nop 1')
        g.label(f'L{tag}_done')

    for r in range(16):
        g(f'v_mov_b32 v{O+r}, 0')
    g(f'v_mov_b32 v{MN}, 0x7149f2ca')
    stamp(g, 1)
    g('s_waitcnt vmcnt(8)')
    g('s_barrier')
    stamp(g, 2)
    tl_mark(g, 98)
    g('s_lshl_b32 s40, s34, 2')
    g('s_add_u32 s40, s40, s36')
    g('s_sub_u32 s50, 8, s40')
    g('s_cmp_eq_u32 s37, 0')
    g('s_cbranch_scc0 LA_kh1')
    unit_simple(3, 8*4096, QA, 'diag', True, MN)
    for u in (7, 6, 5, 4):
        g(f's_cmp_gt_i32 s50, {u}')
        g('s_cbranch_scc1 LA_fin')
        unit_simple(3, u*4096, QA, None, False, MN)
    g('s_branch LA_fin')
    g.label('LA_kh1')
    for u in (3, 2, 1, 0):
        g(f's_cmp_gt_i32 s50, {u}')
        g('s_cbranch_scc1 LA_fin')
        unit_simple(3, u*4096, QA, 'first' if u == 0 else None, u == 3, MN)
    g.label('LA_fin')
    stamp(g, 3)
    combine_and_store('CA', 0)
    g('s_waitcnt vmcnt(4)')
    g('s_barrier')
    stamp(g, 4)
    dma_stage(2)
    dma_stage(3)
    combine2('CA', 0)
    stamp(g, 5)

    def tile_addr(t):
        s = t >> 2
        slot = (s + 2) & 3
        base = 4 + (slot >> 1)
        off = (slot & 1) * 32768 + (t & 3) * 4096
        return base, off
    def rdK(t):
        b, off = tile_addr(t)
        g(f'ds_read_b128 {vr(KF,4)}, v{b} offset:{off}')
        g(f'ds_read_b128 {vr(KF+4,4)}, v{b} offset:{off+1024}')
    def rdV(t, f):
        b, off = tile_addr(t)
        g(f'ds_read_b128 {vr(VF+4*f,4)}, v{b} offset:{off+2048+f*1024}')
    NT = 32
    rdK(0)
    g('s_waitcnt lgkmcnt(0)')
    g(mfma(S0, KF, QB, None))
    g(mfma(S0, KF+4, QB+4, S0))
    g('s_nop 15')
    rowmax_to_q(S0, QB, MN)
    g('s_nop 1')
    g(mfma(S0, KF, QB, None))
    g(mfma(S0, KF+4, QB+4, S0))
    rdK(1)
    rdV(0, 0)
    g('s_nop 15')
    def body(t):
        sb = SB[t & 1]; sn = SB[(t + 1) & 1]
        e = [f'v_exp_f32 v{sb+r}, v{sb+r}' for r in range(16)]
        c = [f'v_cvt_pk_bf16_f32 v{P+i}, v{sb+2*i}, v{sb+2*i+1}' for i in range(8)]
        has_next = t + 1 < NT
        if (t & 3) == 2:
            s = t >> 2
            if s + 1 <= 7:
                if s == 0: n = 8
                elif s + 2 <= 7: n = 4
                else: n = 0
                g(f's_waitcnt vmcnt({n})')
                g('s_barrier')
                if s >= 1 and s + 3 <= 7:
                    dma_stage(s + 3)
        if t > 0:
            n = (2 if t + 1 < NT else 0) + 1
            g(f's_waitcnt lgkmcnt({n})')
            g('s_nop 0')
            g(mfma(O, VF+4, P+4, O))
        rdV(t, 1)
        for i in e[0:4]: g(i)
        g(c[0])
        if has_next:
            g('s_waitcnt lgkmcnt(2)')
            g(mfma(sn, KF, QB, None))
        g(e[4]); g(e[5]); g(c[1]); g(e[6]); g(e[7]); g(c[2])
        if has_next:
            g(mfma(sn, KF+4, QB+4, sn))
        if t + 2 < NT:
            rdK(t + 2)
        g(e[8]); g(c[3]); g(e[9]); g(e[10]); g(e[11])
        n = 1 + (2 if t + 2 < NT else 0)
        g(f's_waitcnt lgkmcnt({n})')
        g(mfma(O, VF, P, O if t > 0 else None))
        if has_next:
            rdV(t + 1, 0)
        for i in e[12:16]: g(i)
        g(c[4]); g(c[5]); g(c[6]); g(c[7])
    stamp(g, 6)
    tl_mark(g, 100)
    for t in range(NT):
        if t in (8, 16, 24): stamp(g, 6 + t // 8)
        body(t)
    stamp(g, 10)
    g('s_waitcnt lgkmcnt(0)')
    g('s_nop 1')
    g(mfma(O, VF+4, P+4, O))
    combine_and_store('CB', 1)
    g('s_barrier')
    stamp(g, 11)
    combine2('CB', 1)
    stamp(g, 12)
    if STAMPS: g('s_waitcnt vmcnt(0)')
    stamp(g, 13); stamp(g, 14, True)
    stamp_dump(g, 1)
    tl_end(g, 1, (98, 100))
    g.label('Lattn_end')
    g('s_endpgm')
    return name, 112

def gen_proj(g):
    name = 'proj_kernel'
    kernel_header(g, name)
    g('s_cmp_ge_u32 s2, 224')
    g('s_cbranch_scc1 Lproj_end')
    tl_start(g, 2)
    stamp(g, 0); stamp(g, 15, True)
    g('s_load_dwordx2 s[4:5], s[0:1], 16')
    g('s_load_dwordx2 s[6:7], s[0:1], 40')
    g('s_load_dwordx2 s[8:9], s[0:1], 48')
    g('s_load_dwordx2 s[12:13], s[0:1], 64')
    g('s_and_b32 s33, s2, 7')
    g('s_lshr_b32 s34, s2, 3')
    g('s_lshr_b32 s35, s33, 2')
    g('s_and_b32 s36, s33, 3')
    g('s_lshl_b32 s36, s36, 2')
    g('s_and_b32 s37, s34, 3')
    g('s_add_u32 s36, s36, s37')
    g('s_lshr_b32 s37, s34, 2')
    g('v_lshrrev_b32 v1, 6, v0')
    g('v_and_b32 v0, 63, v0')
    g('s_nop 0')
    g('v_readfirstlane_b32 s39, v1')
    if STAMPS: g('s_mov_b32 s69, s39')
    g('s_and_b32 s46, s39, 3')
    g('s_lshr_b32 s47, s39, 2')
    g('s_waitcnt lgkmcnt(0)')
    g('s_cmp_eq_u32 s35, 0')
    g('s_cselect_b32 s4, s4, s6')
    g('s_cselect_b32 s5, s5, s7')
    make_srd(g, 16, 4, 5, 448 * 896)
    make_srd(g, 20, 8, 9, 2048 * 1792)
    g(f's_add_u32 s28, s12, {WS_O}')
    g('s_addc_u32 s29, s13, 0')
    g('s_mov_b32 s30, 0x400000')
    g('s_mov_b32 s31, 0x20000')
    g('v_lshrrev_b32 v4, 3, v0')
    g('v_and_b32 v5, 7, v0')
    g('v_and_b32 v6, 2, v4')
    g('v_lshlrev_b32 v6, 1, v6')
    g('v_xor_b32 v5, v5, v6')
    g('s_lshl_b32 s40, s39, 3')
    g('v_add_u32 v4, s40, v4')
    g('v_mul_u32_u24 v4, 896, v4')
    g('v_lshl_add_u32 v4, v5, 4, v4')
    g('s_lshl_b32 s40, s37, 7')
    g('v_add_u32 v3, s40, v4')
    g('s_lshl_b32 s42, s39, 10')
    for it in range(8):
        if it == 7:
            g('s_cmp_ge_u32 s39, 1')
            g('s_cbranch_scc1 Lproj_skip')
        g(f's_add_u32 m0, s42, {it*8192}')
        g(f'v_add_u32 v4, {it*64*896}, v3')
        g('buffer_load_dwordx4 v4, s[16:19], 0 offen lds')
    g.label('Lproj_skip')
    g('v_lshlrev_b32 v2, 4, v0')
    g('s_lshl_b32 s40, s35, 6')
    g('s_lshl_b32 s41, s36, 2')
    g('s_add_u32 s40, s40, s41')
    g('s_add_u32 s40, s40, s46')
    g('s_lshl_b32 s40, s40, 15')
    OF = 64
    for n in range(32):
        if n % 4 == 0 and n > 0:
            g('s_add_u32 s40, s40, 4096')
        g(f'buffer_load_dwordx4 {vr(OF+4*n,4)}, v2, s[28:31], s40 offen offset:{(n%4)*1024}')
    g('v_bfe_u32 v4, v0, 2, 2')
    g('v_and_b32 v5, 3, v0')
    g('v_bfe_u32 v7, v0, 4, 1')
    g('v_lshrrev_b32 v6, 5, v0')
    g('v_lshlrev_b32 v7, 5, v7')
    g('v_lshl_add_u32 v7, v5, 3, v7')
    g('s_lshl_b32 s40, s47, 6')
    g('v_add_u32 v7, s40, v7')
    g('v_lshrrev_b32 v11, 4, v7')
    g('v_and_b32 v8, 2, v4')
    g('v_lshlrev_b32 v8, 1, v8')
    g('v_xor_b32 v11, v11, v8')
    g('v_and_b32 v7, 15, v7')
    g('v_lshl_add_u32 v7, v11, 4, v7')
    g('v_lshl_add_u32 v4, v6, 2, v4')
    g('v_lshl_add_u32 v9, v4, 7, v7')
    ACC = 16; WF = 32
    stamp(g, 1)
    g('s_waitcnt vmcnt(32)')
    g('s_barrier')
    stamp(g, 2)
    tl_mark(g, 98)
    steps = [(h, i) for h in range(16) for i in range(2)]
    def rd(n, buf):
        h, i = steps[n]
        for jj in range(2):
            off = (28*h + 16*i + 8*jj) * 128
            g(f'ds_read_b64_tr_b16 {vr(WF+4*buf+2*jj,2)}, v9 offset:{off}')
    rd(0, 0); rd(1, 1); rd(2, 2)
    for n in range(32):
        if n + 3 < 32:
            rd(n + 3, (n + 3) & 3)
        rem = min(3, 31 - n)
        g(f's_waitcnt vmcnt({31-n}) lgkmcnt({2*rem})')
        g(mfma(ACC, WF + 4*(n & 3), OF + 4*n, None if n == 0 else ACC))
    g('s_nop 15')
    g('s_nop 7')
    stamp(g, 3)
    tl_mark(g, 100)
    P = 48
    for i in range(8):
        g(f'v_cvt_pk_bf16_f32 v{P+i}, v{ACC+2*i}, v{ACC+2*i+1}')
    g('s_nop 1')
    for k in range(2):
        a = P + 4*k
        g(f'v_permlane32_swap_b32 v{a}, v{a+2}')
        g(f'v_permlane32_swap_b32 v{a+1}, v{a+3}')
    g('v_and_b32 v4, 31, v0')
    g('s_lshl_b32 s40, s36, 7')
    g('s_lshl_b32 s41, s46, 5')
    g('s_add_u32 s40, s40, s41')
    g('v_add_u32 v4, s40, v4')
    g('v_mul_u32_u24 v4, 1792, v4')
    g('v_lshl_add_u32 v4, v6, 4, v4')
    g('s_mul_i32 s40, s35, 896')
    g('s_lshl_b32 s41, s37, 7')
    g('s_add_u32 s40, s40, s41')
    g('s_lshl_b32 s41, s47, 6')
    g('s_add_u32 s40, s40, s41')
    g(f'buffer_store_dwordx4 {vr(P,4)}, v4, s[20:23], s40 offen')
    g(f'buffer_store_dwordx4 {vr(P+4,4)}, v4, s[20:23], s40 offen offset:32')
    stamp(g, 4)
    if STAMPS: g('s_waitcnt vmcnt(0)')
    stamp(g, 5); stamp(g, 14, True)
    stamp_dump(g, 2)
    tl_end(g, 2, (98, 100))
    g.label('Lproj_end')
    g('s_endpgm')
    return name, 192

HEADER = '''; Kernarg layout for this problem (72 bytes, ptrs only, base s[0:1]):
'''

def main(out):
    g = Gen()
    launches = [
        ('qkv_kernel', 256, 512, 163840),
        ('attn_kernel', 256, 512, 131072 + 16384 + 1024),
        ('proj_kernel', 224, 512, 57 * 1024),
    ]
    txt = HEADER
    for n, gr, bl, lds in launches:
        txt += f'; @launch kernel={n} grid=({gr},1,1) block=({bl},1,1) lds={lds}\n'
    txt += '.amdgcn_target "amdgcn-amd-amdhsa--gfx950"\n.text\n'
    descs = []
    for fn in (gen_qkv, gen_attn, gen_proj):
        name, vg = fn(g)
        descs.append(kernel_desc(name, vg))
    txt += g.text()
    txt += '.section .rodata,"a"\n'
    for d in descs:
        txt += '.p2align 6\n' + d
    open(out, 'w').write(txt)

if __name__ == '__main__':
    if len(sys.argv) > 2 and sys.argv[2] == 'stamps':
        STAMPS = True
    if len(sys.argv) > 2 and sys.argv[2] == 'tl':
        TL = True
    main(sys.argv[1] if len(sys.argv) > 1 else 'concat_heads__sliding_block__softmax_full_mha__prompt.s')
```

```python
import sys, math, struct

def f32bits(x):
    return struct.unpack('<I', struct.pack('<f', x))[0]

class Gen:
    def __init__(self):
        self.lines = []
    def __call__(self, s):
        for l in s.split('\n'):
            l = l.strip()
            if l:
                self.lines.append('  ' + l)
    def label(self, s):
        self.lines.append(s + ':')
    def raw(self, s):
        self.lines.append(s)
    def text(self):
        return '\n'.join(self.lines) + '\n'

def vr(base, n):
    return f'v[{base}:{base+n-1}]'
def sr(base, n):
    return f's[{base}:{base+n-1}]'

def mfma(d, a, b, c):
    cs = '0' if c is None else vr(c, 16)
    return f'v_mfma_f32_32x32x16_bf16 {vr(d,16)}, {vr(a,4)}, {vr(b,4)}, {cs}'

STAMPS = False
STAMP_BASE = 0x2000000
def stamp(g, i, real=False):
    if not STAMPS: return
    op = 's_memrealtime' if real else 's_memtime'
    g(f'{op} s[{70+2*i}:{71+2*i}]')
def stamp_dump(g, kidx, ws_lo=12, ws_hi=13, nwaves=8):
    if not STAMPS: return
    g('s_waitcnt lgkmcnt(0) vmcnt(0)')
    g(f's_add_u32 s64, s{ws_lo}, {STAMP_BASE + kidx*0x100000}')
    g(f's_addc_u32 s65, s{ws_hi}, 0')
    g('s_mov_b32 s66, 0x100000')
    g('s_mov_b32 s67, 0x20000')
    g('s_mov_b64 exec, -1')
    g('v_mov_b32 v1, 0')
    for i in range(16):
        g(f'v_writelane_b32 v1, s{70+2*i}, {i}')
    g(f's_mul_i32 s68, s2, {nwaves}')
    g('s_add_u32 s68, s68, s69')
    g('s_lshl_b32 s68, s68, 6')
    g('v_lshlrev_b32 v3, 2, v0')
    g('v_cmp_gt_u32 vcc, 16, v0')
    g('s_and_saveexec_b64 s[62:63], vcc')
    g('buffer_store_dword v1, v3, s[64:67], s68 offen')
    g('s_waitcnt vmcnt(0)')

TL = False
TL_BASE = 0x3000000
def tl_start(g, k):
    if not TL: return
    g('s_memrealtime s[90:91]')
def tl_mark(g, reg):
    if not TL: return
    g(f's_memrealtime s[{reg}:{reg+1}]')
def tl_end(g, k, wreg, marks=(), ws_lo=12, ws_hi=13):
    if not TL: return
    g('s_waitcnt vmcnt(0) lgkmcnt(0)')
    g('s_memrealtime s[96:97]')
    g(f's_add_u32 s92, s{ws_lo}, {TL_BASE + k*0x10000}')
    g(f's_addc_u32 s93, s{ws_hi}, 0')
    g('s_mov_b32 s94, 0x10000')
    g('s_mov_b32 s95, 0x20000')
    g('s_waitcnt lgkmcnt(0)')
    g('s_mov_b64 exec, 1')
    g('v_mov_b32 v4, s90')
    g('v_mov_b32 v5, s96')
    g(f'v_mov_b32 v6, s{marks[0]}')
    g(f'v_mov_b32 v7, s{marks[1]}')
    g('s_lshl_b32 s88, s2, 3')
    g(f's_add_u32 s88, s88, s{wreg}')
    g('s_lshl_b32 s88, s88, 4')
    g('v_mov_b32 v3, 0')
    g('buffer_store_dwordx4 v[4:7], v3, s[92:95], s88 offen')

def gen_tlsum(g):
    name = 'tlsum_kernel'
    kernel_header(g, name)
    g('s_cmp_ge_u32 s2, 1')
    g('s_cbranch_scc1 Ltl_end')
    g('s_load_dwordx2 s[12:13], s[0:1], 64')
    g('s_load_dwordx2 s[8:9], s[0:1], 56')
    g('s_waitcnt lgkmcnt(0)')
    g('s_mov_b32 s10, 256')
    g('s_mov_b32 s11, 0x20000')
    for k, cnt in enumerate((32, 32, 28)):
        g(f's_add_u32 s16, s12, {TL_BASE + k*0x10000}')
        g('s_addc_u32 s17, s13, 0')
        g('s_mov_b32 s18, 0x10000')
        g('s_mov_b32 s19, 0x20000')
        g('v_lshlrev_b32 v1, 4, v0')
        g('v_mov_b32 v8, 0')
        g('v_mov_b32 v9, 0')
        g('v_mov_b32 v10, 0')
        g('v_mov_b32 v11, 0')
        g('v_mov_b32 v12, 0')
        for i in range(cnt):
            g(f's_mov_b32 s20, {i*1024}')
            g('buffer_load_dwordx4 v[4:7], v1, s[16:19], s20 offen')
            g('s_waitcnt vmcnt(0)')
            g('v_max_u32 v12, v12, v4')
            g('v_not_b32 v4, v4')
            g('v_max_u32 v8, v8, v4')
            g('v_max_u32 v9, v9, v5')
            g('v_max_u32 v10, v10, v6')
            g('v_max_u32 v11, v11, v7')
        g(f'v_mov_b32 v2, {k*20}')
        g('buffer_atomic_umax v8, v2, s[8:11], 0 offen')
        g('buffer_atomic_umax v9, v2, s[8:11], 0 offen offset:4')
        g('buffer_atomic_umax v10, v2, s[8:11], 0 offen offset:8')
        g('buffer_atomic_umax v11, v2, s[8:11], 0 offen offset:12')
        g('buffer_atomic_umax v12, v2, s[8:11], 0 offen offset:16')
        g('s_waitcnt vmcnt(0)')
    g.label('Ltl_end')
    g('s_endpgm')
    return name, 32

WS_Q = 0
WS_KV = 0x400000
WS_O = 0xC00000
QSCALE = (28 ** -0.5) * math.log2(math.e)

def kernel_header(g, name):
    g.raw(f'.globl {name}')
    g.raw('.p2align 8')
    g.raw(f'.type {name},@function')
    g.label(name)

def kernel_desc(name, vgpr, sgpr=102):
    acc = (vgpr + 3) // 4 * 4
    return f'''.amdhsa_kernel {name}
  .amdhsa_next_free_vgpr {vgpr}
  .amdhsa_next_free_sgpr {sgpr}
  .amdhsa_accum_offset {acc}
  .amdhsa_group_segment_fixed_size 0
  .amdhsa_kernarg_size 72
  .amdhsa_user_sgpr_count 2
  .amdhsa_user_sgpr_kernarg_segment_ptr 1
  .amdhsa_system_sgpr_workgroup_id_x 1
.end_amdhsa_kernel
'''

def make_srd(g, dst, lo, hi, nbytes):
    g(f's_mov_b32 s{dst}, s{lo}')
    g(f's_mov_b32 s{dst+1}, s{hi}')
    g(f's_mov_b32 s{dst+2}, {nbytes}')
    g(f's_mov_b32 s{dst+3}, 0x20000')

def gen_qkv(g):
    name = 'qkv_kernel'
    kernel_header(g, name)
    g('s_cmp_ge_u32 s2, 256')
    g('s_cbranch_scc1 Lqkv_end')
    tl_start(g, 0)
    stamp(g, 0); stamp(g, 15, True)
    g('s_load_dwordx2 s[4:5], s[0:1], 0')
    g('s_load_dwordx2 s[6:7], s[0:1], 8')
    g('s_load_dwordx2 s[8:9], s[0:1], 24')
    g('s_load_dwordx2 s[10:11], s[0:1], 32')
    g('s_load_dwordx2 s[12:13], s[0:1], 64')
    g('s_and_b32 s33, s2, 7')
    g('s_lshr_b32 s34, s2, 3')
    g('s_lshr_b32 s35, s33, 2')
    g('s_bfe_u32 s36, s33, 0x10001')
    g('s_and_b32 s37, s33, 1')
    g('s_and_b32 s38, s34, 7')
    g('s_lshl_b32 s36, s36, 3')
    g('s_add_u32 s36, s36, s38')
    g('s_lshr_b32 s38, s34, 3')
    g('s_lshl_b32 s37, s37, 2')
    g('s_add_u32 s37, s37, s38')
    g('v_lshrrev_b32 v1, 6, v0')
    g('v_and_b32 v0, 63, v0')
    g('s_nop 0')
    g('v_readfirstlane_b32 s39, v1')
    if STAMPS: g('s_mov_b32 s69, s39')
    g('s_waitcnt lgkmcnt(0)')
    stamp(g, 1)
    g('s_cmp_eq_u32 s35, 0')
    g('s_cselect_b32 s4, s4, s8')
    g('s_cselect_b32 s5, s5, s9')
    g('s_cselect_b32 s6, s6, s10')
    g('s_cselect_b32 s7, s7, s11')
    make_srd(g, 16, 4, 5, 2048 * 896)
    make_srd(g, 20, 6, 7, 448 * 2688)
    make_srd(g, 24, 12, 13, 0x400000)
    g(f's_add_u32 s28, s12, {WS_KV}')
    g('s_addc_u32 s29, s13, 0')
    g('s_mov_b32 s30, 0x800000')
    g('s_mov_b32 s31, 0x20000')
    g('s_lshl_b32 s40, s36, 7')
    g('s_lshl_b32 s41, s39, 4')
    g('s_add_u32 s40, s40, s41')
    g('v_lshrrev_b32 v4, 3, v0')
    g('v_add_u32 v4, s40, v4')
    g('v_mul_u32_u24 v4, 896, v4')
    g('v_lshrrev_b32 v5, 4, v0')
    g('v_and_b32 v6, 7, v0')
    g('v_xor_b32 v7, v6, v5')
    g('v_lshl_add_u32 v2, v7, 4, v4')
    g('v_xor_b32 v7, 4, v7')
    g('v_lshl_add_u32 v3, v7, 4, v4')
    g('v_add_u32 v3, 7168, v3')
    for i in range(3):
        g(f'v_add_u32 v4, {64*i}, v0')
        g('v_mul_u32_u24 v5, 171, v4')
        g('v_lshrrev_b32 v5, 12, v5')
        g('v_mul_u32_u24 v6, 24, v5')
        g('v_sub_u32 v6, v4, v6')
        g('v_lshrrev_b32 v7, 3, v6')
        g('v_and_b32 v6, 7, v6')
        g('v_and_b32 v11, 2, v5')
        g('v_lshlrev_b32 v11, 1, v11')
        g('v_xor_b32 v6, v6, v11')
        g('s_lshl_b32 s40, s39, 3')
        g('v_add_u32 v5, s40, v5')
        g('v_mul_u32_u24 v5, 2688, v5')
        g('v_mul_u32_u24 v7, 896, v7')
        g('v_add_u32 v5, v5, v7')
        g('v_lshl_add_u32 v5, v6, 4, v5')
        g('s_mul_i32 s40, s37, 112')
        g(f'v_add_u32 v{8+i}, s40, v5')
    g('s_lshl_b32 s42, s39, 11')
    g('s_mul_i32 s43, s39, 3072')
    g('s_add_u32 s43, s43, 65536')

    def issue_chunk(kc):
        st = kc % 4
        g(f's_mov_b32 s44, {kc*128}')
        g(f's_mov_b32 s45, {kc*64*2688}')
        for e in range(2):
            g(f's_add_u32 m0, s42, {st*16384 + e*1024}')
            g('s_nop 0')
            g(f'buffer_load_dwordx4 v{2+e}, s[16:19], s44 offen lds')
        for i in range(3):
            g(f's_add_u32 m0, s43, {st*24576 + i*1024}')
            g('s_nop 0')
            g(f'buffer_load_dwordx4 v{8+i}, s[20:23], s45 offen lds')

    for kc in range(4):
        issue_chunk(kc)

    g('s_lshr_b32 s46, s39, 1')
    g('s_and_b32 s47, s39, 1')
    g('v_and_b32 v4, 31, v0')
    g('s_lshl_b32 s40, s46, 5')
    g('v_add_u32 v4, s40, v4')
    g('v_lshlrev_b32 v4, 7, v4')
    g('v_bfe_u32 v5, v0, 1, 3')
    g('v_lshrrev_b32 v6, 5, v0')
    for ks in range(4):
        g(f'v_add_u32 v7, {2*ks}, v6')
        g('v_xor_b32 v7, v7, v5')
        g(f'v_lshl_add_u32 v{12+ks}, v7, 4, v4')
    g('v_bfe_u32 v4, v0, 2, 2')
    g('v_and_b32 v5, 3, v0')
    g('v_bfe_u32 v7, v0, 4, 1')
    g('v_lshlrev_b32 v7, 5, v7')
    g('v_lshl_add_u32 v7, v5, 3, v7')
    g('s_mul_i32 s40, s47, 56')
    g('v_add_u32 v7, s40, v7')
    g('v_lshrrev_b32 v11, 4, v7')
    g('v_and_b32 v18, 2, v4')
    g('v_lshlrev_b32 v18, 1, v18')
    g('v_xor_b32 v11, v11, v18')
    g('v_and_b32 v7, 15, v7')
    g('v_lshl_add_u32 v7, v11, 4, v7')
    g('v_lshl_add_u32 v4, v6, 3, v4')
    g('v_mul_u32_u24 v4, 384, v4')
    g('v_add_u32 v16, v4, v7')
    g('v_add_u32 v16, 65536, v16')
    g('v_add_u32 v17, 49152, v16')

    ACC = 32
    XF = 80
    WF = 88
    def reads(kc, ks, buf):
        st = kc % 4
        g(f'ds_read_b128 {vr(XF+4*buf,4)}, v{12+ks} offset:{st*16384}')
        wb = 16 + (st >> 1)
        for seg in range(3):
            for jj in range(2):
                off = (st & 1) * 24576 + (ks*16 + jj*4) * 384 + seg * 128
                g(f'ds_read_b64_tr_b16 {vr(WF+12*buf+4*seg+2*jj,2)}, v{wb} offset:{off}')
    def mfmas(buf, first):
        x = XF + 4*buf
        for seg in range(3):
            wf = WF + 12*buf + 4*seg
            d = ACC + 16*seg
            c = None if first else d
            if seg < 2:
                g(mfma(d, wf, x, c))
            else:
                g(mfma(d, x, wf, c))

    for kc in range(7):
        if kc == 0: n = 15
        elif kc <= 4: n = 10
        elif kc == 5: n = 5
        else: n = 0
        if kc == 0: stamp(g, 2)
        g(f's_waitcnt vmcnt({n})')
        g('s_barrier')
        stamp(g, 3 + kc)
        if kc == 0: tl_mark(g, 98)
        if 1 <= kc <= 3:
            issue_chunk(kc + 3)
        reads(kc, 0, 0)
        for ks in range(4):
            if ks < 3:
                reads(kc, ks + 1, (ks + 1) & 1)
                g('s_waitcnt lgkmcnt(7)')
            else:
                g('s_waitcnt lgkmcnt(0)')
            mfmas(ks & 1, kc == 0 and ks == 0)
    g('s_nop 15')
    g('s_nop 7')
    stamp(g, 10)
    tl_mark(g, 100)
    g('s_lshl_b32 s40, s37, 1')
    g('s_add_u32 s40, s40, s47')
    g('s_lshl_b32 s41, s35, 4')
    g('s_add_u32 s40, s40, s41')
    g('s_lshl_b32 s40, s40, 6')
    g('s_lshl_b32 s41, s36, 2')
    g('s_add_u32 s41, s41, s46')
    g('s_add_u32 s40, s40, s41')
    g('s_lshl_b32 s48, s40, 11')
    g('s_lshl_b32 s49, s40, 12')
    g('v_lshlrev_b32 v2, 4, v0')
    g(f's_mov_b32 s50, {f32bits(QSCALE):#x}')
    P = 88
    for r in range(16):
        g(f'v_mul_f32 v{ACC+r}, s50, v{ACC+r}')
    for i in range(8):
        g(f'v_cvt_pk_bf16_f32 v{P+i}, v{ACC+2*i}, v{ACC+2*i+1}')
    for i in range(8):
        g(f'v_cvt_pk_bf16_f32 v{P+8+i}, v{ACC+16+2*i}, v{ACC+16+2*i+1}')
    for i in range(8):
        g(f'v_cvt_pk_bf16_f32 v{P+16+i}, v{ACC+32+2*i}, v{ACC+32+2*i+1}')
    g('s_mov_b32 s52, 0')
    g('s_mov_b32 s53, -1')
    g('s_mov_b64 exec, s[52:53]')
    g(f'v_mov_b32 v{P+6}, 0')
    g(f'v_mov_b32 v{P+7}, 0')
    g(f'v_mov_b32 v{P+8+6}, 0x3f80')
    g(f'v_mov_b32 v{P+8+7}, 0')
    g('s_mov_b32 s52, 0xe0000000')
    g('s_mov_b32 s53, 0xe0000000')
    g('s_mov_b64 exec, s[52:53]')
    for i in range(8):
        g(f'v_mov_b32 v{P+16+i}, 0')
    g('s_mov_b32 s52, 0x10000000')
    g('s_mov_b32 s53, 0x10000000')
    g('s_mov_b64 exec, s[52:53]')
    for i in range(8):
        g(f'v_mov_b32 v{P+16+i}, 0x3f803f80')
    g('s_mov_b64 exec, -1')
    g('s_nop 1')
    g(f'buffer_store_dwordx4 {vr(P,4)}, v2, s[24:27], s48 offen')
    g(f'buffer_store_dwordx4 {vr(P+4,4)}, v2, s[24:27], s48 offen offset:1024')
    g(f'buffer_store_dwordx4 {vr(P+8,4)}, v2, s[28:31], s49 offen')
    g(f'buffer_store_dwordx4 {vr(P+12,4)}, v2, s[28:31], s49 offen offset:1024')
    g(f'buffer_store_dwordx4 {vr(P+16,4)}, v2, s[28:31], s49 offen offset:2048')
    g(f'buffer_store_dwordx4 {vr(P+20,4)}, v2, s[28:31], s49 offen offset:3072')
    stamp(g, 11)
    if STAMPS: g('s_waitcnt vmcnt(0)')
    stamp(g, 12); stamp(g, 14, True)
    stamp_dump(g, 0)
    tl_end(g, 0, 39, (98, 100))
    g.label('Lqkv_end')
    g('s_endpgm')
    return name, 112

NEGBIG = 0xf149f2ca
def gen_attn(g):
    name = 'attn_kernel'
    kernel_header(g, name)
    g('s_cmp_ge_u32 s2, 256')
    g('s_cbranch_scc1 Lattn_end')
    tl_start(g, 1)
    stamp(g, 0); stamp(g, 15, True)
    g('s_load_dwordx2 s[12:13], s[0:1], 64')
    g('s_and_b32 s33, s2, 7')
    g('s_bfe_u32 s34, s2, 0x10003')
    g('s_lshl_b32 s33, s33, 1')
    g('s_add_u32 s33, s33, s34')
    g('s_lshr_b32 s34, s2, 4')
    g('v_lshrrev_b32 v1, 6, v0')
    g('v_and_b32 v0, 63, v0')
    g('s_nop 0')
    g('v_readfirstlane_b32 s35, v1')
    if STAMPS: g('s_mov_b32 s69, s35')
    g('s_and_b32 s36, s35, 3')
    g('s_lshr_b32 s37, s35, 2')
    g('s_waitcnt lgkmcnt(0)')
    make_srd(g, 16, 12, 13, 0x400000)
    g('s_lshl_b32 s38, s33, 18')
    g(f's_add_u32 s38, s38, {WS_KV}')
    g('s_add_u32 s20, s12, s38')
    g('s_addc_u32 s21, s13, 0')
    g('s_mov_b32 s22, 0x40000')
    g('s_mov_b32 s23, 0x20000')
    g('s_add_u32 s24, s20, 0x400000')
    g('s_addc_u32 s25, s21, 0')
    g('s_mov_b32 s26, 0x40000')
    g('s_mov_b32 s27, 0x20000')
    g(f's_add_u32 s28, s12, {WS_O}')
    g('s_addc_u32 s29, s13, 0')
    g('s_mov_b32 s30, 0x400000')
    g('s_mov_b32 s31, 0x20000')
    g('v_lshlrev_b32 v2, 4, v0')
    QA = 8; QB = 16; S0 = 32; S1 = 48; P = 64; O = 72; KF = 88; VF = 96; T = 104
    SB = [S0, S1]
    g('s_lshl_b32 s38, s33, 6')
    g('s_lshl_b32 s39, s34, 2')
    g('s_add_u32 s39, s39, s36')
    g('s_add_u32 s38, s38, s39')
    g('s_lshl_b32 s38, s38, 11')
    g(f'buffer_load_dwordx4 {vr(QA,4)}, v2, s[16:19], s38 offen')
    g(f'buffer_load_dwordx4 {vr(QA+4,4)}, v2, s[16:19], s38 offen offset:1024')
    g('s_add_u32 s38, s38, 0x200000')
    g(f'buffer_load_dwordx4 {vr(QB,4)}, v2, s[16:19], s38 offen')
    g(f'buffer_load_dwordx4 {vr(QB+4,4)}, v2, s[16:19], s38 offen offset:1024')
    def dma_tile(srd, s_goff, s_m0):
        g(f's_mov_b32 m0, {s_m0}')
        g('s_nop 0')
        for i in range(4):
            g(f'buffer_load_dwordx4 v2, s[{srd}:{srd+3}], {s_goff} offen offset:{i*1024} lds')
    g('s_lshl_b32 s40, s34, 2')
    g('s_add_u32 s40, s40, s35')
    g('s_sub_u32 s40, s40, 8')
    g('s_cmp_lt_i32 s40, 0')
    g('s_cbranch_scc1 Lattn_skipA0')
    g('s_lshl_b32 s41, s40, 12')
    g('s_lshl_b32 s42, s35, 12')
    dma_tile(20, 's41', 's42')
    g.label('Lattn_skipA0')
    g('s_cmp_ge_u32 s35, 4')
    g('s_cbranch_scc1 Lattn_skipA1')
    g('s_add_u32 s40, s40, 8')
    g('s_lshl_b32 s41, s40, 12')
    g('s_lshl_b32 s42, s35, 12')
    g('s_add_u32 s42, s42, 32768')
    dma_tile(20, 's41', 's42')
    g.label('Lattn_skipA1')
    def dma_stage(s):
        slot = (s + 2) & 3
        g('s_lshl_b32 s42, s35, 12')
        g(f's_add_u32 s41, s42, {s*8*4096}')
        g(f's_add_u32 s42, s42, {slot*32768}')
        dma_tile(24, 's41', 's42')
    dma_stage(0)
    dma_stage(1)
    g('s_lshl_b32 s40, s36, 12')
    g('v_add_u32 v3, s40, v2')
    g('s_lshl_b32 s40, s37, 14')
    g('v_add_u32 v4, s40, v2')
    g('v_add_u32 v5, 65536, v4')
    g('v_add_u32 v6, 131072, v3')
    g('s_lshl_b32 s40, s36, 8')
    g(f's_add_u32 s40, s40, {131072+16384}')
    g('v_lshlrev_b32 v7, 2, v0')
    g('v_add_u32 v7, s40, v7')
    g('v_and_b32 v24, 31, v0')
    g('v_lshrrev_b32 v25, 5, v0')
    g('v_lshlrev_b32 v25, 2, v25')
    g('v_sub_u32 v24, v24, v25')
    g(f'v_mov_b32 v26, {NEGBIG:#x}')
    g('s_mov_b32 s60, 0')
    g('s_mov_b32 s61, -1')

    def set_mask(sbuf, kind):
        for r in range(16):
            br_ = (r & 3) + 8 * (r >> 2)
            if kind == 'diag':
                g(f'v_cmp_le_i32 vcc, {br_}, v24')
            else:
                g(f'v_cmp_gt_i32 vcc, {br_}, v24')
            g('s_nop 1')
            g(f'v_cndmask_b32_e64 v{sbuf+r}, v26, 0, vcc')

    def rowmax_to_q(sbuf, q, mneg):
        t = T
        g(f'v_max3_f32 v{t}, v{sbuf}, v{sbuf+1}, v{sbuf+2}')
        for r in range(3, 15, 2):
            g(f'v_max3_f32 v{t}, v{t}, v{sbuf+r}, v{sbuf+r+1}')
        g(f'v_max_f32 v{t}, v{t}, v{sbuf+15}')
        g(f'v_mov_b32 v{t+1}, v{t}')
        g('s_nop 1')
        g(f'v_permlane32_swap_b32 v{t}, v{t+1}')
        g('s_nop 1')
        g(f'v_max_f32 v{t}, v{t}, v{t+1}')
        g(f'v_sub_f32 v{t}, 0, v{t}')
        g(f'v_cvt_pk_bf16_f32 v{t}, v{t}, 0')
        g(f'v_lshlrev_b32 v{mneg}, 16, v{t}')
        g('s_mov_b64 exec, s[60:61]')
        g(f'v_mov_b32 v{q+4+2}, v{t}')
        g('s_mov_b64 exec, -1')

    def unit_simple(lbase, off, q, mask, first, mneg):
        for f in range(2):
            g(f'ds_read_b128 {vr(KF+4*f,4)}, v{lbase} offset:{off+f*1024}')
        for f in range(2):
            g(f'ds_read_b128 {vr(VF+4*f,4)}, v{lbase} offset:{off+2048+f*1024}')
        sb = S0
        reps = 2 if first else 1
        for rep in range(reps):
            if mask:
                set_mask(sb, mask)
            if rep == 0:
                g('s_waitcnt lgkmcnt(2)')
            g('s_nop 1')
            g(mfma(sb, KF, q, sb if mask else None))
            g(mfma(sb, KF+4, q+4, sb))
            g('s_nop 15')
            if first and rep == 0:
                rowmax_to_q(sb, q, mneg)
                g('s_nop 1')
        for r in range(16):
            g(f'v_exp_f32 v{sb+r}, v{sb+r}')
        g('s_nop 0')
        for i in range(8):
            g(f'v_cvt_pk_bf16_f32 v{P+i}, v{sb+2*i}, v{sb+2*i+1}')
        g('s_waitcnt lgkmcnt(0)')
        g('s_nop 1')
        g(mfma(O, VF, P, O))
        g(mfma(O, VF+4, P+4, O))

    MN = 27
    def combine_and_store(tag, br):
        g('s_nop 15')
        g('s_cmp_eq_u32 s37, 0')
        g(f's_cbranch_scc1 L{tag}_nowrite')
        for i in range(4):
            g(f'ds_write_b128 v6, {vr(O+4*i,4)} offset:{i*1024}')
        g(f'ds_write_b32 v7, v{MN}')
        g.label(f'L{tag}_nowrite')
        g('s_waitcnt lgkmcnt(0)')

    def combine2(tag, br):
        g('s_cmp_eq_u32 s37, 0')
        g(f's_cbranch_scc0 L{tag}_done')
        for i in range(4):
            g(f'ds_read_b128 {vr(S0+4*i,4)}, v6 offset:{i*1024}')
        g(f'ds_read_b32 v{T}, v7')
        g('s_waitcnt lgkmcnt(0)')
        g(f'v_min_f32 v{T+1}, v{MN}, v{T}')
        g(f'v_sub_f32 v{T+2}, v{T+1}, v{MN}')
        g(f'v_sub_f32 v{T+3}, v{T+1}, v{T}')
        g(f'v_exp_f32 v{T+2}, v{T+2}')
        g(f'v_exp_f32 v{T+3}, v{T+3}')
        g('s_nop 0')
        for r in range(16):
            g(f'v_mul_f32 v{O+r}, v{O+r}, v{T+2}')
        for r in range(16):
            g(f'v_fmac_f32 v{O+r}, v{S0+r}, v{T+3}')
        g(f'v_mov_b32 v{T}, v{O+12}')
        g(f'v_mov_b32 v{T+1}, v{O+12}')
        g('s_nop 1')
        g(f'v_permlane32_swap_b32 v{T}, v{T+1}')
        g('s_nop 1')
        g(f'v_rcp_f32 v{T+1}, v{T+1}')
        g('s_nop 0')
        for r in range(16):
            g(f'v_mul_f32 v{O+r}, v{O+r}, v{T+1}')
        for i in range(8):
            g(f'v_cvt_pk_bf16_f32 v{P+i}, v{O+2*i}, v{O+2*i+1}')
        g('s_mov_b64 exec, s[60:61]')
        g(f'v_mov_b32 v{P+6}, 0')
        g(f'v_mov_b32 v{P+7}, 0')
        g('s_mov_b64 exec, -1')
        g('s_lshl_b32 s40, s34, 2')
        g('s_add_u32 s40, s40, s36')
        g(f's_add_u32 s40, s40, {br*64}')
        g('s_lshl_b32 s40, s40, 4')
        g('s_add_u32 s40, s40, s33')
        g('s_lshl_b32 s40, s40, 11')
        g('s_nop 0')
        g(f'buffer_store_dwordx4 {vr(P,4)}, v2, s[28:31], s40 offen')
        g(f'buffer_store_dwordx4 {vr(P+4,4)}, v2, s[28:31], s40 offen offset:1024')
        g('s_nop 1')
        g.label(f'L{tag}_done')

    for r in range(16):
        g(f'v_mov_b32 v{O+r}, 0')
    g(f'v_mov_b32 v{MN}, 0x7149f2ca')
    stamp(g, 1)
    g('s_waitcnt vmcnt(8)')
    g('s_barrier')
    stamp(g, 2)
    tl_mark(g, 98)
    g('s_lshl_b32 s40, s34, 2')
    g('s_add_u32 s40, s40, s36')
    g('s_sub_u32 s50, 8, s40')
    g('s_cmp_eq_u32 s37, 0')
    g('s_cbranch_scc0 LA_kh1')
    unit_simple(3, 8*4096, QA, 'diag', True, MN)
    for u in (7, 6, 5, 4):
        g(f's_cmp_gt_i32 s50, {u}')
        g('s_cbranch_scc1 LA_fin')
        unit_simple(3, u*4096, QA, None, False, MN)
    g('s_branch LA_fin')
    g.label('LA_kh1')
    for u in (3, 2, 1, 0):
        g(f's_cmp_gt_i32 s50, {u}')
        g('s_cbranch_scc1 LA_fin')
        unit_simple(3, u*4096, QA, 'first' if u == 0 else None, u == 3, MN)
    g.label('LA_fin')
    stamp(g, 3)
    combine_and_store('CA', 0)
    g('s_waitcnt vmcnt(4)')
    g('s_barrier')
    stamp(g, 4)
    dma_stage(2)
    dma_stage(3)
    combine2('CA', 0)
    stamp(g, 5)

    def tile_addr(t):
        s = t >> 2
        slot = (s + 2) & 3
        base = 4 + (slot >> 1)
        off = (slot & 1) * 32768 + (t & 3) * 4096
        return base, off
    def rdK(t):
        b, off = tile_addr(t)
        g(f'ds_read_b128 {vr(KF,4)}, v{b} offset:{off}')
        g(f'ds_read_b128 {vr(KF+4,4)}, v{b} offset:{off+1024}')
    def rdV(t, f):
        b, off = tile_addr(t)
        g(f'ds_read_b128 {vr(VF+4*f,4)}, v{b} offset:{off+2048+f*1024}')
    NT = 32
    rdK(0)
    g('s_waitcnt lgkmcnt(0)')
    g(mfma(S0, KF, QB, None))
    g(mfma(S0, KF+4, QB+4, S0))
    g('s_nop 15')
    rowmax_to_q(S0, QB, MN)
    g('s_nop 1')
    g(mfma(S0, KF, QB, None))
    g(mfma(S0, KF+4, QB+4, S0))
    rdK(1)
    rdV(0, 0)
    g('s_nop 15')
    def body(t):
        sb = SB[t & 1]; sn = SB[(t + 1) & 1]
        e = [f'v_exp_f32 v{sb+r}, v{sb+r}' for r in range(16)]
        c = [f'v_cvt_pk_bf16_f32 v{P+i}, v{sb+2*i}, v{sb+2*i+1}' for i in range(8)]
        has_next = t + 1 < NT
        if (t & 3) == 2:
            s = t >> 2
            if s + 1 <= 7:
                if s == 0: n = 8
                elif s + 2 <= 7: n = 4
                else: n = 0
                g(f's_waitcnt vmcnt({n})')
                g('s_barrier')
                if s >= 1 and s + 3 <= 7:
                    dma_stage(s + 3)
        if t > 0:
            n = (2 if t + 1 < NT else 0) + 1
            g(f's_waitcnt lgkmcnt({n})')
            g('s_nop 0')
            g(mfma(O, VF+4, P+4, O))
        rdV(t, 1)
        for i in e[0:4]: g(i)
        g(c[0])
        if has_next:
            g('s_waitcnt lgkmcnt(2)')
            g(mfma(sn, KF, QB, None))
        g(e[4]); g(e[5]); g(c[1]); g(e[6]); g(e[7]); g(c[2])
        if has_next:
            g(mfma(sn, KF+4, QB+4, sn))
        if t + 2 < NT:
            rdK(t + 2)
        g(e[8]); g(c[3]); g(e[9]); g(e[10]); g(e[11])
        n = 1 + (2 if t + 2 < NT else 0)
        g(f's_waitcnt lgkmcnt({n})')
        g(mfma(O, VF, P, O if t > 0 else None))
        if has_next:
            rdV(t + 1, 0)
        for i in e[12:16]: g(i)
        g(c[4]); g(c[5]); g(c[6]); g(c[7])
    stamp(g, 6)
    tl_mark(g, 100)
    for t in range(NT):
        if t in (8, 16, 24): stamp(g, 6 + t // 8)
        body(t)
    stamp(g, 10)
    g('s_waitcnt lgkmcnt(0)')
    g('s_nop 1')
    g(mfma(O, VF+4, P+4, O))
    combine_and_store('CB', 1)
    g('s_barrier')
    stamp(g, 11)
    combine2('CB', 1)
    stamp(g, 12)
    if STAMPS: g('s_waitcnt vmcnt(0)')
    stamp(g, 13); stamp(g, 14, True)
    stamp_dump(g, 1)
    tl_end(g, 1, 35, (98, 100))
    g.label('Lattn_end')
    g('s_endpgm')
    return name, 112

def gen_proj(g):
    name = 'proj_kernel'
    kernel_header(g, name)
    g('s_cmp_ge_u32 s2, 224')
    g('s_cbranch_scc1 Lproj_end')
    tl_start(g, 2)
    stamp(g, 0); stamp(g, 15, True)
    g('s_load_dwordx2 s[4:5], s[0:1], 16')
    g('s_load_dwordx2 s[6:7], s[0:1], 40')
    g('s_load_dwordx2 s[8:9], s[0:1], 48')
    g('s_load_dwordx2 s[12:13], s[0:1], 64')
    g('s_and_b32 s33, s2, 7')
    g('s_lshr_b32 s34, s2, 3')
    g('s_lshr_b32 s35, s33, 2')
    g('s_and_b32 s36, s33, 3')
    g('s_lshl_b32 s36, s36, 2')
    g('s_and_b32 s37, s34, 3')
    g('s_add_u32 s36, s36, s37')
    g('s_lshr_b32 s37, s34, 2')
    g('v_lshrrev_b32 v1, 6, v0')
    g('v_and_b32 v0, 63, v0')
    g('s_nop 0')
    g('v_readfirstlane_b32 s39, v1')
    if STAMPS: g('s_mov_b32 s69, s39')
    g('s_and_b32 s46, s39, 3')
    g('s_lshr_b32 s47, s39, 2')
    g('s_waitcnt lgkmcnt(0)')
    g('s_cmp_eq_u32 s35, 0')
    g('s_cselect_b32 s4, s4, s6')
    g('s_cselect_b32 s5, s5, s7')
    make_srd(g, 16, 4, 5, 448 * 896)
    make_srd(g, 20, 8, 9, 2048 * 1792)
    g(f's_add_u32 s28, s12, {WS_O}')
    g('s_addc_u32 s29, s13, 0')
    g('s_mov_b32 s30, 0x400000')
    g('s_mov_b32 s31, 0x20000')
    g('v_lshrrev_b32 v4, 3, v0')
    g('v_and_b32 v5, 7, v0')
    g('v_and_b32 v6, 2, v4')
    g('v_lshlrev_b32 v6, 1, v6')
    g('v_xor_b32 v5, v5, v6')
    g('s_lshl_b32 s40, s39, 3')
    g('v_add_u32 v4, s40, v4')
    g('v_mul_u32_u24 v4, 896, v4')
    g('v_lshl_add_u32 v4, v5, 4, v4')
    g('s_lshl_b32 s40, s37, 7')
    g('v_add_u32 v3, s40, v4')
    g('s_lshl_b32 s42, s39, 10')
    for it in range(8):
        if it == 7:
            g('s_cmp_ge_u32 s39, 1')
            g('s_cbranch_scc1 Lproj_skip')
        g(f's_add_u32 m0, s42, {it*8192}')
        g(f'v_add_u32 v4, {it*64*896}, v3')
        g('buffer_load_dwordx4 v4, s[16:19], 0 offen lds')
    g.label('Lproj_skip')
    g('v_lshlrev_b32 v2, 4, v0')
    g('s_lshl_b32 s40, s35, 6')
    g('s_lshl_b32 s41, s36, 2')
    g('s_add_u32 s40, s40, s41')
    g('s_add_u32 s40, s40, s46')
    g('s_lshl_b32 s40, s40, 15')
    OF = 64
    for n in range(32):
        if n % 4 == 0 and n > 0:
            g('s_add_u32 s40, s40, 4096')
        g(f'buffer_load_dwordx4 {vr(OF+4*n,4)}, v2, s[28:31], s40 offen offset:{(n%4)*1024}')
    g('v_bfe_u32 v4, v0, 2, 2')
    g('v_and_b32 v5, 3, v0')
    g('v_bfe_u32 v7, v0, 4, 1')
    g('v_lshrrev_b32 v6, 5, v0')
    g('v_lshlrev_b32 v7, 5, v7')
    g('v_lshl_add_u32 v7, v5, 3, v7')
    g('s_lshl_b32 s40, s47, 6')
    g('v_add_u32 v7, s40, v7')
    g('v_lshrrev_b32 v11, 4, v7')
    g('v_and_b32 v8, 2, v4')
    g('v_lshlrev_b32 v8, 1, v8')
    g('v_xor_b32 v11, v11, v8')
    g('v_and_b32 v7, 15, v7')
    g('v_lshl_add_u32 v7, v11, 4, v7')
    g('v_lshl_add_u32 v4, v6, 2, v4')
    g('v_lshl_add_u32 v9, v4, 7, v7')
    ACC = 16; WF = 32
    stamp(g, 1)
    g('s_waitcnt vmcnt(32)')
    g('s_barrier')
    stamp(g, 2)
    tl_mark(g, 98)
    steps = [(h, i) for h in range(16) for i in range(2)]
    def rd(n, buf):
        h, i = steps[n]
        for jj in range(2):
            off = (28*h + 16*i + 8*jj) * 128
            g(f'ds_read_b64_tr_b16 {vr(WF+4*buf+2*jj,2)}, v9 offset:{off}')
    rd(0, 0); rd(1, 1); rd(2, 2)
    for n in range(32):
        if n + 3 < 32:
            rd(n + 3, (n + 3) & 3)
        rem = min(3, 31 - n)
        g(f's_waitcnt vmcnt({31-n}) lgkmcnt({2*rem})')
        g(mfma(ACC, WF + 4*(n & 3), OF + 4*n, None if n == 0 else ACC))
    g('s_nop 15')
    g('s_nop 7')
    stamp(g, 3)
    tl_mark(g, 100)
    P = 48
    for i in range(8):
        g(f'v_cvt_pk_bf16_f32 v{P+i}, v{ACC+2*i}, v{ACC+2*i+1}')
    g('s_nop 1')
    for k in range(2):
        a = P + 4*k
        g(f'v_permlane32_swap_b32 v{a}, v{a+2}')
        g(f'v_permlane32_swap_b32 v{a+1}, v{a+3}')
    g('v_and_b32 v4, 31, v0')
    g('s_lshl_b32 s40, s36, 7')
    g('s_lshl_b32 s41, s46, 5')
    g('s_add_u32 s40, s40, s41')
    g('v_add_u32 v4, s40, v4')
    g('v_mul_u32_u24 v4, 1792, v4')
    g('v_lshl_add_u32 v4, v6, 4, v4')
    g('s_mul_i32 s40, s35, 896')
    g('s_lshl_b32 s41, s37, 7')
    g('s_add_u32 s40, s40, s41')
    g('s_lshl_b32 s41, s47, 6')
    g('s_add_u32 s40, s40, s41')
    g(f'buffer_store_dwordx4 {vr(P,4)}, v4, s[20:23], s40 offen')
    g(f'buffer_store_dwordx4 {vr(P+4,4)}, v4, s[20:23], s40 offen offset:32')
    stamp(g, 4)
    if STAMPS: g('s_waitcnt vmcnt(0)')
    stamp(g, 5); stamp(g, 14, True)
    stamp_dump(g, 2)
    tl_end(g, 2, 39, (98, 100))
    g.label('Lproj_end')
    g('s_endpgm')
    return name, 192

HEADER = '''; Kernarg layout for this problem (72 bytes, ptrs only, base s[0:1]):
'''

def main(out):
    g = Gen()
    launches = [
        ('qkv_kernel', 256, 512, 163840),
        ('attn_kernel', 256, 512, 131072 + 16384 + 1024),
        ('proj_kernel', 224, 512, 57 * 1024),
    ]
    fns = [gen_qkv, gen_attn, gen_proj]
    if TL:
        launches.append(('tlsum_kernel', 1, 64, 0))
        fns.append(gen_tlsum)
    txt = HEADER
    for n, gr, bl, lds in launches:
        txt += f'; @launch kernel={n} grid=({gr},1,1) block=({bl},1,1) lds={lds}\n'
    txt += '.amdgcn_target "amdgcn-amd-amdhsa--gfx950"\n.text\n'
    descs = []
    for fn in fns:
        name, vg = fn(g)
        descs.append(kernel_desc(name, vg))
    txt += g.text()
    txt += '.section .rodata,"a"\n'
    for d in descs:
        txt += '.p2align 6\n' + d
    open(out, 'w').write(txt)

if __name__ == '__main__':
    if len(sys.argv) > 2 and sys.argv[2] == 'stamps':
        STAMPS = True
    if len(sys.argv) > 2 and sys.argv[2] == 'tl':
        TL = True
    main(sys.argv[1] if len(sys.argv) > 1 else 'concat_heads__sliding_block__softmax_full_mha__prompt.s')
```

```python
import sys, math, struct

def f32bits(x):
    return struct.unpack('<I', struct.pack('<f', x))[0]

class Gen:
    def __init__(self):
        self.lines = []
    def __call__(self, s):
        for l in s.split('\n'):
            l = l.strip()
            if l:
                self.lines.append('  ' + l)
    def label(self, s):
        self.lines.append(s + ':')
    def raw(self, s):
        self.lines.append(s)
    def text(self):
        return '\n'.join(self.lines) + '\n'

def vr(base, n): return f'v[{base}:{base+n-1}]'
def sr(base, n): return f's[{base}:{base+n-1}]'
def mfma(d, a, b, c):
    cs = '0' if c is None else vr(c, 16)
    return f'v_mfma_f32_32x32x16_bf16 {vr(d,16)}, {vr(a,4)}, {vr(b,4)}, {cs}'

OPT = dict(stamps=False, tl=False, st_flags='', unroll_b=False)
STAMP_BASE = 0x2000000
def stamp(g, i, real=False):
    if not OPT['stamps']: return
    op = 's_memrealtime' if real else 's_memtime'
    g(f'{op} s[{70+2*i}:{71+2*i}]')
def stamp_dump(g, kidx, wreg, ws_lo=12, ws_hi=13, nwaves=8):
    if not OPT['stamps']: return
    g('s_waitcnt lgkmcnt(0) vmcnt(0)')
    g(f's_add_u32 s64, s{ws_lo}, {STAMP_BASE + kidx*0x100000}')
    g(f's_addc_u32 s65, s{ws_hi}, 0')
    g('s_mov_b32 s66, 0x100000')
    g('s_mov_b32 s67, 0x20000')
    g('s_mov_b64 exec, -1')
    g('v_mov_b32 v1, 0')
    for i in range(16):
        g(f'v_writelane_b32 v1, s{70+2*i}, {i}')
    g(f's_mul_i32 s68, s2, {nwaves}')
    g(f's_add_u32 s68, s68, s{wreg}')
    g('s_lshl_b32 s68, s68, 6')
    g('v_lshlrev_b32 v3, 2, v0')
    g('v_cmp_gt_u32 vcc, 16, v0')
    g('s_and_saveexec_b64 s[62:63], vcc')
    g('buffer_store_dword v1, v3, s[64:67], s68 offen')
    g('s_waitcnt vmcnt(0)')

TL_BASE = 0x3000000
def tl_start(g):
    if OPT['tl']: g('s_memrealtime s[90:91]')
def tl_mark(g, reg):
    if OPT['tl']: g(f's_memrealtime s[{reg}:{reg+1}]')
def tl_end(g, k, wreg, marks=(98, 100), ws_lo=12, ws_hi=13, wsh=3):
    if not OPT['tl']: return
    g('s_waitcnt vmcnt(0) lgkmcnt(0)')
    g('s_memrealtime s[96:97]')
    g(f's_add_u32 s92, s{ws_lo}, {TL_BASE + k*0x10000}')
    g(f's_addc_u32 s93, s{ws_hi}, 0')
    g('s_mov_b32 s94, 0x10000')
    g('s_mov_b32 s95, 0x20000')
    g('s_waitcnt lgkmcnt(0)')
    g('s_mov_b64 exec, 1')
    g('v_mov_b32 v4, s90')
    g('v_mov_b32 v5, s96')
    g(f'v_mov_b32 v6, s{marks[0]}')
    g(f'v_mov_b32 v7, s{marks[1]}')
    g(f's_lshl_b32 s88, s2, {wsh}')
    g(f's_add_u32 s88, s88, s{wreg}')
    g('s_lshl_b32 s88, s88, 4')
    g('v_mov_b32 v3, 0')
    g('buffer_store_dwordx4 v[4:7], v3, s[92:95], s88 offen')

def gen_tlsum(g, counts):
    name = 'tlsum_kernel'
    kernel_header(g, name)
    g('s_cmp_ge_u32 s2, 1')
    g('s_cbranch_scc1 Ltl_end')
    g('s_load_dwordx2 s[12:13], s[0:1], 64')
    g('s_load_dwordx2 s[8:9], s[0:1], 56')
    g('s_waitcnt lgkmcnt(0)')
    g('s_mov_b32 s10, 256')
    g('s_mov_b32 s11, 0x20000')
    for k, cnt in enumerate(counts):
        g(f's_add_u32 s16, s12, {TL_BASE + k*0x10000}')
        g('s_addc_u32 s17, s13, 0')
        g('s_mov_b32 s18, 0x10000')
        g('s_mov_b32 s19, 0x20000')
        g('v_lshlrev_b32 v1, 4, v0')
        for r in range(8, 13): g(f'v_mov_b32 v{r}, 0')
        g('v_mov_b32 v13, -1')
        for i in range(cnt):
            g(f's_mov_b32 s20, {i*1024}')
            g('buffer_load_dwordx4 v[4:7], v1, s[16:19], s20 offen')
            g('s_waitcnt vmcnt(0)')
            g('v_max_u32 v12, v12, v4')
            g('v_not_b32 v4, v4')
            g('v_max_u32 v8, v8, v4')
            g('v_max_u32 v9, v9, v5')
            g('v_max_u32 v10, v10, v6')
            g('v_max_u32 v11, v11, v7')
        g(f'v_mov_b32 v2, {k*20}')
        g('buffer_atomic_umax v8, v2, s[8:11], 0 offen')
        g('buffer_atomic_umax v9, v2, s[8:11], 0 offen offset:4')
        g('buffer_atomic_umax v10, v2, s[8:11], 0 offen offset:8')
        g('buffer_atomic_umax v11, v2, s[8:11], 0 offen offset:12')
        g('buffer_atomic_umax v12, v2, s[8:11], 0 offen offset:16')
        g('s_waitcnt vmcnt(0)')
    g.label('Ltl_end')
    g('s_endpgm')
    return name, 32

WS_Q = 0
WS_KV = 0x400000
WS_O = 0xC00000
QSCALE = (28 ** -0.5) * math.log2(math.e)
NEGBIG = 0xf149f2ca
POSBIG = 0x7149f2ca

def kernel_header(g, name):
    g.raw(f'.globl {name}')
    g.raw('.p2align 8')
    g.raw(f'.type {name},@function')
    g.label(name)

def kernel_desc(name, vgpr, sgpr=102):
    acc = (vgpr + 3) // 4 * 4
    return f'''.amdhsa_kernel {name}
  .amdhsa_next_free_vgpr {vgpr}
  .amdhsa_next_free_sgpr {sgpr}
  .amdhsa_accum_offset {acc}
  .amdhsa_group_segment_fixed_size 0
  .amdhsa_kernarg_size 72
  .amdhsa_user_sgpr_count 2
  .amdhsa_user_sgpr_kernarg_segment_ptr 1
  .amdhsa_system_sgpr_workgroup_id_x 1
.end_amdhsa_kernel
'''

def make_srd(g, dst, lo, hi, nbytes):
    g(f's_mov_b32 s{dst}, s{lo}')
    g(f's_mov_b32 s{dst+1}, s{hi}')
    g(f's_mov_b32 s{dst+2}, {nbytes}')
    g(f's_mov_b32 s{dst+3}, 0x20000')

def stf():
    return (' ' + OPT['st_flags']) if OPT['st_flags'] else ''

K1_LDS = 65536 + 4 * 21504 + 64
def gen_qkv(g):
    name = 'qkv_kernel'
    kernel_header(g, name)
    g('s_cmp_ge_u32 s2, 256')
    g('s_cbranch_scc1 Lqkv_end')
    stamp(g, 0); stamp(g, 15, True); tl_start(g)
    g('s_load_dwordx2 s[4:5], s[0:1], 0')
    g('s_load_dwordx2 s[6:7], s[0:1], 8')
    g('s_load_dwordx2 s[8:9], s[0:1], 24')
    g('s_load_dwordx2 s[10:11], s[0:1], 32')
    g('s_load_dwordx2 s[12:13], s[0:1], 64')
    g('s_and_b32 s33, s2, 7')
    g('s_lshr_b32 s34, s2, 3')
    g('s_lshr_b32 s35, s33, 2')
    g('s_bfe_u32 s36, s33, 0x10001')
    g('s_and_b32 s37, s33, 1')
    g('s_and_b32 s38, s34, 7')
    g('s_lshl_b32 s36, s36, 3')
    g('s_add_u32 s36, s36, s38')
    g('s_lshr_b32 s38, s34, 3')
    g('s_lshl_b32 s37, s37, 2')
    g('s_add_u32 s37, s37, s38')
    g('v_lshrrev_b32 v1, 6, v0')
    g('v_and_b32 v0, 63, v0')
    g('s_nop 0')
    g('v_readfirstlane_b32 s39, v1')
    g('s_lshl_b32 s40, s36, 7')
    g('s_lshl_b32 s41, s39, 4')
    g('s_add_u32 s40, s40, s41')
    g('v_lshrrev_b32 v4, 3, v0')
    g('v_add_u32 v4, s40, v4')
    g('v_mul_u32_u24 v4, 896, v4')
    g('v_lshrrev_b32 v5, 4, v0')
    g('v_and_b32 v6, 7, v0')
    g('v_xor_b32 v7, v6, v5')
    g('v_lshl_add_u32 v2, v7, 4, v4')
    g('v_xor_b32 v7, 4, v7')
    g('v_lshl_add_u32 v3, v7, 4, v4')
    g('v_add_u32 v3, 7168, v3')
    g('s_lshl_b32 s40, s39, 6')
    g('s_mul_i32 s41, s37, 336')
    for n in range(3):
        g(f'v_add_u32 v4, s40, v0')
        if n: g(f'v_add_u32 v4, {512*n}, v4')
        g('v_mul_u32_u24 v5, 3121, v4')
        g('v_lshrrev_b32 v5, 16, v5')
        g('v_mul_u32_u24 v6, 21, v5')
        g('v_sub_u32 v6, v4, v6')
        g('v_and_b32 v7, 48, v5')
        g('v_and_b32 v11, 3, v5')
        g('v_lshl_add_u32 v7, v11, 2, v7')
        g('v_bfe_u32 v11, v5, 2, 2')
        g('v_add_u32 v7, v7, v11')
        g('v_mul_u32_u24 v7, 2688, v7')
        g('v_lshl_add_u32 v7, v6, 4, v7')
        g(f'v_add_u32 v{8+n}, s41, v7')
    g('s_lshl_b32 s42, s39, 11')
    g('s_lshl_b32 s43, s39, 10')
    g('s_add_u32 s43, s43, 65536')
    g('s_waitcnt lgkmcnt(0)')
    stamp(g, 1)
    g('s_cmp_eq_u32 s35, 0')
    g('s_cselect_b32 s4, s4, s8')
    g('s_cselect_b32 s5, s5, s9')
    g('s_cselect_b32 s6, s6, s10')
    g('s_cselect_b32 s7, s7, s11')
    make_srd(g, 16, 4, 5, 2048 * 896)
    make_srd(g, 20, 6, 7, 448 * 2688)
    make_srd(g, 24, 12, 13, 0x1000000)

    lab = [0]
    def dma_piece(kc, i):
        st = kc % 4
        if i < 2:
            g(f's_mov_b32 s44, {kc*128}')
            g(f's_add_u32 m0, s42, {st*16384 + i*1024}')
            g('s_nop 0')
            g(f'buffer_load_dwordx4 v{2+i}, s[16:19], s44 offen lds')
        else:
            n = i - 2
            if n == 2:
                lab[0] += 1
                g('s_cmp_ge_u32 s39, 5')
                g(f's_cbranch_scc1 Lqkv_sk{lab[0]}')
            g(f's_mov_b32 s45, {kc*64*2688}')
            g(f's_add_u32 m0, s43, {st*21504 + n*8192}')
            g('s_nop 0')
            g(f'buffer_load_dwordx4 v{8+n}, s[20:23], s45 offen lds')
            if n == 2:
                g.label(f'Lqkv_sk{lab[0]}')
    for i in range(5): dma_piece(0, i)

    g('s_lshr_b32 s46, s39, 1')
    g('s_and_b32 s47, s39, 1')
    g('v_and_b32 v4, 31, v0')
    g('s_lshl_b32 s40, s46, 5')
    g('v_add_u32 v4, s40, v4')
    g('v_lshlrev_b32 v4, 7, v4')
    g('v_bfe_u32 v5, v0, 1, 3')
    g('v_lshrrev_b32 v6, 5, v0')
    for ks in range(4):
        g(f'v_add_u32 v7, {2*ks}, v6')
        g('v_xor_b32 v7, v7, v5')
        g(f'v_lshl_add_u32 v{12+ks}, v7, 4, v4')
    g('v_bfe_u32 v4, v0, 2, 2')
    g('v_and_b32 v5, 3, v0')
    g('v_bfe_u32 v7, v0, 4, 1')
    g('v_lshlrev_b32 v7, 5, v7')
    g('v_lshl_add_u32 v7, v5, 3, v7')
    g('v_lshlrev_b32 v4, 1, v4')
    g('v_add_u32 v4, v4, v6')
    g('v_mul_u32_u24 v4, 672, v4')
    g('v_add_u32 v4, v4, v7')
    g('s_mul_i32 s40, s47, 168')
    g('s_add_u32 s40, s40, 65536')
    g('v_add_u32 v16, s40, v4')
    g(f'v_add_u32 v17, {2*21504}, v16')

    ACC = 32; XF = 80; WF = 88
    def reads(n, buf, part):
        kc, ks = divmod(n, 4)
        st = kc % 4
        if part == 0:
            g(f'ds_read_b128 {vr(XF+4*buf,4)}, v{12+ks} offset:{st*16384}')
        wb = 16 + (st >> 1)
        t = part
        for jj in range(2):
            off = (st & 1) * 21504 + (ks*16 + jj) * 336 + t * 56
            g(f'ds_read_b64_tr_b16 {vr(WF+12*buf+4*t+2*jj,2)}, v{wb} offset:{off}')
    def mfma1(buf, t, first, types):
        x = XF + 4*buf
        wf = WF + 12*buf + 4*t
        d = ACC + 16*t
        c = None if first else d
        g(mfma(d, wf, x, c) if types[t] == 'QK' else mfma(d, x, wf, c))

    g('s_barrier')
    for i in range(5): dma_piece(1, i)
    g('s_mul_i32 s48, s37, 6')
    g('s_mul_i32 s49, s47, 3')
    g('s_add_u32 s48, s48, s49')
    g('s_cmp_eq_u32 s48, 30')
    g('s_cbranch_scc1 Lqkv_v1')
    g('s_cmp_gt_u32 s48, 30')
    g('s_cbranch_scc1 Lqkv_v2')

    variants = [('QK','QK','QK'), ('QK','QK','V'), ('V','V','V')]
    for vi, types in enumerate(variants):
        if vi: g.label(f'Lqkv_v{vi}')
        sched = {n: [] for n in range(28)}
        pieces = [(2, i) for i in range(5)] + [(3, i) for i in range(5)]
        for idx, pc in enumerate(pieces): sched[idx * 3 // 10].append(pc)
        for c in (1, 2, 3):
            for i in range(5):
                sched[4*c - 1 + [0, 0, 1, 2, 3][i]].append((c + 3, i))
        if vi == 0: stamp(g, 2)
        g('s_waitcnt vmcnt(4)')
        g('s_barrier')
        if vi == 0: stamp(g, 3); tl_mark(g, 98)
        for part in range(3): reads(0, 0, part)
        for n in range(28):
            boundary = (n + 1) % 4 == 0 and n + 1 < 28
            nxt = n + 1 < 28
            buf = n & 1
            if boundary:
                c1 = (n + 1) // 4
                N = 8 if c1 <= 4 else (4 if c1 == 5 else 0)
                g(f's_waitcnt vmcnt({N}) lgkmcnt(0)')
                g('s_barrier')
                if vi == 0: stamp(g, 3 + c1)
            else:
                g('s_waitcnt lgkmcnt(4)')
            mfma1(buf, 0, n == 0, types)
            if nxt: reads(n + 1, buf ^ 1, 0)
            if not boundary: g(f's_waitcnt lgkmcnt({5 if nxt else 2})')
            mfma1(buf, 1, n == 0, types)
            if nxt: reads(n + 1, buf ^ 1, 1)
            if not boundary: g(f's_waitcnt lgkmcnt({5 if nxt else 0})')
            mfma1(buf, 2, n == 0, types)
            if nxt: reads(n + 1, buf ^ 1, 2)
            for (c, i) in sched[n]: dma_piece(c, i)
        g('s_nop 15')
        if vi == 0: stamp(g, 10); tl_mark(g, 100)
        g('v_lshlrev_b32 v2, 4, v0')
        g('s_lshl_b32 s50, s35, 10')
        g('s_lshl_b32 s51, s36, 2')
        g('s_add_u32 s50, s50, s51')
        g('s_add_u32 s50, s50, s46')
        P = 88
        g('s_mov_b32 s52, 0')
        g('s_mov_b32 s53, -1')
        for t in range(3):
            a = ACC + 16*t; p = P + 8*t
            g(f's_add_u32 s54, s48, {t}')
            g('s_and_b32 s55, s54, 15')
            g('s_lshl_b32 s55, s55, 6')
            g('s_add_u32 s55, s55, s50')
            if types[t] == 'QK':
                g('s_cmp_lt_u32 s54, 16')
                g(f's_cselect_b32 s56, {f32bits(QSCALE):#x}, 1.0')
                g('s_cselect_b32 s57, 0, 0x3f80')
                g('s_cselect_b32 s58, 11, 12')
                g(f's_cselect_b32 s59, {WS_Q}, {WS_KV}')
                g('s_lshl_b32 s55, s55, s58')
                g('s_add_u32 s55, s55, s59')
                for r in range(16):
                    g(f'v_mul_f32 v{a+r}, s56, v{a+r}')
                for i in range(8):
                    g(f'v_cvt_pk_bf16_f32 v{p+i}, v{a+2*i}, v{a+2*i+1}')
                g('s_mov_b64 exec, s[52:53]')
                g(f'v_mov_b32 v{p+6}, s57')
                g(f'v_mov_b32 v{p+7}, 0')
                g('s_mov_b64 exec, -1')
            else:
                g('s_lshl_b32 s55, s55, 12')
                g(f's_add_u32 s55, s55, {WS_KV + 2048}')
                for i in range(8):
                    g(f'v_cvt_pk_bf16_f32 v{p+i}, v{a+2*i}, v{a+2*i+1}')
                g('s_mov_b32 s56, 0xe0000000')
                g('s_mov_b32 s57, 0xe0000000')
                g('s_mov_b64 exec, s[56:57]')
                for i in range(8): g(f'v_mov_b32 v{p+i}, 0')
                g('s_mov_b32 s56, 0x10000000')
                g('s_mov_b32 s57, 0x10000000')
                g('s_mov_b64 exec, s[56:57]')
                for i in range(8): g(f'v_mov_b32 v{p+i}, 0x3f803f80')
                g('s_mov_b64 exec, -1')
            g('s_nop 1')
            g(f'buffer_store_dwordx4 {vr(p,4)}, v2, s[24:27], s55 offen{stf()}')
            g(f'buffer_store_dwordx4 {vr(p+4,4)}, v2, s[24:27], s55 offen offset:1024{stf()}')
        if vi < 2: g('s_branch Lqkv_fin')
    g.label('Lqkv_fin')
    stamp(g, 11)
    if OPT['stamps']: g('s_waitcnt vmcnt(0)')
    stamp(g, 12); stamp(g, 14, True)
    stamp_dump(g, 0, 39)
    tl_end(g, 0, 39)
    g.label('Lqkv_end')
    g('s_endpgm')
    return name, 112

K2_SCR = 131072
K2_LDS = K2_SCR + 16384 + 1024
def gen_attn(g):
    name = 'attn_kernel'
    kernel_header(g, name)
    g('s_cmp_ge_u32 s2, 256')
    g('s_cbranch_scc1 Lattn_end')
    stamp(g, 0); stamp(g, 15, True); tl_start(g)
    g('s_load_dwordx2 s[12:13], s[0:1], 64')
    g('s_and_b32 s33, s2, 7')
    g('s_bfe_u32 s34, s2, 0x10003')
    g('s_lshl_b32 s33, s33, 1')
    g('s_add_u32 s33, s33, s34')
    g('s_lshr_b32 s34, s2, 4')
    g('v_lshrrev_b32 v1, 6, v0')
    g('v_and_b32 v0, 63, v0')
    g('s_nop 0')
    g('v_readfirstlane_b32 s35, v1')
    g('v_lshlrev_b32 v2, 4, v0')
    g('s_and_b32 s36, s35, 3')
    g('s_lshr_b32 s37, s35, 2')
    QA = 8; QB = 16; MASK = 32; S0 = 48; S1 = 64; P = 80; OA = 88; OB = 104; KF = 120; VF = 128; T = 136
    TK = 144; TS = 152
    MNA = 26; MNB = 27
    SB = [S0, S1]
    g('s_lshl_b32 s38, s33, 6')
    g('s_lshl_b32 s39, s34, 2')
    g('s_add_u32 s39, s39, s36')
    g('s_add_u32 s38, s38, s39')
    g('s_lshl_b32 s38, s38, 11')
    g('s_lshl_b32 s42, s35, 12')
    g('s_waitcnt lgkmcnt(0)')
    make_srd(g, 16, 12, 13, 0x400000)
    g('s_lshl_b32 s43, s33, 18')
    g(f's_add_u32 s43, s43, {WS_KV}')
    g('s_add_u32 s20, s12, s43')
    g('s_addc_u32 s21, s13, 0')
    g('s_mov_b32 s22, 0x40000')
    g('s_mov_b32 s23, 0x20000')
    g('s_add_u32 s24, s20, 0x400000')
    g('s_addc_u32 s25, s21, 0')
    g('s_mov_b32 s26, 0x40000')
    g('s_mov_b32 s27, 0x20000')
    def dma_tile(vreg, srd, s_goff, s_m0):
        g(f's_mov_b32 m0, {s_m0}')
        g('s_nop 0')
        for i in range(4):
            g(f'buffer_load_dwordx4 v{vreg}, s[{srd}:{srd+3}], {s_goff} offen offset:{i*1024} lds')
    g('s_add_u32 s41, s38, 0x200000')
    g(f'buffer_load_dwordx4 {vr(QB,4)}, v2, s[16:19], s41 offen')
    g(f'buffer_load_dwordx4 {vr(QB+4,4)}, v2, s[16:19], s41 offen offset:1024')
    dma_tile(2, 24, 's42', 's42')
    g(f'buffer_load_dwordx4 {vr(QA,4)}, v2, s[16:19], s38 offen')
    g(f'buffer_load_dwordx4 {vr(QA+4,4)}, v2, s[16:19], s38 offen offset:1024')
    g('s_add_u32 s43, s42, 32768')
    dma_tile(2, 24, 's43', 's43')
    g(f's_add_u32 s28, s12, {WS_O}')
    g('s_addc_u32 s29, s13, 0')
    g('s_mov_b32 s30, 0x400000')
    g('s_mov_b32 s31, 0x20000')
    g('s_add_u32 s44, s42, 65536')
    g('s_add_u32 s45, s42, 65536')
    g('s_lshl_b32 s40, s34, 2')
    g('s_add_u32 s40, s40, s35')
    g('s_sub_u32 s40, s40, 8')
    g('s_lshl_b32 s41, s40, 12')
    g('s_cmp_lt_i32 s40, 0')
    g('s_cselect_b32 s41, 0x40000000, s41')
    g('v_add_u32 v28, s41, v2')
    g('s_add_u32 s40, s40, 8')
    g('s_lshl_b32 s41, s40, 12')
    g('v_add_u32 v29, s41, v2')
    g('s_lshl_b32 s40, s36, 12')
    g('v_add_u32 v3, s40, v2')
    g('s_lshl_b32 s40, s37, 14')
    g('v_add_u32 v4, s40, v2')
    g('v_add_u32 v5, 32768, v4')
    g(f'v_add_u32 v6, {K2_SCR}, v3')
    g('s_lshl_b32 s40, s36, 8')
    g(f's_add_u32 s40, s40, {K2_SCR+16384}')
    g('v_lshlrev_b32 v7, 2, v0')
    g('v_add_u32 v7, s40, v7')
    g('v_and_b32 v24, 31, v0')
    g('v_lshrrev_b32 v25, 5, v0')
    g('v_lshlrev_b32 v25, 2, v25')
    g('v_sub_u32 v24, v24, v25')
    g(f'v_mov_b32 v25, {NEGBIG:#x}')
    g('s_mov_b32 s60, 0')
    g('s_mov_b32 s61, -1')

    def set_mask(dst, kind):
        for r in range(16):
            br_ = (r & 3) + 8 * (r >> 2)
            op = 'v_cmp_le_i32' if kind == 'diag' else 'v_cmp_gt_i32'
            g(f'{op} vcc, {br_}, v24')
            g('s_nop 1')
            g(f'v_cndmask_b32_e64 v{dst+r}, v25, 0, vcc')

    def rowmax(sbuf, t):
        g(f'v_max3_f32 v{t}, v{sbuf}, v{sbuf+1}, v{sbuf+2}')
        for r in range(3, 15, 2):
            g(f'v_max3_f32 v{t}, v{t}, v{sbuf+r}, v{sbuf+r+1}')
        g(f'v_max_f32 v{t}, v{t}, v{sbuf+15}')
        g(f'v_mov_b32 v{t+1}, v{t}')
        g('s_nop 1')
        g(f'v_permlane32_swap_b32 v{t}, v{t+1}')
        g('s_nop 1')
        g(f'v_max_f32 v{t}, v{t}, v{t+1}')

    def set_standin(sbuf, q, mneg):
        t = T
        rowmax(sbuf, t)
        g(f'v_sub_f32 v{t}, 0, v{t}')
        g(f'v_cvt_pk_bf16_f32 v{t}, v{t}, 0')
        g(f'v_lshlrev_b32 v{mneg}, 16, v{t}')
        g('s_mov_b64 exec, s[60:61]')
        g(f'v_mov_b32 v{q+4+2}, v{t}')
        g('s_mov_b64 exec, -1')

    def write_partial(O, mn):
        for i in range(4):
            g(f'ds_write_b128 v6, {vr(O+4*i,4)} offset:{i*1024}')
        g(f'ds_write_b32 v7, v{mn}')

    FB = 144
    def finish(tag, br, O, mn, q, tmp):
        for i in range(4):
            g(f'ds_read_b128 {vr(tmp+4*i,4)}, v6 offset:{i*1024}')
        g(f'ds_read_b32 v{T}, v7')
        g('s_waitcnt lgkmcnt(0)')
        g(f'v_min_f32 v{T+1}, v{mn}, v{T}')
        g(f'v_sub_f32 v{T+2}, v{T+1}, v{mn}')
        g(f'v_sub_f32 v{T+3}, v{T+1}, v{T}')
        g(f'v_exp_f32 v{T+2}, v{T+2}')
        g(f'v_exp_f32 v{T+3}, v{T+3}')
        g('s_nop 0')
        for r in range(16):
            g(f'v_mul_f32 v{O+r}, v{O+r}, v{T+2}')
        for r in range(16):
            g(f'v_fmac_f32 v{O+r}, v{tmp+r}, v{T+3}')
        g(f'v_mov_b32 v{T}, v{O+12}')
        g(f'v_mov_b32 v{T+1}, v{O+12}')
        g(f'v_mul_f32 v{T+4}, 0, v{O}')
        g(f'v_fmac_f32 v{T+4}, 0, v{O+1}')
        g(f'v_permlane32_swap_b32 v{T}, v{T+1}')
        for r in range(2, 16):
            g(f'v_fmac_f32 v{T+4}, 0, v{O+r}')
        g(f'v_add_f32 v{T+4}, v{T+4}, v{T+1}')
        g(f's_mov_b32 s47, {f32bits(2.0**100):#x}')
        g(f'v_cmp_ngt_f32 vcc, s47, v{T+4}')
        g('s_nop 4')
        g(f's_cbranch_vccz L{tag}_ok')
        fallback(tag, br, O, q)
        g(f'v_mov_b32 v{T}, v{O+12}')
        g(f'v_mov_b32 v{T+1}, v{O+12}')
        g('s_nop 1')
        g(f'v_permlane32_swap_b32 v{T}, v{T+1}')
        g('s_nop 1')
        g.label(f'L{tag}_ok')
        g(f'v_rcp_f32 v{T+1}, v{T+1}')
        g('s_nop 0')
        for r in range(16):
            g(f'v_mul_f32 v{O+r}, v{O+r}, v{T+1}')
        for i in range(8):
            g(f'v_cvt_pk_bf16_f32 v{tmp+i}, v{O+2*i}, v{O+2*i+1}')
        g('s_mov_b64 exec, s[60:61]')
        g(f'v_mov_b32 v{tmp+6}, 0')
        g(f'v_mov_b32 v{tmp+7}, 0')
        g('s_mov_b64 exec, -1')
        g('s_lshl_b32 s40, s34, 2')
        g('s_add_u32 s40, s40, s36')
        g(f's_add_u32 s40, s40, {br*64}')
        g('s_lshl_b32 s40, s40, 4')
        g('s_add_u32 s40, s40, s33')
        g('s_lshl_b32 s40, s40, 11')
        g('s_nop 0')
        g(f'buffer_store_dwordx4 {vr(tmp,4)}, v2, s[28:31], s40 offen{stf()}')
        g(f'buffer_store_dwordx4 {vr(tmp+4,4)}, v2, s[28:31], s40 offen offset:1024{stf()}')
        g('s_nop 1')

    def fallback(tag, br, O, q):
        FS, FK, FV, FP, FQ, Fm = FB, FB+16, FB+24, FB+32, FB+40, FB+48
        srd = 20 if br == 0 else 24
        for i in range(8): g(f'v_mov_b32 v{FQ+i}, v{q+i}')
        g('s_mov_b64 exec, s[60:61]')
        g(f'v_mov_b32 v{FQ+6}, 0')
        g('s_mov_b64 exec, -1')
        for r in range(16): g(f'v_mov_b32 v{O+r}, 0')
        g(f'v_mov_b32 v{Fm}, v25')
        if br == 0:
            g('s_lshl_b32 s47, s34, 2')
            g('s_add_u32 s47, s47, s36')
            g('s_sub_u32 s48, s47, 8')
            g('s_mov_b32 s49, s47')
        else:
            g('s_mov_b32 s49, 63')
        g.label(f'L{tag}_fb_loop')
        g('s_lshl_b32 s50, s49, 12')
        for i in range(2):
            g(f'buffer_load_dwordx4 {vr(FK+4*i,4)}, v2, s[{srd}:{srd+3}], s50 offen offset:{i*1024}')
            g(f'buffer_load_dwordx4 {vr(FV+4*i,4)}, v2, s[{srd}:{srd+3}], s50 offen offset:{2048+i*1024}')
        if br == 0:
            g('s_cmp_eq_u32 s49, s47')
            g(f's_cbranch_scc1 L{tag}_fb_diag')
            g('s_cmp_eq_u32 s49, s48')
            g(f's_cbranch_scc1 L{tag}_fb_first')
        for r in range(16): g(f'v_mov_b32 v{FS+r}, 0')
        if br == 0:
            g(f's_branch L{tag}_fb_go')
            g.label(f'L{tag}_fb_diag')
            set_mask(FS, 'diag')
            g(f's_branch L{tag}_fb_go')
            g.label(f'L{tag}_fb_first')
            set_mask(FS, 'first')
            g.label(f'L{tag}_fb_go')
        g('s_waitcnt vmcnt(0)')
        g('s_nop 1')
        g(mfma(FS, FK, FQ, FS))
        g(mfma(FS, FK+4, FQ+4, FS))
        g('s_nop 15')
        rowmax(FS, Fm+1)
        g(f'v_max_f32 v{Fm+1}, v{Fm+1}, v{Fm}')
        g(f'v_sub_f32 v{Fm+2}, v{Fm}, v{Fm+1}')
        g(f'v_exp_f32 v{Fm+2}, v{Fm+2}')
        g(f'v_mov_b32 v{Fm}, v{Fm+1}')
        for r in range(16):
            g(f'v_sub_f32 v{FS+r}, v{FS+r}, v{Fm}')
        for r in range(16):
            g(f'v_exp_f32 v{FS+r}, v{FS+r}')
        for r in range(16):
            g(f'v_mul_f32 v{O+r}, v{O+r}, v{Fm+2}')
        for i in range(8):
            g(f'v_cvt_pk_bf16_f32 v{FP+i}, v{FS+2*i}, v{FS+2*i+1}')
        g('s_nop 1')
        g(mfma(O, FV, FP, O))
        g(mfma(O, FV+4, FP+4, O))
        g('s_nop 15')
        g('s_sub_u32 s49, s49, 1')
        g('s_cmp_lt_i32 s49, 0')
        g(f's_cbranch_scc1 L{tag}_fb_end')
        if br == 0:
            g('s_cmp_lt_i32 s49, s48')
            g(f's_cbranch_scc1 L{tag}_fb_end')
        g(f's_branch L{tag}_fb_loop')
        g.label(f'L{tag}_fb_end')

    g('s_cmp_eq_u32 s37, 0')
    g('s_cbranch_scc0 Lattn_m1')
    set_mask(MASK, 'diag')
    g('s_branch Lattn_m2')
    g.label('Lattn_m1')
    set_mask(MASK, 'first')
    g.label('Lattn_m2')
    stamp(g, 1)
    g('s_waitcnt vmcnt(6)')
    g('s_barrier')
    stamp(g, 2); tl_mark(g, 98)

    def issueB():
        dma_tile(2, 24, 's44', 's45')
        g('s_add_u32 s44, s44, 32768')
        g('s_add_u32 s45, s45, 32768')
        g('s_and_b32 s45, s45, 0x1ffff')
    lab = [0]
    def issueA0():
        dma_tile(28, 20, '0', 's42')
    def issueA1(tag):
        lab[0] += 1
        g('s_cmp_ge_u32 s35, 4')
        g(f's_cbranch_scc1 L{tag}_skA{lab[0]}')
        g('s_add_u32 s43, s42, 32768')
        dma_tile(29, 20, '0', 's43')
        g.label(f'L{tag}_skA{lab[0]}')
    issueB()
    g('s_cmp_eq_u32 s37, 0')
    g('s_cbranch_scc0 Lattn_kh1')

    def path(kh):
        tag = f'K{kh}'
        unitsA = [8, 7, 6, 5, 4] if kh == 0 else [3, 2, 1, 0]
        nA = len(unitsA)
        N = 32 + nA
        def unit(i):
            if i >= 32:
                u = unitsA[i - 32]
                masked = (kh == 0 and u == 8) or (kh == 1 and u == 0)
                return dict(base=3, off=u*4096, Q=QA, O=OA, C=MASK if masked else None, first=(i == 32))
            return dict(b=i, Q=QB, O=OB, C=None, first=(i == 0))
        def addr(i, cs):
            u = unit(i)
            if 'base' in u: return u['base'], u['off']
            b = u['b']; s = b >> 2
            if s == cs: return 4, (b & 3) * 4096
            assert s == cs + 1, (i, s, cs)
            return 5, (b & 3) * 4096
        def rdK(i, cs, dst=KF):
            r, off = addr(i, cs)
            g(f'ds_read_b128 {vr(dst,4)}, v{r} offset:{off}')
            g(f'ds_read_b128 {vr(dst+4,4)}, v{r} offset:{off+1024}')
        def rdV(i, f, cs):
            r, off = addr(i, cs)
            g(f'ds_read_b128 {vr(VF+4*f,4)}, v{r} offset:{off+2048+f*1024}')
        rdK(0, 0)
        g('s_waitcnt lgkmcnt(0)')
        g(mfma(S0, KF, QB, None))
        g(mfma(S0, KF+4, QB+4, S0))
        g('s_nop 15')
        set_standin(S0, QB, MNB)
        g('s_nop 1')
        g(mfma(S0, KF, QB, None))
        g(mfma(S0, KF+4, QB+4, S0))
        rdK(1, 0)
        rdV(0, 0, 0)
        g('s_nop 15')
        stamp(g, 3)

        def dma_slot(i, inloop):
            if i >= 32 + 2: return
            ph = (i - 2) & 3
            s = (i - 2) >> 2
            if i < 2: return
            st = s + 3
            def piece(kind):
                if kind == 'B':
                    if ph == 0:
                        g('s_mov_b32 m0, s45')
                        g('s_nop 0')
                    g(f'buffer_load_dwordx4 v2, s[24:27], s44 offen offset:{ph*1024} lds')
                    if ph == 3:
                        g('s_add_u32 s44, s44, 32768')
                        g('s_add_u32 s45, s45, 32768')
                        g('s_and_b32 s45, s45, 0x1ffff')
                elif kind == 'A0':
                    if ph == 0:
                        g('s_mov_b32 m0, s42')
                        g('s_nop 0')
                    g(f'buffer_load_dwordx4 v28, s[20:23], 0 offen offset:{ph*1024} lds')
                elif kind == 'A1' and ph == 0:
                    lab[0] += 1
                    g('s_cmp_ge_u32 s35, 4')
                    g(f's_cbranch_scc1 L{tag}_skA{lab[0]}')
                    g('s_add_u32 m0, s42, 32768')
                    g('s_nop 0')
                    for k in range(4):
                        g(f'buffer_load_dwordx4 v29, s[20:23], 0 offen offset:{k*1024} lds')
                    g.label(f'L{tag}_skA{lab[0]}')
            if inloop:
                piece('B')
            else:
                if st <= 7: piece('B')
                elif st == 8: piece('A0')
                elif st == 9: piece('A1')

        def body(i, cs, inloop=False):
            u = unit(i)
            sb = SB[i & 1]; sn = SB[(i + 1) & 1]
            e = [f'v_exp_f32 v{sb+r}, v{sb+r}' for r in range(16)]
            c = [f'v_cvt_pk_bf16_f32 v{P+k}, v{sb+2*k}, v{sb+2*k+1}' for k in range(8)]
            has1 = i + 1 < N; has2 = i + 2 < N
            if i < 32 and (i & 3) == 2:
                s = i >> 2
                g(f's_waitcnt vmcnt({0 if s == 7 else 4}) lgkmcnt(0)')
                g('s_barrier')
                if s == 7:
                    rdK(32, cs, TK)
                    g('s_waitcnt lgkmcnt(0)')
                    g(mfma(TS, TK, QA, unit(32)['C']))
                    g(mfma(TS, TK+4, QA+4, TS))
                    g('s_nop 15')
                    set_standin(TS, QA, MNA)
                    if kh == 1:
                        g('s_lshl_b32 s40, s34, 2')
                        g('s_add_u32 s40, s40, s36')
                        g('s_cmp_lt_u32 s40, 5')
                        g(f's_cbranch_scc0 L{tag}_valid')
                        g(f'v_mov_b32 v{MNA}, {POSBIG:#x}')
                        g.label(f'L{tag}_valid')
            elif i == 34:
                g('s_waitcnt lgkmcnt(0)')
                g('s_barrier')
                if kh == 1:
                    finish('FB', 1, OB, MNB, QB, TS)
            elif i > 0:
                g('s_waitcnt lgkmcnt(0)')
            else:
                g('s_waitcnt lgkmcnt(0)')
            g(e[0])
            if i > 0:
                up = unit(i - 1)
                g(mfma(up['O'], VF+4, P+4, up['O']))
            rdV(i, 1, cs)
            g(e[1]); g(e[2]); g(e[3])
            g(c[0])
            if i == 33 and kh == 0:
                write_partial(OB, MNB)
            if has1:
                un = unit(i + 1)
                g(mfma(sn, KF, un['Q'], un['C']))
            g(e[4]); g(e[5]); g(c[1]); g(e[6]); g(e[7]); g(c[2])
            if has1:
                g(mfma(sn, KF+4, un['Q']+4, sn))
            if has2:
                rdK(i + 2, cs)
            g(e[8]); g(c[3]); g(e[9]); g(e[10])
            dma_slot(i, inloop)
            g(e[11])
            g(mfma(u['O'], VF, P, None if u['first'] else u['O']))
            if has1:
                rdV(i + 1, 0, cs)
            for x in e[12:16]: g(x)
            g(c[4]); g(c[5]); g(c[6]); g(c[7])
        def advance():
            g('v_mov_b32 v4, v5')
            g('v_add_u32 v5, 32768, v5')
            g('v_and_b32 v5, 0x1ffff, v5')

        for b in range(4): body(b, 0)
        advance()
        stamp(g, 4)
        if OPT['unroll_b']:
            for s in range(1, 7):
                for j in range(4): body(4*s + j, s)
                advance()
        else:
            g('s_mov_b32 s46, 1')
            g('.p2align 3')
            g.label(f'L{tag}_loop')
            for j in range(4): body(4 + j, 1, inloop=True)
            advance()
            g('s_add_u32 s46, s46, 1')
            g('s_cmp_le_u32 s46, 4')
            g(f's_cbranch_scc1 L{tag}_loop')
            for s in (5, 6):
                for j in range(4): body(4*s + j, s)
                advance()
        stamp(g, 5)
        for j in range(4): body(28 + j, 7)
        stamp(g, 6)
        for i in range(32, N): body(i, 7)
        g('s_waitcnt lgkmcnt(0)')
        g('s_nop 1')
        g(mfma(OA, VF+4, P+4, OA))
        stamp(g, 7)
        g('s_nop 15')
        if kh == 1:
            write_partial(OA, MNA)
            g('s_waitcnt lgkmcnt(0)')
            g('s_barrier')
        else:
            g('s_barrier')
            stamp(g, 8)
            finish('FA', 0, OA, MNA, QA, MASK)
        stamp(g, 9)

    path(0)
    g('s_branch Lattn_fin')
    g.label('Lattn_kh1')
    path(1)
    g.label('Lattn_fin')
    if OPT['stamps']: g('s_waitcnt vmcnt(0)')
    stamp(g, 10); stamp(g, 14, True)
    tl_mark(g, 100)
    stamp_dump(g, 1, 35)
    tl_end(g, 1, 35)
    g.label('Lattn_end')
    g('s_endpgm')
    return name, 200

K3_LDS = 57 * 1024
def gen_proj(g):
    name = 'proj_kernel'
    kernel_header(g, name)
    g('s_cmp_ge_u32 s2, 224')
    g('s_cbranch_scc1 Lproj_end')
    stamp(g, 0); stamp(g, 15, True); tl_start(g)
    g('s_load_dwordx2 s[4:5], s[0:1], 16')
    g('s_load_dwordx2 s[6:7], s[0:1], 40')
    g('s_load_dwordx2 s[8:9], s[0:1], 48')
    g('s_load_dwordx2 s[12:13], s[0:1], 64')
    g('s_and_b32 s33, s2, 7')
    g('s_lshr_b32 s34, s2, 3')
    g('s_lshr_b32 s35, s33, 2')
    g('s_and_b32 s36, s33, 3')
    g('s_lshl_b32 s36, s36, 2')
    g('s_and_b32 s37, s34, 3')
    g('s_add_u32 s36, s36, s37')
    g('s_lshr_b32 s37, s34, 2')
    g('v_lshrrev_b32 v1, 6, v0')
    g('v_and_b32 v0, 63, v0')
    g('s_nop 0')
    g('v_readfirstlane_b32 s39, v1')
    g('v_lshrrev_b32 v4, 3, v0')
    g('v_and_b32 v5, 7, v0')
    g('v_and_b32 v6, 2, v4')
    g('v_lshlrev_b32 v6, 1, v6')
    g('v_xor_b32 v5, v5, v6')
    g('s_lshl_b32 s40, s39, 3')
    g('v_add_u32 v4, s40, v4')
    g('v_mul_u32_u24 v4, 896, v4')
    g('v_lshl_add_u32 v4, v5, 4, v4')
    g('s_lshl_b32 s40, s37, 7')
    g('v_add_u32 v3, s40, v4')
    g('s_lshl_b32 s42, s39, 10')
    g('v_lshlrev_b32 v2, 4, v0')
    g('s_lshl_b32 s43, s35, 6')
    g('s_lshl_b32 s41, s36, 2')
    g('s_add_u32 s43, s43, s41')
    g('s_add_u32 s43, s43, s39')
    g('s_lshl_b32 s43, s43, 15')
    g('s_waitcnt lgkmcnt(0)')
    g('s_cmp_eq_u32 s35, 0')
    g('s_cselect_b32 s4, s4, s6')
    g('s_cselect_b32 s5, s5, s7')
    make_srd(g, 16, 4, 5, 448 * 896)
    make_srd(g, 20, 8, 9, 2048 * 1792)
    g(f's_add_u32 s28, s12, {WS_O}')
    g('s_addc_u32 s29, s13, 0')
    g('s_mov_b32 s30, 0x400000')
    g('s_mov_b32 s31, 0x20000')
    if OPT.get('probe'):
        stamp(g, 6)
        g('buffer_load_dword v20, v2, s[16:19], 0 offen')
        g('s_waitcnt vmcnt(0)')
        stamp(g, 7)
        g('buffer_load_dword v20, v2, s[28:31], s43 offen')
        g('s_waitcnt vmcnt(0)')
        stamp(g, 8)
        g('buffer_load_dword v20, v2, s[16:19], 0 offen offset:2048')
        g('s_waitcnt vmcnt(0)')
        stamp(g, 9)
        g('buffer_load_dword v20, v2, s[28:31], s43 offen offset:2048')
        g('s_waitcnt vmcnt(0)')
        stamp(g, 10)
        g('buffer_load_dword v20, v2, s[28:31], s43 offen offset:2048')
        g('s_waitcnt vmcnt(0)')
        stamp(g, 11)
    for it in range(15):
        if it == 14:
            g('s_cmp_ge_u32 s39, 1')
            g('s_cbranch_scc1 Lproj_skip')
        g(f's_add_u32 m0, s42, {it*4096}')
        if it == 14:
            g(f'v_add_u32 v4, {it*32*896}, v3')
            g('buffer_load_dwordx4 v4, s[16:19], 0 offen lds')
        else:
            g(f's_mov_b32 s44, {it*32*896}')
            g('buffer_load_dwordx4 v3, s[16:19], s44 offen lds')
    g.label('Lproj_skip')
    OF = 64
    PRE = OPT.get('k3_pre', 10)
    def ofload(n):
        if n % 4 == 0 and n > 0:
            g('s_add_u32 s43, s43, 4096')
        g(f'buffer_load_dwordx4 {vr(OF+4*n,4)}, v2, s[28:31], s43 offen offset:{(n%4)*1024}')
    for n in range(PRE): ofload(n)
    g('v_bfe_u32 v4, v0, 2, 2')
    g('v_and_b32 v5, 3, v0')
    g('v_bfe_u32 v7, v0, 4, 1')
    g('v_lshrrev_b32 v6, 5, v0')
    g('v_lshlrev_b32 v7, 5, v7')
    g('v_lshl_add_u32 v7, v5, 3, v7')
    g('v_lshrrev_b32 v11, 4, v7')
    g('v_and_b32 v8, 2, v4')
    g('v_lshlrev_b32 v8, 1, v8')
    g('v_xor_b32 v11, v11, v8')
    g('v_and_b32 v7, 15, v7')
    g('v_lshl_add_u32 v7, v11, 4, v7')
    g('v_lshl_add_u32 v4, v6, 2, v4')
    g('v_lshl_add_u32 v9, v4, 7, v7')
    g('v_xor_b32 v10, 64, v9')
    ACC = 16; WF = 48
    stamp(g, 1)
    g(f's_waitcnt vmcnt({PRE})')
    g('s_barrier')
    stamp(g, 2); tl_mark(g, 98)
    steps = [(h, i) for h in range(16) for i in range(2)]
    def rd(n, buf):
        h, i = steps[n]
        for ct in range(2):
            for jj in range(2):
                off = (28*h + 16*i + 8*jj) * 128
                g(f'ds_read_b64_tr_b16 {vr(WF+8*buf+4*ct+2*jj,2)}, v{9+ct} offset:{off}')
    rd(0, 0)
    for n in range(32):
        if n + 1 < 32:
            rd(n + 1, (n + 1) & 1)
        if n + PRE < 32: ofload(n + PRE)
        g(f's_waitcnt vmcnt({min(PRE, 31-n)}) lgkmcnt({4 if n + 1 < 32 else 0})')
        for ct in range(2):
            g(mfma(ACC + 16*ct, WF + 8*(n & 1) + 4*ct, OF + 4*n, None if n == 0 else ACC + 16*ct))
    g('s_nop 15')
    stamp(g, 3); tl_mark(g, 100)
    P = 48
    for i in range(16):
        g(f'v_cvt_pk_bf16_f32 v{P+i}, v{ACC+2*i}, v{ACC+2*i+1}')
    g('v_and_b32 v4, 31, v0')
    g('s_lshl_b32 s40, s36, 7')
    g('s_lshl_b32 s41, s39, 5')
    g('s_add_u32 s40, s40, s41')
    g('v_add_u32 v4, s40, v4')
    g('v_mul_u32_u24 v4, 1792, v4')
    g('v_lshl_add_u32 v4, v6, 4, v4')
    for k in range(4):
        a = P + 4*k
        g(f'v_permlane32_swap_b32 v{a}, v{a+2}')
        g(f'v_permlane32_swap_b32 v{a+1}, v{a+3}')
    g('s_mul_i32 s40, s35, 896')
    g('s_lshl_b32 s41, s37, 7')
    g('s_add_u32 s40, s40, s41')
    g('s_nop 0')
    for k in range(4):
        g(f'buffer_store_dwordx4 {vr(P+4*k,4)}, v4, s[20:23], s40 offen offset:{32*k}')
    stamp(g, 4)
    if OPT['stamps']: g('s_waitcnt vmcnt(0)')
    stamp(g, 5); stamp(g, 14, True)
    stamp_dump(g, 2, 39, nwaves=4)
    if OPT['tl']:
        pass
    tl_end(g, 2, 39, wsh=2)
    g.label('Lproj_end')
    g('s_endpgm')
    return name, 192

HEADER = '''; Kernarg layout for this problem (72 bytes, ptrs only, base s[0:1]):
'''

def main(out):
    g = Gen()
    launches = [
        ('qkv_kernel', 256, 512, K1_LDS),
        ('attn_kernel', 256, 512, K2_LDS),
        ('proj_kernel', 224, 256, K3_LDS),
    ]
    fns = [gen_qkv, gen_attn, gen_proj]
    if OPT['tl']:
        launches.append(('tlsum_kernel', 1, 64, 0))
        fns.append(lambda g: gen_tlsum(g, (32, 32, 14)))
    txt = HEADER
    for n, gr, bl, lds in launches:
        txt += f'; @launch kernel={n} grid=({gr},1,1) block=({bl},1,1) lds={lds}\n'
    txt += '.amdgcn_target "amdgcn-amd-amdhsa--gfx950"\n.text\n'
    descs = []
    for fn in fns:
        name, vg = fn(g)
        descs.append(kernel_desc(name, vg))
    txt += g.text()
    txt += '.section .rodata,"a"\n'
    for d in descs:
        txt += '.p2align 6\n' + d
    open(out, 'w').write(txt)

if __name__ == '__main__':
    out = sys.argv[1] if len(sys.argv) > 1 else 'concat_heads__sliding_block__softmax_full_mha__prompt.s'
    for a in sys.argv[2:]:
        if '=' in a:
            k, v = a.split('=', 1); OPT[k] = v if k == 'st_flags' else (v not in ('0', 'False'))
        else:
            OPT[a] = True
    main(out)
```

```python
import sys, math, struct

def f32bits(x): return struct.unpack('<I', struct.pack('<f', x))[0]

class Gen:
    def __init__(self): self.lines = []
    def __call__(self, s):
        for l in s.split('\n'):
            l = l.strip()
            if l: self.lines.append('  ' + l)
    def label(self, s): self.lines.append(s + ':')
    def raw(self, s): self.lines.append(s)
    def text(self): return '\n'.join(self.lines) + '\n'

def vr(base, n): return f'v[{base}:{base+n-1}]'
def mfma(d, a, b, c):
    cs = '0' if c is None else vr(c, 16)
    return f'v_mfma_f32_32x32x16_bf16 {vr(d,16)}, {vr(a,4)}, {vr(b,4)}, {cs}'

OPT = dict(stamps=False, st='sc1', ld='sc1', spin=200000)
NAME = 'concat_heads__sliding_block__softmax_full_mha__prompt_kernel'
STAMP_BASE = 0x2000000
def stamp(g, i, real=False, q=False):
    if not OPT['stamps']: return
    import inspect
    if OPT.get('qkvst') and 5 <= i <= 13:
        caller = inspect.stack()[1].function
        if caller != 'qkv_compute': return
    if OPT.get('attst') and 2 <= i <= 14 and not q: return
    op = 's_memrealtime' if real else 's_memtime'
    g(f'{op} s[{70+2*i}:{71+2*i}]')
def stamp_dump(g):
    if not OPT['stamps']: return
    g('s_waitcnt lgkmcnt(0) vmcnt(0)')
    g(f's_add_u32 s64, s20, {STAMP_BASE}')
    g(f's_addc_u32 s65, s21, 0')
    g('s_mov_b32 s66, 0x100000')
    g('s_mov_b32 s67, 0x20000')
    g('s_mov_b64 exec, -1')
    g('v_mov_b32 v1, 0')
    for i in range(16):
        g(f'v_writelane_b32 v1, s{70+2*i}, {i}')
    g('s_lshl_b32 s68, s2, 3')
    g('s_add_u32 s68, s68, s3')
    g('s_lshl_b32 s68, s68, 6')
    g('v_lshlrev_b32 v3, 2, v0')
    g('v_cmp_gt_u32 vcc, 16, v0')
    g('s_and_saveexec_b64 s[62:63], vcc')
    g('buffer_store_dword v1, v3, s[64:67], s68 offen')
    g('s_waitcnt vmcnt(0)')

WS_Q = 0
WS_KV = 0x400000
WS_O = 0xC00000
WS_CNT = 0x1000000
CNT_A, CNT_B, CNT_O = 0, 16 * 256, 32 * 256
QSCALE = (28 ** -0.5) * math.log2(math.e)
NEGBIG = 0xf149f2ca
POSBIG = 0x7149f2ca
LDS_BYTES = 131072 + 16384 + 1024

def srd(g, dst, lo, hi, nbytes, add=0):
    if add:
        g(f's_add_u32 s{dst}, s{lo}, {add}')
        g(f's_addc_u32 s{dst+1}, s{hi}, 0')
    else:
        g(f's_mov_b32 s{dst}, s{lo}')
        g(f's_mov_b32 s{dst+1}, s{hi}')
    g(f's_mov_b32 s{dst+2}, {nbytes}')
    g(f's_mov_b32 s{dst+3}, 0x20000')
def ST(): return (' ' + OPT['st']) if OPT['st'] else ''
def LD(): return (' ' + OPT['ld']) if OPT['ld'] else ''
lab = [0]
def newlab(p):
    lab[0] += 1
    return f'L{p}_{lab[0]}'

def spin_until(g, vdst, voff, target):
    l0 = newlab('poll'); l1 = newlab('pdone')
    g(f's_mov_b32 s68, {OPT["spin"]}')
    g.label(l0)
    g(f'buffer_load_dword v{vdst}, v{voff}, s[64:67], 0 offen sc1')
    g('s_waitcnt vmcnt(0)')
    g(f'v_cmp_ne_u32 vcc, {target}, v{vdst}')
    g('s_nop 4')
    g(f's_cbranch_vccz {l1}')
    g('s_sleep 1')
    g('s_sub_u32 s68, s68, 1')
    g('s_cmp_lg_u32 s68, 0')
    g(f's_cbranch_scc1 {l0}')
    g.label(l1)

WROW = 176
WSTG = 64 * WROW
NCH = 14
def prologue(g):
    g('s_and_b32 s40, s2, 7')
    g('s_lshr_b32 s41, s2, 3')
    g('s_lshr_b32 s22, s40, 1')
    g('s_lshl_b32 s22, s22, 2')
    g('s_and_b32 s42, s41, 3')
    g('s_add_u32 s22, s22, s42')
    g('s_and_b32 s23, s40, 1')
    g('s_lshl_b32 s23, s23, 3')
    g('s_lshr_b32 s42, s41, 2')
    g('s_add_u32 s23, s23, s42')
    g('s_cmp_ge_u32 s3, 4')
    g('s_cbranch_scc1 Lloader')

def qkv_compute(g):
    g('v_and_b32 v4, 31, v0')
    g('s_lshl_b32 s44, s3, 5')
    g('v_add_u32 v4, s44, v4')
    g('v_lshlrev_b32 v4, 7, v4')
    g('v_bfe_u32 v5, v0, 1, 3')
    g('v_lshrrev_b32 v6, 5, v0')
    for ks in range(4):
        g(f'v_add_u32 v7, {2*ks}, v6')
        g('v_xor_b32 v7, v7, v5')
        g(f'v_lshl_add_u32 v{12+ks}, v7, 4, v4')
    g('v_bfe_u32 v4, v0, 2, 2')
    g('v_and_b32 v5, 3, v0')
    g('v_bfe_u32 v7, v0, 4, 1')
    g('v_lshlrev_b32 v7, 5, v7')
    g('v_lshl_add_u32 v7, v5, 3, v7')
    g('v_lshlrev_b32 v4, 1, v4')
    g('v_add_u32 v4, v4, v6')
    g(f'v_mul_u32_u24 v4, {2*WROW}, v4')
    g('v_add_u32 v4, v4, v7')
    g('v_add_u32 v16, 65536, v4')
    g('v_lshlrev_b32 v2, 4, v0')
    g('s_waitcnt lgkmcnt(0)')
    stamp(g, 1)
    srd(g, 32, 20, 21, 0x1000000)
    srd(g, 64, 20, 21, 0x4000, WS_CNT)
    g('s_or_b32 s44, s2, s3')
    g('s_cmp_lg_u32 s44, 0')
    g('s_cbranch_scc1 Lnoinit')
    g('v_lshlrev_b32 v20, 8, v0')
    g('v_mov_b32 v21, 0')
    g('buffer_store_dword v21, v20, s[64:67], 0 offen sc1')
    g('s_waitcnt vmcnt(0)')
    srd(g, 36, 18, 19, 256)
    g('s_mov_b64 exec, 1')
    g('v_mov_b32 v21, 1')
    g('v_mov_b32 v20, 0')
    g('buffer_store_dword v21, v20, s[36:39], 0 offen sc1')
    g('s_mov_b64 exec, -1')
    g.label('Lnoinit')
    srd(g, 36, 18, 19, 256)
    g('v_mov_b32 v30, 0')
    g('buffer_load_dword v31, v30, s[36:39], 0 offen sc1')
    XF = 80; WF = 88
    ACCS = {1: 32, 0: 144}
    PS = {1: 112, 0: 208}
    g('v_and_b32 v18, 31, v0')
    g('v_cmp_eq_u32 vcc, 28, v18')
    g('v_mov_b32 v19, 0x3f803f80')
    g('s_nop 0')
    g('v_cndmask_b32_e64 v18, 0, v19, vcc')
    g('s_mov_b32 s60, 0')
    g('s_mov_b32 s61, -1')
    g('s_mov_b32 s58, 0xf0000000')
    g('s_mov_b32 s59, 0xf0000000')
    def reads(n, buf, part):
        kc, ks = divmod(n, 4)
        st = kc % 4
        if part == 0:
            g(f'ds_read_b128 {vr(XF+4*buf,4)}, v{12+ks} offset:{st*16384}')
        for jj in range(2):
            off = st * WSTG + (ks*16 + jj) * WROW + part * 56
            g(f'ds_read_b64_tr_b16 {vr(WF+12*buf+4*part+2*jj,2)}, v16 offset:{off}')
    def mfma1(br, buf, t, first, types):
        x = XF + 4*buf; wf = WF + 12*buf + 4*t; d = ACCS[br] + 16*t
        c = None if first else d
        g(mfma(d, wf, x, c) if types[t] == 'QK' else mfma(d, x, wf, c))
    def epilogue_list(br, types):
        L = []
        A = L.append
        ACC = ACCS[br]; P = PS[br]
        A('s_lshl_b32 s54, s22, 2')
        A('s_add_u32 s54, s54, s3')
        if br: A('s_add_u32 s54, s54, 1024')
        for t in range(3):
            a = ACC + 16*t; p = P + 8*t
            so = (48, 49, 53)[t]
            A(f's_add_u32 s55, s52, {t}')
            A('s_and_b32 s56, s55, 15')
            A('s_lshl_b32 s56, s56, 6')
            A('s_add_u32 s56, s56, s54')
            if types[t] == 'QK':
                A('s_cmp_lt_u32 s55, 16\n' + f's_cselect_b32 s57, {f32bits(QSCALE):#x}, 1.0\n' + 's_cselect_b32 s45, 0, 0x3f80\n' +
                  's_cselect_b32 s46, 11, 12\n' + f's_cselect_b32 s47, {WS_Q}, {WS_KV}')
                A('s_lshl_b32 s56, s56, s46')
                A(f's_add_u32 s{so}, s56, s47')
                A('v_mov_b32 v19, s45')
                for r in range(16): A(f'v_mul_f32 v{a+r}, s57, v{a+r}')
                for i in range(8): A(f'v_cvt_pk_bf16_f32 v{p+i}, v{a+2*i}, v{a+2*i+1}')
                A(f'v_cndmask_b32_e64 v{p+6}, v{p+6}, v19, s[60:61]')
                A(f'v_cndmask_b32_e64 v{p+7}, v{p+7}, 0, s[60:61]')
            else:
                A('s_lshl_b32 s56, s56, 12')
                A(f's_add_u32 s{so}, s56, {WS_KV + 2048}')
                for i in range(8): A(f'v_cvt_pk_bf16_f32 v{p+i}, v{a+2*i}, v{a+2*i+1}')
                for i in range(8): A(f'v_cndmask_b32_e64 v{p+i}, v{p+i}, v18, s[58:59]')
            if br:
                A('s_nop 1\n' + f'buffer_store_dwordx4 {vr(p,4)}, v2, s[32:35], s{so} offen{ST()}')
                A(f'buffer_store_dwordx4 {vr(p+4,4)}, v2, s[32:35], s{so} offen offset:1024{ST()}')
        return L
    g('s_mul_i32 s52, s23, 3')
    g('s_cmp_eq_u32 s52, 30')
    g('s_cbranch_scc1 Lqkv_v1')
    g('s_cmp_gt_u32 s52, 30')
    g('s_cbranch_scc1 Lqkv_v2')
    variants = [('QK','QK','QK'), ('QK','QK','V'), ('V','V','V')]
    NS = NCH * 4
    SIG_AT = OPT.get('sig_at', 44)
    for vi, types in enumerate(variants):
        if vi: g.label(f'Lqkv_v{vi}')
        g('s_barrier')
        if vi == 0: stamp(g, 2)
        for part in range(3): reads(0, 0, part)
        epi = []
        EP0, EPN = OPT.get('ep0', 28), OPT.get('epn', 4)
        def fill(k):
            for _ in range(k):
                if epi: g(epi.pop(0))
        for n in range(NS):
            br = 1 if n < 28 else 0
            boundary = (n + 1) % 4 == 0 and n + 1 < NS
            nxt = n + 1 < NS
            buf = n & 1
            first = n % 28 == 0
            if n == EP0:
                epi = ['s_nop 7'] + epilogue_list(1, types)
                per = -(-len(epi) // (EPN * 3))
            inter = EP0 <= n < EP0 + EPN
            if boundary:
                g('s_waitcnt vmcnt(0) lgkmcnt(0)' if n + 1 == SIG_AT else 's_waitcnt lgkmcnt(0)')
                g('s_barrier')
                if OPT.get('qkvst') and vi == 0:
                    c1 = (n + 1) // 4
                    m = {2: 5, 4: 6, 6: 7, 8: 8, 10: 9, 11: 10, 12: 13}
                    if c1 in m: stamp(g, m[c1])
                if n + 1 == SIG_AT:
                    sk = newlab('sigB'); ok = newlab('inited'); lp = newlab('initspin')
                    g('s_cmp_lg_u32 s3, 0')
                    g(f's_cbranch_scc1 {sk}')
                    g('v_readfirstlane_b32 s47, v31')
                    g('s_cmp_lg_u32 s47, 0')
                    g(f's_cbranch_scc1 {ok}')
                    g(f's_mov_b32 s68, {OPT["spin"]}')
                    g.label(lp)
                    g('buffer_load_dword v31, v30, s[36:39], 0 offen sc1')
                    g('s_waitcnt vmcnt(0)')
                    g('v_readfirstlane_b32 s47, v31')
                    g('s_cmp_lg_u32 s47, 0')
                    g(f's_cbranch_scc1 {ok}')
                    g('s_sub_u32 s68, s68, 1')
                    g('s_cmp_lg_u32 s68, 0')
                    g(f's_cbranch_scc1 {lp}')
                    g.label(ok)
                    g('s_mov_b64 exec, 1')
                    g('v_mov_b32 v1, 1')
                    g('s_lshl_b32 s47, s23, 8')
                    g(f's_add_u32 s47, s47, {CNT_B}')
                    g('v_mov_b32 v29, s47')
                    g('buffer_atomic_add v1, v29, s[64:67], 0 offen sc1')
                    g('s_mov_b64 exec, -1')
                    g.label(sk)
            else:
                g('s_waitcnt lgkmcnt(4)')
            mfma1(br, buf, 0, first, types)
            if nxt: reads(n + 1, buf ^ 1, 0)
            if inter: fill(per)
            if not boundary: g(f's_waitcnt lgkmcnt({5 if nxt else 2})')
            mfma1(br, buf, 1, first, types)
            if nxt: reads(n + 1, buf ^ 1, 1)
            if inter: fill(per)
            if not boundary: g(f's_waitcnt lgkmcnt({5 if nxt else 0})')
            mfma1(br, buf, 2, first, types)
            if nxt: reads(n + 1, buf ^ 1, 2)
            if inter: fill(per)
            if n == 27 and vi == 0: stamp(g, 3)
        assert not epi
        if vi == 0: stamp(g, 14)
        g('s_barrier')
        if vi == 0: stamp(g, 4)
        g('s_nop 15')
        for x in epilogue_list(0, types): g(x)
        if vi < 2: g('s_branch Lqkv_fin')
    g.label('Lqkv_fin')
    g('s_branch Lattn_setup')

def qkv_loader(g):
    g.label('Lloader')
    g('s_sub_u32 s43, s3, 4')
    g('s_lshl_b32 s44, s22, 7')
    g('s_lshl_b32 s45, s43, 5')
    g('s_add_u32 s44, s44, s45')
    g('v_lshrrev_b32 v10, 3, v0')
    g('v_add_u32 v10, s44, v10')
    g('v_mul_u32_u24 v10, 896, v10')
    g('v_lshrrev_b32 v11, 4, v0')
    g('v_and_b32 v12, 7, v0')
    g('v_xor_b32 v12, v12, v11')
    g('v_lshl_add_u32 v2, v12, 4, v10')
    g('v_xor_b32 v12, 4, v12')
    g('v_lshl_add_u32 v3, v12, 4, v10')
    g('v_add_u32 v3, 7168, v3')
    g('v_add_u32 v4, 14336, v2')
    g('v_add_u32 v5, 14336, v3')
    g('s_lshl_b32 s46, s43, 12')
    g('s_lshl_b32 s47, s43, 10')
    g('s_add_u32 s47, s47, 65536')
    g('s_lshl_b32 s44, s43, 6')
    g('s_mul_i32 s45, s23, 168')
    def wcalc(n):
        g('v_add_u32 v10, s44, v0')
        if n: g(f'v_add_u32 v10, {256*n}, v10')
        g('v_mul_u32_u24 v11, 5958, v10')
        g('v_lshrrev_b32 v11, 16, v11')
        g('v_mul_u32_u24 v12, 11, v11')
        g('v_sub_u32 v12, v10, v12')
        g('v_and_b32 v13, 48, v11')
        g('v_and_b32 v14, 3, v11')
        g('v_lshl_add_u32 v13, v14, 2, v13')
        g('v_bfe_u32 v14, v11, 2, 2')
        g('v_add_u32 v13, v13, v14')
        g('v_mul_u32_u24 v13, 2688, v13')
        g('v_lshl_add_u32 v13, v12, 4, v13')
        g(f'v_add_u32 v{6+n}, s45, v13')
    wcalc(0)
    g('s_waitcnt lgkmcnt(0)')
    srd(g, 24, 10, 11, 1835008)
    srd(g, 28, 12, 13, 1204224)
    def issueX(c):
        kc = c % 7; st = c % 4
        sx = 24 if c < 7 else 32
        g(f's_mov_b32 s48, {kc*128}')
        for e in range(4):
            g(f's_add_u32 m0, s46, {st*16384 + e*1024}')
            g('s_nop 0')
            g(f'buffer_load_dwordx4 v{2+e}, s[{sx}:{sx+3}], s48 offen lds')
    def issueW(c, ns=(0, 1, 2)):
        kc = c % 7; st = c % 4
        sw = 28 if c < 7 else 36
        g(f's_mov_b32 s49, {kc*64*2688}')
        for n in ns:
            if n == 2:
                sk = newlab('qs')
                g('s_cmp_eq_u32 s43, 3')
                g(f's_cbranch_scc1 {sk}')
            g(f's_add_u32 m0, s47, {st*WSTG + n*4096}')
            g('s_nop 0')
            g(f'buffer_load_dwordx4 v{6+n}, s[{sw}:{sw+3}], s49 offen lds')
            if n == 2: g.label(sk)
    def issue(c):
        issueX(c); issueW(c)
    issueX(0)
    issueW(0, (0,))
    wcalc(1); issueW(0, (1,))
    wcalc(2); issueW(0, (2,))
    srd(g, 32, 4, 5, 1835008)
    srd(g, 36, 6, 7, 1204224)
    srd(g, 64, 20, 21, 0x4000, WS_CNT)
    g('s_and_b32 s40, s2, 7')
    g('s_bfe_u32 s41, s2, 0x10003')
    g('s_lshl_b32 s40, s40, 1')
    g('s_add_u32 s40, s40, s41')
    g('v_min_u32 v30, 2, v0')
    g('v_lshlrev_b32 v30, 4, v30')
    g('v_add_u32 v30, s40, v30')
    g('v_mul_u32_u24 v30, 43, v30')
    g('v_lshrrev_b32 v30, 7, v30')
    g('v_lshlrev_b32 v31, 8, v30')
    g(f'v_add_u32 v203, {CNT_B}, v31')
    for c in range(1, 3): issue(c)
    for c in range(NCH):
        rem = min(2, NCH - 1 - c)
        g(f's_waitcnt vmcnt({6*rem})')
        g('s_barrier')
        if c + 3 < NCH: issue(c + 3)
        if c == 13:
            g('buffer_load_dword v201, v203, s[64:67], 0 offen sc1')
    g('s_barrier')
    stamp(g, 4)

K2_SCR = 131072
def phase_attn(g):
    g.label('Lattn_setup')
    g('s_and_b32 s40, s2, 7')
    g('s_bfe_u32 s41, s2, 0x10003')
    g('s_lshl_b32 s40, s40, 1')
    g('s_add_u32 s40, s40, s41')
    g('s_lshr_b32 s41, s2, 4')
    g('s_and_b32 s42, s3, 3')
    g('s_lshr_b32 s43, s3, 2')
    QA = 8; QB = 16; MASK = 32; S0 = 48; S1 = 64; P = 80; OA = 88; OB = 104; KF = 120; VF = 128; T = 136
    TK = 144; TS = 152
    MNA = 26; MNB = 27
    SB = [S0, S1]
    g('v_lshlrev_b32 v2, 4, v0')
    g('s_lshl_b32 s44, s40, 6')
    g('s_lshl_b32 s45, s41, 2')
    g('s_add_u32 s45, s45, s42')
    g('s_add_u32 s44, s44, s45')
    g('s_lshl_b32 s44, s44, 11')
    g('s_lshl_b32 s46, s42, 12')
    srd(g, 24, 20, 21, 0x400000)
    g('s_lshl_b32 s47, s40, 18')
    g(f's_add_u32 s47, s47, {WS_KV}')
    g('s_add_u32 s28, s20, s47')
    g('s_addc_u32 s29, s21, 0')
    g('s_mov_b32 s30, 0x40000')
    g('s_mov_b32 s31, 0x20000')
    g('s_add_u32 s32, s28, 0x400000')
    g('s_addc_u32 s33, s29, 0')
    g('s_mov_b32 s34, 0x40000')
    g('s_mov_b32 s35, 0x20000')
    srd(g, 36, 20, 21, 0x400000, WS_O)
    g('v_min_u32 v30, 2, v0')
    g('v_lshlrev_b32 v30, 4, v30')
    g('v_add_u32 v30, s40, v30')
    g('v_mul_u32_u24 v30, 43, v30')
    g('v_lshrrev_b32 v30, 7, v30')
    g('v_lshlrev_b32 v31, 8, v30')
    g('s_lshl_b32 s47, s41, 2')
    g('s_add_u32 s47, s47, s3')
    g('s_sub_u32 s47, s47, 8')
    g('s_lshl_b32 s50, s47, 12')
    g('s_cmp_lt_i32 s47, 0')
    g('s_cselect_b32 s50, 0x40000000, s50')
    g('v_add_u32 v28, s50, v2')
    g('s_add_u32 s47, s47, 8')
    g('s_lshl_b32 s50, s47, 12')
    g('v_add_u32 v29, s50, v2')
    g('s_lshl_b32 s47, s42, 12')
    g('v_add_u32 v3, s47, v2')
    g('s_lshl_b32 s47, s43, 14')
    g('v_add_u32 v4, s47, v2')
    g('v_add_u32 v5, 32768, v4')
    g(f'v_add_u32 v6, {K2_SCR}, v3')
    g('s_lshl_b32 s47, s42, 8')
    g(f's_add_u32 s47, s47, {K2_SCR+16384}')
    g('v_lshlrev_b32 v7, 2, v0')
    g('v_add_u32 v7, s47, v7')
    g('s_lshl_b32 s47, s42, 11')
    g(f's_add_u32 s51, s47, {K2_SCR}')
    g('v_add_u32 v1, s51, v2')
    g('v_and_b32 v24, 31, v0')
    g('v_lshrrev_b32 v25, 5, v0')
    g('v_lshlrev_b32 v25, 2, v25')
    g('v_sub_u32 v24, v24, v25')
    g(f'v_mov_b32 v25, {NEGBIG:#x}')
    g('s_mov_b32 s60, 0')
    g('s_mov_b32 s61, -1')
    QL = 30 + 170
    g(f'v_mov_b32 v{QL}, v1')

    def set_mask(dst, kind):
        for r in range(16):
            br_ = (r & 3) + 8 * (r >> 2)
            op = 'v_cmp_le_i32' if kind == 'diag' else 'v_cmp_gt_i32'
            g(f'{op} vcc, {br_}, v24')
            g('s_nop 1')
            g(f'v_cndmask_b32_e64 v{dst+r}, v25, 0, vcc')
    def dma4(vreg, s, s_goff, s_m0, n=4, first=0):
        g(f's_mov_b32 m0, {s_m0}')
        g('s_nop 0')
        for i in range(first, first + n):
            g(f'buffer_load_dwordx4 v{vreg}, s[{s}:{s+3}], {s_goff} offen offset:{i*1024}{LD()} lds')
    def stage_full(st):
        g(f's_add_u32 s48, s46, {st*32768}')
        g(f's_add_u32 s49, s46, {(st&3)*32768}')
        dma4(2, 32, 's48', 's49')
        g('s_add_u32 s48, s48, 16384')
        g('s_add_u32 s49, s49, 16384')
        dma4(2, 32, 's48', 's49')

    g('s_cmp_eq_u32 s43, 0')
    g('s_cbranch_scc0 Lattn_pre1')
    srd(g, 56, 20, 21, 0x1000000)
    set_mask(MASK, 'diag')
    stamp(g, 5)
    g('s_barrier')
    g('s_branch Lattn_go')
    g.label('Lattn_pre1')
    set_mask(MASK, 'first')
    if OPT.get('prio') == 'kh1': g('s_setprio 1')
    g('s_waitcnt vmcnt(0)')
    g('v_cmp_ne_u32 vcc, 16, v201')
    g('s_nop 4')
    g('s_cbranch_vccz Lh1_polled')
    spin_until(g, 201, 203, 16)
    g.label('Lh1_polled')
    stamp(g, 5)
    g('s_add_u32 s47, s44, 0x200000')
    dma4(2, 24, 's47', 's51', n=2)
    stage_full(0)
    stage_full(1)
    g('s_waitcnt vmcnt(8)')
    g('s_barrier')
    stage_full(2)
    stage_full(3)
    g.label('Lattn_go')
    stamp(g, 6)
    g(f'ds_read_b128 {vr(QB,4)}, v{QL}')
    g(f'ds_read_b128 {vr(QB+4,4)}, v{QL} offset:1024')

    def rowmax(sbuf, t):
        g(f'v_max3_f32 v{t}, v{sbuf}, v{sbuf+1}, v{sbuf+2}')
        for r in range(3, 15, 2):
            g(f'v_max3_f32 v{t}, v{t}, v{sbuf+r}, v{sbuf+r+1}')
        g(f'v_max_f32 v{t}, v{t}, v{sbuf+15}')
        g(f'v_mov_b32 v{t+1}, v{t}')
        g('s_nop 1')
        g(f'v_permlane32_swap_b32 v{t}, v{t+1}')
        g('s_nop 1')
        g(f'v_max_f32 v{t}, v{t}, v{t+1}')
    def set_standin(sbuf, q, mneg):
        t = T
        rowmax(sbuf, t)
        g(f'v_sub_f32 v{t}, 0, v{t}')
        g(f'v_cvt_pk_bf16_f32 v{t}, v{t}, 0')
        g(f'v_lshlrev_b32 v{mneg}, 16, v{t}')
        g('s_mov_b64 exec, s[60:61]')
        g(f'v_mov_b32 v{q+4+2}, v{t}')
        g('s_mov_b64 exec, -1')
    def write_partial(O, mn):
        for i in range(4): g(f'ds_write_b128 v6, {vr(O+4*i,4)} offset:{i*1024}')
        g(f'ds_write_b32 v7, v{mn}')
    FB = 144
    def finish(tag, br, O, mn, q, tmp):
        for i in range(4): g(f'ds_read_b128 {vr(tmp+4*i,4)}, v6 offset:{i*1024}')
        g(f'ds_read_b32 v{T}, v7')
        g('s_waitcnt lgkmcnt(0)')
        g(f'v_min_f32 v{T+1}, v{mn}, v{T}')
        g(f'v_sub_f32 v{T+2}, v{T+1}, v{mn}')
        g(f'v_sub_f32 v{T+3}, v{T+1}, v{T}')
        g(f'v_exp_f32 v{T+2}, v{T+2}')
        g(f'v_exp_f32 v{T+3}, v{T+3}')
        g('s_nop 0')
        for r in range(16): g(f'v_mul_f32 v{O+r}, v{O+r}, v{T+2}')
        for r in range(16): g(f'v_fmac_f32 v{O+r}, v{tmp+r}, v{T+3}')
        g(f'v_mov_b32 v{T}, v{O+12}')
        g(f'v_mov_b32 v{T+1}, v{O+12}')
        g(f'v_mul_f32 v{T+4}, 0, v{O}')
        g(f'v_fmac_f32 v{T+4}, 0, v{O+1}')
        g(f'v_permlane32_swap_b32 v{T}, v{T+1}')
        for r in range(2, 16): g(f'v_fmac_f32 v{T+4}, 0, v{O+r}')
        g(f'v_add_f32 v{T+4}, v{T+4}, v{T+1}')
        g(f's_mov_b32 s47, {f32bits(2.0**100):#x}')
        g(f'v_cmp_ngt_f32 vcc, s47, v{T+4}')
        g('s_nop 4')
        g(f's_cbranch_vccz L{tag}_ok')
        fallback(tag, br, O, q)
        g(f'v_mov_b32 v{T}, v{O+12}')
        g(f'v_mov_b32 v{T+1}, v{O+12}')
        g('s_nop 1')
        g(f'v_permlane32_swap_b32 v{T}, v{T+1}')
        g('s_nop 1')
        g.label(f'L{tag}_ok')
        g(f'v_rcp_f32 v{T+1}, v{T+1}')
        g('s_nop 0')
        for r in range(16): g(f'v_mul_f32 v{O+r}, v{O+r}, v{T+1}')
        for i in range(8): g(f'v_cvt_pk_bf16_f32 v{tmp+i}, v{O+2*i}, v{O+2*i+1}')
        g('s_mov_b64 exec, s[60:61]')
        g(f'v_mov_b32 v{tmp+6}, 0')
        g(f'v_mov_b32 v{tmp+7}, 0')
        g('s_mov_b64 exec, -1')
        g('s_lshl_b32 s47, s41, 2')
        g('s_add_u32 s47, s47, s42')
        g(f's_add_u32 s47, s47, {br*64}')
        g('s_lshl_b32 s47, s47, 4')
        g('s_add_u32 s47, s47, s40')
        g('s_lshl_b32 s47, s47, 11')
        g('s_nop 0')
        g(f'buffer_store_dwordx4 {vr(tmp,4)}, v2, s[36:39], s47 offen{ST()}')
        g(f'buffer_store_dwordx4 {vr(tmp+4,4)}, v2, s[36:39], s47 offen offset:1024{ST()}')
        g('s_nop 1')
    def fallback(tag, br, O, q):
        FS, FK, FV, FP, FQ, Fm = FB, FB+16, FB+24, FB+32, FB+40, FB+48
        s = 28 if br == 0 else 32
        for i in range(8): g(f'v_mov_b32 v{FQ+i}, v{q+i}')
        g('s_mov_b64 exec, s[60:61]')
        g(f'v_mov_b32 v{FQ+6}, 0')
        g('s_mov_b64 exec, -1')
        for r in range(16): g(f'v_mov_b32 v{O+r}, 0')
        g(f'v_mov_b32 v{Fm}, v25')
        if br == 0:
            g('s_lshl_b32 s52, s41, 2')
            g('s_add_u32 s52, s52, s42')
            g('s_sub_u32 s53, s52, 8')
            g('s_mov_b32 s54, s52')
        else:
            g('s_mov_b32 s54, 63')
        g.label(f'L{tag}_fb_loop')
        g('s_lshl_b32 s55, s54, 12')
        for i in range(2):
            g(f'buffer_load_dwordx4 {vr(FK+4*i,4)}, v2, s[{s}:{s+3}], s55 offen offset:{i*1024}{LD()}')
            g(f'buffer_load_dwordx4 {vr(FV+4*i,4)}, v2, s[{s}:{s+3}], s55 offen offset:{2048+i*1024}{LD()}')
        if br == 0:
            g('s_cmp_eq_u32 s54, s52')
            g(f's_cbranch_scc1 L{tag}_fb_diag')
            g('s_cmp_eq_u32 s54, s53')
            g(f's_cbranch_scc1 L{tag}_fb_first')
        for r in range(16): g(f'v_mov_b32 v{FS+r}, 0')
        if br == 0:
            g(f's_branch L{tag}_fb_go')
            g.label(f'L{tag}_fb_diag')
            set_mask(FS, 'diag')
            g(f's_branch L{tag}_fb_go')
            g.label(f'L{tag}_fb_first')
            set_mask(FS, 'first')
            g.label(f'L{tag}_fb_go')
        g('s_waitcnt vmcnt(0)')
        g('s_nop 1')
        g(mfma(FS, FK, FQ, FS))
        g(mfma(FS, FK+4, FQ+4, FS))
        g('s_nop 15')
        rowmax(FS, Fm+1)
        g(f'v_max_f32 v{Fm+1}, v{Fm+1}, v{Fm}')
        g(f'v_sub_f32 v{Fm+2}, v{Fm}, v{Fm+1}')
        g(f'v_exp_f32 v{Fm+2}, v{Fm+2}')
        g(f'v_mov_b32 v{Fm}, v{Fm+1}')
        for r in range(16): g(f'v_sub_f32 v{FS+r}, v{FS+r}, v{Fm}')
        for r in range(16): g(f'v_exp_f32 v{FS+r}, v{FS+r}')
        for r in range(16): g(f'v_mul_f32 v{O+r}, v{O+r}, v{Fm+2}')
        for i in range(8): g(f'v_cvt_pk_bf16_f32 v{FP+i}, v{FS+2*i}, v{FS+2*i+1}')
        g('s_nop 1')
        g(mfma(O, FV, FP, O))
        g(mfma(O, FV+4, FP+4, O))
        g('s_nop 15')
        g('s_sub_u32 s54, s54, 1')
        g('s_cmp_lt_i32 s54, 0')
        g(f's_cbranch_scc1 L{tag}_fb_end')
        if br == 0:
            g('s_cmp_lt_i32 s54, s53')
            g(f's_cbranch_scc1 L{tag}_fb_end')
        g(f's_branch L{tag}_fb_loop')
        g.label(f'L{tag}_fb_end')

    g('s_cmp_eq_u32 s43, 0')
    g('s_cbranch_scc0 Lattn_kh1')

    def wo_prefetch():
        sk = newlab('wo')
        g('s_cmp_ge_u32 s2, 224')
        g(f's_cbranch_scc1 {sk}')
        g('s_bfe_u32 s50, s2, 0x10002')
        g('s_cmp_eq_u32 s50, 0')
        g('s_cselect_b32 s56, s8, s14')
        g('s_cselect_b32 s57, s9, s15')
        g(f's_mov_b32 s58, {448*896}')
        g('s_mov_b32 s59, 0x20000')
        g('v_lshrrev_b32 v30, 3, v0')
        g('v_and_b32 v31, 7, v0')
        g('v_and_b32 v1, 2, v30')
        g('v_lshlrev_b32 v1, 1, v1')
        g('v_xor_b32 v31, v31, v1')
        g('s_lshl_b32 s50, s42, 3')
        g('v_add_u32 v30, s50, v30')
        g('v_mul_u32_u24 v30, 896, v30')
        g('v_lshl_add_u32 v30, v31, 4, v30')
        g('s_lshr_b32 s50, s2, 5')
        g('s_lshl_b32 s50, s50, 7')
        g('v_add_u32 v30, s50, v30')
        g('s_lshl_b32 s52, s42, 10')
        for it in range(15):
            if it == 14:
                g('s_cmp_ge_u32 s42, 1')
                g(f's_cbranch_scc1 {sk}')
            g(f's_add_u32 m0, s52, {65536 + it*4096}')
            if it == 14:
                g(f'v_add_u32 v31, {it*32*896}, v30')
                g('buffer_load_dwordx4 v31, s[56:59], 0 offen lds')
            else:
                g(f's_mov_b32 s50, {it*32*896}')
                g('buffer_load_dwordx4 v30, s[56:59], s50 offen lds')
        g.label(sk)

    def path(kh):
        tag = f'K{kh}'
        unitsA = [8, 7, 6, 5, 4] if kh == 0 else [3, 2, 1, 0]
        nA = len(unitsA); N = 32 + nA
        def unit(i):
            if i >= 32:
                u = unitsA[i - 32]
                masked = (kh == 0 and u == 8) or (kh == 1 and u == 0)
                return dict(base=3, off=u*4096, Q=QA, O=OA, C=MASK if masked else None, first=(i == 32))
            return dict(b=i, Q=QB, O=OB, C=None, first=(i == 0))
        def addr(i, cs):
            u = unit(i)
            if 'base' in u: return u['base'], u['off']
            b = u['b']; s = b >> 2
            if s == cs: return 4, (b & 3) * 4096
            assert s == cs + 1
            return 5, (b & 3) * 4096
        def rdK(i, cs, dst=KF):
            r, off = addr(i, cs)
            g(f'ds_read_b128 {vr(dst,4)}, v{r} offset:{off}')
            g(f'ds_read_b128 {vr(dst+4,4)}, v{r} offset:{off+1024}')
        def rdV(i, f, cs):
            r, off = addr(i, cs)
            g(f'ds_read_b128 {vr(VF+4*f,4)}, v{r} offset:{off+2048+f*1024}')
        rdK(0, 0)
        g('s_waitcnt lgkmcnt(0)')
        g(mfma(S0, KF, QB, None))
        g(mfma(S0, KF+4, QB+4, S0))
        g('s_nop 15')
        set_standin(S0, QB, MNB)
        g('s_nop 1')
        g(mfma(S0, KF, QB, None))
        g(mfma(S0, KF+4, QB+4, S0))
        rdK(1, 0)
        rdV(0, 0, 0)
        g('s_nop 15')
        if kh == 0: stamp(g, 7)
        if OPT.get('attst'): stamp(g, 2, q=True)
        g('s_lshl_b32 s55, s3, 12')
        def dma_slot(i, inloop):
            if i >= 34 or i < 6: return
            ph = (i - 2) & 3; st = ((i - 2) >> 2) + 3
            if i == 18:
                g('buffer_load_dword v201, v31, s[64:67], 0 offen sc1')
            if st <= 7:
                if ph == 0:
                    g(f's_add_u32 s54, s55, {st*32768}')
                    g(f's_add_u32 m0, s55, {(st&3)*32768}')
                    g('s_nop 0')
                g(f'buffer_load_dwordx4 v2, s[32:35], s54 offen offset:{ph*1024}{LD()} lds')
            elif st == 8:
                if ph == 0:
                    ok = newlab('aok')
                    g('v_cmp_ne_u32 vcc, 16, v201')
                    g('s_nop 4')
                    g(f's_cbranch_vccz {ok}')
                    spin_until(g, 201, 31, 16)
                    g.label(ok)
                    if kh == 1:
                        g('s_add_u32 s47, s51, 8192')
                        dma4(2, 24, 's44', 's47', n=2)
                    g('s_mov_b32 m0, s55')
                    g('s_nop 0')
                g(f'buffer_load_dwordx4 v28, s[28:31], 0 offen offset:{ph*1024}{LD()} lds')
            elif st == 9 and ph == 0 and kh == 0:
                g('s_add_u32 m0, s55, 32768')
                g('s_nop 0')
                for k in range(4):
                    g(f'buffer_load_dwordx4 v29, s[28:31], 0 offen offset:{k*1024}{LD()} lds')
        def body(i, cs, inloop=False):
            u = unit(i)
            sb = SB[i & 1]; sn = SB[(i + 1) & 1]
            e = [f'v_exp_f32 v{sb+r}, v{sb+r}' for r in range(16)]
            c = [f'v_cvt_pk_bf16_f32 v{P+k}, v{sb+2*k}, v{sb+2*k+1}' for k in range(8)]
            has1 = i + 1 < N; has2 = i + 2 < N
            if i < 32 and (i & 3) == 2:
                s = i >> 2
                if s == 7: vm = 0
                elif s == 0: vm = 16 if kh == 1 else None
                elif s == 1: vm = 8 if kh == 1 else None
                elif s == 2: vm = 4 if kh == 1 else None
                else: vm = 4
                if OPT.get('attst') and s in (0, 1, 2, 3, 5, 7): stamp(g, {0: 3, 1: 5, 2: 7, 3: 9, 5: 11, 7: 13}[s], q=True)
                g(f's_waitcnt vmcnt({vm}) lgkmcnt(0)' if vm is not None else 's_waitcnt lgkmcnt(0)')
                g('s_barrier')
                if OPT.get('attst') and s in (0, 1, 2, 3, 5, 7): stamp(g, {0: 4, 1: 6, 2: 8, 3: 10, 5: 12, 7: 14}[s], q=True)
                if s == 3 and kh == 1:
                    sk = newlab('sigA')
                    g('s_cmp_lg_u32 s3, 4')
                    g(f's_cbranch_scc1 {sk}')
                    g('s_mov_b64 exec, 1')
                    g('v_mov_b32 v1, 1')
                    g('s_lshl_b32 s47, s23, 8')
                    g('v_mov_b32 v202, s47')
                    g('buffer_atomic_add v1, v202, s[64:67], 0 offen sc1')
                    g('s_mov_b64 exec, -1')
                    g.label(sk)
                if s == 6:
                    g(f'ds_read_b128 {vr(QA,4)}, v{QL} offset:8192')
                    g(f'ds_read_b128 {vr(QA+4,4)}, v{QL} offset:9216')
                if s == 7:
                    rdK(32, cs, TK)
                    g('s_waitcnt lgkmcnt(0)')
                    g(mfma(TS, TK, QA, unit(32)['C']))
                    g(mfma(TS, TK+4, QA+4, TS))
                    g('s_nop 15')
                    set_standin(TS, QA, MNA)
                    if kh == 1:
                        g('s_lshl_b32 s47, s41, 2')
                        g('s_add_u32 s47, s47, s42')
                        g('s_cmp_lt_u32 s47, 5')
                        g(f's_cbranch_scc0 L{tag}_valid')
                        g(f'v_mov_b32 v{MNA}, {POSBIG:#x}')
                        g.label(f'L{tag}_valid')
            elif i == 34:
                g('s_waitcnt lgkmcnt(0)')
                g('s_barrier')
                if kh == 1:
                    wo_prefetch()
                    finish('FB', 1, OB, MNB, QB, TS)
            else:
                g('s_waitcnt lgkmcnt(0)')
            if OPT.get('prio', 'lag') == 'lag':
                g(f's_setprio {3 - ((i - 2) & 3)}')
            g(e[0])
            if i > 0:
                up = unit(i - 1)
                g(mfma(up['O'], VF+4, P+4, up['O']))
            rdV(i, 1, cs)
            g(e[1]); g(e[2]); g(e[3])
            g(c[0])
            if i == 33 and kh == 0:
                write_partial(OB, MNB)
            if i == 1 and kh == 0:
                for t in range(3):
                    g(f'buffer_store_dwordx4 {vr(208+8*t,4)}, v2, s[56:59], s{(48,49,53)[t]} offen{ST()}')
                    g(f'buffer_store_dwordx4 {vr(212+8*t,4)}, v2, s[56:59], s{(48,49,53)[t]} offen offset:1024{ST()}')
            if has1:
                un = unit(i + 1)
                g(mfma(sn, KF, un['Q'], un['C']))
            g(e[4]); g(e[5]); g(c[1]); g(e[6]); g(e[7]); g(c[2])
            if has1:
                g(mfma(sn, KF+4, un['Q']+4, sn))
            if has2:
                rdK(i + 2, cs)
            g(e[8]); g(c[3]); g(e[9]); g(e[10])
            dma_slot(i, inloop)
            g(e[11])
            g(mfma(u['O'], VF, P, None if u['first'] else u['O']))
            if has1:
                rdV(i + 1, 0, cs)
            for x in e[12:16]: g(x)
            g(c[4]); g(c[5]); g(c[6]); g(c[7])
        def advance():
            g('v_mov_b32 v4, v5')
            g('v_add_u32 v5, 32768, v5')
            g('v_and_b32 v5, 0x1ffff, v5')
        return body, advance, N, tag
    for kh in (0, 1):
        if kh == 1: g.label('Lattn_kh1')
        body, advance, N, tag = path(kh)
        for s_ in range(7):
            for j in range(4): body(4*s_ + j, s_)
            advance()
        for j in range(4): body(28 + j, 7)
        if kh == 0: stamp(g, 8)
        for i in range(32, N): body(i, 7)
        g('s_waitcnt lgkmcnt(0)')
        g('s_nop 1')
        g(mfma(OA, VF+4, P+4, OA))
        g('s_nop 15')
        if kh == 1:
            write_partial(OA, MNA)
            g('s_waitcnt lgkmcnt(0)')
            g('s_barrier')
        else:
            g('s_barrier')
            finish('FA', 0, OA, MNA, QA, MASK)
            g('s_branch Lattn_fin')
    g.label('Lattn_fin')
    stamp(g, 9)

def phase_proj(g):
    g('s_waitcnt vmcnt(0)')
    g('s_barrier')
    stamp(g, 10)
    g('s_cmp_lg_u32 s3, 0')
    g('s_cbranch_scc1 Lh2_a')
    g('s_mov_b64 exec, 1')
    g('v_mov_b32 v1, 1')
    g('s_lshl_b32 s47, s41, 8')
    g(f's_add_u32 s47, s47, {CNT_O}')
    g('v_mov_b32 v30, s47')
    g('buffer_atomic_add v1, v30, s[64:67], 0 offen sc1')
    g('s_mov_b64 exec, -1')
    g.label('Lh2_a')
    g('s_cmp_ge_u32 s2, 224')
    g('s_cbranch_scc1 Lend')
    g('s_and_b32 s45, s2, 7')
    g('s_lshr_b32 s46, s2, 3')
    g('s_lshr_b32 s40, s45, 2')
    g('s_and_b32 s41, s45, 3')
    g('s_lshl_b32 s41, s41, 2')
    g('s_and_b32 s42, s46, 3')
    g('s_add_u32 s41, s41, s42')
    g('s_lshr_b32 s42, s46, 2')
    g('s_and_b32 s43, s3, 3')
    g('s_lshr_b32 s44, s3, 2')
    srd(g, 24, 16, 17, 2048 * 1792)
    g('s_lshl_b32 s45, s40, 6')
    g('s_lshl_b32 s46, s41, 2')
    g('s_add_u32 s45, s45, s46')
    g('s_add_u32 s45, s45, s43')
    g('s_lshl_b32 s45, s45, 15')
    g('s_lshl_b32 s46, s44, 14')
    g('s_add_u32 s45, s45, s46')
    g('v_bfe_u32 v4, v0, 2, 2')
    g('v_and_b32 v5, 3, v0')
    g('v_bfe_u32 v7, v0, 4, 1')
    g('v_lshrrev_b32 v6, 5, v0')
    g('v_lshlrev_b32 v7, 5, v7')
    g('v_lshl_add_u32 v7, v5, 3, v7')
    g('v_lshrrev_b32 v11, 4, v7')
    g('v_and_b32 v8, 2, v4')
    g('v_lshlrev_b32 v8, 1, v8')
    g('v_xor_b32 v11, v11, v8')
    g('v_and_b32 v7, 15, v7')
    g('v_lshl_add_u32 v7, v11, 4, v7')
    g('v_lshl_add_u32 v4, v6, 2, v4')
    g('v_lshl_add_u32 v9, v4, 7, v7')
    g('s_mul_i32 s46, s44, 28672')
    g('s_add_u32 s46, s46, 65536')
    g('v_add_u32 v9, s46, v9')
    g('v_xor_b32 v10, 64, v9')
    g('s_lshl_b32 s46, s43, 1')
    g('s_add_u32 s46, s46, s44')
    g('s_lshl_b32 s46, s46, 12')
    g('v_add_u32 v12, s46, v2')
    g('v_xor_b32 v13, 4096, v12')
    g('s_cmp_lg_u32 s3, 0')
    g('s_cbranch_scc1 Lh2_wait')
    g('s_lshl_b32 s47, s41, 8')
    g(f's_add_u32 s47, s47, {CNT_O}')
    g('v_mov_b32 v30, s47')
    spin_until(g, 1, 30, 16)
    g.label('Lh2_wait')
    g('s_barrier')
    stamp(g, 11)
    OF = 64; ACC = 16; WF = 48
    for n in range(16):
        if n % 4 == 0 and n > 0: g('s_add_u32 s45, s45, 4096')
        g(f'buffer_load_dwordx4 {vr(OF+4*n,4)}, v2, s[36:39], s45 offen offset:{(n%4)*1024}{LD()}')
    def rd(n, buf):
        h, i = divmod(n, 2)
        for ct in range(2):
            for jj in range(2):
                off = (28*h + 16*i + 8*jj) * 128
                g(f'ds_read_b64_tr_b16 {vr(WF+8*buf+4*ct+2*jj,2)}, v{9+ct} offset:{off}')
    rd(0, 0)
    for n in range(16):
        if n + 1 < 16: rd(n + 1, (n + 1) & 1)
        g(f's_waitcnt vmcnt({15-n}) lgkmcnt({4 if n + 1 < 16 else 0})')
        for ct in range(2):
            g(mfma(ACC + 16*ct, WF + 8*(n & 1) + 4*ct, OF + 4*n, None if n == 0 else ACC + 16*ct))
    g('s_nop 15')
    stamp(g, 12)
    g('s_cmp_eq_u32 s44, 0')
    g('s_cbranch_scc0 Lpj_k1')
    for i in range(4): g(f'ds_write_b128 v12, {vr(ACC+16+4*i,4)} offset:{i*1024}')
    g('s_branch Lpj_k2')
    g.label('Lpj_k1')
    for i in range(4): g(f'ds_write_b128 v12, {vr(ACC+4*i,4)} offset:{i*1024}')
    for r in range(16): g(f'v_mov_b32 v{ACC+r}, v{ACC+16+r}')
    g.label('Lpj_k2')
    g('s_waitcnt lgkmcnt(0)')
    g('s_barrier')
    for i in range(4): g(f'ds_read_b128 {vr(64+4*i,4)}, v13 offset:{i*1024}')
    g('v_and_b32 v4, 31, v0')
    g('s_lshl_b32 s46, s41, 7')
    g('s_lshl_b32 s47, s43, 5')
    g('s_add_u32 s46, s46, s47')
    g('v_add_u32 v4, s46, v4')
    g('v_mul_u32_u24 v4, 1792, v4')
    g('v_lshl_add_u32 v4, v6, 4, v4')
    g('s_mul_i32 s46, s40, 896')
    g('s_lshl_b32 s47, s42, 7')
    g('s_add_u32 s46, s46, s47')
    g('s_lshl_b32 s47, s44, 6')
    g('s_add_u32 s46, s46, s47')
    g('s_waitcnt lgkmcnt(0)')
    for r in range(16): g(f'v_add_f32 v{ACC+r}, v{ACC+r}, v{64+r}')
    P = 48
    for i in range(8): g(f'v_cvt_pk_bf16_f32 v{P+i}, v{ACC+2*i}, v{ACC+2*i+1}')
    g('s_nop 1')
    for k in range(2):
        a = P + 4*k
        g(f'v_permlane32_swap_b32 v{a}, v{a+2}')
        g(f'v_permlane32_swap_b32 v{a+1}, v{a+3}')
    g('s_nop 1')
    for k in range(2):
        g(f'buffer_store_dwordx4 {vr(P+4*k,4)}, v4, s[24:27], s46 offen offset:{32*k}')

HEADER = '''; Kernarg layout for this problem (72 bytes, ptrs only, base s[0:1]):
'''
def main(out):
    g = Gen()
    g.raw(f'.globl {NAME}')
    g.raw('.p2align 8')
    g.raw(f'.type {NAME},@function')
    g.label(NAME)
    g('s_cmp_ge_u32 s2, 256')
    g('s_cbranch_scc1 Lexit')
    stamp(g, 0); stamp(g, 15, True)
    g('s_load_dwordx16 s[4:19], s[0:1], 0')
    g('s_load_dwordx2 s[20:21], s[0:1], 64')
    g('v_lshrrev_b32 v1, 6, v0')
    g('v_and_b32 v0, 63, v0')
    g('s_nop 0')
    g('v_readfirstlane_b32 s3, v1')
    prologue(g)
    qkv_compute(g)
    qkv_loader(g)
    phase_attn(g)
    phase_proj(g)
    g.label('Lend')
    if OPT['stamps']: g('s_waitcnt vmcnt(0)')
    stamp(g, 13)
    if OPT['stamps']: g('s_memrealtime s[72:73]')
    stamp_dump(g)
    g.label('Lexit')
    g('s_endpgm')
    txt = HEADER + f'; @launch grid=(256,1,1) block=(512,1,1) lds={LDS_BYTES}\n'
    txt += '.amdgcn_target "amdgcn-amd-amdhsa--gfx950"\n.text\n' + g.text()
    txt += f'''.section .rodata,"a"
.p2align 6
.amdhsa_kernel {NAME}
  .amdhsa_next_free_vgpr 232
  .amdhsa_next_free_sgpr 102
  .amdhsa_accum_offset 232
  .amdhsa_group_segment_fixed_size 0
  .amdhsa_kernarg_size 72
  .amdhsa_user_sgpr_count 2
  .amdhsa_user_sgpr_kernarg_segment_ptr 1
  .amdhsa_system_sgpr_workgroup_id_x 1
.end_amdhsa_kernel
'''
    open(out, 'w').write(txt)

if __name__ == '__main__':
    out = sys.argv[1] if len(sys.argv) > 1 else 'concat_heads__sliding_block__softmax_full_mha__prompt.s'
    for a in sys.argv[2:]:
        if '=' in a:
            k, v = a.split('=', 1)
            OPT[k] = v if k in ('st', 'ld', 'prio') else (int(v) if v.isdigit() else v)
        else:
            OPT[a] = True
    main(out)
```

```python
import sys, math, struct

def f32bits(x): return struct.unpack('<I', struct.pack('<f', x))[0]

class Gen:
    def __init__(self): self.lines = []
    def __call__(self, s):
        for l in s.split('\n'):
            l = l.strip()
            if l: self.lines.append('  ' + l)
    def label(self, s): self.lines.append(s + ':')
    def raw(self, s): self.lines.append(s)
    def text(self): return '\n'.join(self.lines) + '\n'

def vr(base, n): return f'v[{base}:{base+n-1}]'
def mfma(d, a, b, c):
    cs = '0' if c is None else vr(c, 16)
    return f'v_mfma_f32_32x32x16_bf16 {vr(d,16)}, {vr(a,4)}, {vr(b,4)}, {cs}'

OPT = dict(stamps=False, st='sc1', ld='sc1', spin=200000)
NAME = 'concat_heads__sliding_block__softmax_full_mha__prompt_kernel'
STAMP_BASE = 0x2000000
def stamp(g, i, real=False, q=False):
    if OPT.get('tl'):
        if i in (0, 2, 3, 4, 6, 8, 9, 10, 11, 12, 13): g(f's_memrealtime s[{70+2*i}:{71+2*i}]')
        return
    if not OPT['stamps']: return
    import inspect
    if OPT.get('qkvst') and 5 <= i <= 13:
        caller = inspect.stack()[1].function
        if caller != 'qkv_compute': return
    if OPT.get('attst') and 2 <= i <= 14 and not q: return
    op = 's_memrealtime' if real else 's_memtime'
    g(f'{op} s[{70+2*i}:{71+2*i}]')
def stamp_dump(g):
    if not OPT['stamps']: return
    g('s_waitcnt lgkmcnt(0) vmcnt(0)')
    g(f's_add_u32 s64, s20, {STAMP_BASE}')
    g(f's_addc_u32 s65, s21, 0')
    g('s_mov_b32 s66, 0x100000')
    g('s_mov_b32 s67, 0x20000')
    g('s_mov_b64 exec, -1')
    g('v_mov_b32 v1, 0')
    for i in range(16):
        g(f'v_writelane_b32 v1, s{70+2*i}, {i}')
    g('s_lshl_b32 s68, s2, 3')
    g('s_add_u32 s68, s68, s3')
    g('s_lshl_b32 s68, s68, 6')
    g('v_lshlrev_b32 v3, 2, v0')
    g('v_cmp_gt_u32 vcc, 16, v0')
    g('s_and_saveexec_b64 s[62:63], vcc')
    g('buffer_store_dword v1, v3, s[64:67], s68 offen')
    g('s_waitcnt vmcnt(0)')

WS_Q = 0
WS_KV = 0x400000
WS_O = 0xC00000
WS_CNT = 0x1000000
CNT_A, CNT_B, CNT_O = 0, 16 * 256, 32 * 256
QSCALE = (28 ** -0.5) * math.log2(math.e)
NEGBIG = 0xf149f2ca
POSBIG = 0x7149f2ca
LDS_BYTES = 131072 + 16384 + 1024

def srd(g, dst, lo, hi, nbytes, add=0):
    if add:
        g(f's_add_u32 s{dst}, s{lo}, {add}')
        g(f's_addc_u32 s{dst+1}, s{hi}, 0')
    else:
        g(f's_mov_b32 s{dst}, s{lo}')
        g(f's_mov_b32 s{dst+1}, s{hi}')
    g(f's_mov_b32 s{dst+2}, {nbytes}')
    g(f's_mov_b32 s{dst+3}, 0x20000')
def ST(): return (' ' + OPT['st']) if OPT['st'] else ''
def LD(): return (' ' + OPT['ld']) if OPT['ld'] else ''
lab = [0]
def newlab(p):
    lab[0] += 1
    return f'L{p}_{lab[0]}'

def spin_until(g, vdst, voff, target):
    l0 = newlab('poll'); l1 = newlab('pdone')
    g(f's_mov_b32 s68, {OPT["spin"]}')
    g.label(l0)
    g(f'buffer_load_dword v{vdst}, v{voff}, s[64:67], 0 offen sc1')
    g('s_waitcnt vmcnt(0)')
    g(f'v_cmp_ne_u32 vcc, {target}, v{vdst}')
    g('s_nop 4')
    g(f's_cbranch_vccz {l1}')
    g('s_sleep 1')
    g('s_sub_u32 s68, s68, 1')
    g('s_cmp_lg_u32 s68, 0')
    g(f's_cbranch_scc1 {l0}')
    g.label(l1)

WROW = 176
WSTG = 64 * WROW
NCH = 14
def prologue(g):
    g('s_and_b32 s40, s2, 7')
    g('s_lshr_b32 s41, s2, 3')
    g('s_lshr_b32 s22, s40, 1')
    g('s_lshl_b32 s22, s22, 2')
    g('s_and_b32 s42, s41, 3')
    g('s_add_u32 s22, s22, s42')
    g('s_and_b32 s23, s40, 1')
    g('s_lshl_b32 s23, s23, 3')
    g('s_lshr_b32 s42, s41, 2')
    g('s_add_u32 s23, s23, s42')
    g('s_cmp_ge_u32 s3, 4')
    g('s_cbranch_scc1 Lloader')

def qkv_compute(g):
    g('v_and_b32 v4, 31, v0')
    g('s_lshl_b32 s44, s3, 5')
    g('v_add_u32 v4, s44, v4')
    g('v_lshlrev_b32 v4, 7, v4')
    g('v_bfe_u32 v5, v0, 1, 3')
    g('v_lshrrev_b32 v6, 5, v0')
    for ks in range(4):
        g(f'v_add_u32 v7, {2*ks}, v6')
        g('v_xor_b32 v7, v7, v5')
        g(f'v_lshl_add_u32 v{12+ks}, v7, 4, v4')
    g('v_bfe_u32 v4, v0, 2, 2')
    g('v_and_b32 v5, 3, v0')
    g('v_bfe_u32 v7, v0, 4, 1')
    g('v_lshlrev_b32 v7, 5, v7')
    g('v_lshl_add_u32 v7, v5, 3, v7')
    g('v_lshlrev_b32 v4, 1, v4')
    g('v_add_u32 v4, v4, v6')
    g(f'v_mul_u32_u24 v4, {2*WROW}, v4')
    g('v_add_u32 v4, v4, v7')
    g('v_add_u32 v16, 65536, v4')
    g('v_lshlrev_b32 v2, 4, v0')
    g('s_waitcnt lgkmcnt(0)')
    stamp(g, 1)
    srd(g, 32, 20, 21, 0x1000000)
    srd(g, 64, 20, 21, 0x4000, WS_CNT)
    g('s_or_b32 s44, s2, s3')
    g('s_cmp_lg_u32 s44, 0')
    g('s_cbranch_scc1 Lnoinit')
    g('v_lshlrev_b32 v20, 8, v0')
    g('v_mov_b32 v21, 0')
    g('buffer_store_dword v21, v20, s[64:67], 0 offen sc1')
    g('s_waitcnt vmcnt(0)')
    srd(g, 36, 18, 19, 256)
    g('s_mov_b64 exec, 1')
    g('v_mov_b32 v21, 1')
    g('v_mov_b32 v20, 0')
    g('buffer_store_dword v21, v20, s[36:39], 0 offen sc1')
    g('s_mov_b64 exec, -1')
    g.label('Lnoinit')
    srd(g, 36, 18, 19, 256)
    g('v_mov_b32 v30, 0')
    g('buffer_load_dword v31, v30, s[36:39], 0 offen sc1')
    XF = 80; WF = 88
    ACCS = {1: 32, 0: 144}
    PS = {1: 112, 0: 208}
    g('v_and_b32 v18, 31, v0')
    g('v_cmp_eq_u32 vcc, 28, v18')
    g('v_mov_b32 v19, 0x3f803f80')
    g('s_nop 0')
    g('v_cndmask_b32_e64 v18, 0, v19, vcc')
    g('s_mov_b32 s60, 0')
    g('s_mov_b32 s61, -1')
    g('s_mov_b32 s58, 0xf0000000')
    g('s_mov_b32 s59, 0xf0000000')
    def reads(n, buf, part):
        kc, ks = divmod(n, 4)
        st = kc % 4
        if part == 0:
            g(f'ds_read_b128 {vr(XF+4*buf,4)}, v{12+ks} offset:{st*16384}')
        for jj in range(2):
            off = st * WSTG + (ks*16 + jj) * WROW + part * 56
            g(f'ds_read_b64_tr_b16 {vr(WF+12*buf+4*part+2*jj,2)}, v16 offset:{off}')
    def mfma1(br, buf, t, first, types):
        x = XF + 4*buf; wf = WF + 12*buf + 4*t; d = ACCS[br] + 16*t
        c = None if first else d
        g(mfma(d, wf, x, c) if types[t] == 'QK' else mfma(d, x, wf, c))
    def epilogue_list(br, types):
        L = []
        A = L.append
        ACC = ACCS[br]; P = PS[br]
        A('s_lshl_b32 s54, s22, 2')
        A('s_add_u32 s54, s54, s3')
        if br: A('s_add_u32 s54, s54, 1024')
        for t in range(3):
            a = ACC + 16*t; p = P + 8*t
            so = (48, 49, 53)[t]
            A(f's_add_u32 s55, s52, {t}')
            A('s_and_b32 s56, s55, 15')
            A('s_lshl_b32 s56, s56, 6')
            A('s_add_u32 s56, s56, s54')
            if types[t] == 'QK':
                A('s_cmp_lt_u32 s55, 16\n' + f's_cselect_b32 s57, {f32bits(QSCALE):#x}, 1.0\n' + 's_cselect_b32 s45, 0, 0x3f80\n' +
                  's_cselect_b32 s46, 11, 12\n' + f's_cselect_b32 s47, {WS_Q}, {WS_KV}')
                A('s_lshl_b32 s56, s56, s46')
                A(f's_add_u32 s{so}, s56, s47')
                A('v_mov_b32 v19, s45')
                for r in range(16): A(f'v_mul_f32 v{a+r}, s57, v{a+r}')
                for i in range(8): A(f'v_cvt_pk_bf16_f32 v{p+i}, v{a+2*i}, v{a+2*i+1}')
                A(f'v_cndmask_b32_e64 v{p+6}, v{p+6}, v19, s[60:61]')
                A(f'v_cndmask_b32_e64 v{p+7}, v{p+7}, 0, s[60:61]')
            else:
                A('s_lshl_b32 s56, s56, 12')
                A(f's_add_u32 s{so}, s56, {WS_KV + 2048}')
                for i in range(8): A(f'v_cvt_pk_bf16_f32 v{p+i}, v{a+2*i}, v{a+2*i+1}')
                for i in range(8): A(f'v_cndmask_b32_e64 v{p+i}, v{p+i}, v18, s[58:59]')
            if br:
                A('s_nop 1\n' + f'buffer_store_dwordx4 {vr(p,4)}, v2, s[32:35], s{so} offen{ST()}')
                A(f'buffer_store_dwordx4 {vr(p+4,4)}, v2, s[32:35], s{so} offen offset:1024{ST()}')
        return L
    g('s_mul_i32 s52, s23, 3')
    g('s_cmp_eq_u32 s52, 30')
    g('s_cbranch_scc1 Lqkv_v1')
    g('s_cmp_gt_u32 s52, 30')
    g('s_cbranch_scc1 Lqkv_v2')
    variants = [('QK','QK','QK'), ('QK','QK','V'), ('V','V','V')]
    NS = NCH * 4
    SIG_AT = OPT.get('sig_at', 44)
    for vi, types in enumerate(variants):
        if vi: g.label(f'Lqkv_v{vi}')
        g('s_barrier')
        if vi == 0: stamp(g, 2)
        for part in range(3): reads(0, 0, part)
        epi = []
        EP0, EPN = OPT.get('ep0', 28), OPT.get('epn', 4)
        def fill(k):
            for _ in range(k):
                if epi: g(epi.pop(0))
        for n in range(NS):
            br = 1 if n < 28 else 0
            boundary = (n + 1) % 4 == 0 and n + 1 < NS
            nxt = n + 1 < NS
            buf = n & 1
            first = n % 28 == 0
            if n == EP0:
                epi = ['s_nop 7'] + epilogue_list(1, types)
                per = -(-len(epi) // (EPN * 3))
            inter = EP0 <= n < EP0 + EPN
            if boundary:
                g('s_waitcnt vmcnt(0) lgkmcnt(0)' if n + 1 == SIG_AT else 's_waitcnt lgkmcnt(0)')
                g('s_barrier')
                if OPT.get('qkvst') and vi == 0:
                    c1 = (n + 1) // 4
                    m = {2: 5, 4: 6, 6: 7, 8: 8, 10: 9, 11: 10, 12: 13}
                    if c1 in m: stamp(g, m[c1])
                if n + 1 == SIG_AT:
                    sk = newlab('sigB'); ok = newlab('inited'); lp = newlab('initspin')
                    g('s_cmp_lg_u32 s3, 0')
                    g(f's_cbranch_scc1 {sk}')
                    g('v_readfirstlane_b32 s47, v31')
                    g('s_cmp_lg_u32 s47, 0')
                    g(f's_cbranch_scc1 {ok}')
                    g(f's_mov_b32 s68, {OPT["spin"]}')
                    g.label(lp)
                    g('buffer_load_dword v31, v30, s[36:39], 0 offen sc1')
                    g('s_waitcnt vmcnt(0)')
                    g('v_readfirstlane_b32 s47, v31')
                    g('s_cmp_lg_u32 s47, 0')
                    g(f's_cbranch_scc1 {ok}')
                    g('s_sub_u32 s68, s68, 1')
                    g('s_cmp_lg_u32 s68, 0')
                    g(f's_cbranch_scc1 {lp}')
                    g.label(ok)
                    g('s_mov_b64 exec, 1')
                    g('v_mov_b32 v1, 1')
                    g('s_lshl_b32 s47, s23, 8')
                    g(f's_add_u32 s47, s47, {CNT_B}')
                    g('v_mov_b32 v29, s47')
                    g('buffer_atomic_add v1, v29, s[64:67], 0 offen sc1')
                    g('s_mov_b64 exec, -1')
                    g.label(sk)
            else:
                g('s_waitcnt lgkmcnt(4)')
            mfma1(br, buf, 0, first, types)
            if nxt: reads(n + 1, buf ^ 1, 0)
            if inter: fill(per)
            if not boundary: g(f's_waitcnt lgkmcnt({5 if nxt else 2})')
            mfma1(br, buf, 1, first, types)
            if nxt: reads(n + 1, buf ^ 1, 1)
            if inter: fill(per)
            if not boundary: g(f's_waitcnt lgkmcnt({5 if nxt else 0})')
            mfma1(br, buf, 2, first, types)
            if nxt: reads(n + 1, buf ^ 1, 2)
            if inter: fill(per)
            if n == 27 and vi == 0: stamp(g, 3)
        assert not epi
        if vi == 0: stamp(g, 14)
        g('s_barrier')
        if vi == 0: stamp(g, 4)
        g('s_nop 15')
        for x in epilogue_list(0, types): g(x)
        if vi < 2: g('s_branch Lqkv_fin')
    g.label('Lqkv_fin')
    g('s_branch Lattn_setup')

def qkv_loader(g):
    g.label('Lloader')
    g('s_sub_u32 s43, s3, 4')
    g('s_lshl_b32 s44, s22, 7')
    g('s_lshl_b32 s45, s43, 5')
    g('s_add_u32 s44, s44, s45')
    g('v_lshrrev_b32 v10, 3, v0')
    g('v_add_u32 v10, s44, v10')
    g('v_mul_u32_u24 v10, 896, v10')
    g('v_lshrrev_b32 v11, 4, v0')
    g('v_and_b32 v12, 7, v0')
    g('v_xor_b32 v12, v12, v11')
    g('v_lshl_add_u32 v2, v12, 4, v10')
    g('v_xor_b32 v12, 4, v12')
    g('v_lshl_add_u32 v3, v12, 4, v10')
    g('v_add_u32 v3, 7168, v3')
    g('v_add_u32 v4, 14336, v2')
    g('v_add_u32 v5, 14336, v3')
    g('s_lshl_b32 s46, s43, 12')
    g('s_lshl_b32 s47, s43, 10')
    g('s_add_u32 s47, s47, 65536')
    g('s_lshl_b32 s44, s43, 6')
    g('s_mul_i32 s45, s23, 168')
    def wcalc(n):
        g('v_add_u32 v10, s44, v0')
        if n: g(f'v_add_u32 v10, {256*n}, v10')
        g('v_mul_u32_u24 v11, 5958, v10')
        g('v_lshrrev_b32 v11, 16, v11')
        g('v_mul_u32_u24 v12, 11, v11')
        g('v_sub_u32 v12, v10, v12')
        g('v_and_b32 v13, 48, v11')
        g('v_and_b32 v14, 3, v11')
        g('v_lshl_add_u32 v13, v14, 2, v13')
        g('v_bfe_u32 v14, v11, 2, 2')
        g('v_add_u32 v13, v13, v14')
        g('v_mul_u32_u24 v13, 2688, v13')
        g('v_lshl_add_u32 v13, v12, 4, v13')
        g(f'v_add_u32 v{6+n}, s45, v13')
    wcalc(0)
    g('s_waitcnt lgkmcnt(0)')
    srd(g, 24, 10, 11, 1835008)
    srd(g, 28, 12, 13, 1204224)
    def issueX(c):
        kc = c % 7; st = c % 4
        sx = 24 if c < 7 else 32
        g(f's_mov_b32 s48, {kc*128}')
        for e in range(4):
            g(f's_add_u32 m0, s46, {st*16384 + e*1024}')
            g('s_nop 0')
            g(f'buffer_load_dwordx4 v{2+e}, s[{sx}:{sx+3}], s48 offen lds')
    def issueW(c, ns=(0, 1, 2)):
        kc = c % 7; st = c % 4
        sw = 28 if c < 7 else 36
        g(f's_mov_b32 s49, {kc*64*2688}')
        for n in ns:
            if n == 2:
                sk = newlab('qs')
                g('s_cmp_eq_u32 s43, 3')
                g(f's_cbranch_scc1 {sk}')
            g(f's_add_u32 m0, s47, {st*WSTG + n*4096}')
            g('s_nop 0')
            g(f'buffer_load_dwordx4 v{6+n}, s[{sw}:{sw+3}], s49 offen lds')
            if n == 2: g.label(sk)
    def issue(c):
        issueX(c); issueW(c)
    issueX(0)
    issueW(0, (0,))
    wcalc(1); issueW(0, (1,))
    wcalc(2); issueW(0, (2,))
    srd(g, 32, 4, 5, 1835008)
    srd(g, 36, 6, 7, 1204224)
    srd(g, 64, 20, 21, 0x4000, WS_CNT)
    g('s_and_b32 s40, s2, 7')
    g('s_bfe_u32 s41, s2, 0x10003')
    g('s_lshl_b32 s40, s40, 1')
    g('s_add_u32 s40, s40, s41')
    g('v_min_u32 v30, 2, v0')
    g('v_lshlrev_b32 v30, 4, v30')
    g('v_add_u32 v30, s40, v30')
    g('v_mul_u32_u24 v30, 43, v30')
    g('v_lshrrev_b32 v30, 7, v30')
    g('v_lshlrev_b32 v31, 8, v30')
    g(f'v_add_u32 v203, {CNT_B}, v31')
    for c in range(1, 3): issue(c)
    for c in range(NCH):
        rem = min(2, NCH - 1 - c)
        g(f's_waitcnt vmcnt({6*rem})')
        g('s_barrier')
        if c + 3 < NCH: issue(c + 3)
        if c == 13:
            g('buffer_load_dword v201, v203, s[64:67], 0 offen sc1')
    g('s_barrier')
    stamp(g, 4)

K2_SCR = 131072
def phase_attn(g):
    g.label('Lattn_setup')
    g('s_and_b32 s40, s2, 7')
    g('s_bfe_u32 s41, s2, 0x10003')
    g('s_lshl_b32 s40, s40, 1')
    g('s_add_u32 s40, s40, s41')
    g('s_lshr_b32 s41, s2, 4')
    g('s_and_b32 s42, s3, 3')
    g('s_lshr_b32 s43, s3, 2')
    QA = 8; QB = 16; MASK = 32; S0 = 48; S1 = 64; P = 80; OA = 88; OB = 104; KF = 120; VF = 128; T = 136
    TK = 144; TS = 152
    MNA = 26; MNB = 27
    SB = [S0, S1]
    g('v_lshlrev_b32 v2, 4, v0')
    g('s_lshl_b32 s44, s40, 6')
    g('s_lshl_b32 s45, s41, 2')
    g('s_add_u32 s45, s45, s42')
    g('s_add_u32 s44, s44, s45')
    g('s_lshl_b32 s44, s44, 11')
    g('s_lshl_b32 s46, s42, 12')
    srd(g, 24, 20, 21, 0x400000)
    g('s_lshl_b32 s47, s40, 18')
    g(f's_add_u32 s47, s47, {WS_KV}')
    g('s_add_u32 s28, s20, s47')
    g('s_addc_u32 s29, s21, 0')
    g('s_mov_b32 s30, 0x40000')
    g('s_mov_b32 s31, 0x20000')
    g('s_add_u32 s32, s28, 0x400000')
    g('s_addc_u32 s33, s29, 0')
    g('s_mov_b32 s34, 0x40000')
    g('s_mov_b32 s35, 0x20000')
    srd(g, 36, 20, 21, 0x400000, WS_O)
    g('v_min_u32 v30, 2, v0')
    g('v_lshlrev_b32 v30, 4, v30')
    g('v_add_u32 v30, s40, v30')
    g('v_mul_u32_u24 v30, 43, v30')
    g('v_lshrrev_b32 v30, 7, v30')
    g('v_lshlrev_b32 v31, 8, v30')
    g(f'v_add_u32 v203, {CNT_B}, v31')
    g('s_lshl_b32 s47, s41, 2')
    g('s_add_u32 s47, s47, s3')
    g('s_sub_u32 s47, s47, 8')
    g('s_lshl_b32 s50, s47, 12')
    g('s_cmp_lt_i32 s47, 0')
    g('s_cselect_b32 s50, 0x40000000, s50')
    g('v_add_u32 v28, s50, v2')
    g('s_add_u32 s47, s47, 8')
    g('s_lshl_b32 s50, s47, 12')
    g('v_add_u32 v29, s50, v2')
    g('s_lshl_b32 s47, s42, 12')
    g('v_add_u32 v3, s47, v2')
    g('s_lshl_b32 s47, s43, 14')
    g('v_add_u32 v4, s47, v2')
    g('v_add_u32 v5, 32768, v4')
    g(f'v_add_u32 v6, {K2_SCR}, v3')
    g('s_lshl_b32 s47, s42, 8')
    g(f's_add_u32 s47, s47, {K2_SCR+16384}')
    g('v_lshlrev_b32 v7, 2, v0')
    g('v_add_u32 v7, s47, v7')
    g('s_lshl_b32 s47, s42, 11')
    g(f's_add_u32 s51, s47, {K2_SCR}')
    g('v_add_u32 v1, s51, v2')
    g('v_and_b32 v24, 31, v0')
    g('v_lshrrev_b32 v25, 5, v0')
    g('v_lshlrev_b32 v25, 2, v25')
    g('v_sub_u32 v24, v24, v25')
    g(f'v_mov_b32 v25, {NEGBIG:#x}')
    g('s_mov_b32 s60, 0')
    g('s_mov_b32 s61, -1')
    QL = 30 + 170
    g(f'v_mov_b32 v{QL}, v1')

    def set_mask(dst, kind):
        for r in range(16):
            br_ = (r & 3) + 8 * (r >> 2)
            op = 'v_cmp_le_i32' if kind == 'diag' else 'v_cmp_gt_i32'
            g(f'{op} vcc, {br_}, v24')
            g('s_nop 1')
            g(f'v_cndmask_b32_e64 v{dst+r}, v25, 0, vcc')
    def dma4(vreg, s, s_goff, s_m0, n=4, first=0):
        g(f's_mov_b32 m0, {s_m0}')
        g('s_nop 0')
        for i in range(first, first + n):
            g(f'buffer_load_dwordx4 v{vreg}, s[{s}:{s+3}], {s_goff} offen offset:{i*1024}{LD()} lds')
    def stage_full(st):
        g(f's_add_u32 s48, s46, {st*32768}')
        g(f's_add_u32 s49, s46, {(st&3)*32768}')
        dma4(2, 32, 's48', 's49')
        g('s_add_u32 s48, s48, 16384')
        g('s_add_u32 s49, s49, 16384')
        dma4(2, 32, 's48', 's49')

    g('s_cmp_eq_u32 s43, 0')
    g('s_cbranch_scc0 Lattn_pre1')
    srd(g, 56, 20, 21, 0x1000000)
    set_mask(MASK, 'diag')
    stamp(g, 5)
    g('s_barrier')
    g('s_branch Lattn_go')
    g.label('Lattn_pre1')
    set_mask(MASK, 'first')
    if OPT.get('prio') == 'kh1': g('s_setprio 1')
    g('s_waitcnt vmcnt(0)')
    g('v_cmp_ne_u32 vcc, 16, v201')
    g('s_nop 4')
    g('s_cbranch_vccz Lh1_polled')
    spin_until(g, 201, 203, 16)
    g.label('Lh1_polled')
    stamp(g, 5)
    g('s_add_u32 s47, s44, 0x200000')
    dma4(2, 24, 's47', 's51', n=2)
    stage_full(0)
    stage_full(1)
    g('s_waitcnt vmcnt(8)')
    g('s_barrier')
    stage_full(2)
    stage_full(3)
    g.label('Lattn_go')
    stamp(g, 6)
    g(f'ds_read_b128 {vr(QB,4)}, v{QL}')
    g(f'ds_read_b128 {vr(QB+4,4)}, v{QL} offset:1024')

    def rowmax(sbuf, t):
        g(f'v_max3_f32 v{t}, v{sbuf}, v{sbuf+1}, v{sbuf+2}')
        for r in range(3, 15, 2):
            g(f'v_max3_f32 v{t}, v{t}, v{sbuf+r}, v{sbuf+r+1}')
        g(f'v_max_f32 v{t}, v{t}, v{sbuf+15}')
        g(f'v_mov_b32 v{t+1}, v{t}')
        g('s_nop 1')
        g(f'v_permlane32_swap_b32 v{t}, v{t+1}')
        g('s_nop 1')
        g(f'v_max_f32 v{t}, v{t}, v{t+1}')
    def set_standin(sbuf, q, mneg):
        t = T
        rowmax(sbuf, t)
        g(f'v_sub_f32 v{t}, 0, v{t}')
        g(f'v_cvt_pk_bf16_f32 v{t}, v{t}, 0')
        g(f'v_lshlrev_b32 v{mneg}, 16, v{t}')
        g('s_mov_b64 exec, s[60:61]')
        g(f'v_mov_b32 v{q+4+2}, v{t}')
        g('s_mov_b64 exec, -1')
    def write_partial(O, mn):
        for i in range(4): g(f'ds_write_b128 v6, {vr(O+4*i,4)} offset:{i*1024}')
        g(f'ds_write_b32 v7, v{mn}')
    FB = 144
    def finish(tag, br, O, mn, q, tmp):
        for i in range(4): g(f'ds_read_b128 {vr(tmp+4*i,4)}, v6 offset:{i*1024}')
        g(f'ds_read_b32 v{T}, v7')
        g('s_waitcnt lgkmcnt(0)')
        g(f'v_min_f32 v{T+1}, v{mn}, v{T}')
        g(f'v_sub_f32 v{T+2}, v{T+1}, v{mn}')
        g(f'v_sub_f32 v{T+3}, v{T+1}, v{T}')
        g(f'v_exp_f32 v{T+2}, v{T+2}')
        g(f'v_exp_f32 v{T+3}, v{T+3}')
        g('s_nop 0')
        for r in range(16): g(f'v_mul_f32 v{O+r}, v{O+r}, v{T+2}')
        for r in range(16): g(f'v_fmac_f32 v{O+r}, v{tmp+r}, v{T+3}')
        g(f'v_mov_b32 v{T}, v{O+12}')
        g(f'v_mov_b32 v{T+1}, v{O+12}')
        g(f'v_mul_f32 v{T+4}, 0, v{O}')
        g(f'v_fmac_f32 v{T+4}, 0, v{O+1}')
        g(f'v_permlane32_swap_b32 v{T}, v{T+1}')
        for r in range(2, 16): g(f'v_fmac_f32 v{T+4}, 0, v{O+r}')
        g(f'v_add_f32 v{T+4}, v{T+4}, v{T+1}')
        g(f's_mov_b32 s47, {f32bits(2.0**100):#x}')
        g(f'v_cmp_ngt_f32 vcc, s47, v{T+4}')
        g('s_nop 4')
        g(f's_cbranch_vccz L{tag}_ok')
        fallback(tag, br, O, q)
        g(f'v_mov_b32 v{T}, v{O+12}')
        g(f'v_mov_b32 v{T+1}, v{O+12}')
        g('s_nop 1')
        g(f'v_permlane32_swap_b32 v{T}, v{T+1}')
        g('s_nop 1')
        g.label(f'L{tag}_ok')
        g(f'v_rcp_f32 v{T+1}, v{T+1}')
        g('s_nop 0')
        for r in range(16): g(f'v_mul_f32 v{O+r}, v{O+r}, v{T+1}')
        for i in range(8): g(f'v_cvt_pk_bf16_f32 v{tmp+i}, v{O+2*i}, v{O+2*i+1}')
        g('s_mov_b64 exec, s[60:61]')
        g(f'v_mov_b32 v{tmp+6}, 0')
        g(f'v_mov_b32 v{tmp+7}, 0')
        g('s_mov_b64 exec, -1')
        g('s_lshl_b32 s47, s41, 2')
        g('s_add_u32 s47, s47, s42')
        g(f's_add_u32 s47, s47, {br*64}')
        g('s_lshl_b32 s47, s47, 4')
        g('s_add_u32 s47, s47, s40')
        g('s_lshl_b32 s47, s47, 11')
        g('s_nop 0')
        g(f'buffer_store_dwordx4 {vr(tmp,4)}, v2, s[36:39], s47 offen{ST()}')
        g(f'buffer_store_dwordx4 {vr(tmp+4,4)}, v2, s[36:39], s47 offen offset:1024{ST()}')
        g('s_nop 1')
    def fallback(tag, br, O, q):
        FS, FK, FV, FP, FQ, Fm = FB, FB+16, FB+24, FB+32, FB+40, FB+48
        s = 28 if br == 0 else 32
        for i in range(8): g(f'v_mov_b32 v{FQ+i}, v{q+i}')
        g('s_mov_b64 exec, s[60:61]')
        g(f'v_mov_b32 v{FQ+6}, 0')
        g('s_mov_b64 exec, -1')
        for r in range(16): g(f'v_mov_b32 v{O+r}, 0')
        g(f'v_mov_b32 v{Fm}, v25')
        if br == 0:
            g('s_lshl_b32 s52, s41, 2')
            g('s_add_u32 s52, s52, s42')
            g('s_sub_u32 s53, s52, 8')
            g('s_mov_b32 s54, s52')
        else:
            g('s_mov_b32 s54, 63')
        g.label(f'L{tag}_fb_loop')
        g('s_lshl_b32 s55, s54, 12')
        for i in range(2):
            g(f'buffer_load_dwordx4 {vr(FK+4*i,4)}, v2, s[{s}:{s+3}], s55 offen offset:{i*1024}{LD()}')
            g(f'buffer_load_dwordx4 {vr(FV+4*i,4)}, v2, s[{s}:{s+3}], s55 offen offset:{2048+i*1024}{LD()}')
        if br == 0:
            g('s_cmp_eq_u32 s54, s52')
            g(f's_cbranch_scc1 L{tag}_fb_diag')
            g('s_cmp_eq_u32 s54, s53')
            g(f's_cbranch_scc1 L{tag}_fb_first')
        for r in range(16): g(f'v_mov_b32 v{FS+r}, 0')
        if br == 0:
            g(f's_branch L{tag}_fb_go')
            g.label(f'L{tag}_fb_diag')
            set_mask(FS, 'diag')
            g(f's_branch L{tag}_fb_go')
            g.label(f'L{tag}_fb_first')
            set_mask(FS, 'first')
            g.label(f'L{tag}_fb_go')
        g('s_waitcnt vmcnt(0)')
        g('s_nop 1')
        g(mfma(FS, FK, FQ, FS))
        g(mfma(FS, FK+4, FQ+4, FS))
        g('s_nop 15')
        rowmax(FS, Fm+1)
        g(f'v_max_f32 v{Fm+1}, v{Fm+1}, v{Fm}')
        g(f'v_sub_f32 v{Fm+2}, v{Fm}, v{Fm+1}')
        g(f'v_exp_f32 v{Fm+2}, v{Fm+2}')
        g(f'v_mov_b32 v{Fm}, v{Fm+1}')
        for r in range(16): g(f'v_sub_f32 v{FS+r}, v{FS+r}, v{Fm}')
        for r in range(16): g(f'v_exp_f32 v{FS+r}, v{FS+r}')
        for r in range(16): g(f'v_mul_f32 v{O+r}, v{O+r}, v{Fm+2}')
        for i in range(8): g(f'v_cvt_pk_bf16_f32 v{FP+i}, v{FS+2*i}, v{FS+2*i+1}')
        g('s_nop 1')
        g(mfma(O, FV, FP, O))
        g(mfma(O, FV+4, FP+4, O))
        g('s_nop 15')
        g('s_sub_u32 s54, s54, 1')
        g('s_cmp_lt_i32 s54, 0')
        g(f's_cbranch_scc1 L{tag}_fb_end')
        if br == 0:
            g('s_cmp_lt_i32 s54, s53')
            g(f's_cbranch_scc1 L{tag}_fb_end')
        g(f's_branch L{tag}_fb_loop')
        g.label(f'L{tag}_fb_end')

    g('s_cmp_eq_u32 s43, 0')
    g('s_cbranch_scc0 Lattn_kh1')

    def wo_prefetch():
        sk = newlab('wo')
        g('s_cmp_ge_u32 s2, 224')
        g(f's_cbranch_scc1 {sk}')
        g('s_bfe_u32 s50, s2, 0x10002')
        g('s_cmp_eq_u32 s50, 0')
        g('s_cselect_b32 s56, s8, s14')
        g('s_cselect_b32 s57, s9, s15')
        g(f's_mov_b32 s58, {448*896}')
        g('s_mov_b32 s59, 0x20000')
        g('v_lshrrev_b32 v30, 3, v0')
        g('v_and_b32 v31, 7, v0')
        g('v_and_b32 v1, 2, v30')
        g('v_lshlrev_b32 v1, 1, v1')
        g('v_xor_b32 v31, v31, v1')
        g('s_lshl_b32 s50, s42, 3')
        g('v_add_u32 v30, s50, v30')
        g('v_mul_u32_u24 v30, 896, v30')
        g('v_lshl_add_u32 v30, v31, 4, v30')
        g('s_lshr_b32 s50, s2, 5')
        g('s_lshl_b32 s50, s50, 7')
        g('v_add_u32 v30, s50, v30')
        g('s_lshl_b32 s52, s42, 10')
        for it in range(15):
            if it == 14:
                g('s_cmp_ge_u32 s42, 1')
                g(f's_cbranch_scc1 {sk}')
            g(f's_add_u32 m0, s52, {65536 + it*4096}')
            if it == 14:
                g(f'v_add_u32 v31, {it*32*896}, v30')
                g('buffer_load_dwordx4 v31, s[56:59], 0 offen lds')
            else:
                g(f's_mov_b32 s50, {it*32*896}')
                g('buffer_load_dwordx4 v30, s[56:59], s50 offen lds')
        g.label(sk)

    def path(kh):
        tag = f'K{kh}'
        unitsA = [8, 7, 6, 5, 4] if kh == 0 else [3, 2, 1, 0]
        nA = len(unitsA); N = 32 + nA
        def unit(i):
            if i >= 32:
                u = unitsA[i - 32]
                masked = (kh == 0 and u == 8) or (kh == 1 and u == 0)
                return dict(base=3, off=u*4096, Q=QA, O=OA, C=MASK if masked else None, first=(i == 32))
            return dict(b=i, Q=QB, O=OB, C=None, first=(i == 0))
        def addr(i, cs):
            u = unit(i)
            if 'base' in u: return u['base'], u['off']
            b = u['b']; s = b >> 2
            if s == cs: return 4, (b & 3) * 4096
            assert s == cs + 1
            return 5, (b & 3) * 4096
        def rdK(i, cs, dst=KF):
            r, off = addr(i, cs)
            g(f'ds_read_b128 {vr(dst,4)}, v{r} offset:{off}')
            g(f'ds_read_b128 {vr(dst+4,4)}, v{r} offset:{off+1024}')
        def rdV(i, f, cs):
            r, off = addr(i, cs)
            g(f'ds_read_b128 {vr(VF+4*f,4)}, v{r} offset:{off+2048+f*1024}')
        rdK(0, 0)
        g('s_waitcnt lgkmcnt(0)')
        g(mfma(S0, KF, QB, None))
        g(mfma(S0, KF+4, QB+4, S0))
        g('s_nop 15')
        set_standin(S0, QB, MNB)
        g('s_nop 1')
        g(mfma(S0, KF, QB, None))
        g(mfma(S0, KF+4, QB+4, S0))
        rdK(1, 0)
        rdV(0, 0, 0)
        g('s_nop 15')
        if kh == 0: stamp(g, 7)
        if OPT.get('attst'): stamp(g, 2, q=True)
        g('s_lshl_b32 s55, s3, 12')
        def dma_slot(i, inloop):
            if i >= 34 or i < 6: return
            ph = (i - 2) & 3; st = ((i - 2) >> 2) + 3
            if i == 18:
                g('buffer_load_dword v201, v31, s[64:67], 0 offen sc1')
            if st <= 7:
                if ph == 0:
                    g(f's_add_u32 s54, s55, {st*32768}')
                    g(f's_add_u32 m0, s55, {(st&3)*32768}')
                    g('s_nop 0')
                g(f'buffer_load_dwordx4 v2, s[32:35], s54 offen offset:{ph*1024}{LD()} lds')
            elif st == 8:
                if ph == 0:
                    ok = newlab('aok')
                    g('v_cmp_ne_u32 vcc, 16, v201')
                    g('s_nop 4')
                    g(f's_cbranch_vccz {ok}')
                    spin_until(g, 201, 31, 16)
                    g.label(ok)
                    if kh == 1:
                        g('s_add_u32 s47, s51, 8192')
                        dma4(2, 24, 's44', 's47', n=2)
                    g('s_mov_b32 m0, s55')
                    g('s_nop 0')
                g(f'buffer_load_dwordx4 v28, s[28:31], 0 offen offset:{ph*1024}{LD()} lds')
            elif st == 9 and ph == 0 and kh == 0:
                g('s_add_u32 m0, s55, 32768')
                g('s_nop 0')
                for k in range(4):
                    g(f'buffer_load_dwordx4 v29, s[28:31], 0 offen offset:{k*1024}{LD()} lds')
        def body(i, cs, inloop=False):
            u = unit(i)
            sb = SB[i & 1]; sn = SB[(i + 1) & 1]
            e = [f'v_exp_f32 v{sb+r}, v{sb+r}' for r in range(16)]
            c = [f'v_cvt_pk_bf16_f32 v{P+k}, v{sb+2*k}, v{sb+2*k+1}' for k in range(8)]
            has1 = i + 1 < N; has2 = i + 2 < N
            if i < 32 and (i & 3) == 2:
                s = i >> 2
                if s == 7: vm = 0
                elif s == 0: vm = 16 if kh == 1 else None
                elif s == 1: vm = 8 if kh == 1 else None
                elif s == 2: vm = 4 if kh == 1 else None
                else: vm = 4
                if OPT.get('attst') and s in (0, 1, 2, 3, 5, 7): stamp(g, {0: 3, 1: 5, 2: 7, 3: 9, 5: 11, 7: 13}[s], q=True)
                g(f's_waitcnt vmcnt({vm}) lgkmcnt(0)' if vm is not None else 's_waitcnt lgkmcnt(0)')
                g('s_barrier')
                if OPT.get('attst') and s in (0, 1, 2, 3, 5, 7): stamp(g, {0: 4, 1: 6, 2: 8, 3: 10, 5: 12, 7: 14}[s], q=True)
                if s == 3 and kh == 1:
                    sk = newlab('sigA')
                    g('s_cmp_lg_u32 s3, 4')
                    g(f's_cbranch_scc1 {sk}')
                    g('s_mov_b64 exec, 1')
                    g('v_mov_b32 v1, 1')
                    g('s_lshl_b32 s47, s23, 8')
                    g('v_mov_b32 v202, s47')
                    g('buffer_atomic_add v1, v202, s[64:67], 0 offen sc1')
                    g('s_mov_b64 exec, -1')
                    g.label(sk)
                if s == 6:
                    g(f'ds_read_b128 {vr(QA,4)}, v{QL} offset:8192')
                    g(f'ds_read_b128 {vr(QA+4,4)}, v{QL} offset:9216')
                if s == 7:
                    rdK(32, cs, TK)
                    g('s_waitcnt lgkmcnt(0)')
                    g(mfma(TS, TK, QA, unit(32)['C']))
                    g(mfma(TS, TK+4, QA+4, TS))
                    g('s_nop 15')
                    set_standin(TS, QA, MNA)
                    if kh == 1:
                        g('s_lshl_b32 s47, s41, 2')
                        g('s_add_u32 s47, s47, s42')
                        g('s_cmp_lt_u32 s47, 5')
                        g(f's_cbranch_scc0 L{tag}_valid')
                        g(f'v_mov_b32 v{MNA}, {POSBIG:#x}')
                        g.label(f'L{tag}_valid')
            elif i == 34:
                g('s_waitcnt lgkmcnt(0)')
                g('s_barrier')
                if kh == 1:
                    wo_prefetch()
                    finish('FB', 1, OB, MNB, QB, TS)
            else:
                g('s_waitcnt lgkmcnt(0)')
            if OPT.get('prio', 'lag') == 'lag':
                g(f's_setprio {3 - ((i - 2) & 3)}')
            g(e[0])
            if i > 0:
                up = unit(i - 1)
                g(mfma(up['O'], VF+4, P+4, up['O']))
            rdV(i, 1, cs)
            g(e[1]); g(e[2]); g(e[3])
            g(c[0])
            if i == 33 and kh == 0:
                write_partial(OB, MNB)
            if i == 1 and kh == 0:
                for t in range(3):
                    g(f'buffer_store_dwordx4 {vr(208+8*t,4)}, v2, s[56:59], s{(48,49,53)[t]} offen{ST()}')
                    g(f'buffer_store_dwordx4 {vr(212+8*t,4)}, v2, s[56:59], s{(48,49,53)[t]} offen offset:1024{ST()}')
            if has1:
                un = unit(i + 1)
                g(mfma(sn, KF, un['Q'], un['C']))
            g(e[4]); g(e[5]); g(c[1]); g(e[6]); g(e[7]); g(c[2])
            if has1:
                g(mfma(sn, KF+4, un['Q']+4, sn))
            if has2:
                rdK(i + 2, cs)
            g(e[8]); g(c[3]); g(e[9]); g(e[10])
            dma_slot(i, inloop)
            g(e[11])
            g(mfma(u['O'], VF, P, None if u['first'] else u['O']))
            if has1:
                rdV(i + 1, 0, cs)
            for x in e[12:16]: g(x)
            g(c[4]); g(c[5]); g(c[6]); g(c[7])
        def advance():
            g('v_mov_b32 v4, v5')
            g('v_add_u32 v5, 32768, v5')
            g('v_and_b32 v5, 0x1ffff, v5')
        return body, advance, N, tag
    for kh in (0, 1):
        if kh == 1: g.label('Lattn_kh1')
        body, advance, N, tag = path(kh)
        for s_ in range(7):
            for j in range(4): body(4*s_ + j, s_)
            advance()
        for j in range(4): body(28 + j, 7)
        if kh == 0: stamp(g, 8)
        for i in range(32, N): body(i, 7)
        g('s_waitcnt lgkmcnt(0)')
        g('s_nop 1')
        g(mfma(OA, VF+4, P+4, OA))
        g('s_nop 15')
        if kh == 1:
            write_partial(OA, MNA)
            g('s_waitcnt lgkmcnt(0)')
            g('s_barrier')
        else:
            g('s_barrier')
            finish('FA', 0, OA, MNA, QA, MASK)
            g('s_branch Lattn_fin')
    g.label('Lattn_fin')
    stamp(g, 9)

def phase_proj(g):
    g('s_waitcnt vmcnt(0)')
    g('s_barrier')
    stamp(g, 10)
    g('s_cmp_lg_u32 s3, 0')
    g('s_cbranch_scc1 Lh2_a')
    g('s_mov_b64 exec, 1')
    g('v_mov_b32 v1, 1')
    g('s_lshl_b32 s47, s41, 8')
    g(f's_add_u32 s47, s47, {CNT_O}')
    g('v_mov_b32 v30, s47')
    g('buffer_atomic_add v1, v30, s[64:67], 0 offen sc1')
    g('s_mov_b64 exec, -1')
    g.label('Lh2_a')
    g('s_cmp_ge_u32 s2, 224')
    g('s_cbranch_scc1 Lend')
    g('s_and_b32 s45, s2, 7')
    g('s_lshr_b32 s46, s2, 3')
    g('s_lshr_b32 s40, s45, 2')
    g('s_and_b32 s41, s45, 3')
    g('s_lshl_b32 s41, s41, 2')
    g('s_and_b32 s42, s46, 3')
    g('s_add_u32 s41, s41, s42')
    g('s_lshr_b32 s42, s46, 2')
    g('s_and_b32 s43, s3, 3')
    g('s_lshr_b32 s44, s3, 2')
    srd(g, 24, 16, 17, 2048 * 1792)
    g('s_lshl_b32 s45, s40, 6')
    g('s_lshl_b32 s46, s41, 2')
    g('s_add_u32 s45, s45, s46')
    g('s_add_u32 s45, s45, s43')
    g('s_lshl_b32 s45, s45, 15')
    g('s_lshl_b32 s46, s44, 14')
    g('s_add_u32 s45, s45, s46')
    g('v_bfe_u32 v4, v0, 2, 2')
    g('v_and_b32 v5, 3, v0')
    g('v_bfe_u32 v7, v0, 4, 1')
    g('v_lshrrev_b32 v6, 5, v0')
    g('v_lshlrev_b32 v7, 5, v7')
    g('v_lshl_add_u32 v7, v5, 3, v7')
    g('v_lshrrev_b32 v11, 4, v7')
    g('v_and_b32 v8, 2, v4')
    g('v_lshlrev_b32 v8, 1, v8')
    g('v_xor_b32 v11, v11, v8')
    g('v_and_b32 v7, 15, v7')
    g('v_lshl_add_u32 v7, v11, 4, v7')
    g('v_lshl_add_u32 v4, v6, 2, v4')
    g('v_lshl_add_u32 v9, v4, 7, v7')
    g('s_mul_i32 s46, s44, 28672')
    g('s_add_u32 s46, s46, 65536')
    g('v_add_u32 v9, s46, v9')
    g('v_xor_b32 v10, 64, v9')
    g('s_lshl_b32 s46, s43, 1')
    g('s_add_u32 s46, s46, s44')
    g('s_lshl_b32 s46, s46, 12')
    g('v_add_u32 v12, s46, v2')
    g('v_xor_b32 v13, 4096, v12')
    g('s_cmp_lg_u32 s3, 0')
    g('s_cbranch_scc1 Lh2_wait')
    g('s_lshl_b32 s47, s41, 8')
    g(f's_add_u32 s47, s47, {CNT_O}')
    g('v_mov_b32 v30, s47')
    spin_until(g, 1, 30, 16)
    g.label('Lh2_wait')
    g('s_barrier')
    stamp(g, 11)
    OF = 64; ACC = 16; WF = 48
    for n in range(16):
        if n % 4 == 0 and n > 0: g('s_add_u32 s45, s45, 4096')
        g(f'buffer_load_dwordx4 {vr(OF+4*n,4)}, v2, s[36:39], s45 offen offset:{(n%4)*1024}{LD()}')
    def rd(n, buf):
        h, i = divmod(n, 2)
        for ct in range(2):
            for jj in range(2):
                off = (28*h + 16*i + 8*jj) * 128
                g(f'ds_read_b64_tr_b16 {vr(WF+8*buf+4*ct+2*jj,2)}, v{9+ct} offset:{off}')
    rd(0, 0)
    for n in range(16):
        if n + 1 < 16: rd(n + 1, (n + 1) & 1)
        g(f's_waitcnt vmcnt({15-n}) lgkmcnt({4 if n + 1 < 16 else 0})')
        for ct in range(2):
            g(mfma(ACC + 16*ct, WF + 8*(n & 1) + 4*ct, OF + 4*n, None if n == 0 else ACC + 16*ct))
    g('s_nop 15')
    stamp(g, 12)
    g('s_cmp_eq_u32 s44, 0')
    g('s_cbranch_scc0 Lpj_k1')
    for i in range(4): g(f'ds_write_b128 v12, {vr(ACC+16+4*i,4)} offset:{i*1024}')
    g('s_branch Lpj_k2')
    g.label('Lpj_k1')
    for i in range(4): g(f'ds_write_b128 v12, {vr(ACC+4*i,4)} offset:{i*1024}')
    for r in range(16): g(f'v_mov_b32 v{ACC+r}, v{ACC+16+r}')
    g.label('Lpj_k2')
    g('s_waitcnt lgkmcnt(0)')
    g('s_barrier')
    for i in range(4): g(f'ds_read_b128 {vr(64+4*i,4)}, v13 offset:{i*1024}')
    g('v_and_b32 v4, 31, v0')
    g('s_lshl_b32 s46, s41, 7')
    g('s_lshl_b32 s47, s43, 5')
    g('s_add_u32 s46, s46, s47')
    g('v_add_u32 v4, s46, v4')
    g('v_mul_u32_u24 v4, 1792, v4')
    g('v_lshl_add_u32 v4, v6, 4, v4')
    g('s_mul_i32 s46, s40, 896')
    g('s_lshl_b32 s47, s42, 7')
    g('s_add_u32 s46, s46, s47')
    g('s_lshl_b32 s47, s44, 6')
    g('s_add_u32 s46, s46, s47')
    g('s_waitcnt lgkmcnt(0)')
    for r in range(16): g(f'v_add_f32 v{ACC+r}, v{ACC+r}, v{64+r}')
    P = 48
    for i in range(8): g(f'v_cvt_pk_bf16_f32 v{P+i}, v{ACC+2*i}, v{ACC+2*i+1}')
    g('s_nop 1')
    for k in range(2):
        a = P + 4*k
        g(f'v_permlane32_swap_b32 v{a}, v{a+2}')
        g(f'v_permlane32_swap_b32 v{a+1}, v{a+3}')
    g('s_nop 1')
    for k in range(2):
        g(f'buffer_store_dwordx4 {vr(P+4*k,4)}, v4, s[24:27], s46 offen offset:{32*k}')

HEADER = '''; Kernarg layout for this problem (72 bytes, ptrs only, base s[0:1]):
'''
def main(out):
    g = Gen()
    g.raw(f'.globl {NAME}')
    g.raw('.p2align 8')
    g.raw(f'.type {NAME},@function')
    g.label(NAME)
    g('s_cmp_ge_u32 s2, 256')
    g('s_cbranch_scc1 Lexit')
    stamp(g, 0); stamp(g, 15, True)
    g('s_load_dwordx16 s[4:19], s[0:1], 0')
    g('s_load_dwordx2 s[20:21], s[0:1], 64')
    g('v_lshrrev_b32 v1, 6, v0')
    g('v_and_b32 v0, 63, v0')
    g('s_nop 0')
    g('v_readfirstlane_b32 s3, v1')
    prologue(g)
    qkv_compute(g)
    qkv_loader(g)
    phase_attn(g)
    phase_proj(g)
    g.label('Lend')
    if OPT['stamps'] or OPT.get('tl'): g('s_waitcnt vmcnt(0)')
    stamp(g, 13)
    if OPT.get('tl'):
        sk = newlab('tl')
        g('s_cmp_lg_u32 s3, 0')
        g(f's_cbranch_scc1 {sk}')
        g('s_waitcnt lgkmcnt(0)')
        srd(g, 56, 18, 19, 256)
        g('s_mov_b64 exec, 1')
        g('s_not_b32 s68, s70')
        g('v_mov_b32 v1, s68')
        g('v_mov_b32 v3, 0')
        g('buffer_atomic_umax v1, v3, s[56:59], 0 offen offset:4')
        for k, i in enumerate((0, 2, 3, 4, 6, 8, 9, 10, 11, 12, 13)):
            g(f'v_mov_b32 v{4+k}, s{70+2*i}')
            g(f'buffer_atomic_umax v{4+k}, v3, s[56:59], 0 offen offset:{8+4*k}')
        g('s_waitcnt vmcnt(0)')
        g.label(sk)
    if OPT['stamps']: g('s_memrealtime s[72:73]')
    stamp_dump(g)
    g.label('Lexit')
    g('s_endpgm')
    txt = HEADER + f'; @launch grid=(256,1,1) block=(512,1,1) lds={LDS_BYTES}\n'
    txt += '.amdgcn_target "amdgcn-amd-amdhsa--gfx950"\n.text\n' + g.text()
    txt += f'''.section .rodata,"a"
.p2align 6
.amdhsa_kernel {NAME}
  .amdhsa_next_free_vgpr 232
  .amdhsa_next_free_sgpr 102
  .amdhsa_accum_offset 232
  .amdhsa_group_segment_fixed_size 0
  .amdhsa_kernarg_size 72
  .amdhsa_user_sgpr_count 2
  .amdhsa_user_sgpr_kernarg_segment_ptr 1
  .amdhsa_system_sgpr_workgroup_id_x 1
.end_amdhsa_kernel
'''
    open(out, 'w').write(txt)

if __name__ == '__main__':
    out = sys.argv[1] if len(sys.argv) > 1 else 'concat_heads__sliding_block__softmax_full_mha__prompt.s'
    for a in sys.argv[2:]:
        if '=' in a:
            k, v = a.split('=', 1)
            OPT[k] = v if k in ('st', 'ld', 'prio') else (int(v) if v.isdigit() else v)
        else:
            OPT[a] = True
    main(out)
```

```python
import sys, math, struct

def f32bits(x): return struct.unpack('<I', struct.pack('<f', x))[0]

class Gen:
    def __init__(self): self.lines = []
    def __call__(self, s):
        for l in s.split('\n'):
            l = l.strip()
            if l: self.lines.append('  ' + l)
    def label(self, s): self.lines.append(s + ':')
    def raw(self, s): self.lines.append(s)
    def text(self): return '\n'.join(self.lines) + '\n'

def vr(base, n): return f'v[{base}:{base+n-1}]'
def mfma(d, a, b, c):
    cs = '0' if c is None else vr(c, 16)
    return f'v_mfma_f32_32x32x16_bf16 {vr(d,16)}, {vr(a,4)}, {vr(b,4)}, {cs}'

OPT = dict(stamps=False, st='sc1', ld='sc1', spin=200000)
NAME = 'concat_heads__sliding_block__softmax_full_mha__prompt_kernel'
STAMP_BASE = 0x2000000
def stamp(g, i, real=False, q=False):
    if OPT.get('tl'):
        if i in (0, 2, 3, 4, 6, 8, 9, 10, 11, 12, 13): g(f's_memrealtime s[{70+2*i}:{71+2*i}]')
        return
    if not OPT['stamps']: return
    import inspect
    if OPT.get('qkvst') and 5 <= i <= 13:
        caller = inspect.stack()[1].function
        if caller != 'qkv_compute': return
    if OPT.get('attst') and 2 <= i <= 14 and not q: return
    op = 's_memrealtime' if real else 's_memtime'
    g(f'{op} s[{70+2*i}:{71+2*i}]')
def stamp_dump(g):
    if not OPT['stamps']: return
    g('s_waitcnt lgkmcnt(0) vmcnt(0)')
    g(f's_add_u32 s64, s20, {STAMP_BASE}')
    g(f's_addc_u32 s65, s21, 0')
    g('s_mov_b32 s66, 0x100000')
    g('s_mov_b32 s67, 0x20000')
    g('s_mov_b64 exec, -1')
    g('v_mov_b32 v1, 0')
    for i in range(16):
        g(f'v_writelane_b32 v1, s{70+2*i}, {i}')
    g('s_lshl_b32 s68, s2, 3')
    g('s_add_u32 s68, s68, s3')
    g('s_lshl_b32 s68, s68, 6')
    g('v_lshlrev_b32 v3, 2, v0')
    g('v_cmp_gt_u32 vcc, 16, v0')
    g('s_and_saveexec_b64 s[62:63], vcc')
    g('buffer_store_dword v1, v3, s[64:67], s68 offen')
    g('s_waitcnt vmcnt(0)')

WS_Q = 0
WS_KV = 0x400000
WS_O = 0xC00000
WS_CNT = 0x1000000
CNT_A, CNT_B, CNT_O = 0, 16 * 256, 32 * 256
QSCALE = (28 ** -0.5) * math.log2(math.e)
NEGBIG = 0xf149f2ca
POSBIG = 0x7149f2ca
LDS_BYTES = 131072 + 16384 + 1024

def srd(g, dst, lo, hi, nbytes, add=0):
    if add:
        g(f's_add_u32 s{dst}, s{lo}, {add}')
        g(f's_addc_u32 s{dst+1}, s{hi}, 0')
    else:
        g(f's_mov_b32 s{dst}, s{lo}')
        g(f's_mov_b32 s{dst+1}, s{hi}')
    g(f's_mov_b32 s{dst+2}, {nbytes}')
    g(f's_mov_b32 s{dst+3}, 0x20000')
def ST(): return (' ' + OPT['st']) if OPT['st'] else ''
def LD(): return (' ' + OPT['ld']) if OPT['ld'] else ''
lab = [0]
def newlab(p):
    lab[0] += 1
    return f'L{p}_{lab[0]}'

def spin_until(g, vdst, voff, target):
    l0 = newlab('poll'); l1 = newlab('pdone')
    g(f's_mov_b32 s68, {OPT["spin"]}')
    g.label(l0)
    g(f'buffer_load_dword v{vdst}, v{voff}, s[64:67], 0 offen sc1')
    g('s_waitcnt vmcnt(0)')
    g(f'v_cmp_ne_u32 vcc, {target}, v{vdst}')
    g('s_nop 4')
    g(f's_cbranch_vccz {l1}')
    g('s_sleep 1')
    g('s_sub_u32 s68, s68, 1')
    g('s_cmp_lg_u32 s68, 0')
    g(f's_cbranch_scc1 {l0}')
    g.label(l1)

WROW = 176
WSTG = 64 * WROW
NCH = 14
def prologue(g):
    g('s_and_b32 s40, s2, 7')
    g('s_lshr_b32 s41, s2, 3')
    g('s_lshr_b32 s22, s40, 1')
    g('s_lshl_b32 s22, s22, 2')
    g('s_and_b32 s42, s41, 3')
    g('s_add_u32 s22, s22, s42')
    g('s_and_b32 s23, s40, 1')
    g('s_lshl_b32 s23, s23, 3')
    g('s_lshr_b32 s42, s41, 2')
    g('s_add_u32 s23, s23, s42')
    g('s_cmp_ge_u32 s3, 4')
    g('s_cbranch_scc1 Lloader')

def qkv_compute(g):
    g('v_and_b32 v4, 31, v0')
    g('s_lshl_b32 s44, s3, 5')
    g('v_add_u32 v4, s44, v4')
    g('v_lshlrev_b32 v4, 7, v4')
    g('v_bfe_u32 v5, v0, 1, 3')
    g('v_lshrrev_b32 v6, 5, v0')
    for ks in range(4):
        g(f'v_add_u32 v7, {2*ks}, v6')
        g('v_xor_b32 v7, v7, v5')
        g(f'v_lshl_add_u32 v{12+ks}, v7, 4, v4')
    g('v_bfe_u32 v4, v0, 2, 2')
    g('v_and_b32 v5, 3, v0')
    g('v_bfe_u32 v7, v0, 4, 1')
    g('v_lshlrev_b32 v7, 5, v7')
    g('v_lshl_add_u32 v7, v5, 3, v7')
    g('v_lshlrev_b32 v4, 1, v4')
    g('v_add_u32 v4, v4, v6')
    g(f'v_mul_u32_u24 v4, {2*WROW}, v4')
    g('v_add_u32 v4, v4, v7')
    g('v_add_u32 v16, 65536, v4')
    g('v_lshlrev_b32 v2, 4, v0')
    g('s_waitcnt lgkmcnt(0)')
    stamp(g, 1)
    srd(g, 32, 20, 21, 0x1000000)
    srd(g, 64, 20, 21, 0x4000, WS_CNT)
    g('s_or_b32 s44, s2, s3')
    g('s_cmp_lg_u32 s44, 0')
    g('s_cbranch_scc1 Lnoinit')
    g('v_lshlrev_b32 v20, 8, v0')
    g('v_mov_b32 v21, 0')
    g('buffer_store_dword v21, v20, s[64:67], 0 offen sc1')
    g('s_waitcnt vmcnt(0)')
    srd(g, 36, 18, 19, 256)
    g('s_mov_b64 exec, 1')
    g('v_mov_b32 v21, 1')
    g('v_mov_b32 v20, 0')
    g('buffer_store_dword v21, v20, s[36:39], 0 offen sc1')
    g('s_mov_b64 exec, -1')
    g.label('Lnoinit')
    if OPT.get('pf', 1):
        g('s_cmp_lt_u32 s3, 2')
        g('s_cselect_b32 s40, s10, s4')
        g('s_cselect_b32 s41, s11, s5')
        g('s_cselect_b32 s42, s12, s6')
        g('s_cselect_b32 s43, s13, s7')
        g('s_cselect_b32 s44, s14, s8')
        g('s_cselect_b32 s45, s15, s9')
        g('s_and_b32 s46, s3, 1')
        g('s_cmp_eq_u32 s46, 0')
        g('s_cbranch_scc0 Lpf_w')
        g('s_mov_b32 s24, s40'); g('s_mov_b32 s25, s41'); g('s_mov_b32 s26, 1835008'); g('s_mov_b32 s27, 0x20000')
        g('s_mul_i32 s46, s2, 7168')
        g('v_add_u32 v20, s46, v2')
        for i in range(7):
            g(f'buffer_load_dwordx4 v[{144+4*i}:{147+4*i}], v20, s[24:27], 0 offen offset:{(i%4)*1024}' if i < 4 else f'buffer_load_dwordx4 v[{144+4*i}:{147+4*i}], v21, s[24:27], 0 offen offset:{(i%4)*1024}')
            if i == 0: g('v_add_u32 v21, 4096, v20')
        g('s_branch Lpf_done')
        g.label('Lpf_w')
        g('s_mov_b32 s24, s42'); g('s_mov_b32 s25, s43'); g('s_mov_b32 s26, 1204224'); g('s_mov_b32 s27, 0x20000')
        g('s_mul_i32 s46, s2, 4704')
        g('v_add_u32 v20, s46, v2')
        g('v_add_u32 v21, 4096, v20')
        for i in range(5):
            g(f'buffer_load_dwordx4 v[{144+4*i}:{147+4*i}], v{20 if i < 4 else 21}, s[24:27], 0 offen offset:{(i%4)*1024}')
        g('s_mov_b32 s28, s44'); g('s_mov_b32 s29, s45'); g(f's_mov_b32 s30, {448*896}'); g('s_mov_b32 s31, 0x20000')
        g('s_mul_i32 s46, s2, 1568')
        g('v_add_u32 v20, s46, v2')
        for i in range(2):
            g(f'buffer_load_dwordx4 v[{164+4*i}:{167+4*i}], v20, s[28:31], 0 offen offset:{i*1024}')
        g.label('Lpf_done')
    srd(g, 36, 18, 19, 256)
    g('v_mov_b32 v30, 0')
    g('buffer_load_dword v31, v30, s[36:39], 0 offen sc1')
    XF = 80; WF = 88
    ACCS = {1: 32, 0: 144}
    PS = {1: 112, 0: 208}
    g('v_and_b32 v18, 31, v0')
    g('v_cmp_eq_u32 vcc, 28, v18')
    g('v_mov_b32 v19, 0x3f803f80')
    g('s_nop 0')
    g('v_cndmask_b32_e64 v18, 0, v19, vcc')
    g('s_mov_b32 s60, 0')
    g('s_mov_b32 s61, -1')
    g('s_mov_b32 s58, 0xf0000000')
    g('s_mov_b32 s59, 0xf0000000')
    def reads(n, buf, part):
        kc, ks = divmod(n, 4)
        st = kc % 4
        if part == 0:
            g(f'ds_read_b128 {vr(XF+4*buf,4)}, v{12+ks} offset:{st*16384}')
        for jj in range(2):
            off = st * WSTG + (ks*16 + jj) * WROW + part * 56
            g(f'ds_read_b64_tr_b16 {vr(WF+12*buf+4*part+2*jj,2)}, v16 offset:{off}')
    def mfma1(br, buf, t, first, types):
        x = XF + 4*buf; wf = WF + 12*buf + 4*t; d = ACCS[br] + 16*t
        c = None if first else d
        g(mfma(d, wf, x, c) if types[t] == 'QK' else mfma(d, x, wf, c))
    def epilogue_list(br, types):
        L = []
        A = L.append
        ACC = ACCS[br]; P = PS[br]
        A('s_lshl_b32 s54, s22, 2')
        A('s_add_u32 s54, s54, s3')
        if br: A('s_add_u32 s54, s54, 1024')
        for t in range(3):
            a = ACC + 16*t; p = P + 8*t
            so = (48, 49, 53)[t]
            A(f's_add_u32 s55, s52, {t}')
            A('s_and_b32 s56, s55, 15')
            A('s_lshl_b32 s56, s56, 6')
            A('s_add_u32 s56, s56, s54')
            if types[t] == 'QK':
                A('s_cmp_lt_u32 s55, 16\n' + f's_cselect_b32 s57, {f32bits(QSCALE):#x}, 1.0\n' + 's_cselect_b32 s45, 0, 0x3f80\n' +
                  's_cselect_b32 s46, 11, 12\n' + f's_cselect_b32 s47, {WS_Q}, {WS_KV}')
                A('s_lshl_b32 s56, s56, s46')
                A(f's_add_u32 s{so}, s56, s47')
                A('v_mov_b32 v19, s45')
                for r in range(16): A(f'v_mul_f32 v{a+r}, s57, v{a+r}')
                for i in range(8): A(f'v_cvt_pk_bf16_f32 v{p+i}, v{a+2*i}, v{a+2*i+1}')
                A(f'v_cndmask_b32_e64 v{p+6}, v{p+6}, v19, s[60:61]')
                A(f'v_cndmask_b32_e64 v{p+7}, v{p+7}, 0, s[60:61]')
            else:
                A('s_lshl_b32 s56, s56, 12')
                A(f's_add_u32 s{so}, s56, {WS_KV + 2048}')
                for i in range(8): A(f'v_cvt_pk_bf16_f32 v{p+i}, v{a+2*i}, v{a+2*i+1}')
                for i in range(8): A(f'v_cndmask_b32_e64 v{p+i}, v{p+i}, v18, s[58:59]')
            if br:
                A('s_nop 1\n' + f'buffer_store_dwordx4 {vr(p,4)}, v2, s[32:35], s{so} offen{ST()}')
                A(f'buffer_store_dwordx4 {vr(p+4,4)}, v2, s[32:35], s{so} offen offset:1024{ST()}')
        return L
    g('s_mul_i32 s52, s23, 3')
    g('s_cmp_eq_u32 s52, 30')
    g('s_cbranch_scc1 Lqkv_v1')
    g('s_cmp_gt_u32 s52, 30')
    g('s_cbranch_scc1 Lqkv_v2')
    variants = [('QK','QK','QK'), ('QK','QK','V'), ('V','V','V')]
    NS = NCH * 4
    SIG_AT = OPT.get('sig_at', 44)
    for vi, types in enumerate(variants):
        if vi: g.label(f'Lqkv_v{vi}')
        g('s_barrier')
        if vi == 0: stamp(g, 2)
        for part in range(3): reads(0, 0, part)
        epi = []
        EP0, EPN = OPT.get('ep0', 28), OPT.get('epn', 4)
        def fill(k):
            for _ in range(k):
                if epi: g(epi.pop(0))
        for n in range(NS):
            br = 1 if n < 28 else 0
            boundary = (n + 1) % 4 == 0 and n + 1 < NS
            nxt = n + 1 < NS
            buf = n & 1
            first = n % 28 == 0
            if n == EP0:
                epi = ['s_nop 7'] + epilogue_list(1, types)
                per = -(-len(epi) // (EPN * 3))
            inter = EP0 <= n < EP0 + EPN
            if boundary:
                g('s_waitcnt vmcnt(0) lgkmcnt(0)' if n + 1 in (SIG_AT, 24) else 's_waitcnt lgkmcnt(0)')
                g('s_barrier')
                if OPT.get('qkvst') and vi == 0:
                    c1 = (n + 1) // 4
                    m = {2: 5, 4: 6, 6: 7, 8: 8, 10: 9, 11: 10, 12: 13}
                    if c1 in m: stamp(g, m[c1])
                if n + 1 == SIG_AT:
                    sk = newlab('sigB'); ok = newlab('inited'); lp = newlab('initspin')
                    g('s_cmp_lg_u32 s3, 0')
                    g(f's_cbranch_scc1 {sk}')
                    g('v_readfirstlane_b32 s47, v31')
                    g('s_cmp_lg_u32 s47, 0')
                    g(f's_cbranch_scc1 {ok}')
                    g(f's_mov_b32 s68, {OPT["spin"]}')
                    g.label(lp)
                    g('buffer_load_dword v31, v30, s[36:39], 0 offen sc1')
                    g('s_waitcnt vmcnt(0)')
                    g('v_readfirstlane_b32 s47, v31')
                    g('s_cmp_lg_u32 s47, 0')
                    g(f's_cbranch_scc1 {ok}')
                    g('s_sub_u32 s68, s68, 1')
                    g('s_cmp_lg_u32 s68, 0')
                    g(f's_cbranch_scc1 {lp}')
                    g.label(ok)
                    g('s_mov_b64 exec, 1')
                    g('v_mov_b32 v1, 1')
                    g('s_lshl_b32 s47, s23, 8')
                    g(f's_add_u32 s47, s47, {CNT_B}')
                    g('v_mov_b32 v29, s47')
                    g('buffer_atomic_add v1, v29, s[64:67], 0 offen sc1')
                    g('s_mov_b64 exec, -1')
                    g.label(sk)
            else:
                g('s_waitcnt lgkmcnt(4)')
            mfma1(br, buf, 0, first, types)
            if nxt: reads(n + 1, buf ^ 1, 0)
            if inter: fill(per)
            if not boundary: g(f's_waitcnt lgkmcnt({5 if nxt else 2})')
            mfma1(br, buf, 1, first, types)
            if nxt: reads(n + 1, buf ^ 1, 1)
            if inter: fill(per)
            if not boundary: g(f's_waitcnt lgkmcnt({5 if nxt else 0})')
            mfma1(br, buf, 2, first, types)
            if nxt: reads(n + 1, buf ^ 1, 2)
            if inter: fill(per)
            if n == 27 and vi == 0: stamp(g, 3)
        assert not epi
        if vi == 0: stamp(g, 14)
        g('s_barrier')
        if vi == 0: stamp(g, 4)
        g('s_nop 15')
        for x in epilogue_list(0, types): g(x)
        if vi < 2: g('s_branch Lqkv_fin')
    g.label('Lqkv_fin')
    g('s_branch Lattn_setup')

def qkv_loader(g):
    g.label('Lloader')
    g('s_sub_u32 s43, s3, 4')
    g('s_lshl_b32 s44, s22, 7')
    g('s_lshl_b32 s45, s43, 5')
    g('s_add_u32 s44, s44, s45')
    g('v_lshrrev_b32 v10, 3, v0')
    g('v_add_u32 v10, s44, v10')
    g('v_mul_u32_u24 v10, 896, v10')
    g('v_lshrrev_b32 v11, 4, v0')
    g('v_and_b32 v12, 7, v0')
    g('v_xor_b32 v12, v12, v11')
    g('v_lshl_add_u32 v2, v12, 4, v10')
    g('v_xor_b32 v12, 4, v12')
    g('v_lshl_add_u32 v3, v12, 4, v10')
    g('v_add_u32 v3, 7168, v3')
    g('v_add_u32 v4, 14336, v2')
    g('v_add_u32 v5, 14336, v3')
    g('s_lshl_b32 s46, s43, 12')
    g('s_lshl_b32 s47, s43, 10')
    g('s_add_u32 s47, s47, 65536')
    g('s_lshl_b32 s44, s43, 6')
    g('s_mul_i32 s45, s23, 168')
    def wcalc(n):
        g('v_add_u32 v10, s44, v0')
        if n: g(f'v_add_u32 v10, {256*n}, v10')
        g('v_mul_u32_u24 v11, 5958, v10')
        g('v_lshrrev_b32 v11, 16, v11')
        g('v_mul_u32_u24 v12, 11, v11')
        g('v_sub_u32 v12, v10, v12')
        g('v_and_b32 v13, 48, v11')
        g('v_and_b32 v14, 3, v11')
        g('v_lshl_add_u32 v13, v14, 2, v13')
        g('v_bfe_u32 v14, v11, 2, 2')
        g('v_add_u32 v13, v13, v14')
        g('v_mul_u32_u24 v13, 2688, v13')
        g('v_lshl_add_u32 v13, v12, 4, v13')
        g(f'v_add_u32 v{6+n}, s45, v13')
    wcalc(0)
    g('s_waitcnt lgkmcnt(0)')
    srd(g, 24, 10, 11, 1835008)
    srd(g, 28, 12, 13, 1204224)
    def issueX(c):
        kc = c % 7; st = c % 4
        sx = 24 if c < 7 else 32
        g(f's_mov_b32 s48, {kc*128}')
        for e in range(4):
            g(f's_add_u32 m0, s46, {st*16384 + e*1024}')
            g('s_nop 0')
            g(f'buffer_load_dwordx4 v{2+e}, s[{sx}:{sx+3}], s48 offen lds')
    def issueW(c, ns=(0, 1, 2)):
        kc = c % 7; st = c % 4
        sw = 28 if c < 7 else 36
        g(f's_mov_b32 s49, {kc*64*2688}')
        for n in ns:
            if n == 2:
                sk = newlab('qs')
                g('s_cmp_eq_u32 s43, 3')
                g(f's_cbranch_scc1 {sk}')
            g(f's_add_u32 m0, s47, {st*WSTG + n*4096}')
            g('s_nop 0')
            g(f'buffer_load_dwordx4 v{6+n}, s[{sw}:{sw+3}], s49 offen lds')
            if n == 2: g.label(sk)
    def issue(c):
        issueX(c); issueW(c)
    issueX(0)
    issueW(0, (0,))
    wcalc(1); issueW(0, (1,))
    wcalc(2); issueW(0, (2,))
    srd(g, 32, 4, 5, 1835008)
    srd(g, 36, 6, 7, 1204224)
    srd(g, 64, 20, 21, 0x4000, WS_CNT)
    g('s_and_b32 s40, s2, 7')
    g('s_bfe_u32 s41, s2, 0x10003')
    g('s_lshl_b32 s40, s40, 1')
    g('s_add_u32 s40, s40, s41')
    g('v_min_u32 v30, 2, v0')
    g('v_lshlrev_b32 v30, 4, v30')
    g('v_add_u32 v30, s40, v30')
    g('v_mul_u32_u24 v30, 43, v30')
    g('v_lshrrev_b32 v30, 7, v30')
    g('v_lshlrev_b32 v31, 8, v30')
    g(f'v_add_u32 v203, {CNT_B}, v31')
    for c in range(1, 3): issue(c)
    for c in range(NCH):
        rem = min(2, NCH - 1 - c)
        g(f's_waitcnt vmcnt({6*rem})')
        g('s_barrier')
        if c + 3 < NCH: issue(c + 3)
        if c == 13:
            g('buffer_load_dword v201, v203, s[64:67], 0 offen sc1')
    g('s_barrier')
    stamp(g, 4)

K2_SCR = 131072
def phase_attn(g):
    g.label('Lattn_setup')
    g('s_and_b32 s40, s2, 7')
    g('s_bfe_u32 s41, s2, 0x10003')
    g('s_lshl_b32 s40, s40, 1')
    g('s_add_u32 s40, s40, s41')
    g('s_lshr_b32 s41, s2, 4')
    g('s_and_b32 s42, s3, 3')
    g('s_lshr_b32 s43, s3, 2')
    QA = 8; QB = 16; MASK = 32; S0 = 48; S1 = 64; P = 80; OA = 88; OB = 104; KF = 120; VF = 128; T = 136
    TK = 144; TS = 152
    MNA = 26; MNB = 27
    SB = [S0, S1]
    g('v_lshlrev_b32 v2, 4, v0')
    g('s_lshl_b32 s44, s40, 6')
    g('s_lshl_b32 s45, s41, 2')
    g('s_add_u32 s45, s45, s42')
    g('s_add_u32 s44, s44, s45')
    g('s_lshl_b32 s44, s44, 11')
    g('s_lshl_b32 s46, s42, 12')
    srd(g, 24, 20, 21, 0x400000)
    g('s_lshl_b32 s47, s40, 18')
    g(f's_add_u32 s47, s47, {WS_KV}')
    g('s_add_u32 s28, s20, s47')
    g('s_addc_u32 s29, s21, 0')
    g('s_mov_b32 s30, 0x40000')
    g('s_mov_b32 s31, 0x20000')
    g('s_add_u32 s32, s28, 0x400000')
    g('s_addc_u32 s33, s29, 0')
    g('s_mov_b32 s34, 0x40000')
    g('s_mov_b32 s35, 0x20000')
    srd(g, 36, 20, 21, 0x400000, WS_O)
    g('v_min_u32 v30, 2, v0')
    g('v_lshlrev_b32 v30, 4, v30')
    g('v_add_u32 v30, s40, v30')
    g('v_mul_u32_u24 v30, 43, v30')
    g('v_lshrrev_b32 v30, 7, v30')
    g('v_lshlrev_b32 v31, 8, v30')
    g(f'v_add_u32 v203, {CNT_B}, v31')
    g('s_lshl_b32 s47, s41, 2')
    g('s_add_u32 s47, s47, s3')
    g('s_sub_u32 s47, s47, 8')
    g('s_lshl_b32 s50, s47, 12')
    g('s_cmp_lt_i32 s47, 0')
    g('s_cselect_b32 s50, 0x40000000, s50')
    g('v_add_u32 v28, s50, v2')
    g('s_add_u32 s47, s47, 8')
    g('s_lshl_b32 s50, s47, 12')
    g('v_add_u32 v29, s50, v2')
    g('s_lshl_b32 s47, s42, 12')
    g('v_add_u32 v3, s47, v2')
    g('s_lshl_b32 s47, s43, 14')
    g('v_add_u32 v4, s47, v2')
    g('v_add_u32 v5, 32768, v4')
    g(f'v_add_u32 v6, {K2_SCR}, v3')
    g('s_lshl_b32 s47, s42, 8')
    g(f's_add_u32 s47, s47, {K2_SCR+16384}')
    g('v_lshlrev_b32 v7, 2, v0')
    g('v_add_u32 v7, s47, v7')
    g('s_lshl_b32 s47, s42, 11')
    g(f's_add_u32 s51, s47, {K2_SCR}')
    g('v_add_u32 v1, s51, v2')
    g('v_and_b32 v24, 31, v0')
    g('v_lshrrev_b32 v25, 5, v0')
    g('v_lshlrev_b32 v25, 2, v25')
    g('v_sub_u32 v24, v24, v25')
    g(f'v_mov_b32 v25, {NEGBIG:#x}')
    g('s_mov_b32 s60, 0')
    g('s_mov_b32 s61, -1')
    QL = 30 + 170
    g(f'v_mov_b32 v{QL}, v1')

    def set_mask(dst, kind):
        for r in range(16):
            br_ = (r & 3) + 8 * (r >> 2)
            op = 'v_cmp_le_i32' if kind == 'diag' else 'v_cmp_gt_i32'
            g(f'{op} vcc, {br_}, v24')
            g('s_nop 1')
            g(f'v_cndmask_b32_e64 v{dst+r}, v25, 0, vcc')
    def dma4(vreg, s, s_goff, s_m0, n=4, first=0):
        g(f's_mov_b32 m0, {s_m0}')
        g('s_nop 0')
        for i in range(first, first + n):
            g(f'buffer_load_dwordx4 v{vreg}, s[{s}:{s+3}], {s_goff} offen offset:{i*1024}{LD()} lds')
    def stage_full(st):
        g(f's_add_u32 s48, s46, {st*32768}')
        g(f's_add_u32 s49, s46, {(st&3)*32768}')
        dma4(2, 32, 's48', 's49')
        g('s_add_u32 s48, s48, 16384')
        g('s_add_u32 s49, s49, 16384')
        dma4(2, 32, 's48', 's49')

    g('s_cmp_eq_u32 s43, 0')
    g('s_cbranch_scc0 Lattn_pre1')
    srd(g, 56, 20, 21, 0x1000000)
    set_mask(MASK, 'diag')
    stamp(g, 5)
    g('s_barrier')
    g('s_branch Lattn_go')
    g.label('Lattn_pre1')
    set_mask(MASK, 'first')
    if OPT.get('prio') == 'kh1': g('s_setprio 1')
    g('s_waitcnt vmcnt(0)')
    g('v_cmp_ne_u32 vcc, 16, v201')
    g('s_nop 4')
    g('s_cbranch_vccz Lh1_polled')
    spin_until(g, 201, 203, 16)
    g.label('Lh1_polled')
    stamp(g, 5)
    g('s_add_u32 s47, s44, 0x200000')
    dma4(2, 24, 's47', 's51', n=2)
    stage_full(0)
    stage_full(1)
    g('s_waitcnt vmcnt(8)')
    g('s_barrier')
    stage_full(2)
    stage_full(3)
    g.label('Lattn_go')
    stamp(g, 6)
    g(f'ds_read_b128 {vr(QB,4)}, v{QL}')
    g(f'ds_read_b128 {vr(QB+4,4)}, v{QL} offset:1024')

    def rowmax(sbuf, t):
        g(f'v_max3_f32 v{t}, v{sbuf}, v{sbuf+1}, v{sbuf+2}')
        for r in range(3, 15, 2):
            g(f'v_max3_f32 v{t}, v{t}, v{sbuf+r}, v{sbuf+r+1}')
        g(f'v_max_f32 v{t}, v{t}, v{sbuf+15}')
        g(f'v_mov_b32 v{t+1}, v{t}')
        g('s_nop 1')
        g(f'v_permlane32_swap_b32 v{t}, v{t+1}')
        g('s_nop 1')
        g(f'v_max_f32 v{t}, v{t}, v{t+1}')
    def set_standin(sbuf, q, mneg):
        t = T
        rowmax(sbuf, t)
        g(f'v_sub_f32 v{t}, 0, v{t}')
        g(f'v_cvt_pk_bf16_f32 v{t}, v{t}, 0')
        g(f'v_lshlrev_b32 v{mneg}, 16, v{t}')
        g('s_mov_b64 exec, s[60:61]')
        g(f'v_mov_b32 v{q+4+2}, v{t}')
        g('s_mov_b64 exec, -1')
    def write_partial(O, mn):
        for i in range(4): g(f'ds_write_b128 v6, {vr(O+4*i,4)} offset:{i*1024}')
        g(f'ds_write_b32 v7, v{mn}')
    FB = 144
    def finish(tag, br, O, mn, q, tmp):
        for i in range(4): g(f'ds_read_b128 {vr(tmp+4*i,4)}, v6 offset:{i*1024}')
        g(f'ds_read_b32 v{T}, v7')
        g('s_waitcnt lgkmcnt(0)')
        g(f'v_min_f32 v{T+1}, v{mn}, v{T}')
        g(f'v_sub_f32 v{T+2}, v{T+1}, v{mn}')
        g(f'v_sub_f32 v{T+3}, v{T+1}, v{T}')
        g(f'v_exp_f32 v{T+2}, v{T+2}')
        g(f'v_exp_f32 v{T+3}, v{T+3}')
        g('s_nop 0')
        for r in range(16): g(f'v_mul_f32 v{O+r}, v{O+r}, v{T+2}')
        for r in range(16): g(f'v_fmac_f32 v{O+r}, v{tmp+r}, v{T+3}')
        g(f'v_mov_b32 v{T}, v{O+12}')
        g(f'v_mov_b32 v{T+1}, v{O+12}')
        g(f'v_mul_f32 v{T+4}, 0, v{O}')
        g(f'v_fmac_f32 v{T+4}, 0, v{O+1}')
        g(f'v_permlane32_swap_b32 v{T}, v{T+1}')
        for r in range(2, 16): g(f'v_fmac_f32 v{T+4}, 0, v{O+r}')
        g(f'v_add_f32 v{T+4}, v{T+4}, v{T+1}')
        g(f's_mov_b32 s47, {f32bits(2.0**100):#x}')
        g(f'v_cmp_ngt_f32 vcc, s47, v{T+4}')
        g('s_nop 4')
        g(f's_cbranch_vccz L{tag}_ok')
        fallback(tag, br, O, q)
        g(f'v_mov_b32 v{T}, v{O+12}')
        g(f'v_mov_b32 v{T+1}, v{O+12}')
        g('s_nop 1')
        g(f'v_permlane32_swap_b32 v{T}, v{T+1}')
        g('s_nop 1')
        g.label(f'L{tag}_ok')
        g(f'v_rcp_f32 v{T+1}, v{T+1}')
        g('s_nop 0')
        for r in range(16): g(f'v_mul_f32 v{O+r}, v{O+r}, v{T+1}')
        for i in range(8): g(f'v_cvt_pk_bf16_f32 v{tmp+i}, v{O+2*i}, v{O+2*i+1}')
        g('s_mov_b64 exec, s[60:61]')
        g(f'v_mov_b32 v{tmp+6}, 0')
        g(f'v_mov_b32 v{tmp+7}, 0')
        g('s_mov_b64 exec, -1')
        g('s_lshl_b32 s47, s41, 2')
        g('s_add_u32 s47, s47, s42')
        g(f's_add_u32 s47, s47, {br*64}')
        g('s_lshl_b32 s47, s47, 4')
        g('s_add_u32 s47, s47, s40')
        g('s_lshl_b32 s47, s47, 11')
        g('s_nop 0')
        g(f'buffer_store_dwordx4 {vr(tmp,4)}, v2, s[36:39], s47 offen{ST()}')
        g(f'buffer_store_dwordx4 {vr(tmp+4,4)}, v2, s[36:39], s47 offen offset:1024{ST()}')
        g('s_nop 1')
    def fallback(tag, br, O, q):
        FS, FK, FV, FP, FQ, Fm = FB, FB+16, FB+24, FB+32, FB+40, FB+48
        s = 28 if br == 0 else 32
        for i in range(8): g(f'v_mov_b32 v{FQ+i}, v{q+i}')
        g('s_mov_b64 exec, s[60:61]')
        g(f'v_mov_b32 v{FQ+6}, 0')
        g('s_mov_b64 exec, -1')
        for r in range(16): g(f'v_mov_b32 v{O+r}, 0')
        g(f'v_mov_b32 v{Fm}, v25')
        if br == 0:
            g('s_lshl_b32 s52, s41, 2')
            g('s_add_u32 s52, s52, s42')
            g('s_sub_u32 s53, s52, 8')
            g('s_mov_b32 s54, s52')
        else:
            g('s_mov_b32 s54, 63')
        g.label(f'L{tag}_fb_loop')
        g('s_lshl_b32 s55, s54, 12')
        for i in range(2):
            g(f'buffer_load_dwordx4 {vr(FK+4*i,4)}, v2, s[{s}:{s+3}], s55 offen offset:{i*1024}{LD()}')
            g(f'buffer_load_dwordx4 {vr(FV+4*i,4)}, v2, s[{s}:{s+3}], s55 offen offset:{2048+i*1024}{LD()}')
        if br == 0:
            g('s_cmp_eq_u32 s54, s52')
            g(f's_cbranch_scc1 L{tag}_fb_diag')
            g('s_cmp_eq_u32 s54, s53')
            g(f's_cbranch_scc1 L{tag}_fb_first')
        for r in range(16): g(f'v_mov_b32 v{FS+r}, 0')
        if br == 0:
            g(f's_branch L{tag}_fb_go')
            g.label(f'L{tag}_fb_diag')
            set_mask(FS, 'diag')
            g(f's_branch L{tag}_fb_go')
            g.label(f'L{tag}_fb_first')
            set_mask(FS, 'first')
            g.label(f'L{tag}_fb_go')
        g('s_waitcnt vmcnt(0)')
        g('s_nop 1')
        g(mfma(FS, FK, FQ, FS))
        g(mfma(FS, FK+4, FQ+4, FS))
        g('s_nop 15')
        rowmax(FS, Fm+1)
        g(f'v_max_f32 v{Fm+1}, v{Fm+1}, v{Fm}')
        g(f'v_sub_f32 v{Fm+2}, v{Fm}, v{Fm+1}')
        g(f'v_exp_f32 v{Fm+2}, v{Fm+2}')
        g(f'v_mov_b32 v{Fm}, v{Fm+1}')
        for r in range(16): g(f'v_sub_f32 v{FS+r}, v{FS+r}, v{Fm}')
        for r in range(16): g(f'v_exp_f32 v{FS+r}, v{FS+r}')
        for r in range(16): g(f'v_mul_f32 v{O+r}, v{O+r}, v{Fm+2}')
        for i in range(8): g(f'v_cvt_pk_bf16_f32 v{FP+i}, v{FS+2*i}, v{FS+2*i+1}')
        g('s_nop 1')
        g(mfma(O, FV, FP, O))
        g(mfma(O, FV+4, FP+4, O))
        g('s_nop 15')
        g('s_sub_u32 s54, s54, 1')
        g('s_cmp_lt_i32 s54, 0')
        g(f's_cbranch_scc1 L{tag}_fb_end')
        if br == 0:
            g('s_cmp_lt_i32 s54, s53')
            g(f's_cbranch_scc1 L{tag}_fb_end')
        g(f's_branch L{tag}_fb_loop')
        g.label(f'L{tag}_fb_end')

    g('s_cmp_eq_u32 s43, 0')
    g('s_cbranch_scc0 Lattn_kh1')

    def wo_prefetch():
        sk = newlab('wo')
        g('s_cmp_ge_u32 s2, 224')
        g(f's_cbranch_scc1 {sk}')
        g('s_bfe_u32 s50, s2, 0x10002')
        g('s_cmp_eq_u32 s50, 0')
        g('s_cselect_b32 s56, s8, s14')
        g('s_cselect_b32 s57, s9, s15')
        g(f's_mov_b32 s58, {448*896}')
        g('s_mov_b32 s59, 0x20000')
        g('v_lshrrev_b32 v30, 3, v0')
        g('v_and_b32 v31, 7, v0')
        g('v_and_b32 v1, 2, v30')
        g('v_lshlrev_b32 v1, 1, v1')
        g('v_xor_b32 v31, v31, v1')
        g('s_lshl_b32 s50, s42, 3')
        g('v_add_u32 v30, s50, v30')
        g('v_mul_u32_u24 v30, 896, v30')
        g('v_lshl_add_u32 v30, v31, 4, v30')
        g('s_lshr_b32 s50, s2, 5')
        g('s_lshl_b32 s50, s50, 7')
        g('v_add_u32 v30, s50, v30')
        g('s_lshl_b32 s52, s42, 10')
        for it in range(15):
            if it == 14:
                g('s_cmp_ge_u32 s42, 1')
                g(f's_cbranch_scc1 {sk}')
            g(f's_add_u32 m0, s52, {65536 + it*4096}')
            if it == 14:
                g(f'v_add_u32 v31, {it*32*896}, v30')
                g('buffer_load_dwordx4 v31, s[56:59], 0 offen lds')
            else:
                g(f's_mov_b32 s50, {it*32*896}')
                g('buffer_load_dwordx4 v30, s[56:59], s50 offen lds')
        g.label(sk)

    def path(kh):
        tag = f'K{kh}'
        unitsA = [8, 7, 6, 5, 4] if kh == 0 else [3, 2, 1, 0]
        nA = len(unitsA); N = 32 + nA
        def unit(i):
            if i >= 32:
                u = unitsA[i - 32]
                masked = (kh == 0 and u == 8) or (kh == 1 and u == 0)
                return dict(base=3, off=u*4096, Q=QA, O=OA, C=MASK if masked else None, first=(i == 32))
            return dict(b=i, Q=QB, O=OB, C=None, first=(i == 0))
        def addr(i, cs):
            u = unit(i)
            if 'base' in u: return u['base'], u['off']
            b = u['b']; s = b >> 2
            if s == cs: return 4, (b & 3) * 4096
            assert s == cs + 1
            return 5, (b & 3) * 4096
        def rdK(i, cs, dst=KF):
            r, off = addr(i, cs)
            g(f'ds_read_b128 {vr(dst,4)}, v{r} offset:{off}')
            g(f'ds_read_b128 {vr(dst+4,4)}, v{r} offset:{off+1024}')
        def rdV(i, f, cs):
            r, off = addr(i, cs)
            g(f'ds_read_b128 {vr(VF+4*f,4)}, v{r} offset:{off+2048+f*1024}')
        rdK(0, 0)
        g('s_waitcnt lgkmcnt(0)')
        g(mfma(S0, KF, QB, None))
        g(mfma(S0, KF+4, QB+4, S0))
        g('s_nop 15')
        set_standin(S0, QB, MNB)
        g('s_nop 1')
        g(mfma(S0, KF, QB, None))
        g(mfma(S0, KF+4, QB+4, S0))
        rdK(1, 0)
        rdV(0, 0, 0)
        g('s_nop 15')
        if kh == 0: stamp(g, 7)
        if OPT.get('attst'): stamp(g, 2, q=True)
        g('s_lshl_b32 s55, s3, 12')
        def dma_slot(i, inloop):
            if i >= 34 or i < 6: return
            ph = (i - 2) & 3; st = ((i - 2) >> 2) + 3
            if i == 18:
                g('buffer_load_dword v201, v31, s[64:67], 0 offen sc1')
            if st <= 7:
                if ph == 0:
                    g(f's_add_u32 s54, s55, {st*32768}')
                    g(f's_add_u32 m0, s55, {(st&3)*32768}')
                    g('s_nop 0')
                g(f'buffer_load_dwordx4 v2, s[32:35], s54 offen offset:{ph*1024}{LD()} lds')
            elif st == 8:
                if ph == 0:
                    ok = newlab('aok')
                    g('v_cmp_ne_u32 vcc, 16, v201')
                    g('s_nop 4')
                    g(f's_cbranch_vccz {ok}')
                    spin_until(g, 201, 31, 16)
                    g.label(ok)
                    if kh == 1:
                        g('s_add_u32 s47, s51, 8192')
                        dma4(2, 24, 's44', 's47', n=2)
                    g('s_mov_b32 m0, s55')
                    g('s_nop 0')
                g(f'buffer_load_dwordx4 v28, s[28:31], 0 offen offset:{ph*1024}{LD()} lds')
            elif st == 9 and ph == 0 and kh == 0:
                g('s_add_u32 m0, s55, 32768')
                g('s_nop 0')
                for k in range(4):
                    g(f'buffer_load_dwordx4 v29, s[28:31], 0 offen offset:{k*1024}{LD()} lds')
        def body(i, cs, inloop=False):
            u = unit(i)
            sb = SB[i & 1]; sn = SB[(i + 1) & 1]
            e = [f'v_exp_f32 v{sb+r}, v{sb+r}' for r in range(16)]
            c = [f'v_cvt_pk_bf16_f32 v{P+k}, v{sb+2*k}, v{sb+2*k+1}' for k in range(8)]
            has1 = i + 1 < N; has2 = i + 2 < N
            if i < 32 and (i & 3) == 2:
                s = i >> 2
                if s == 7: vm = 0
                elif s == 0: vm = 16 if kh == 1 else None
                elif s == 1: vm = 8 if kh == 1 else None
                elif s == 2: vm = 4 if kh == 1 else None
                else: vm = 4
                if OPT.get('attst') and s in (0, 1, 2, 3, 5, 7): stamp(g, {0: 3, 1: 5, 2: 7, 3: 9, 5: 11, 7: 13}[s], q=True)
                g(f's_waitcnt vmcnt({vm}) lgkmcnt(0)' if vm is not None else 's_waitcnt lgkmcnt(0)')
                g('s_barrier')
                if OPT.get('attst') and s in (0, 1, 2, 3, 5, 7): stamp(g, {0: 4, 1: 6, 2: 8, 3: 10, 5: 12, 7: 14}[s], q=True)
                if s == 3 and kh == 1:
                    sk = newlab('sigA')
                    g('s_cmp_lg_u32 s3, 4')
                    g(f's_cbranch_scc1 {sk}')
                    g('s_mov_b64 exec, 1')
                    g('v_mov_b32 v1, 1')
                    g('s_lshl_b32 s47, s23, 8')
                    g('v_mov_b32 v202, s47')
                    g('buffer_atomic_add v1, v202, s[64:67], 0 offen sc1')
                    g('s_mov_b64 exec, -1')
                    g.label(sk)
                if s == 6:
                    g(f'ds_read_b128 {vr(QA,4)}, v{QL} offset:8192')
                    g(f'ds_read_b128 {vr(QA+4,4)}, v{QL} offset:9216')
                if s == 7:
                    rdK(32, cs, TK)
                    g('s_waitcnt lgkmcnt(0)')
                    g(mfma(TS, TK, QA, unit(32)['C']))
                    g(mfma(TS, TK+4, QA+4, TS))
                    g('s_nop 15')
                    set_standin(TS, QA, MNA)
                    if kh == 1:
                        g('s_lshl_b32 s47, s41, 2')
                        g('s_add_u32 s47, s47, s42')
                        g('s_cmp_lt_u32 s47, 5')
                        g(f's_cbranch_scc0 L{tag}_valid')
                        g(f'v_mov_b32 v{MNA}, {POSBIG:#x}')
                        g.label(f'L{tag}_valid')
            elif i == 34:
                g('s_waitcnt lgkmcnt(0)')
                g('s_barrier')
                if kh == 1:
                    wo_prefetch()
                    finish('FB', 1, OB, MNB, QB, TS)
            else:
                g('s_waitcnt lgkmcnt(0)')
            if OPT.get('prio', 'lag') == 'lag':
                g(f's_setprio {3 - ((i - 2) & 3)}')
            g(e[0])
            if i > 0:
                up = unit(i - 1)
                g(mfma(up['O'], VF+4, P+4, up['O']))
            rdV(i, 1, cs)
            g(e[1]); g(e[2]); g(e[3])
            g(c[0])
            if i == 33 and kh == 0:
                write_partial(OB, MNB)
            if i == 1 and kh == 0:
                for t in range(3):
                    g(f'buffer_store_dwordx4 {vr(208+8*t,4)}, v2, s[56:59], s{(48,49,53)[t]} offen{ST()}')
                    g(f'buffer_store_dwordx4 {vr(212+8*t,4)}, v2, s[56:59], s{(48,49,53)[t]} offen offset:1024{ST()}')
            if has1:
                un = unit(i + 1)
                g(mfma(sn, KF, un['Q'], un['C']))
            g(e[4]); g(e[5]); g(c[1]); g(e[6]); g(e[7]); g(c[2])
            if has1:
                g(mfma(sn, KF+4, un['Q']+4, sn))
            if has2:
                rdK(i + 2, cs)
            g(e[8]); g(c[3]); g(e[9]); g(e[10])
            dma_slot(i, inloop)
            g(e[11])
            g(mfma(u['O'], VF, P, None if u['first'] else u['O']))
            if has1:
                rdV(i + 1, 0, cs)
            for x in e[12:16]: g(x)
            g(c[4]); g(c[5]); g(c[6]); g(c[7])
        def advance():
            g('v_mov_b32 v4, v5')
            g('v_add_u32 v5, 32768, v5')
            g('v_and_b32 v5, 0x1ffff, v5')
        return body, advance, N, tag
    for kh in (0, 1):
        if kh == 1: g.label('Lattn_kh1')
        body, advance, N, tag = path(kh)
        for s_ in range(7):
            for j in range(4): body(4*s_ + j, s_)
            advance()
        for j in range(4): body(28 + j, 7)
        if kh == 0: stamp(g, 8)
        for i in range(32, N): body(i, 7)
        g('s_waitcnt lgkmcnt(0)')
        g('s_nop 1')
        g(mfma(OA, VF+4, P+4, OA))
        g('s_nop 15')
        if kh == 1:
            write_partial(OA, MNA)
            g('s_waitcnt lgkmcnt(0)')
            g('s_barrier')
        else:
            g('s_barrier')
            finish('FA', 0, OA, MNA, QA, MASK)
            g('s_branch Lattn_fin')
    g.label('Lattn_fin')
    stamp(g, 9)

def phase_proj(g):
    g('s_waitcnt vmcnt(0)')
    g('s_barrier')
    stamp(g, 10)
    g('s_cmp_lg_u32 s3, 0')
    g('s_cbranch_scc1 Lh2_a')
    g('s_mov_b64 exec, 1')
    g('v_mov_b32 v1, 1')
    g('s_lshl_b32 s47, s41, 8')
    g(f's_add_u32 s47, s47, {CNT_O}')
    g('v_mov_b32 v30, s47')
    g('buffer_atomic_add v1, v30, s[64:67], 0 offen sc1')
    g('s_mov_b64 exec, -1')
    g.label('Lh2_a')
    g('s_cmp_ge_u32 s2, 224')
    g('s_cbranch_scc1 Lend')
    g('s_and_b32 s45, s2, 7')
    g('s_lshr_b32 s46, s2, 3')
    g('s_lshr_b32 s40, s45, 2')
    g('s_and_b32 s41, s45, 3')
    g('s_lshl_b32 s41, s41, 2')
    g('s_and_b32 s42, s46, 3')
    g('s_add_u32 s41, s41, s42')
    g('s_lshr_b32 s42, s46, 2')
    g('s_and_b32 s43, s3, 3')
    g('s_lshr_b32 s44, s3, 2')
    srd(g, 24, 16, 17, 2048 * 1792)
    g('s_lshl_b32 s45, s40, 6')
    g('s_lshl_b32 s46, s41, 2')
    g('s_add_u32 s45, s45, s46')
    g('s_add_u32 s45, s45, s43')
    g('s_lshl_b32 s45, s45, 15')
    g('s_lshl_b32 s46, s44, 14')
    g('s_add_u32 s45, s45, s46')
    g('v_bfe_u32 v4, v0, 2, 2')
    g('v_and_b32 v5, 3, v0')
    g('v_bfe_u32 v7, v0, 4, 1')
    g('v_lshrrev_b32 v6, 5, v0')
    g('v_lshlrev_b32 v7, 5, v7')
    g('v_lshl_add_u32 v7, v5, 3, v7')
    g('v_lshrrev_b32 v11, 4, v7')
    g('v_and_b32 v8, 2, v4')
    g('v_lshlrev_b32 v8, 1, v8')
    g('v_xor_b32 v11, v11, v8')
    g('v_and_b32 v7, 15, v7')
    g('v_lshl_add_u32 v7, v11, 4, v7')
    g('v_lshl_add_u32 v4, v6, 2, v4')
    g('v_lshl_add_u32 v9, v4, 7, v7')
    g('s_mul_i32 s46, s44, 28672')
    g('s_add_u32 s46, s46, 65536')
    g('v_add_u32 v9, s46, v9')
    g('v_xor_b32 v10, 64, v9')
    g('s_lshl_b32 s46, s43, 1')
    g('s_add_u32 s46, s46, s44')
    g('s_lshl_b32 s46, s46, 12')
    g('v_add_u32 v12, s46, v2')
    g('v_xor_b32 v13, 4096, v12')
    g('s_cmp_lg_u32 s3, 0')
    g('s_cbranch_scc1 Lh2_wait')
    g('s_lshl_b32 s47, s41, 8')
    g(f's_add_u32 s47, s47, {CNT_O}')
    g('v_mov_b32 v30, s47')
    spin_until(g, 1, 30, 16)
    g.label('Lh2_wait')
    g('s_barrier')
    stamp(g, 11)
    OF = 64; ACC = 16; WF = 48
    for n in range(16):
        if n % 4 == 0 and n > 0: g('s_add_u32 s45, s45, 4096')
        g(f'buffer_load_dwordx4 {vr(OF+4*n,4)}, v2, s[36:39], s45 offen offset:{(n%4)*1024}{LD()}')
    def rd(n, buf):
        h, i = divmod(n, 2)
        for ct in range(2):
            for jj in range(2):
                off = (28*h + 16*i + 8*jj) * 128
                g(f'ds_read_b64_tr_b16 {vr(WF+8*buf+4*ct+2*jj,2)}, v{9+ct} offset:{off}')
    rd(0, 0)
    for n in range(16):
        if n + 1 < 16: rd(n + 1, (n + 1) & 1)
        g(f's_waitcnt vmcnt({15-n}) lgkmcnt({4 if n + 1 < 16 else 0})')
        for ct in range(2):
            g(mfma(ACC + 16*ct, WF + 8*(n & 1) + 4*ct, OF + 4*n, None if n == 0 else ACC + 16*ct))
    g('s_nop 15')
    stamp(g, 12)
    g('s_cmp_eq_u32 s44, 0')
    g('s_cbranch_scc0 Lpj_k1')
    for i in range(4): g(f'ds_write_b128 v12, {vr(ACC+16+4*i,4)} offset:{i*1024}')
    g('s_branch Lpj_k2')
    g.label('Lpj_k1')
    for i in range(4): g(f'ds_write_b128 v12, {vr(ACC+4*i,4)} offset:{i*1024}')
    for r in range(16): g(f'v_mov_b32 v{ACC+r}, v{ACC+16+r}')
    g.label('Lpj_k2')
    g('s_waitcnt lgkmcnt(0)')
    g('s_barrier')
    for i in range(4): g(f'ds_read_b128 {vr(64+4*i,4)}, v13 offset:{i*1024}')
    g('v_and_b32 v4, 31, v0')
    g('s_lshl_b32 s46, s41, 7')
    g('s_lshl_b32 s47, s43, 5')
    g('s_add_u32 s46, s46, s47')
    g('v_add_u32 v4, s46, v4')
    g('v_mul_u32_u24 v4, 1792, v4')
    g('v_lshl_add_u32 v4, v6, 4, v4')
    g('s_mul_i32 s46, s40, 896')
    g('s_lshl_b32 s47, s42, 7')
    g('s_add_u32 s46, s46, s47')
    g('s_lshl_b32 s47, s44, 6')
    g('s_add_u32 s46, s46, s47')
    g('s_waitcnt lgkmcnt(0)')
    for r in range(16): g(f'v_add_f32 v{ACC+r}, v{ACC+r}, v{64+r}')
    P = 48
    for i in range(8): g(f'v_cvt_pk_bf16_f32 v{P+i}, v{ACC+2*i}, v{ACC+2*i+1}')
    g('s_nop 1')
    for k in range(2):
        a = P + 4*k
        g(f'v_permlane32_swap_b32 v{a}, v{a+2}')
        g(f'v_permlane32_swap_b32 v{a+1}, v{a+3}')
    g('s_nop 1')
    for k in range(2):
        g(f'buffer_store_dwordx4 {vr(P+4*k,4)}, v4, s[24:27], s46 offen offset:{32*k}')

HEADER = '''; Kernarg layout for this problem (72 bytes, ptrs only, base s[0:1]):
'''
def main(out):
    g = Gen()
    g.raw(f'.globl {NAME}')
    g.raw('.p2align 8')
    g.raw(f'.type {NAME},@function')
    g.label(NAME)
    g('s_cmp_ge_u32 s2, 256')
    g('s_cbranch_scc1 Lexit')
    if OPT.get('tl'):
        for r in range(70, 102): g(f's_mov_b32 s{r}, 0')
    stamp(g, 0); stamp(g, 15, True)
    g('s_load_dwordx16 s[4:19], s[0:1], 0')
    g('s_load_dwordx2 s[20:21], s[0:1], 64')
    g('v_lshrrev_b32 v1, 6, v0')
    g('v_and_b32 v0, 63, v0')
    g('s_nop 0')
    g('v_readfirstlane_b32 s3, v1')
    prologue(g)
    qkv_compute(g)
    qkv_loader(g)
    phase_attn(g)
    phase_proj(g)
    g.label('Lend')
    if OPT['stamps'] or OPT.get('tl'): g('s_waitcnt vmcnt(0)')
    stamp(g, 13)
    if OPT.get('tl'):
        sk = newlab('tl')
        g('s_cmp_lg_u32 s3, 0')
        g(f's_cbranch_scc1 {sk}')
        g('s_waitcnt lgkmcnt(0)')
        srd(g, 56, 18, 19, 256)
        g('s_mov_b64 exec, 1')
        g('s_not_b32 s68, s70')
        g('v_mov_b32 v1, s68')
        g('v_mov_b32 v3, 0')
        g('buffer_atomic_umax v1, v3, s[56:59], 0 offen offset:4')
        for k, i in enumerate((0, 2, 3, 4, 6, 8, 9, 10, 11, 12, 13)):
            g(f'v_mov_b32 v{4+k}, s{70+2*i}')
            g(f'buffer_atomic_umax v{4+k}, v3, s[56:59], 0 offen offset:{8+4*k}')
        g('s_waitcnt vmcnt(0)')
        g.label(sk)
    if OPT['stamps']: g('s_memrealtime s[72:73]')
    stamp_dump(g)
    g.label('Lexit')
    g('s_endpgm')
    txt = HEADER + f'; @launch grid=(256,1,1) block=(512,1,1) lds={LDS_BYTES}\n'
    txt += '.amdgcn_target "amdgcn-amd-amdhsa--gfx950"\n.text\n' + g.text()
    txt += f'''.section .rodata,"a"
.p2align 6
.amdhsa_kernel {NAME}
  .amdhsa_next_free_vgpr 232
  .amdhsa_next_free_sgpr 102
  .amdhsa_accum_offset 232
  .amdhsa_group_segment_fixed_size 0
  .amdhsa_kernarg_size 72
  .amdhsa_user_sgpr_count 2
  .amdhsa_user_sgpr_kernarg_segment_ptr 1
  .amdhsa_system_sgpr_workgroup_id_x 1
.end_amdhsa_kernel
'''
    open(out, 'w').write(txt)

if __name__ == '__main__':
    out = sys.argv[1] if len(sys.argv) > 1 else 'concat_heads__sliding_block__softmax_full_mha__prompt.s'
    for a in sys.argv[2:]:
        if '=' in a:
            k, v = a.split('=', 1)
            OPT[k] = v if k in ('st', 'ld', 'prio') else (int(v) if v.isdigit() else v)
        else:
            OPT[a] = True
    main(out)
```

```python
import sys, math, struct

def f32bits(x): return struct.unpack('<I', struct.pack('<f', x))[0]

class Gen:
    def __init__(self): self.lines = []
    def __call__(self, s):
        for l in s.split('\n'):
            l = l.strip()
            if l: self.lines.append('  ' + l)
    def label(self, s): self.lines.append(s + ':')
    def raw(self, s): self.lines.append(s)
    def text(self): return '\n'.join(self.lines) + '\n'

def vr(base, n): return f'v[{base}:{base+n-1}]'
def mfma(d, a, b, c):
    cs = '0' if c is None else vr(c, 16)
    return f'v_mfma_f32_32x32x16_bf16 {vr(d,16)}, {vr(a,4)}, {vr(b,4)}, {cs}'

OPT = dict(stamps=False, st='sc1', ld='', spin=200000)
NAME = 'concat_heads__sliding_block__softmax_full_mha__prompt_kernel'
STAMP_BASE = 0x2000000
def stamp(g, i, real=False, q=False):
    if OPT.get('tl'):
        if i in (0, 2, 3, 4, 6, 8, 9, 10, 11, 12, 13): g(f's_memrealtime s[{70+2*i}:{71+2*i}]')
        return
    if not OPT['stamps']: return
    import inspect
    if OPT.get('qkvst') and 5 <= i <= 13:
        caller = inspect.stack()[1].function
        if caller != 'qkv_compute': return
    if OPT.get('attst') and 2 <= i <= 14 and not q: return
    op = 's_memrealtime' if real else 's_memtime'
    g(f'{op} s[{70+2*i}:{71+2*i}]')
def stamp_dump(g):
    if not OPT['stamps']: return
    g('s_waitcnt lgkmcnt(0) vmcnt(0)')
    g(f's_add_u32 s64, s20, {STAMP_BASE}')
    g(f's_addc_u32 s65, s21, 0')
    g('s_mov_b32 s66, 0x100000')
    g('s_mov_b32 s67, 0x20000')
    g('s_mov_b64 exec, -1')
    g('v_mov_b32 v1, 0')
    for i in range(16):
        g(f'v_writelane_b32 v1, s{70+2*i}, {i}')
    g('s_lshl_b32 s68, s2, 3')
    g('s_add_u32 s68, s68, s3')
    g('s_lshl_b32 s68, s68, 6')
    g('v_lshlrev_b32 v3, 2, v0')
    g('v_cmp_gt_u32 vcc, 16, v0')
    g('s_and_saveexec_b64 s[62:63], vcc')
    g('buffer_store_dword v1, v3, s[64:67], s68 offen')
    g('s_waitcnt vmcnt(0)')

WS_Q = 0
WS_KV = 0x400000
WS_O = 0xC00000
WS_CNT = 0x1000000
CNT_A, CNT_B, CNT_OA, CNT_OB = 0, 16 * 256, 32 * 256, 48 * 256
QSCALE = (28 ** -0.5) * math.log2(math.e)
NEGBIG = 0xf149f2ca
POSBIG = 0x7149f2ca
LDS_BYTES = 163840

def srd(g, dst, lo, hi, nbytes, add=0):
    if add:
        g(f's_add_u32 s{dst}, s{lo}, {add}')
        g(f's_addc_u32 s{dst+1}, s{hi}, 0')
    else:
        g(f's_mov_b32 s{dst}, s{lo}')
        g(f's_mov_b32 s{dst+1}, s{hi}')
    g(f's_mov_b32 s{dst+2}, {nbytes}')
    g(f's_mov_b32 s{dst+3}, 0x20000')
def ST(): return (' ' + OPT['st']) if OPT['st'] else ''
def LD(): return (' ' + OPT['ld']) if OPT['ld'] else ''
lab = [0]
def newlab(p):
    lab[0] += 1
    return f'L{p}_{lab[0]}'

def spin_until(g, vdst, voff, target):
    l0 = newlab('poll'); l1 = newlab('pdone')
    g(f's_mov_b32 s68, {OPT["spin"]}')
    g.label(l0)
    g(f'buffer_load_dword v{vdst}, v{voff}, s[64:67], 0 offen sc1')
    g('s_waitcnt vmcnt(0)')
    g(f'v_cmp_ne_u32 vcc, {target}, v{vdst}')
    g('s_nop 4')
    g(f's_cbranch_vccz {l1}')
    g('s_sleep 1')
    g('s_sub_u32 s68, s68, 1')
    g('s_cmp_lg_u32 s68, 0')
    g(f's_cbranch_scc1 {l0}')
    g.label(l1)

WROW = 176
WSTG = 64 * WROW
NCH = 14
def prologue(g):
    g('s_and_b32 s40, s2, 7')
    g('s_lshr_b32 s41, s2, 3')
    g('s_lshr_b32 s22, s40, 1')
    g('s_lshl_b32 s22, s22, 2')
    g('s_and_b32 s42, s41, 3')
    g('s_add_u32 s22, s22, s42')
    g('s_and_b32 s23, s40, 1')
    g('s_lshl_b32 s23, s23, 3')
    g('s_lshr_b32 s42, s41, 2')
    g('s_add_u32 s23, s23, s42')
    g('s_add_u32 s69, s23, 1')
    g('s_and_b32 s69, s69, 7')
    g('s_and_b32 s42, s23, 8')
    g('s_or_b32 s69, s69, s42')
    g('s_cmp_ge_u32 s3, 4')
    g('s_cbranch_scc1 Lloader')

def kvb_srd(g):
    g('s_and_b32 s40, s2, 7')
    g('s_bfe_u32 s41, s2, 0x10003')
    g('s_lshl_b32 s40, s40, 1')
    g('s_add_u32 s40, s40, s41')
    g('s_lshl_b32 s47, s40, 18')
    g(f's_add_u32 s47, s47, {WS_KV + 0x400000}')
    g('s_add_u32 s32, s20, s47')
    g('s_addc_u32 s33, s21, 0')
    g('s_mov_b32 s34, 0x40000')
    g('s_mov_b32 s35, 0x20000')
    g('s_lshl_b32 s55, s3, 12')
def stage_tile(g, st):
    g(f's_add_u32 s54, s55, {st*32768}')
    g(f's_add_u32 m0, s55, {(st&3)*32768}')
    g('s_nop 0')
    for i in range(4):
        g(f'buffer_load_dwordx4 v2, s[32:35], s54 offen offset:{i*1024}{LD()} lds')
def init_dma_compute(g):
    kvb_srd(g)
    stage_tile(g, 0)
    stage_tile(g, 1)

def qkv_compute(g):
    g('v_and_b32 v4, 31, v0')
    g('s_lshl_b32 s44, s3, 5')
    g('v_add_u32 v4, s44, v4')
    g('v_lshlrev_b32 v4, 7, v4')
    g('v_bfe_u32 v5, v0, 1, 3')
    g('v_lshrrev_b32 v6, 5, v0')
    for ks in range(4):
        g(f'v_add_u32 v7, {2*ks}, v6')
        g('v_xor_b32 v7, v7, v5')
        g(f'v_lshl_add_u32 v{12+ks}, v7, 4, v4')
    g('v_bfe_u32 v4, v0, 2, 2')
    g('v_and_b32 v5, 3, v0')
    g('v_bfe_u32 v7, v0, 4, 1')
    g('v_lshlrev_b32 v7, 5, v7')
    g('v_lshl_add_u32 v7, v5, 3, v7')
    g('v_lshlrev_b32 v4, 1, v4')
    g('v_add_u32 v4, v4, v6')
    g(f'v_mul_u32_u24 v4, {2*WROW}, v4')
    g('v_add_u32 v4, v4, v7')
    g('v_add_u32 v16, 65536, v4')
    g('v_lshlrev_b32 v2, 4, v0')
    g('s_waitcnt lgkmcnt(0)')
    stamp(g, 1)
    srd(g, 32, 20, 21, 0x1000000)
    srd(g, 64, 20, 21, 0x4000, WS_CNT)
    g('s_or_b32 s44, s2, s3')
    g('s_cmp_lg_u32 s44, 0')
    g('s_cbranch_scc1 Lnoinit')
    g('v_lshlrev_b32 v20, 8, v0')
    g('v_mov_b32 v21, 0')
    g('buffer_store_dword v21, v20, s[64:67], 0 offen sc1')
    g('s_waitcnt vmcnt(0)')
    srd(g, 36, 18, 19, 256)
    g('s_mov_b64 exec, 1')
    g('v_mov_b32 v21, 1')
    g('v_mov_b32 v20, 0')
    g('buffer_store_dword v21, v20, s[36:39], 0 offen sc1')
    g('s_mov_b64 exec, -1')
    g.label('Lnoinit')
    srd(g, 36, 18, 19, 256)
    g('v_mov_b32 v30, 0')
    g('buffer_load_dword v31, v30, s[36:39], 0 offen sc1')
    def prefetch():
        if not OPT.get('pf', 1): return
        l1 = newlab('pf'); l2 = newlab('pf'); ld = newlab('pf')
        g('s_cmp_ge_u32 s3, 2')
        g(f's_cbranch_scc1 {l1}')
        srd(g, 24, 4, 5, 1835008)
        g('s_mul_i32 s46, s2, 7168')
        g('s_lshl_b32 s47, s3, 12')
        g('s_add_u32 s46, s46, s47')
        g('v_add_u32 v20, s46, v2')
        for i in range(4):
            g(f'buffer_load_dwordx4 v[{144+4*i}:{147+4*i}], v20, s[24:27], 0 offen offset:{i*1024}')
        g(f's_branch {ld}')
        g.label(l1)
        g('s_cmp_eq_u32 s3, 2')
        g(f's_cbranch_scc0 {l2}')
        srd(g, 24, 6, 7, 1204224)
        g('s_mul_i32 s46, s2, 4704')
        g('v_add_u32 v20, s46, v2')
        g('v_add_u32 v21, 4096, v20')
        for i in range(5):
            g(f'buffer_load_dwordx4 v[{144+4*i}:{147+4*i}], v{20 if i < 4 else 21}, s[24:27], 0 offen offset:{(i%4)*1024}')
        g(f's_branch {ld}')
        g.label(l2)
        g('s_mul_i32 s46, s2, 1568')
        g('v_add_u32 v20, s46, v2')
        srd(g, 24, 8, 9, 448*896)
        for i in range(2):
            g(f'buffer_load_dwordx4 v[{144+4*i}:{147+4*i}], v20, s[24:27], 0 offen offset:{i*1024}')
        srd(g, 28, 14, 15, 448*896)
        for i in range(2):
            g(f'buffer_load_dwordx4 v[{152+4*i}:{155+4*i}], v20, s[28:31], 0 offen offset:{i*1024}')
        g.label(ld)
    XF = 80; WF = 88
    ACCS = {1: 32, 0: 144}
    PS = {1: 112, 0: 208}
    g('v_and_b32 v18, 31, v0')
    g('v_cmp_eq_u32 vcc, 28, v18')
    g('v_mov_b32 v19, 0x3f803f80')
    g('s_nop 0')
    g('v_cndmask_b32_e64 v18, 0, v19, vcc')
    g('s_mov_b32 s60, 0')
    g('s_mov_b32 s61, -1')
    g('s_mov_b32 s58, 0xf0000000')
    g('s_mov_b32 s59, 0xf0000000')
    def reads(n, buf, part):
        kc, ks = divmod(n, 4)
        st = kc % 4
        if part == 0:
            g(f'ds_read_b128 {vr(XF+4*buf,4)}, v{12+ks} offset:{st*16384}')
        for jj in range(2):
            off = st * WSTG + (ks*16 + jj) * WROW + part * 56
            g(f'ds_read_b64_tr_b16 {vr(WF+12*buf+4*part+2*jj,2)}, v16 offset:{off}')
    def mfma1(br, buf, t, first, types2):
        types = types2[br]
        x = XF + 4*buf; wf = WF + 12*buf + 4*t; d = ACCS[br] + 16*t
        c = None if first else d
        g(mfma(d, wf, x, c) if types[t] == 'QK' else mfma(d, x, wf, c))
    def epilogue_list(br, types2):
        types = types2[br]
        c0 = 's52' if br else 's63'
        L = []
        A = L.append
        ACC = ACCS[br]; P = PS[br]
        A('s_lshl_b32 s54, s22, 2')
        A('s_add_u32 s54, s54, s3')
        if br: A('s_add_u32 s54, s54, 1024')
        for t in range(3):
            a = ACC + 16*t; p = P + 8*t
            so = (48, 49, 53)[t]
            A(f's_add_u32 s62, {c0}, {t}')
            A('s_and_b32 s56, s62, 15')
            A('s_lshl_b32 s56, s56, 6')
            A('s_add_u32 s56, s56, s54')
            if types[t] == 'QK':
                A('s_cmp_lt_u32 s62, 16\n' + f's_cselect_b32 s57, {f32bits(QSCALE):#x}, 1.0\n' + 's_cselect_b32 s45, 0, 0x3f80\n' +
                  's_cselect_b32 s46, 11, 12\n' + f's_cselect_b32 s47, {WS_Q}, {WS_KV}')
                A('s_lshl_b32 s56, s56, s46')
                A(f's_add_u32 s{so}, s56, s47')
                A('v_mov_b32 v19, s45')
                for r in range(16): A(f'v_mul_f32 v{a+r}, s57, v{a+r}')
                for i in range(8): A(f'v_cvt_pk_bf16_f32 v{p+i}, v{a+2*i}, v{a+2*i+1}')
                A(f'v_cndmask_b32_e64 v{p+6}, v{p+6}, v19, s[60:61]')
                A(f'v_cndmask_b32_e64 v{p+7}, v{p+7}, 0, s[60:61]')
            else:
                A('s_lshl_b32 s56, s56, 12')
                A(f's_add_u32 s{so}, s56, {WS_KV + 2048}')
                for i in range(8): A(f'v_cvt_pk_bf16_f32 v{p+i}, v{a+2*i}, v{a+2*i+1}')
                for i in range(8): A(f'v_cndmask_b32_e64 v{p+i}, v{p+i}, v18, s[58:59]')
            if br:
                A('s_nop 1\n' + f'buffer_store_dwordx4 {vr(p,4)}, v2, s[32:35], s{so} offen{ST()}')
                A(f'buffer_store_dwordx4 {vr(p+4,4)}, v2, s[32:35], s{so} offen offset:1024{ST()}')
        return L
    g('s_mul_i32 s52, s23, 3')
    g('s_mul_i32 s63, s69, 3')
    T0, T1, T2 = ('QK','QK','QK'), ('QK','QK','V'), ('V','V','V')
    variants = [{1: T0, 0: T0}, {1: T0, 0: T1}, {1: T1, 0: T2}, {1: T2, 0: T2}, {1: T2, 0: T0}]
    g('s_cmp_eq_u32 s23, 9')
    g('s_cbranch_scc1 Lqkv_v1')
    g('s_cmp_eq_u32 s23, 10')
    g('s_cbranch_scc1 Lqkv_v2')
    g('s_cmp_eq_u32 s23, 15')
    g('s_cbranch_scc1 Lqkv_v4')
    g('s_cmp_gt_u32 s23, 10')
    g('s_cbranch_scc1 Lqkv_v3')
    NS = NCH * 4
    SIG_AT = OPT.get('sig_at', 44)
    for vi, types in enumerate(variants):
        if vi: g.label(f'Lqkv_v{vi}')
        g('s_barrier')
        if vi == 0: stamp(g, 2)
        for part in range(3): reads(0, 0, part)
        prefetch()
        epi = []
        EP0, EPN = OPT.get('ep0', 28), OPT.get('epn', 4)
        def fill(k):
            for _ in range(k):
                if epi: g(epi.pop(0))
        for n in range(NS):
            br = 1 if n < 28 else 0
            boundary = (n + 1) % 4 == 0 and n + 1 < NS
            nxt = n + 1 < NS
            buf = n & 1
            first = n % 28 == 0
            if n == EP0:
                epi = ['s_nop 7'] + epilogue_list(1, types)
                per = -(-len(epi) // (EPN * 3))
            inter = EP0 <= n < EP0 + EPN
            if boundary:
                g('s_waitcnt vmcnt(0) lgkmcnt(0)' if n + 1 in (SIG_AT, 24) else 's_waitcnt lgkmcnt(0)')
                g('s_barrier')
                if OPT.get('qkvst') and vi == 0:
                    c1 = (n + 1) // 4
                    m = {2: 5, 4: 6, 6: 7, 8: 8, 10: 9, 11: 10, 12: 13}
                    if c1 in m: stamp(g, m[c1])
                if n + 1 == SIG_AT:
                    sk = newlab('sigB'); ok = newlab('inited'); lp = newlab('initspin')
                    g('s_cmp_lg_u32 s3, 0')
                    g(f's_cbranch_scc1 {sk}')
                    g('v_readfirstlane_b32 s47, v31')
                    g('s_cmp_lg_u32 s47, 0')
                    g(f's_cbranch_scc1 {ok}')
                    g(f's_mov_b32 s68, {OPT["spin"]}')
                    g.label(lp)
                    g('buffer_load_dword v31, v30, s[36:39], 0 offen sc1')
                    g('s_waitcnt vmcnt(0)')
                    g('v_readfirstlane_b32 s47, v31')
                    g('s_cmp_lg_u32 s47, 0')
                    g(f's_cbranch_scc1 {ok}')
                    g('s_sub_u32 s68, s68, 1')
                    g('s_cmp_lg_u32 s68, 0')
                    g(f's_cbranch_scc1 {lp}')
                    g.label(ok)
                    g('s_mov_b64 exec, 1')
                    g('v_mov_b32 v1, 1')
                    g('s_lshl_b32 s47, s23, 8')
                    g(f's_add_u32 s47, s47, {CNT_B}')
                    g('v_mov_b32 v29, s47')
                    g('buffer_atomic_add v1, v29, s[64:67], 0 offen sc1')
                    g('s_mov_b64 exec, -1')
                    g.label(sk)
            else:
                g('s_waitcnt lgkmcnt(4)')
            mfma1(br, buf, 0, first, types)
            if nxt: reads(n + 1, buf ^ 1, 0)
            if inter: fill(per)
            if not boundary: g(f's_waitcnt lgkmcnt({5 if nxt else 2})')
            mfma1(br, buf, 1, first, types)
            if nxt: reads(n + 1, buf ^ 1, 1)
            if inter: fill(per)
            if not boundary: g(f's_waitcnt lgkmcnt({5 if nxt else 0})')
            mfma1(br, buf, 2, first, types)
            if nxt: reads(n + 1, buf ^ 1, 2)
            if inter: fill(per)
            if n == 27 and vi == 0: stamp(g, 3)
        assert not epi
        if vi == 0: stamp(g, 14)
        g('s_barrier')
        if vi == 0: stamp(g, 4)
        init_dma_compute(g)
        for x in epilogue_list(0, types): g(x)
        if vi < 4: g('s_branch Lqkv_fin')
    g.label('Lqkv_fin')
    g('s_branch Lattn_setup')

def qkv_loader(g):
    g.label('Lloader')
    g('s_sub_u32 s43, s3, 4')
    g('s_lshl_b32 s44, s22, 7')
    g('s_lshl_b32 s45, s43, 5')
    g('s_add_u32 s44, s44, s45')
    g('v_lshrrev_b32 v10, 3, v0')
    g('v_add_u32 v10, s44, v10')
    g('v_mul_u32_u24 v10, 896, v10')
    g('v_lshrrev_b32 v11, 4, v0')
    g('v_and_b32 v12, 7, v0')
    g('v_xor_b32 v12, v12, v11')
    g('v_lshl_add_u32 v2, v12, 4, v10')
    g('v_xor_b32 v12, 4, v12')
    g('v_lshl_add_u32 v3, v12, 4, v10')
    g('v_add_u32 v3, 7168, v3')
    g('v_add_u32 v4, 14336, v2')
    g('v_add_u32 v5, 14336, v3')
    g('s_lshl_b32 s46, s43, 12')
    g('s_lshl_b32 s47, s43, 10')
    g('s_add_u32 s47, s47, 65536')
    g('s_lshl_b32 s44, s43, 6')
    g('s_mul_i32 s50, s23, 168')
    g('s_mul_i32 s51, s69, 168')
    def wcalc(n):
        g('v_add_u32 v10, s44, v0')
        if n: g(f'v_add_u32 v10, {256*n}, v10')
        g('v_mul_u32_u24 v11, 5958, v10')
        g('v_lshrrev_b32 v11, 16, v11')
        g('v_mul_u32_u24 v12, 11, v11')
        g('v_sub_u32 v12, v10, v12')
        g('v_and_b32 v13, 48, v11')
        g('v_and_b32 v14, 3, v11')
        g('v_lshl_add_u32 v13, v14, 2, v13')
        g('v_bfe_u32 v14, v11, 2, 2')
        g('v_add_u32 v13, v13, v14')
        g('v_mul_u32_u24 v13, 2688, v13')
        g(f'v_lshl_add_u32 v{6+n}, v12, 4, v13')
    wcalc(0)
    g('s_waitcnt lgkmcnt(0)')
    srd(g, 24, 10, 11, 1835008)
    srd(g, 28, 12, 13, 1204224)
    def issueX(c):
        kc = c % 7; st = c % 4
        sx = 24 if c < 7 else 32
        g(f's_mov_b32 s48, {kc*128}')
        for e in range(4):
            g(f's_add_u32 m0, s46, {st*16384 + e*1024}')
            g('s_nop 0')
            g(f'buffer_load_dwordx4 v{2+e}, s[{sx}:{sx+3}], s48 offen lds')
    def issueW(c, ns=(0, 1, 2)):
        kc = c % 7; st = c % 4
        sw = 28 if c < 7 else 36
        g(f's_add_u32 s49, {"s50" if c < 7 else "s51"}, {kc*64*2688}')
        for n in ns:
            if n == 2:
                sk = newlab('qs')
                g('s_cmp_eq_u32 s43, 3')
                g(f's_cbranch_scc1 {sk}')
            g(f's_add_u32 m0, s47, {st*WSTG + n*4096}')
            g('s_nop 0')
            g(f'buffer_load_dwordx4 v{6+n}, s[{sw}:{sw+3}], s49 offen lds')
            if n == 2: g.label(sk)
    def issue(c):
        issueX(c); issueW(c)
    issueX(0)
    issueW(0, (0,))
    wcalc(1); issueW(0, (1,))
    wcalc(2); issueW(0, (2,))
    srd(g, 32, 4, 5, 1835008)
    srd(g, 36, 6, 7, 1204224)
    srd(g, 64, 20, 21, 0x4000, WS_CNT)
    g('s_and_b32 s40, s2, 7')
    g('s_bfe_u32 s41, s2, 0x10003')
    g('s_lshl_b32 s40, s40, 1')
    g('s_add_u32 s40, s40, s41')
    g('v_min_u32 v30, 2, v0')
    g('v_lshlrev_b32 v30, 4, v30')
    g('v_add_u32 v30, s40, v30')
    g('v_mul_u32_u24 v30, 43, v30')
    g('v_lshrrev_b32 v30, 7, v30')
    g('v_lshlrev_b32 v31, 8, v30')
    g(f'v_add_u32 v203, {CNT_B}, v31')
    for c in range(1, 3): issue(c)
    for c in range(NCH):
        rem = min(2, NCH - 1 - c)
        g(f's_waitcnt vmcnt({1 if c == 13 else 6*rem})')
        g('s_barrier')
        if c + 3 < NCH: issue(c + 3)
        if c == 10: attn_setup(g)
        if c == 11: set_mask(g, 32, 'first')
        if c == 12:
            g('buffer_load_dword v201, v203, s[64:67], 0 offen sc1')
    g('s_waitcnt vmcnt(0)')
    g('v_cmp_ne_u32 vcc, 16, v201')
    g('s_nop 4')
    g('s_cbranch_vccz Lh1_polled')
    spin_until(g, 201, 203, 16)
    g.label('Lh1_polled')
    g('s_barrier')
    stamp(g, 4)
    g('s_add_u32 s47, s44, 0x200000')
    g('s_mov_b32 m0, s51')
    g('s_nop 0')
    for i in range(2):
        g(f'buffer_load_dwordx4 v2, s[24:27], s47 offen offset:{i*1024}{LD()} lds')
    stage_tile(g, 0)
    stage_tile(g, 1)
    stamp(g, 5)
    g('s_waitcnt vmcnt(4)')
    g('s_barrier')
    g('s_branch Lattn_go')

K2_SCR = 131072
QL = 200
def set_mask(g, dst, kind):
    for r in range(16):
        br_ = (r & 3) + 8 * (r >> 2)
        op = 'v_cmp_le_i32' if kind == 'diag' else 'v_cmp_gt_i32'
        g(f'{op} vcc, {br_}, v24')
        g('s_nop 1')
        g(f'v_cndmask_b32_e64 v{dst+r}, v25, 0, vcc')
def attn_setup(g):
    kvb_srd(g)
    g('s_lshr_b32 s41, s2, 4')
    g('s_and_b32 s42, s3, 3')
    g('s_lshr_b32 s43, s3, 2')
    g('v_lshlrev_b32 v2, 4, v0')
    g('s_lshl_b32 s44, s40, 6')
    g('s_lshl_b32 s45, s41, 2')
    g('s_add_u32 s45, s45, s42')
    g('s_add_u32 s44, s44, s45')
    g('s_lshl_b32 s44, s44, 11')
    srd(g, 24, 20, 21, 0x400000)
    g('s_sub_u32 s28, s32, 0x400000')
    g('s_subb_u32 s29, s33, 0')
    g('s_mov_b32 s30, 0x40000')
    g('s_mov_b32 s31, 0x20000')
    srd(g, 36, 20, 21, 0x400000, WS_O)
    g('v_min_u32 v30, 2, v0')
    g('v_lshlrev_b32 v30, 4, v30')
    g('v_add_u32 v30, s40, v30')
    g('v_mul_u32_u24 v30, 43, v30')
    g('v_lshrrev_b32 v30, 7, v30')
    g('v_lshlrev_b32 v31, 8, v30')
    g(f'v_add_u32 v203, {CNT_B}, v31')
    g('s_lshl_b32 s47, s41, 2')
    g('s_add_u32 s47, s47, s3')
    g('s_sub_u32 s47, s47, 8')
    g('s_lshl_b32 s50, s47, 12')
    g('s_cmp_lt_i32 s47, 0')
    g('s_cselect_b32 s50, 0x40000000, s50')
    g('v_add_u32 v28, s50, v2')
    g('s_add_u32 s47, s47, 8')
    g('s_lshl_b32 s50, s47, 12')
    g('v_add_u32 v29, s50, v2')
    g('s_lshl_b32 s47, s42, 12')
    g('v_add_u32 v3, s47, v2')
    g('s_lshl_b32 s47, s43, 14')
    g('v_add_u32 v4, s47, v2')
    g('v_add_u32 v5, 32768, v4')
    g(f'v_add_u32 v6, {K2_SCR}, v3')
    g('s_lshl_b32 s47, s42, 8')
    g(f's_add_u32 s47, s47, {K2_SCR+16384}')
    g('v_lshlrev_b32 v7, 2, v0')
    g('v_add_u32 v7, s47, v7')
    g('s_lshl_b32 s47, s42, 11')
    g(f's_add_u32 s51, s47, {K2_SCR}')
    g(f'v_add_u32 v{QL}, s51, v2')
    g('v_and_b32 v24, 31, v0')
    g('v_lshrrev_b32 v25, 5, v0')
    g('v_lshlrev_b32 v25, 2, v25')
    g('v_sub_u32 v24, v24, v25')
    g(f'v_mov_b32 v25, {NEGBIG:#x}')
    g('s_mov_b32 s60, 0')
    g('s_mov_b32 s61, -1')
    srd(g, 56, 20, 21, 0x1000000)

def phase_attn(g):
    g.label('Lattn_setup')
    QA = 8; QB = 16; MASK = 32; S0 = 48; S1 = 64; P = 80; OA = 88; OB = 104; KF = 120; VF = 128; T = 136
    TK = 144; TS = 152
    MNA = 26; MNB = 27
    SB = [S0, S1]
    attn_setup(g)
    set_mask(g, MASK, 'diag')
    stamp(g, 5)
    g('s_waitcnt vmcnt(4)')
    g('s_barrier')
    g.label('Lattn_go')
    g('s_cmp_eq_u32 s43, 99') if False else None
    def dma4(vreg, s, s_goff, s_m0, n=4, first=0):
        g(f's_mov_b32 m0, {s_m0}')
        g('s_nop 0')
        for i in range(first, first + n):
            g(f'buffer_load_dwordx4 v{vreg}, s[{s}:{s+3}], {s_goff} offen offset:{i*1024}{LD()} lds')
    stamp(g, 6)
    g(f'ds_read_b128 {vr(QB,4)}, v{QL}')
    g(f'ds_read_b128 {vr(QB+4,4)}, v{QL} offset:1024')

    def rowmax(sbuf, t):
        g(f'v_max3_f32 v{t}, v{sbuf}, v{sbuf+1}, v{sbuf+2}')
        for r in range(3, 15, 2):
            g(f'v_max3_f32 v{t}, v{t}, v{sbuf+r}, v{sbuf+r+1}')
        g(f'v_max_f32 v{t}, v{t}, v{sbuf+15}')
        g(f'v_mov_b32 v{t+1}, v{t}')
        g('s_nop 1')
        g(f'v_permlane32_swap_b32 v{t}, v{t+1}')
        g('s_nop 1')
        g(f'v_max_f32 v{t}, v{t}, v{t+1}')
    def set_standin(sbuf, q, mneg):
        t = T
        rowmax(sbuf, t)
        g(f'v_sub_f32 v{t}, 0, v{t}')
        g(f'v_cvt_pk_bf16_f32 v{t}, v{t}, 0')
        g(f'v_lshlrev_b32 v{mneg}, 16, v{t}')
        g('s_mov_b64 exec, s[60:61]')
        g(f'v_mov_b32 v{q+4+2}, v{t}')
        g('s_mov_b64 exec, -1')
    def write_partial(O, mn):
        for i in range(4): g(f'ds_write_b128 v6, {vr(O+4*i,4)} offset:{i*1024}')
        g(f'ds_write_b32 v7, v{mn}')
    FB = 144
    def finish(tag, br, O, mn, q, tmp):
        for i in range(4): g(f'ds_read_b128 {vr(tmp+4*i,4)}, v6 offset:{i*1024}')
        g(f'ds_read_b32 v{T}, v7')
        g('s_waitcnt lgkmcnt(0)')
        g(f'v_min_f32 v{T+1}, v{mn}, v{T}')
        g(f'v_sub_f32 v{T+2}, v{T+1}, v{mn}')
        g(f'v_sub_f32 v{T+3}, v{T+1}, v{T}')
        g(f'v_exp_f32 v{T+2}, v{T+2}')
        g(f'v_exp_f32 v{T+3}, v{T+3}')
        g('s_nop 0')
        for r in range(16): g(f'v_mul_f32 v{O+r}, v{O+r}, v{T+2}')
        for r in range(16): g(f'v_fmac_f32 v{O+r}, v{tmp+r}, v{T+3}')
        g(f'v_mov_b32 v{T}, v{O+12}')
        g(f'v_mov_b32 v{T+1}, v{O+12}')
        g(f'v_mul_f32 v{T+4}, 0, v{O}')
        g(f'v_fmac_f32 v{T+4}, 0, v{O+1}')
        g(f'v_permlane32_swap_b32 v{T}, v{T+1}')
        for r in range(2, 16): g(f'v_fmac_f32 v{T+4}, 0, v{O+r}')
        g(f'v_add_f32 v{T+4}, v{T+4}, v{T+1}')
        g(f's_mov_b32 s47, {f32bits(2.0**100):#x}')
        g(f'v_cmp_ngt_f32 vcc, s47, v{T+4}')
        g('s_nop 4')
        g(f's_cbranch_vccz L{tag}_ok')
        fallback(tag, br, O, q)
        g(f'v_mov_b32 v{T}, v{O+12}')
        g(f'v_mov_b32 v{T+1}, v{O+12}')
        g('s_nop 1')
        g(f'v_permlane32_swap_b32 v{T}, v{T+1}')
        g('s_nop 1')
        g.label(f'L{tag}_ok')
        g(f'v_rcp_f32 v{T+1}, v{T+1}')
        g('s_nop 0')
        for r in range(16): g(f'v_mul_f32 v{O+r}, v{O+r}, v{T+1}')
        for i in range(8): g(f'v_cvt_pk_bf16_f32 v{tmp+i}, v{O+2*i}, v{O+2*i+1}')
        g('s_mov_b64 exec, s[60:61]')
        g(f'v_mov_b32 v{tmp+6}, 0')
        g(f'v_mov_b32 v{tmp+7}, 0')
        g('s_mov_b64 exec, -1')
        g('s_lshl_b32 s47, s41, 2')
        g('s_add_u32 s47, s47, s42')
        g(f's_add_u32 s47, s47, {br*64}')
        g('s_lshl_b32 s47, s47, 4')
        g('s_add_u32 s47, s47, s40')
        g('s_lshl_b32 s47, s47, 11')
        g('s_nop 0')
        g(f'buffer_store_dwordx4 {vr(tmp,4)}, v2, s[36:39], s47 offen{ST()}')
        g(f'buffer_store_dwordx4 {vr(tmp+4,4)}, v2, s[36:39], s47 offen offset:1024{ST()}')
        g('s_nop 1')
    def fallback(tag, br, O, q):
        FS, FK, FV, FP, FQ, Fm = FB, FB+16, FB+24, FB+32, FB+40, FB+48
        s = 28 if br == 0 else 32
        for i in range(8): g(f'v_mov_b32 v{FQ+i}, v{q+i}')
        g('s_mov_b64 exec, s[60:61]')
        g(f'v_mov_b32 v{FQ+6}, 0')
        g('s_mov_b64 exec, -1')
        for r in range(16): g(f'v_mov_b32 v{O+r}, 0')
        g(f'v_mov_b32 v{Fm}, v25')
        if br == 0:
            g('s_lshl_b32 s52, s41, 2')
            g('s_add_u32 s52, s52, s42')
            g('s_sub_u32 s53, s52, 8')
            g('s_mov_b32 s54, s52')
        else:
            g('s_mov_b32 s54, 63')
        g.label(f'L{tag}_fb_loop')
        g('s_lshl_b32 s55, s54, 12')
        for i in range(2):
            g(f'buffer_load_dwordx4 {vr(FK+4*i,4)}, v2, s[{s}:{s+3}], s55 offen offset:{i*1024}{LD()}')
            g(f'buffer_load_dwordx4 {vr(FV+4*i,4)}, v2, s[{s}:{s+3}], s55 offen offset:{2048+i*1024}{LD()}')
        if br == 0:
            g('s_cmp_eq_u32 s54, s52')
            g(f's_cbranch_scc1 L{tag}_fb_diag')
            g('s_cmp_eq_u32 s54, s53')
            g(f's_cbranch_scc1 L{tag}_fb_first')
        for r in range(16): g(f'v_mov_b32 v{FS+r}, 0')
        if br == 0:
            g(f's_branch L{tag}_fb_go')
            g.label(f'L{tag}_fb_diag')
            set_mask(g, FS, 'diag')
            g(f's_branch L{tag}_fb_go')
            g.label(f'L{tag}_fb_first')
            set_mask(g, FS, 'first')
            g.label(f'L{tag}_fb_go')
        g('s_waitcnt vmcnt(0)')
        g('s_nop 1')
        g(mfma(FS, FK, FQ, FS))
        g(mfma(FS, FK+4, FQ+4, FS))
        g('s_nop 15')
        rowmax(FS, Fm+1)
        g(f'v_max_f32 v{Fm+1}, v{Fm+1}, v{Fm}')
        g(f'v_sub_f32 v{Fm+2}, v{Fm}, v{Fm+1}')
        g(f'v_exp_f32 v{Fm+2}, v{Fm+2}')
        g(f'v_mov_b32 v{Fm}, v{Fm+1}')
        for r in range(16): g(f'v_sub_f32 v{FS+r}, v{FS+r}, v{Fm}')
        for r in range(16): g(f'v_exp_f32 v{FS+r}, v{FS+r}')
        for r in range(16): g(f'v_mul_f32 v{O+r}, v{O+r}, v{Fm+2}')
        for i in range(8): g(f'v_cvt_pk_bf16_f32 v{FP+i}, v{FS+2*i}, v{FS+2*i+1}')
        g('s_nop 1')
        g(mfma(O, FV, FP, O))
        g(mfma(O, FV+4, FP+4, O))
        g('s_nop 15')
        g('s_sub_u32 s54, s54, 1')
        g('s_cmp_lt_i32 s54, 0')
        g(f's_cbranch_scc1 L{tag}_fb_end')
        if br == 0:
            g('s_cmp_lt_i32 s54, s53')
            g(f's_cbranch_scc1 L{tag}_fb_end')
        g(f's_branch L{tag}_fb_loop')
        g.label(f'L{tag}_fb_end')

    g('s_cmp_eq_u32 s43, 0')
    g('s_cbranch_scc0 Lattn_kh1')

    def path(kh):
        tag = f'K{kh}'
        unitsA = [8, 7, 6, 5, 4] if kh == 0 else [3, 2, 1, 0]
        nA = len(unitsA); N = 32 + nA
        def unit(i):
            if i >= 32:
                u = unitsA[i - 32]
                masked = (kh == 0 and u == 8) or (kh == 1 and u == 0)
                return dict(base=3, off=u*4096, Q=QA, O=OA, C=MASK if masked else None, first=(i == 32))
            return dict(b=i, Q=QB, O=OB, C=None, first=(i == 0))
        def addr(i, cs):
            u = unit(i)
            if 'base' in u: return u['base'], u['off']
            b = u['b']; s = b >> 2
            if s == cs: return 4, (b & 3) * 4096
            assert s == cs + 1
            return 5, (b & 3) * 4096
        def rdK(i, cs, dst=KF):
            r, off = addr(i, cs)
            g(f'ds_read_b128 {vr(dst,4)}, v{r} offset:{off}')
            g(f'ds_read_b128 {vr(dst+4,4)}, v{r} offset:{off+1024}')
        def rdV(i, f, cs):
            r, off = addr(i, cs)
            g(f'ds_read_b128 {vr(VF+4*f,4)}, v{r} offset:{off+2048+f*1024}')
        rdK(0, 0)
        g('s_waitcnt lgkmcnt(0)')
        g(mfma(S0, KF, QB, None))
        g(mfma(S0, KF+4, QB+4, S0))
        g('s_nop 15')
        set_standin(S0, QB, MNB)
        g('s_nop 1')
        g(mfma(S0, KF, QB, None))
        g(mfma(S0, KF+4, QB+4, S0))
        rdK(1, 0)
        rdV(0, 0, 0)
        g('s_nop 15')
        if kh == 0: stamp(g, 7)
        if OPT.get('attst'): stamp(g, 2, q=True)
        def wo_piece(it):
            if it == 7:
                sk = newlab('wo7')
                g('s_cmp_lg_u32 s3, 0')
                g(f's_cbranch_scc1 {sk}')
                g(f's_add_u32 m0, s45, {65536 + it*8192}')
                g(f'v_add_u32 v31, {it*64*896}, v30')
                g('buffer_load_dwordx4 v31, s[56:59], 0 offen lds')
                g.label(sk)
            else:
                g(f's_add_u32 m0, s45, {65536 + it*8192}')
                g(f's_mov_b32 s50, {it*64*896}')
                g('buffer_load_dwordx4 v30, s[56:59], s50 offen lds')
        def wo_setup():
            g('s_mov_b32 s56, s14')
            g('s_mov_b32 s57, s15')
            g(f's_mov_b32 s58, {448*896}')
            g('s_mov_b32 s59, 0x20000')
            g('v_lshrrev_b32 v30, 3, v0')
            g('v_and_b32 v31, 7, v0')
            g('v_and_b32 v1, 2, v30')
            g('v_lshlrev_b32 v1, 1, v1')
            g('v_xor_b32 v31, v31, v1')
            g('s_lshl_b32 s50, s3, 3')
            g('v_add_u32 v30, s50, v30')
            g('v_mul_u32_u24 v30, 896, v30')
            g('v_lshl_add_u32 v30, v31, 4, v30')
            g('s_lshr_b32 s50, s2, 5')
            g('s_lshl_b32 s50, s50, 7')
            g('s_cmp_ge_u32 s2, 224')
            g('s_cselect_b32 s50, 0x40000000, s50')
            g('v_add_u32 v30, s50, v30')
            g('s_lshl_b32 s45, s3, 10')
        def dma_slot(i, inloop):
            if i == 0 or i == 1:
                st = i + 2
                g(f's_add_u32 s54, s55, {st*32768}')
                g(f's_add_u32 m0, s55, {(st&3)*32768}')
                g('s_nop 0')
                for k in range(4):
                    g(f'buffer_load_dwordx4 v2, s[32:35], s54 offen offset:{k*1024}{LD()} lds')
                return
            if i == 2 and kh == 0:
                for t in range(3):
                    g(f'buffer_store_dwordx4 {vr(208+8*t,4)}, v2, s[56:59], s{(48,49,53)[t]} offen{ST()}')
                    g(f'buffer_store_dwordx4 {vr(212+8*t,4)}, v2, s[56:59], s{(48,49,53)[t]} offen offset:1024{ST()}')
                return
            if i >= 30:
                if i == 30: wo_setup()
                before34 = {30: [0], 31: [1], 32: [2], 33: [3], 34: [4, 5], 35: [6, 7]}
                for it in before34.get(i, []): wo_piece(it)
                return
            if i < 6: return
            ph = (i - 2) & 3; st = ((i - 2) >> 2) + 3
            if i == 18:
                g('buffer_load_dword v201, v31, s[64:67], 0 offen sc1')
            if st <= 7:
                if ph == 0:
                    g(f's_add_u32 s54, s55, {st*32768}')
                    g(f's_add_u32 m0, s55, {(st&3)*32768}')
                    g('s_nop 0')
                g(f'buffer_load_dwordx4 v2, s[32:35], s54 offen offset:{ph*1024}{LD()} lds')
            elif st == 8:
                if ph == 0:
                    ok = newlab('aok')
                    g('v_cmp_ne_u32 vcc, 16, v201')
                    g('s_nop 4')
                    g(f's_cbranch_vccz {ok}')
                    spin_until(g, 201, 31, 16)
                    g.label(ok)
                    if kh == 1:
                        g('s_add_u32 s47, s51, 8192')
                        dma4(2, 24, 's44', 's47', n=2)
                    g('s_mov_b32 m0, s55')
                    g('s_nop 0')
                g(f'buffer_load_dwordx4 v28, s[28:31], 0 offen offset:{ph*1024}{LD()} lds')
            elif st == 9 and ph == 0 and kh == 0:
                g('s_add_u32 m0, s55, 32768')
                g('s_nop 0')
                for k in range(4):
                    g(f'buffer_load_dwordx4 v29, s[28:31], 0 offen offset:{k*1024}{LD()} lds')
        def body(i, cs, inloop=False):
            u = unit(i)
            sb = SB[i & 1]; sn = SB[(i + 1) & 1]
            e = [f'v_exp_f32 v{sb+r}, v{sb+r}' for r in range(16)]
            c = [f'v_cvt_pk_bf16_f32 v{P+k}, v{sb+2*k}, v{sb+2*k+1}' for k in range(8)]
            has1 = i + 1 < N; has2 = i + 2 < N
            if i < 32 and (i & 3) == 2:
                s = i >> 2
                if s == 7: vm = 0
                elif s == 0: vm = 8
                elif s == 1: vm = 4 if kh == 1 else 10
                elif s == 2: vm = 4 if kh == 1 else 10
                else: vm = 4
                if OPT.get('attst') and s in (0, 1, 2, 3, 5, 7): stamp(g, {0: 3, 1: 5, 2: 7, 3: 9, 5: 11, 7: 13}[s], q=True)
                g(f's_waitcnt vmcnt({vm}) lgkmcnt(0)' if vm is not None else 's_waitcnt lgkmcnt(0)')
                g('s_barrier')
                if OPT.get('attst') and s in (0, 1, 2, 3, 5, 7): stamp(g, {0: 4, 1: 6, 2: 8, 3: 10, 5: 12, 7: 14}[s], q=True)
                if s == 3 and kh == 1:
                    sk = newlab('sigA')
                    g('s_cmp_lg_u32 s3, 4')
                    g(f's_cbranch_scc1 {sk}')
                    g('s_mov_b64 exec, 1')
                    g('v_mov_b32 v1, 1')
                    g('s_lshl_b32 s47, s69, 8')
                    g('v_mov_b32 v202, s47')
                    g('buffer_atomic_add v1, v202, s[64:67], 0 offen sc1')
                    g('s_mov_b64 exec, -1')
                    g.label(sk)
                if s == 6:
                    g(f'ds_read_b128 {vr(QA,4)}, v{QL} offset:8192')
                    g(f'ds_read_b128 {vr(QA+4,4)}, v{QL} offset:9216')
                if s == 7:
                    rdK(32, cs, TK)
                    g('s_waitcnt lgkmcnt(0)')
                    g(mfma(TS, TK, QA, unit(32)['C']))
                    g(mfma(TS, TK+4, QA+4, TS))
                    g('s_nop 15')
                    set_standin(TS, QA, MNA)
                    if kh == 1:
                        g('s_lshl_b32 s47, s41, 2')
                        g('s_add_u32 s47, s47, s42')
                        g('s_cmp_lt_u32 s47, 5')
                        g(f's_cbranch_scc0 L{tag}_valid')
                        g(f'v_mov_b32 v{MNA}, {POSBIG:#x}')
                        g.label(f'L{tag}_valid')
            elif i == 34:
                g('s_waitcnt lgkmcnt(0)')
                g('s_barrier')
                if kh == 1:
                    finish('FB', 1, OB, MNB, QB, TS)
            else:
                g('s_waitcnt lgkmcnt(0)')
            if OPT.get('prio', 'lag') == 'lag':
                g(f's_setprio {3 - ((i - 2) & 3)}')
            g(e[0])
            if i > 0:
                up = unit(i - 1)
                g(mfma(up['O'], VF+4, P+4, up['O']))
            rdV(i, 1, cs)
            g(e[1]); g(e[2]); g(e[3])
            g(c[0])
            if i == 33 and kh == 0:
                write_partial(OB, MNB)
            if has1:
                un = unit(i + 1)
                g(mfma(sn, KF, un['Q'], un['C']))
            g(e[4]); g(e[5]); g(c[1]); g(e[6]); g(e[7]); g(c[2])
            if has1:
                g(mfma(sn, KF+4, un['Q']+4, sn))
            if has2:
                rdK(i + 2, cs)
            g(e[8]); g(c[3]); g(e[9]); g(e[10])
            dma_slot(i, inloop)
            g(e[11])
            g(mfma(u['O'], VF, P, None if u['first'] else u['O']))
            if has1:
                rdV(i + 1, 0, cs)
            for x in e[12:16]: g(x)
            g(c[4]); g(c[5]); g(c[6]); g(c[7])
        def advance():
            g('v_mov_b32 v4, v5')
            g('v_add_u32 v5, 32768, v5')
            g('v_and_b32 v5, 0x1ffff, v5')
        return body, advance, N, tag
    for kh in (0, 1):
        if kh == 1: g.label('Lattn_kh1')
        body, advance, N, tag = path(kh)
        for s_ in range(7):
            for j in range(4): body(4*s_ + j, s_)
            advance()
        for j in range(4): body(28 + j, 7)
        if kh == 0: stamp(g, 8)
        for i in range(32, N): body(i, 7)
        g('s_waitcnt lgkmcnt(0)')
        g('s_nop 1')
        g(mfma(OA, VF+4, P+4, OA))
        g('s_nop 15')
        if kh == 1:
            write_partial(OA, MNA)
            g('s_waitcnt vmcnt(3) lgkmcnt(0)')
            g('s_barrier')
            stamp(g, 9)
            proj_group_B(g)
        else:
            g('s_barrier')
            finish('FA', 0, OA, MNA, QA, MASK)
            stamp(g, 9)
            proj_group_A(g)
    proj_common(g)

PJ_EX = 131072
def proj_setup(g, br):
    g(f's_mov_b32 s40, {br}')
    g('s_and_b32 s41, s2, 7')
    g('s_lshl_b32 s41, s41, 2')
    g('s_bfe_u32 s42, s2, 0x20003')
    g('s_add_u32 s41, s41, s42')
    g('s_lshr_b32 s42, s2, 5')
    g('s_and_b32 s43, s3, 1')
    g('s_bfe_u32 s44, s3, 0x10001')
    srd(g, 24, 16, 17, 2048 * 1792)
    g('s_lshl_b32 s45, s41, 1')
    g('s_add_u32 s45, s45, s43')
    g(f's_add_u32 s45, s45, {br*64}')
    g('s_lshl_b32 s45, s45, 15')
    g('s_lshl_b32 s46, s44, 14')
    g('s_add_u32 s45, s45, s46')
    g('v_bfe_u32 v4, v0, 2, 2')
    g('v_and_b32 v5, 3, v0')
    g('v_bfe_u32 v7, v0, 4, 1')
    g('v_lshrrev_b32 v6, 5, v0')
    g('v_lshlrev_b32 v7, 5, v7')
    g('v_lshl_add_u32 v7, v5, 3, v7')
    g('v_lshrrev_b32 v11, 4, v7')
    g('v_and_b32 v8, 2, v4')
    g('v_lshlrev_b32 v8, 1, v8')
    g('v_xor_b32 v11, v11, v8')
    g('v_and_b32 v7, 15, v7')
    g('v_lshl_add_u32 v7, v11, 4, v7')
    g('v_lshl_add_u32 v4, v6, 2, v4')
    g('v_lshl_add_u32 v9, v4, 7, v7')
    g('s_mul_i32 s46, s44, 28672')
    if br: g('s_add_u32 s46, s46, 65536')
    g('v_add_u32 v9, s46, v9')
    g('v_xor_b32 v10, 64, v9')
    g('s_lshl_b32 s46, s43, 1')
    g('s_add_u32 s46, s46, s44')
    g(f's_add_u32 s46, s46, {br*4}')
    g('s_lshl_b32 s46, s46, 12')
    g(f's_add_u32 s46, s46, {PJ_EX}')
    g('v_add_u32 v12, s46, v2')
    g('v_xor_b32 v13, 4096, v12')
    g('s_lshr_b32 s46, s41, 1')
    g('s_lshl_b32 s46, s46, 8')
    g(f's_add_u32 s46, s46, {CNT_OB if br else CNT_OA}')
    g('v_mov_b32 v30, s46')
def o_loads(g):
    OF = 64
    for n in range(16):
        if n % 4 == 0 and n > 0: g('s_add_u32 s45, s45, 4096')
        g(f'buffer_load_dwordx4 {vr(OF+4*n,4)}, v2, s[36:39], s45 offen offset:{(n%4)*1024}{LD()}')
def signal_o(g, cnt, wave):
    sk = newlab('sigO')
    g(f's_cmp_lg_u32 s3, {wave}')
    g(f's_cbranch_scc1 {sk}')
    g('s_mov_b64 exec, 1')
    g('v_mov_b32 v1, 1')
    g('s_lshl_b32 s47, s41, 8')
    g(f's_add_u32 s47, s47, {cnt}')
    g('v_mov_b32 v31, s47')
    g('buffer_atomic_add v1, v31, s[64:67], 0 offen sc1')
    g('s_mov_b64 exec, -1')
    g.label(sk)
def proj_group_B(g):
    signal_o(g, CNT_OB, 4)
    g('s_cmp_ge_u32 s2, 224')
    g('s_cbranch_scc1 Lpj_idleB')
    srd(g, 56, 8, 9, 448*896)
    g('v_lshrrev_b32 v30, 3, v0')
    g('v_and_b32 v31, 7, v0')
    g('v_and_b32 v1, 2, v30')
    g('v_lshlrev_b32 v1, 1, v1')
    g('v_xor_b32 v31, v31, v1')
    g('s_and_b32 s50, s3, 3')
    g('s_lshl_b32 s51, s50, 3')
    g('v_add_u32 v30, s51, v30')
    g('v_mul_u32_u24 v30, 896, v30')
    g('v_lshl_add_u32 v30, v31, 4, v30')
    g('s_lshr_b32 s51, s2, 5')
    g('s_lshl_b32 s51, s51, 7')
    g('v_add_u32 v30, s51, v30')
    g('s_lshl_b32 s52, s50, 10')
    sk = newlab('woA')
    for it in range(15):
        if it == 14:
            g('s_cmp_lg_u32 s50, 0')
            g(f's_cbranch_scc1 {sk}')
        g(f's_add_u32 m0, s52, {it*4096}')
        if it == 14:
            g(f'v_add_u32 v31, {it*32*896}, v30')
            g('buffer_load_dwordx4 v31, s[56:59], 0 offen lds')
        else:
            g(f's_mov_b32 s51, {it*32*896}')
            g('buffer_load_dwordx4 v30, s[56:59], s51 offen lds')
    g.label(sk)
    proj_setup(g, 1)
    g('s_waitcnt vmcnt(0)')
    g('s_barrier')
    spin_until(g, 1, 30, 16)
    stamp(g, 10)
    o_loads(g)
    g('s_branch Lproj_common')
    g.label('Lpj_idleB')
    g('s_barrier')
    g('s_branch Lend')
def proj_group_A(g):
    g('s_waitcnt vmcnt(0)')
    g('s_mov_b64 exec, 1')
    g('v_mov_b32 v1, 1')
    g('s_lshl_b32 s47, s41, 8')
    g(f's_add_u32 s47, s47, {CNT_OA}')
    g('v_mov_b32 v31, s47')
    g('buffer_atomic_add v1, v31, s[64:67], 0 offen sc1')
    g('s_mov_b64 exec, -1')
    g('s_cmp_ge_u32 s2, 224')
    sk = newlab('idleA')
    g(f's_cbranch_scc1 {sk}')
    proj_setup(g, 0)
    g('s_barrier')
    spin_until(g, 1, 30, 64)
    stamp(g, 10)
    o_loads(g)
    g('s_branch Lproj_common')
    g.label(sk)
    g('s_barrier')
    g('s_branch Lend')
def proj_common(g):
    g.label('Lproj_common')
    OF = 64; ACC = 16; WF = 48
    def rd(n, buf):
        h, i = divmod(n, 2)
        for ct in range(2):
            for jj in range(2):
                off = (28*h + 16*i + 8*jj) * 128
                g(f'ds_read_b64_tr_b16 {vr(WF+8*buf+4*ct+2*jj,2)}, v{9+ct} offset:{off}')
    rd(0, 0)
    for n in range(16):
        if n + 1 < 16: rd(n + 1, (n + 1) & 1)
        g(f's_waitcnt vmcnt({15-n}) lgkmcnt({4 if n + 1 < 16 else 0})')
        for ct in range(2):
            g(mfma(ACC + 16*ct, WF + 8*(n & 1) + 4*ct, OF + 4*n, None if n == 0 else ACC + 16*ct))
    g('s_nop 15')
    stamp(g, 12)
    g('s_cmp_eq_u32 s44, 0')
    g('s_cbranch_scc0 Lpj_k1')
    for i in range(4): g(f'ds_write_b128 v12, {vr(ACC+16+4*i,4)} offset:{i*1024}')
    g('s_branch Lpj_k2')
    g.label('Lpj_k1')
    for i in range(4): g(f'ds_write_b128 v12, {vr(ACC+4*i,4)} offset:{i*1024}')
    for r in range(16): g(f'v_mov_b32 v{ACC+r}, v{ACC+16+r}')
    g.label('Lpj_k2')
    g('s_waitcnt lgkmcnt(0)')
    g('s_barrier')
    for i in range(4): g(f'ds_read_b128 {vr(64+4*i,4)}, v13 offset:{i*1024}')
    g('v_and_b32 v4, 31, v0')
    g('s_lshl_b32 s46, s41, 6')
    g('s_lshl_b32 s47, s43, 5')
    g('s_add_u32 s46, s46, s47')
    g('v_add_u32 v4, s46, v4')
    g('v_mul_u32_u24 v4, 1792, v4')
    g('v_lshl_add_u32 v4, v6, 4, v4')
    g('s_mul_i32 s46, s40, 896')
    g('s_lshl_b32 s47, s42, 7')
    g('s_add_u32 s46, s46, s47')
    g('s_lshl_b32 s47, s44, 6')
    g('s_add_u32 s46, s46, s47')
    g('s_waitcnt lgkmcnt(0)')
    for r in range(16): g(f'v_add_f32 v{ACC+r}, v{ACC+r}, v{64+r}')
    P = 48
    for i in range(8): g(f'v_cvt_pk_bf16_f32 v{P+i}, v{ACC+2*i}, v{ACC+2*i+1}')
    g('s_nop 1')
    for k in range(2):
        a = P + 4*k
        g(f'v_permlane32_swap_b32 v{a}, v{a+2}')
        g(f'v_permlane32_swap_b32 v{a+1}, v{a+3}')
    g('s_nop 1')
    for k in range(2):
        g(f'buffer_store_dwordx4 {vr(P+4*k,4)}, v4, s[24:27], s46 offen offset:{32*k}')

HEADER = '''; Kernarg layout for this problem (72 bytes, ptrs only, base s[0:1]):
'''
def main(out):
    g = Gen()
    g.raw(f'.globl {NAME}')
    g.raw('.p2align 8')
    g.raw(f'.type {NAME},@function')
    g.label(NAME)
    g('s_cmp_ge_u32 s2, 256')
    g('s_cbranch_scc1 Lexit')
    if OPT.get('tl'):
        for r in range(70, 102): g(f's_mov_b32 s{r}, 0')
    stamp(g, 0); stamp(g, 15, True)
    g('s_load_dwordx16 s[4:19], s[0:1], 0')
    g('s_load_dwordx2 s[20:21], s[0:1], 64')
    g('v_lshrrev_b32 v1, 6, v0')
    g('v_and_b32 v0, 63, v0')
    g('s_nop 0')
    g('v_readfirstlane_b32 s3, v1')
    prologue(g)
    qkv_compute(g)
    qkv_loader(g)
    phase_attn(g)
    g.label('Lend')
    if OPT['stamps'] or OPT.get('tl'): g('s_waitcnt vmcnt(0)')
    stamp(g, 13)
    if OPT.get('tl'):
        sk = newlab('tl')
        g('s_cmp_lg_u32 s3, 0')
        g(f's_cbranch_scc1 {sk}')
        g('s_waitcnt lgkmcnt(0)')
        srd(g, 56, 18, 19, 256)
        g('s_mov_b64 exec, 1')
        g('s_not_b32 s68, s70')
        g('v_mov_b32 v1, s68')
        g('v_mov_b32 v3, 0')
        g('buffer_atomic_umax v1, v3, s[56:59], 0 offen offset:4')
        for k, i in enumerate((0, 2, 3, 4, 6, 8, 9, 10, 11, 12, 13)):
            g(f'v_mov_b32 v{4+k}, s{70+2*i}')
            g(f'buffer_atomic_umax v{4+k}, v3, s[56:59], 0 offen offset:{8+4*k}')
        g('s_waitcnt vmcnt(0)')
        g.label(sk)
    if OPT['stamps']: g('s_memrealtime s[72:73]')
    stamp_dump(g)
    g.label('Lexit')
    g('s_endpgm')
    txt = HEADER + f'; @launch grid=(256,1,1) block=(512,1,1) lds={LDS_BYTES}\n'
    txt += '.amdgcn_target "amdgcn-amd-amdhsa--gfx950"\n.text\n' + g.text()
    txt += f'''.section .rodata,"a"
.p2align 6
.amdhsa_kernel {NAME}
  .amdhsa_next_free_vgpr 232
  .amdhsa_next_free_sgpr 102
  .amdhsa_accum_offset 232
  .amdhsa_group_segment_fixed_size 0
  .amdhsa_kernarg_size 72
  .amdhsa_user_sgpr_count 2
  .amdhsa_user_sgpr_kernarg_segment_ptr 1
  .amdhsa_system_sgpr_workgroup_id_x 1
.end_amdhsa_kernel
'''
    open(out, 'w').write(txt)

if __name__ == '__main__':
    out = sys.argv[1] if len(sys.argv) > 1 else 'concat_heads__sliding_block__softmax_full_mha__prompt.s'
    for a in sys.argv[2:]:
        if '=' in a:
            k, v = a.split('=', 1)
            OPT[k] = v if k in ('st', 'ld', 'prio') else (int(v) if v.isdigit() else v)
        else:
            OPT[a] = True
    main(out)
```

```python
import sys, math, struct

def f32bits(x): return struct.unpack('<I', struct.pack('<f', x))[0]

class Gen:
    def __init__(self): self.lines = []
    def __call__(self, s):
        for l in s.split('\n'):
            l = l.strip()
            if l: self.lines.append('  ' + l)
    def label(self, s): self.lines.append(s + ':')
    def raw(self, s): self.lines.append(s)
    def text(self): return '\n'.join(self.lines) + '\n'

def vr(base, n): return f'v[{base}:{base+n-1}]'
def mfma(d, a, b, c):
    cs = '0' if c is None else vr(c, 16)
    return f'v_mfma_f32_32x32x16_bf16 {vr(d,16)}, {vr(a,4)}, {vr(b,4)}, {cs}'

OPT = dict(stamps=False, st='sc1', ld='', spin=200000)
NAME = 'concat_heads__sliding_block__softmax_full_mha__prompt_kernel'
STAMP_BASE = 0x2000000
def stamp(g, i, real=False, q=False):
    if OPT.get('tl'):
        if i in (0, 2, 3, 4, 6, 8, 9, 10, 11, 12, 13): g(f's_memrealtime s[{70+2*i}:{71+2*i}]')
        return
    if not OPT['stamps']: return
    import inspect
    if OPT.get('qkvst') and 5 <= i <= 13:
        caller = inspect.stack()[1].function
        if caller != 'qkv_compute': return
    if OPT.get('attst') and 2 <= i <= 14 and not q: return
    op = 's_memrealtime' if real else 's_memtime'
    g(f'{op} s[{70+2*i}:{71+2*i}]')
def stamp_dump(g):
    if not OPT['stamps']: return
    g('s_waitcnt lgkmcnt(0) vmcnt(0)')
    g(f's_add_u32 s64, s20, {STAMP_BASE}')
    g(f's_addc_u32 s65, s21, 0')
    g('s_mov_b32 s66, 0x100000')
    g('s_mov_b32 s67, 0x20000')
    g('s_mov_b64 exec, -1')
    g('v_mov_b32 v1, 0')
    for i in range(16):
        g(f'v_writelane_b32 v1, s{70+2*i}, {i}')
    g('s_lshl_b32 s68, s2, 3')
    g('s_add_u32 s68, s68, s3')
    g('s_lshl_b32 s68, s68, 6')
    g('v_lshlrev_b32 v3, 2, v0')
    g('v_cmp_gt_u32 vcc, 16, v0')
    g('s_and_saveexec_b64 s[62:63], vcc')
    g('buffer_store_dword v1, v3, s[64:67], s68 offen')
    g('s_waitcnt vmcnt(0)')

WS_Q = 0
WS_KV = 0x400000
WS_O = 0xC00000
WS_CNT = 0x1000000
CNT_A, CNT_B, CNT_OA, CNT_OB = 0, 16 * 256, 32 * 256, 48 * 256
QSCALE = (28 ** -0.5) * math.log2(math.e)
NEGBIG = 0xf149f2ca
POSBIG = 0x7149f2ca
LDS_BYTES = 163840

def srd(g, dst, lo, hi, nbytes, add=0):
    if add:
        g(f's_add_u32 s{dst}, s{lo}, {add}')
        g(f's_addc_u32 s{dst+1}, s{hi}, 0')
    else:
        g(f's_mov_b32 s{dst}, s{lo}')
        g(f's_mov_b32 s{dst+1}, s{hi}')
    g(f's_mov_b32 s{dst+2}, {nbytes}')
    g(f's_mov_b32 s{dst+3}, 0x20000')
def ST(): return (' ' + OPT['st']) if OPT['st'] else ''
def LD(): return (' ' + OPT['ld']) if OPT['ld'] else ''
lab = [0]
def newlab(p):
    lab[0] += 1
    return f'L{p}_{lab[0]}'

def spin_until(g, vdst, voff, target):
    l0 = newlab('poll'); l1 = newlab('pdone')
    g(f's_mov_b32 s68, {OPT["spin"]}')
    g.label(l0)
    g(f'buffer_load_dword v{vdst}, v{voff}, s[64:67], 0 offen sc1')
    g('s_waitcnt vmcnt(0)')
    g(f'v_cmp_ne_u32 vcc, {target}, v{vdst}')
    g('s_nop 4')
    g(f's_cbranch_vccz {l1}')
    g('s_sleep 1')
    g('s_sub_u32 s68, s68, 1')
    g('s_cmp_lg_u32 s68, 0')
    g(f's_cbranch_scc1 {l0}')
    g.label(l1)

WROW = 176
WSTG = 64 * WROW
NCH = 14
def prologue(g):
    g('s_and_b32 s40, s2, 7')
    g('s_lshr_b32 s41, s2, 3')
    g('s_lshr_b32 s22, s40, 1')
    g('s_lshl_b32 s22, s22, 2')
    g('s_and_b32 s42, s41, 3')
    g('s_add_u32 s22, s22, s42')
    g('s_and_b32 s23, s40, 1')
    g('s_lshl_b32 s23, s23, 3')
    g('s_lshr_b32 s42, s41, 2')
    g('s_add_u32 s23, s23, s42')
    g('s_add_u32 s69, s23, 1')
    g('s_and_b32 s69, s69, 7')
    g('s_and_b32 s42, s23, 8')
    g('s_or_b32 s69, s69, s42')
    g('s_cmp_ge_u32 s3, 4')
    g('s_cbranch_scc1 Lloader')

def kvb_srd(g):
    g('s_and_b32 s40, s2, 7')
    g('s_bfe_u32 s41, s2, 0x10003')
    g('s_lshl_b32 s40, s40, 1')
    g('s_add_u32 s40, s40, s41')
    g('s_lshl_b32 s47, s40, 18')
    g(f's_add_u32 s47, s47, {WS_KV + 0x400000}')
    g('s_add_u32 s32, s20, s47')
    g('s_addc_u32 s33, s21, 0')
    g('s_mov_b32 s34, 0x40000')
    g('s_mov_b32 s35, 0x20000')
    g('s_lshl_b32 s55, s3, 12')
def stage_tile(g, st):
    g(f's_add_u32 s54, s55, {st*32768}')
    g(f's_add_u32 m0, s55, {(st&3)*32768}')
    g('s_nop 0')
    for i in range(4):
        g(f'buffer_load_dwordx4 v2, s[32:35], s54 offen offset:{i*1024}{LD()} lds')
def init_dma_compute(g):
    kvb_srd(g)
    stage_tile(g, 0)
    stage_tile(g, 1)

def qkv_compute(g):
    g('v_and_b32 v4, 31, v0')
    g('s_lshl_b32 s44, s3, 5')
    g('v_add_u32 v4, s44, v4')
    g('v_lshlrev_b32 v4, 7, v4')
    g('v_bfe_u32 v5, v0, 1, 3')
    g('v_lshrrev_b32 v6, 5, v0')
    for ks in range(4):
        g(f'v_add_u32 v7, {2*ks}, v6')
        g('v_xor_b32 v7, v7, v5')
        g(f'v_lshl_add_u32 v{12+ks}, v7, 4, v4')
    g('v_bfe_u32 v4, v0, 2, 2')
    g('v_and_b32 v5, 3, v0')
    g('v_bfe_u32 v7, v0, 4, 1')
    g('v_lshlrev_b32 v7, 5, v7')
    g('v_lshl_add_u32 v7, v5, 3, v7')
    g('v_lshlrev_b32 v4, 1, v4')
    g('v_add_u32 v4, v4, v6')
    g(f'v_mul_u32_u24 v4, {2*WROW}, v4')
    g('v_add_u32 v4, v4, v7')
    g('v_add_u32 v16, 65536, v4')
    g('v_lshlrev_b32 v2, 4, v0')
    g('s_waitcnt lgkmcnt(0)')
    stamp(g, 1)
    srd(g, 32, 20, 21, 0x1000000)
    srd(g, 64, 20, 21, 0x4000, WS_CNT)
    g('s_or_b32 s44, s2, s3')
    g('s_cmp_lg_u32 s44, 0')
    g('s_cbranch_scc1 Lnoinit')
    g('v_lshlrev_b32 v20, 8, v0')
    g('v_mov_b32 v21, 0')
    g('buffer_store_dword v21, v20, s[64:67], 0 offen sc1')
    g('s_waitcnt vmcnt(0)')
    srd(g, 36, 18, 19, 256)
    g('s_mov_b64 exec, 1')
    g('v_mov_b32 v21, 1')
    g('v_mov_b32 v20, 0')
    g('buffer_store_dword v21, v20, s[36:39], 0 offen sc1')
    g('s_mov_b64 exec, -1')
    g.label('Lnoinit')
    if OPT.get('codepf'):
        g('s_getpc_b64 s[24:25]')
        g.label('Lpc_here')
        g(f's_sub_u32 s24, s24, Lpc_here-{NAME}')
        g('s_subb_u32 s25, s25, 0')
        g(f's_mov_b32 s26, Lexit-{NAME}')
        g('s_mov_b32 s27, 0x20000')
        g('s_lshr_b32 s46, s2, 3')
        g('s_lshl_b32 s46, s46, 2')
        g('s_add_u32 s46, s46, s3')
        g('s_lshl_b32 s46, s46, 10')
        g('v_add_u32 v20, s46, v2')
        g('buffer_load_dwordx4 v[144:147], v20, s[24:27], 0 offen')
    srd(g, 36, 18, 19, 256)
    g('v_mov_b32 v30, 0')
    g('buffer_load_dword v31, v30, s[36:39], 0 offen sc1')
    def prefetch():
        if not OPT.get('pf', 1): return
        l1 = newlab('pf'); l2 = newlab('pf'); ld = newlab('pf')
        g('s_cmp_ge_u32 s3, 2')
        g(f's_cbranch_scc1 {l1}')
        srd(g, 24, 4, 5, 1835008)
        g('s_mul_i32 s46, s2, 7168')
        g('s_lshl_b32 s47, s3, 12')
        g('s_add_u32 s46, s46, s47')
        g('v_add_u32 v20, s46, v2')
        for i in range(4):
            g(f'buffer_load_dwordx4 v[{144+4*i}:{147+4*i}], v20, s[24:27], 0 offen offset:{i*1024}')
        g(f's_branch {ld}')
        g.label(l1)
        g('s_cmp_eq_u32 s3, 2')
        g(f's_cbranch_scc0 {l2}')
        srd(g, 24, 6, 7, 1204224)
        g('s_mul_i32 s46, s2, 4704')
        g('v_add_u32 v20, s46, v2')
        g('v_add_u32 v21, 4096, v20')
        for i in range(5):
            g(f'buffer_load_dwordx4 v[{144+4*i}:{147+4*i}], v{20 if i < 4 else 21}, s[24:27], 0 offen offset:{(i%4)*1024}')
        g(f's_branch {ld}')
        g.label(l2)
        g('s_mul_i32 s46, s2, 1568')
        g('v_add_u32 v20, s46, v2')
        srd(g, 24, 8, 9, 448*896)
        for i in range(2):
            g(f'buffer_load_dwordx4 v[{144+4*i}:{147+4*i}], v20, s[24:27], 0 offen offset:{i*1024}')
        srd(g, 28, 14, 15, 448*896)
        for i in range(2):
            g(f'buffer_load_dwordx4 v[{152+4*i}:{155+4*i}], v20, s[28:31], 0 offen offset:{i*1024}')
        g.label(ld)
    XF = 80; WF = 88
    ACCS = {1: 32, 0: 144}
    PS = {1: 112, 0: 208}
    g('v_and_b32 v18, 31, v0')
    g('v_cmp_eq_u32 vcc, 28, v18')
    g('v_mov_b32 v19, 0x3f803f80')
    g('s_nop 0')
    g('v_cndmask_b32_e64 v18, 0, v19, vcc')
    g('s_mov_b32 s60, 0')
    g('s_mov_b32 s61, -1')
    g('s_mov_b32 s58, 0xf0000000')
    g('s_mov_b32 s59, 0xf0000000')
    def reads(n, buf, part):
        kc, ks = divmod(n, 4)
        st = kc % 4
        if part == 0:
            g(f'ds_read_b128 {vr(XF+4*buf,4)}, v{12+ks} offset:{st*16384}')
        for jj in range(2):
            off = st * WSTG + (ks*16 + jj) * WROW + part * 56
            g(f'ds_read_b64_tr_b16 {vr(WF+12*buf+4*part+2*jj,2)}, v16 offset:{off}')
    def mfma1(br, buf, t, first, types2):
        types = types2[br]
        x = XF + 4*buf; wf = WF + 12*buf + 4*t; d = ACCS[br] + 16*t
        c = None if first else d
        g(mfma(d, wf, x, c) if types[t] == 'QK' else mfma(d, x, wf, c))
    def epilogue_list(br, types2):
        types = types2[br]
        c0 = 's52' if br else 's63'
        L = []
        A = L.append
        ACC = ACCS[br]; P = PS[br]
        A('s_lshl_b32 s54, s22, 2')
        A('s_add_u32 s54, s54, s3')
        if br: A('s_add_u32 s54, s54, 1024')
        for t in range(3):
            a = ACC + 16*t; p = P + 8*t
            so = (48, 49, 53)[t]
            A(f's_add_u32 s62, {c0}, {t}')
            A('s_and_b32 s56, s62, 15')
            A('s_lshl_b32 s56, s56, 6')
            A('s_add_u32 s56, s56, s54')
            if types[t] == 'QK':
                A('s_cmp_lt_u32 s62, 16\n' + f's_cselect_b32 s57, {f32bits(QSCALE):#x}, 1.0\n' + 's_cselect_b32 s45, 0, 0x3f80\n' +
                  's_cselect_b32 s46, 11, 12\n' + f's_cselect_b32 s47, {WS_Q}, {WS_KV}')
                A('s_lshl_b32 s56, s56, s46')
                A(f's_add_u32 s{so}, s56, s47')
                A('v_mov_b32 v19, s45')
                for r in range(16): A(f'v_mul_f32 v{a+r}, s57, v{a+r}')
                for i in range(8): A(f'v_cvt_pk_bf16_f32 v{p+i}, v{a+2*i}, v{a+2*i+1}')
                A(f'v_cndmask_b32_e64 v{p+6}, v{p+6}, v19, s[60:61]')
                A(f'v_cndmask_b32_e64 v{p+7}, v{p+7}, 0, s[60:61]')
            else:
                A('s_lshl_b32 s56, s56, 12')
                A(f's_add_u32 s{so}, s56, {WS_KV + 2048}')
                for i in range(8): A(f'v_cvt_pk_bf16_f32 v{p+i}, v{a+2*i}, v{a+2*i+1}')
                for i in range(8): A(f'v_cndmask_b32_e64 v{p+i}, v{p+i}, v18, s[58:59]')
            if br:
                A('s_nop 1\n' + f'buffer_store_dwordx4 {vr(p,4)}, v2, s[32:35], s{so} offen{ST()}')
                A(f'buffer_store_dwordx4 {vr(p+4,4)}, v2, s[32:35], s{so} offen offset:1024{ST()}')
        return L
    g('s_mul_i32 s52, s23, 3')
    g('s_mul_i32 s63, s69, 3')
    T0, T1, T2 = ('QK','QK','QK'), ('QK','QK','V'), ('V','V','V')
    variants = [{1: T0, 0: T0}, {1: T0, 0: T1}, {1: T1, 0: T2}, {1: T2, 0: T2}, {1: T2, 0: T0}]
    g('s_cmp_eq_u32 s23, 9')
    g('s_cbranch_scc1 Lqkv_v1')
    g('s_cmp_eq_u32 s23, 10')
    g('s_cbranch_scc1 Lqkv_v2')
    g('s_cmp_eq_u32 s23, 15')
    g('s_cbranch_scc1 Lqkv_v4')
    g('s_cmp_gt_u32 s23, 10')
    g('s_cbranch_scc1 Lqkv_v3')
    NS = NCH * 4
    SIG_AT = OPT.get('sig_at', 44)
    for vi, types in enumerate(variants):
        if vi: g.label(f'Lqkv_v{vi}')
        g('s_barrier')
        if vi == 0: stamp(g, 2)
        for part in range(3): reads(0, 0, part)
        prefetch()
        epi = []
        EP0, EPN = OPT.get('ep0', 28), OPT.get('epn', 4)
        def fill(k):
            for _ in range(k):
                if epi: g(epi.pop(0))
        for n in range(NS):
            br = 1 if n < 28 else 0
            boundary = (n + 1) % 4 == 0 and n + 1 < NS
            nxt = n + 1 < NS
            buf = n & 1
            first = n % 28 == 0
            if n == EP0:
                epi = ['s_nop 7'] + epilogue_list(1, types)
                per = -(-len(epi) // (EPN * 3))
            inter = EP0 <= n < EP0 + EPN
            if boundary:
                g('s_waitcnt vmcnt(0) lgkmcnt(0)' if n + 1 in (SIG_AT, 24) else 's_waitcnt lgkmcnt(0)')
                g('s_barrier')
                if OPT.get('qkvst') and vi == 0:
                    c1 = (n + 1) // 4
                    m = {2: 5, 4: 6, 6: 7, 8: 8, 10: 9, 11: 10, 12: 13}
                    if c1 in m: stamp(g, m[c1])
                if n + 1 == SIG_AT:
                    sk = newlab('sigB'); ok = newlab('inited'); lp = newlab('initspin')
                    g('s_cmp_lg_u32 s3, 0')
                    g(f's_cbranch_scc1 {sk}')
                    g('v_readfirstlane_b32 s47, v31')
                    g('s_cmp_lg_u32 s47, 0')
                    g(f's_cbranch_scc1 {ok}')
                    g(f's_mov_b32 s68, {OPT["spin"]}')
                    g.label(lp)
                    g('buffer_load_dword v31, v30, s[36:39], 0 offen sc1')
                    g('s_waitcnt vmcnt(0)')
                    g('v_readfirstlane_b32 s47, v31')
                    g('s_cmp_lg_u32 s47, 0')
                    g(f's_cbranch_scc1 {ok}')
                    g('s_sub_u32 s68, s68, 1')
                    g('s_cmp_lg_u32 s68, 0')
                    g(f's_cbranch_scc1 {lp}')
                    g.label(ok)
                    g('s_mov_b64 exec, 1')
                    g('v_mov_b32 v1, 1')
                    g('s_lshl_b32 s47, s23, 8')
                    g(f's_add_u32 s47, s47, {CNT_B}')
                    g('v_mov_b32 v29, s47')
                    g('buffer_atomic_add v1, v29, s[64:67], 0 offen sc1')
                    g('s_mov_b64 exec, -1')
                    g.label(sk)
            else:
                g('s_waitcnt lgkmcnt(4)')
            mfma1(br, buf, 0, first, types)
            if nxt: reads(n + 1, buf ^ 1, 0)
            if inter: fill(per)
            if not boundary: g(f's_waitcnt lgkmcnt({5 if nxt else 2})')
            mfma1(br, buf, 1, first, types)
            if nxt: reads(n + 1, buf ^ 1, 1)
            if inter: fill(per)
            if not boundary: g(f's_waitcnt lgkmcnt({5 if nxt else 0})')
            mfma1(br, buf, 2, first, types)
            if nxt: reads(n + 1, buf ^ 1, 2)
            if inter: fill(per)
            if n == 27 and vi == 0: stamp(g, 3)
        assert not epi
        if vi == 0: stamp(g, 14)
        g('s_barrier')
        if vi == 0: stamp(g, 4)
        init_dma_compute(g)
        for x in epilogue_list(0, types): g(x)
        if vi < 4: g('s_branch Lqkv_fin')
    g.label('Lqkv_fin')
    g('s_branch Lattn_setup')

def qkv_loader(g):
    g.label('Lloader')
    g('s_sub_u32 s43, s3, 4')
    g('s_lshl_b32 s44, s22, 7')
    g('s_lshl_b32 s45, s43, 5')
    g('s_add_u32 s44, s44, s45')
    g('v_lshrrev_b32 v10, 3, v0')
    g('v_add_u32 v10, s44, v10')
    g('v_mul_u32_u24 v10, 896, v10')
    g('v_lshrrev_b32 v11, 4, v0')
    g('v_and_b32 v12, 7, v0')
    g('v_xor_b32 v12, v12, v11')
    g('v_lshl_add_u32 v2, v12, 4, v10')
    g('v_xor_b32 v12, 4, v12')
    g('v_lshl_add_u32 v3, v12, 4, v10')
    g('v_add_u32 v3, 7168, v3')
    g('v_add_u32 v4, 14336, v2')
    g('v_add_u32 v5, 14336, v3')
    g('s_lshl_b32 s46, s43, 12')
    g('s_lshl_b32 s47, s43, 10')
    g('s_add_u32 s47, s47, 65536')
    g('s_lshl_b32 s44, s43, 6')
    g('s_mul_i32 s50, s23, 168')
    g('s_mul_i32 s51, s69, 168')
    def wcalc(n):
        g('v_add_u32 v10, s44, v0')
        if n: g(f'v_add_u32 v10, {256*n}, v10')
        g('v_mul_u32_u24 v11, 5958, v10')
        g('v_lshrrev_b32 v11, 16, v11')
        g('v_mul_u32_u24 v12, 11, v11')
        g('v_sub_u32 v12, v10, v12')
        g('v_and_b32 v13, 48, v11')
        g('v_and_b32 v14, 3, v11')
        g('v_lshl_add_u32 v13, v14, 2, v13')
        g('v_bfe_u32 v14, v11, 2, 2')
        g('v_add_u32 v13, v13, v14')
        g('v_mul_u32_u24 v13, 2688, v13')
        g(f'v_lshl_add_u32 v{6+n}, v12, 4, v13')
    wcalc(0)
    g('s_waitcnt lgkmcnt(0)')
    srd(g, 24, 10, 11, 1835008)
    srd(g, 28, 12, 13, 1204224)
    def issueX(c):
        kc = c % 7; st = c % 4
        sx = 24 if c < 7 else 32
        g(f's_mov_b32 s48, {kc*128}')
        for e in range(4):
            g(f's_add_u32 m0, s46, {st*16384 + e*1024}')
            g('s_nop 0')
            g(f'buffer_load_dwordx4 v{2+e}, s[{sx}:{sx+3}], s48 offen lds')
    def issueW(c, ns=(0, 1, 2)):
        kc = c % 7; st = c % 4
        sw = 28 if c < 7 else 36
        g(f's_add_u32 s49, {"s50" if c < 7 else "s51"}, {kc*64*2688}')
        for n in ns:
            if n == 2:
                sk = newlab('qs')
                g('s_cmp_eq_u32 s43, 3')
                g(f's_cbranch_scc1 {sk}')
            g(f's_add_u32 m0, s47, {st*WSTG + n*4096}')
            g('s_nop 0')
            g(f'buffer_load_dwordx4 v{6+n}, s[{sw}:{sw+3}], s49 offen lds')
            if n == 2: g.label(sk)
    def issue(c):
        issueX(c); issueW(c)
    issueX(0)
    issueW(0, (0,))
    wcalc(1); issueW(0, (1,))
    wcalc(2); issueW(0, (2,))
    srd(g, 32, 4, 5, 1835008)
    srd(g, 36, 6, 7, 1204224)
    srd(g, 64, 20, 21, 0x4000, WS_CNT)
    g('s_and_b32 s40, s2, 7')
    g('s_bfe_u32 s41, s2, 0x10003')
    g('s_lshl_b32 s40, s40, 1')
    g('s_add_u32 s40, s40, s41')
    g('v_min_u32 v30, 2, v0')
    g('v_lshlrev_b32 v30, 4, v30')
    g('v_add_u32 v30, s40, v30')
    g('v_mul_u32_u24 v30, 43, v30')
    g('v_lshrrev_b32 v30, 7, v30')
    g('v_lshlrev_b32 v31, 8, v30')
    g(f'v_add_u32 v203, {CNT_B}, v31')
    for c in range(1, 3): issue(c)
    for c in range(NCH):
        rem = min(2, NCH - 1 - c)
        g(f's_waitcnt vmcnt({1 if c == 13 else 6*rem})')
        g('s_barrier')
        if c + 3 < NCH: issue(c + 3)
        if c == 10: attn_setup(g)
        if c == 11: set_mask(g, 32, 'first')
        if c == 12:
            g('buffer_load_dword v201, v203, s[64:67], 0 offen sc1')
    g('s_waitcnt vmcnt(0)')
    g('v_cmp_ne_u32 vcc, 16, v201')
    g('s_nop 4')
    g('s_cbranch_vccz Lh1_polled')
    spin_until(g, 201, 203, 16)
    g.label('Lh1_polled')
    g('s_barrier')
    stamp(g, 4)
    g('s_add_u32 s47, s44, 0x200000')
    g('s_mov_b32 m0, s51')
    g('s_nop 0')
    for i in range(2):
        g(f'buffer_load_dwordx4 v2, s[24:27], s47 offen offset:{i*1024}{LD()} lds')
    stage_tile(g, 0)
    stage_tile(g, 1)
    stamp(g, 5)
    g('s_waitcnt vmcnt(4)')
    g('s_barrier')
    g('s_branch Lattn_go')

K2_SCR = 131072
QL = 200
def set_mask(g, dst, kind):
    for r in range(16):
        br_ = (r & 3) + 8 * (r >> 2)
        op = 'v_cmp_le_i32' if kind == 'diag' else 'v_cmp_gt_i32'
        g(f'{op} vcc, {br_}, v24')
        g('s_nop 1')
        g(f'v_cndmask_b32_e64 v{dst+r}, v25, 0, vcc')
def attn_setup(g):
    kvb_srd(g)
    g('s_lshr_b32 s41, s2, 4')
    g('s_and_b32 s42, s3, 3')
    g('s_lshr_b32 s43, s3, 2')
    g('v_lshlrev_b32 v2, 4, v0')
    g('s_lshl_b32 s44, s40, 6')
    g('s_lshl_b32 s45, s41, 2')
    g('s_add_u32 s45, s45, s42')
    g('s_add_u32 s44, s44, s45')
    g('s_lshl_b32 s44, s44, 11')
    srd(g, 24, 20, 21, 0x400000)
    g('s_sub_u32 s28, s32, 0x400000')
    g('s_subb_u32 s29, s33, 0')
    g('s_mov_b32 s30, 0x40000')
    g('s_mov_b32 s31, 0x20000')
    srd(g, 36, 20, 21, 0x400000, WS_O)
    g('v_min_u32 v30, 2, v0')
    g('v_lshlrev_b32 v30, 4, v30')
    g('v_add_u32 v30, s40, v30')
    g('v_mul_u32_u24 v30, 43, v30')
    g('v_lshrrev_b32 v30, 7, v30')
    g('v_lshlrev_b32 v31, 8, v30')
    g(f'v_add_u32 v203, {CNT_B}, v31')
    g('s_lshl_b32 s47, s41, 2')
    g('s_add_u32 s47, s47, s3')
    g('s_sub_u32 s47, s47, 8')
    g('s_lshl_b32 s50, s47, 12')
    g('s_cmp_lt_i32 s47, 0')
    g('s_cselect_b32 s50, 0x40000000, s50')
    g('v_add_u32 v28, s50, v2')
    g('s_add_u32 s47, s47, 8')
    g('s_lshl_b32 s50, s47, 12')
    g('v_add_u32 v29, s50, v2')
    g('s_lshl_b32 s47, s42, 12')
    g('v_add_u32 v3, s47, v2')
    g('s_lshl_b32 s47, s43, 14')
    g('v_add_u32 v4, s47, v2')
    g('v_add_u32 v5, 32768, v4')
    g(f'v_add_u32 v6, {K2_SCR}, v3')
    g('s_lshl_b32 s47, s42, 8')
    g(f's_add_u32 s47, s47, {K2_SCR+16384}')
    g('v_lshlrev_b32 v7, 2, v0')
    g('v_add_u32 v7, s47, v7')
    g('s_lshl_b32 s47, s42, 11')
    g(f's_add_u32 s51, s47, {K2_SCR}')
    g(f'v_add_u32 v{QL}, s51, v2')
    g('v_and_b32 v24, 31, v0')
    g('v_lshrrev_b32 v25, 5, v0')
    g('v_lshlrev_b32 v25, 2, v25')
    g('v_sub_u32 v24, v24, v25')
    g(f'v_mov_b32 v25, {NEGBIG:#x}')
    g('s_mov_b32 s60, 0')
    g('s_mov_b32 s61, -1')
    srd(g, 56, 20, 21, 0x1000000)

def phase_attn(g):
    g.label('Lattn_setup')
    QA = 8; QB = 16; MASK = 32; S0 = 48; S1 = 64; P = 80; OA = 88; OB = 104; KF = 120; VF = 128; T = 136
    TK = 144; TS = 152
    MNA = 26; MNB = 27
    SB = [S0, S1]
    attn_setup(g)
    set_mask(g, MASK, 'diag')
    stamp(g, 5)
    g('s_waitcnt vmcnt(4)')
    g('s_barrier')
    g.label('Lattn_go')
    g('s_cmp_eq_u32 s43, 99') if False else None
    def dma4(vreg, s, s_goff, s_m0, n=4, first=0):
        g(f's_mov_b32 m0, {s_m0}')
        g('s_nop 0')
        for i in range(first, first + n):
            g(f'buffer_load_dwordx4 v{vreg}, s[{s}:{s+3}], {s_goff} offen offset:{i*1024}{LD()} lds')
    stamp(g, 6)
    g(f'ds_read_b128 {vr(QB,4)}, v{QL}')
    g(f'ds_read_b128 {vr(QB+4,4)}, v{QL} offset:1024')

    def rowmax(sbuf, t):
        g(f'v_max3_f32 v{t}, v{sbuf}, v{sbuf+1}, v{sbuf+2}')
        for r in range(3, 15, 2):
            g(f'v_max3_f32 v{t}, v{t}, v{sbuf+r}, v{sbuf+r+1}')
        g(f'v_max_f32 v{t}, v{t}, v{sbuf+15}')
        g(f'v_mov_b32 v{t+1}, v{t}')
        g('s_nop 1')
        g(f'v_permlane32_swap_b32 v{t}, v{t+1}')
        g('s_nop 1')
        g(f'v_max_f32 v{t}, v{t}, v{t+1}')
    def set_standin(sbuf, q, mneg):
        t = T
        rowmax(sbuf, t)
        g(f'v_sub_f32 v{t}, 0, v{t}')
        g(f'v_cvt_pk_bf16_f32 v{t}, v{t}, 0')
        g(f'v_lshlrev_b32 v{mneg}, 16, v{t}')
        g('s_mov_b64 exec, s[60:61]')
        g(f'v_mov_b32 v{q+4+2}, v{t}')
        g('s_mov_b64 exec, -1')
    def write_partial(O, mn):
        for i in range(4): g(f'ds_write_b128 v6, {vr(O+4*i,4)} offset:{i*1024}')
        g(f'ds_write_b32 v7, v{mn}')
    FB = 144
    def finish(tag, br, O, mn, q, tmp):
        for i in range(4): g(f'ds_read_b128 {vr(tmp+4*i,4)}, v6 offset:{i*1024}')
        g(f'ds_read_b32 v{T}, v7')
        g('s_waitcnt lgkmcnt(0)')
        g(f'v_min_f32 v{T+1}, v{mn}, v{T}')
        g(f'v_sub_f32 v{T+2}, v{T+1}, v{mn}')
        g(f'v_sub_f32 v{T+3}, v{T+1}, v{T}')
        g(f'v_exp_f32 v{T+2}, v{T+2}')
        g(f'v_exp_f32 v{T+3}, v{T+3}')
        g('s_nop 0')
        for r in range(16): g(f'v_mul_f32 v{O+r}, v{O+r}, v{T+2}')
        for r in range(16): g(f'v_fmac_f32 v{O+r}, v{tmp+r}, v{T+3}')
        g(f'v_mov_b32 v{T}, v{O+12}')
        g(f'v_mov_b32 v{T+1}, v{O+12}')
        g(f'v_mul_f32 v{T+4}, 0, v{O}')
        g(f'v_fmac_f32 v{T+4}, 0, v{O+1}')
        g(f'v_permlane32_swap_b32 v{T}, v{T+1}')
        for r in range(2, 16): g(f'v_fmac_f32 v{T+4}, 0, v{O+r}')
        g(f'v_add_f32 v{T+4}, v{T+4}, v{T+1}')
        g(f's_mov_b32 s47, {f32bits(2.0**100):#x}')
        g(f'v_cmp_ngt_f32 vcc, s47, v{T+4}')
        g('s_nop 4')
        g(f's_cbranch_vccz L{tag}_ok')
        fallback(tag, br, O, q)
        g(f'v_mov_b32 v{T}, v{O+12}')
        g(f'v_mov_b32 v{T+1}, v{O+12}')
        g('s_nop 1')
        g(f'v_permlane32_swap_b32 v{T}, v{T+1}')
        g('s_nop 1')
        g.label(f'L{tag}_ok')
        g(f'v_rcp_f32 v{T+1}, v{T+1}')
        g('s_nop 0')
        for r in range(16): g(f'v_mul_f32 v{O+r}, v{O+r}, v{T+1}')
        for i in range(8): g(f'v_cvt_pk_bf16_f32 v{tmp+i}, v{O+2*i}, v{O+2*i+1}')
        g('s_mov_b64 exec, s[60:61]')
        g(f'v_mov_b32 v{tmp+6}, 0')
        g(f'v_mov_b32 v{tmp+7}, 0')
        g('s_mov_b64 exec, -1')
        g('s_lshl_b32 s47, s41, 2')
        g('s_add_u32 s47, s47, s42')
        g(f's_add_u32 s47, s47, {br*64}')
        g('s_lshl_b32 s47, s47, 4')
        g('s_add_u32 s47, s47, s40')
        g('s_lshl_b32 s47, s47, 11')
        g('s_nop 0')
        g(f'buffer_store_dwordx4 {vr(tmp,4)}, v2, s[36:39], s47 offen{ST()}')
        g(f'buffer_store_dwordx4 {vr(tmp+4,4)}, v2, s[36:39], s47 offen offset:1024{ST()}')
        g('s_nop 1')
    def fallback(tag, br, O, q):
        FS, FK, FV, FP, FQ, Fm = FB, FB+16, FB+24, FB+32, FB+40, FB+48
        s = 28 if br == 0 else 32
        for i in range(8): g(f'v_mov_b32 v{FQ+i}, v{q+i}')
        g('s_mov_b64 exec, s[60:61]')
        g(f'v_mov_b32 v{FQ+6}, 0')
        g('s_mov_b64 exec, -1')
        for r in range(16): g(f'v_mov_b32 v{O+r}, 0')
        g(f'v_mov_b32 v{Fm}, v25')
        if br == 0:
            g('s_lshl_b32 s52, s41, 2')
            g('s_add_u32 s52, s52, s42')
            g('s_sub_u32 s53, s52, 8')
            g('s_mov_b32 s54, s52')
        else:
            g('s_mov_b32 s54, 63')
        g.label(f'L{tag}_fb_loop')
        g('s_lshl_b32 s55, s54, 12')
        for i in range(2):
            g(f'buffer_load_dwordx4 {vr(FK+4*i,4)}, v2, s[{s}:{s+3}], s55 offen offset:{i*1024}{LD()}')
            g(f'buffer_load_dwordx4 {vr(FV+4*i,4)}, v2, s[{s}:{s+3}], s55 offen offset:{2048+i*1024}{LD()}')
        if br == 0:
            g('s_cmp_eq_u32 s54, s52')
            g(f's_cbranch_scc1 L{tag}_fb_diag')
            g('s_cmp_eq_u32 s54, s53')
            g(f's_cbranch_scc1 L{tag}_fb_first')
        for r in range(16): g(f'v_mov_b32 v{FS+r}, 0')
        if br == 0:
            g(f's_branch L{tag}_fb_go')
            g.label(f'L{tag}_fb_diag')
            set_mask(g, FS, 'diag')
            g(f's_branch L{tag}_fb_go')
            g.label(f'L{tag}_fb_first')
            set_mask(g, FS, 'first')
            g.label(f'L{tag}_fb_go')
        g('s_waitcnt vmcnt(0)')
        g('s_nop 1')
        g(mfma(FS, FK, FQ, FS))
        g(mfma(FS, FK+4, FQ+4, FS))
        g('s_nop 15')
        rowmax(FS, Fm+1)
        g(f'v_max_f32 v{Fm+1}, v{Fm+1}, v{Fm}')
        g(f'v_sub_f32 v{Fm+2}, v{Fm}, v{Fm+1}')
        g(f'v_exp_f32 v{Fm+2}, v{Fm+2}')
        g(f'v_mov_b32 v{Fm}, v{Fm+1}')
        for r in range(16): g(f'v_sub_f32 v{FS+r}, v{FS+r}, v{Fm}')
        for r in range(16): g(f'v_exp_f32 v{FS+r}, v{FS+r}')
        for r in range(16): g(f'v_mul_f32 v{O+r}, v{O+r}, v{Fm+2}')
        for i in range(8): g(f'v_cvt_pk_bf16_f32 v{FP+i}, v{FS+2*i}, v{FS+2*i+1}')
        g('s_nop 1')
        g(mfma(O, FV, FP, O))
        g(mfma(O, FV+4, FP+4, O))
        g('s_nop 15')
        g('s_sub_u32 s54, s54, 1')
        g('s_cmp_lt_i32 s54, 0')
        g(f's_cbranch_scc1 L{tag}_fb_end')
        if br == 0:
            g('s_cmp_lt_i32 s54, s53')
            g(f's_cbranch_scc1 L{tag}_fb_end')
        g(f's_branch L{tag}_fb_loop')
        g.label(f'L{tag}_fb_end')

    g('s_cmp_eq_u32 s43, 0')
    g('s_cbranch_scc0 Lattn_kh1')

    def path(kh):
        tag = f'K{kh}'
        unitsA = [8, 7, 6, 5, 4] if kh == 0 else [3, 2, 1, 0]
        nA = len(unitsA); N = 32 + nA
        def unit(i):
            if i >= 32:
                u = unitsA[i - 32]
                masked = (kh == 0 and u == 8) or (kh == 1 and u == 0)
                return dict(base=3, off=u*4096, Q=QA, O=OA, C=MASK if masked else None, first=(i == 32))
            return dict(b=i, Q=QB, O=OB, C=None, first=(i == 0))
        def addr(i, cs):
            u = unit(i)
            if 'base' in u: return u['base'], u['off']
            b = u['b']; s = b >> 2
            if s == cs: return 4, (b & 3) * 4096
            assert s == cs + 1
            return 5, (b & 3) * 4096
        def rdK(i, cs, dst=KF):
            r, off = addr(i, cs)
            g(f'ds_read_b128 {vr(dst,4)}, v{r} offset:{off}')
            g(f'ds_read_b128 {vr(dst+4,4)}, v{r} offset:{off+1024}')
        def rdV(i, f, cs):
            r, off = addr(i, cs)
            g(f'ds_read_b128 {vr(VF+4*f,4)}, v{r} offset:{off+2048+f*1024}')
        rdK(0, 0)
        g('s_waitcnt lgkmcnt(0)')
        g(mfma(S0, KF, QB, None))
        g(mfma(S0, KF+4, QB+4, S0))
        g('s_nop 15')
        set_standin(S0, QB, MNB)
        g('s_nop 1')
        g(mfma(S0, KF, QB, None))
        g(mfma(S0, KF+4, QB+4, S0))
        rdK(1, 0)
        rdV(0, 0, 0)
        g('s_nop 15')
        if kh == 0: stamp(g, 7)
        if OPT.get('attst'): stamp(g, 2, q=True)
        def wo_piece(it):
            if it == 7:
                sk = newlab('wo7')
                g('s_cmp_lg_u32 s3, 0')
                g(f's_cbranch_scc1 {sk}')
                g(f's_add_u32 m0, s45, {65536 + it*8192}')
                g(f'v_add_u32 v31, {it*64*896}, v30')
                g('buffer_load_dwordx4 v31, s[56:59], 0 offen lds')
                g.label(sk)
            else:
                g(f's_add_u32 m0, s45, {65536 + it*8192}')
                g(f's_mov_b32 s50, {it*64*896}')
                g('buffer_load_dwordx4 v30, s[56:59], s50 offen lds')
        def wo_setup():
            g('s_mov_b32 s56, s14')
            g('s_mov_b32 s57, s15')
            g(f's_mov_b32 s58, {448*896}')
            g('s_mov_b32 s59, 0x20000')
            g('v_lshrrev_b32 v30, 3, v0')
            g('v_and_b32 v31, 7, v0')
            g('v_and_b32 v1, 2, v30')
            g('v_lshlrev_b32 v1, 1, v1')
            g('v_xor_b32 v31, v31, v1')
            g('s_lshl_b32 s50, s3, 3')
            g('v_add_u32 v30, s50, v30')
            g('v_mul_u32_u24 v30, 896, v30')
            g('v_lshl_add_u32 v30, v31, 4, v30')
            g('s_lshr_b32 s50, s2, 5')
            g('s_lshl_b32 s50, s50, 7')
            g('s_cmp_ge_u32 s2, 224')
            g('s_cselect_b32 s50, 0x40000000, s50')
            g('v_add_u32 v30, s50, v30')
            g('s_lshl_b32 s45, s3, 10')
        def dma_slot(i, inloop):
            if i == 0 or i == 1:
                st = i + 2
                g(f's_add_u32 s54, s55, {st*32768}')
                g(f's_add_u32 m0, s55, {(st&3)*32768}')
                g('s_nop 0')
                for k in range(4):
                    g(f'buffer_load_dwordx4 v2, s[32:35], s54 offen offset:{k*1024}{LD()} lds')
                return
            if i == 2 and kh == 0:
                for t in range(3):
                    g(f'buffer_store_dwordx4 {vr(208+8*t,4)}, v2, s[56:59], s{(48,49,53)[t]} offen{ST()}')
                    g(f'buffer_store_dwordx4 {vr(212+8*t,4)}, v2, s[56:59], s{(48,49,53)[t]} offen offset:1024{ST()}')
                return
            if i >= 30:
                if i == 30: wo_setup()
                before34 = {30: [0], 31: [1], 32: [2], 33: [3], 34: [4, 5], 35: [6, 7]}
                for it in before34.get(i, []): wo_piece(it)
                return
            if i < 6: return
            ph = (i - 2) & 3; st = ((i - 2) >> 2) + 3
            if i == 18:
                g('buffer_load_dword v201, v31, s[64:67], 0 offen sc1')
            if st <= 7:
                if ph == 0:
                    g(f's_add_u32 s54, s55, {st*32768}')
                    g(f's_add_u32 m0, s55, {(st&3)*32768}')
                    g('s_nop 0')
                g(f'buffer_load_dwordx4 v2, s[32:35], s54 offen offset:{ph*1024}{LD()} lds')
            elif st == 8:
                if ph == 0:
                    ok = newlab('aok')
                    g('v_cmp_ne_u32 vcc, 16, v201')
                    g('s_nop 4')
                    g(f's_cbranch_vccz {ok}')
                    spin_until(g, 201, 31, 16)
                    g.label(ok)
                    if kh == 1:
                        g('s_add_u32 s47, s51, 8192')
                        dma4(2, 24, 's44', 's47', n=2)
                    g('s_mov_b32 m0, s55')
                    g('s_nop 0')
                g(f'buffer_load_dwordx4 v28, s[28:31], 0 offen offset:{ph*1024}{LD()} lds')
            elif st == 9 and ph == 0 and kh == 0:
                g('s_add_u32 m0, s55, 32768')
                g('s_nop 0')
                for k in range(4):
                    g(f'buffer_load_dwordx4 v29, s[28:31], 0 offen offset:{k*1024}{LD()} lds')
        def body(i, cs, inloop=False):
            u = unit(i)
            sb = SB[i & 1]; sn = SB[(i + 1) & 1]
            e = [f'v_exp_f32 v{sb+r}, v{sb+r}' for r in range(16)]
            c = [f'v_cvt_pk_bf16_f32 v{P+k}, v{sb+2*k}, v{sb+2*k+1}' for k in range(8)]
            has1 = i + 1 < N; has2 = i + 2 < N
            if i < 32 and (i & 3) == 2:
                s = i >> 2
                if s == 7: vm = 0
                elif s == 0: vm = 8
                elif s == 1: vm = 4 if kh == 1 else 10
                elif s == 2: vm = 4 if kh == 1 else 10
                else: vm = 4
                if OPT.get('attst') and s in (0, 1, 2, 3, 5, 7): stamp(g, {0: 3, 1: 5, 2: 7, 3: 9, 5: 11, 7: 13}[s], q=True)
                g(f's_waitcnt vmcnt({vm}) lgkmcnt(0)' if vm is not None else 's_waitcnt lgkmcnt(0)')
                g('s_barrier')
                if OPT.get('attst') and s in (0, 1, 2, 3, 5, 7): stamp(g, {0: 4, 1: 6, 2: 8, 3: 10, 5: 12, 7: 14}[s], q=True)
                if s == 3 and kh == 1:
                    sk = newlab('sigA')
                    g('s_cmp_lg_u32 s3, 4')
                    g(f's_cbranch_scc1 {sk}')
                    g('s_mov_b64 exec, 1')
                    g('v_mov_b32 v1, 1')
                    g('s_lshl_b32 s47, s69, 8')
                    g('v_mov_b32 v202, s47')
                    g('buffer_atomic_add v1, v202, s[64:67], 0 offen sc1')
                    g('s_mov_b64 exec, -1')
                    g.label(sk)
                if s == 6:
                    g(f'ds_read_b128 {vr(QA,4)}, v{QL} offset:8192')
                    g(f'ds_read_b128 {vr(QA+4,4)}, v{QL} offset:9216')
                if s == 7:
                    rdK(32, cs, TK)
                    g('s_waitcnt lgkmcnt(0)')
                    g(mfma(TS, TK, QA, unit(32)['C']))
                    g(mfma(TS, TK+4, QA+4, TS))
                    g('s_nop 15')
                    set_standin(TS, QA, MNA)
                    if kh == 1:
                        g('s_lshl_b32 s47, s41, 2')
                        g('s_add_u32 s47, s47, s42')
                        g('s_cmp_lt_u32 s47, 5')
                        g(f's_cbranch_scc0 L{tag}_valid')
                        g(f'v_mov_b32 v{MNA}, {POSBIG:#x}')
                        g.label(f'L{tag}_valid')
            elif i == 34:
                g('s_waitcnt lgkmcnt(0)')
                g('s_barrier')
                if kh == 1:
                    finish('FB', 1, OB, MNB, QB, TS)
            else:
                g('s_waitcnt lgkmcnt(0)')
            if OPT.get('prio', 'lag') == 'lag':
                g(f's_setprio {3 - ((i - 2) & 3)}')
            g(e[0])
            if i > 0:
                up = unit(i - 1)
                g(mfma(up['O'], VF+4, P+4, up['O']))
            rdV(i, 1, cs)
            g(e[1]); g(e[2]); g(e[3])
            g(c[0])
            if i == 33 and kh == 0:
                write_partial(OB, MNB)
            if has1:
                un = unit(i + 1)
                g(mfma(sn, KF, un['Q'], un['C']))
            g(e[4]); g(e[5]); g(c[1]); g(e[6]); g(e[7]); g(c[2])
            if has1:
                g(mfma(sn, KF+4, un['Q']+4, sn))
            if has2:
                rdK(i + 2, cs)
            g(e[8]); g(c[3]); g(e[9]); g(e[10])
            dma_slot(i, inloop)
            g(e[11])
            g(mfma(u['O'], VF, P, None if u['first'] else u['O']))
            if has1:
                rdV(i + 1, 0, cs)
            for x in e[12:16]: g(x)
            g(c[4]); g(c[5]); g(c[6]); g(c[7])
        def advance():
            g('v_mov_b32 v4, v5')
            g('v_add_u32 v5, 32768, v5')
            g('v_and_b32 v5, 0x1ffff, v5')
        return body, advance, N, tag
    for kh in (0, 1):
        if kh == 1: g.label('Lattn_kh1')
        body, advance, N, tag = path(kh)
        for s_ in range(7):
            for j in range(4): body(4*s_ + j, s_)
            advance()
        for j in range(4): body(28 + j, 7)
        if kh == 0: stamp(g, 8)
        for i in range(32, N): body(i, 7)
        g('s_waitcnt lgkmcnt(0)')
        g('s_nop 1')
        g(mfma(OA, VF+4, P+4, OA))
        g('s_nop 15')
        if kh == 1:
            write_partial(OA, MNA)
            g('s_waitcnt vmcnt(3) lgkmcnt(0)')
            g('s_barrier')
            stamp(g, 9)
            proj_group_B(g)
        else:
            g('s_barrier')
            finish('FA', 0, OA, MNA, QA, MASK)
            stamp(g, 9)
            proj_group_A(g)
    proj_common(g)

PJ_EX = 131072
def proj_setup(g, br):
    g(f's_mov_b32 s40, {br}')
    g('s_and_b32 s41, s2, 7')
    g('s_lshl_b32 s41, s41, 2')
    g('s_bfe_u32 s42, s2, 0x20003')
    g('s_add_u32 s41, s41, s42')
    g('s_lshr_b32 s42, s2, 5')
    g('s_and_b32 s43, s3, 1')
    g('s_bfe_u32 s44, s3, 0x10001')
    srd(g, 24, 16, 17, 2048 * 1792)
    g('s_lshl_b32 s45, s41, 1')
    g('s_add_u32 s45, s45, s43')
    g(f's_add_u32 s45, s45, {br*64}')
    g('s_lshl_b32 s45, s45, 15')
    g('s_lshl_b32 s46, s44, 14')
    g('s_add_u32 s45, s45, s46')
    g('v_bfe_u32 v4, v0, 2, 2')
    g('v_and_b32 v5, 3, v0')
    g('v_bfe_u32 v7, v0, 4, 1')
    g('v_lshrrev_b32 v6, 5, v0')
    g('v_lshlrev_b32 v7, 5, v7')
    g('v_lshl_add_u32 v7, v5, 3, v7')
    g('v_lshrrev_b32 v11, 4, v7')
    g('v_and_b32 v8, 2, v4')
    g('v_lshlrev_b32 v8, 1, v8')
    g('v_xor_b32 v11, v11, v8')
    g('v_and_b32 v7, 15, v7')
    g('v_lshl_add_u32 v7, v11, 4, v7')
    g('v_lshl_add_u32 v4, v6, 2, v4')
    g('v_lshl_add_u32 v9, v4, 7, v7')
    g('s_mul_i32 s46, s44, 28672')
    if br: g('s_add_u32 s46, s46, 65536')
    g('v_add_u32 v9, s46, v9')
    g('v_xor_b32 v10, 64, v9')
    g('s_lshl_b32 s46, s43, 1')
    g('s_add_u32 s46, s46, s44')
    g(f's_add_u32 s46, s46, {br*4}')
    g('s_lshl_b32 s46, s46, 12')
    g(f's_add_u32 s46, s46, {PJ_EX}')
    g('v_add_u32 v12, s46, v2')
    g('v_xor_b32 v13, 4096, v12')
    g('s_lshr_b32 s46, s41, 1')
    g('s_lshl_b32 s46, s46, 8')
    g(f's_add_u32 s46, s46, {CNT_OB if br else CNT_OA}')
    g('v_mov_b32 v30, s46')
def o_loads(g):
    OF = 64
    for n in range(16):
        if n % 4 == 0 and n > 0: g('s_add_u32 s45, s45, 4096')
        g(f'buffer_load_dwordx4 {vr(OF+4*n,4)}, v2, s[36:39], s45 offen offset:{(n%4)*1024}{LD()}')
def signal_o(g, cnt, wave):
    sk = newlab('sigO')
    g(f's_cmp_lg_u32 s3, {wave}')
    g(f's_cbranch_scc1 {sk}')
    g('s_mov_b64 exec, 1')
    g('v_mov_b32 v1, 1')
    g('s_lshl_b32 s47, s41, 8')
    g(f's_add_u32 s47, s47, {cnt}')
    g('v_mov_b32 v31, s47')
    g('buffer_atomic_add v1, v31, s[64:67], 0 offen sc1')
    g('s_mov_b64 exec, -1')
    g.label(sk)
def proj_group_B(g):
    signal_o(g, CNT_OB, 4)
    g('s_cmp_ge_u32 s2, 224')
    g('s_cbranch_scc1 Lpj_idleB')
    srd(g, 56, 8, 9, 448*896)
    g('v_lshrrev_b32 v30, 3, v0')
    g('v_and_b32 v31, 7, v0')
    g('v_and_b32 v1, 2, v30')
    g('v_lshlrev_b32 v1, 1, v1')
    g('v_xor_b32 v31, v31, v1')
    g('s_and_b32 s50, s3, 3')
    g('s_lshl_b32 s51, s50, 3')
    g('v_add_u32 v30, s51, v30')
    g('v_mul_u32_u24 v30, 896, v30')
    g('v_lshl_add_u32 v30, v31, 4, v30')
    g('s_lshr_b32 s51, s2, 5')
    g('s_lshl_b32 s51, s51, 7')
    g('v_add_u32 v30, s51, v30')
    g('s_lshl_b32 s52, s50, 10')
    sk = newlab('woA')
    for it in range(15):
        if it == 14:
            g('s_cmp_lg_u32 s50, 0')
            g(f's_cbranch_scc1 {sk}')
        g(f's_add_u32 m0, s52, {it*4096}')
        if it == 14:
            g(f'v_add_u32 v31, {it*32*896}, v30')
            g('buffer_load_dwordx4 v31, s[56:59], 0 offen lds')
        else:
            g(f's_mov_b32 s51, {it*32*896}')
            g('buffer_load_dwordx4 v30, s[56:59], s51 offen lds')
    g.label(sk)
    proj_setup(g, 1)
    g('s_waitcnt vmcnt(0)')
    g('s_barrier')
    spin_until(g, 1, 30, 16)
    stamp(g, 10)
    o_loads(g)
    g('s_branch Lproj_common')
    g.label('Lpj_idleB')
    g('s_barrier')
    g('s_branch Lend')
def proj_group_A(g):
    g('s_waitcnt vmcnt(0)')
    g('s_mov_b64 exec, 1')
    g('v_mov_b32 v1, 1')
    g('s_lshl_b32 s47, s41, 8')
    g(f's_add_u32 s47, s47, {CNT_OA}')
    g('v_mov_b32 v31, s47')
    g('buffer_atomic_add v1, v31, s[64:67], 0 offen sc1')
    g('s_mov_b64 exec, -1')
    g('s_cmp_ge_u32 s2, 224')
    sk = newlab('idleA')
    g(f's_cbranch_scc1 {sk}')
    proj_setup(g, 0)
    g('s_barrier')
    spin_until(g, 1, 30, 64)
    stamp(g, 10)
    o_loads(g)
    g('s_branch Lproj_common')
    g.label(sk)
    g('s_barrier')
    g('s_branch Lend')
def proj_common(g):
    g.label('Lproj_common')
    OF = 64; ACC = 16; WF = 48
    def rd(n, buf):
        h, i = divmod(n, 2)
        for ct in range(2):
            for jj in range(2):
                off = (28*h + 16*i + 8*jj) * 128
                g(f'ds_read_b64_tr_b16 {vr(WF+8*buf+4*ct+2*jj,2)}, v{9+ct} offset:{off}')
    rd(0, 0)
    for n in range(16):
        if n + 1 < 16: rd(n + 1, (n + 1) & 1)
        g(f's_waitcnt vmcnt({15-n}) lgkmcnt({4 if n + 1 < 16 else 0})')
        for ct in range(2):
            g(mfma(ACC + 16*ct, WF + 8*(n & 1) + 4*ct, OF + 4*n, None if n == 0 else ACC + 16*ct))
    g('s_nop 15')
    stamp(g, 12)
    g('s_cmp_eq_u32 s44, 0')
    g('s_cbranch_scc0 Lpj_k1')
    for i in range(4): g(f'ds_write_b128 v12, {vr(ACC+16+4*i,4)} offset:{i*1024}')
    g('s_branch Lpj_k2')
    g.label('Lpj_k1')
    for i in range(4): g(f'ds_write_b128 v12, {vr(ACC+4*i,4)} offset:{i*1024}')
    for r in range(16): g(f'v_mov_b32 v{ACC+r}, v{ACC+16+r}')
    g.label('Lpj_k2')
    g('s_waitcnt lgkmcnt(0)')
    g('s_barrier')
    for i in range(4): g(f'ds_read_b128 {vr(64+4*i,4)}, v13 offset:{i*1024}')
    g('v_and_b32 v4, 31, v0')
    g('s_lshl_b32 s46, s41, 6')
    g('s_lshl_b32 s47, s43, 5')
    g('s_add_u32 s46, s46, s47')
    g('v_add_u32 v4, s46, v4')
    g('v_mul_u32_u24 v4, 1792, v4')
    g('v_lshl_add_u32 v4, v6, 4, v4')
    g('s_mul_i32 s46, s40, 896')
    g('s_lshl_b32 s47, s42, 7')
    g('s_add_u32 s46, s46, s47')
    g('s_lshl_b32 s47, s44, 6')
    g('s_add_u32 s46, s46, s47')
    g('s_waitcnt lgkmcnt(0)')
    for r in range(16): g(f'v_add_f32 v{ACC+r}, v{ACC+r}, v{64+r}')
    P = 48
    for i in range(8): g(f'v_cvt_pk_bf16_f32 v{P+i}, v{ACC+2*i}, v{ACC+2*i+1}')
    g('s_nop 1')
    for k in range(2):
        a = P + 4*k
        g(f'v_permlane32_swap_b32 v{a}, v{a+2}')
        g(f'v_permlane32_swap_b32 v{a+1}, v{a+3}')
    g('s_nop 1')
    for k in range(2):
        g(f'buffer_store_dwordx4 {vr(P+4*k,4)}, v4, s[24:27], s46 offen offset:{32*k}')

HEADER = '''; Kernarg layout for this problem (72 bytes, ptrs only, base s[0:1]):
'''
def main(out):
    g = Gen()
    g.raw(f'.globl {NAME}')
    g.raw('.p2align 8')
    g.raw(f'.type {NAME},@function')
    g.label(NAME)
    g('s_cmp_ge_u32 s2, 256')
    g('s_cbranch_scc1 Lexit')
    if OPT.get('tl'):
        for r in range(70, 102): g(f's_mov_b32 s{r}, 0')
    stamp(g, 0); stamp(g, 15, True)
    g('s_load_dwordx16 s[4:19], s[0:1], 0')
    g('s_load_dwordx2 s[20:21], s[0:1], 64')
    g('v_lshrrev_b32 v1, 6, v0')
    g('v_and_b32 v0, 63, v0')
    g('s_nop 0')
    g('v_readfirstlane_b32 s3, v1')
    prologue(g)
    qkv_compute(g)
    qkv_loader(g)
    phase_attn(g)
    g.label('Lend')
    if OPT['stamps'] or OPT.get('tl'): g('s_waitcnt vmcnt(0)')
    stamp(g, 13)
    if OPT.get('tl'):
        sk = newlab('tl')
        g('s_cmp_lg_u32 s3, 0')
        g(f's_cbranch_scc1 {sk}')
        g('s_waitcnt lgkmcnt(0)')
        srd(g, 56, 18, 19, 256)
        g('s_mov_b64 exec, 1')
        g('s_not_b32 s68, s70')
        g('v_mov_b32 v1, s68')
        g('v_mov_b32 v3, 0')
        g('buffer_atomic_umax v1, v3, s[56:59], 0 offen offset:4')
        for k, i in enumerate((0, 2, 3, 4, 6, 8, 9, 10, 11, 12, 13)):
            g(f'v_mov_b32 v{4+k}, s{70+2*i}')
            g(f'buffer_atomic_umax v{4+k}, v3, s[56:59], 0 offen offset:{8+4*k}')
        g('s_waitcnt vmcnt(0)')
        g.label(sk)
    if OPT['stamps']: g('s_memrealtime s[72:73]')
    stamp_dump(g)
    g.label('Lexit')
    g('s_endpgm')
    txt = HEADER + f'; @launch grid=(256,1,1) block=(512,1,1) lds={LDS_BYTES}\n'
    txt += '.amdgcn_target "amdgcn-amd-amdhsa--gfx950"\n.text\n' + g.text()
    txt += f'''.section .rodata,"a"
.p2align 6
.amdhsa_kernel {NAME}
  .amdhsa_next_free_vgpr 232
  .amdhsa_next_free_sgpr 102
  .amdhsa_accum_offset 232
  .amdhsa_group_segment_fixed_size 0
  .amdhsa_kernarg_size 72
  .amdhsa_user_sgpr_count 2
  .amdhsa_user_sgpr_kernarg_segment_ptr 1
  .amdhsa_system_sgpr_workgroup_id_x 1
.end_amdhsa_kernel
'''
    open(out, 'w').write(txt)

if __name__ == '__main__':
    out = sys.argv[1] if len(sys.argv) > 1 else 'concat_heads__sliding_block__softmax_full_mha__prompt.s'
    for a in sys.argv[2:]:
        if '=' in a:
            k, v = a.split('=', 1)
            OPT[k] = v if k in ('st', 'ld', 'prio') else (int(v) if v.isdigit() else v)
        else:
            OPT[a] = True
    main(out)
```

```python
import sys, math, struct

def f32bits(x): return struct.unpack('<I', struct.pack('<f', x))[0]

class Gen:
    def __init__(self): self.lines = []
    def __call__(self, s):
        for l in s.split('\n'):
            l = l.strip()
            if l: self.lines.append('  ' + l)
    def label(self, s): self.lines.append(s + ':')
    def raw(self, s): self.lines.append(s)
    def text(self): return '\n'.join(self.lines) + '\n'

def vr(base, n): return f'v[{base}:{base+n-1}]'
def mfma(d, a, b, c):
    cs = '0' if c is None else vr(c, 16)
    return f'v_mfma_f32_32x32x16_bf16 {vr(d,16)}, {vr(a,4)}, {vr(b,4)}, {cs}'

OPT = dict(stamps=False, st='sc1', ld='', spin=200000)
NAME = 'concat_heads__sliding_block__softmax_full_mha__prompt_kernel'
STAMP_BASE = 0x2000000
def stamp(g, i, real=False, q=False):
    if OPT.get('tl'):
        if i in (0, 2, 3, 4, 6, 8, 9, 10, 11, 12, 13): g(f's_memrealtime s[{70+2*i}:{71+2*i}]')
        return
    if not OPT['stamps']: return
    import inspect
    if OPT.get('qkvst') and 5 <= i <= 13:
        caller = inspect.stack()[1].function
        if caller != 'qkv_compute': return
    if OPT.get('attst') and 2 <= i <= 14 and not q: return
    op = 's_memrealtime' if real else 's_memtime'
    g(f'{op} s[{70+2*i}:{71+2*i}]')
def stamp_dump(g):
    if not OPT['stamps']: return
    g('s_waitcnt lgkmcnt(0) vmcnt(0)')
    g(f's_add_u32 s64, s20, {STAMP_BASE}')
    g(f's_addc_u32 s65, s21, 0')
    g('s_mov_b32 s66, 0x100000')
    g('s_mov_b32 s67, 0x20000')
    g('s_mov_b64 exec, -1')
    g('v_mov_b32 v1, 0')
    for i in range(16):
        g(f'v_writelane_b32 v1, s{70+2*i}, {i}')
    g('s_lshl_b32 s68, s2, 3')
    g('s_add_u32 s68, s68, s3')
    g('s_lshl_b32 s68, s68, 6')
    g('v_lshlrev_b32 v3, 2, v0')
    g('v_cmp_gt_u32 vcc, 16, v0')
    g('s_and_saveexec_b64 s[62:63], vcc')
    g('buffer_store_dword v1, v3, s[64:67], s68 offen')
    g('s_waitcnt vmcnt(0)')

WS_Q = 0
WS_KV = 0x400000
WS_O = 0xC00000
WS_CNT = 0x1000000
CNT_A, CNT_B, CNT_OA, CNT_OB = 0, 16 * 256, 32 * 256, 48 * 256
QSCALE = (28 ** -0.5) * math.log2(math.e)
NEGBIG = 0xf149f2ca
POSBIG = 0x7149f2ca
LDS_BYTES = 163840

def srd(g, dst, lo, hi, nbytes, add=0):
    if add:
        g(f's_add_u32 s{dst}, s{lo}, {add}')
        g(f's_addc_u32 s{dst+1}, s{hi}, 0')
    else:
        g(f's_mov_b32 s{dst}, s{lo}')
        g(f's_mov_b32 s{dst+1}, s{hi}')
    g(f's_mov_b32 s{dst+2}, {nbytes}')
    g(f's_mov_b32 s{dst+3}, 0x20000')
def ST(): return (' ' + OPT['st']) if OPT['st'] else ''
def LD(): return (' ' + OPT['ld']) if OPT['ld'] else ''
lab = [0]
def newlab(p):
    lab[0] += 1
    return f'L{p}_{lab[0]}'

def spin_until(g, vdst, voff, target, tmp=205):
    l0 = newlab('poll'); l1 = newlab('pdone')
    g(f's_mov_b32 s68, {OPT["spin"]}')
    g(f'buffer_load_dword v{vdst}, v{voff}, s[64:67], 0 offen sc1')
    g.label(l0)
    g(f'buffer_load_dword v{tmp}, v{voff}, s[64:67], 0 offen sc1')
    g('s_waitcnt vmcnt(1)')
    g(f'v_cmp_ne_u32 vcc, {target}, v{vdst}')
    g('s_nop 4')
    g(f's_cbranch_vccz {l1}')
    g(f'buffer_load_dword v{vdst}, v{voff}, s[64:67], 0 offen sc1')
    g('s_waitcnt vmcnt(1)')
    g(f'v_cmp_ne_u32 vcc, {target}, v{tmp}')
    g('s_nop 4')
    g(f's_cbranch_vccz {l1}')
    g('s_sub_u32 s68, s68, 1')
    g('s_cmp_lg_u32 s68, 0')
    g(f's_cbranch_scc1 {l0}')
    g.label(l1)
    g('s_waitcnt vmcnt(0)')

WROW = 176
WSTG = 64 * WROW
NCH = 14
def prologue(g):
    g('s_and_b32 s40, s2, 7')
    g('s_lshr_b32 s41, s2, 3')
    g('s_lshr_b32 s22, s40, 1')
    g('s_lshl_b32 s22, s22, 2')
    g('s_and_b32 s42, s41, 3')
    g('s_add_u32 s22, s22, s42')
    g('s_and_b32 s23, s40, 1')
    g('s_lshl_b32 s23, s23, 3')
    g('s_lshr_b32 s42, s41, 2')
    g('s_add_u32 s23, s23, s42')
    g('s_add_u32 s69, s23, 1')
    g('s_and_b32 s69, s69, 7')
    g('s_and_b32 s42, s23, 8')
    g('s_or_b32 s69, s69, s42')
    g('s_cmp_ge_u32 s3, 4')
    g('s_cbranch_scc1 Lloader')

def kvb_srd(g):
    g('s_and_b32 s40, s2, 7')
    g('s_bfe_u32 s41, s2, 0x10003')
    g('s_lshl_b32 s40, s40, 1')
    g('s_add_u32 s40, s40, s41')
    g('s_lshl_b32 s47, s40, 18')
    g(f's_add_u32 s47, s47, {WS_KV + 0x400000}')
    g('s_add_u32 s32, s20, s47')
    g('s_addc_u32 s33, s21, 0')
    g('s_mov_b32 s34, 0x40000')
    g('s_mov_b32 s35, 0x20000')
    g('s_lshl_b32 s55, s3, 12')
def stage_tile(g, st):
    g(f's_add_u32 s54, s55, {st*32768}')
    g(f's_add_u32 m0, s55, {(st&3)*32768}')
    g('s_nop 0')
    for i in range(4):
        g(f'buffer_load_dwordx4 v2, s[32:35], s54 offen offset:{i*1024}{LD()} lds')
def init_dma_compute(g):
    kvb_srd(g)
    stage_tile(g, 0)
    stage_tile(g, 1)

def qkv_compute(g):
    g('v_and_b32 v4, 31, v0')
    g('s_lshl_b32 s44, s3, 5')
    g('v_add_u32 v4, s44, v4')
    g('v_lshlrev_b32 v4, 7, v4')
    g('v_bfe_u32 v5, v0, 1, 3')
    g('v_lshrrev_b32 v6, 5, v0')
    for ks in range(4):
        g(f'v_add_u32 v7, {2*ks}, v6')
        g('v_xor_b32 v7, v7, v5')
        g(f'v_lshl_add_u32 v{12+ks}, v7, 4, v4')
    g('v_bfe_u32 v4, v0, 2, 2')
    g('v_and_b32 v5, 3, v0')
    g('v_bfe_u32 v7, v0, 4, 1')
    g('v_lshlrev_b32 v7, 5, v7')
    g('v_lshl_add_u32 v7, v5, 3, v7')
    g('v_lshlrev_b32 v4, 1, v4')
    g('v_add_u32 v4, v4, v6')
    g(f'v_mul_u32_u24 v4, {2*WROW}, v4')
    g('v_add_u32 v4, v4, v7')
    g('v_add_u32 v16, 65536, v4')
    g('v_lshlrev_b32 v2, 4, v0')
    g('s_waitcnt lgkmcnt(0)')
    stamp(g, 1)
    srd(g, 32, 20, 21, 0x1000000)
    srd(g, 64, 20, 21, 0x4000, WS_CNT)
    g('s_or_b32 s44, s2, s3')
    g('s_cmp_lg_u32 s44, 0')
    g('s_cbranch_scc1 Lnoinit')
    g('v_lshlrev_b32 v20, 8, v0')
    g('v_mov_b32 v21, 0')
    g('buffer_store_dword v21, v20, s[64:67], 0 offen sc1')
    g('s_waitcnt vmcnt(0)')
    srd(g, 36, 18, 19, 256)
    g('s_mov_b64 exec, 1')
    g('v_mov_b32 v21, 1')
    g('v_mov_b32 v20, 0')
    g('buffer_store_dword v21, v20, s[36:39], 0 offen sc1')
    g('s_mov_b64 exec, -1')
    g.label('Lnoinit')
    if OPT.get('codepf'):
        g('s_getpc_b64 s[24:25]')
        g.label('Lpc_here')
        g(f's_sub_u32 s24, s24, Lpc_here-{NAME}')
        g('s_subb_u32 s25, s25, 0')
        g(f's_mov_b32 s26, Lexit-{NAME}')
        g('s_mov_b32 s27, 0x20000')
        g('s_lshr_b32 s46, s2, 3')
        g('s_lshl_b32 s46, s46, 2')
        g('s_add_u32 s46, s46, s3')
        g('s_lshl_b32 s46, s46, 10')
        g('v_add_u32 v20, s46, v2')
        g('buffer_load_dwordx4 v[144:147], v20, s[24:27], 0 offen')
    srd(g, 36, 18, 19, 256)
    g('v_mov_b32 v30, 0')
    g('buffer_load_dword v31, v30, s[36:39], 0 offen sc1')
    def prefetch():
        if not OPT.get('pf', 1): return
        l1 = newlab('pf'); l2 = newlab('pf'); ld = newlab('pf')
        g('s_cmp_ge_u32 s3, 2')
        g(f's_cbranch_scc1 {l1}')
        srd(g, 24, 4, 5, 1835008)
        g('s_mul_i32 s46, s2, 7168')
        g('s_lshl_b32 s47, s3, 12')
        g('s_add_u32 s46, s46, s47')
        g('v_add_u32 v20, s46, v2')
        for i in range(4):
            g(f'buffer_load_dwordx4 v[{144+4*i}:{147+4*i}], v20, s[24:27], 0 offen offset:{i*1024}')
        g(f's_branch {ld}')
        g.label(l1)
        g('s_cmp_eq_u32 s3, 2')
        g(f's_cbranch_scc0 {l2}')
        srd(g, 24, 6, 7, 1204224)
        g('s_mul_i32 s46, s2, 4704')
        g('v_add_u32 v20, s46, v2')
        g('v_add_u32 v21, 4096, v20')
        for i in range(5):
            g(f'buffer_load_dwordx4 v[{144+4*i}:{147+4*i}], v{20 if i < 4 else 21}, s[24:27], 0 offen offset:{(i%4)*1024}')
        g(f's_branch {ld}')
        g.label(l2)
        g('s_mul_i32 s46, s2, 1568')
        g('v_add_u32 v20, s46, v2')
        srd(g, 24, 8, 9, 448*896)
        for i in range(2):
            g(f'buffer_load_dwordx4 v[{144+4*i}:{147+4*i}], v20, s[24:27], 0 offen offset:{i*1024}')
        srd(g, 28, 14, 15, 448*896)
        for i in range(2):
            g(f'buffer_load_dwordx4 v[{152+4*i}:{155+4*i}], v20, s[28:31], 0 offen offset:{i*1024}')
        g.label(ld)
    XF = 80; WF = 88
    ACCS = {1: 32, 0: 144}
    PS = {1: 112, 0: 208}
    g('v_and_b32 v18, 31, v0')
    g('v_cmp_eq_u32 vcc, 28, v18')
    g('v_mov_b32 v19, 0x3f803f80')
    g('s_nop 0')
    g('v_cndmask_b32_e64 v18, 0, v19, vcc')
    g('s_mov_b32 s60, 0')
    g('s_mov_b32 s61, -1')
    g('s_mov_b32 s58, 0xf0000000')
    g('s_mov_b32 s59, 0xf0000000')
    def reads(n, buf, part):
        kc, ks = divmod(n, 4)
        st = kc % 4
        if part == 0:
            g(f'ds_read_b128 {vr(XF+4*buf,4)}, v{12+ks} offset:{st*16384}')
        for jj in range(2):
            off = st * WSTG + (ks*16 + jj) * WROW + part * 56
            g(f'ds_read_b64_tr_b16 {vr(WF+12*buf+4*part+2*jj,2)}, v16 offset:{off}')
    def mfma1(br, buf, t, first, types2):
        types = types2[br]
        x = XF + 4*buf; wf = WF + 12*buf + 4*t; d = ACCS[br] + 16*t
        c = None if first else d
        g(mfma(d, wf, x, c) if types[t] == 'QK' else mfma(d, x, wf, c))
    def epilogue_list(br, types2):
        types = types2[br]
        c0 = 's52' if br else 's63'
        L = []
        A = L.append
        ACC = ACCS[br]; P = PS[br]
        A('s_lshl_b32 s54, s22, 2')
        A('s_add_u32 s54, s54, s3')
        if br: A('s_add_u32 s54, s54, 1024')
        for t in range(3):
            a = ACC + 16*t; p = P + 8*t
            so = (48, 49, 53)[t]
            A(f's_add_u32 s62, {c0}, {t}')
            A('s_and_b32 s56, s62, 15')
            A('s_lshl_b32 s56, s56, 6')
            A('s_add_u32 s56, s56, s54')
            if types[t] == 'QK':
                A('s_cmp_lt_u32 s62, 16\n' + f's_cselect_b32 s57, {f32bits(QSCALE):#x}, 1.0\n' + 's_cselect_b32 s45, 0, 0x3f80\n' +
                  's_cselect_b32 s46, 11, 12\n' + f's_cselect_b32 s47, {WS_Q}, {WS_KV}')
                A('s_lshl_b32 s56, s56, s46')
                A(f's_add_u32 s{so}, s56, s47')
                A('v_mov_b32 v19, s45')
                for r in range(16): A(f'v_mul_f32 v{a+r}, s57, v{a+r}')
                for i in range(8): A(f'v_cvt_pk_bf16_f32 v{p+i}, v{a+2*i}, v{a+2*i+1}')
                A(f'v_cndmask_b32_e64 v{p+6}, v{p+6}, v19, s[60:61]')
                A(f'v_cndmask_b32_e64 v{p+7}, v{p+7}, 0, s[60:61]')
            else:
                A('s_lshl_b32 s56, s56, 12')
                A(f's_add_u32 s{so}, s56, {WS_KV + 2048}')
                for i in range(8): A(f'v_cvt_pk_bf16_f32 v{p+i}, v{a+2*i}, v{a+2*i+1}')
                for i in range(8): A(f'v_cndmask_b32_e64 v{p+i}, v{p+i}, v18, s[58:59]')
            if br:
                A('s_nop 1\n' + f'buffer_store_dwordx4 {vr(p,4)}, v2, s[32:35], s{so} offen{ST()}')
                A(f'buffer_store_dwordx4 {vr(p+4,4)}, v2, s[32:35], s{so} offen offset:1024{ST()}')
        return L
    g('s_mul_i32 s52, s23, 3')
    g('s_mul_i32 s63, s69, 3')
    T0, T1, T2 = ('QK','QK','QK'), ('QK','QK','V'), ('V','V','V')
    variants = [{1: T0, 0: T0}, {1: T0, 0: T1}, {1: T1, 0: T2}, {1: T2, 0: T2}, {1: T2, 0: T0}]
    g('s_cmp_eq_u32 s23, 9')
    g('s_cbranch_scc1 Lqkv_v1')
    g('s_cmp_eq_u32 s23, 10')
    g('s_cbranch_scc1 Lqkv_v2')
    g('s_cmp_eq_u32 s23, 15')
    g('s_cbranch_scc1 Lqkv_v4')
    g('s_cmp_gt_u32 s23, 10')
    g('s_cbranch_scc1 Lqkv_v3')
    NS = NCH * 4
    SIG_AT = OPT.get('sig_at', 44)
    for vi, types in enumerate(variants):
        if vi: g.label(f'Lqkv_v{vi}')
        g('s_barrier')
        if vi == 0: stamp(g, 2)
        for part in range(3): reads(0, 0, part)
        prefetch()
        epi = []
        EP0, EPN = OPT.get('ep0', 28), OPT.get('epn', 3)
        def fill(k):
            for _ in range(k):
                if epi: g(epi.pop(0))
        for n in range(NS):
            br = 1 if n < 28 else 0
            boundary = (n + 1) % 4 == 0 and n + 1 < NS
            nxt = n + 1 < NS
            buf = n & 1
            first = n % 28 == 0
            if n == EP0:
                epi = ['s_nop 7'] + epilogue_list(1, types)
                per = -(-len(epi) // (EPN * 3))
            inter = EP0 <= n < EP0 + EPN
            if boundary:
                g('s_waitcnt vmcnt(0) lgkmcnt(0)' if n + 1 in (SIG_AT, 24) else 's_waitcnt lgkmcnt(0)')
                g('s_barrier')
                if OPT.get('qkvst') and vi == 0:
                    c1 = (n + 1) // 4
                    m = {2: 5, 4: 6, 6: 7, 8: 8, 10: 9, 11: 10, 12: 13}
                    if c1 in m: stamp(g, m[c1])
                if n + 1 == SIG_AT:
                    sk = newlab('sigB'); ok = newlab('inited'); lp = newlab('initspin')
                    g('s_cmp_lg_u32 s3, 0')
                    g(f's_cbranch_scc1 {sk}')
                    g('v_readfirstlane_b32 s47, v31')
                    g('s_cmp_lg_u32 s47, 0')
                    g(f's_cbranch_scc1 {ok}')
                    g(f's_mov_b32 s68, {OPT["spin"]}')
                    g.label(lp)
                    g('buffer_load_dword v31, v30, s[36:39], 0 offen sc1')
                    g('s_waitcnt vmcnt(0)')
                    g('v_readfirstlane_b32 s47, v31')
                    g('s_cmp_lg_u32 s47, 0')
                    g(f's_cbranch_scc1 {ok}')
                    g('s_sub_u32 s68, s68, 1')
                    g('s_cmp_lg_u32 s68, 0')
                    g(f's_cbranch_scc1 {lp}')
                    g.label(ok)
                    g('s_mov_b64 exec, 1')
                    g('v_mov_b32 v1, 1')
                    g('s_lshl_b32 s47, s23, 8')
                    g(f's_add_u32 s47, s47, {CNT_B}')
                    g('v_mov_b32 v29, s47')
                    g('buffer_atomic_add v1, v29, s[64:67], 0 offen sc1')
                    g('s_mov_b64 exec, -1')
                    g.label(sk)
            else:
                g('s_waitcnt lgkmcnt(4)')
            mfma1(br, buf, 0, first, types)
            if nxt: reads(n + 1, buf ^ 1, 0)
            if inter: fill(per)
            if not boundary: g(f's_waitcnt lgkmcnt({5 if nxt else 2})')
            mfma1(br, buf, 1, first, types)
            if nxt: reads(n + 1, buf ^ 1, 1)
            if inter: fill(per)
            if not boundary: g(f's_waitcnt lgkmcnt({5 if nxt else 0})')
            mfma1(br, buf, 2, first, types)
            if nxt: reads(n + 1, buf ^ 1, 2)
            if inter: fill(per)
            if n == 27 and vi == 0: stamp(g, 3)
            if OPT.get('sbar', 0) and n == EP0 + EPN - 1:
                g('s_barrier')
        assert not epi
        if vi == 0: stamp(g, 14)
        g('s_barrier')
        if vi == 0: stamp(g, 4)
        init_dma_compute(g)
        for x in epilogue_list(0, types): g(x)
        if vi < 4: g('s_branch Lqkv_fin')
    g.label('Lqkv_fin')
    g('s_branch Lattn_setup')

def qkv_loader(g):
    g.label('Lloader')
    g('s_sub_u32 s43, s3, 4')
    g('s_lshl_b32 s44, s22, 7')
    g('s_lshl_b32 s45, s43, 5')
    g('s_add_u32 s44, s44, s45')
    g('v_lshrrev_b32 v10, 3, v0')
    g('v_add_u32 v10, s44, v10')
    g('v_mul_u32_u24 v10, 896, v10')
    g('v_lshrrev_b32 v11, 4, v0')
    g('v_and_b32 v12, 7, v0')
    g('v_xor_b32 v12, v12, v11')
    g('v_lshl_add_u32 v2, v12, 4, v10')
    g('v_xor_b32 v12, 4, v12')
    g('v_lshl_add_u32 v3, v12, 4, v10')
    g('v_add_u32 v3, 7168, v3')
    g('v_add_u32 v4, 14336, v2')
    g('v_add_u32 v5, 14336, v3')
    g('s_lshl_b32 s46, s43, 12')
    g('s_lshl_b32 s47, s43, 10')
    g('s_add_u32 s47, s47, 65536')
    g('s_lshl_b32 s44, s43, 6')
    g('s_mul_i32 s50, s23, 168')
    g('s_mul_i32 s51, s69, 168')
    def wcalc(n):
        g('v_add_u32 v10, s44, v0')
        if n: g(f'v_add_u32 v10, {256*n}, v10')
        g('v_mul_u32_u24 v11, 5958, v10')
        g('v_lshrrev_b32 v11, 16, v11')
        g('v_mul_u32_u24 v12, 11, v11')
        g('v_sub_u32 v12, v10, v12')
        g('v_and_b32 v13, 48, v11')
        g('v_and_b32 v14, 3, v11')
        g('v_lshl_add_u32 v13, v14, 2, v13')
        g('v_bfe_u32 v14, v11, 2, 2')
        g('v_add_u32 v13, v13, v14')
        g('v_mul_u32_u24 v13, 2688, v13')
        g(f'v_lshl_add_u32 v{6+n}, v12, 4, v13')
    wcalc(0)
    g('s_waitcnt lgkmcnt(0)')
    srd(g, 24, 10, 11, 1835008)
    srd(g, 28, 12, 13, 1204224)
    def issueX(c):
        kc = c % 7; st = c % 4
        sx = 24 if c < 7 else 32
        g(f's_mov_b32 s48, {kc*128}')
        for e in range(4):
            g(f's_add_u32 m0, s46, {st*16384 + e*1024}')
            g('s_nop 0')
            g(f'buffer_load_dwordx4 v{2+e}, s[{sx}:{sx+3}], s48 offen lds')
    def issueW(c, ns=(0, 1, 2)):
        kc = c % 7; st = c % 4
        sw = 28 if c < 7 else 36
        g(f's_add_u32 s49, {"s50" if c < 7 else "s51"}, {kc*64*2688}')
        for n in ns:
            if n == 2:
                sk = newlab('qs')
                g('s_cmp_eq_u32 s43, 3')
                g(f's_cbranch_scc1 {sk}')
            g(f's_add_u32 m0, s47, {st*WSTG + n*4096}')
            g('s_nop 0')
            g(f'buffer_load_dwordx4 v{6+n}, s[{sw}:{sw+3}], s49 offen lds')
            if n == 2: g.label(sk)
    def issue(c):
        issueX(c); issueW(c)
    issueX(0)
    issueW(0, (0,))
    wcalc(1); issueW(0, (1,))
    wcalc(2); issueW(0, (2,))
    srd(g, 32, 4, 5, 1835008)
    srd(g, 36, 6, 7, 1204224)
    srd(g, 64, 20, 21, 0x4000, WS_CNT)
    g('s_and_b32 s40, s2, 7')
    g('s_bfe_u32 s41, s2, 0x10003')
    g('s_lshl_b32 s40, s40, 1')
    g('s_add_u32 s40, s40, s41')
    g('v_min_u32 v30, 2, v0')
    g('v_lshlrev_b32 v30, 4, v30')
    g('v_add_u32 v30, s40, v30')
    g('v_mul_u32_u24 v30, 43, v30')
    g('v_lshrrev_b32 v30, 7, v30')
    g('v_lshlrev_b32 v31, 8, v30')
    g(f'v_add_u32 v203, {CNT_B}, v31')
    for c in range(1, 3): issue(c)
    issued = 2
    HOLD = OPT.get('hold', 9) if OPT.get('sbar', 0) else 99
    for c in range(NCH):
        rem = issued - c
        g(f's_waitcnt vmcnt({1 if c == 13 else 6*rem})')
        g('s_barrier')
        if c + 3 < NCH and not (HOLD <= c + 3 <= 10):
            issue(c + 3); issued = c + 3
        if OPT.get('sbar', 0) and c == 7:
            g('s_barrier')
            for cc in range(HOLD, 11):
                issue(cc); issued = cc
        if c == 10: attn_setup(g)
        if c == 11: set_mask(g, 32, 'first')
        if c == 12:
            g('buffer_load_dword v201, v203, s[64:67], 0 offen sc1')
    g('s_waitcnt vmcnt(0)')
    g('v_cmp_ne_u32 vcc, 16, v201')
    g('s_nop 4')
    g('s_cbranch_vccz Lh1_polled')
    spin_until(g, 201, 203, 16)
    g.label('Lh1_polled')
    g('s_barrier')
    stamp(g, 4)
    g('s_add_u32 s47, s44, 0x200000')
    g('s_mov_b32 m0, s51')
    g('s_nop 0')
    for i in range(2):
        g(f'buffer_load_dwordx4 v2, s[24:27], s47 offen offset:{i*1024}{LD()} lds')
    stage_tile(g, 0)
    stage_tile(g, 1)
    stamp(g, 5)
    g('s_waitcnt vmcnt(4)')
    g('s_barrier')
    g('s_branch Lattn_go')

K2_SCR = 131072
QL = 200
def set_mask(g, dst, kind):
    for r in range(16):
        br_ = (r & 3) + 8 * (r >> 2)
        op = 'v_cmp_le_i32' if kind == 'diag' else 'v_cmp_gt_i32'
        g(f'{op} vcc, {br_}, v24')
        g('s_nop 1')
        g(f'v_cndmask_b32_e64 v{dst+r}, v25, 0, vcc')
def attn_setup(g):
    kvb_srd(g)
    g('s_lshr_b32 s41, s2, 4')
    g('s_and_b32 s42, s3, 3')
    g('s_lshr_b32 s43, s3, 2')
    g('v_lshlrev_b32 v2, 4, v0')
    g('s_lshl_b32 s44, s40, 6')
    g('s_lshl_b32 s45, s41, 2')
    g('s_add_u32 s45, s45, s42')
    g('s_add_u32 s44, s44, s45')
    g('s_lshl_b32 s44, s44, 11')
    srd(g, 24, 20, 21, 0x400000)
    g('s_sub_u32 s28, s32, 0x400000')
    g('s_subb_u32 s29, s33, 0')
    g('s_mov_b32 s30, 0x40000')
    g('s_mov_b32 s31, 0x20000')
    srd(g, 36, 20, 21, 0x400000, WS_O)
    g('v_min_u32 v30, 2, v0')
    g('v_lshlrev_b32 v30, 4, v30')
    g('v_add_u32 v30, s40, v30')
    g('v_mul_u32_u24 v30, 43, v30')
    g('v_lshrrev_b32 v30, 7, v30')
    g('v_lshlrev_b32 v31, 8, v30')
    g(f'v_add_u32 v203, {CNT_B}, v31')
    g('s_lshl_b32 s47, s41, 2')
    g('s_add_u32 s47, s47, s3')
    g('s_sub_u32 s47, s47, 8')
    g('s_lshl_b32 s50, s47, 12')
    g('s_cmp_lt_i32 s47, 0')
    g('s_cselect_b32 s50, 0x40000000, s50')
    g('v_add_u32 v28, s50, v2')
    g('s_add_u32 s47, s47, 8')
    g('s_lshl_b32 s50, s47, 12')
    g('v_add_u32 v29, s50, v2')
    g('s_lshl_b32 s47, s42, 12')
    g('v_add_u32 v3, s47, v2')
    g('s_lshl_b32 s47, s43, 14')
    g('v_add_u32 v4, s47, v2')
    g('v_add_u32 v5, 32768, v4')
    g(f'v_add_u32 v6, {K2_SCR}, v3')
    g('s_lshl_b32 s47, s42, 8')
    g(f's_add_u32 s47, s47, {K2_SCR+16384}')
    g('v_lshlrev_b32 v7, 2, v0')
    g('v_add_u32 v7, s47, v7')
    g('s_lshl_b32 s47, s42, 11')
    g(f's_add_u32 s51, s47, {K2_SCR}')
    g(f'v_add_u32 v{QL}, s51, v2')
    g('v_and_b32 v24, 31, v0')
    g('v_lshrrev_b32 v25, 5, v0')
    g('v_lshlrev_b32 v25, 2, v25')
    g('v_sub_u32 v24, v24, v25')
    g(f'v_mov_b32 v25, {NEGBIG:#x}')
    g('s_mov_b32 s60, 0')
    g('s_mov_b32 s61, -1')
    srd(g, 56, 20, 21, 0x1000000)

def phase_attn(g):
    g.label('Lattn_setup')
    QA = 8; QB = 16; MASK = 32; S0 = 48; S1 = 64; P = 80; OA = 88; OB = 104; KF = 120; VF = 128; T = 136
    TK = 144; TS = 152
    MNA = 26; MNB = 27
    SB = [S0, S1]
    attn_setup(g)
    set_mask(g, MASK, 'diag')
    stamp(g, 5)
    g('s_waitcnt vmcnt(4)')
    g('s_barrier')
    g.label('Lattn_go')
    g('s_cmp_eq_u32 s43, 99') if False else None
    def dma4(vreg, s, s_goff, s_m0, n=4, first=0):
        g(f's_mov_b32 m0, {s_m0}')
        g('s_nop 0')
        for i in range(first, first + n):
            g(f'buffer_load_dwordx4 v{vreg}, s[{s}:{s+3}], {s_goff} offen offset:{i*1024}{LD()} lds')
    stamp(g, 6)
    g(f'ds_read_b128 {vr(QB,4)}, v{QL}')
    g(f'ds_read_b128 {vr(QB+4,4)}, v{QL} offset:1024')

    def rowmax(sbuf, t):
        g(f'v_max3_f32 v{t}, v{sbuf}, v{sbuf+1}, v{sbuf+2}')
        for r in range(3, 15, 2):
            g(f'v_max3_f32 v{t}, v{t}, v{sbuf+r}, v{sbuf+r+1}')
        g(f'v_max_f32 v{t}, v{t}, v{sbuf+15}')
        g(f'v_mov_b32 v{t+1}, v{t}')
        g('s_nop 1')
        g(f'v_permlane32_swap_b32 v{t}, v{t+1}')
        g('s_nop 1')
        g(f'v_max_f32 v{t}, v{t}, v{t+1}')
    def set_standin(sbuf, q, mneg):
        t = T
        rowmax(sbuf, t)
        g(f'v_sub_f32 v{t}, 0, v{t}')
        g(f'v_cvt_pk_bf16_f32 v{t}, v{t}, 0')
        g(f'v_lshlrev_b32 v{mneg}, 16, v{t}')
        g('s_mov_b64 exec, s[60:61]')
        g(f'v_mov_b32 v{q+4+2}, v{t}')
        g('s_mov_b64 exec, -1')
    def write_partial(O, mn):
        for i in range(4): g(f'ds_write_b128 v6, {vr(O+4*i,4)} offset:{i*1024}')
        g(f'ds_write_b32 v7, v{mn}')
    FB = 144
    def finish(tag, br, O, mn, q, tmp):
        for i in range(4): g(f'ds_read_b128 {vr(tmp+4*i,4)}, v6 offset:{i*1024}')
        g(f'ds_read_b32 v{T}, v7')
        g('s_waitcnt lgkmcnt(0)')
        g(f'v_min_f32 v{T+1}, v{mn}, v{T}')
        g(f'v_sub_f32 v{T+2}, v{T+1}, v{mn}')
        g(f'v_sub_f32 v{T+3}, v{T+1}, v{T}')
        g(f'v_exp_f32 v{T+2}, v{T+2}')
        g(f'v_exp_f32 v{T+3}, v{T+3}')
        g('s_nop 0')
        for r in range(16): g(f'v_mul_f32 v{O+r}, v{O+r}, v{T+2}')
        for r in range(16): g(f'v_fmac_f32 v{O+r}, v{tmp+r}, v{T+3}')
        g(f'v_mov_b32 v{T}, v{O+12}')
        g(f'v_mov_b32 v{T+1}, v{O+12}')
        g(f'v_mul_f32 v{T+4}, 0, v{O}')
        g(f'v_fmac_f32 v{T+4}, 0, v{O+1}')
        g(f'v_permlane32_swap_b32 v{T}, v{T+1}')
        for r in range(2, 16): g(f'v_fmac_f32 v{T+4}, 0, v{O+r}')
        g(f'v_add_f32 v{T+4}, v{T+4}, v{T+1}')
        g(f's_mov_b32 s47, {f32bits(2.0**100):#x}')
        g(f'v_cmp_ngt_f32 vcc, s47, v{T+4}')
        g('s_nop 4')
        g(f's_cbranch_vccz L{tag}_ok')
        fallback(tag, br, O, q)
        g(f'v_mov_b32 v{T}, v{O+12}')
        g(f'v_mov_b32 v{T+1}, v{O+12}')
        g('s_nop 1')
        g(f'v_permlane32_swap_b32 v{T}, v{T+1}')
        g('s_nop 1')
        g.label(f'L{tag}_ok')
        g(f'v_rcp_f32 v{T+1}, v{T+1}')
        g('s_nop 0')
        for r in range(16): g(f'v_mul_f32 v{O+r}, v{O+r}, v{T+1}')
        for i in range(8): g(f'v_cvt_pk_bf16_f32 v{tmp+i}, v{O+2*i}, v{O+2*i+1}')
        g('s_mov_b64 exec, s[60:61]')
        g(f'v_mov_b32 v{tmp+6}, 0')
        g(f'v_mov_b32 v{tmp+7}, 0')
        g('s_mov_b64 exec, -1')
        g('s_lshl_b32 s47, s41, 2')
        g('s_add_u32 s47, s47, s42')
        g(f's_add_u32 s47, s47, {br*64}')
        g('s_lshl_b32 s47, s47, 4')
        g('s_add_u32 s47, s47, s40')
        g('s_lshl_b32 s47, s47, 11')
        g('s_nop 0')
        g(f'buffer_store_dwordx4 {vr(tmp,4)}, v2, s[36:39], s47 offen{ST()}')
        g(f'buffer_store_dwordx4 {vr(tmp+4,4)}, v2, s[36:39], s47 offen offset:1024{ST()}')
        g('s_nop 1')
    def fallback(tag, br, O, q):
        FS, FK, FV, FP, FQ, Fm = FB, FB+16, FB+24, FB+32, FB+40, FB+48
        s = 28 if br == 0 else 32
        for i in range(8): g(f'v_mov_b32 v{FQ+i}, v{q+i}')
        g('s_mov_b64 exec, s[60:61]')
        g(f'v_mov_b32 v{FQ+6}, 0')
        g('s_mov_b64 exec, -1')
        for r in range(16): g(f'v_mov_b32 v{O+r}, 0')
        g(f'v_mov_b32 v{Fm}, v25')
        if br == 0:
            g('s_lshl_b32 s52, s41, 2')
            g('s_add_u32 s52, s52, s42')
            g('s_sub_u32 s53, s52, 8')
            g('s_mov_b32 s54, s52')
        else:
            g('s_mov_b32 s54, 63')
        g.label(f'L{tag}_fb_loop')
        g('s_lshl_b32 s55, s54, 12')
        for i in range(2):
            g(f'buffer_load_dwordx4 {vr(FK+4*i,4)}, v2, s[{s}:{s+3}], s55 offen offset:{i*1024}{LD()}')
            g(f'buffer_load_dwordx4 {vr(FV+4*i,4)}, v2, s[{s}:{s+3}], s55 offen offset:{2048+i*1024}{LD()}')
        if br == 0:
            g('s_cmp_eq_u32 s54, s52')
            g(f's_cbranch_scc1 L{tag}_fb_diag')
            g('s_cmp_eq_u32 s54, s53')
            g(f's_cbranch_scc1 L{tag}_fb_first')
        for r in range(16): g(f'v_mov_b32 v{FS+r}, 0')
        if br == 0:
            g(f's_branch L{tag}_fb_go')
            g.label(f'L{tag}_fb_diag')
            set_mask(g, FS, 'diag')
            g(f's_branch L{tag}_fb_go')
            g.label(f'L{tag}_fb_first')
            set_mask(g, FS, 'first')
            g.label(f'L{tag}_fb_go')
        g('s_waitcnt vmcnt(0)')
        g('s_nop 1')
        g(mfma(FS, FK, FQ, FS))
        g(mfma(FS, FK+4, FQ+4, FS))
        g('s_nop 15')
        rowmax(FS, Fm+1)
        g(f'v_max_f32 v{Fm+1}, v{Fm+1}, v{Fm}')
        g(f'v_sub_f32 v{Fm+2}, v{Fm}, v{Fm+1}')
        g(f'v_exp_f32 v{Fm+2}, v{Fm+2}')
        g(f'v_mov_b32 v{Fm}, v{Fm+1}')
        for r in range(16): g(f'v_sub_f32 v{FS+r}, v{FS+r}, v{Fm}')
        for r in range(16): g(f'v_exp_f32 v{FS+r}, v{FS+r}')
        for r in range(16): g(f'v_mul_f32 v{O+r}, v{O+r}, v{Fm+2}')
        for i in range(8): g(f'v_cvt_pk_bf16_f32 v{FP+i}, v{FS+2*i}, v{FS+2*i+1}')
        g('s_nop 1')
        g(mfma(O, FV, FP, O))
        g(mfma(O, FV+4, FP+4, O))
        g('s_nop 15')
        g('s_sub_u32 s54, s54, 1')
        g('s_cmp_lt_i32 s54, 0')
        g(f's_cbranch_scc1 L{tag}_fb_end')
        if br == 0:
            g('s_cmp_lt_i32 s54, s53')
            g(f's_cbranch_scc1 L{tag}_fb_end')
        g(f's_branch L{tag}_fb_loop')
        g.label(f'L{tag}_fb_end')

    g('s_cmp_eq_u32 s43, 0')
    g('s_cbranch_scc0 Lattn_kh1')

    def path(kh):
        tag = f'K{kh}'
        unitsA = [8, 7, 6, 5, 4] if kh == 0 else [3, 2, 1, 0]
        nA = len(unitsA); N = 32 + nA
        def unit(i):
            if i >= 32:
                u = unitsA[i - 32]
                masked = (kh == 0 and u == 8) or (kh == 1 and u == 0)
                return dict(base=3, off=u*4096, Q=QA, O=OA, C=MASK if masked else None, first=(i == 32))
            return dict(b=i, Q=QB, O=OB, C=None, first=(i == 0))
        def addr(i, cs):
            u = unit(i)
            if 'base' in u: return u['base'], u['off']
            b = u['b']; s = b >> 2
            if s == cs: return 4, (b & 3) * 4096
            assert s == cs + 1
            return 5, (b & 3) * 4096
        def rdK(i, cs, dst=KF):
            r, off = addr(i, cs)
            g(f'ds_read_b128 {vr(dst,4)}, v{r} offset:{off}')
            g(f'ds_read_b128 {vr(dst+4,4)}, v{r} offset:{off+1024}')
        def rdV(i, f, cs):
            r, off = addr(i, cs)
            g(f'ds_read_b128 {vr(VF+4*f,4)}, v{r} offset:{off+2048+f*1024}')
        rdK(0, 0)
        g('s_waitcnt lgkmcnt(0)')
        g(mfma(S0, KF, QB, None))
        g(mfma(S0, KF+4, QB+4, S0))
        g('s_nop 15')
        set_standin(S0, QB, MNB)
        g('s_nop 1')
        g(mfma(S0, KF, QB, None))
        g(mfma(S0, KF+4, QB+4, S0))
        rdK(1, 0)
        rdV(0, 0, 0)
        g('s_nop 15')
        if kh == 0: stamp(g, 7)
        if OPT.get('attst'): stamp(g, 2, q=True)
        def wo_piece(it):
            if it == 7:
                sk = newlab('wo7')
                g('s_cmp_lg_u32 s3, 0')
                g(f's_cbranch_scc1 {sk}')
                g(f's_add_u32 m0, s45, {65536 + it*8192}')
                g(f'v_add_u32 v31, {it*64*896}, v30')
                g('buffer_load_dwordx4 v31, s[56:59], 0 offen lds')
                g.label(sk)
            else:
                g(f's_add_u32 m0, s45, {65536 + it*8192}')
                g(f's_mov_b32 s50, {it*64*896}')
                g('buffer_load_dwordx4 v30, s[56:59], s50 offen lds')
        def wo_setup():
            g('s_mov_b32 s56, s14')
            g('s_mov_b32 s57, s15')
            g(f's_mov_b32 s58, {448*896}')
            g('s_mov_b32 s59, 0x20000')
            g('v_lshrrev_b32 v30, 3, v0')
            g('v_and_b32 v31, 7, v0')
            g('v_and_b32 v1, 2, v30')
            g('v_lshlrev_b32 v1, 1, v1')
            g('v_xor_b32 v31, v31, v1')
            g('s_lshl_b32 s50, s3, 3')
            g('v_add_u32 v30, s50, v30')
            g('v_mul_u32_u24 v30, 896, v30')
            g('v_lshl_add_u32 v30, v31, 4, v30')
            g('s_lshr_b32 s50, s2, 5')
            g('s_lshl_b32 s50, s50, 7')
            g('s_cmp_ge_u32 s2, 224')
            g('s_cselect_b32 s50, 0x40000000, s50')
            g('v_add_u32 v30, s50, v30')
            g('s_lshl_b32 s45, s3, 10')
        def dma_slot(i, inloop):
            if i == 0 or i == 1:
                st = i + 2
                g(f's_add_u32 s54, s55, {st*32768}')
                g(f's_add_u32 m0, s55, {(st&3)*32768}')
                g('s_nop 0')
                for k in range(4):
                    g(f'buffer_load_dwordx4 v2, s[32:35], s54 offen offset:{k*1024}{LD()} lds')
                return
            if i == 2 and kh == 0:
                for t in range(3):
                    g(f'buffer_store_dwordx4 {vr(208+8*t,4)}, v2, s[56:59], s{(48,49,53)[t]} offen{ST()}')
                    g(f'buffer_store_dwordx4 {vr(212+8*t,4)}, v2, s[56:59], s{(48,49,53)[t]} offen offset:1024{ST()}')
                return
            if i >= 30:
                if i == 30: wo_setup()
                before34 = {30: [0], 31: [1], 32: [2], 33: [3], 34: [4, 5], 35: [6, 7]}
                for it in before34.get(i, []): wo_piece(it)
                return
            if i < 6: return
            ph = (i - 2) & 3; st = ((i - 2) >> 2) + 3
            if i == 18:
                g('buffer_load_dword v201, v31, s[64:67], 0 offen sc1')
            if st <= 7:
                if ph == 0:
                    g(f's_add_u32 s54, s55, {st*32768}')
                    g(f's_add_u32 m0, s55, {(st&3)*32768}')
                    g('s_nop 0')
                g(f'buffer_load_dwordx4 v2, s[32:35], s54 offen offset:{ph*1024}{LD()} lds')
            elif st == 8:
                if ph == 0:
                    ok = newlab('aok')
                    g('v_cmp_ne_u32 vcc, 16, v201')
                    g('s_nop 4')
                    g(f's_cbranch_vccz {ok}')
                    spin_until(g, 201, 31, 16)
                    g.label(ok)
                    if kh == 1:
                        g('s_add_u32 s47, s51, 8192')
                        dma4(2, 24, 's44', 's47', n=2)
                    g('s_mov_b32 m0, s55')
                    g('s_nop 0')
                g(f'buffer_load_dwordx4 v28, s[28:31], 0 offen offset:{ph*1024}{LD()} lds')
            elif st == 9 and ph == 0 and kh == 0:
                g('s_add_u32 m0, s55, 32768')
                g('s_nop 0')
                for k in range(4):
                    g(f'buffer_load_dwordx4 v29, s[28:31], 0 offen offset:{k*1024}{LD()} lds')
        def body(i, cs, inloop=False):
            u = unit(i)
            sb = SB[i & 1]; sn = SB[(i + 1) & 1]
            e = [f'v_exp_f32 v{sb+r}, v{sb+r}' for r in range(16)]
            c = [f'v_cvt_pk_bf16_f32 v{P+k}, v{sb+2*k}, v{sb+2*k+1}' for k in range(8)]
            has1 = i + 1 < N; has2 = i + 2 < N
            if i < 32 and (i & 3) == 2:
                s = i >> 2
                if s == 7: vm = 0
                elif s == 0: vm = 8
                elif s == 1: vm = 4 if kh == 1 else 10
                elif s == 2: vm = 4 if kh == 1 else 10
                else: vm = 4
                if OPT.get('attst') and s in (0, 1, 2, 3, 5, 7): stamp(g, {0: 3, 1: 5, 2: 7, 3: 9, 5: 11, 7: 13}[s], q=True)
                g(f's_waitcnt vmcnt({vm}) lgkmcnt(0)' if vm is not None else 's_waitcnt lgkmcnt(0)')
                g('s_barrier')
                if OPT.get('attst') and s in (0, 1, 2, 3, 5, 7): stamp(g, {0: 4, 1: 6, 2: 8, 3: 10, 5: 12, 7: 14}[s], q=True)
                if s == 3 and kh == 1:
                    sk = newlab('sigA')
                    g('s_cmp_lg_u32 s3, 4')
                    g(f's_cbranch_scc1 {sk}')
                    g('s_mov_b64 exec, 1')
                    g('v_mov_b32 v1, 1')
                    g('s_lshl_b32 s47, s69, 8')
                    g('v_mov_b32 v202, s47')
                    g('buffer_atomic_add v1, v202, s[64:67], 0 offen sc1')
                    g('s_mov_b64 exec, -1')
                    g.label(sk)
                if s == 6:
                    g(f'ds_read_b128 {vr(QA,4)}, v{QL} offset:8192')
                    g(f'ds_read_b128 {vr(QA+4,4)}, v{QL} offset:9216')
                if s == 7 and kh == 0:
                    rdK(32, cs, TK)
                    g('s_waitcnt lgkmcnt(0)')
                    g(mfma(TS, TK, QA, unit(32)['C']))
                    g(mfma(TS, TK+4, QA+4, TS))
                    g('s_nop 15')
                    set_standin(TS, QA, MNA)
            elif i == 31 and kh == 1:
                g('s_waitcnt lgkmcnt(0)')
                g(mfma(TS, KF, QA, unit(32)['C']))
                g(mfma(TS, KF+4, QA+4, TS))
                g('s_nop 15')
                set_standin(TS, QA, MNA)
                g('s_lshl_b32 s47, s41, 2')
                g('s_add_u32 s47, s47, s42')
                g('s_cmp_lt_u32 s47, 5')
                g(f's_cbranch_scc0 L{tag}_valid')
                g(f'v_mov_b32 v{MNA}, {POSBIG:#x}')
                g.label(f'L{tag}_valid')
            elif i == 34:
                g('s_waitcnt lgkmcnt(0)')
                g('s_barrier')
                if kh == 1:
                    finish('FB', 1, OB, MNB, QB, TS)
            else:
                g('s_waitcnt lgkmcnt(0)')
            if OPT.get('prio', 'lag') == 'lag':
                g(f's_setprio {3 - ((i - 2) & 3)}')
            g(e[0])
            if i > 0:
                up = unit(i - 1)
                g(mfma(up['O'], VF+4, P+4, up['O']))
            rdV(i, 1, cs)
            g(e[1]); g(e[2]); g(e[3])
            g(c[0])
            if i == 33 and kh == 0:
                write_partial(OB, MNB)
            if has1:
                un = unit(i + 1)
                g(mfma(sn, KF, un['Q'], un['C']))
            g(e[4]); g(e[5]); g(c[1]); g(e[6]); g(e[7]); g(c[2])
            if has1:
                g(mfma(sn, KF+4, un['Q']+4, sn))
            if has2:
                rdK(i + 2, cs)
            g(e[8]); g(c[3]); g(e[9]); g(e[10])
            dma_slot(i, inloop)
            g(e[11])
            g(mfma(u['O'], VF, P, None if u['first'] else u['O']))
            if has1:
                rdV(i + 1, 0, cs)
            for x in e[12:16]: g(x)
            g(c[4]); g(c[5]); g(c[6]); g(c[7])
        def advance():
            g('v_mov_b32 v4, v5')
            g('v_add_u32 v5, 32768, v5')
            g('v_and_b32 v5, 0x1ffff, v5')
        return body, advance, N, tag
    for kh in (0, 1):
        if kh == 1: g.label('Lattn_kh1')
        body, advance, N, tag = path(kh)
        for s_ in range(7):
            for j in range(4): body(4*s_ + j, s_)
            advance()
        for j in range(4): body(28 + j, 7)
        if kh == 0: stamp(g, 8)
        for i in range(32, N): body(i, 7)
        g('s_waitcnt lgkmcnt(0)')
        g('s_nop 1')
        g(mfma(OA, VF+4, P+4, OA))
        g('s_nop 15')
        if kh == 1:
            write_partial(OA, MNA)
            g('s_waitcnt vmcnt(3) lgkmcnt(0)')
            g('s_barrier')
            stamp(g, 9)
            proj_group_B(g)
        else:
            g('s_barrier')
            finish('FA', 0, OA, MNA, QA, MASK)
            stamp(g, 9)
            proj_group_A(g)
    proj_common(g)

PJ_EX = 131072
def proj_setup(g, br):
    g(f's_mov_b32 s40, {br}')
    g('s_and_b32 s41, s2, 7')
    g('s_lshl_b32 s41, s41, 2')
    g('s_bfe_u32 s42, s2, 0x20003')
    g('s_add_u32 s41, s41, s42')
    g('s_lshr_b32 s42, s2, 5')
    g('s_and_b32 s43, s3, 1')
    g('s_bfe_u32 s44, s3, 0x10001')
    srd(g, 24, 16, 17, 2048 * 1792)
    g('s_lshl_b32 s45, s41, 1')
    g('s_add_u32 s45, s45, s43')
    g(f's_add_u32 s45, s45, {br*64}')
    g('s_lshl_b32 s45, s45, 15')
    g('s_lshl_b32 s46, s44, 14')
    g('s_add_u32 s45, s45, s46')
    g('v_bfe_u32 v4, v0, 2, 2')
    g('v_and_b32 v5, 3, v0')
    g('v_bfe_u32 v7, v0, 4, 1')
    g('v_lshrrev_b32 v6, 5, v0')
    g('v_lshlrev_b32 v7, 5, v7')
    g('v_lshl_add_u32 v7, v5, 3, v7')
    g('v_lshrrev_b32 v11, 4, v7')
    g('v_and_b32 v8, 2, v4')
    g('v_lshlrev_b32 v8, 1, v8')
    g('v_xor_b32 v11, v11, v8')
    g('v_and_b32 v7, 15, v7')
    g('v_lshl_add_u32 v7, v11, 4, v7')
    g('v_lshl_add_u32 v4, v6, 2, v4')
    g('v_lshl_add_u32 v9, v4, 7, v7')
    g('s_mul_i32 s46, s44, 28672')
    if br: g('s_add_u32 s46, s46, 65536')
    g('v_add_u32 v9, s46, v9')
    g('v_xor_b32 v10, 64, v9')
    g('s_lshl_b32 s46, s43, 1')
    g('s_add_u32 s46, s46, s44')
    g(f's_add_u32 s46, s46, {br*4}')
    g('s_lshl_b32 s46, s46, 12')
    g(f's_add_u32 s46, s46, {PJ_EX}')
    g('v_add_u32 v12, s46, v2')
    g('v_xor_b32 v13, 4096, v12')
    g('s_lshr_b32 s46, s41, 1')
    g('s_lshl_b32 s46, s46, 8')
    g(f's_add_u32 s46, s46, {CNT_OB if br else CNT_OA}')
    g('v_mov_b32 v30, s46')
def o_loads(g):
    OF = 64
    for n in range(16):
        if n % 4 == 0 and n > 0: g('s_add_u32 s45, s45, 4096')
        g(f'buffer_load_dwordx4 {vr(OF+4*n,4)}, v2, s[36:39], s45 offen offset:{(n%4)*1024}{LD()}')
def signal_o(g, cnt, wave):
    sk = newlab('sigO')
    g(f's_cmp_lg_u32 s3, {wave}')
    g(f's_cbranch_scc1 {sk}')
    g('s_mov_b64 exec, 1')
    g('v_mov_b32 v1, 1')
    g('s_lshl_b32 s47, s41, 8')
    g(f's_add_u32 s47, s47, {cnt}')
    g('v_mov_b32 v31, s47')
    g('buffer_atomic_add v1, v31, s[64:67], 0 offen sc1')
    g('s_mov_b64 exec, -1')
    g.label(sk)
def proj_group_B(g):
    signal_o(g, CNT_OB, 4)
    g('s_cmp_ge_u32 s2, 224')
    g('s_cbranch_scc1 Lpj_idleB')
    srd(g, 56, 8, 9, 448*896)
    g('v_lshrrev_b32 v30, 3, v0')
    g('v_and_b32 v31, 7, v0')
    g('v_and_b32 v1, 2, v30')
    g('v_lshlrev_b32 v1, 1, v1')
    g('v_xor_b32 v31, v31, v1')
    g('s_and_b32 s50, s3, 3')
    g('s_lshl_b32 s51, s50, 3')
    g('v_add_u32 v30, s51, v30')
    g('v_mul_u32_u24 v30, 896, v30')
    g('v_lshl_add_u32 v30, v31, 4, v30')
    g('s_lshr_b32 s51, s2, 5')
    g('s_lshl_b32 s51, s51, 7')
    g('v_add_u32 v30, s51, v30')
    g('s_lshl_b32 s52, s50, 10')
    sk = newlab('woA')
    for it in range(15):
        if it == 14:
            g('s_cmp_lg_u32 s50, 0')
            g(f's_cbranch_scc1 {sk}')
        g(f's_add_u32 m0, s52, {it*4096}')
        if it == 14:
            g(f'v_add_u32 v31, {it*32*896}, v30')
            g('buffer_load_dwordx4 v31, s[56:59], 0 offen lds')
        else:
            g(f's_mov_b32 s51, {it*32*896}')
            g('buffer_load_dwordx4 v30, s[56:59], s51 offen lds')
    g.label(sk)
    proj_setup(g, 1)
    g('s_waitcnt vmcnt(0)')
    g('s_barrier')
    spin_until(g, 1, 30, 16)
    stamp(g, 10)
    o_loads(g)
    g('s_branch Lproj_common')
    g.label('Lpj_idleB')
    g('s_barrier')
    g('s_branch Lend')
def proj_group_A(g):
    g('s_waitcnt vmcnt(0)')
    g('s_mov_b64 exec, 1')
    g('v_mov_b32 v1, 1')
    g('s_lshl_b32 s47, s41, 8')
    g(f's_add_u32 s47, s47, {CNT_OA}')
    g('v_mov_b32 v31, s47')
    g('buffer_atomic_add v1, v31, s[64:67], 0 offen sc1')
    g('s_mov_b64 exec, -1')
    g('s_cmp_ge_u32 s2, 224')
    sk = newlab('idleA')
    g(f's_cbranch_scc1 {sk}')
    proj_setup(g, 0)
    g('s_barrier')
    spin_until(g, 1, 30, 64)
    stamp(g, 10)
    o_loads(g)
    g('s_branch Lproj_common')
    g.label(sk)
    g('s_barrier')
    g('s_branch Lend')
def proj_common(g):
    g.label('Lproj_common')
    OF = 64; ACC = 16; WF = 48
    def rd(n, buf):
        h, i = divmod(n, 2)
        for ct in range(2):
            for jj in range(2):
                off = (28*h + 16*i + 8*jj) * 128
                g(f'ds_read_b64_tr_b16 {vr(WF+8*buf+4*ct+2*jj,2)}, v{9+ct} offset:{off}')
    rd(0, 0)
    for n in range(16):
        if n + 1 < 16: rd(n + 1, (n + 1) & 1)
        g(f's_waitcnt vmcnt({15-n}) lgkmcnt({4 if n + 1 < 16 else 0})')
        for ct in range(2):
            g(mfma(ACC + 16*ct, WF + 8*(n & 1) + 4*ct, OF + 4*n, None if n == 0 else ACC + 16*ct))
    g('s_nop 15')
    stamp(g, 12)
    g('s_cmp_eq_u32 s44, 0')
    g('s_cbranch_scc0 Lpj_k1')
    for i in range(4): g(f'ds_write_b128 v12, {vr(ACC+16+4*i,4)} offset:{i*1024}')
    g('s_branch Lpj_k2')
    g.label('Lpj_k1')
    for i in range(4): g(f'ds_write_b128 v12, {vr(ACC+4*i,4)} offset:{i*1024}')
    for r in range(16): g(f'v_mov_b32 v{ACC+r}, v{ACC+16+r}')
    g.label('Lpj_k2')
    g('s_waitcnt lgkmcnt(0)')
    g('s_barrier')
    for i in range(4): g(f'ds_read_b128 {vr(64+4*i,4)}, v13 offset:{i*1024}')
    g('v_and_b32 v4, 31, v0')
    g('s_lshl_b32 s46, s41, 6')
    g('s_lshl_b32 s47, s43, 5')
    g('s_add_u32 s46, s46, s47')
    g('v_add_u32 v4, s46, v4')
    g('v_mul_u32_u24 v4, 1792, v4')
    g('v_lshl_add_u32 v4, v6, 4, v4')
    g('s_mul_i32 s46, s40, 896')
    g('s_lshl_b32 s47, s42, 7')
    g('s_add_u32 s46, s46, s47')
    g('s_lshl_b32 s47, s44, 6')
    g('s_add_u32 s46, s46, s47')
    g('s_waitcnt lgkmcnt(0)')
    for r in range(16): g(f'v_add_f32 v{ACC+r}, v{ACC+r}, v{64+r}')
    P = 48
    for i in range(8): g(f'v_cvt_pk_bf16_f32 v{P+i}, v{ACC+2*i}, v{ACC+2*i+1}')
    g('s_nop 1')
    for k in range(2):
        a = P + 4*k
        g(f'v_permlane32_swap_b32 v{a}, v{a+2}')
        g(f'v_permlane32_swap_b32 v{a+1}, v{a+3}')
    g('s_nop 1')
    for k in range(2):
        g(f'buffer_store_dwordx4 {vr(P+4*k,4)}, v4, s[24:27], s46 offen offset:{32*k}' + ((' ' + OPT['ost']) if OPT.get('ost') else ''))

HEADER = '''; Kernarg layout for this problem (72 bytes, ptrs only, base s[0:1]):
'''
def main(out):
    g = Gen()
    g.raw(f'.globl {NAME}')
    g.raw('.p2align 8')
    g.raw(f'.type {NAME},@function')
    g.label(NAME)
    g('s_cmp_ge_u32 s2, 256')
    g('s_cbranch_scc1 Lexit')
    if OPT.get('tl'):
        for r in range(70, 102): g(f's_mov_b32 s{r}, 0')
    stamp(g, 0); stamp(g, 15, True)
    g('s_load_dwordx16 s[4:19], s[0:1], 0')
    g('s_load_dwordx2 s[20:21], s[0:1], 64')
    g('v_lshrrev_b32 v1, 6, v0')
    g('v_and_b32 v0, 63, v0')
    g('s_nop 0')
    g('v_readfirstlane_b32 s3, v1')
    prologue(g)
    qkv_compute(g)
    qkv_loader(g)
    phase_attn(g)
    g.label('Lend')
    if OPT['stamps'] or OPT.get('tl'): g('s_waitcnt vmcnt(0)')
    stamp(g, 13)
    if OPT.get('tl'):
        sk = newlab('tl')
        g('s_cmp_lg_u32 s3, 0')
        g(f's_cbranch_scc1 {sk}')
        g('s_waitcnt lgkmcnt(0)')
        srd(g, 56, 18, 19, 256)
        g('s_mov_b64 exec, 1')
        g('s_not_b32 s68, s70')
        g('v_mov_b32 v1, s68')
        g('v_mov_b32 v3, 0')
        g('buffer_atomic_umax v1, v3, s[56:59], 0 offen offset:4')
        for k, i in enumerate((0, 2, 3, 4, 6, 8, 9, 10, 11, 12, 13)):
            g(f'v_mov_b32 v{4+k}, s{70+2*i}')
            g(f'buffer_atomic_umax v{4+k}, v3, s[56:59], 0 offen offset:{8+4*k}')
        g('s_waitcnt vmcnt(0)')
        g.label(sk)
    if OPT['stamps']: g('s_memrealtime s[72:73]')
    stamp_dump(g)
    g.label('Lexit')
    g('s_endpgm')
    txt = HEADER + f'; @launch grid=(256,1,1) block=(512,1,1) lds={LDS_BYTES}\n'
    txt += '.amdgcn_target "amdgcn-amd-amdhsa--gfx950"\n.text\n' + g.text()
    txt += f'''.section .rodata,"a"
.p2align 6
.amdhsa_kernel {NAME}
  .amdhsa_next_free_vgpr 232
  .amdhsa_next_free_sgpr 102
  .amdhsa_accum_offset 232
  .amdhsa_group_segment_fixed_size 0
  .amdhsa_kernarg_size 72
  .amdhsa_user_sgpr_count 2
  .amdhsa_user_sgpr_kernarg_segment_ptr 1
  .amdhsa_system_sgpr_workgroup_id_x 1
.end_amdhsa_kernel
'''
    open(out, 'w').write(txt)

if __name__ == '__main__':
    out = sys.argv[1] if len(sys.argv) > 1 else 'concat_heads__sliding_block__softmax_full_mha__prompt.s'
    for a in sys.argv[2:]:
        if '=' in a:
            k, v = a.split('=', 1)
            OPT[k] = v if k in ('st', 'ld', 'prio', 'ost') else (int(v) if v.isdigit() else v)
        else:
            OPT[a] = True
    main(out)
```

```python
import sys, math, struct

def f32bits(x): return struct.unpack('<I', struct.pack('<f', x))[0]

class Gen:
    def __init__(self): self.lines = []
    def __call__(self, s):
        for l in s.split('\n'):
            l = l.strip()
            if l: self.lines.append('  ' + l)
    def label(self, s): self.lines.append(s + ':')
    def raw(self, s): self.lines.append(s)
    def text(self): return '\n'.join(self.lines) + '\n'

def vr(base, n): return f'v[{base}:{base+n-1}]'
def mfma(d, a, b, c):
    cs = '0' if c is None else vr(c, 16)
    return f'v_mfma_f32_32x32x16_bf16 {vr(d,16)}, {vr(a,4)}, {vr(b,4)}, {cs}'

OPT = dict(stamps=False, st='sc1', ld='', spin=200000)
NAME = 'concat_heads__sliding_block__softmax_full_mha__prompt_kernel'
STAMP_BASE = 0x2000000
def stamp(g, i, real=False, q=False):
    if OPT.get('tl'):
        if i in (0, 2, 3, 4, 6, 8, 9, 10, 11, 12, 13): g(f's_memrealtime s[{70+2*i}:{71+2*i}]')
        return
    if not OPT['stamps']: return
    import inspect
    if OPT.get('qkvst') and 5 <= i <= 13:
        caller = inspect.stack()[1].function
        if caller != 'qkv_compute': return
    if OPT.get('attst') and 2 <= i <= 14 and not q: return
    op = 's_memrealtime' if real else 's_memtime'
    g(f'{op} s[{70+2*i}:{71+2*i}]')
def stamp_dump(g):
    if not OPT['stamps']: return
    g('s_waitcnt lgkmcnt(0) vmcnt(0)')
    g(f's_add_u32 s64, s20, {STAMP_BASE}')
    g(f's_addc_u32 s65, s21, 0')
    g('s_mov_b32 s66, 0x100000')
    g('s_mov_b32 s67, 0x20000')
    g('s_mov_b64 exec, -1')
    g('v_mov_b32 v1, 0')
    for i in range(16):
        g(f'v_writelane_b32 v1, s{70+2*i}, {i}')
    g('s_lshl_b32 s68, s2, 3')
    g('s_add_u32 s68, s68, s3')
    g('s_lshl_b32 s68, s68, 6')
    g('v_lshlrev_b32 v3, 2, v0')
    g('v_cmp_gt_u32 vcc, 16, v0')
    g('s_and_saveexec_b64 s[62:63], vcc')
    g('buffer_store_dword v1, v3, s[64:67], s68 offen')
    g('s_waitcnt vmcnt(0)')

WS_Q = 0
WS_KV = 0x400000
WS_O = 0xC00000
WS_CNT = 0x1000000
CNT_A, CNT_B, CNT_OA, CNT_OB = 0, 16 * 256, 32 * 256, 48 * 256
QSCALE = (28 ** -0.5) * math.log2(math.e)
NEGBIG = 0xf149f2ca
POSBIG = 0x7149f2ca
LDS_BYTES = 163840

def srd(g, dst, lo, hi, nbytes, add=0):
    if add:
        g(f's_add_u32 s{dst}, s{lo}, {add}')
        g(f's_addc_u32 s{dst+1}, s{hi}, 0')
    else:
        g(f's_mov_b32 s{dst}, s{lo}')
        g(f's_mov_b32 s{dst+1}, s{hi}')
    g(f's_mov_b32 s{dst+2}, {nbytes}')
    g(f's_mov_b32 s{dst+3}, 0x20000')
def ST(): return (' ' + OPT['st']) if OPT['st'] else ''
def LD(): return (' ' + OPT['ld']) if OPT['ld'] else ''
lab = [0]
def newlab(p):
    lab[0] += 1
    return f'L{p}_{lab[0]}'

def spin_until(g, vdst, voff, target, tmp=205):
    l0 = newlab('poll'); l1 = newlab('pdone')
    g(f's_mov_b32 s68, {OPT["spin"]}')
    g(f'buffer_load_dword v{vdst}, v{voff}, s[64:67], 0 offen sc1')
    g.label(l0)
    g(f'buffer_load_dword v{tmp}, v{voff}, s[64:67], 0 offen sc1')
    g('s_waitcnt vmcnt(1)')
    g(f'v_cmp_ne_u32 vcc, {target}, v{vdst}')
    g('s_nop 4')
    g(f's_cbranch_vccz {l1}')
    g(f'buffer_load_dword v{vdst}, v{voff}, s[64:67], 0 offen sc1')
    g('s_waitcnt vmcnt(1)')
    g(f'v_cmp_ne_u32 vcc, {target}, v{tmp}')
    g('s_nop 4')
    g(f's_cbranch_vccz {l1}')
    g('s_sub_u32 s68, s68, 1')
    g('s_cmp_lg_u32 s68, 0')
    g(f's_cbranch_scc1 {l0}')
    g.label(l1)
    g('s_waitcnt vmcnt(0)')

WROW = 176
WSTG = 64 * WROW
NCH = 14
def prologue(g):
    g('s_and_b32 s40, s2, 7')
    g('s_lshr_b32 s41, s2, 3')
    g('s_lshr_b32 s22, s40, 1')
    g('s_lshl_b32 s22, s22, 2')
    g('s_and_b32 s42, s41, 3')
    g('s_add_u32 s22, s22, s42')
    g('s_and_b32 s23, s40, 1')
    g('s_lshl_b32 s23, s23, 3')
    g('s_lshr_b32 s42, s41, 2')
    g('s_add_u32 s23, s23, s42')
    g('s_add_u32 s69, s23, 1')
    g('s_and_b32 s69, s69, 7')
    g('s_and_b32 s42, s23, 8')
    g('s_or_b32 s69, s69, s42')
    g('s_cmp_ge_u32 s3, 4')
    g('s_cbranch_scc1 Lloader')

def kvb_srd(g):
    g('s_and_b32 s40, s2, 7')
    g('s_bfe_u32 s41, s2, 0x10003')
    g('s_lshl_b32 s40, s40, 1')
    g('s_add_u32 s40, s40, s41')
    g('s_lshl_b32 s47, s40, 18')
    g(f's_add_u32 s47, s47, {WS_KV + 0x400000}')
    g('s_add_u32 s32, s20, s47')
    g('s_addc_u32 s33, s21, 0')
    g('s_mov_b32 s34, 0x40000')
    g('s_mov_b32 s35, 0x20000')
    g('s_lshl_b32 s55, s3, 12')
def stage_tile(g, st):
    g(f's_add_u32 s54, s55, {st*32768}')
    g(f's_add_u32 m0, s55, {(st&3)*32768}')
    g('s_nop 0')
    for i in range(4):
        g(f'buffer_load_dwordx4 v2, s[32:35], s54 offen offset:{i*1024}{LD()} lds')
def init_dma_compute(g):
    kvb_srd(g)
    stage_tile(g, 0)
    stage_tile(g, 1)

def qkv_compute(g):
    g('v_and_b32 v4, 31, v0')
    g('s_lshl_b32 s44, s3, 5')
    g('v_add_u32 v4, s44, v4')
    g('v_lshlrev_b32 v4, 7, v4')
    g('v_bfe_u32 v5, v0, 1, 3')
    g('v_lshrrev_b32 v6, 5, v0')
    for ks in range(4):
        g(f'v_add_u32 v7, {2*ks}, v6')
        g('v_xor_b32 v7, v7, v5')
        g(f'v_lshl_add_u32 v{12+ks}, v7, 4, v4')
    g('v_bfe_u32 v4, v0, 2, 2')
    g('v_and_b32 v5, 3, v0')
    g('v_bfe_u32 v7, v0, 4, 1')
    g('v_lshlrev_b32 v7, 5, v7')
    g('v_lshl_add_u32 v7, v5, 3, v7')
    g('v_lshlrev_b32 v4, 1, v4')
    g('v_add_u32 v4, v4, v6')
    g(f'v_mul_u32_u24 v4, {2*WROW}, v4')
    g('v_add_u32 v4, v4, v7')
    g('v_add_u32 v16, 65536, v4')
    g('v_lshlrev_b32 v2, 4, v0')
    g('s_waitcnt lgkmcnt(0)')
    stamp(g, 1)
    srd(g, 32, 20, 21, 0x1000000)
    srd(g, 64, 20, 21, 0x4000, WS_CNT)
    g('s_or_b32 s44, s2, s3')
    g('s_cmp_lg_u32 s44, 0')
    g('s_cbranch_scc1 Lnoinit')
    g('v_lshlrev_b32 v20, 8, v0')
    g('v_mov_b32 v21, 0')
    g('buffer_store_dword v21, v20, s[64:67], 0 offen sc1')
    g('s_waitcnt vmcnt(0)')
    srd(g, 36, 18, 19, 256)
    g('s_mov_b64 exec, 1')
    g('v_mov_b32 v21, 1')
    g('v_mov_b32 v20, 0')
    g('buffer_store_dword v21, v20, s[36:39], 0 offen sc1')
    g('s_mov_b64 exec, -1')
    g.label('Lnoinit')
    if OPT.get('codepf'):
        g('s_getpc_b64 s[24:25]')
        g.label('Lpc_here')
        g(f's_sub_u32 s24, s24, Lpc_here-{NAME}')
        g('s_subb_u32 s25, s25, 0')
        g(f's_mov_b32 s26, Lexit-{NAME}')
        g('s_mov_b32 s27, 0x20000')
        g('s_lshr_b32 s46, s2, 3')
        g('s_lshl_b32 s46, s46, 2')
        g('s_add_u32 s46, s46, s3')
        g('s_lshl_b32 s46, s46, 10')
        g('v_add_u32 v20, s46, v2')
        g('buffer_load_dwordx4 v[144:147], v20, s[24:27], 0 offen')
    if OPT.get('pf', 1) == 2:
        l1 = newlab('pfb'); ld = newlab('pfb')
        g('s_cmp_ge_u32 s3, 2')
        g(f's_cbranch_scc1 {l1}')
        srd(g, 24, 10, 11, 1835008)
        g('s_mul_i32 s46, s2, 7168')
        g('s_lshl_b32 s47, s3, 12')
        g('s_add_u32 s46, s46, s47')
        g('v_add_u32 v20, s46, v2')
        for i in range(4):
            g(f'buffer_load_dwordx4 v[{160+4*i}:{163+4*i}], v20, s[24:27], 0 offen offset:{i*1024}')
        g(f's_branch {ld}')
        g.label(l1)
        srd(g, 24, 12, 13, 1204224)
        g('s_mul_i32 s46, s2, 4704')
        g('s_and_b32 s47, s3, 1')
        g('s_mul_i32 s47, s47, 3072')
        g('s_add_u32 s46, s46, s47')
        g('v_add_u32 v20, s46, v2')
        for i in range(3):
            g(f'buffer_load_dwordx4 v[{160+4*i}:{163+4*i}], v20, s[24:27], 0 offen offset:{i*1024}')
        g.label(ld)
    if OPT.get('tw'):
        g('s_mov_b64 exec, 1')
        g('v_mov_b32 v20, 0')
        g('v_mov_b32 v21, 0')
        for br_, c0r in ((1, 's23'), (0, 's69')):
            g(f's_mul_i32 s46, {c0r}, 3')
            for t in range(3):
                g(f's_add_u32 s47, s46, {t}')
                g('s_and_b32 s44, s47, 15')
                g('s_lshl_b32 s44, s44, 6')
                g('s_lshl_b32 s45, s22, 2')
                g('s_add_u32 s44, s44, s45')
                g('s_add_u32 s44, s44, s3')
                if br_: g('s_add_u32 s44, s44, 1024')
                g('s_cmp_lt_u32 s47, 16')
                g('s_cselect_b32 s45, 11, 12')
                g(f's_cselect_b32 s43, {WS_Q}, {WS_KV}')
                g('s_lshl_b32 s44, s44, s45')
                g('s_add_u32 s44, s44, s43')
                g('s_cmp_ge_u32 s47, 32')
                g('s_cselect_b32 s45, 2048, 0')
                g('s_add_u32 s44, s44, s45')
                g('buffer_store_dword v21, v20, s[32:35], s44 offen sc1')
        g('s_and_b32 s44, s2, 7')
        g('s_bfe_u32 s45, s2, 0x10003')
        g('s_lshl_b32 s44, s44, 1')
        g('s_add_u32 s44, s44, s45')
        g('s_lshr_b32 s45, s2, 4')
        g('s_lshl_b32 s45, s45, 2')
        g('s_add_u32 s45, s45, s3')
        g('s_lshl_b32 s45, s45, 4')
        g('s_add_u32 s45, s45, s44')
        g('s_lshl_b32 s45, s45, 11')
        g(f's_add_u32 s45, s45, {WS_O}')
        g('buffer_store_dword v21, v20, s[32:35], s45 offen sc1')
        g('s_add_u32 s45, s45, 0x200000')
        g('buffer_store_dword v21, v20, s[32:35], s45 offen sc1')
        g('s_mov_b64 exec, -1')
    srd(g, 36, 18, 19, 256)
    g('v_mov_b32 v30, 0')
    g('buffer_load_dword v31, v30, s[36:39], 0 offen sc1')
    def prefetch():
        if not OPT.get('pf', 1): return
        l1 = newlab('pf'); l2 = newlab('pf'); ld = newlab('pf')
        g('s_cmp_ge_u32 s3, 2')
        g(f's_cbranch_scc1 {l1}')
        srd(g, 24, 4, 5, 1835008)
        g('s_mul_i32 s46, s2, 7168')
        g('s_lshl_b32 s47, s3, 12')
        g('s_add_u32 s46, s46, s47')
        g('v_add_u32 v20, s46, v2')
        for i in range(4):
            g(f'buffer_load_dwordx4 v[{144+4*i}:{147+4*i}], v20, s[24:27], 0 offen offset:{i*1024}')
        g(f's_branch {ld}')
        g.label(l1)
        g('s_cmp_eq_u32 s3, 2')
        g(f's_cbranch_scc0 {l2}')
        srd(g, 24, 6, 7, 1204224)
        g('s_mul_i32 s46, s2, 4704')
        g('v_add_u32 v20, s46, v2')
        g('v_add_u32 v21, 4096, v20')
        for i in range(5):
            g(f'buffer_load_dwordx4 v[{144+4*i}:{147+4*i}], v{20 if i < 4 else 21}, s[24:27], 0 offen offset:{(i%4)*1024}')
        g(f's_branch {ld}')
        g.label(l2)
        g('s_mul_i32 s46, s2, 1568')
        g('v_add_u32 v20, s46, v2')
        srd(g, 24, 8, 9, 448*896)
        for i in range(2):
            g(f'buffer_load_dwordx4 v[{144+4*i}:{147+4*i}], v20, s[24:27], 0 offen offset:{i*1024}')
        srd(g, 28, 14, 15, 448*896)
        for i in range(2):
            g(f'buffer_load_dwordx4 v[{152+4*i}:{155+4*i}], v20, s[28:31], 0 offen offset:{i*1024}')
        g.label(ld)
    XF = 80; WF = 88
    ACCS = {1: 32, 0: 144}
    PS = {1: 112, 0: 208}
    g('v_and_b32 v18, 31, v0')
    g('v_cmp_eq_u32 vcc, 28, v18')
    g('v_mov_b32 v19, 0x3f803f80')
    g('s_nop 0')
    g('v_cndmask_b32_e64 v18, 0, v19, vcc')
    g('s_mov_b32 s60, 0')
    g('s_mov_b32 s61, -1')
    g('s_mov_b32 s58, 0xf0000000')
    g('s_mov_b32 s59, 0xf0000000')
    def reads(n, buf, part):
        kc, ks = divmod(n, 4)
        st = kc % 4
        if part == 0:
            g(f'ds_read_b128 {vr(XF+4*buf,4)}, v{12+ks} offset:{st*16384}')
        for jj in range(2):
            off = st * WSTG + (ks*16 + jj) * WROW + part * 56
            g(f'ds_read_b64_tr_b16 {vr(WF+12*buf+4*part+2*jj,2)}, v16 offset:{off}')
    def mfma1(br, buf, t, first, types2):
        types = types2[br]
        x = XF + 4*buf; wf = WF + 12*buf + 4*t; d = ACCS[br] + 16*t
        c = None if first else d
        g(mfma(d, wf, x, c) if types[t] == 'QK' else mfma(d, x, wf, c))
    def epilogue_list(br, types2):
        types = types2[br]
        c0 = 's52' if br else 's63'
        L = []
        A = L.append
        ACC = ACCS[br]; P = PS[br]
        A('s_lshl_b32 s54, s22, 2')
        A('s_add_u32 s54, s54, s3')
        if br: A('s_add_u32 s54, s54, 1024')
        for t in range(3):
            a = ACC + 16*t; p = P + 8*t
            so = (48, 49, 53)[t]
            A(f's_add_u32 s62, {c0}, {t}')
            A('s_and_b32 s56, s62, 15')
            A('s_lshl_b32 s56, s56, 6')
            A('s_add_u32 s56, s56, s54')
            if types[t] == 'QK':
                A('s_cmp_lt_u32 s62, 16\n' + f's_cselect_b32 s57, {f32bits(QSCALE):#x}, 1.0\n' + 's_cselect_b32 s45, 0, 0x3f80\n' +
                  's_cselect_b32 s46, 11, 12\n' + f's_cselect_b32 s47, {WS_Q}, {WS_KV}')
                A('s_lshl_b32 s56, s56, s46')
                A(f's_add_u32 s{so}, s56, s47')
                A('v_mov_b32 v19, s45')
                for r in range(16): A(f'v_mul_f32 v{a+r}, s57, v{a+r}')
                for i in range(8): A(f'v_cvt_pk_bf16_f32 v{p+i}, v{a+2*i}, v{a+2*i+1}')
                A(f'v_cndmask_b32_e64 v{p+6}, v{p+6}, v19, s[60:61]')
                A(f'v_cndmask_b32_e64 v{p+7}, v{p+7}, 0, s[60:61]')
            else:
                A('s_lshl_b32 s56, s56, 12')
                A(f's_add_u32 s{so}, s56, {WS_KV + 2048}')
                for i in range(8): A(f'v_cvt_pk_bf16_f32 v{p+i}, v{a+2*i}, v{a+2*i+1}')
                for i in range(8): A(f'v_cndmask_b32_e64 v{p+i}, v{p+i}, v18, s[58:59]')
            if br:
                A('s_nop 1\n' + f'buffer_store_dwordx4 {vr(p,4)}, v2, s[32:35], s{so} offen{ST()}')
                A(f'buffer_store_dwordx4 {vr(p+4,4)}, v2, s[32:35], s{so} offen offset:1024{ST()}')
        return L
    g('s_mul_i32 s52, s23, 3')
    g('s_mul_i32 s63, s69, 3')
    T0, T1, T2 = ('QK','QK','QK'), ('QK','QK','V'), ('V','V','V')
    variants = [{1: T0, 0: T0}, {1: T0, 0: T1}, {1: T1, 0: T2}, {1: T2, 0: T2}, {1: T2, 0: T0}]
    g('s_cmp_eq_u32 s23, 9')
    g('s_cbranch_scc1 Lqkv_v1')
    g('s_cmp_eq_u32 s23, 10')
    g('s_cbranch_scc1 Lqkv_v2')
    g('s_cmp_eq_u32 s23, 15')
    g('s_cbranch_scc1 Lqkv_v4')
    g('s_cmp_gt_u32 s23, 10')
    g('s_cbranch_scc1 Lqkv_v3')
    NS = NCH * 4
    SIG_AT = OPT.get('sig_at', 44)
    for vi, types in enumerate(variants):
        if vi: g.label(f'Lqkv_v{vi}')
        g('s_barrier')
        if vi == 0: stamp(g, 2)
        for part in range(3): reads(0, 0, part)
        prefetch()
        epi = []
        EP0, EPN = OPT.get('ep0', 28), OPT.get('epn', 3)
        def fill(k):
            for _ in range(k):
                if epi: g(epi.pop(0))
        for n in range(NS):
            br = 1 if n < 28 else 0
            boundary = (n + 1) % 4 == 0 and n + 1 < NS
            nxt = n + 1 < NS
            buf = n & 1
            first = n % 28 == 0
            if n == EP0:
                epi = ['s_nop 7'] + epilogue_list(1, types)
                per = -(-len(epi) // (EPN * 3))
            inter = EP0 <= n < EP0 + EPN
            if boundary:
                g('s_waitcnt vmcnt(0) lgkmcnt(0)' if n + 1 in (SIG_AT, 24) else 's_waitcnt lgkmcnt(0)')
                g('s_barrier')
                if OPT.get('qkvst') and vi == 0:
                    c1 = (n + 1) // 4
                    m = {2: 5, 4: 6, 6: 7, 8: 8, 10: 9, 11: 10, 12: 13}
                    if c1 in m: stamp(g, m[c1])
                if n + 1 == SIG_AT:
                    sk = newlab('sigB'); ok = newlab('inited'); lp = newlab('initspin')
                    g('s_cmp_lg_u32 s3, 0')
                    g(f's_cbranch_scc1 {sk}')
                    g('v_readfirstlane_b32 s47, v31')
                    g('s_cmp_lg_u32 s47, 0')
                    g(f's_cbranch_scc1 {ok}')
                    g(f's_mov_b32 s68, {OPT["spin"]}')
                    g.label(lp)
                    g('buffer_load_dword v31, v30, s[36:39], 0 offen sc1')
                    g('s_waitcnt vmcnt(0)')
                    g('v_readfirstlane_b32 s47, v31')
                    g('s_cmp_lg_u32 s47, 0')
                    g(f's_cbranch_scc1 {ok}')
                    g('s_sub_u32 s68, s68, 1')
                    g('s_cmp_lg_u32 s68, 0')
                    g(f's_cbranch_scc1 {lp}')
                    g.label(ok)
                    g('s_mov_b64 exec, 1')
                    g('v_mov_b32 v1, 1')
                    g('s_lshl_b32 s47, s23, 8')
                    g(f's_add_u32 s47, s47, {CNT_B}')
                    g('v_mov_b32 v29, s47')
                    g('buffer_atomic_add v1, v29, s[64:67], 0 offen sc1')
                    g('s_mov_b64 exec, -1')
                    g.label(sk)
            else:
                g('s_waitcnt lgkmcnt(4)')
            mfma1(br, buf, 0, first, types)
            if nxt: reads(n + 1, buf ^ 1, 0)
            if inter: fill(per)
            if not boundary: g(f's_waitcnt lgkmcnt({5 if nxt else 2})')
            mfma1(br, buf, 1, first, types)
            if nxt: reads(n + 1, buf ^ 1, 1)
            if inter: fill(per)
            if not boundary: g(f's_waitcnt lgkmcnt({5 if nxt else 0})')
            mfma1(br, buf, 2, first, types)
            if nxt: reads(n + 1, buf ^ 1, 2)
            if inter: fill(per)
            if n == 27 and vi == 0: stamp(g, 3)
            if OPT.get('sbar', 0) and n == EP0 + EPN - 1:
                g('s_barrier')
        assert not epi
        if vi == 0: stamp(g, 14)
        g('s_barrier')
        if vi == 0: stamp(g, 4)
        init_dma_compute(g)
        for x in epilogue_list(0, types): g(x)
        if vi < 4: g('s_branch Lqkv_fin')
    g.label('Lqkv_fin')
    g('s_branch Lattn_setup')

def qkv_loader(g):
    g.label('Lloader')
    g('s_sub_u32 s43, s3, 4')
    g('s_lshl_b32 s44, s22, 7')
    g('s_lshl_b32 s45, s43, 5')
    g('s_add_u32 s44, s44, s45')
    g('v_lshrrev_b32 v10, 3, v0')
    g('v_add_u32 v10, s44, v10')
    g('v_mul_u32_u24 v10, 896, v10')
    g('v_lshrrev_b32 v11, 4, v0')
    g('v_and_b32 v12, 7, v0')
    g('v_xor_b32 v12, v12, v11')
    g('v_lshl_add_u32 v2, v12, 4, v10')
    g('v_xor_b32 v12, 4, v12')
    g('v_lshl_add_u32 v3, v12, 4, v10')
    g('v_add_u32 v3, 7168, v3')
    g('v_add_u32 v4, 14336, v2')
    g('v_add_u32 v5, 14336, v3')
    g('s_lshl_b32 s46, s43, 12')
    g('s_lshl_b32 s47, s43, 10')
    g('s_add_u32 s47, s47, 65536')
    g('s_lshl_b32 s44, s43, 6')
    g('s_mul_i32 s50, s23, 168')
    g('s_mul_i32 s51, s69, 168')
    def wcalc(n):
        g('v_add_u32 v10, s44, v0')
        if n: g(f'v_add_u32 v10, {256*n}, v10')
        g('v_mul_u32_u24 v11, 5958, v10')
        g('v_lshrrev_b32 v11, 16, v11')
        g('v_mul_u32_u24 v12, 11, v11')
        g('v_sub_u32 v12, v10, v12')
        g('v_and_b32 v13, 48, v11')
        g('v_and_b32 v14, 3, v11')
        g('v_lshl_add_u32 v13, v14, 2, v13')
        g('v_bfe_u32 v14, v11, 2, 2')
        g('v_add_u32 v13, v13, v14')
        g('v_mul_u32_u24 v13, 2688, v13')
        g(f'v_lshl_add_u32 v{6+n}, v12, 4, v13')
    wcalc(0)
    g('s_waitcnt lgkmcnt(0)')
    srd(g, 24, 10, 11, 1835008)
    srd(g, 28, 12, 13, 1204224)
    def issueX(c):
        kc = c % 7; st = c % 4
        sx = 24 if c < 7 else 32
        g(f's_mov_b32 s48, {kc*128}')
        for e in range(4):
            g(f's_add_u32 m0, s46, {st*16384 + e*1024}')
            g('s_nop 0')
            g(f'buffer_load_dwordx4 v{2+e}, s[{sx}:{sx+3}], s48 offen lds')
    def issueW(c, ns=(0, 1, 2)):
        kc = c % 7; st = c % 4
        sw = 28 if c < 7 else 36
        g(f's_add_u32 s49, {"s50" if c < 7 else "s51"}, {kc*64*2688}')
        for n in ns:
            if n == 2:
                sk = newlab('qs')
                g('s_cmp_eq_u32 s43, 3')
                g(f's_cbranch_scc1 {sk}')
            g(f's_add_u32 m0, s47, {st*WSTG + n*4096}')
            g('s_nop 0')
            g(f'buffer_load_dwordx4 v{6+n}, s[{sw}:{sw+3}], s49 offen lds')
            if n == 2: g.label(sk)
    def issue(c):
        issueX(c); issueW(c)
    issueX(0)
    issueW(0, (0,))
    wcalc(1); issueW(0, (1,))
    wcalc(2); issueW(0, (2,))
    srd(g, 32, 4, 5, 1835008)
    srd(g, 36, 6, 7, 1204224)
    srd(g, 64, 20, 21, 0x4000, WS_CNT)
    g('s_and_b32 s40, s2, 7')
    g('s_bfe_u32 s41, s2, 0x10003')
    g('s_lshl_b32 s40, s40, 1')
    g('s_add_u32 s40, s40, s41')
    g('v_min_u32 v30, 2, v0')
    g('v_lshlrev_b32 v30, 4, v30')
    g('v_add_u32 v30, s40, v30')
    g('v_mul_u32_u24 v30, 43, v30')
    g('v_lshrrev_b32 v30, 7, v30')
    g('v_lshlrev_b32 v31, 8, v30')
    g(f'v_add_u32 v203, {CNT_B}, v31')
    for c in range(1, 3): issue(c)
    issued = 2
    HOLD = OPT.get('hold', 9) if OPT.get('sbar', 0) else 99
    for c in range(NCH):
        rem = issued - c
        g(f's_waitcnt vmcnt({1 if c == 13 else 6*rem})')
        g('s_barrier')
        if c + 3 < NCH and not (HOLD <= c + 3 <= 10):
            issue(c + 3); issued = c + 3
        if OPT.get('sbar', 0) and c == 7:
            g('s_barrier')
            for cc in range(HOLD, 11):
                issue(cc); issued = cc
        if c == 10: attn_setup(g)
        if c == 11: set_mask(g, 32, 'first')
        if c == 12:
            g('buffer_load_dword v201, v203, s[64:67], 0 offen sc1')
    g('s_waitcnt vmcnt(0)')
    g('v_cmp_ne_u32 vcc, 16, v201')
    g('s_nop 4')
    g('s_cbranch_vccz Lh1_polled')
    spin_until(g, 201, 203, 16)
    g.label('Lh1_polled')
    g('s_barrier')
    stamp(g, 4)
    g('s_add_u32 s47, s44, 0x200000')
    g('s_mov_b32 m0, s51')
    g('s_nop 0')
    for i in range(2):
        g(f'buffer_load_dwordx4 v2, s[24:27], s47 offen offset:{i*1024}{LD()} lds')
    stage_tile(g, 0)
    stage_tile(g, 1)
    stamp(g, 5)
    g('s_waitcnt vmcnt(4)')
    g('s_barrier')
    g('s_branch Lattn_go')

K2_SCR = 131072
QL = 200
def set_mask(g, dst, kind):
    for r in range(16):
        br_ = (r & 3) + 8 * (r >> 2)
        op = 'v_cmp_le_i32' if kind == 'diag' else 'v_cmp_gt_i32'
        g(f'{op} vcc, {br_}, v24')
        g('s_nop 1')
        g(f'v_cndmask_b32_e64 v{dst+r}, v25, 0, vcc')
def attn_setup(g):
    kvb_srd(g)
    g('s_lshr_b32 s41, s2, 4')
    g('s_and_b32 s42, s3, 3')
    g('s_lshr_b32 s43, s3, 2')
    g('v_lshlrev_b32 v2, 4, v0')
    g('s_lshl_b32 s44, s40, 6')
    g('s_lshl_b32 s45, s41, 2')
    g('s_add_u32 s45, s45, s42')
    g('s_add_u32 s44, s44, s45')
    g('s_lshl_b32 s44, s44, 11')
    srd(g, 24, 20, 21, 0x400000)
    g('s_sub_u32 s28, s32, 0x400000')
    g('s_subb_u32 s29, s33, 0')
    g('s_mov_b32 s30, 0x40000')
    g('s_mov_b32 s31, 0x20000')
    srd(g, 36, 20, 21, 0x400000, WS_O)
    g('v_min_u32 v30, 2, v0')
    g('v_lshlrev_b32 v30, 4, v30')
    g('v_add_u32 v30, s40, v30')
    g('v_mul_u32_u24 v30, 43, v30')
    g('v_lshrrev_b32 v30, 7, v30')
    g('v_lshlrev_b32 v31, 8, v30')
    g(f'v_add_u32 v203, {CNT_B}, v31')
    g('s_lshl_b32 s47, s41, 2')
    g('s_add_u32 s47, s47, s3')
    g('s_sub_u32 s47, s47, 8')
    g('s_lshl_b32 s50, s47, 12')
    g('s_cmp_lt_i32 s47, 0')
    g('s_cselect_b32 s50, 0x40000000, s50')
    g('v_add_u32 v28, s50, v2')
    g('s_add_u32 s47, s47, 8')
    g('s_lshl_b32 s50, s47, 12')
    g('v_add_u32 v29, s50, v2')
    g('s_lshl_b32 s47, s42, 12')
    g('v_add_u32 v3, s47, v2')
    g('s_lshl_b32 s47, s43, 14')
    g('v_add_u32 v4, s47, v2')
    g('v_add_u32 v5, 32768, v4')
    g(f'v_add_u32 v6, {K2_SCR}, v3')
    g('s_lshl_b32 s47, s42, 8')
    g(f's_add_u32 s47, s47, {K2_SCR+16384}')
    g('v_lshlrev_b32 v7, 2, v0')
    g('v_add_u32 v7, s47, v7')
    g('s_lshl_b32 s47, s42, 11')
    g(f's_add_u32 s51, s47, {K2_SCR}')
    g(f'v_add_u32 v{QL}, s51, v2')
    g('v_and_b32 v24, 31, v0')
    g('v_lshrrev_b32 v25, 5, v0')
    g('v_lshlrev_b32 v25, 2, v25')
    g('v_sub_u32 v24, v24, v25')
    g(f'v_mov_b32 v25, {NEGBIG:#x}')
    g('s_mov_b32 s60, 0')
    g('s_mov_b32 s61, -1')
    srd(g, 56, 20, 21, 0x1000000)

def phase_attn(g):
    g.label('Lattn_setup')
    QA = 8; QB = 16; MASK = 32; S0 = 48; S1 = 64; P = 80; OA = 88; OB = 104; KF = 120; VF = 128; T = 136
    TK = 144; TS = 152
    MNA = 26; MNB = 27
    SB = [S0, S1]
    attn_setup(g)
    set_mask(g, MASK, 'diag')
    stamp(g, 5)
    g('s_waitcnt vmcnt(4)')
    g('s_barrier')
    g.label('Lattn_go')
    g('s_cmp_eq_u32 s43, 99') if False else None
    def dma4(vreg, s, s_goff, s_m0, n=4, first=0):
        g(f's_mov_b32 m0, {s_m0}')
        g('s_nop 0')
        for i in range(first, first + n):
            g(f'buffer_load_dwordx4 v{vreg}, s[{s}:{s+3}], {s_goff} offen offset:{i*1024}{LD()} lds')
    stamp(g, 6)
    g(f'ds_read_b128 {vr(QB,4)}, v{QL}')
    g(f'ds_read_b128 {vr(QB+4,4)}, v{QL} offset:1024')

    def rowmax(sbuf, t):
        g(f'v_max3_f32 v{t}, v{sbuf}, v{sbuf+1}, v{sbuf+2}')
        for r in range(3, 15, 2):
            g(f'v_max3_f32 v{t}, v{t}, v{sbuf+r}, v{sbuf+r+1}')
        g(f'v_max_f32 v{t}, v{t}, v{sbuf+15}')
        g(f'v_mov_b32 v{t+1}, v{t}')
        g('s_nop 1')
        g(f'v_permlane32_swap_b32 v{t}, v{t+1}')
        g('s_nop 1')
        g(f'v_max_f32 v{t}, v{t}, v{t+1}')
    def set_standin(sbuf, q, mneg):
        t = T
        rowmax(sbuf, t)
        g(f'v_sub_f32 v{t}, 0, v{t}')
        g(f'v_cvt_pk_bf16_f32 v{t}, v{t}, 0')
        g(f'v_lshlrev_b32 v{mneg}, 16, v{t}')
        g('s_mov_b64 exec, s[60:61]')
        g(f'v_mov_b32 v{q+4+2}, v{t}')
        g('s_mov_b64 exec, -1')
    def write_partial(O, mn):
        for i in range(4): g(f'ds_write_b128 v6, {vr(O+4*i,4)} offset:{i*1024}')
        g(f'ds_write_b32 v7, v{mn}')
    FB = 144
    def finish(tag, br, O, mn, q, tmp):
        for i in range(4): g(f'ds_read_b128 {vr(tmp+4*i,4)}, v6 offset:{i*1024}')
        g(f'ds_read_b32 v{T}, v7')
        g('s_waitcnt lgkmcnt(0)')
        g(f'v_min_f32 v{T+1}, v{mn}, v{T}')
        g(f'v_sub_f32 v{T+2}, v{T+1}, v{mn}')
        g(f'v_sub_f32 v{T+3}, v{T+1}, v{T}')
        g(f'v_exp_f32 v{T+2}, v{T+2}')
        g(f'v_exp_f32 v{T+3}, v{T+3}')
        g('s_nop 0')
        for r in range(16): g(f'v_mul_f32 v{O+r}, v{O+r}, v{T+2}')
        for r in range(16): g(f'v_fmac_f32 v{O+r}, v{tmp+r}, v{T+3}')
        g(f'v_mov_b32 v{T}, v{O+12}')
        g(f'v_mov_b32 v{T+1}, v{O+12}')
        g(f'v_mul_f32 v{T+4}, 0, v{O}')
        g(f'v_fmac_f32 v{T+4}, 0, v{O+1}')
        g(f'v_permlane32_swap_b32 v{T}, v{T+1}')
        for r in range(2, 16): g(f'v_fmac_f32 v{T+4}, 0, v{O+r}')
        g(f'v_add_f32 v{T+4}, v{T+4}, v{T+1}')
        g(f's_mov_b32 s47, {f32bits(2.0**100):#x}')
        g(f'v_cmp_ngt_f32 vcc, s47, v{T+4}')
        g('s_nop 4')
        g(f's_cbranch_vccz L{tag}_ok')
        fallback(tag, br, O, q)
        g(f'v_mov_b32 v{T}, v{O+12}')
        g(f'v_mov_b32 v{T+1}, v{O+12}')
        g('s_nop 1')
        g(f'v_permlane32_swap_b32 v{T}, v{T+1}')
        g('s_nop 1')
        g.label(f'L{tag}_ok')
        g(f'v_rcp_f32 v{T+1}, v{T+1}')
        g('s_nop 0')
        for r in range(16): g(f'v_mul_f32 v{O+r}, v{O+r}, v{T+1}')
        for i in range(8): g(f'v_cvt_pk_bf16_f32 v{tmp+i}, v{O+2*i}, v{O+2*i+1}')
        g('s_mov_b64 exec, s[60:61]')
        g(f'v_mov_b32 v{tmp+6}, 0')
        g(f'v_mov_b32 v{tmp+7}, 0')
        g('s_mov_b64 exec, -1')
        g('s_lshl_b32 s47, s41, 2')
        g('s_add_u32 s47, s47, s42')
        g(f's_add_u32 s47, s47, {br*64}')
        g('s_lshl_b32 s47, s47, 4')
        g('s_add_u32 s47, s47, s40')
        g('s_lshl_b32 s47, s47, 11')
        g('s_nop 0')
        g(f'buffer_store_dwordx4 {vr(tmp,4)}, v2, s[36:39], s47 offen{ST()}')
        g(f'buffer_store_dwordx4 {vr(tmp+4,4)}, v2, s[36:39], s47 offen offset:1024{ST()}')
        g('s_nop 1')
    def fallback(tag, br, O, q):
        FS, FK, FV, FP, FQ, Fm = FB, FB+16, FB+24, FB+32, FB+40, FB+48
        s = 28 if br == 0 else 32
        for i in range(8): g(f'v_mov_b32 v{FQ+i}, v{q+i}')
        g('s_mov_b64 exec, s[60:61]')
        g(f'v_mov_b32 v{FQ+6}, 0')
        g('s_mov_b64 exec, -1')
        for r in range(16): g(f'v_mov_b32 v{O+r}, 0')
        g(f'v_mov_b32 v{Fm}, v25')
        if br == 0:
            g('s_lshl_b32 s52, s41, 2')
            g('s_add_u32 s52, s52, s42')
            g('s_sub_u32 s53, s52, 8')
            g('s_mov_b32 s54, s52')
        else:
            g('s_mov_b32 s54, 63')
        g.label(f'L{tag}_fb_loop')
        g('s_lshl_b32 s55, s54, 12')
        for i in range(2):
            g(f'buffer_load_dwordx4 {vr(FK+4*i,4)}, v2, s[{s}:{s+3}], s55 offen offset:{i*1024}{LD()}')
            g(f'buffer_load_dwordx4 {vr(FV+4*i,4)}, v2, s[{s}:{s+3}], s55 offen offset:{2048+i*1024}{LD()}')
        if br == 0:
            g('s_cmp_eq_u32 s54, s52')
            g(f's_cbranch_scc1 L{tag}_fb_diag')
            g('s_cmp_eq_u32 s54, s53')
            g(f's_cbranch_scc1 L{tag}_fb_first')
        for r in range(16): g(f'v_mov_b32 v{FS+r}, 0')
        if br == 0:
            g(f's_branch L{tag}_fb_go')
            g.label(f'L{tag}_fb_diag')
            set_mask(g, FS, 'diag')
            g(f's_branch L{tag}_fb_go')
            g.label(f'L{tag}_fb_first')
            set_mask(g, FS, 'first')
            g.label(f'L{tag}_fb_go')
        g('s_waitcnt vmcnt(0)')
        g('s_nop 1')
        g(mfma(FS, FK, FQ, FS))
        g(mfma(FS, FK+4, FQ+4, FS))
        g('s_nop 15')
        rowmax(FS, Fm+1)
        g(f'v_max_f32 v{Fm+1}, v{Fm+1}, v{Fm}')
        g(f'v_sub_f32 v{Fm+2}, v{Fm}, v{Fm+1}')
        g(f'v_exp_f32 v{Fm+2}, v{Fm+2}')
        g(f'v_mov_b32 v{Fm}, v{Fm+1}')
        for r in range(16): g(f'v_sub_f32 v{FS+r}, v{FS+r}, v{Fm}')
        for r in range(16): g(f'v_exp_f32 v{FS+r}, v{FS+r}')
        for r in range(16): g(f'v_mul_f32 v{O+r}, v{O+r}, v{Fm+2}')
        for i in range(8): g(f'v_cvt_pk_bf16_f32 v{FP+i}, v{FS+2*i}, v{FS+2*i+1}')
        g('s_nop 1')
        g(mfma(O, FV, FP, O))
        g(mfma(O, FV+4, FP+4, O))
        g('s_nop 15')
        g('s_sub_u32 s54, s54, 1')
        g('s_cmp_lt_i32 s54, 0')
        g(f's_cbranch_scc1 L{tag}_fb_end')
        if br == 0:
            g('s_cmp_lt_i32 s54, s53')
            g(f's_cbranch_scc1 L{tag}_fb_end')
        g(f's_branch L{tag}_fb_loop')
        g.label(f'L{tag}_fb_end')

    g('s_cmp_eq_u32 s43, 0')
    g('s_cbranch_scc0 Lattn_kh1')

    def path(kh):
        tag = f'K{kh}'
        unitsA = [8, 7, 6, 5, 4] if kh == 0 else [3, 2, 1, 0]
        nA = len(unitsA); N = 32 + nA
        def unit(i):
            if i >= 32:
                u = unitsA[i - 32]
                masked = (kh == 0 and u == 8) or (kh == 1 and u == 0)
                return dict(base=3, off=u*4096, Q=QA, O=OA, C=MASK if masked else None, first=(i == 32))
            return dict(b=i, Q=QB, O=OB, C=None, first=(i == 0))
        def addr(i, cs):
            u = unit(i)
            if 'base' in u: return u['base'], u['off']
            b = u['b']; s = b >> 2
            if s == cs: return 4, (b & 3) * 4096
            assert s == cs + 1
            return 5, (b & 3) * 4096
        def rdK(i, cs, dst=KF):
            r, off = addr(i, cs)
            g(f'ds_read_b128 {vr(dst,4)}, v{r} offset:{off}')
            g(f'ds_read_b128 {vr(dst+4,4)}, v{r} offset:{off+1024}')
        def rdV(i, f, cs):
            r, off = addr(i, cs)
            g(f'ds_read_b128 {vr(VF+4*f,4)}, v{r} offset:{off+2048+f*1024}')
        rdK(0, 0)
        g('s_waitcnt lgkmcnt(0)')
        g(mfma(S0, KF, QB, None))
        g(mfma(S0, KF+4, QB+4, S0))
        g('s_nop 15')
        set_standin(S0, QB, MNB)
        g('s_nop 1')
        g(mfma(S0, KF, QB, None))
        g(mfma(S0, KF+4, QB+4, S0))
        rdK(1, 0)
        rdV(0, 0, 0)
        g('s_nop 15')
        if kh == 0: stamp(g, 7)
        if OPT.get('attst'): stamp(g, 2, q=True)
        def wo_piece(it):
            if it == 7:
                sk = newlab('wo7')
                g('s_cmp_lg_u32 s3, 0')
                g(f's_cbranch_scc1 {sk}')
                g(f's_add_u32 m0, s45, {65536 + it*8192}')
                g(f'v_add_u32 v31, {it*64*896}, v30')
                g('buffer_load_dwordx4 v31, s[56:59], 0 offen lds')
                g.label(sk)
            else:
                g(f's_add_u32 m0, s45, {65536 + it*8192}')
                g(f's_mov_b32 s50, {it*64*896}')
                g('buffer_load_dwordx4 v30, s[56:59], s50 offen lds')
        def wo_setup():
            g('s_mov_b32 s56, s14')
            g('s_mov_b32 s57, s15')
            g(f's_mov_b32 s58, {448*896}')
            g('s_mov_b32 s59, 0x20000')
            g('v_lshrrev_b32 v30, 3, v0')
            g('v_and_b32 v31, 7, v0')
            g('v_and_b32 v1, 2, v30')
            g('v_lshlrev_b32 v1, 1, v1')
            g('v_xor_b32 v31, v31, v1')
            g('s_lshl_b32 s50, s3, 3')
            g('v_add_u32 v30, s50, v30')
            g('v_mul_u32_u24 v30, 896, v30')
            g('v_lshl_add_u32 v30, v31, 4, v30')
            g('s_lshr_b32 s50, s2, 5')
            g('s_lshl_b32 s50, s50, 7')
            g('s_cmp_ge_u32 s2, 224')
            g('s_cselect_b32 s50, 0x40000000, s50')
            g('v_add_u32 v30, s50, v30')
            g('s_lshl_b32 s45, s3, 10')
        def dma_slot(i, inloop):
            if i == 0 or i == 1:
                st = i + 2
                g(f's_add_u32 s54, s55, {st*32768}')
                g(f's_add_u32 m0, s55, {(st&3)*32768}')
                g('s_nop 0')
                for k in range(4):
                    g(f'buffer_load_dwordx4 v2, s[32:35], s54 offen offset:{k*1024}{LD()} lds')
                return
            if i == 2 and kh == 0:
                for t in range(3):
                    g(f'buffer_store_dwordx4 {vr(208+8*t,4)}, v2, s[56:59], s{(48,49,53)[t]} offen{ST()}')
                    g(f'buffer_store_dwordx4 {vr(212+8*t,4)}, v2, s[56:59], s{(48,49,53)[t]} offen offset:1024{ST()}')
                return
            if i >= 30:
                if i == 30: wo_setup()
                before34 = {30: [0], 31: [1], 32: [2], 33: [3], 34: [4, 5], 35: [6, 7]}
                for it in before34.get(i, []): wo_piece(it)
                return
            if i < 6: return
            ph = (i - 2) & 3; st = ((i - 2) >> 2) + 3
            if i == 18:
                g('buffer_load_dword v201, v31, s[64:67], 0 offen sc1')
            if st <= 7:
                if ph == 0:
                    g(f's_add_u32 s54, s55, {st*32768}')
                    g(f's_add_u32 m0, s55, {(st&3)*32768}')
                    g('s_nop 0')
                g(f'buffer_load_dwordx4 v2, s[32:35], s54 offen offset:{ph*1024}{LD()} lds')
            elif st == 8:
                if ph == 0:
                    ok = newlab('aok')
                    g('v_cmp_ne_u32 vcc, 16, v201')
                    g('s_nop 4')
                    g(f's_cbranch_vccz {ok}')
                    spin_until(g, 201, 31, 16)
                    g.label(ok)
                    if kh == 1:
                        g('s_add_u32 s47, s51, 8192')
                        dma4(2, 24, 's44', 's47', n=2)
                    g('s_mov_b32 m0, s55')
                    g('s_nop 0')
                g(f'buffer_load_dwordx4 v28, s[28:31], 0 offen offset:{ph*1024}{LD()} lds')
            elif st == 9 and ph == 0 and kh == 0:
                g('s_add_u32 m0, s55, 32768')
                g('s_nop 0')
                for k in range(4):
                    g(f'buffer_load_dwordx4 v29, s[28:31], 0 offen offset:{k*1024}{LD()} lds')
        def body(i, cs, inloop=False):
            u = unit(i)
            sb = SB[i & 1]; sn = SB[(i + 1) & 1]
            e = [f'v_exp_f32 v{sb+r}, v{sb+r}' for r in range(16)]
            c = [f'v_cvt_pk_bf16_f32 v{P+k}, v{sb+2*k}, v{sb+2*k+1}' for k in range(8)]
            has1 = i + 1 < N; has2 = i + 2 < N
            if i < 32 and (i & 3) == 2:
                s = i >> 2
                if s == 7: vm = 0
                elif s == 0: vm = 8
                elif s == 1: vm = 4 if kh == 1 else 10
                elif s == 2: vm = 4 if kh == 1 else 10
                else: vm = 4
                if OPT.get('attst') and s in (0, 1, 2, 3, 5, 7): stamp(g, {0: 3, 1: 5, 2: 7, 3: 9, 5: 11, 7: 13}[s], q=True)
                g(f's_waitcnt vmcnt({vm}) lgkmcnt(0)' if vm is not None else 's_waitcnt lgkmcnt(0)')
                g('s_barrier')
                if OPT.get('attst') and s in (0, 1, 2, 3, 5, 7): stamp(g, {0: 4, 1: 6, 2: 8, 3: 10, 5: 12, 7: 14}[s], q=True)
                if s == 3 and kh == 1:
                    sk = newlab('sigA')
                    g('s_cmp_lg_u32 s3, 4')
                    g(f's_cbranch_scc1 {sk}')
                    g('s_mov_b64 exec, 1')
                    g('v_mov_b32 v1, 1')
                    g('s_lshl_b32 s47, s69, 8')
                    g('v_mov_b32 v202, s47')
                    g('buffer_atomic_add v1, v202, s[64:67], 0 offen sc1')
                    g('s_mov_b64 exec, -1')
                    g.label(sk)
                if s == 6:
                    g(f'ds_read_b128 {vr(QA,4)}, v{QL} offset:8192')
                    g(f'ds_read_b128 {vr(QA+4,4)}, v{QL} offset:9216')
                if s == 7 and kh == 0:
                    rdK(32, cs, TK)
                    g('s_waitcnt lgkmcnt(0)')
                    g(mfma(TS, TK, QA, unit(32)['C']))
                    g(mfma(TS, TK+4, QA+4, TS))
                    g('s_nop 15')
                    set_standin(TS, QA, MNA)
            elif i == 31 and kh == 1:
                g('s_waitcnt lgkmcnt(0)')
                g(mfma(TS, KF, QA, unit(32)['C']))
                g(mfma(TS, KF+4, QA+4, TS))
                g('s_nop 15')
                set_standin(TS, QA, MNA)
                g('s_lshl_b32 s47, s41, 2')
                g('s_add_u32 s47, s47, s42')
                g('s_cmp_lt_u32 s47, 5')
                g(f's_cbranch_scc0 L{tag}_valid')
                g(f'v_mov_b32 v{MNA}, {POSBIG:#x}')
                g.label(f'L{tag}_valid')
            elif i == 34:
                g('s_waitcnt lgkmcnt(0)')
                g('s_barrier')
                if kh == 1:
                    finish('FB', 1, OB, MNB, QB, TS)
            else:
                g('s_waitcnt lgkmcnt(0)')
            if OPT.get('prio', 'lag') == 'lag':
                g(f's_setprio {3 - ((i - 2) & 3)}')
            g(e[0])
            if i > 0:
                up = unit(i - 1)
                g(mfma(up['O'], VF+4, P+4, up['O']))
            rdV(i, 1, cs)
            g(e[1]); g(e[2]); g(e[3])
            g(c[0])
            if i == 33 and kh == 0:
                write_partial(OB, MNB)
            if has1:
                un = unit(i + 1)
                g(mfma(sn, KF, un['Q'], un['C']))
            g(e[4]); g(e[5]); g(c[1]); g(e[6]); g(e[7]); g(c[2])
            if has1:
                g(mfma(sn, KF+4, un['Q']+4, sn))
            if has2:
                rdK(i + 2, cs)
            g(e[8]); g(c[3]); g(e[9]); g(e[10])
            dma_slot(i, inloop)
            g(e[11])
            g(mfma(u['O'], VF, P, None if u['first'] else u['O']))
            if has1:
                rdV(i + 1, 0, cs)
            for x in e[12:16]: g(x)
            g(c[4]); g(c[5]); g(c[6]); g(c[7])
        def advance():
            g('v_mov_b32 v4, v5')
            g('v_add_u32 v5, 32768, v5')
            g('v_and_b32 v5, 0x1ffff, v5')
        return body, advance, N, tag
    for kh in (0, 1):
        if kh == 1: g.label('Lattn_kh1')
        body, advance, N, tag = path(kh)
        for s_ in range(7):
            for j in range(4): body(4*s_ + j, s_)
            advance()
        for j in range(4): body(28 + j, 7)
        if kh == 0: stamp(g, 8)
        for i in range(32, N): body(i, 7)
        g('s_waitcnt lgkmcnt(0)')
        g('s_nop 1')
        g(mfma(OA, VF+4, P+4, OA))
        g('s_nop 15')
        if kh == 1:
            write_partial(OA, MNA)
            g('s_waitcnt vmcnt(3) lgkmcnt(0)')
            g('s_barrier')
            stamp(g, 9)
            proj_group_B(g)
        else:
            g('s_barrier')
            finish('FA', 0, OA, MNA, QA, MASK)
            stamp(g, 9)
            proj_group_A(g)
    proj_common(g)

PJ_EX = 131072
def proj_setup(g, br):
    g(f's_mov_b32 s40, {br}')
    g('s_and_b32 s41, s2, 7')
    g('s_lshl_b32 s41, s41, 2')
    g('s_bfe_u32 s42, s2, 0x20003')
    g('s_add_u32 s41, s41, s42')
    g('s_lshr_b32 s42, s2, 5')
    g('s_and_b32 s43, s3, 1')
    g('s_bfe_u32 s44, s3, 0x10001')
    srd(g, 24, 16, 17, 2048 * 1792)
    g('s_lshl_b32 s45, s41, 1')
    g('s_add_u32 s45, s45, s43')
    g(f's_add_u32 s45, s45, {br*64}')
    g('s_lshl_b32 s45, s45, 15')
    g('s_lshl_b32 s46, s44, 14')
    g('s_add_u32 s45, s45, s46')
    g('v_bfe_u32 v4, v0, 2, 2')
    g('v_and_b32 v5, 3, v0')
    g('v_bfe_u32 v7, v0, 4, 1')
    g('v_lshrrev_b32 v6, 5, v0')
    g('v_lshlrev_b32 v7, 5, v7')
    g('v_lshl_add_u32 v7, v5, 3, v7')
    g('v_lshrrev_b32 v11, 4, v7')
    g('v_and_b32 v8, 2, v4')
    g('v_lshlrev_b32 v8, 1, v8')
    g('v_xor_b32 v11, v11, v8')
    g('v_and_b32 v7, 15, v7')
    g('v_lshl_add_u32 v7, v11, 4, v7')
    g('v_lshl_add_u32 v4, v6, 2, v4')
    g('v_lshl_add_u32 v9, v4, 7, v7')
    g('s_mul_i32 s46, s44, 28672')
    if br: g('s_add_u32 s46, s46, 65536')
    g('v_add_u32 v9, s46, v9')
    g('v_xor_b32 v10, 64, v9')
    g('s_lshl_b32 s46, s43, 1')
    g('s_add_u32 s46, s46, s44')
    g(f's_add_u32 s46, s46, {br*4}')
    g('s_lshl_b32 s46, s46, 12')
    g(f's_add_u32 s46, s46, {PJ_EX}')
    g('v_add_u32 v12, s46, v2')
    g('v_xor_b32 v13, 4096, v12')
    g('s_lshr_b32 s46, s41, 1')
    g('s_lshl_b32 s46, s46, 8')
    g(f's_add_u32 s46, s46, {CNT_OB if br else CNT_OA}')
    g('v_mov_b32 v30, s46')
def o_loads(g):
    OF = 64
    for n in range(16):
        if n % 4 == 0 and n > 0: g('s_add_u32 s45, s45, 4096')
        g(f'buffer_load_dwordx4 {vr(OF+4*n,4)}, v2, s[36:39], s45 offen offset:{(n%4)*1024}{LD()}')
def signal_o(g, cnt, wave):
    sk = newlab('sigO')
    g(f's_cmp_lg_u32 s3, {wave}')
    g(f's_cbranch_scc1 {sk}')
    g('s_mov_b64 exec, 1')
    g('v_mov_b32 v1, 1')
    g('s_lshl_b32 s47, s41, 8')
    g(f's_add_u32 s47, s47, {cnt}')
    g('v_mov_b32 v31, s47')
    g('buffer_atomic_add v1, v31, s[64:67], 0 offen sc1')
    g('s_mov_b64 exec, -1')
    g.label(sk)
def proj_group_B(g):
    signal_o(g, CNT_OB, 4)
    g('s_cmp_ge_u32 s2, 224')
    g('s_cbranch_scc1 Lpj_idleB')
    srd(g, 56, 8, 9, 448*896)
    g('v_lshrrev_b32 v30, 3, v0')
    g('v_and_b32 v31, 7, v0')
    g('v_and_b32 v1, 2, v30')
    g('v_lshlrev_b32 v1, 1, v1')
    g('v_xor_b32 v31, v31, v1')
    g('s_and_b32 s50, s3, 3')
    g('s_lshl_b32 s51, s50, 3')
    g('v_add_u32 v30, s51, v30')
    g('v_mul_u32_u24 v30, 896, v30')
    g('v_lshl_add_u32 v30, v31, 4, v30')
    g('s_lshr_b32 s51, s2, 5')
    g('s_lshl_b32 s51, s51, 7')
    g('v_add_u32 v30, s51, v30')
    g('s_lshl_b32 s52, s50, 10')
    sk = newlab('woA')
    for it in range(15):
        if it == 14:
            g('s_cmp_lg_u32 s50, 0')
            g(f's_cbranch_scc1 {sk}')
        g(f's_add_u32 m0, s52, {it*4096}')
        if it == 14:
            g(f'v_add_u32 v31, {it*32*896}, v30')
            g('buffer_load_dwordx4 v31, s[56:59], 0 offen lds')
        else:
            g(f's_mov_b32 s51, {it*32*896}')
            g('buffer_load_dwordx4 v30, s[56:59], s51 offen lds')
    g.label(sk)
    proj_setup(g, 1)
    g('s_waitcnt vmcnt(0)')
    g('s_barrier')
    spin_until(g, 1, 30, 16)
    stamp(g, 10)
    o_loads(g)
    g('s_branch Lproj_common')
    g.label('Lpj_idleB')
    g('s_barrier')
    g('s_branch Lend')
def proj_group_A(g):
    g('s_waitcnt vmcnt(0)')
    g('s_mov_b64 exec, 1')
    g('v_mov_b32 v1, 1')
    g('s_lshl_b32 s47, s41, 8')
    g(f's_add_u32 s47, s47, {CNT_OA}')
    g('v_mov_b32 v31, s47')
    g('buffer_atomic_add v1, v31, s[64:67], 0 offen sc1')
    g('s_mov_b64 exec, -1')
    g('s_cmp_ge_u32 s2, 224')
    sk = newlab('idleA')
    g(f's_cbranch_scc1 {sk}')
    proj_setup(g, 0)
    g('s_barrier')
    spin_until(g, 1, 30, 64)
    stamp(g, 10)
    o_loads(g)
    g('s_branch Lproj_common')
    g.label(sk)
    g('s_barrier')
    g('s_branch Lend')
def proj_common(g):
    g.label('Lproj_common')
    OF = 64; ACC = 16; WF = 48
    def rd(n, buf):
        h, i = divmod(n, 2)
        for ct in range(2):
            for jj in range(2):
                off = (28*h + 16*i + 8*jj) * 128
                g(f'ds_read_b64_tr_b16 {vr(WF+8*buf+4*ct+2*jj,2)}, v{9+ct} offset:{off}')
    rd(0, 0)
    for n in range(16):
        if n + 1 < 16: rd(n + 1, (n + 1) & 1)
        g(f's_waitcnt vmcnt({15-n}) lgkmcnt({4 if n + 1 < 16 else 0})')
        for ct in range(2):
            g(mfma(ACC + 16*ct, WF + 8*(n & 1) + 4*ct, OF + 4*n, None if n == 0 else ACC + 16*ct))
    g('s_nop 15')
    stamp(g, 12)
    g('s_cmp_eq_u32 s44, 0')
    g('s_cbranch_scc0 Lpj_k1')
    for i in range(4): g(f'ds_write_b128 v12, {vr(ACC+16+4*i,4)} offset:{i*1024}')
    g('s_branch Lpj_k2')
    g.label('Lpj_k1')
    for i in range(4): g(f'ds_write_b128 v12, {vr(ACC+4*i,4)} offset:{i*1024}')
    for r in range(16): g(f'v_mov_b32 v{ACC+r}, v{ACC+16+r}')
    g.label('Lpj_k2')
    g('s_waitcnt lgkmcnt(0)')
    g('s_barrier')
    for i in range(4): g(f'ds_read_b128 {vr(64+4*i,4)}, v13 offset:{i*1024}')
    g('v_and_b32 v4, 31, v0')
    g('s_lshl_b32 s46, s41, 6')
    g('s_lshl_b32 s47, s43, 5')
    g('s_add_u32 s46, s46, s47')
    g('v_add_u32 v4, s46, v4')
    g('v_mul_u32_u24 v4, 1792, v4')
    g('v_lshl_add_u32 v4, v6, 4, v4')
    g('s_mul_i32 s46, s40, 896')
    g('s_lshl_b32 s47, s42, 7')
    g('s_add_u32 s46, s46, s47')
    g('s_lshl_b32 s47, s44, 6')
    g('s_add_u32 s46, s46, s47')
    g('s_waitcnt lgkmcnt(0)')
    for r in range(16): g(f'v_add_f32 v{ACC+r}, v{ACC+r}, v{64+r}')
    P = 48
    for i in range(8): g(f'v_cvt_pk_bf16_f32 v{P+i}, v{ACC+2*i}, v{ACC+2*i+1}')
    g('s_nop 1')
    for k in range(2):
        a = P + 4*k
        g(f'v_permlane32_swap_b32 v{a}, v{a+2}')
        g(f'v_permlane32_swap_b32 v{a+1}, v{a+3}')
    g('s_nop 1')
    for k in range(2):
        g(f'buffer_store_dwordx4 {vr(P+4*k,4)}, v4, s[24:27], s46 offen offset:{32*k}' + ((' ' + OPT['ost']) if OPT.get('ost') else ''))

HEADER = '''; Kernarg layout for this problem (72 bytes, ptrs only, base s[0:1]):
'''
def main(out):
    g = Gen()
    g.raw(f'.globl {NAME}')
    g.raw('.p2align 8')
    g.raw(f'.type {NAME},@function')
    g.label(NAME)
    g('s_cmp_ge_u32 s2, 256')
    g('s_cbranch_scc1 Lexit')
    if OPT.get('tl'):
        for r in range(70, 102): g(f's_mov_b32 s{r}, 0')
    stamp(g, 0); stamp(g, 15, True)
    g('s_load_dwordx16 s[4:19], s[0:1], 0')
    g('s_load_dwordx2 s[20:21], s[0:1], 64')
    g('v_lshrrev_b32 v1, 6, v0')
    g('v_and_b32 v0, 63, v0')
    g('s_nop 0')
    g('v_readfirstlane_b32 s3, v1')
    prologue(g)
    qkv_compute(g)
    qkv_loader(g)
    phase_attn(g)
    g.label('Lend')
    if OPT['stamps'] or OPT.get('tl'): g('s_waitcnt vmcnt(0)')
    stamp(g, 13)
    if OPT.get('tl'):
        sk = newlab('tl')
        g('s_cmp_lg_u32 s3, 0')
        g(f's_cbranch_scc1 {sk}')
        g('s_waitcnt lgkmcnt(0)')
        srd(g, 56, 18, 19, 256)
        g('s_mov_b64 exec, 1')
        g('s_not_b32 s68, s70')
        g('v_mov_b32 v1, s68')
        g('v_mov_b32 v3, 0')
        g('buffer_atomic_umax v1, v3, s[56:59], 0 offen offset:4')
        for k, i in enumerate((0, 2, 3, 4, 6, 8, 9, 10, 11, 12, 13)):
            g(f'v_mov_b32 v{4+k}, s{70+2*i}')
            g(f'buffer_atomic_umax v{4+k}, v3, s[56:59], 0 offen offset:{8+4*k}')
        g('s_waitcnt vmcnt(0)')
        g.label(sk)
    if OPT['stamps']: g('s_memrealtime s[72:73]')
    stamp_dump(g)
    g.label('Lexit')
    g('s_endpgm')
    txt = HEADER + f'; @launch grid=(256,1,1) block=(512,1,1) lds={LDS_BYTES}\n'
    txt += '.amdgcn_target "amdgcn-amd-amdhsa--gfx950"\n.text\n' + g.text()
    txt += f'''.section .rodata,"a"
.p2align 6
.amdhsa_kernel {NAME}
  .amdhsa_next_free_vgpr 232
  .amdhsa_next_free_sgpr 102
  .amdhsa_accum_offset 232
  .amdhsa_group_segment_fixed_size 0
  .amdhsa_kernarg_size 72
  .amdhsa_user_sgpr_count 2
  .amdhsa_user_sgpr_kernarg_segment_ptr 1
  .amdhsa_system_sgpr_workgroup_id_x 1
.end_amdhsa_kernel
'''
    open(out, 'w').write(txt)

if __name__ == '__main__':
    out = sys.argv[1] if len(sys.argv) > 1 else 'concat_heads__sliding_block__softmax_full_mha__prompt.s'
    for a in sys.argv[2:]:
        if '=' in a:
            k, v = a.split('=', 1)
            OPT[k] = v if k in ('st', 'ld', 'prio', 'ost') else (int(v) if v.isdigit() else v)
        else:
            OPT[a] = True
    main(out)
```

```python
import sys, math, struct

def f32bits(x): return struct.unpack('<I', struct.pack('<f', x))[0]

class Gen:
    def __init__(self): self.lines = []
    def __call__(self, s):
        for l in s.split('\n'):
            l = l.strip()
            if l: self.lines.append('  ' + l)
    def label(self, s): self.lines.append(s + ':')
    def raw(self, s): self.lines.append(s)
    def text(self): return '\n'.join(self.lines) + '\n'

def vr(base, n): return f'v[{base}:{base+n-1}]'
def mfma(d, a, b, c):
    cs = '0' if c is None else vr(c, 16)
    return f'v_mfma_f32_32x32x16_bf16 {vr(d,16)}, {vr(a,4)}, {vr(b,4)}, {cs}'

OPT = dict(stamps=False, st='sc1', ld='', spin=200000)
NAME = 'concat_heads__sliding_block__softmax_full_mha__prompt_kernel'
STAMP_BASE = 0x2000000
def stamp(g, i, real=False, q=False):
    if OPT.get('tl'):
        if i in (0, 2, 3, 4, 6, 8, 9, 10, 11, 12, 13): g(f's_memrealtime s[{70+2*i}:{71+2*i}]')
        return
    if not OPT['stamps']: return
    import inspect
    if OPT.get('qkvst') and 5 <= i <= 13:
        caller = inspect.stack()[1].function
        if caller != 'qkv_compute': return
    if (OPT.get('attst') or OPT.get('probe')) and 2 <= i <= 12 and not q: return
    op = 's_memrealtime' if real else 's_memtime'
    g(f'{op} s[{70+2*i}:{71+2*i}]')
def stamp_dump(g):
    if not OPT['stamps']: return
    g('s_waitcnt lgkmcnt(0) vmcnt(0)')
    g(f's_add_u32 s64, s20, {STAMP_BASE}')
    g(f's_addc_u32 s65, s21, 0')
    g('s_mov_b32 s66, 0x100000')
    g('s_mov_b32 s67, 0x20000')
    g('s_mov_b64 exec, -1')
    g('v_mov_b32 v1, 0')
    for i in range(16):
        g(f'v_writelane_b32 v1, s{70+2*i}, {i}')
    g('s_lshl_b32 s68, s2, 3')
    g('s_add_u32 s68, s68, s3')
    g('s_lshl_b32 s68, s68, 6')
    g('v_lshlrev_b32 v3, 2, v0')
    g('v_cmp_gt_u32 vcc, 16, v0')
    g('s_and_saveexec_b64 s[62:63], vcc')
    g('buffer_store_dword v1, v3, s[64:67], s68 offen')
    g('s_waitcnt vmcnt(0)')

WS_Q = 0
WS_KV = 0x400000
WS_O = 0xC00000
WS_CNT = 0x1000000
CNT_A, CNT_B, CNT_OA, CNT_OB = 0, 16 * 256, 32 * 256, 48 * 256
QSCALE = (28 ** -0.5) * math.log2(math.e)
NEGBIG = 0xf149f2ca
POSBIG = 0x7149f2ca
LDS_BYTES = 163840

def srd(g, dst, lo, hi, nbytes, add=0):
    if add:
        g(f's_add_u32 s{dst}, s{lo}, {add}')
        g(f's_addc_u32 s{dst+1}, s{hi}, 0')
    else:
        g(f's_mov_b32 s{dst}, s{lo}')
        g(f's_mov_b32 s{dst+1}, s{hi}')
    g(f's_mov_b32 s{dst+2}, {nbytes}')
    g(f's_mov_b32 s{dst+3}, 0x20000')
def ST(): return (' ' + OPT['st']) if OPT['st'] else ''
def INL(): return (' ' + OPT['inl']) if OPT.get('inl') else ''
def LD(): return (' ' + OPT['ld']) if OPT['ld'] else ''
lab = [0]
def newlab(p):
    lab[0] += 1
    return f'L{p}_{lab[0]}'

def spin_until(g, vdst, voff, target, tmp=205):
    l0 = newlab('poll'); l1 = newlab('pdone')
    g(f's_mov_b32 s68, {OPT["spin"]}')
    g(f'buffer_load_dword v{vdst}, v{voff}, s[64:67], 0 offen sc1')
    g.label(l0)
    g(f'buffer_load_dword v{tmp}, v{voff}, s[64:67], 0 offen sc1')
    g('s_waitcnt vmcnt(1)')
    g(f'v_cmp_ne_u32 vcc, {target}, v{vdst}')
    g('s_nop 4')
    g(f's_cbranch_vccz {l1}')
    g(f'buffer_load_dword v{vdst}, v{voff}, s[64:67], 0 offen sc1')
    g('s_waitcnt vmcnt(1)')
    g(f'v_cmp_ne_u32 vcc, {target}, v{tmp}')
    g('s_nop 4')
    g(f's_cbranch_vccz {l1}')
    g('s_sub_u32 s68, s68, 1')
    g('s_cmp_lg_u32 s68, 0')
    g(f's_cbranch_scc1 {l0}')
    g.label(l1)
    g('s_waitcnt vmcnt(0)')

WROW = 176
WSTG = 64 * WROW
NCH = 14
def prologue(g):
    g('s_and_b32 s40, s2, 7')
    g('s_lshr_b32 s41, s2, 3')
    g('s_lshr_b32 s22, s40, 1')
    g('s_lshl_b32 s22, s22, 2')
    g('s_and_b32 s42, s41, 3')
    g('s_add_u32 s22, s22, s42')
    g('s_and_b32 s23, s40, 1')
    g('s_lshl_b32 s23, s23, 3')
    g('s_lshr_b32 s42, s41, 2')
    g('s_add_u32 s23, s23, s42')
    g('s_add_u32 s69, s23, 1')
    g('s_and_b32 s69, s69, 7')
    g('s_and_b32 s42, s23, 8')
    g('s_or_b32 s69, s69, s42')
    g('s_cmp_ge_u32 s3, 4')
    g('s_cbranch_scc1 Lloader')

def kvb_srd(g):
    g('s_and_b32 s40, s2, 7')
    g('s_bfe_u32 s41, s2, 0x10003')
    g('s_lshl_b32 s40, s40, 1')
    g('s_add_u32 s40, s40, s41')
    g('s_lshl_b32 s47, s40, 18')
    g(f's_add_u32 s47, s47, {WS_KV + 0x400000}')
    g('s_add_u32 s32, s20, s47')
    g('s_addc_u32 s33, s21, 0')
    g('s_mov_b32 s34, 0x40000')
    g('s_mov_b32 s35, 0x20000')
    g('s_lshl_b32 s55, s3, 12')
def stage_tile(g, st):
    g(f's_add_u32 s54, s55, {st*32768}')
    g(f's_add_u32 m0, s55, {(st&3)*32768}')
    g('s_nop 0')
    for i in range(4):
        g(f'buffer_load_dwordx4 v2, s[32:35], s54 offen offset:{i*1024}{LD()} lds')
def init_dma_compute(g):
    kvb_srd(g)
    stage_tile(g, 0)
    stage_tile(g, 1)

def pf_lines(g, br, part, vt, vd):
    if part == 'x':
        lo, hi = (10, 11) if br else (4, 5)
        srd(g, 24, lo, hi, 1835008)
        g('s_bfe_u32 s46, s2, 0x20001')
        g('s_mul_i32 s46, s46, 458752')
        g('s_lshr_b32 s47, s2, 3')
        g('s_mul_i32 s47, s47, 14336')
        g('s_add_u32 s46, s46, s47')
        g(f'v_lshlrev_b32 v{vt}, 7, v0')
        g(f'v_add_u32 v{vt}, s46, v{vt}')
        g(f'buffer_load_dword v{vd}, v{vt}, s[24:27], 0 offen')
        g(f'v_add_u32 v{vt}, 8192, v{vt}')
        g('s_mov_b64 exec, 0x0000ffffffffffff') if False else None
        g('v_cmp_gt_u32 vcc, 48, v0')
        g('s_and_saveexec_b64 s[44:45], vcc')
        g(f'buffer_load_dword v{vd+1}, v{vt}, s[24:27], 0 offen')
        g('s_mov_b64 exec, s[44:45]')
    else:
        lo, hi = (12, 13) if br else (6, 7)
        srd(g, 24, lo, hi, 1204224)
        g('s_and_b32 s46, s2, 1')
        g('s_mul_i32 s46, s46, 1280')
        g('s_lshr_b32 s47, s2, 3')
        g('s_mul_i32 s47, s47, 37632')
        g('s_add_u32 s46, s46, s47')
        for k in range(3):
            g(f'v_add_u32 v{vt}, {64*k}, v0')
            g(f'v_mul_u32_u24 v{vt+1}, 5958, v{vt}')
            g(f'v_lshrrev_b32 v{vt+1}, 16, v{vt+1}')
            g(f'v_mul_u32_u24 v{vt+2}, 11, v{vt+1}')
            g(f'v_sub_u32 v{vt+2}, v{vt}, v{vt+2}')
            g(f'v_mul_u32_u24 v{vt+1}, 2688, v{vt+1}')
            g(f'v_lshl_add_u32 v{vt+1}, v{vt+2}, 7, v{vt+1}')
            g(f'v_add_u32 v{vt+1}, s46, v{vt+1}')
            if k == 2:
                g('v_cmp_gt_u32 vcc, 26, v0')
                g('s_and_saveexec_b64 s[44:45], vcc')
            g(f'buffer_load_dword v{vd+k}, v{vt+1}, s[24:27], 0 offen')
            if k == 2: g('s_mov_b64 exec, s[44:45]')

def PREFETCH_A(g):
    l1 = newlab('pf'); l2 = newlab('pf'); ld = newlab('pf')
    g('s_cmp_ge_u32 s3, 2')
    g(f's_cbranch_scc1 {l1}')
    srd(g, 24, 4, 5, 1835008)
    g('s_mul_i32 s46, s2, 7168')
    g('s_lshl_b32 s47, s3, 12')
    g('s_add_u32 s46, s46, s47')
    g('v_add_u32 v20, s46, v2')
    for i in range(4):
        g(f'buffer_load_dwordx4 v[{144+4*i}:{147+4*i}], v20, s[24:27], 0 offen offset:{i*1024}')
    g(f's_branch {ld}')
    g.label(l1)
    g('s_cmp_eq_u32 s3, 2')
    g(f's_cbranch_scc0 {l2}')
    srd(g, 24, 6, 7, 1204224)
    g('s_mul_i32 s46, s2, 4704')
    g('v_add_u32 v20, s46, v2')
    g('v_add_u32 v21, 4096, v20')
    for i in range(5):
        g(f'buffer_load_dwordx4 v[{144+4*i}:{147+4*i}], v{20 if i < 4 else 21}, s[24:27], 0 offen offset:{(i%4)*1024}')
    g(f's_branch {ld}')
    g.label(l2)
    g('s_mul_i32 s46, s2, 1568')
    g('v_add_u32 v20, s46, v2')
    srd(g, 24, 8, 9, 448*896)
    for i in range(2):
        g(f'buffer_load_dwordx4 v[{144+4*i}:{147+4*i}], v20, s[24:27], 0 offen offset:{i*1024}')
    srd(g, 28, 14, 15, 448*896)
    for i in range(2):
        g(f'buffer_load_dwordx4 v[{152+4*i}:{155+4*i}], v20, s[28:31], 0 offen offset:{i*1024}')
    g.label(ld)

def qkv_compute(g):
    g('v_and_b32 v4, 31, v0')
    g('s_lshl_b32 s44, s3, 5')
    g('v_add_u32 v4, s44, v4')
    g('v_lshlrev_b32 v4, 7, v4')
    g('v_bfe_u32 v5, v0, 1, 3')
    g('v_lshrrev_b32 v6, 5, v0')
    for ks in range(4):
        g(f'v_add_u32 v7, {2*ks}, v6')
        g('v_xor_b32 v7, v7, v5')
        g(f'v_lshl_add_u32 v{12+ks}, v7, 4, v4')
    g('v_bfe_u32 v4, v0, 2, 2')
    g('v_and_b32 v5, 3, v0')
    g('v_bfe_u32 v7, v0, 4, 1')
    g('v_lshlrev_b32 v7, 5, v7')
    g('v_lshl_add_u32 v7, v5, 3, v7')
    g('v_lshlrev_b32 v4, 1, v4')
    g('v_add_u32 v4, v4, v6')
    g(f'v_mul_u32_u24 v4, {2*WROW}, v4')
    g('v_add_u32 v4, v4, v7')
    g('v_add_u32 v16, 65536, v4')
    g('v_lshlrev_b32 v2, 4, v0')
    g('s_waitcnt lgkmcnt(0)')
    if OPT.get('wsoff'):
        g(f's_add_u32 s20, s20, {OPT["wsoff"] << 20}')
        g('s_addc_u32 s21, s21, 0')
    stamp(g, 1)
    srd(g, 32, 20, 21, 0x1000000)
    srd(g, 64, 20, 21, 0x4000, WS_CNT)
    g('s_or_b32 s44, s2, s3')
    g('s_cmp_lg_u32 s44, 0')
    g('s_cbranch_scc1 Lnoinit')
    g('v_lshlrev_b32 v20, 8, v0')
    g('v_mov_b32 v21, 0')
    g('buffer_store_dword v21, v20, s[64:67], 0 offen sc1')
    g('s_waitcnt vmcnt(0)')
    srd(g, 36, 18, 19, 256)
    g('s_mov_b64 exec, 1')
    g('v_mov_b32 v21, 1')
    g('v_mov_b32 v20, 0')
    g('buffer_store_dword v21, v20, s[36:39], 0 offen sc1')
    g('s_mov_b64 exec, -1')
    g.label('Lnoinit')
    if OPT.get('codepf'):
        g('s_getpc_b64 s[24:25]')
        g.label('Lpc_here')
        g(f's_sub_u32 s24, s24, Lpc_here-{NAME}')
        g('s_subb_u32 s25, s25, 0')
        g(f's_mov_b32 s26, Lexit-{NAME}')
        g('s_mov_b32 s27, 0x20000')
        g('s_lshr_b32 s46, s2, 3')
        g('s_lshl_b32 s46, s46, 2')
        g('s_add_u32 s46, s46, s3')
        g('s_lshl_b32 s46, s46, 10')
        g('v_add_u32 v20, s46, v2')
        g('buffer_load_dwordx4 v[144:147], v20, s[24:27], 0 offen')
    if OPT.get('probe'):
        g('s_mul_i32 s46, s2, 7168')
        g('v_add_u32 v20, s46, v2')
        stamp(g, 5, q=True)
        srd(g, 24, 10, 11, 1835008)
        g('buffer_load_dword v160, v20, s[24:27], 0 offen'); g('s_waitcnt vmcnt(0)'); stamp(g, 6, q=True)
        srd(g, 24, 12, 13, 1204224)
        g('s_mul_i32 s46, s2, 4704'); g('v_add_u32 v21, s46, v2')
        g('buffer_load_dword v160, v21, s[24:27], 0 offen'); g('s_waitcnt vmcnt(0)'); stamp(g, 7, q=True)
        srd(g, 24, 4, 5, 1835008)
        g('buffer_load_dword v160, v20, s[24:27], 0 offen'); g('s_waitcnt vmcnt(0)'); stamp(g, 8, q=True)
        g('buffer_load_dword v160, v20, s[24:27], 0 offen offset:2048'); g('s_waitcnt vmcnt(0)'); stamp(g, 9, q=True)
        srd(g, 24, 6, 7, 1204224)
        g('buffer_load_dword v160, v21, s[24:27], 0 offen'); g('s_waitcnt vmcnt(0)'); stamp(g, 10, q=True)
        g('buffer_load_dword v160, v21, s[24:27], 0 offen offset:2048'); g('s_waitcnt vmcnt(0)'); stamp(g, 11, q=True)
    if OPT.get('pf', 1) in (2, 4):
        l1 = newlab('pfb'); ld = newlab('pfb')
        g('s_cmp_ge_u32 s3, 2')
        g(f's_cbranch_scc1 {l1}')
        srd(g, 24, 10, 11, 1835008)
        g('s_mul_i32 s46, s2, 7168')
        g('s_lshl_b32 s47, s3, 12')
        g('s_add_u32 s46, s46, s47')
        g('v_add_u32 v20, s46, v2')
        for i in range(4):
            g(f'buffer_load_dwordx4 v[{160+4*i}:{163+4*i}], v20, s[24:27], 0 offen offset:{i*1024}')
        g(f's_branch {ld}')
        g.label(l1)
        srd(g, 24, 12, 13, 1204224)
        g('s_mul_i32 s46, s2, 4704')
        g('s_and_b32 s47, s3, 1')
        g('s_mul_i32 s47, s47, 3072')
        g('s_add_u32 s46, s46, s47')
        g('v_add_u32 v20, s46, v2')
        for i in range(3):
            g(f'buffer_load_dwordx4 v[{160+4*i}:{163+4*i}], v20, s[24:27], 0 offen offset:{i*1024}')
        g.label(ld)
    if OPT.get('pf', 1) == 4:
        PREFETCH_A(g)
    if OPT.get('pfw'):
        g('s_waitcnt vmcnt(%d)' % (0 if OPT.get('pf') != 4 else 4))
        g('s_barrier')
    if OPT.get('pf', 1) == 3:
        l1 = newlab('pf3'); l2 = newlab('pf3'); ld = newlab('pf3')
        g('s_cmp_eq_u32 s3, 0')
        g(f's_cbranch_scc0 {l1}')
        pf_lines(g, 1, 'x', 20, 160)
        g(f's_branch {ld}')
        g.label(l1)
        g('s_cmp_eq_u32 s3, 1')
        g(f's_cbranch_scc0 {ld}')
        pf_lines(g, 1, 'w', 20, 160)
        g.label(ld)
    if OPT.get('tw'):
        g('s_mov_b64 exec, 1')
        g('v_mov_b32 v20, 0')
        g('v_mov_b32 v21, 0')
        for br_, c0r in ((1, 's23'), (0, 's69')):
            g(f's_mul_i32 s46, {c0r}, 3')
            for t in range(3):
                g(f's_add_u32 s47, s46, {t}')
                g('s_and_b32 s44, s47, 15')
                g('s_lshl_b32 s44, s44, 6')
                g('s_lshl_b32 s45, s22, 2')
                g('s_add_u32 s44, s44, s45')
                g('s_add_u32 s44, s44, s3')
                if br_: g('s_add_u32 s44, s44, 1024')
                g('s_cmp_lt_u32 s47, 16')
                g('s_cselect_b32 s45, 11, 12')
                g(f's_cselect_b32 s43, {WS_Q}, {WS_KV}')
                g('s_lshl_b32 s44, s44, s45')
                g('s_add_u32 s44, s44, s43')
                g('s_cmp_ge_u32 s47, 32')
                g('s_cselect_b32 s45, 2048, 0')
                g('s_add_u32 s44, s44, s45')
                g('buffer_store_dword v21, v20, s[32:35], s44 offen sc1')
        g('s_and_b32 s44, s2, 7')
        g('s_bfe_u32 s45, s2, 0x10003')
        g('s_lshl_b32 s44, s44, 1')
        g('s_add_u32 s44, s44, s45')
        g('s_lshr_b32 s45, s2, 4')
        g('s_lshl_b32 s45, s45, 2')
        g('s_add_u32 s45, s45, s3')
        g('s_lshl_b32 s45, s45, 4')
        g('s_add_u32 s45, s45, s44')
        g('s_lshl_b32 s45, s45, 11')
        g(f's_add_u32 s45, s45, {WS_O}')
        g('buffer_store_dword v21, v20, s[32:35], s45 offen sc1')
        g('s_add_u32 s45, s45, 0x200000')
        g('buffer_store_dword v21, v20, s[32:35], s45 offen sc1')
        g('s_mov_b64 exec, -1')
    srd(g, 36, 18, 19, 256)
    g('v_mov_b32 v30, 0')
    g('buffer_load_dword v31, v30, s[36:39], 0 offen sc1')
    def prefetch():
        if not OPT.get('pf', 1) or OPT.get('pf') == 4: return
        if OPT.get('pf', 1) == 3:
            l1 = newlab('pf3'); l2 = newlab('pf3'); ld = newlab('pf3')
            g('s_cmp_eq_u32 s3, 2')
            g(f's_cbranch_scc0 {l1}')
            pf_lines(g, 0, 'x', 20, 164)
            g(f's_branch {ld}')
            g.label(l1)
            g('s_cmp_eq_u32 s3, 3')
            g(f's_cbranch_scc0 {l2}')
            pf_lines(g, 0, 'w', 20, 164)
            g(f's_branch {ld}')
            g.label(l2)
            g('s_cmp_eq_u32 s3, 0')
            g('s_cselect_b32 s24, s8, s14')
            g('s_cselect_b32 s25, s9, s15')
            g(f's_mov_b32 s26, {448*896}')
            g('s_mov_b32 s27, 0x20000')
            g('s_mul_i32 s46, s2, 1568')
            g('v_add_u32 v20, s46, v2')
            for i in range(2):
                g(f'buffer_load_dwordx4 v[{168+4*i}:{171+4*i}], v20, s[24:27], 0 offen offset:{i*1024}')
            g.label(ld)
            return
        l1 = newlab('pf'); l2 = newlab('pf'); ld = newlab('pf')
        g('s_cmp_ge_u32 s3, 2')
        g(f's_cbranch_scc1 {l1}')
        srd(g, 24, 4, 5, 1835008)
        g('s_mul_i32 s46, s2, 7168')
        g('s_lshl_b32 s47, s3, 12')
        g('s_add_u32 s46, s46, s47')
        g('v_add_u32 v20, s46, v2')
        for i in range(4):
            g(f'buffer_load_dwordx4 v[{144+4*i}:{147+4*i}], v20, s[24:27], 0 offen offset:{i*1024}')
        g(f's_branch {ld}')
        g.label(l1)
        g('s_cmp_eq_u32 s3, 2')
        g(f's_cbranch_scc0 {l2}')
        srd(g, 24, 6, 7, 1204224)
        g('s_mul_i32 s46, s2, 4704')
        g('v_add_u32 v20, s46, v2')
        g('v_add_u32 v21, 4096, v20')
        for i in range(5):
            g(f'buffer_load_dwordx4 v[{144+4*i}:{147+4*i}], v{20 if i < 4 else 21}, s[24:27], 0 offen offset:{(i%4)*1024}')
        g(f's_branch {ld}')
        g.label(l2)
        g('s_mul_i32 s46, s2, 1568')
        g('v_add_u32 v20, s46, v2')
        srd(g, 24, 8, 9, 448*896)
        for i in range(2):
            g(f'buffer_load_dwordx4 v[{144+4*i}:{147+4*i}], v20, s[24:27], 0 offen offset:{i*1024}')
        srd(g, 28, 14, 15, 448*896)
        for i in range(2):
            g(f'buffer_load_dwordx4 v[{152+4*i}:{155+4*i}], v20, s[28:31], 0 offen offset:{i*1024}')
        g.label(ld)
    XF = 80; WF = 88
    ACCS = {1: 32, 0: 144}
    PS = {1: 112, 0: 208}
    g('v_and_b32 v18, 31, v0')
    g('v_cmp_eq_u32 vcc, 28, v18')
    g('v_mov_b32 v19, 0x3f803f80')
    g('s_nop 0')
    g('v_cndmask_b32_e64 v18, 0, v19, vcc')
    g('s_mov_b32 s60, 0')
    g('s_mov_b32 s61, -1')
    g('s_mov_b32 s58, 0xf0000000')
    g('s_mov_b32 s59, 0xf0000000')
    def reads(n, buf, part):
        kc, ks = divmod(n, 4)
        st = kc % 4
        if part == 0:
            g(f'ds_read_b128 {vr(XF+4*buf,4)}, v{12+ks} offset:{st*16384}')
        for jj in range(2):
            off = st * WSTG + (ks*16 + jj) * WROW + part * 56
            g(f'ds_read_b64_tr_b16 {vr(WF+12*buf+4*part+2*jj,2)}, v16 offset:{off}')
    def mfma1(br, buf, t, first, types2):
        types = types2[br]
        x = XF + 4*buf; wf = WF + 12*buf + 4*t; d = ACCS[br] + 16*t
        c = None if first else d
        g(mfma(d, wf, x, c) if types[t] == 'QK' else mfma(d, x, wf, c))
    def epilogue_list(br, types2):
        types = types2[br]
        c0 = 's52' if br else 's63'
        L = []
        A = L.append
        ACC = ACCS[br]; P = PS[br]
        A('s_lshl_b32 s54, s22, 2')
        A('s_add_u32 s54, s54, s3')
        if br: A('s_add_u32 s54, s54, 1024')
        for t in range(3):
            a = ACC + 16*t; p = P + 8*t
            so = (48, 49, 53)[t]
            A(f's_add_u32 s62, {c0}, {t}')
            A('s_and_b32 s56, s62, 15')
            A('s_lshl_b32 s56, s56, 6')
            A('s_add_u32 s56, s56, s54')
            if types[t] == 'QK':
                A('s_cmp_lt_u32 s62, 16\n' + f's_cselect_b32 s57, {f32bits(QSCALE):#x}, 1.0\n' + 's_cselect_b32 s45, 0, 0x3f80\n' +
                  's_cselect_b32 s46, 11, 12\n' + f's_cselect_b32 s47, {WS_Q}, {WS_KV}')
                A('s_lshl_b32 s56, s56, s46')
                A(f's_add_u32 s{so}, s56, s47')
                A('v_mov_b32 v19, s45')
                for r in range(16): A(f'v_mul_f32 v{a+r}, s57, v{a+r}')
                for i in range(8): A(f'v_cvt_pk_bf16_f32 v{p+i}, v{a+2*i}, v{a+2*i+1}')
                A(f'v_cndmask_b32_e64 v{p+6}, v{p+6}, v19, s[60:61]')
                A(f'v_cndmask_b32_e64 v{p+7}, v{p+7}, 0, s[60:61]')
            else:
                A('s_lshl_b32 s56, s56, 12')
                A(f's_add_u32 s{so}, s56, {WS_KV + 2048}')
                for i in range(8): A(f'v_cvt_pk_bf16_f32 v{p+i}, v{a+2*i}, v{a+2*i+1}')
                for i in range(8): A(f'v_cndmask_b32_e64 v{p+i}, v{p+i}, v18, s[58:59]')
            if br:
                A('s_nop 1\n' + f'buffer_store_dwordx4 {vr(p,4)}, v2, s[32:35], s{so} offen{ST()}')
                A(f'buffer_store_dwordx4 {vr(p+4,4)}, v2, s[32:35], s{so} offen offset:1024{ST()}')
        return L
    g('s_mul_i32 s52, s23, 3')
    g('s_mul_i32 s63, s69, 3')
    T0, T1, T2 = ('QK','QK','QK'), ('QK','QK','V'), ('V','V','V')
    variants = [{1: T0, 0: T0}, {1: T0, 0: T1}, {1: T1, 0: T2}, {1: T2, 0: T2}, {1: T2, 0: T0}]
    g('s_cmp_eq_u32 s23, 9')
    g('s_cbranch_scc1 Lqkv_v1')
    g('s_cmp_eq_u32 s23, 10')
    g('s_cbranch_scc1 Lqkv_v2')
    g('s_cmp_eq_u32 s23, 15')
    g('s_cbranch_scc1 Lqkv_v4')
    g('s_cmp_gt_u32 s23, 10')
    g('s_cbranch_scc1 Lqkv_v3')
    NS = NCH * 4
    SIG_AT = OPT.get('sig_at', 44)
    for vi, types in enumerate(variants):
        if vi: g.label(f'Lqkv_v{vi}')
        g('s_barrier')
        if vi == 0: stamp(g, 2)
        for part in range(3): reads(0, 0, part)
        prefetch()
        epi = []
        EP0, EPN = OPT.get('ep0', 28), OPT.get('epn', 3)
        def fill(k):
            for _ in range(k):
                if epi: g(epi.pop(0))
        for n in range(NS):
            br = 1 if n < 28 else 0
            boundary = (n + 1) % 4 == 0 and n + 1 < NS
            nxt = n + 1 < NS
            buf = n & 1
            first = n % 28 == 0
            if n == EP0:
                epi = ['s_nop 7'] + epilogue_list(1, types)
                per = -(-len(epi) // (EPN * 3))
            inter = EP0 <= n < EP0 + EPN
            if boundary:
                g('s_waitcnt vmcnt(0) lgkmcnt(0)' if n + 1 in (SIG_AT, 24) else 's_waitcnt lgkmcnt(0)')
                g('s_barrier')
                if OPT.get('qkvst') and vi == 0:
                    c1 = (n + 1) // 4
                    m = {2: 5, 4: 6, 6: 7, 8: 8, 10: 9, 11: 10, 12: 13}
                    if c1 in m: stamp(g, m[c1])
                if n + 1 == SIG_AT:
                    sk = newlab('sigB'); ok = newlab('inited'); lp = newlab('initspin')
                    g('s_cmp_lg_u32 s3, 0')
                    g(f's_cbranch_scc1 {sk}')
                    g('v_readfirstlane_b32 s47, v31')
                    g('s_cmp_lg_u32 s47, 0')
                    g(f's_cbranch_scc1 {ok}')
                    g(f's_mov_b32 s68, {OPT["spin"]}')
                    g.label(lp)
                    g('buffer_load_dword v31, v30, s[36:39], 0 offen sc1')
                    g('s_waitcnt vmcnt(0)')
                    g('v_readfirstlane_b32 s47, v31')
                    g('s_cmp_lg_u32 s47, 0')
                    g(f's_cbranch_scc1 {ok}')
                    g('s_sub_u32 s68, s68, 1')
                    g('s_cmp_lg_u32 s68, 0')
                    g(f's_cbranch_scc1 {lp}')
                    g.label(ok)
                    g('s_mov_b64 exec, 1')
                    g('v_mov_b32 v1, 1')
                    g('s_lshl_b32 s47, s23, 8')
                    g(f's_add_u32 s47, s47, {CNT_B}')
                    g('v_mov_b32 v29, s47')
                    g('buffer_atomic_add v1, v29, s[64:67], 0 offen sc1')
                    g('s_mov_b64 exec, -1')
                    g.label(sk)
            else:
                g('s_waitcnt lgkmcnt(4)')
            mfma1(br, buf, 0, first, types)
            if nxt: reads(n + 1, buf ^ 1, 0)
            if inter: fill(per)
            if not boundary: g(f's_waitcnt lgkmcnt({5 if nxt else 2})')
            mfma1(br, buf, 1, first, types)
            if nxt: reads(n + 1, buf ^ 1, 1)
            if inter: fill(per)
            if not boundary: g(f's_waitcnt lgkmcnt({5 if nxt else 0})')
            mfma1(br, buf, 2, first, types)
            if nxt: reads(n + 1, buf ^ 1, 2)
            if inter: fill(per)
            if n == 27 and vi == 0: stamp(g, 3)
            if OPT.get('sbar', 0) and n == EP0 + EPN - 1:
                g('s_barrier')
        assert not epi
        if vi == 0: stamp(g, 14)
        g('s_barrier')
        if vi == 0: stamp(g, 4)
        init_dma_compute(g)
        for x in epilogue_list(0, types): g(x)
        if vi < 4: g('s_branch Lqkv_fin')
    g.label('Lqkv_fin')
    g('s_branch Lattn_setup')

def qkv_loader(g):
    g.label('Lloader')
    g('s_sub_u32 s43, s3, 4')
    g('s_lshl_b32 s44, s22, 7')
    g('s_lshl_b32 s45, s43, 5')
    g('s_add_u32 s44, s44, s45')
    g('v_lshrrev_b32 v10, 3, v0')
    g('v_add_u32 v10, s44, v10')
    g('v_mul_u32_u24 v10, 896, v10')
    g('v_lshrrev_b32 v11, 4, v0')
    g('v_and_b32 v12, 7, v0')
    g('v_xor_b32 v12, v12, v11')
    g('v_lshl_add_u32 v2, v12, 4, v10')
    g('v_xor_b32 v12, 4, v12')
    g('v_lshl_add_u32 v3, v12, 4, v10')
    g('v_add_u32 v3, 7168, v3')
    g('v_add_u32 v4, 14336, v2')
    g('v_add_u32 v5, 14336, v3')
    g('s_lshl_b32 s46, s43, 12')
    g('s_lshl_b32 s47, s43, 10')
    g('s_add_u32 s47, s47, 65536')
    g('s_lshl_b32 s44, s43, 6')
    g('s_mul_i32 s50, s23, 168')
    g('s_mul_i32 s51, s69, 168')
    def wcalc(n):
        g('v_add_u32 v10, s44, v0')
        if n: g(f'v_add_u32 v10, {256*n}, v10')
        g('v_mul_u32_u24 v11, 5958, v10')
        g('v_lshrrev_b32 v11, 16, v11')
        g('v_mul_u32_u24 v12, 11, v11')
        g('v_sub_u32 v12, v10, v12')
        g('v_and_b32 v13, 48, v11')
        g('v_and_b32 v14, 3, v11')
        g('v_lshl_add_u32 v13, v14, 2, v13')
        g('v_bfe_u32 v14, v11, 2, 2')
        g('v_add_u32 v13, v13, v14')
        g('v_mul_u32_u24 v13, 2688, v13')
        g(f'v_lshl_add_u32 v{6+n}, v12, 4, v13')
    wcalc(0)
    g('s_waitcnt lgkmcnt(0)')
    if OPT.get('wsoff'):
        g(f's_add_u32 s20, s20, {OPT["wsoff"] << 20}')
        g('s_addc_u32 s21, s21, 0')
    srd(g, 24, 10, 11, 1835008)
    srd(g, 28, 12, 13, 1204224)
    def issueX(c):
        kc = c % 7; st = c % 4
        sx = 24 if c < 7 else 32
        g(f's_mov_b32 s48, {kc*128}')
        for e in range(4):
            g(f's_add_u32 m0, s46, {st*16384 + e*1024}')
            g('s_nop 0')
            g(f'buffer_load_dwordx4 v{2+e}, s[{sx}:{sx+3}], s48 offen{INL()} lds')
    def issueW(c, ns=(0, 1, 2)):
        kc = c % 7; st = c % 4
        sw = 28 if c < 7 else 36
        g(f's_add_u32 s49, {"s50" if c < 7 else "s51"}, {kc*64*2688}')
        for n in ns:
            if n == 2:
                sk = newlab('qs')
                g('s_cmp_eq_u32 s43, 3')
                g(f's_cbranch_scc1 {sk}')
            g(f's_add_u32 m0, s47, {st*WSTG + n*4096}')
            g('s_nop 0')
            g(f'buffer_load_dwordx4 v{6+n}, s[{sw}:{sw+3}], s49 offen{INL()} lds')
            if n == 2: g.label(sk)
    def issue(c):
        issueX(c); issueW(c)
    if OPT.get('pfw') == 1: g('s_barrier')
    issueX(0)
    issueW(0, (0,))
    wcalc(1); issueW(0, (1,))
    wcalc(2); issueW(0, (2,))
    srd(g, 32, 4, 5, 1835008)
    srd(g, 36, 6, 7, 1204224)
    srd(g, 64, 20, 21, 0x4000, WS_CNT)
    g('s_and_b32 s40, s2, 7')
    g('s_bfe_u32 s41, s2, 0x10003')
    g('s_lshl_b32 s40, s40, 1')
    g('s_add_u32 s40, s40, s41')
    g('v_min_u32 v30, 2, v0')
    g('v_lshlrev_b32 v30, 4, v30')
    g('v_add_u32 v30, s40, v30')
    g('v_mul_u32_u24 v30, 43, v30')
    g('v_lshrrev_b32 v30, 7, v30')
    g('v_lshlrev_b32 v31, 8, v30')
    g(f'v_add_u32 v203, {CNT_B}, v31')
    if OPT.get('pfw') == 2: g('s_barrier')
    for c in range(1, 3): issue(c)
    issued = 2
    HOLD = OPT.get('hold', 9) if OPT.get('sbar', 0) else 99
    for c in range(NCH):
        rem = issued - c
        g(f's_waitcnt vmcnt({1 if c == 13 else 6*rem})')
        g('s_barrier')
        if c + 3 < NCH and not (HOLD <= c + 3 <= 10):
            issue(c + 3); issued = c + 3
        if OPT.get('sbar', 0) and c == 7:
            g('s_barrier')
            for cc in range(HOLD, 11):
                issue(cc); issued = cc
        if c == 10: attn_setup(g)
        if c == 11: set_mask(g, 32, 'first')
        if c == 12:
            g('buffer_load_dword v201, v203, s[64:67], 0 offen sc1')
    g('s_waitcnt vmcnt(0)')
    g('v_cmp_ne_u32 vcc, 16, v201')
    g('s_nop 4')
    g('s_cbranch_vccz Lh1_polled')
    spin_until(g, 201, 203, 16)
    g.label('Lh1_polled')
    g('s_barrier')
    stamp(g, 4)
    g('s_add_u32 s47, s44, 0x200000')
    g('s_mov_b32 m0, s51')
    g('s_nop 0')
    for i in range(2):
        g(f'buffer_load_dwordx4 v2, s[24:27], s47 offen offset:{i*1024}{LD()} lds')
    stage_tile(g, 0)
    stage_tile(g, 1)
    stamp(g, 5)
    g('s_waitcnt vmcnt(4)')
    g('s_barrier')
    g('s_branch Lattn_go')

K2_SCR = 131072
QL = 200
def set_mask(g, dst, kind):
    for r in range(16):
        br_ = (r & 3) + 8 * (r >> 2)
        op = 'v_cmp_le_i32' if kind == 'diag' else 'v_cmp_gt_i32'
        g(f'{op} vcc, {br_}, v24')
        g('s_nop 1')
        g(f'v_cndmask_b32_e64 v{dst+r}, v25, 0, vcc')
def attn_setup(g):
    kvb_srd(g)
    g('s_lshr_b32 s41, s2, 4')
    g('s_and_b32 s42, s3, 3')
    g('s_lshr_b32 s43, s3, 2')
    g('v_lshlrev_b32 v2, 4, v0')
    g('s_lshl_b32 s44, s40, 6')
    g('s_lshl_b32 s45, s41, 2')
    g('s_add_u32 s45, s45, s42')
    g('s_add_u32 s44, s44, s45')
    g('s_lshl_b32 s44, s44, 11')
    srd(g, 24, 20, 21, 0x400000)
    g('s_sub_u32 s28, s32, 0x400000')
    g('s_subb_u32 s29, s33, 0')
    g('s_mov_b32 s30, 0x40000')
    g('s_mov_b32 s31, 0x20000')
    srd(g, 36, 20, 21, 0x400000, WS_O)
    g('v_min_u32 v30, 2, v0')
    g('v_lshlrev_b32 v30, 4, v30')
    g('v_add_u32 v30, s40, v30')
    g('v_mul_u32_u24 v30, 43, v30')
    g('v_lshrrev_b32 v30, 7, v30')
    g('v_lshlrev_b32 v31, 8, v30')
    g(f'v_add_u32 v203, {CNT_B}, v31')
    g('s_lshl_b32 s47, s41, 2')
    g('s_add_u32 s47, s47, s3')
    g('s_sub_u32 s47, s47, 8')
    g('s_lshl_b32 s50, s47, 12')
    g('s_cmp_lt_i32 s47, 0')
    g('s_cselect_b32 s50, 0x40000000, s50')
    g('v_add_u32 v28, s50, v2')
    g('s_add_u32 s47, s47, 8')
    g('s_lshl_b32 s50, s47, 12')
    g('v_add_u32 v29, s50, v2')
    g('s_lshl_b32 s47, s42, 12')
    g('v_add_u32 v3, s47, v2')
    g('s_lshl_b32 s47, s43, 14')
    g('v_add_u32 v4, s47, v2')
    g('v_add_u32 v5, 32768, v4')
    g(f'v_add_u32 v6, {K2_SCR}, v3')
    g('s_lshl_b32 s47, s42, 8')
    g(f's_add_u32 s47, s47, {K2_SCR+16384}')
    g('v_lshlrev_b32 v7, 2, v0')
    g('v_add_u32 v7, s47, v7')
    g('s_lshl_b32 s47, s42, 11')
    g(f's_add_u32 s51, s47, {K2_SCR}')
    g(f'v_add_u32 v{QL}, s51, v2')
    g('v_and_b32 v24, 31, v0')
    g('v_lshrrev_b32 v25, 5, v0')
    g('v_lshlrev_b32 v25, 2, v25')
    g('v_sub_u32 v24, v24, v25')
    g(f'v_mov_b32 v25, {NEGBIG:#x}')
    g('s_mov_b32 s60, 0')
    g('s_mov_b32 s61, -1')
    srd(g, 56, 20, 21, 0x1000000)

def phase_attn(g):
    g.label('Lattn_setup')
    QA = 8; QB = 16; MASK = 32; S0 = 48; S1 = 64; P = 80; OA = 88; OB = 104; KF = 120; VF = 128; T = 136
    TK = 144; TS = 152
    MNA = 26; MNB = 27
    SB = [S0, S1]
    attn_setup(g)
    set_mask(g, MASK, 'diag')
    stamp(g, 5)
    g('s_waitcnt vmcnt(4)')
    g('s_barrier')
    g.label('Lattn_go')
    g('s_cmp_eq_u32 s43, 99') if False else None
    def dma4(vreg, s, s_goff, s_m0, n=4, first=0):
        g(f's_mov_b32 m0, {s_m0}')
        g('s_nop 0')
        for i in range(first, first + n):
            g(f'buffer_load_dwordx4 v{vreg}, s[{s}:{s+3}], {s_goff} offen offset:{i*1024}{LD()} lds')
    stamp(g, 6)
    g(f'ds_read_b128 {vr(QB,4)}, v{QL}')
    g(f'ds_read_b128 {vr(QB+4,4)}, v{QL} offset:1024')

    def rowmax(sbuf, t):
        g(f'v_max3_f32 v{t}, v{sbuf}, v{sbuf+1}, v{sbuf+2}')
        for r in range(3, 15, 2):
            g(f'v_max3_f32 v{t}, v{t}, v{sbuf+r}, v{sbuf+r+1}')
        g(f'v_max_f32 v{t}, v{t}, v{sbuf+15}')
        g(f'v_mov_b32 v{t+1}, v{t}')
        g('s_nop 1')
        g(f'v_permlane32_swap_b32 v{t}, v{t+1}')
        g('s_nop 1')
        g(f'v_max_f32 v{t}, v{t}, v{t+1}')
    def set_standin(sbuf, q, mneg):
        t = T
        rowmax(sbuf, t)
        g(f'v_sub_f32 v{t}, 0, v{t}')
        g(f'v_cvt_pk_bf16_f32 v{t}, v{t}, 0')
        g(f'v_lshlrev_b32 v{mneg}, 16, v{t}')
        g('s_mov_b64 exec, s[60:61]')
        g(f'v_mov_b32 v{q+4+2}, v{t}')
        g('s_mov_b64 exec, -1')
    def write_partial(O, mn):
        for i in range(4): g(f'ds_write_b128 v6, {vr(O+4*i,4)} offset:{i*1024}')
        g(f'ds_write_b32 v7, v{mn}')
    FB = 144
    def finish(tag, br, O, mn, q, tmp):
        for i in range(4): g(f'ds_read_b128 {vr(tmp+4*i,4)}, v6 offset:{i*1024}')
        g(f'ds_read_b32 v{T}, v7')
        g('s_waitcnt lgkmcnt(0)')
        g(f'v_min_f32 v{T+1}, v{mn}, v{T}')
        g(f'v_sub_f32 v{T+2}, v{T+1}, v{mn}')
        g(f'v_sub_f32 v{T+3}, v{T+1}, v{T}')
        g(f'v_exp_f32 v{T+2}, v{T+2}')
        g(f'v_exp_f32 v{T+3}, v{T+3}')
        g('s_nop 0')
        for r in range(16): g(f'v_mul_f32 v{O+r}, v{O+r}, v{T+2}')
        for r in range(16): g(f'v_fmac_f32 v{O+r}, v{tmp+r}, v{T+3}')
        g(f'v_mov_b32 v{T}, v{O+12}')
        g(f'v_mov_b32 v{T+1}, v{O+12}')
        g(f'v_mul_f32 v{T+4}, 0, v{O}')
        g(f'v_fmac_f32 v{T+4}, 0, v{O+1}')
        g(f'v_permlane32_swap_b32 v{T}, v{T+1}')
        for r in range(2, 16): g(f'v_fmac_f32 v{T+4}, 0, v{O+r}')
        g(f'v_add_f32 v{T+4}, v{T+4}, v{T+1}')
        g(f's_mov_b32 s47, {f32bits(2.0**100):#x}')
        g(f'v_cmp_ngt_f32 vcc, s47, v{T+4}')
        g('s_nop 4')
        g(f's_cbranch_vccz L{tag}_ok')
        fallback(tag, br, O, q)
        g(f'v_mov_b32 v{T}, v{O+12}')
        g(f'v_mov_b32 v{T+1}, v{O+12}')
        g('s_nop 1')
        g(f'v_permlane32_swap_b32 v{T}, v{T+1}')
        g('s_nop 1')
        g.label(f'L{tag}_ok')
        g(f'v_rcp_f32 v{T+1}, v{T+1}')
        g('s_nop 0')
        for r in range(16): g(f'v_mul_f32 v{O+r}, v{O+r}, v{T+1}')
        for i in range(8): g(f'v_cvt_pk_bf16_f32 v{tmp+i}, v{O+2*i}, v{O+2*i+1}')
        g('s_mov_b64 exec, s[60:61]')
        g(f'v_mov_b32 v{tmp+6}, 0')
        g(f'v_mov_b32 v{tmp+7}, 0')
        g('s_mov_b64 exec, -1')
        g('s_lshl_b32 s47, s41, 2')
        g('s_add_u32 s47, s47, s42')
        g(f's_add_u32 s47, s47, {br*64}')
        g('s_lshl_b32 s47, s47, 4')
        g('s_add_u32 s47, s47, s40')
        g('s_lshl_b32 s47, s47, 11')
        g('s_nop 0')
        g(f'buffer_store_dwordx4 {vr(tmp,4)}, v2, s[36:39], s47 offen{ST()}')
        g(f'buffer_store_dwordx4 {vr(tmp+4,4)}, v2, s[36:39], s47 offen offset:1024{ST()}')
        g('s_nop 1')
    def fallback(tag, br, O, q):
        FS, FK, FV, FP, FQ, Fm = FB, FB+16, FB+24, FB+32, FB+40, FB+48
        s = 28 if br == 0 else 32
        for i in range(8): g(f'v_mov_b32 v{FQ+i}, v{q+i}')
        g('s_mov_b64 exec, s[60:61]')
        g(f'v_mov_b32 v{FQ+6}, 0')
        g('s_mov_b64 exec, -1')
        for r in range(16): g(f'v_mov_b32 v{O+r}, 0')
        g(f'v_mov_b32 v{Fm}, v25')
        if br == 0:
            g('s_lshl_b32 s52, s41, 2')
            g('s_add_u32 s52, s52, s42')
            g('s_sub_u32 s53, s52, 8')
            g('s_mov_b32 s54, s52')
        else:
            g('s_mov_b32 s54, 63')
        g.label(f'L{tag}_fb_loop')
        g('s_lshl_b32 s55, s54, 12')
        for i in range(2):
            g(f'buffer_load_dwordx4 {vr(FK+4*i,4)}, v2, s[{s}:{s+3}], s55 offen offset:{i*1024}{LD()}')
            g(f'buffer_load_dwordx4 {vr(FV+4*i,4)}, v2, s[{s}:{s+3}], s55 offen offset:{2048+i*1024}{LD()}')
        if br == 0:
            g('s_cmp_eq_u32 s54, s52')
            g(f's_cbranch_scc1 L{tag}_fb_diag')
            g('s_cmp_eq_u32 s54, s53')
            g(f's_cbranch_scc1 L{tag}_fb_first')
        for r in range(16): g(f'v_mov_b32 v{FS+r}, 0')
        if br == 0:
            g(f's_branch L{tag}_fb_go')
            g.label(f'L{tag}_fb_diag')
            set_mask(g, FS, 'diag')
            g(f's_branch L{tag}_fb_go')
            g.label(f'L{tag}_fb_first')
            set_mask(g, FS, 'first')
            g.label(f'L{tag}_fb_go')
        g('s_waitcnt vmcnt(0)')
        g('s_nop 1')
        g(mfma(FS, FK, FQ, FS))
        g(mfma(FS, FK+4, FQ+4, FS))
        g('s_nop 15')
        rowmax(FS, Fm+1)
        g(f'v_max_f32 v{Fm+1}, v{Fm+1}, v{Fm}')
        g(f'v_sub_f32 v{Fm+2}, v{Fm}, v{Fm+1}')
        g(f'v_exp_f32 v{Fm+2}, v{Fm+2}')
        g(f'v_mov_b32 v{Fm}, v{Fm+1}')
        for r in range(16): g(f'v_sub_f32 v{FS+r}, v{FS+r}, v{Fm}')
        for r in range(16): g(f'v_exp_f32 v{FS+r}, v{FS+r}')
        for r in range(16): g(f'v_mul_f32 v{O+r}, v{O+r}, v{Fm+2}')
        for i in range(8): g(f'v_cvt_pk_bf16_f32 v{FP+i}, v{FS+2*i}, v{FS+2*i+1}')
        g('s_nop 1')
        g(mfma(O, FV, FP, O))
        g(mfma(O, FV+4, FP+4, O))
        g('s_nop 15')
        g('s_sub_u32 s54, s54, 1')
        g('s_cmp_lt_i32 s54, 0')
        g(f's_cbranch_scc1 L{tag}_fb_end')
        if br == 0:
            g('s_cmp_lt_i32 s54, s53')
            g(f's_cbranch_scc1 L{tag}_fb_end')
        g(f's_branch L{tag}_fb_loop')
        g.label(f'L{tag}_fb_end')

    g('s_cmp_eq_u32 s43, 0')
    g('s_cbranch_scc0 Lattn_kh1')

    def path(kh):
        tag = f'K{kh}'
        unitsA = [8, 7, 6, 5, 4] if kh == 0 else [3, 2, 1, 0]
        nA = len(unitsA); N = 32 + nA
        def unit(i):
            if i >= 32:
                u = unitsA[i - 32]
                masked = (kh == 0 and u == 8) or (kh == 1 and u == 0)
                return dict(base=3, off=u*4096, Q=QA, O=OA, C=MASK if masked else None, first=(i == 32))
            return dict(b=i, Q=QB, O=OB, C=None, first=(i == 0))
        def addr(i, cs):
            u = unit(i)
            if 'base' in u: return u['base'], u['off']
            b = u['b']; s = b >> 2
            if s == cs: return 4, (b & 3) * 4096
            assert s == cs + 1
            return 5, (b & 3) * 4096
        def rdK(i, cs, dst=KF):
            r, off = addr(i, cs)
            g(f'ds_read_b128 {vr(dst,4)}, v{r} offset:{off}')
            g(f'ds_read_b128 {vr(dst+4,4)}, v{r} offset:{off+1024}')
        def rdV(i, f, cs):
            r, off = addr(i, cs)
            g(f'ds_read_b128 {vr(VF+4*f,4)}, v{r} offset:{off+2048+f*1024}')
        rdK(0, 0)
        g('s_waitcnt lgkmcnt(0)')
        g(mfma(S0, KF, QB, None))
        g(mfma(S0, KF+4, QB+4, S0))
        g('s_nop 15')
        set_standin(S0, QB, MNB)
        g('s_nop 1')
        g(mfma(S0, KF, QB, None))
        g(mfma(S0, KF+4, QB+4, S0))
        rdK(1, 0)
        rdV(0, 0, 0)
        g('s_nop 15')
        if kh == 0: stamp(g, 7)
        if OPT.get('attst'): stamp(g, 2, q=True)
        def wo_piece(it):
            if it == 7:
                sk = newlab('wo7')
                g('s_cmp_lg_u32 s3, 0')
                g(f's_cbranch_scc1 {sk}')
                g(f's_add_u32 m0, s45, {65536 + it*8192}')
                g(f'v_add_u32 v31, {it*64*896}, v30')
                g('buffer_load_dwordx4 v31, s[56:59], 0 offen lds')
                g.label(sk)
            else:
                g(f's_add_u32 m0, s45, {65536 + it*8192}')
                g(f's_mov_b32 s50, {it*64*896}')
                g('buffer_load_dwordx4 v30, s[56:59], s50 offen lds')
        def wo_setup():
            g('s_mov_b32 s56, s14')
            g('s_mov_b32 s57, s15')
            g(f's_mov_b32 s58, {448*896}')
            g('s_mov_b32 s59, 0x20000')
            g('v_lshrrev_b32 v30, 3, v0')
            g('v_and_b32 v31, 7, v0')
            g('v_and_b32 v1, 2, v30')
            g('v_lshlrev_b32 v1, 1, v1')
            g('v_xor_b32 v31, v31, v1')
            g('s_lshl_b32 s50, s3, 3')
            g('v_add_u32 v30, s50, v30')
            g('v_mul_u32_u24 v30, 896, v30')
            g('v_lshl_add_u32 v30, v31, 4, v30')
            g('s_lshr_b32 s50, s2, 5')
            g('s_lshl_b32 s50, s50, 7')
            g('s_cmp_ge_u32 s2, 224')
            g('s_cselect_b32 s50, 0x40000000, s50')
            g('v_add_u32 v30, s50, v30')
            g('s_lshl_b32 s45, s3, 10')
        def dma_slot(i, inloop):
            if i == 0 or i == 1:
                st = i + 2
                g(f's_add_u32 s54, s55, {st*32768}')
                g(f's_add_u32 m0, s55, {(st&3)*32768}')
                g('s_nop 0')
                for k in range(4):
                    g(f'buffer_load_dwordx4 v2, s[32:35], s54 offen offset:{k*1024}{LD()} lds')
                return
            if i == 2 and kh == 0:
                for t in range(3):
                    g(f'buffer_store_dwordx4 {vr(208+8*t,4)}, v2, s[56:59], s{(48,49,53)[t]} offen{ST()}')
                    g(f'buffer_store_dwordx4 {vr(212+8*t,4)}, v2, s[56:59], s{(48,49,53)[t]} offen offset:1024{ST()}')
                return
            if i >= 30:
                if i == 30: wo_setup()
                before34 = {30: [0], 31: [1], 32: [2], 33: [3], 34: [4, 5], 35: [6, 7]}
                for it in before34.get(i, []): wo_piece(it)
                return
            if i < 6: return
            ph = (i - 2) & 3; st = ((i - 2) >> 2) + 3
            if i == 18:
                g('buffer_load_dword v201, v31, s[64:67], 0 offen sc1')
            if st <= 7:
                if ph == 0:
                    g(f's_add_u32 s54, s55, {st*32768}')
                    g(f's_add_u32 m0, s55, {(st&3)*32768}')
                    g('s_nop 0')
                g(f'buffer_load_dwordx4 v2, s[32:35], s54 offen offset:{ph*1024}{LD()} lds')
            elif st == 8:
                if ph == 0:
                    ok = newlab('aok')
                    g('v_cmp_ne_u32 vcc, 16, v201')
                    g('s_nop 4')
                    g(f's_cbranch_vccz {ok}')
                    spin_until(g, 201, 31, 16)
                    g.label(ok)
                    if kh == 1:
                        g('s_add_u32 s47, s51, 8192')
                        dma4(2, 24, 's44', 's47', n=2)
                    g('s_mov_b32 m0, s55')
                    g('s_nop 0')
                g(f'buffer_load_dwordx4 v28, s[28:31], 0 offen offset:{ph*1024}{LD()} lds')
            elif st == 9 and ph == 0 and kh == 0:
                g('s_add_u32 m0, s55, 32768')
                g('s_nop 0')
                for k in range(4):
                    g(f'buffer_load_dwordx4 v29, s[28:31], 0 offen offset:{k*1024}{LD()} lds')
        def body(i, cs, inloop=False):
            u = unit(i)
            sb = SB[i & 1]; sn = SB[(i + 1) & 1]
            e = [f'v_exp_f32 v{sb+r}, v{sb+r}' for r in range(16)]
            c = [f'v_cvt_pk_bf16_f32 v{P+k}, v{sb+2*k}, v{sb+2*k+1}' for k in range(8)]
            has1 = i + 1 < N; has2 = i + 2 < N
            if i < 32 and (i & 3) == 2:
                s = i >> 2
                if s == 7: vm = 0
                elif s == 0: vm = 8
                elif s == 1: vm = 4 if kh == 1 else 10
                elif s == 2: vm = 4 if kh == 1 else 10
                else: vm = 4
                if OPT.get('attst') and s in (0, 1, 2, 3, 5, 7): stamp(g, {0: 3, 1: 5, 2: 7, 3: 9, 5: 11, 7: 13}[s], q=True)
                g(f's_waitcnt vmcnt({vm}) lgkmcnt(0)' if vm is not None else 's_waitcnt lgkmcnt(0)')
                g('s_barrier')
                if OPT.get('attst') and s in (0, 1, 2, 3, 5, 7): stamp(g, {0: 4, 1: 6, 2: 8, 3: 10, 5: 12, 7: 14}[s], q=True)
                if s == 3 and kh == 1:
                    sk = newlab('sigA')
                    g('s_cmp_lg_u32 s3, 4')
                    g(f's_cbranch_scc1 {sk}')
                    g('s_mov_b64 exec, 1')
                    g('v_mov_b32 v1, 1')
                    g('s_lshl_b32 s47, s69, 8')
                    g('v_mov_b32 v202, s47')
                    g('buffer_atomic_add v1, v202, s[64:67], 0 offen sc1')
                    g('s_mov_b64 exec, -1')
                    g.label(sk)
                if s == 6:
                    g(f'ds_read_b128 {vr(QA,4)}, v{QL} offset:8192')
                    g(f'ds_read_b128 {vr(QA+4,4)}, v{QL} offset:9216')
                if s == 7 and kh == 0:
                    rdK(32, cs, TK)
                    g('s_waitcnt lgkmcnt(0)')
                    g(mfma(TS, TK, QA, unit(32)['C']))
                    g(mfma(TS, TK+4, QA+4, TS))
                    g('s_nop 15')
                    set_standin(TS, QA, MNA)
            elif i == 31 and kh == 1:
                g('s_waitcnt lgkmcnt(0)')
                g(mfma(TS, KF, QA, unit(32)['C']))
                g(mfma(TS, KF+4, QA+4, TS))
                g('s_nop 15')
                set_standin(TS, QA, MNA)
                g('s_lshl_b32 s47, s41, 2')
                g('s_add_u32 s47, s47, s42')
                g('s_cmp_lt_u32 s47, 5')
                g(f's_cbranch_scc0 L{tag}_valid')
                g(f'v_mov_b32 v{MNA}, {POSBIG:#x}')
                g.label(f'L{tag}_valid')
            elif i == 34:
                g('s_waitcnt lgkmcnt(0)')
                g('s_barrier')
                if kh == 1:
                    finish('FB', 1, OB, MNB, QB, TS)
            else:
                g('s_waitcnt lgkmcnt(0)')
            if OPT.get('prio', 'lag') == 'lag':
                g(f's_setprio {3 - ((i - 2) & 3)}')
            g(e[0])
            if i > 0:
                up = unit(i - 1)
                g(mfma(up['O'], VF+4, P+4, up['O']))
            rdV(i, 1, cs)
            g(e[1]); g(e[2]); g(e[3])
            g(c[0])
            if i == 33 and kh == 0:
                write_partial(OB, MNB)
            if has1:
                un = unit(i + 1)
                g(mfma(sn, KF, un['Q'], un['C']))
            g(e[4]); g(e[5]); g(c[1]); g(e[6]); g(e[7]); g(c[2])
            if has1:
                g(mfma(sn, KF+4, un['Q']+4, sn))
            if has2:
                rdK(i + 2, cs)
            g(e[8]); g(c[3]); g(e[9]); g(e[10])
            dma_slot(i, inloop)
            g(e[11])
            g(mfma(u['O'], VF, P, None if u['first'] else u['O']))
            if has1:
                rdV(i + 1, 0, cs)
            for x in e[12:16]: g(x)
            g(c[4]); g(c[5]); g(c[6]); g(c[7])
        def advance():
            g('v_mov_b32 v4, v5')
            g('v_add_u32 v5, 32768, v5')
            g('v_and_b32 v5, 0x1ffff, v5')
        return body, advance, N, tag
    for kh in (0, 1):
        if kh == 1: g.label('Lattn_kh1')
        body, advance, N, tag = path(kh)
        for s_ in range(7):
            for j in range(4): body(4*s_ + j, s_)
            advance()
        for j in range(4): body(28 + j, 7)
        if kh == 0: stamp(g, 8)
        for i in range(32, N): body(i, 7)
        g('s_waitcnt lgkmcnt(0)')
        g('s_nop 1')
        g(mfma(OA, VF+4, P+4, OA))
        g('s_nop 15')
        if kh == 1:
            write_partial(OA, MNA)
            g('s_waitcnt vmcnt(3) lgkmcnt(0)')
            g('s_barrier')
            stamp(g, 9)
            proj_group_B(g)
        else:
            g('s_barrier')
            finish('FA', 0, OA, MNA, QA, MASK)
            stamp(g, 9)
            proj_group_A(g)
    proj_common(g)

PJ_EX = 131072
def proj_setup(g, br):
    g(f's_mov_b32 s40, {br}')
    g('s_and_b32 s41, s2, 7')
    g('s_lshl_b32 s41, s41, 2')
    g('s_bfe_u32 s42, s2, 0x20003')
    g('s_add_u32 s41, s41, s42')
    g('s_lshr_b32 s42, s2, 5')
    g('s_and_b32 s43, s3, 1')
    g('s_bfe_u32 s44, s3, 0x10001')
    srd(g, 24, 16, 17, 2048 * 1792)
    g('s_lshl_b32 s45, s41, 1')
    g('s_add_u32 s45, s45, s43')
    g(f's_add_u32 s45, s45, {br*64}')
    g('s_lshl_b32 s45, s45, 15')
    g('s_lshl_b32 s46, s44, 14')
    g('s_add_u32 s45, s45, s46')
    g('v_bfe_u32 v4, v0, 2, 2')
    g('v_and_b32 v5, 3, v0')
    g('v_bfe_u32 v7, v0, 4, 1')
    g('v_lshrrev_b32 v6, 5, v0')
    g('v_lshlrev_b32 v7, 5, v7')
    g('v_lshl_add_u32 v7, v5, 3, v7')
    g('v_lshrrev_b32 v11, 4, v7')
    g('v_and_b32 v8, 2, v4')
    g('v_lshlrev_b32 v8, 1, v8')
    g('v_xor_b32 v11, v11, v8')
    g('v_and_b32 v7, 15, v7')
    g('v_lshl_add_u32 v7, v11, 4, v7')
    g('v_lshl_add_u32 v4, v6, 2, v4')
    g('v_lshl_add_u32 v9, v4, 7, v7')
    g('s_mul_i32 s46, s44, 28672')
    if br: g('s_add_u32 s46, s46, 65536')
    g('v_add_u32 v9, s46, v9')
    g('v_xor_b32 v10, 64, v9')
    g('s_lshl_b32 s46, s43, 1')
    g('s_add_u32 s46, s46, s44')
    g(f's_add_u32 s46, s46, {br*4}')
    g('s_lshl_b32 s46, s46, 12')
    g(f's_add_u32 s46, s46, {PJ_EX}')
    g('v_add_u32 v12, s46, v2')
    g('v_xor_b32 v13, 4096, v12')
    g('s_lshr_b32 s46, s41, 1')
    g('s_lshl_b32 s46, s46, 8')
    g(f's_add_u32 s46, s46, {CNT_OB if br else CNT_OA}')
    g('v_mov_b32 v30, s46')
def o_loads(g):
    OF = 64
    for n in range(16):
        if n % 4 == 0 and n > 0: g('s_add_u32 s45, s45, 4096')
        g(f'buffer_load_dwordx4 {vr(OF+4*n,4)}, v2, s[36:39], s45 offen offset:{(n%4)*1024}{LD()}')
def signal_o(g, cnt, wave):
    sk = newlab('sigO')
    g(f's_cmp_lg_u32 s3, {wave}')
    g(f's_cbranch_scc1 {sk}')
    g('s_mov_b64 exec, 1')
    g('v_mov_b32 v1, 1')
    g('s_lshl_b32 s47, s41, 8')
    g(f's_add_u32 s47, s47, {cnt}')
    g('v_mov_b32 v31, s47')
    g('buffer_atomic_add v1, v31, s[64:67], 0 offen sc1')
    g('s_mov_b64 exec, -1')
    g.label(sk)
def proj_group_B(g):
    signal_o(g, CNT_OB, 4)
    g('s_cmp_ge_u32 s2, 224')
    g('s_cbranch_scc1 Lpj_idleB')
    srd(g, 56, 8, 9, 448*896)
    g('v_lshrrev_b32 v30, 3, v0')
    g('v_and_b32 v31, 7, v0')
    g('v_and_b32 v1, 2, v30')
    g('v_lshlrev_b32 v1, 1, v1')
    g('v_xor_b32 v31, v31, v1')
    g('s_and_b32 s50, s3, 3')
    g('s_lshl_b32 s51, s50, 3')
    g('v_add_u32 v30, s51, v30')
    g('v_mul_u32_u24 v30, 896, v30')
    g('v_lshl_add_u32 v30, v31, 4, v30')
    g('s_lshr_b32 s51, s2, 5')
    g('s_lshl_b32 s51, s51, 7')
    g('v_add_u32 v30, s51, v30')
    g('s_lshl_b32 s52, s50, 10')
    sk = newlab('woA')
    for it in range(15):
        if it == 14:
            g('s_cmp_lg_u32 s50, 0')
            g(f's_cbranch_scc1 {sk}')
        g(f's_add_u32 m0, s52, {it*4096}')
        if it == 14:
            g(f'v_add_u32 v31, {it*32*896}, v30')
            g('buffer_load_dwordx4 v31, s[56:59], 0 offen lds')
        else:
            g(f's_mov_b32 s51, {it*32*896}')
            g('buffer_load_dwordx4 v30, s[56:59], s51 offen lds')
    g.label(sk)
    proj_setup(g, 1)
    g('s_waitcnt vmcnt(0)')
    g('s_barrier')
    spin_until(g, 1, 30, 16)
    stamp(g, 10)
    o_loads(g)
    g('s_branch Lproj_common')
    g.label('Lpj_idleB')
    g('s_barrier')
    g('s_branch Lend')
def proj_group_A(g):
    g('s_waitcnt vmcnt(0)')
    g('s_mov_b64 exec, 1')
    g('v_mov_b32 v1, 1')
    g('s_lshl_b32 s47, s41, 8')
    g(f's_add_u32 s47, s47, {CNT_OA}')
    g('v_mov_b32 v31, s47')
    g('buffer_atomic_add v1, v31, s[64:67], 0 offen sc1')
    g('s_mov_b64 exec, -1')
    g('s_cmp_ge_u32 s2, 224')
    sk = newlab('idleA')
    g(f's_cbranch_scc1 {sk}')
    proj_setup(g, 0)
    g('s_barrier')
    spin_until(g, 1, 30, 64)
    stamp(g, 10)
    o_loads(g)
    g('s_branch Lproj_common')
    g.label(sk)
    g('s_barrier')
    g('s_branch Lend')
def proj_common(g):
    g.label('Lproj_common')
    OF = 64; ACC = 16; WF = 48
    def rd(n, buf):
        h, i = divmod(n, 2)
        for ct in range(2):
            for jj in range(2):
                off = (28*h + 16*i + 8*jj) * 128
                g(f'ds_read_b64_tr_b16 {vr(WF+8*buf+4*ct+2*jj,2)}, v{9+ct} offset:{off}')
    rd(0, 0)
    for n in range(16):
        if n + 1 < 16: rd(n + 1, (n + 1) & 1)
        g(f's_waitcnt vmcnt({15-n}) lgkmcnt({4 if n + 1 < 16 else 0})')
        for ct in range(2):
            g(mfma(ACC + 16*ct, WF + 8*(n & 1) + 4*ct, OF + 4*n, None if n == 0 else ACC + 16*ct))
    g('s_nop 15')
    stamp(g, 12)
    g('s_cmp_eq_u32 s44, 0')
    g('s_cbranch_scc0 Lpj_k1')
    for i in range(4): g(f'ds_write_b128 v12, {vr(ACC+16+4*i,4)} offset:{i*1024}')
    g('s_branch Lpj_k2')
    g.label('Lpj_k1')
    for i in range(4): g(f'ds_write_b128 v12, {vr(ACC+4*i,4)} offset:{i*1024}')
    for r in range(16): g(f'v_mov_b32 v{ACC+r}, v{ACC+16+r}')
    g.label('Lpj_k2')
    g('s_waitcnt lgkmcnt(0)')
    g('s_barrier')
    for i in range(4): g(f'ds_read_b128 {vr(64+4*i,4)}, v13 offset:{i*1024}')
    g('v_and_b32 v4, 31, v0')
    g('s_lshl_b32 s46, s41, 6')
    g('s_lshl_b32 s47, s43, 5')
    g('s_add_u32 s46, s46, s47')
    g('v_add_u32 v4, s46, v4')
    g('v_mul_u32_u24 v4, 1792, v4')
    g('v_lshl_add_u32 v4, v6, 4, v4')
    g('s_mul_i32 s46, s40, 896')
    g('s_lshl_b32 s47, s42, 7')
    g('s_add_u32 s46, s46, s47')
    g('s_lshl_b32 s47, s44, 6')
    g('s_add_u32 s46, s46, s47')
    g('s_waitcnt lgkmcnt(0)')
    for r in range(16): g(f'v_add_f32 v{ACC+r}, v{ACC+r}, v{64+r}')
    P = 48
    for i in range(8): g(f'v_cvt_pk_bf16_f32 v{P+i}, v{ACC+2*i}, v{ACC+2*i+1}')
    g('s_nop 1')
    for k in range(2):
        a = P + 4*k
        g(f'v_permlane32_swap_b32 v{a}, v{a+2}')
        g(f'v_permlane32_swap_b32 v{a+1}, v{a+3}')
    g('s_nop 1')
    for k in range(2):
        g(f'buffer_store_dwordx4 {vr(P+4*k,4)}, v4, s[24:27], s46 offen offset:{32*k}' + ((' ' + OPT['ost']) if OPT.get('ost') else ''))

HEADER = '''; Kernarg layout for this problem (72 bytes, ptrs only, base s[0:1]):
'''
def main(out):
    g = Gen()
    g.raw(f'.globl {NAME}')
    g.raw('.p2align 8')
    g.raw(f'.type {NAME},@function')
    g.label(NAME)
    g('s_cmp_ge_u32 s2, 256')
    g('s_cbranch_scc1 Lexit')
    if OPT.get('tl'):
        for r in range(70, 102): g(f's_mov_b32 s{r}, 0')
    stamp(g, 0); stamp(g, 15, True)
    if OPT.get('tl'): g('s_memtime s[98:99]')
    g('s_load_dwordx16 s[4:19], s[0:1], 0')
    g('s_load_dwordx2 s[20:21], s[0:1], 64')
    g('v_lshrrev_b32 v1, 6, v0')
    g('v_and_b32 v0, 63, v0')
    g('s_nop 0')
    g('v_readfirstlane_b32 s3, v1')
    prologue(g)
    qkv_compute(g)
    qkv_loader(g)
    phase_attn(g)
    g.label('Lend')
    if OPT['stamps'] or OPT.get('tl'): g('s_waitcnt vmcnt(0)')
    stamp(g, 13)
    if OPT.get('tl'):
        sk = newlab('tl')
        g('s_cmp_lg_u32 s3, 0')
        g(f's_cbranch_scc1 {sk}')
        g('s_memtime s[100:101]')
        g('s_waitcnt lgkmcnt(0)')
        srd(g, 56, 18, 19, 256)
        g('s_mov_b64 exec, 1')
        g('s_sub_u32 s100, s100, s98')
        g('s_sub_u32 s99, s96, s70')
        g('v_mov_b32 v20, s100')
        g('v_mov_b32 v21, s99')
        g('v_mov_b32 v3, 0')
        g('buffer_atomic_umax v20, v3, s[56:59], 0 offen offset:52')
        g('buffer_atomic_umax v21, v3, s[56:59], 0 offen offset:56')
        g('s_not_b32 s68, s70')
        g('v_mov_b32 v1, s68')
        g('v_mov_b32 v3, 0')
        g('buffer_atomic_umax v1, v3, s[56:59], 0 offen offset:4')
        for k, i in enumerate((0, 2, 3, 4, 6, 8, 9, 10, 11, 12, 13)):
            g(f'v_mov_b32 v{4+k}, s{70+2*i}')
            g(f'buffer_atomic_umax v{4+k}, v3, s[56:59], 0 offen offset:{8+4*k}')
        g('s_waitcnt vmcnt(0)')
        g.label(sk)
    if OPT['stamps']: g('s_memrealtime s[72:73]')
    stamp_dump(g)
    g.label('Lexit')
    g('s_endpgm')
    txt = HEADER + f'; @launch grid=(256,1,1) block=(512,1,1) lds={LDS_BYTES}\n'
    txt += '.amdgcn_target "amdgcn-amd-amdhsa--gfx950"\n.text\n' + g.text()
    txt += f'''.section .rodata,"a"
.p2align 6
.amdhsa_kernel {NAME}
  .amdhsa_next_free_vgpr 232
  .amdhsa_next_free_sgpr 102
  .amdhsa_accum_offset 232
  .amdhsa_group_segment_fixed_size 0
  .amdhsa_kernarg_size 72
  .amdhsa_user_sgpr_count 2
  .amdhsa_user_sgpr_kernarg_segment_ptr 1
  .amdhsa_system_sgpr_workgroup_id_x 1
.end_amdhsa_kernel
'''
    open(out, 'w').write(txt)

if __name__ == '__main__':
    out = sys.argv[1] if len(sys.argv) > 1 else 'concat_heads__sliding_block__softmax_full_mha__prompt.s'
    for a in sys.argv[2:]:
        if '=' in a:
            k, v = a.split('=', 1)
            OPT[k] = v if k in ('st', 'ld', 'prio', 'ost', 'inl') else (int(v) if v.isdigit() else v)
        else:
            OPT[a] = True
    main(out)
```

```python
import sys, math, struct

def f32bits(x): return struct.unpack('<I', struct.pack('<f', x))[0]

class Gen:
    def __init__(self): self.lines = []
    def __call__(self, s):
        for l in s.split('\n'):
            l = l.strip()
            if l: self.lines.append('  ' + l)
    def label(self, s): self.lines.append(s + ':')
    def raw(self, s): self.lines.append(s)
    def text(self): return '\n'.join(self.lines) + '\n'

def vr(base, n): return f'v[{base}:{base+n-1}]'
def mfma(d, a, b, c):
    cs = '0' if c is None else vr(c, 16)
    return f'v_mfma_f32_32x32x16_bf16 {vr(d,16)}, {vr(a,4)}, {vr(b,4)}, {cs}'

OPT = dict(stamps=False, st='sc1', ld='', spin=200000, pf=2)
NAME = 'concat_heads__sliding_block__softmax_full_mha__prompt_kernel'
STAMP_BASE = 0x2000000
def stamp(g, i, real=False, q=False):
    if OPT.get('tl'):
        if i in (0, 2, 3, 4, 6, 8, 9, 10, 11, 12, 13): g(f's_memrealtime s[{70+2*i}:{71+2*i}]')
        return
    if not OPT['stamps']: return
    import inspect
    if OPT.get('qkvst') and 5 <= i <= 13:
        caller = inspect.stack()[1].function
        if caller != 'qkv_compute': return
    if (OPT.get('attst') or OPT.get('probe')) and 2 <= i <= 12 and not q: return
    op = 's_memrealtime' if real else 's_memtime'
    g(f'{op} s[{70+2*i}:{71+2*i}]')
def stamp_dump(g):
    if not OPT['stamps']: return
    g('s_waitcnt lgkmcnt(0) vmcnt(0)')
    g(f's_add_u32 s64, s20, {STAMP_BASE}')
    g(f's_addc_u32 s65, s21, 0')
    g('s_mov_b32 s66, 0x100000')
    g('s_mov_b32 s67, 0x20000')
    g('s_mov_b64 exec, -1')
    g('v_mov_b32 v1, 0')
    for i in range(16):
        g(f'v_writelane_b32 v1, s{70+2*i}, {i}')
    g('s_lshl_b32 s68, s2, 3')
    g('s_add_u32 s68, s68, s3')
    g('s_lshl_b32 s68, s68, 6')
    g('v_lshlrev_b32 v3, 2, v0')
    g('v_cmp_gt_u32 vcc, 16, v0')
    g('s_and_saveexec_b64 s[62:63], vcc')
    g('buffer_store_dword v1, v3, s[64:67], s68 offen')
    g('s_waitcnt vmcnt(0)')

WS_Q = 0
WS_KV = 0x400000
WS_O = 0xC00000
WS_CNT = 0x1000000
CNT_A, CNT_B, CNT_OA, CNT_OB = 0, 16 * 256, 32 * 256, 48 * 256
QSCALE = (28 ** -0.5) * math.log2(math.e)
NEGBIG = 0xf149f2ca
POSBIG = 0x7149f2ca
LDS_BYTES = 163840

def srd(g, dst, lo, hi, nbytes, add=0):
    if add:
        g(f's_add_u32 s{dst}, s{lo}, {add}')
        g(f's_addc_u32 s{dst+1}, s{hi}, 0')
    else:
        g(f's_mov_b32 s{dst}, s{lo}')
        g(f's_mov_b32 s{dst+1}, s{hi}')
    g(f's_mov_b32 s{dst+2}, {nbytes}')
    g(f's_mov_b32 s{dst+3}, 0x20000')
def ST(): return (' ' + OPT['st']) if OPT['st'] else ''
def INL(): return (' ' + OPT['inl']) if OPT.get('inl') else ''
def LD(): return (' ' + OPT['ld']) if OPT['ld'] else ''
lab = [0]
def newlab(p):
    lab[0] += 1
    return f'L{p}_{lab[0]}'

def spin_until(g, vdst, voff, target, tmp=205):
    l0 = newlab('poll'); l1 = newlab('pdone')
    g(f's_mov_b32 s68, {OPT["spin"]}')
    g.label(l0)
    g(f'buffer_load_dword v{vdst}, v{voff}, s[64:67], 0 offen sc1')
    g('s_waitcnt vmcnt(0)')
    g(f'v_cmp_ne_u32 vcc, {target}, v{vdst}')
    g('s_nop 4')
    g(f's_cbranch_vccz {l1}')
    if OPT.get('sleep', 1): g(f's_sleep {OPT.get("sleep", 1)}')
    g('s_sub_u32 s68, s68, 1')
    g('s_cmp_lg_u32 s68, 0')
    g(f's_cbranch_scc1 {l0}')
    g.label(l1)
LFLAG = 65536 - 64
def group_wait(g, leader, word, vdst, voff, target):
    lf = newlab('follow'); ld = newlab('gdone'); lp = newlab('lspin')
    g(f'v_mov_b32 v204, {LFLAG + 4*word}')
    g(f's_cmp_lg_u32 s3, {leader}')
    g(f's_cbranch_scc1 {lf}')
    spin_until(g, vdst, voff, target)
    g('v_mov_b32 v205, 1')
    g('ds_write_b32 v204, v205')
    g('s_waitcnt lgkmcnt(0)')
    g(f's_branch {ld}')
    g.label(lf)
    g(f's_mov_b32 s68, {OPT["spin"] * 16}')
    g.label(lp)
    g('ds_read_b32 v205, v204')
    g('s_waitcnt lgkmcnt(0)')
    g('v_readfirstlane_b32 s47, v205')
    g('s_cmp_lg_u32 s47, 0')
    g(f's_cbranch_scc1 {ld}')
    g('s_sleep 1')
    g('s_sub_u32 s68, s68, 1')
    g('s_cmp_lg_u32 s68, 0')
    g(f's_cbranch_scc1 {lp}')
    g.label(ld)

WROW = 176
WSTG = 64 * WROW
NCH = 14
def prologue(g):
    g('s_and_b32 s40, s2, 7')
    g('s_lshr_b32 s41, s2, 3')
    g('s_lshr_b32 s22, s40, 1')
    g('s_lshl_b32 s22, s22, 2')
    g('s_and_b32 s42, s41, 3')
    g('s_add_u32 s22, s22, s42')
    g('s_and_b32 s23, s40, 1')
    g('s_lshl_b32 s23, s23, 3')
    g('s_lshr_b32 s42, s41, 2')
    g('s_add_u32 s23, s23, s42')
    g('s_add_u32 s69, s23, 1')
    g('s_and_b32 s69, s69, 7')
    g('s_and_b32 s42, s23, 8')
    g('s_or_b32 s69, s69, s42')
    g('s_cmp_ge_u32 s3, 4')
    g('s_cbranch_scc1 Lloader')

def kvb_srd(g):
    g('s_and_b32 s40, s2, 7')
    g('s_bfe_u32 s41, s2, 0x10003')
    g('s_lshl_b32 s40, s40, 1')
    g('s_add_u32 s40, s40, s41')
    g('s_lshl_b32 s47, s40, 18')
    g(f's_add_u32 s47, s47, {WS_KV + 0x400000}')
    g('s_add_u32 s32, s20, s47')
    g('s_addc_u32 s33, s21, 0')
    g('s_mov_b32 s34, 0x40000')
    g('s_mov_b32 s35, 0x20000')
    g('s_lshl_b32 s55, s3, 12')
def stage_tile(g, st):
    g(f's_add_u32 s54, s55, {st*32768}')
    g(f's_add_u32 m0, s55, {(st&3)*32768}')
    g('s_nop 0')
    for i in range(4):
        g(f'buffer_load_dwordx4 v2, s[32:35], s54 offen offset:{i*1024}{LD()} lds')
def init_dma_compute(g):
    kvb_srd(g)
    stage_tile(g, 0)
    stage_tile(g, 1)

def pf_lines(g, br, part, vt, vd):
    if part == 'x':
        lo, hi = (10, 11) if br else (4, 5)
        srd(g, 24, lo, hi, 1835008)
        g('s_bfe_u32 s46, s2, 0x20001')
        g('s_mul_i32 s46, s46, 458752')
        g('s_lshr_b32 s47, s2, 3')
        g('s_mul_i32 s47, s47, 14336')
        g('s_add_u32 s46, s46, s47')
        g(f'v_lshlrev_b32 v{vt}, 7, v0')
        g(f'v_add_u32 v{vt}, s46, v{vt}')
        g(f'buffer_load_dword v{vd}, v{vt}, s[24:27], 0 offen')
        g(f'v_add_u32 v{vt}, 8192, v{vt}')
        g('s_mov_b64 exec, 0x0000ffffffffffff') if False else None
        g('v_cmp_gt_u32 vcc, 48, v0')
        g('s_and_saveexec_b64 s[44:45], vcc')
        g(f'buffer_load_dword v{vd+1}, v{vt}, s[24:27], 0 offen')
        g('s_mov_b64 exec, s[44:45]')
    else:
        lo, hi = (12, 13) if br else (6, 7)
        srd(g, 24, lo, hi, 1204224)
        g('s_and_b32 s46, s2, 1')
        g('s_mul_i32 s46, s46, 1280')
        g('s_lshr_b32 s47, s2, 3')
        g('s_mul_i32 s47, s47, 37632')
        g('s_add_u32 s46, s46, s47')
        for k in range(3):
            g(f'v_add_u32 v{vt}, {64*k}, v0')
            g(f'v_mul_u32_u24 v{vt+1}, 5958, v{vt}')
            g(f'v_lshrrev_b32 v{vt+1}, 16, v{vt+1}')
            g(f'v_mul_u32_u24 v{vt+2}, 11, v{vt+1}')
            g(f'v_sub_u32 v{vt+2}, v{vt}, v{vt+2}')
            g(f'v_mul_u32_u24 v{vt+1}, 2688, v{vt+1}')
            g(f'v_lshl_add_u32 v{vt+1}, v{vt+2}, 7, v{vt+1}')
            g(f'v_add_u32 v{vt+1}, s46, v{vt+1}')
            if k == 2:
                g('v_cmp_gt_u32 vcc, 26, v0')
                g('s_and_saveexec_b64 s[44:45], vcc')
            g(f'buffer_load_dword v{vd+k}, v{vt+1}, s[24:27], 0 offen')
            if k == 2: g('s_mov_b64 exec, s[44:45]')

def PREFETCH_A(g):
    l1 = newlab('pf'); l2 = newlab('pf'); ld = newlab('pf')
    g('s_cmp_ge_u32 s3, 2')
    g(f's_cbranch_scc1 {l1}')
    srd(g, 24, 4, 5, 1835008)
    g('s_mul_i32 s46, s2, 7168')
    g('s_lshl_b32 s47, s3, 12')
    g('s_add_u32 s46, s46, s47')
    g('v_add_u32 v20, s46, v2')
    for i in range(4):
        g(f'buffer_load_dwordx4 v[{144+4*i}:{147+4*i}], v20, s[24:27], 0 offen offset:{i*1024}')
    g(f's_branch {ld}')
    g.label(l1)
    g('s_cmp_eq_u32 s3, 2')
    g(f's_cbranch_scc0 {l2}')
    srd(g, 24, 6, 7, 1204224)
    g('s_mul_i32 s46, s2, 4704')
    g('v_add_u32 v20, s46, v2')
    g('v_add_u32 v21, 4096, v20')
    for i in range(5):
        g(f'buffer_load_dwordx4 v[{144+4*i}:{147+4*i}], v{20 if i < 4 else 21}, s[24:27], 0 offen offset:{(i%4)*1024}')
    g(f's_branch {ld}')
    g.label(l2)
    g('s_mul_i32 s46, s2, 1568')
    g('v_add_u32 v20, s46, v2')
    srd(g, 24, 8, 9, 448*896)
    for i in range(2):
        g(f'buffer_load_dwordx4 v[{144+4*i}:{147+4*i}], v20, s[24:27], 0 offen offset:{i*1024}')
    srd(g, 28, 14, 15, 448*896)
    for i in range(2):
        g(f'buffer_load_dwordx4 v[{152+4*i}:{155+4*i}], v20, s[28:31], 0 offen offset:{i*1024}')
    g.label(ld)

def qkv_compute(g):
    g('v_and_b32 v4, 31, v0')
    g('s_lshl_b32 s44, s3, 5')
    g('v_add_u32 v4, s44, v4')
    g('v_lshlrev_b32 v4, 7, v4')
    g('v_bfe_u32 v5, v0, 1, 3')
    g('v_lshrrev_b32 v6, 5, v0')
    for ks in range(4):
        g(f'v_add_u32 v7, {2*ks}, v6')
        g('v_xor_b32 v7, v7, v5')
        g(f'v_lshl_add_u32 v{12+ks}, v7, 4, v4')
    g('v_bfe_u32 v4, v0, 2, 2')
    g('v_and_b32 v5, 3, v0')
    g('v_bfe_u32 v7, v0, 4, 1')
    g('v_lshlrev_b32 v7, 5, v7')
    g('v_lshl_add_u32 v7, v5, 3, v7')
    g('v_lshlrev_b32 v4, 1, v4')
    g('v_add_u32 v4, v4, v6')
    g(f'v_mul_u32_u24 v4, {2*WROW}, v4')
    g('v_add_u32 v4, v4, v7')
    g('v_add_u32 v16, 65536, v4')
    g('v_lshlrev_b32 v2, 4, v0')
    g('s_waitcnt lgkmcnt(0)')
    if OPT.get('wsoff'):
        g(f's_add_u32 s20, s20, {OPT["wsoff"] << 20}')
        g('s_addc_u32 s21, s21, 0')
    stamp(g, 1)
    srd(g, 32, 20, 21, 0x1000000)
    srd(g, 64, 20, 21, 0x4000, WS_CNT)
    g('s_or_b32 s44, s2, s3')
    g('s_cmp_lg_u32 s44, 0')
    g('s_cbranch_scc1 Lnoinit')
    g('v_lshlrev_b32 v20, 8, v0')
    g('v_mov_b32 v21, 0')
    g('buffer_store_dword v21, v20, s[64:67], 0 offen sc1')
    g('s_waitcnt vmcnt(0)')
    srd(g, 36, 18, 19, 256)
    g('s_mov_b64 exec, 1')
    g('v_mov_b32 v21, 1')
    g('v_mov_b32 v20, 0')
    g('buffer_store_dword v21, v20, s[36:39], 0 offen sc1')
    g('s_mov_b64 exec, -1')
    g.label('Lnoinit')
    if OPT.get('codepf'):
        g('s_getpc_b64 s[24:25]')
        g.label('Lpc_here')
        g(f's_sub_u32 s24, s24, Lpc_here-{NAME}')
        g('s_subb_u32 s25, s25, 0')
        g(f's_mov_b32 s26, Lexit-{NAME}')
        g('s_mov_b32 s27, 0x20000')
        g('s_lshr_b32 s46, s2, 3')
        g('s_lshl_b32 s46, s46, 2')
        g('s_add_u32 s46, s46, s3')
        g('s_lshl_b32 s46, s46, 10')
        g('v_add_u32 v20, s46, v2')
        g('buffer_load_dwordx4 v[144:147], v20, s[24:27], 0 offen')
    if OPT.get('probe'):
        g('s_mul_i32 s46, s2, 7168')
        g('v_add_u32 v20, s46, v2')
        stamp(g, 5, q=True)
        srd(g, 24, 10, 11, 1835008)
        g('buffer_load_dword v160, v20, s[24:27], 0 offen'); g('s_waitcnt vmcnt(0)'); stamp(g, 6, q=True)
        srd(g, 24, 12, 13, 1204224)
        g('s_mul_i32 s46, s2, 4704'); g('v_add_u32 v21, s46, v2')
        g('buffer_load_dword v160, v21, s[24:27], 0 offen'); g('s_waitcnt vmcnt(0)'); stamp(g, 7, q=True)
        srd(g, 24, 4, 5, 1835008)
        g('buffer_load_dword v160, v20, s[24:27], 0 offen'); g('s_waitcnt vmcnt(0)'); stamp(g, 8, q=True)
        g('buffer_load_dword v160, v20, s[24:27], 0 offen offset:2048'); g('s_waitcnt vmcnt(0)'); stamp(g, 9, q=True)
        srd(g, 24, 6, 7, 1204224)
        g('buffer_load_dword v160, v21, s[24:27], 0 offen'); g('s_waitcnt vmcnt(0)'); stamp(g, 10, q=True)
        g('buffer_load_dword v160, v21, s[24:27], 0 offen offset:2048'); g('s_waitcnt vmcnt(0)'); stamp(g, 11, q=True)
    if OPT.get('pf', 1) in (2, 4):
        l1 = newlab('pfb'); ld = newlab('pfb')
        g('s_cmp_ge_u32 s3, 2')
        g(f's_cbranch_scc1 {l1}')
        srd(g, 24, 10, 11, 1835008)
        g('s_mul_i32 s46, s2, 7168')
        g('s_lshl_b32 s47, s3, 12')
        g('s_add_u32 s46, s46, s47')
        g('v_add_u32 v20, s46, v2')
        for i in range(4):
            g(f'buffer_load_dwordx4 v[{160+4*i}:{163+4*i}], v20, s[24:27], 0 offen offset:{i*1024}')
        g(f's_branch {ld}')
        g.label(l1)
        srd(g, 24, 12, 13, 1204224)
        g('s_mul_i32 s46, s2, 4704')
        g('s_and_b32 s47, s3, 1')
        g('s_mul_i32 s47, s47, 3072')
        g('s_add_u32 s46, s46, s47')
        g('v_add_u32 v20, s46, v2')
        for i in range(3):
            g(f'buffer_load_dwordx4 v[{160+4*i}:{163+4*i}], v20, s[24:27], 0 offen offset:{i*1024}')
        g.label(ld)
    if OPT.get('pf', 1) == 4:
        PREFETCH_A(g)
    if OPT.get('pfw'):
        g('s_waitcnt vmcnt(%d)' % (0 if OPT.get('pf') != 4 else 4))
        g('s_barrier')
    if OPT.get('pf', 1) == 3:
        l1 = newlab('pf3'); l2 = newlab('pf3'); ld = newlab('pf3')
        g('s_cmp_eq_u32 s3, 0')
        g(f's_cbranch_scc0 {l1}')
        pf_lines(g, 1, 'x', 20, 160)
        g(f's_branch {ld}')
        g.label(l1)
        g('s_cmp_eq_u32 s3, 1')
        g(f's_cbranch_scc0 {ld}')
        pf_lines(g, 1, 'w', 20, 160)
        g.label(ld)
    if OPT.get('tw'):
        g('s_mov_b64 exec, 1')
        g('v_mov_b32 v20, 0')
        g('v_mov_b32 v21, 0')
        for br_, c0r in ((1, 's23'), (0, 's69')):
            g(f's_mul_i32 s46, {c0r}, 3')
            for t in range(3):
                g(f's_add_u32 s47, s46, {t}')
                g('s_and_b32 s44, s47, 15')
                g('s_lshl_b32 s44, s44, 6')
                g('s_lshl_b32 s45, s22, 2')
                g('s_add_u32 s44, s44, s45')
                g('s_add_u32 s44, s44, s3')
                if br_: g('s_add_u32 s44, s44, 1024')
                g('s_cmp_lt_u32 s47, 16')
                g('s_cselect_b32 s45, 11, 12')
                g(f's_cselect_b32 s43, {WS_Q}, {WS_KV}')
                g('s_lshl_b32 s44, s44, s45')
                g('s_add_u32 s44, s44, s43')
                g('s_cmp_ge_u32 s47, 32')
                g('s_cselect_b32 s45, 2048, 0')
                g('s_add_u32 s44, s44, s45')
                g('buffer_store_dword v21, v20, s[32:35], s44 offen sc1')
        g('s_and_b32 s44, s2, 7')
        g('s_bfe_u32 s45, s2, 0x10003')
        g('s_lshl_b32 s44, s44, 1')
        g('s_add_u32 s44, s44, s45')
        g('s_lshr_b32 s45, s2, 4')
        g('s_lshl_b32 s45, s45, 2')
        g('s_add_u32 s45, s45, s3')
        g('s_lshl_b32 s45, s45, 4')
        g('s_add_u32 s45, s45, s44')
        g('s_lshl_b32 s45, s45, 11')
        g(f's_add_u32 s45, s45, {WS_O}')
        g('buffer_store_dword v21, v20, s[32:35], s45 offen sc1')
        g('s_add_u32 s45, s45, 0x200000')
        g('buffer_store_dword v21, v20, s[32:35], s45 offen sc1')
        g('s_mov_b64 exec, -1')
    srd(g, 36, 18, 19, 256)
    g('v_mov_b32 v30, 0')
    g('buffer_load_dword v31, v30, s[36:39], 0 offen sc1')
    def prefetch():
        if not OPT.get('pf', 1) or OPT.get('pf') == 4: return
        if OPT.get('pf', 1) == 3:
            l1 = newlab('pf3'); l2 = newlab('pf3'); ld = newlab('pf3')
            g('s_cmp_eq_u32 s3, 2')
            g(f's_cbranch_scc0 {l1}')
            pf_lines(g, 0, 'x', 20, 164)
            g(f's_branch {ld}')
            g.label(l1)
            g('s_cmp_eq_u32 s3, 3')
            g(f's_cbranch_scc0 {l2}')
            pf_lines(g, 0, 'w', 20, 164)
            g(f's_branch {ld}')
            g.label(l2)
            g('s_cmp_eq_u32 s3, 0')
            g('s_cselect_b32 s24, s8, s14')
            g('s_cselect_b32 s25, s9, s15')
            g(f's_mov_b32 s26, {448*896}')
            g('s_mov_b32 s27, 0x20000')
            g('s_mul_i32 s46, s2, 1568')
            g('v_add_u32 v20, s46, v2')
            for i in range(2):
                g(f'buffer_load_dwordx4 v[{168+4*i}:{171+4*i}], v20, s[24:27], 0 offen offset:{i*1024}')
            g.label(ld)
            return
        l1 = newlab('pf'); l2 = newlab('pf'); ld = newlab('pf')
        g('s_cmp_ge_u32 s3, 2')
        g(f's_cbranch_scc1 {l1}')
        srd(g, 24, 4, 5, 1835008)
        g('s_mul_i32 s46, s2, 7168')
        g('s_lshl_b32 s47, s3, 12')
        g('s_add_u32 s46, s46, s47')
        g('v_add_u32 v20, s46, v2')
        for i in range(4):
            g(f'buffer_load_dwordx4 v[{144+4*i}:{147+4*i}], v20, s[24:27], 0 offen offset:{i*1024}')
        g(f's_branch {ld}')
        g.label(l1)
        g('s_cmp_eq_u32 s3, 2')
        g(f's_cbranch_scc0 {l2}')
        srd(g, 24, 6, 7, 1204224)
        g('s_mul_i32 s46, s2, 4704')
        g('v_add_u32 v20, s46, v2')
        g('v_add_u32 v21, 4096, v20')
        for i in range(5):
            g(f'buffer_load_dwordx4 v[{144+4*i}:{147+4*i}], v{20 if i < 4 else 21}, s[24:27], 0 offen offset:{(i%4)*1024}')
        g(f's_branch {ld}')
        g.label(l2)
        g('s_mul_i32 s46, s2, 1568')
        g('v_add_u32 v20, s46, v2')
        srd(g, 24, 8, 9, 448*896)
        for i in range(2):
            g(f'buffer_load_dwordx4 v[{144+4*i}:{147+4*i}], v20, s[24:27], 0 offen offset:{i*1024}')
        srd(g, 28, 14, 15, 448*896)
        for i in range(2):
            g(f'buffer_load_dwordx4 v[{152+4*i}:{155+4*i}], v20, s[28:31], 0 offen offset:{i*1024}')
        g.label(ld)
    XF = 80; WF = 88
    ACCS = {1: 32, 0: 144}
    PS = {1: 112, 0: 208}
    g('v_and_b32 v18, 31, v0')
    g('v_cmp_eq_u32 vcc, 28, v18')
    g('v_mov_b32 v19, 0x3f803f80')
    g('s_nop 0')
    g('v_cndmask_b32_e64 v18, 0, v19, vcc')
    g('s_mov_b32 s60, 0')
    g('s_mov_b32 s61, -1')
    g('s_mov_b32 s58, 0xf0000000')
    g('s_mov_b32 s59, 0xf0000000')
    def reads(n, buf, part):
        kc, ks = divmod(n, 4)
        st = kc % 4
        if part == 0:
            g(f'ds_read_b128 {vr(XF+4*buf,4)}, v{12+ks} offset:{st*16384}')
        for jj in range(2):
            off = st * WSTG + (ks*16 + jj) * WROW + part * 56
            g(f'ds_read_b64_tr_b16 {vr(WF+12*buf+4*part+2*jj,2)}, v16 offset:{off}')
    def mfma1(br, buf, t, first, types2):
        types = types2[br]
        x = XF + 4*buf; wf = WF + 12*buf + 4*t; d = ACCS[br] + 16*t
        c = None if first else d
        g(mfma(d, wf, x, c) if types[t] == 'QK' else mfma(d, x, wf, c))
    def epilogue_list(br, types2):
        types = types2[br]
        c0 = 's52' if br else 's63'
        L = []
        A = L.append
        ACC = ACCS[br]; P = PS[br]
        A('s_lshl_b32 s54, s22, 2')
        A('s_add_u32 s54, s54, s3')
        if br: A('s_add_u32 s54, s54, 1024')
        for t in range(3):
            a = ACC + 16*t; p = P + 8*t
            so = (48, 49, 53)[t]
            A(f's_add_u32 s62, {c0}, {t}')
            A('s_and_b32 s56, s62, 15')
            A('s_lshl_b32 s56, s56, 6')
            A('s_add_u32 s56, s56, s54')
            if types[t] == 'QK':
                A('s_cmp_lt_u32 s62, 16\n' + f's_cselect_b32 s57, {f32bits(QSCALE):#x}, 1.0\n' + 's_cselect_b32 s45, 0, 0x3f80\n' +
                  's_cselect_b32 s46, 11, 12\n' + f's_cselect_b32 s47, {WS_Q}, {WS_KV}')
                A('s_lshl_b32 s56, s56, s46')
                A(f's_add_u32 s{so}, s56, s47')
                A('v_mov_b32 v19, s45')
                for r in range(16): A(f'v_mul_f32 v{a+r}, s57, v{a+r}')
                for i in range(8): A(f'v_cvt_pk_bf16_f32 v{p+i}, v{a+2*i}, v{a+2*i+1}')
                A(f'v_cndmask_b32_e64 v{p+6}, v{p+6}, v19, s[60:61]')
                A(f'v_cndmask_b32_e64 v{p+7}, v{p+7}, 0, s[60:61]')
            else:
                A('s_lshl_b32 s56, s56, 12')
                A(f's_add_u32 s{so}, s56, {WS_KV + 2048}')
                for i in range(8): A(f'v_cvt_pk_bf16_f32 v{p+i}, v{a+2*i}, v{a+2*i+1}')
                for i in range(8): A(f'v_cndmask_b32_e64 v{p+i}, v{p+i}, v18, s[58:59]')
            if br:
                A('s_nop 1\n' + f'buffer_store_dwordx4 {vr(p,4)}, v2, s[32:35], s{so} offen{ST()}')
                A(f'buffer_store_dwordx4 {vr(p+4,4)}, v2, s[32:35], s{so} offen offset:1024{ST()}')
        return L
    g('s_mul_i32 s52, s23, 3')
    g('s_mul_i32 s63, s69, 3')
    T0, T1, T2 = ('QK','QK','QK'), ('QK','QK','V'), ('V','V','V')
    variants = [{1: T0, 0: T0}, {1: T0, 0: T1}, {1: T1, 0: T2}, {1: T2, 0: T2}, {1: T2, 0: T0}]
    g('s_cmp_eq_u32 s23, 9')
    g('s_cbranch_scc1 Lqkv_v1')
    g('s_cmp_eq_u32 s23, 10')
    g('s_cbranch_scc1 Lqkv_v2')
    g('s_cmp_eq_u32 s23, 15')
    g('s_cbranch_scc1 Lqkv_v4')
    g('s_cmp_gt_u32 s23, 10')
    g('s_cbranch_scc1 Lqkv_v3')
    NS = NCH * 4
    SIG_AT = OPT.get('sig_at', 44)
    for vi, types in enumerate(variants):
        if vi: g.label(f'Lqkv_v{vi}')
        g('s_barrier')
        if vi == 0: stamp(g, 2)
        for part in range(3): reads(0, 0, part)
        prefetch()
        epi = []
        EP0, EPN = OPT.get('ep0', 28), OPT.get('epn', 3)
        def fill(k):
            for _ in range(k):
                if epi: g(epi.pop(0))
        for n in range(NS):
            br = 1 if n < 28 else 0
            boundary = (n + 1) % 4 == 0 and n + 1 < NS
            nxt = n + 1 < NS
            buf = n & 1
            first = n % 28 == 0
            if n == EP0:
                epi = ['s_nop 7'] + epilogue_list(1, types)
                per = -(-len(epi) // (EPN * 3))
            inter = EP0 <= n < EP0 + EPN
            if boundary:
                g('s_waitcnt vmcnt(0) lgkmcnt(0)' if n + 1 in (SIG_AT, 24) else 's_waitcnt lgkmcnt(0)')
                g('s_barrier')
                if OPT.get('qkvst') and vi == 0:
                    c1 = (n + 1) // 4
                    m = {2: 5, 4: 6, 6: 7, 8: 8, 10: 9, 11: 10, 12: 13}
                    if c1 in m: stamp(g, m[c1])
                if n + 1 == SIG_AT:
                    sk = newlab('sigB'); ok = newlab('inited'); lp = newlab('initspin')
                    g('s_cmp_lg_u32 s3, 0')
                    g(f's_cbranch_scc1 {sk}')
                    g('v_readfirstlane_b32 s47, v31')
                    g('s_cmp_lg_u32 s47, 0')
                    g(f's_cbranch_scc1 {ok}')
                    g(f's_mov_b32 s68, {OPT["spin"]}')
                    g.label(lp)
                    g('buffer_load_dword v31, v30, s[36:39], 0 offen sc1')
                    g('s_waitcnt vmcnt(0)')
                    g('v_readfirstlane_b32 s47, v31')
                    g('s_cmp_lg_u32 s47, 0')
                    g(f's_cbranch_scc1 {ok}')
                    g('s_sub_u32 s68, s68, 1')
                    g('s_cmp_lg_u32 s68, 0')
                    g(f's_cbranch_scc1 {lp}')
                    g.label(ok)
                    g('s_mov_b64 exec, 1')
                    g('v_mov_b32 v1, 1')
                    g('s_lshl_b32 s47, s23, 8')
                    g(f's_add_u32 s47, s47, {CNT_B}')
                    g('v_mov_b32 v29, s47')
                    g('buffer_atomic_add v1, v29, s[64:67], 0 offen sc1')
                    g('s_mov_b64 exec, -1')
                    g.label(sk)
            else:
                g('s_waitcnt lgkmcnt(4)')
            mfma1(br, buf, 0, first, types)
            if nxt: reads(n + 1, buf ^ 1, 0)
            if inter: fill(per)
            if not boundary: g(f's_waitcnt lgkmcnt({5 if nxt else 2})')
            mfma1(br, buf, 1, first, types)
            if nxt: reads(n + 1, buf ^ 1, 1)
            if inter: fill(per)
            if not boundary: g(f's_waitcnt lgkmcnt({5 if nxt else 0})')
            mfma1(br, buf, 2, first, types)
            if nxt: reads(n + 1, buf ^ 1, 2)
            if inter: fill(per)
            if n == 27 and vi == 0: stamp(g, 3)
            if OPT.get('sbar', 0) and n == EP0 + EPN - 1:
                g('s_barrier')
        assert not epi
        if vi == 0: stamp(g, 14)
        g('s_barrier')
        if vi == 0: stamp(g, 4)
        init_dma_compute(g)
        for x in epilogue_list(0, types): g(x)
        if vi < 4: g('s_branch Lqkv_fin')
    g.label('Lqkv_fin')
    g('s_branch Lattn_setup')

def qkv_loader(g):
    g.label('Lloader')
    g('s_sub_u32 s43, s3, 4')
    g('s_lshl_b32 s44, s22, 7')
    g('s_lshl_b32 s45, s43, 5')
    g('s_add_u32 s44, s44, s45')
    g('v_lshrrev_b32 v10, 3, v0')
    g('v_add_u32 v10, s44, v10')
    g('v_mul_u32_u24 v10, 896, v10')
    g('v_lshrrev_b32 v11, 4, v0')
    g('v_and_b32 v12, 7, v0')
    g('v_xor_b32 v12, v12, v11')
    g('v_lshl_add_u32 v2, v12, 4, v10')
    g('v_xor_b32 v12, 4, v12')
    g('v_lshl_add_u32 v3, v12, 4, v10')
    g('v_add_u32 v3, 7168, v3')
    g('v_add_u32 v4, 14336, v2')
    g('v_add_u32 v5, 14336, v3')
    g('s_lshl_b32 s46, s43, 12')
    g('s_lshl_b32 s47, s43, 10')
    g('s_add_u32 s47, s47, 65536')
    g('s_lshl_b32 s44, s43, 6')
    g('s_mul_i32 s50, s23, 168')
    g('s_mul_i32 s51, s69, 168')
    def wcalc(n):
        g('v_add_u32 v10, s44, v0')
        if n: g(f'v_add_u32 v10, {256*n}, v10')
        g('v_mul_u32_u24 v11, 5958, v10')
        g('v_lshrrev_b32 v11, 16, v11')
        g('v_mul_u32_u24 v12, 11, v11')
        g('v_sub_u32 v12, v10, v12')
        g('v_and_b32 v13, 48, v11')
        g('v_and_b32 v14, 3, v11')
        g('v_lshl_add_u32 v13, v14, 2, v13')
        g('v_bfe_u32 v14, v11, 2, 2')
        g('v_add_u32 v13, v13, v14')
        g('v_mul_u32_u24 v13, 2688, v13')
        g(f'v_lshl_add_u32 v{6+n}, v12, 4, v13')
    wcalc(0)
    g('s_waitcnt lgkmcnt(0)')
    if OPT.get('wsoff'):
        g(f's_add_u32 s20, s20, {OPT["wsoff"] << 20}')
        g('s_addc_u32 s21, s21, 0')
    srd(g, 24, 10, 11, 1835008)
    srd(g, 28, 12, 13, 1204224)
    def issueX(c):
        kc = c % 7; st = c % 4
        sx = 24 if c < 7 else 32
        g(f's_mov_b32 s48, {kc*128}')
        for e in range(4):
            g(f's_add_u32 m0, s46, {st*16384 + e*1024}')
            g('s_nop 0')
            g(f'buffer_load_dwordx4 v{2+e}, s[{sx}:{sx+3}], s48 offen{INL()} lds')
    def issueW(c, ns=(0, 1, 2)):
        kc = c % 7; st = c % 4
        sw = 28 if c < 7 else 36
        g(f's_add_u32 s49, {"s50" if c < 7 else "s51"}, {kc*64*2688}')
        for n in ns:
            if n == 2:
                sk = newlab('qs')
                g('s_cmp_eq_u32 s43, 3')
                g(f's_cbranch_scc1 {sk}')
            g(f's_add_u32 m0, s47, {st*WSTG + n*4096}')
            g('s_nop 0')
            g(f'buffer_load_dwordx4 v{6+n}, s[{sw}:{sw+3}], s49 offen{INL()} lds')
            if n == 2: g.label(sk)
    def issue(c):
        issueX(c); issueW(c)
    if OPT.get('pfw') == 1: g('s_barrier')
    issueX(0)
    issueW(0, (0,))
    wcalc(1); issueW(0, (1,))
    wcalc(2); issueW(0, (2,))
    srd(g, 32, 4, 5, 1835008)
    srd(g, 36, 6, 7, 1204224)
    srd(g, 64, 20, 21, 0x4000, WS_CNT)
    g('s_and_b32 s40, s2, 7')
    g('s_bfe_u32 s41, s2, 0x10003')
    g('s_lshl_b32 s40, s40, 1')
    g('s_add_u32 s40, s40, s41')
    g('v_min_u32 v30, 2, v0')
    g('v_lshlrev_b32 v30, 4, v30')
    g('v_add_u32 v30, s40, v30')
    g('v_mul_u32_u24 v30, 43, v30')
    g('v_lshrrev_b32 v30, 7, v30')
    g('v_lshlrev_b32 v31, 8, v30')
    g(f'v_add_u32 v203, {CNT_B}, v31')
    if OPT.get('pfw') == 2: g('s_barrier')
    for c in range(1, 3): issue(c)
    issued = 2
    HOLD = OPT.get('hold', 9) if OPT.get('sbar', 0) else 99
    for c in range(NCH):
        rem = issued - c
        if c == 13:
            skq = newlab('w13'); skr = newlab('w13')
            g('s_cmp_lg_u32 s3, 4')
            g(f's_cbranch_scc1 {skq}')
            g('s_waitcnt vmcnt(1)')
            g(f's_branch {skr}')
            g.label(skq)
            g('s_waitcnt vmcnt(0)')
            g.label(skr)
        else:
            g(f's_waitcnt vmcnt({6*rem})')
        g('s_barrier')
        if c + 3 < NCH and not (HOLD <= c + 3 <= 10):
            issue(c + 3); issued = c + 3
        if OPT.get('sbar', 0) and c == 7:
            g('s_barrier')
            for cc in range(HOLD, 11):
                issue(cc); issued = cc
        if c == 10: attn_setup(g)
        if c == 11: set_mask(g, 32, 'first')
        if c == 12:
            skp = newlab('p12')
            g('s_cmp_lg_u32 s3, 4')
            g(f's_cbranch_scc1 {skp}')
            g('buffer_load_dword v201, v203, s[64:67], 0 offen sc1')
            g.label(skp)
    g('s_cmp_lg_u32 s3, 4')
    g('s_cbranch_scc1 Lh1_polled')
    g('s_waitcnt vmcnt(0)')
    g('v_cmp_ne_u32 vcc, 16, v201')
    g('s_nop 4')
    g('s_cbranch_vccz Lh1_polled')
    spin_until(g, 201, 203, 16)
    g.label('Lh1_polled')
    g('s_barrier')
    stamp(g, 4)
    g('s_add_u32 s47, s44, 0x200000')
    g('s_mov_b32 m0, s51')
    g('s_nop 0')
    for i in range(2):
        g(f'buffer_load_dwordx4 v2, s[24:27], s47 offen offset:{i*1024}{LD()} lds')
    stage_tile(g, 0)
    stage_tile(g, 1)
    stamp(g, 5)
    g('s_waitcnt vmcnt(4)')
    g('s_barrier')
    g('s_branch Lattn_go')

K2_SCR = 131072
QL = 200
def set_mask(g, dst, kind):
    for r in range(16):
        br_ = (r & 3) + 8 * (r >> 2)
        op = 'v_cmp_le_i32' if kind == 'diag' else 'v_cmp_gt_i32'
        g(f'{op} vcc, {br_}, v24')
        g('s_nop 1')
        g(f'v_cndmask_b32_e64 v{dst+r}, v25, 0, vcc')
def attn_setup(g):
    kvb_srd(g)
    g('s_lshr_b32 s41, s2, 4')
    g('s_and_b32 s42, s3, 3')
    g('s_lshr_b32 s43, s3, 2')
    g('v_lshlrev_b32 v2, 4, v0')
    g('s_lshl_b32 s44, s40, 6')
    g('s_lshl_b32 s45, s41, 2')
    g('s_add_u32 s45, s45, s42')
    g('s_add_u32 s44, s44, s45')
    g('s_lshl_b32 s44, s44, 11')
    srd(g, 24, 20, 21, 0x400000)
    g('s_sub_u32 s28, s32, 0x400000')
    g('s_subb_u32 s29, s33, 0')
    g('s_mov_b32 s30, 0x40000')
    g('s_mov_b32 s31, 0x20000')
    srd(g, 36, 20, 21, 0x400000, WS_O)
    g('v_min_u32 v30, 2, v0')
    g('v_lshlrev_b32 v30, 4, v30')
    g('v_add_u32 v30, s40, v30')
    g('v_mul_u32_u24 v30, 43, v30')
    g('v_lshrrev_b32 v30, 7, v30')
    g('v_lshlrev_b32 v31, 8, v30')
    g(f'v_add_u32 v203, {CNT_B}, v31')
    g('s_lshl_b32 s47, s41, 2')
    g('s_add_u32 s47, s47, s3')
    g('s_sub_u32 s47, s47, 8')
    g('s_lshl_b32 s50, s47, 12')
    g('s_cmp_lt_i32 s47, 0')
    g('s_cselect_b32 s50, 0x40000000, s50')
    g('v_add_u32 v28, s50, v2')
    g('s_add_u32 s47, s47, 8')
    g('s_lshl_b32 s50, s47, 12')
    g('v_add_u32 v29, s50, v2')
    g('s_lshl_b32 s47, s42, 12')
    g('v_add_u32 v3, s47, v2')
    g('s_lshl_b32 s47, s43, 14')
    g('v_add_u32 v4, s47, v2')
    g('v_add_u32 v5, 32768, v4')
    g(f'v_add_u32 v6, {K2_SCR}, v3')
    g('s_lshl_b32 s47, s42, 8')
    g(f's_add_u32 s47, s47, {K2_SCR+16384}')
    g('v_lshlrev_b32 v7, 2, v0')
    g('v_add_u32 v7, s47, v7')
    g('s_lshl_b32 s47, s42, 11')
    g(f's_add_u32 s51, s47, {K2_SCR}')
    g(f'v_add_u32 v{QL}, s51, v2')
    g('v_and_b32 v24, 31, v0')
    g('v_lshrrev_b32 v25, 5, v0')
    g('v_lshlrev_b32 v25, 2, v25')
    g('v_sub_u32 v24, v24, v25')
    g(f'v_mov_b32 v25, {NEGBIG:#x}')
    g('s_mov_b32 s60, 0')
    g('s_mov_b32 s61, -1')
    srd(g, 56, 20, 21, 0x1000000)

def phase_attn(g):
    g.label('Lattn_setup')
    QA = 8; QB = 16; MASK = 32; S0 = 48; S1 = 64; P = 80; OA = 88; OB = 104; KF = 120; VF = 128; T = 136
    TK = 144; TS = 152
    MNA = 26; MNB = 27
    SB = [S0, S1]
    attn_setup(g)
    set_mask(g, MASK, 'diag')
    stamp(g, 5)
    g('s_waitcnt vmcnt(4)')
    g('s_barrier')
    g.label('Lattn_go')
    g('s_cmp_eq_u32 s43, 99') if False else None
    def dma4(vreg, s, s_goff, s_m0, n=4, first=0):
        g(f's_mov_b32 m0, {s_m0}')
        g('s_nop 0')
        for i in range(first, first + n):
            g(f'buffer_load_dwordx4 v{vreg}, s[{s}:{s+3}], {s_goff} offen offset:{i*1024}{LD()} lds')
    stamp(g, 6)
    g(f'ds_read_b128 {vr(QB,4)}, v{QL}')
    g(f'ds_read_b128 {vr(QB+4,4)}, v{QL} offset:1024')

    def rowmax(sbuf, t):
        g(f'v_max3_f32 v{t}, v{sbuf}, v{sbuf+1}, v{sbuf+2}')
        for r in range(3, 15, 2):
            g(f'v_max3_f32 v{t}, v{t}, v{sbuf+r}, v{sbuf+r+1}')
        g(f'v_max_f32 v{t}, v{t}, v{sbuf+15}')
        g(f'v_mov_b32 v{t+1}, v{t}')
        g('s_nop 1')
        g(f'v_permlane32_swap_b32 v{t}, v{t+1}')
        g('s_nop 1')
        g(f'v_max_f32 v{t}, v{t}, v{t+1}')
    def set_standin(sbuf, q, mneg):
        t = T
        rowmax(sbuf, t)
        g(f'v_sub_f32 v{t}, 0, v{t}')
        g(f'v_cvt_pk_bf16_f32 v{t}, v{t}, 0')
        g(f'v_lshlrev_b32 v{mneg}, 16, v{t}')
        g('s_mov_b64 exec, s[60:61]')
        g(f'v_mov_b32 v{q+4+2}, v{t}')
        g('s_mov_b64 exec, -1')
    def slots(br, kh):
        if br == 1: return (2048, 0, None) if kh == 0 else (0, 1024, 2048)
        return (0, 1024, None) if kh == 0 else (2048, 0, 3072)
    def write_half(kh, br, O, mn):
        oo, mo, lo = slots(br, kh)
        src = O + 8 if kh == 0 else O
        g(f'ds_write_b128 v6, {vr(src,4)} offset:{oo}')
        g(f'ds_write_b128 v6, {vr(src+4,4)} offset:{oo+1024}')
        g(f'ds_write_b32 v7, v{mn} offset:{mo}')
        if kh == 1: g(f'ds_write_b32 v7, v{O+12} offset:{lo}')
    FB = 168
    def finish_half(tag, kh, br, O, mn, q, tmp):
        base = O + 8*kh
        oo, mo, lo = slots(br, 1 - kh)
        g(f'ds_read_b128 {vr(tmp,4)}, v6 offset:{oo}')
        g(f'ds_read_b128 {vr(tmp+4,4)}, v6 offset:{oo+1024}')
        g(f'ds_read_b32 v{T}, v7 offset:{mo}')
        if kh == 0: g(f'ds_read_b32 v{T+5}, v7 offset:{lo}')
        lp = T + 5 if kh == 0 else tmp + 4
        g('s_waitcnt lgkmcnt(0)')
        g(f'v_min_f32 v{T+1}, v{mn}, v{T}')
        g(f'v_sub_f32 v{T+2}, v{T+1}, v{mn}')
        g(f'v_sub_f32 v{T+3}, v{T+1}, v{T}')
        g(f'v_exp_f32 v{T+2}, v{T+2}')
        g(f'v_exp_f32 v{T+3}, v{T+3}')
        g('s_nop 0')
        g(f'v_mul_f32 v{T}, v{O+12}, v{T+2}')
        g(f'v_fmac_f32 v{T}, v{lp}, v{T+3}')
        for r in range(8): g(f'v_mul_f32 v{base+r}, v{base+r}, v{T+2}')
        g(f'v_mov_b32 v{T+1}, v{T}')
        for r in range(8): g(f'v_fmac_f32 v{base+r}, v{tmp+r}, v{T+3}')
        g(f'v_permlane32_swap_b32 v{T}, v{T+1}')
        g(f'v_mul_f32 v{T+4}, 0, v{base}')
        for r in range(1, 8): g(f'v_fmac_f32 v{T+4}, 0, v{base+r}')
        g(f'v_add_f32 v{T+4}, v{T+4}, v{T+1}')
        g(f's_mov_b32 s47, {f32bits(2.0**100):#x}')
        g(f'v_cmp_ngt_f32 vcc, s47, v{T+4}')
        g('s_nop 4')
        g(f's_cbranch_vccz L{tag}_ok')
        fallback(tag, br, O, q)
        g(f'v_mov_b32 v{T}, v{O+12}')
        g(f'v_mov_b32 v{T+1}, v{O+12}')
        g('s_nop 1')
        g(f'v_permlane32_swap_b32 v{T}, v{T+1}')
        g('s_nop 1')
        g.label(f'L{tag}_ok')
        g(f'v_rcp_f32 v{T+1}, v{T+1}')
        g('s_lshl_b32 s47, s41, 2')
        g('s_add_u32 s47, s47, s42')
        for r in range(8): g(f'v_mul_f32 v{base+r}, v{base+r}, v{T+1}')
        g(f's_add_u32 s47, s47, {br*64}')
        g('s_lshl_b32 s47, s47, 4')
        g('s_add_u32 s47, s47, s40')
        g('s_lshl_b32 s47, s47, 11')
        for i in range(4): g(f'v_cvt_pk_bf16_f32 v{tmp+i}, v{base+2*i}, v{base+2*i+1}')
        if kh == 1:
            g(f'v_cndmask_b32_e64 v{tmp+2}, v{tmp+2}, 0, s[60:61]')
            g(f'v_cndmask_b32_e64 v{tmp+3}, v{tmp+3}, 0, s[60:61]')
        g('s_nop 1')
        g(f'buffer_store_dwordx4 {vr(tmp,4)}, v2, s[36:39], s47 offen offset:{kh*1024}{ST()}')
        g('s_nop 1')
    def fallback(tag, br, O, q):
        FS, FK, FV, FP, FQ, Fm = FB, FB+16, FB+24, FB+32, FB+40, FB+48
        s = 28 if br == 0 else 32
        for i in range(8): g(f'v_mov_b32 v{FQ+i}, v{q+i}')
        g('s_mov_b64 exec, s[60:61]')
        g(f'v_mov_b32 v{FQ+6}, 0')
        g('s_mov_b64 exec, -1')
        for r in range(16): g(f'v_mov_b32 v{O+r}, 0')
        g(f'v_mov_b32 v{Fm}, v25')
        if br == 0:
            g('s_lshl_b32 s52, s41, 2')
            g('s_add_u32 s52, s52, s42')
            g('s_sub_u32 s53, s52, 8')
            g('s_mov_b32 s54, s52')
        else:
            g('s_mov_b32 s54, 63')
        g.label(f'L{tag}_fb_loop')
        g('s_lshl_b32 s55, s54, 12')
        for i in range(2):
            g(f'buffer_load_dwordx4 {vr(FK+4*i,4)}, v2, s[{s}:{s+3}], s55 offen offset:{i*1024}{LD()}')
            g(f'buffer_load_dwordx4 {vr(FV+4*i,4)}, v2, s[{s}:{s+3}], s55 offen offset:{2048+i*1024}{LD()}')
        if br == 0:
            g('s_cmp_eq_u32 s54, s52')
            g(f's_cbranch_scc1 L{tag}_fb_diag')
            g('s_cmp_eq_u32 s54, s53')
            g(f's_cbranch_scc1 L{tag}_fb_first')
        for r in range(16): g(f'v_mov_b32 v{FS+r}, 0')
        if br == 0:
            g(f's_branch L{tag}_fb_go')
            g.label(f'L{tag}_fb_diag')
            set_mask(g, FS, 'diag')
            g(f's_branch L{tag}_fb_go')
            g.label(f'L{tag}_fb_first')
            set_mask(g, FS, 'first')
            g.label(f'L{tag}_fb_go')
        g('s_waitcnt vmcnt(0)')
        g('s_nop 1')
        g(mfma(FS, FK, FQ, FS))
        g(mfma(FS, FK+4, FQ+4, FS))
        g('s_nop 15')
        rowmax(FS, Fm+1)
        g(f'v_max_f32 v{Fm+1}, v{Fm+1}, v{Fm}')
        g(f'v_sub_f32 v{Fm+2}, v{Fm}, v{Fm+1}')
        g(f'v_exp_f32 v{Fm+2}, v{Fm+2}')
        g(f'v_mov_b32 v{Fm}, v{Fm+1}')
        for r in range(16): g(f'v_sub_f32 v{FS+r}, v{FS+r}, v{Fm}')
        for r in range(16): g(f'v_exp_f32 v{FS+r}, v{FS+r}')
        for r in range(16): g(f'v_mul_f32 v{O+r}, v{O+r}, v{Fm+2}')
        for i in range(8): g(f'v_cvt_pk_bf16_f32 v{FP+i}, v{FS+2*i}, v{FS+2*i+1}')
        g('s_nop 1')
        g(mfma(O, FV, FP, O))
        g(mfma(O, FV+4, FP+4, O))
        g('s_nop 15')
        g('s_sub_u32 s54, s54, 1')
        g('s_cmp_lt_i32 s54, 0')
        g(f's_cbranch_scc1 L{tag}_fb_end')
        if br == 0:
            g('s_cmp_lt_i32 s54, s53')
            g(f's_cbranch_scc1 L{tag}_fb_end')
        g(f's_branch L{tag}_fb_loop')
        g.label(f'L{tag}_fb_end')

    g('s_cmp_eq_u32 s43, 0')
    g('s_cbranch_scc0 Lattn_kh1')

    def path(kh):
        tag = f'K{kh}'
        unitsA = [8, 7, 6, 5, 4] if kh == 0 else [3, 2, 1, 0]
        nA = len(unitsA); N = 32 + nA
        def unit(i):
            if i >= 32:
                u = unitsA[i - 32]
                masked = (kh == 0 and u == 8) or (kh == 1 and u == 0)
                return dict(base=3, off=u*4096, Q=QA, O=OA, C=MASK if masked else None, first=(i == 32))
            return dict(b=i, Q=QB, O=OB, C=None, first=(i == 0))
        def addr(i, cs):
            u = unit(i)
            if 'base' in u: return u['base'], u['off']
            b = u['b']; s = b >> 2
            if s == cs: return 4, (b & 3) * 4096
            assert s == cs + 1
            return 5, (b & 3) * 4096
        def rdK(i, cs, dst=KF):
            r, off = addr(i, cs)
            g(f'ds_read_b128 {vr(dst,4)}, v{r} offset:{off}')
            g(f'ds_read_b128 {vr(dst+4,4)}, v{r} offset:{off+1024}')
        def rdV(i, f, cs):
            r, off = addr(i, cs)
            g(f'ds_read_b128 {vr(VF+4*f,4)}, v{r} offset:{off+2048+f*1024}')
        rdK(0, 0)
        g('s_waitcnt lgkmcnt(0)')
        g(mfma(S0, KF, QB, None))
        g(mfma(S0, KF+4, QB+4, S0))
        g('s_nop 15')
        set_standin(S0, QB, MNB)
        g('s_nop 1')
        g(mfma(S0, KF, QB, None))
        g(mfma(S0, KF+4, QB+4, S0))
        rdK(1, 0)
        rdV(0, 0, 0)
        g('s_nop 15')
        if kh == 0: stamp(g, 7)
        if OPT.get('attst'): stamp(g, 2, q=True)
        def wo_piece(it):
            if it == 7:
                sk = newlab('wo7')
                g('s_cmp_lg_u32 s3, 0')
                g(f's_cbranch_scc1 {sk}')
                g(f's_add_u32 m0, s45, {65536 + it*8192}')
                g(f'v_add_u32 v31, {it*64*896}, v30')
                g('buffer_load_dwordx4 v31, s[56:59], 0 offen lds')
                g.label(sk)
            else:
                g(f's_add_u32 m0, s45, {65536 + it*8192}')
                g(f's_mov_b32 s50, {it*64*896}')
                g('buffer_load_dwordx4 v30, s[56:59], s50 offen lds')
        def wo_setup():
            g('s_mov_b32 s56, s14')
            g('s_mov_b32 s57, s15')
            g(f's_mov_b32 s58, {448*896}')
            g('s_mov_b32 s59, 0x20000')
            g('v_lshrrev_b32 v30, 3, v0')
            g('v_and_b32 v31, 7, v0')
            g('v_and_b32 v1, 2, v30')
            g('v_lshlrev_b32 v1, 1, v1')
            g('v_xor_b32 v31, v31, v1')
            g('s_lshl_b32 s50, s3, 3')
            g('v_add_u32 v30, s50, v30')
            g('v_mul_u32_u24 v30, 896, v30')
            g('v_lshl_add_u32 v30, v31, 4, v30')
            g('s_lshr_b32 s50, s2, 5')
            g('s_lshl_b32 s50, s50, 7')
            g('s_cmp_ge_u32 s2, 224')
            g('s_cselect_b32 s50, 0x40000000, s50')
            g('v_add_u32 v30, s50, v30')
            g('s_lshl_b32 s45, s3, 10')
        def dma_slot(i, inloop):
            if i == 0 or i == 1:
                st = i + 2
                g(f's_add_u32 s54, s55, {st*32768}')
                g(f's_add_u32 m0, s55, {(st&3)*32768}')
                g('s_nop 0')
                for k in range(4):
                    g(f'buffer_load_dwordx4 v2, s[32:35], s54 offen offset:{k*1024}{LD()} lds')
                return
            if i == 2 and kh == 0:
                for t in range(3):
                    g(f'buffer_store_dwordx4 {vr(208+8*t,4)}, v2, s[56:59], s{(48,49,53)[t]} offen{ST()}')
                    g(f'buffer_store_dwordx4 {vr(212+8*t,4)}, v2, s[56:59], s{(48,49,53)[t]} offen offset:1024{ST()}')
                return
            if i >= 30:
                if i == 30: wo_setup()
                before34 = {30: [0], 31: [1], 32: [2], 33: [3], 34: [4, 5], 35: [6, 7]}
                for it in before34.get(i, []): wo_piece(it)
                return
            if i < 6: return
            ph = (i - 2) & 3; st = ((i - 2) >> 2) + 3
            if i == 18:
                g('buffer_load_dword v201, v31, s[64:67], 0 offen sc1')
            if st <= 7:
                if ph == 0:
                    g(f's_add_u32 s54, s55, {st*32768}')
                    g(f's_add_u32 m0, s55, {(st&3)*32768}')
                    g('s_nop 0')
                g(f'buffer_load_dwordx4 v2, s[32:35], s54 offen offset:{ph*1024}{LD()} lds')
            elif st == 8:
                if ph == 0:
                    ok = newlab('aok')
                    g('v_cmp_ne_u32 vcc, 16, v201')
                    g('s_nop 4')
                    g(f's_cbranch_vccz {ok}')
                    spin_until(g, 201, 31, 16)
                    g.label(ok)
                    if kh == 1:
                        g('s_add_u32 s47, s51, 8192')
                        dma4(2, 24, 's44', 's47', n=2)
                    g('s_mov_b32 m0, s55')
                    g('s_nop 0')
                g(f'buffer_load_dwordx4 v28, s[28:31], 0 offen offset:{ph*1024}{LD()} lds')
            elif st == 9 and ph == 0 and kh == 0:
                g('s_add_u32 m0, s55, 32768')
                g('s_nop 0')
                for k in range(4):
                    g(f'buffer_load_dwordx4 v29, s[28:31], 0 offen offset:{k*1024}{LD()} lds')
        def body(i, cs, inloop=False):
            u = unit(i)
            sb = SB[i & 1]; sn = SB[(i + 1) & 1]
            e = [f'v_exp_f32 v{sb+r}, v{sb+r}' for r in range(16)]
            c = [f'v_cvt_pk_bf16_f32 v{P+k}, v{sb+2*k}, v{sb+2*k+1}' for k in range(8)]
            has1 = i + 1 < N; has2 = i + 2 < N
            if i < 32 and (i & 3) == 2:
                s = i >> 2
                if s == 7: vm = 0
                elif s == 0: vm = 8
                elif s == 1: vm = 4 if kh == 1 else 10
                elif s == 2: vm = 4 if kh == 1 else 10
                else: vm = 4
                if OPT.get('attst') and s in (0, 1, 2, 3, 5, 7): stamp(g, {0: 3, 1: 5, 2: 7, 3: 9, 5: 11, 7: 13}[s], q=True)
                g(f's_waitcnt vmcnt({vm}) lgkmcnt(0)' if vm is not None else 's_waitcnt lgkmcnt(0)')
                g('s_barrier')
                if OPT.get('attst') and s in (0, 1, 2, 3, 5, 7): stamp(g, {0: 4, 1: 6, 2: 8, 3: 10, 5: 12, 7: 14}[s], q=True)
                if s == 3 and kh == 1:
                    sk = newlab('sigA')
                    g('s_cmp_lg_u32 s3, 4')
                    g(f's_cbranch_scc1 {sk}')
                    g('s_mov_b64 exec, 1')
                    g('v_mov_b32 v1, 1')
                    g('s_lshl_b32 s47, s69, 8')
                    g('v_mov_b32 v202, s47')
                    g('buffer_atomic_add v1, v202, s[64:67], 0 offen sc1')
                    g('s_mov_b64 exec, -1')
                    g.label(sk)
                if s == 6:
                    g(f'ds_read_b128 {vr(QA,4)}, v{QL} offset:8192')
                    g(f'ds_read_b128 {vr(QA+4,4)}, v{QL} offset:9216')
                if s == 7 and kh == 0:
                    g(f'v_mov_b32 v204, {LFLAG}')
                    g('v_mov_b32 v205, 0')
                    g('ds_write_b32 v204, v205')
                    g('ds_write_b32 v204, v205 offset:4')
                    rdK(32, cs, TK)
                    g('s_waitcnt lgkmcnt(0)')
                    g(mfma(TS, TK, QA, unit(32)['C']))
                    g(mfma(TS, TK+4, QA+4, TS))
                    g('s_nop 15')
                    set_standin(TS, QA, MNA)
            elif i == 31 and kh == 1:
                g('s_waitcnt lgkmcnt(0)')
                g(mfma(TS, KF, QA, unit(32)['C']))
                g(mfma(TS, KF+4, QA+4, TS))
                g('s_nop 15')
                set_standin(TS, QA, MNA)
                g('s_lshl_b32 s47, s41, 2')
                g('s_add_u32 s47, s47, s42')
                g('s_cmp_lt_u32 s47, 5')
                g(f's_cbranch_scc0 L{tag}_valid')
                g(f'v_mov_b32 v{MNA}, {POSBIG:#x}')
                g.label(f'L{tag}_valid')
            elif i == 34:
                g('s_waitcnt lgkmcnt(0)')
                g('s_barrier')
                finish_half(f'FB{kh}', kh, 1, OB, MNB, QB, TS)
            else:
                g('s_waitcnt lgkmcnt(0)')
            if OPT.get('prio', 'lag') == 'lag':
                g(f's_setprio {3 - ((i - 2) & 3)}')
            g(e[0])
            if i > 0:
                up = unit(i - 1)
                g(mfma(up['O'], VF+4, P+4, up['O']))
            rdV(i, 1, cs)
            g(e[1]); g(e[2]); g(e[3])
            g(c[0])
            if i == 33:
                write_half(kh, 1, OB, MNB)
            if has1:
                un = unit(i + 1)
                g(mfma(sn, KF, un['Q'], un['C']))
            g(e[4]); g(e[5]); g(c[1]); g(e[6]); g(e[7]); g(c[2])
            if has1:
                g(mfma(sn, KF+4, un['Q']+4, sn))
            if has2:
                rdK(i + 2, cs)
            g(e[8]); g(c[3]); g(e[9]); g(e[10])
            dma_slot(i, inloop)
            g(e[11])
            g(mfma(u['O'], VF, P, None if u['first'] else u['O']))
            if has1:
                rdV(i + 1, 0, cs)
            for x in e[12:16]: g(x)
            g(c[4]); g(c[5]); g(c[6]); g(c[7])
        def advance():
            g('v_mov_b32 v4, v5')
            g('v_add_u32 v5, 32768, v5')
            g('v_and_b32 v5, 0x1ffff, v5')
        return body, advance, N, tag
    for kh in (0, 1):
        if kh == 1: g.label('Lattn_kh1')
        body, advance, N, tag = path(kh)
        for s_ in range(7):
            for j in range(4): body(4*s_ + j, s_)
            advance()
        for j in range(4): body(28 + j, 7)
        if kh == 0: stamp(g, 8)
        for i in range(32, N): body(i, 7)
        g('s_waitcnt lgkmcnt(0)')
        g('s_nop 1')
        g(mfma(OA, VF+4, P+4, OA))
        g('s_nop 15')
        write_half(kh, 0, OA, MNA)
        g('s_waitcnt vmcnt(3) lgkmcnt(0)')
        g('s_barrier')
        if kh == 1: signal_o(g, CNT_OB, 4)
        finish_half(f'FA{kh}', kh, 0, OA, MNA, QA, TS)
        g('s_waitcnt vmcnt(0)')
        g('s_mov_b64 exec, 1')
        g('v_mov_b32 v1, 1')
        g('s_lshl_b32 s47, s41, 8')
        g(f's_add_u32 s47, s47, {CNT_OA}')
        g('v_mov_b32 v31, s47')
        g('buffer_atomic_add v1, v31, s[64:67], 0 offen sc1')
        g('s_mov_b64 exec, -1')
        stamp(g, 9)
        if kh == 1:
            proj_group_B(g)
        else:
            proj_group_A(g)
    proj_common(g)

PJ_EX = 131072
def proj_setup(g, br):
    g(f's_mov_b32 s40, {br}')
    g('s_and_b32 s41, s2, 7')
    g('s_lshl_b32 s41, s41, 2')
    g('s_bfe_u32 s42, s2, 0x20003')
    g('s_add_u32 s41, s41, s42')
    g('s_lshr_b32 s42, s2, 5')
    g('s_and_b32 s43, s3, 1')
    g('s_bfe_u32 s44, s3, 0x10001')
    srd(g, 24, 16, 17, 2048 * 1792)
    g('s_lshl_b32 s45, s41, 1')
    g('s_add_u32 s45, s45, s43')
    g(f's_add_u32 s45, s45, {br*64}')
    g('s_lshl_b32 s45, s45, 15')
    g('s_lshl_b32 s46, s44, 14')
    g('s_add_u32 s45, s45, s46')
    g('v_bfe_u32 v4, v0, 2, 2')
    g('v_and_b32 v5, 3, v0')
    g('v_bfe_u32 v7, v0, 4, 1')
    g('v_lshrrev_b32 v6, 5, v0')
    g('v_lshlrev_b32 v7, 5, v7')
    g('v_lshl_add_u32 v7, v5, 3, v7')
    g('v_lshrrev_b32 v11, 4, v7')
    g('v_and_b32 v8, 2, v4')
    g('v_lshlrev_b32 v8, 1, v8')
    g('v_xor_b32 v11, v11, v8')
    g('v_and_b32 v7, 15, v7')
    g('v_lshl_add_u32 v7, v11, 4, v7')
    g('v_lshl_add_u32 v4, v6, 2, v4')
    g('v_lshl_add_u32 v9, v4, 7, v7')
    g('s_mul_i32 s46, s44, 28672')
    if br: g('s_add_u32 s46, s46, 65536')
    g('v_add_u32 v9, s46, v9')
    g('v_xor_b32 v10, 64, v9')
    g('s_lshl_b32 s46, s43, 1')
    g('s_add_u32 s46, s46, s44')
    g(f's_add_u32 s46, s46, {br*4}')
    g('s_lshl_b32 s46, s46, 12')
    g(f's_add_u32 s46, s46, {PJ_EX}')
    g('v_add_u32 v12, s46, v2')
    g('v_xor_b32 v13, 4096, v12')
    g('s_lshr_b32 s46, s41, 1')
    g('s_lshl_b32 s46, s46, 8')
    g(f's_add_u32 s46, s46, {CNT_OB if br else CNT_OA}')
    g('v_mov_b32 v30, s46')
def o_loads(g):
    OF = 64
    for n in range(16):
        if n % 4 == 0 and n > 0: g('s_add_u32 s45, s45, 4096')
        g(f'buffer_load_dwordx4 {vr(OF+4*n,4)}, v2, s[36:39], s45 offen offset:{(n%4)*1024}{LD()}')
def signal_o(g, cnt, wave):
    sk = newlab('sigO')
    g(f's_cmp_lg_u32 s3, {wave}')
    g(f's_cbranch_scc1 {sk}')
    g('s_mov_b64 exec, 1')
    g('v_mov_b32 v1, 1')
    g('s_lshl_b32 s47, s41, 8')
    g(f's_add_u32 s47, s47, {cnt}')
    g('v_mov_b32 v31, s47')
    g('buffer_atomic_add v1, v31, s[64:67], 0 offen sc1')
    g('s_mov_b64 exec, -1')
    g.label(sk)
def proj_group_B(g):
    g('s_cmp_ge_u32 s2, 224')
    g('s_cbranch_scc1 Lpj_idleB')
    srd(g, 56, 8, 9, 448*896)
    g('v_lshrrev_b32 v30, 3, v0')
    g('v_and_b32 v31, 7, v0')
    g('v_and_b32 v1, 2, v30')
    g('v_lshlrev_b32 v1, 1, v1')
    g('v_xor_b32 v31, v31, v1')
    g('s_and_b32 s50, s3, 3')
    g('s_lshl_b32 s51, s50, 3')
    g('v_add_u32 v30, s51, v30')
    g('v_mul_u32_u24 v30, 896, v30')
    g('v_lshl_add_u32 v30, v31, 4, v30')
    g('s_lshr_b32 s51, s2, 5')
    g('s_lshl_b32 s51, s51, 7')
    g('v_add_u32 v30, s51, v30')
    g('s_lshl_b32 s52, s50, 10')
    sk = newlab('woA')
    for it in range(15):
        if it == 14:
            g('s_cmp_lg_u32 s50, 0')
            g(f's_cbranch_scc1 {sk}')
        g(f's_add_u32 m0, s52, {it*4096}')
        if it == 14:
            g(f'v_add_u32 v31, {it*32*896}, v30')
            g('buffer_load_dwordx4 v31, s[56:59], 0 offen lds')
        else:
            g(f's_mov_b32 s51, {it*32*896}')
            g('buffer_load_dwordx4 v30, s[56:59], s51 offen lds')
    g.label(sk)
    proj_setup(g, 1)
    g('s_waitcnt vmcnt(0)')
    g('s_barrier')
    group_wait(g, 4, 1, 1, 30, 16)
    stamp(g, 10)
    o_loads(g)
    g('s_branch Lproj_common')
    g.label('Lpj_idleB')
    g('s_barrier')
    g('s_branch Lend')
def proj_group_A(g):
    g('s_cmp_ge_u32 s2, 224')
    sk = newlab('idleA')
    g(f's_cbranch_scc1 {sk}')
    proj_setup(g, 0)
    g('s_barrier')
    group_wait(g, 0, 0, 1, 30, 128)
    stamp(g, 10)
    o_loads(g)
    g('s_branch Lproj_common')
    g.label(sk)
    g('s_barrier')
    g('s_branch Lend')
def proj_common(g):
    g.label('Lproj_common')
    OF = 64; ACC = 16; WF = 48
    def rd(n, buf):
        h, i = divmod(n, 2)
        for ct in range(2):
            for jj in range(2):
                off = (28*h + 16*i + 8*jj) * 128
                g(f'ds_read_b64_tr_b16 {vr(WF+8*buf+4*ct+2*jj,2)}, v{9+ct} offset:{off}')
    rd(0, 0)
    for n in range(16):
        if n + 1 < 16: rd(n + 1, (n + 1) & 1)
        g(f's_waitcnt vmcnt({15-n}) lgkmcnt({4 if n + 1 < 16 else 0})')
        for ct in range(2):
            g(mfma(ACC + 16*ct, WF + 8*(n & 1) + 4*ct, OF + 4*n, None if n == 0 else ACC + 16*ct))
    g('s_nop 15')
    stamp(g, 12)
    g('s_cmp_eq_u32 s44, 0')
    g('s_cbranch_scc0 Lpj_k1')
    for i in range(4): g(f'ds_write_b128 v12, {vr(ACC+16+4*i,4)} offset:{i*1024}')
    g('s_branch Lpj_k2')
    g.label('Lpj_k1')
    for i in range(4): g(f'ds_write_b128 v12, {vr(ACC+4*i,4)} offset:{i*1024}')
    for r in range(16): g(f'v_mov_b32 v{ACC+r}, v{ACC+16+r}')
    g.label('Lpj_k2')
    g('s_waitcnt lgkmcnt(0)')
    g('s_barrier')
    for i in range(4): g(f'ds_read_b128 {vr(64+4*i,4)}, v13 offset:{i*1024}')
    g('v_and_b32 v4, 31, v0')
    g('s_lshl_b32 s46, s41, 6')
    g('s_lshl_b32 s47, s43, 5')
    g('s_add_u32 s46, s46, s47')
    g('v_add_u32 v4, s46, v4')
    g('v_mul_u32_u24 v4, 1792, v4')
    g('v_lshl_add_u32 v4, v6, 4, v4')
    g('s_mul_i32 s46, s40, 896')
    g('s_lshl_b32 s47, s42, 7')
    g('s_add_u32 s46, s46, s47')
    g('s_lshl_b32 s47, s44, 6')
    g('s_add_u32 s46, s46, s47')
    g('s_waitcnt lgkmcnt(0)')
    for r in range(16): g(f'v_add_f32 v{ACC+r}, v{ACC+r}, v{64+r}')
    P = 48
    for i in range(8): g(f'v_cvt_pk_bf16_f32 v{P+i}, v{ACC+2*i}, v{ACC+2*i+1}')
    g('s_nop 1')
    for k in range(2):
        a = P + 4*k
        g(f'v_permlane32_swap_b32 v{a}, v{a+2}')
        g(f'v_permlane32_swap_b32 v{a+1}, v{a+3}')
    g('s_nop 1')
    for k in range(2):
        g(f'buffer_store_dwordx4 {vr(P+4*k,4)}, v4, s[24:27], s46 offen offset:{32*k}' + ((' ' + OPT['ost']) if OPT.get('ost') else ''))

HEADER = '''; Kernarg layout for this problem (72 bytes, ptrs only, base s[0:1]):
'''
def main(out):
    g = Gen()
    g.raw(f'.globl {NAME}')
    g.raw('.p2align 8')
    g.raw(f'.type {NAME},@function')
    g.label(NAME)
    g('s_cmp_ge_u32 s2, 256')
    g('s_cbranch_scc1 Lexit')
    if OPT.get('tl'):
        for r in range(70, 102): g(f's_mov_b32 s{r}, 0')
    stamp(g, 0); stamp(g, 15, True)
    if OPT.get('tl'): g('s_memtime s[98:99]')
    g('s_load_dwordx16 s[4:19], s[0:1], 0')
    g('s_load_dwordx2 s[20:21], s[0:1], 64')
    g('v_lshrrev_b32 v1, 6, v0')
    g('v_and_b32 v0, 63, v0')
    g('s_nop 0')
    g('v_readfirstlane_b32 s3, v1')
    if OPT.get('swapw'): g('s_xor_b32 s3, s3, 4')
    prologue(g)
    qkv_compute(g)
    qkv_loader(g)
    phase_attn(g)
    g.label('Lend')
    if OPT['stamps'] or OPT.get('tl'): g('s_waitcnt vmcnt(0)')
    stamp(g, 13)
    if OPT.get('tl'):
        sk = newlab('tl')
        g('s_cmp_lg_u32 s3, 0')
        g(f's_cbranch_scc1 {sk}')
        g('s_memtime s[100:101]')
        g('s_waitcnt lgkmcnt(0)')
        srd(g, 56, 18, 19, 256)
        g('s_mov_b64 exec, 1')
        g('s_sub_u32 s100, s100, s98')
        g('s_sub_u32 s99, s96, s70')
        g('v_mov_b32 v20, s100')
        g('v_mov_b32 v21, s99')
        g('v_mov_b32 v3, 0')
        g('buffer_atomic_umax v20, v3, s[56:59], 0 offen offset:52')
        g('buffer_atomic_umax v21, v3, s[56:59], 0 offen offset:56')
        g('s_not_b32 s68, s70')
        g('v_mov_b32 v1, s68')
        g('v_mov_b32 v3, 0')
        g('buffer_atomic_umax v1, v3, s[56:59], 0 offen offset:4')
        for k, i in enumerate((0, 2, 3, 4, 6, 8, 9, 10, 11, 12, 13)):
            g(f'v_mov_b32 v{4+k}, s{70+2*i}')
            g(f'buffer_atomic_umax v{4+k}, v3, s[56:59], 0 offen offset:{8+4*k}')
        g('s_waitcnt vmcnt(0)')
        g.label(sk)
    if OPT['stamps']: g('s_memrealtime s[72:73]')
    stamp_dump(g)
    g.label('Lexit')
    g('s_endpgm')
    txt = HEADER + f'; @launch grid=(256,1,1) block=(512,1,1) lds={LDS_BYTES}\n'
    txt += '.amdgcn_target "amdgcn-amd-amdhsa--gfx950"\n.text\n' + g.text()
    txt += f'''.section .rodata,"a"
.p2align 6
.amdhsa_kernel {NAME}
  .amdhsa_next_free_vgpr 232
  .amdhsa_next_free_sgpr 102
  .amdhsa_accum_offset 232
  .amdhsa_group_segment_fixed_size 0
  .amdhsa_kernarg_size 72
  .amdhsa_user_sgpr_count 2
  .amdhsa_user_sgpr_kernarg_segment_ptr 1
  .amdhsa_system_sgpr_workgroup_id_x 1
.end_amdhsa_kernel
'''
    open(out, 'w').write(txt)

if __name__ == '__main__':
    out = sys.argv[1] if len(sys.argv) > 1 else 'concat_heads__sliding_block__softmax_full_mha__prompt.s'
    for a in sys.argv[2:]:
        if '=' in a:
            k, v = a.split('=', 1)
            OPT[k] = v if k in ('st', 'ld', 'prio', 'ost', 'inl') else (int(v) if v.isdigit() else v)
        else:
            OPT[a] = True
    main(out)
```

```python
import sys, math, struct

def f32bits(x): return struct.unpack('<I', struct.pack('<f', x))[0]

class Gen:
    def __init__(self): self.lines = []
    def __call__(self, s):
        for l in s.split('\n'):
            l = l.strip()
            if l: self.lines.append('  ' + l)
    def label(self, s): self.lines.append(s + ':')
    def raw(self, s): self.lines.append(s)
    def text(self): return '\n'.join(self.lines) + '\n'

def vr(base, n): return f'v[{base}:{base+n-1}]'
def mfma(d, a, b, c):
    cs = '0' if c is None else vr(c, 16)
    return f'v_mfma_f32_32x32x16_bf16 {vr(d,16)}, {vr(a,4)}, {vr(b,4)}, {cs}'

OPT = dict(stamps=False, st='sc1', ld='', spin=200000, pf=5)
NAME = 'concat_heads__sliding_block__softmax_full_mha__prompt_kernel'
STAMP_BASE = 0x2000000
def stamp(g, i, real=False, q=False):
    if OPT.get('tl'):
        if i in (0, 2, 3, 4, 6, 8, 9, 10, 11, 12, 13): g(f's_memrealtime s[{70+2*i}:{71+2*i}]')
        return
    if not OPT['stamps']: return
    import inspect
    if OPT.get('qkvst') and 5 <= i <= 13:
        caller = inspect.stack()[1].function
        if caller != 'qkv_compute': return
    if (OPT.get('attst') or OPT.get('probe')) and 2 <= i <= 12 and not q: return
    op = 's_memrealtime' if real else 's_memtime'
    g(f'{op} s[{70+2*i}:{71+2*i}]')
def stamp_dump(g):
    if not OPT['stamps']: return
    g('s_waitcnt lgkmcnt(0) vmcnt(0)')
    g(f's_add_u32 s64, s20, {STAMP_BASE}')
    g(f's_addc_u32 s65, s21, 0')
    g('s_mov_b32 s66, 0x100000')
    g('s_mov_b32 s67, 0x20000')
    g('s_mov_b64 exec, -1')
    g('v_mov_b32 v1, 0')
    for i in range(16):
        g(f'v_writelane_b32 v1, s{70+2*i}, {i}')
    g('s_lshl_b32 s68, s2, 3')
    g('s_add_u32 s68, s68, s3')
    g('s_lshl_b32 s68, s68, 6')
    g('v_lshlrev_b32 v3, 2, v0')
    g('v_cmp_gt_u32 vcc, 16, v0')
    g('s_and_saveexec_b64 s[62:63], vcc')
    g('buffer_store_dword v1, v3, s[64:67], s68 offen')
    g('s_waitcnt vmcnt(0)')

WS_Q = 0
WS_KV = 0x400000
WS_O = 0xC00000
WS_CNT = 0x1000000
CNT_A, CNT_B, CNT_OA, CNT_OB = 0, 16 * 256, 32 * 256, 48 * 256
QSCALE = (28 ** -0.5) * math.log2(math.e)
NEGBIG = 0xf149f2ca
POSBIG = 0x7149f2ca
LDS_BYTES = 163840

def srd(g, dst, lo, hi, nbytes, add=0):
    if add:
        g(f's_add_u32 s{dst}, s{lo}, {add}')
        g(f's_addc_u32 s{dst+1}, s{hi}, 0')
    else:
        g(f's_mov_b32 s{dst}, s{lo}')
        g(f's_mov_b32 s{dst+1}, s{hi}')
    g(f's_mov_b32 s{dst+2}, {nbytes}')
    g(f's_mov_b32 s{dst+3}, 0x20000')
def ST(): return (' ' + OPT['st']) if OPT['st'] else ''
def INL(): return (' ' + OPT['inl']) if OPT.get('inl') else ''
def LD(): return (' ' + OPT['ld']) if OPT['ld'] else ''
lab = [0]
def newlab(p):
    lab[0] += 1
    return f'L{p}_{lab[0]}'

def spin_until(g, vdst, voff, target, tmp=205):
    l0 = newlab('poll'); l1 = newlab('pdone')
    g(f's_mov_b32 s68, {OPT["spin"]}')
    g.label(l0)
    g(f'buffer_load_dword v{vdst}, v{voff}, s[64:67], 0 offen sc1')
    g('s_waitcnt vmcnt(0)')
    g(f'v_cmp_ne_u32 vcc, {target}, v{vdst}')
    g('s_nop 4')
    g(f's_cbranch_vccz {l1}')
    if OPT.get('sleep', 1): g(f's_sleep {OPT.get("sleep", 1)}')
    g('s_sub_u32 s68, s68, 1')
    g('s_cmp_lg_u32 s68, 0')
    g(f's_cbranch_scc1 {l0}')
    g.label(l1)
LFLAG = 65536 - 64
def group_wait(g, leader, word, vdst, voff, target):
    lf = newlab('follow'); ld = newlab('gdone'); lp = newlab('lspin')
    g(f'v_mov_b32 v204, {LFLAG + 4*word}')
    g(f's_cmp_lg_u32 s3, {leader}')
    g(f's_cbranch_scc1 {lf}')
    spin_until(g, vdst, voff, target)
    g('v_mov_b32 v205, 1')
    g('ds_write_b32 v204, v205')
    g('s_waitcnt lgkmcnt(0)')
    g(f's_branch {ld}')
    g.label(lf)
    g(f's_mov_b32 s68, {OPT["spin"] * 16}')
    g.label(lp)
    g('ds_read_b32 v205, v204')
    g('s_waitcnt lgkmcnt(0)')
    g('v_readfirstlane_b32 s47, v205')
    g('s_cmp_lg_u32 s47, 0')
    g(f's_cbranch_scc1 {ld}')
    g('s_sleep 1')
    g('s_sub_u32 s68, s68, 1')
    g('s_cmp_lg_u32 s68, 0')
    g(f's_cbranch_scc1 {lp}')
    g.label(ld)

WROW = 176
WSTG = 64 * WROW
NCH = 14
def prologue(g):
    g('s_and_b32 s40, s2, 7')
    g('s_lshr_b32 s41, s2, 3')
    g('s_lshr_b32 s22, s40, 1')
    g('s_lshl_b32 s22, s22, 2')
    g('s_and_b32 s42, s41, 3')
    g('s_add_u32 s22, s22, s42')
    g('s_and_b32 s23, s40, 1')
    g('s_lshl_b32 s23, s23, 3')
    g('s_lshr_b32 s42, s41, 2')
    g('s_add_u32 s23, s23, s42')
    g('s_add_u32 s69, s23, 1')
    g('s_and_b32 s69, s69, 7')
    g('s_and_b32 s42, s23, 8')
    g('s_or_b32 s69, s69, s42')
    g('s_cmp_ge_u32 s3, 4')
    g('s_cbranch_scc1 Lloader')

def kvb_srd(g):
    g('s_and_b32 s40, s2, 7')
    g('s_bfe_u32 s41, s2, 0x10003')
    g('s_lshl_b32 s40, s40, 1')
    g('s_add_u32 s40, s40, s41')
    g('s_lshl_b32 s47, s40, 18')
    g(f's_add_u32 s47, s47, {WS_KV + 0x400000}')
    g('s_add_u32 s32, s20, s47')
    g('s_addc_u32 s33, s21, 0')
    g('s_mov_b32 s34, 0x40000')
    g('s_mov_b32 s35, 0x20000')
    g('s_lshl_b32 s55, s3, 12')
def stage_tile(g, st):
    g(f's_add_u32 s54, s55, {st*32768}')
    g(f's_add_u32 m0, s55, {(st&3)*32768}')
    g('s_nop 0')
    for i in range(4):
        g(f'buffer_load_dwordx4 v2, s[32:35], s54 offen offset:{i*1024}{LD()} lds')
def init_dma_compute(g):
    kvb_srd(g)
    stage_tile(g, 0)
    stage_tile(g, 1)

def pf_lines(g, br, part, vt, vd):
    if part == 'x':
        lo, hi = (10, 11) if br else (4, 5)
        srd(g, 24, lo, hi, 1835008)
        g('s_bfe_u32 s46, s2, 0x20001')
        g('s_mul_i32 s46, s46, 458752')
        g('s_lshr_b32 s47, s2, 3')
        g('s_mul_i32 s47, s47, 14336')
        g('s_add_u32 s46, s46, s47')
        g(f'v_lshlrev_b32 v{vt}, 7, v0')
        g(f'v_add_u32 v{vt}, s46, v{vt}')
        g(f'buffer_load_dword v{vd}, v{vt}, s[24:27], 0 offen')
        g(f'v_add_u32 v{vt}, 8192, v{vt}')
        g('s_mov_b64 exec, 0x0000ffffffffffff') if False else None
        g('v_cmp_gt_u32 vcc, 48, v0')
        g('s_and_saveexec_b64 s[44:45], vcc')
        g(f'buffer_load_dword v{vd+1}, v{vt}, s[24:27], 0 offen')
        g('s_mov_b64 exec, s[44:45]')
    else:
        lo, hi = (12, 13) if br else (6, 7)
        srd(g, 24, lo, hi, 1204224)
        g('s_and_b32 s46, s2, 1')
        g('s_mul_i32 s46, s46, 1280')
        g('s_lshr_b32 s47, s2, 3')
        g('s_mul_i32 s47, s47, 37632')
        g('s_add_u32 s46, s46, s47')
        for k in range(3):
            g(f'v_add_u32 v{vt}, {64*k}, v0')
            g(f'v_mul_u32_u24 v{vt+1}, 5958, v{vt}')
            g(f'v_lshrrev_b32 v{vt+1}, 16, v{vt+1}')
            g(f'v_mul_u32_u24 v{vt+2}, 11, v{vt+1}')
            g(f'v_sub_u32 v{vt+2}, v{vt}, v{vt+2}')
            g(f'v_mul_u32_u24 v{vt+1}, 2688, v{vt+1}')
            g(f'v_lshl_add_u32 v{vt+1}, v{vt+2}, 7, v{vt+1}')
            g(f'v_add_u32 v{vt+1}, s46, v{vt+1}')
            if k == 2:
                g('v_cmp_gt_u32 vcc, 26, v0')
                g('s_and_saveexec_b64 s[44:45], vcc')
            g(f'buffer_load_dword v{vd+k}, v{vt+1}, s[24:27], 0 offen')
            if k == 2: g('s_mov_b64 exec, s[44:45]')

def PREFETCH_A(g):
    l1 = newlab('pf'); l2 = newlab('pf'); ld = newlab('pf')
    g('s_cmp_ge_u32 s3, 2')
    g(f's_cbranch_scc1 {l1}')
    srd(g, 24, 4, 5, 1835008)
    g('s_mul_i32 s46, s2, 7168')
    g('s_lshl_b32 s47, s3, 12')
    g('s_add_u32 s46, s46, s47')
    g('v_add_u32 v20, s46, v2')
    for i in range(4):
        g(f'buffer_load_dwordx4 v[{144+4*i}:{147+4*i}], v20, s[24:27], 0 offen offset:{i*1024}')
    g(f's_branch {ld}')
    g.label(l1)
    g('s_cmp_eq_u32 s3, 2')
    g(f's_cbranch_scc0 {l2}')
    srd(g, 24, 6, 7, 1204224)
    g('s_mul_i32 s46, s2, 4704')
    g('v_add_u32 v20, s46, v2')
    g('v_add_u32 v21, 4096, v20')
    for i in range(5):
        g(f'buffer_load_dwordx4 v[{144+4*i}:{147+4*i}], v{20 if i < 4 else 21}, s[24:27], 0 offen offset:{(i%4)*1024}')
    g(f's_branch {ld}')
    g.label(l2)
    g('s_mul_i32 s46, s2, 1568')
    g('v_add_u32 v20, s46, v2')
    srd(g, 24, 8, 9, 448*896)
    for i in range(2):
        g(f'buffer_load_dwordx4 v[{144+4*i}:{147+4*i}], v20, s[24:27], 0 offen offset:{i*1024}')
    srd(g, 28, 14, 15, 448*896)
    for i in range(2):
        g(f'buffer_load_dwordx4 v[{152+4*i}:{155+4*i}], v20, s[28:31], 0 offen offset:{i*1024}')
    g.label(ld)

def qkv_compute(g):
    g('v_and_b32 v4, 31, v0')
    g('s_lshl_b32 s44, s3, 5')
    g('v_add_u32 v4, s44, v4')
    g('v_lshlrev_b32 v4, 7, v4')
    g('v_bfe_u32 v5, v0, 1, 3')
    g('v_lshrrev_b32 v6, 5, v0')
    for ks in range(4):
        g(f'v_add_u32 v7, {2*ks}, v6')
        g('v_xor_b32 v7, v7, v5')
        g(f'v_lshl_add_u32 v{12+ks}, v7, 4, v4')
    g('v_bfe_u32 v4, v0, 2, 2')
    g('v_and_b32 v5, 3, v0')
    g('v_bfe_u32 v7, v0, 4, 1')
    g('v_lshlrev_b32 v7, 5, v7')
    g('v_lshl_add_u32 v7, v5, 3, v7')
    g('v_lshlrev_b32 v4, 1, v4')
    g('v_add_u32 v4, v4, v6')
    g(f'v_mul_u32_u24 v4, {2*WROW}, v4')
    g('v_add_u32 v4, v4, v7')
    g('v_add_u32 v16, 65536, v4')
    g('v_lshlrev_b32 v2, 4, v0')
    g('s_waitcnt lgkmcnt(0)')
    if OPT.get('wsoff'):
        g(f's_add_u32 s20, s20, {OPT["wsoff"] << 20}')
        g('s_addc_u32 s21, s21, 0')
    stamp(g, 1)
    srd(g, 32, 20, 21, 0x1000000)
    srd(g, 64, 20, 21, 0x4000, WS_CNT)
    g('s_or_b32 s44, s2, s3')
    g('s_cmp_lg_u32 s44, 0')
    g('s_cbranch_scc1 Lnoinit')
    g('v_lshlrev_b32 v20, 8, v0')
    g('v_mov_b32 v21, 0')
    g('buffer_store_dword v21, v20, s[64:67], 0 offen sc1')
    g('s_waitcnt vmcnt(0)')
    srd(g, 36, 18, 19, 256)
    g('s_mov_b64 exec, 1')
    g('v_mov_b32 v21, 1')
    g('v_mov_b32 v20, 0')
    g('buffer_store_dword v21, v20, s[36:39], 0 offen sc1')
    g('s_mov_b64 exec, -1')
    g.label('Lnoinit')
    if OPT.get('codepf'):
        g('s_getpc_b64 s[24:25]')
        g.label('Lpc_here')
        g(f's_sub_u32 s24, s24, Lpc_here-{NAME}')
        g('s_subb_u32 s25, s25, 0')
        g(f's_mov_b32 s26, Lexit-{NAME}')
        g('s_mov_b32 s27, 0x20000')
        g('s_lshr_b32 s46, s2, 3')
        g('s_lshl_b32 s46, s46, 2')
        g('s_add_u32 s46, s46, s3')
        g('s_lshl_b32 s46, s46, 10')
        g('v_add_u32 v20, s46, v2')
        g('buffer_load_dwordx4 v[144:147], v20, s[24:27], 0 offen')
    if OPT.get('probe'):
        g('s_mul_i32 s46, s2, 7168')
        g('v_add_u32 v20, s46, v2')
        stamp(g, 5, q=True)
        srd(g, 24, 10, 11, 1835008)
        g('buffer_load_dword v160, v20, s[24:27], 0 offen'); g('s_waitcnt vmcnt(0)'); stamp(g, 6, q=True)
        srd(g, 24, 12, 13, 1204224)
        g('s_mul_i32 s46, s2, 4704'); g('v_add_u32 v21, s46, v2')
        g('buffer_load_dword v160, v21, s[24:27], 0 offen'); g('s_waitcnt vmcnt(0)'); stamp(g, 7, q=True)
        srd(g, 24, 4, 5, 1835008)
        g('buffer_load_dword v160, v20, s[24:27], 0 offen'); g('s_waitcnt vmcnt(0)'); stamp(g, 8, q=True)
        g('buffer_load_dword v160, v20, s[24:27], 0 offen offset:2048'); g('s_waitcnt vmcnt(0)'); stamp(g, 9, q=True)
        srd(g, 24, 6, 7, 1204224)
        g('buffer_load_dword v160, v21, s[24:27], 0 offen'); g('s_waitcnt vmcnt(0)'); stamp(g, 10, q=True)
        g('buffer_load_dword v160, v21, s[24:27], 0 offen offset:2048'); g('s_waitcnt vmcnt(0)'); stamp(g, 11, q=True)
    if OPT.get('pf', 1) in (2, 4):
        l1 = newlab('pfb'); ld = newlab('pfb')
        g('s_cmp_ge_u32 s3, 2')
        g(f's_cbranch_scc1 {l1}')
        srd(g, 24, 10, 11, 1835008)
        g('s_mul_i32 s46, s2, 7168')
        g('s_lshl_b32 s47, s3, 12')
        g('s_add_u32 s46, s46, s47')
        g('v_add_u32 v20, s46, v2')
        for i in range(4):
            g(f'buffer_load_dwordx4 v[{160+4*i}:{163+4*i}], v20, s[24:27], 0 offen offset:{i*1024}')
        g(f's_branch {ld}')
        g.label(l1)
        srd(g, 24, 12, 13, 1204224)
        g('s_mul_i32 s46, s2, 4704')
        g('s_and_b32 s47, s3, 1')
        g('s_mul_i32 s47, s47, 3072')
        g('s_add_u32 s46, s46, s47')
        g('v_add_u32 v20, s46, v2')
        for i in range(3):
            g(f'buffer_load_dwordx4 v[{160+4*i}:{163+4*i}], v20, s[24:27], 0 offen offset:{i*1024}')
        g.label(ld)
    if OPT.get('pf', 1) == 4:
        PREFETCH_A(g)
    if OPT.get('pfw'):
        g('s_waitcnt vmcnt(%d)' % (0 if OPT.get('pf') != 4 else 4))
        g('s_barrier')
    if OPT.get('pf', 1) == 3:
        l1 = newlab('pf3'); l2 = newlab('pf3'); ld = newlab('pf3')
        g('s_cmp_eq_u32 s3, 0')
        g(f's_cbranch_scc0 {l1}')
        pf_lines(g, 1, 'x', 20, 160)
        g(f's_branch {ld}')
        g.label(l1)
        g('s_cmp_eq_u32 s3, 1')
        g(f's_cbranch_scc0 {ld}')
        pf_lines(g, 1, 'w', 20, 160)
        g.label(ld)
    if OPT.get('tw'):
        g('s_mov_b64 exec, 1')
        g('v_mov_b32 v20, 0')
        g('v_mov_b32 v21, 0')
        for br_, c0r in ((1, 's23'), (0, 's69')):
            g(f's_mul_i32 s46, {c0r}, 3')
            for t in range(3):
                g(f's_add_u32 s47, s46, {t}')
                g('s_and_b32 s44, s47, 15')
                g('s_lshl_b32 s44, s44, 6')
                g('s_lshl_b32 s45, s22, 2')
                g('s_add_u32 s44, s44, s45')
                g('s_add_u32 s44, s44, s3')
                if br_: g('s_add_u32 s44, s44, 1024')
                g('s_cmp_lt_u32 s47, 16')
                g('s_cselect_b32 s45, 11, 12')
                g(f's_cselect_b32 s43, {WS_Q}, {WS_KV}')
                g('s_lshl_b32 s44, s44, s45')
                g('s_add_u32 s44, s44, s43')
                g('s_cmp_ge_u32 s47, 32')
                g('s_cselect_b32 s45, 2048, 0')
                g('s_add_u32 s44, s44, s45')
                g('buffer_store_dword v21, v20, s[32:35], s44 offen sc1')
        g('s_and_b32 s44, s2, 7')
        g('s_bfe_u32 s45, s2, 0x10003')
        g('s_lshl_b32 s44, s44, 1')
        g('s_add_u32 s44, s44, s45')
        g('s_lshr_b32 s45, s2, 4')
        g('s_lshl_b32 s45, s45, 2')
        g('s_add_u32 s45, s45, s3')
        g('s_lshl_b32 s45, s45, 4')
        g('s_add_u32 s45, s45, s44')
        g('s_lshl_b32 s45, s45, 11')
        g(f's_add_u32 s45, s45, {WS_O}')
        g('buffer_store_dword v21, v20, s[32:35], s45 offen sc1')
        g('s_add_u32 s45, s45, 0x200000')
        g('buffer_store_dword v21, v20, s[32:35], s45 offen sc1')
        g('s_mov_b64 exec, -1')
    srd(g, 36, 18, 19, 256)
    g('v_mov_b32 v30, 0')
    g('buffer_load_dword v31, v30, s[36:39], 0 offen sc1')
    def prefetch():
        if not OPT.get('pf', 1) or OPT.get('pf') == 4: return
        if OPT.get('pf') == 5:
            ld = newlab('pf5')
            g('s_cmp_ge_u32 s3, 2')
            g(f's_cbranch_scc1 {ld}')
            g('s_cmp_eq_u32 s3, 0')
            g('s_cselect_b32 s24, s8, s14')
            g('s_cselect_b32 s25, s9, s15')
            g(f's_mov_b32 s26, {448*896}')
            g('s_mov_b32 s27, 0x20000')
            g('s_mul_i32 s46, s2, 1568')
            g('v_add_u32 v20, s46, v2')
            for i in range(2):
                g(f'buffer_load_dwordx4 v[{168+4*i}:{171+4*i}], v20, s[24:27], 0 offen offset:{i*1024}')
            g.label(ld)
            return
        if OPT.get('pf', 1) == 3:
            l1 = newlab('pf3'); l2 = newlab('pf3'); ld = newlab('pf3')
            g('s_cmp_eq_u32 s3, 2')
            g(f's_cbranch_scc0 {l1}')
            pf_lines(g, 0, 'x', 20, 164)
            g(f's_branch {ld}')
            g.label(l1)
            g('s_cmp_eq_u32 s3, 3')
            g(f's_cbranch_scc0 {l2}')
            pf_lines(g, 0, 'w', 20, 164)
            g(f's_branch {ld}')
            g.label(l2)
            g('s_cmp_eq_u32 s3, 0')
            g('s_cselect_b32 s24, s8, s14')
            g('s_cselect_b32 s25, s9, s15')
            g(f's_mov_b32 s26, {448*896}')
            g('s_mov_b32 s27, 0x20000')
            g('s_mul_i32 s46, s2, 1568')
            g('v_add_u32 v20, s46, v2')
            for i in range(2):
                g(f'buffer_load_dwordx4 v[{168+4*i}:{171+4*i}], v20, s[24:27], 0 offen offset:{i*1024}')
            g.label(ld)
            return
        l1 = newlab('pf'); l2 = newlab('pf'); ld = newlab('pf')
        g('s_cmp_ge_u32 s3, 2')
        g(f's_cbranch_scc1 {l1}')
        srd(g, 24, 4, 5, 1835008)
        g('s_mul_i32 s46, s2, 7168')
        g('s_lshl_b32 s47, s3, 12')
        g('s_add_u32 s46, s46, s47')
        g('v_add_u32 v20, s46, v2')
        for i in range(4):
            g(f'buffer_load_dwordx4 v[{144+4*i}:{147+4*i}], v20, s[24:27], 0 offen offset:{i*1024}')
        g(f's_branch {ld}')
        g.label(l1)
        g('s_cmp_eq_u32 s3, 2')
        g(f's_cbranch_scc0 {l2}')
        srd(g, 24, 6, 7, 1204224)
        g('s_mul_i32 s46, s2, 4704')
        g('v_add_u32 v20, s46, v2')
        g('v_add_u32 v21, 4096, v20')
        for i in range(5):
            g(f'buffer_load_dwordx4 v[{144+4*i}:{147+4*i}], v{20 if i < 4 else 21}, s[24:27], 0 offen offset:{(i%4)*1024}')
        g(f's_branch {ld}')
        g.label(l2)
        g('s_mul_i32 s46, s2, 1568')
        g('v_add_u32 v20, s46, v2')
        srd(g, 24, 8, 9, 448*896)
        for i in range(2):
            g(f'buffer_load_dwordx4 v[{144+4*i}:{147+4*i}], v20, s[24:27], 0 offen offset:{i*1024}')
        srd(g, 28, 14, 15, 448*896)
        for i in range(2):
            g(f'buffer_load_dwordx4 v[{152+4*i}:{155+4*i}], v20, s[28:31], 0 offen offset:{i*1024}')
        g.label(ld)
    XF = 80; WF = 88
    ACCS = {1: 32, 0: 144}
    PS = {1: 112, 0: 208}
    g('v_and_b32 v18, 31, v0')
    g('v_cmp_eq_u32 vcc, 28, v18')
    g('v_mov_b32 v19, 0x3f803f80')
    g('s_nop 0')
    g('v_cndmask_b32_e64 v18, 0, v19, vcc')
    g('s_mov_b32 s60, 0')
    g('s_mov_b32 s61, -1')
    g('s_mov_b32 s58, 0xf0000000')
    g('s_mov_b32 s59, 0xf0000000')
    def reads(n, buf, part):
        kc, ks = divmod(n, 4)
        st = kc % 4
        if part == 0:
            g(f'ds_read_b128 {vr(XF+4*buf,4)}, v{12+ks} offset:{st*16384}')
        for jj in range(2):
            off = st * WSTG + (ks*16 + jj) * WROW + part * 56
            g(f'ds_read_b64_tr_b16 {vr(WF+12*buf+4*part+2*jj,2)}, v16 offset:{off}')
    def mfma1(br, buf, t, first, types2):
        types = types2[br]
        x = XF + 4*buf; wf = WF + 12*buf + 4*t; d = ACCS[br] + 16*t
        c = None if first else d
        g(mfma(d, wf, x, c) if types[t] == 'QK' else mfma(d, x, wf, c))
    def epilogue_list(br, types2):
        types = types2[br]
        c0 = 's52' if br else 's63'
        L = []
        A = L.append
        ACC = ACCS[br]; P = PS[br]
        A('s_lshl_b32 s54, s22, 2')
        A('s_add_u32 s54, s54, s3')
        if br: A('s_add_u32 s54, s54, 1024')
        for t in range(3):
            a = ACC + 16*t; p = P + 8*t
            so = (48, 49, 53)[t]
            A(f's_add_u32 s62, {c0}, {t}')
            A('s_and_b32 s56, s62, 15')
            A('s_lshl_b32 s56, s56, 6')
            A('s_add_u32 s56, s56, s54')
            if types[t] == 'QK':
                A('s_cmp_lt_u32 s62, 16\n' + f's_cselect_b32 s57, {f32bits(QSCALE):#x}, 1.0\n' + 's_cselect_b32 s45, 0, 0x3f80\n' +
                  's_cselect_b32 s46, 11, 12\n' + f's_cselect_b32 s47, {WS_Q}, {WS_KV}')
                A('s_lshl_b32 s56, s56, s46')
                A(f's_add_u32 s{so}, s56, s47')
                A('v_mov_b32 v19, s45')
                for r in range(16): A(f'v_mul_f32 v{a+r}, s57, v{a+r}')
                for i in range(8): A(f'v_cvt_pk_bf16_f32 v{p+i}, v{a+2*i}, v{a+2*i+1}')
                A(f'v_cndmask_b32_e64 v{p+6}, v{p+6}, v19, s[60:61]')
                A(f'v_cndmask_b32_e64 v{p+7}, v{p+7}, 0, s[60:61]')
            else:
                A('s_lshl_b32 s56, s56, 12')
                A(f's_add_u32 s{so}, s56, {WS_KV + 2048}')
                for i in range(8): A(f'v_cvt_pk_bf16_f32 v{p+i}, v{a+2*i}, v{a+2*i+1}')
                for i in range(8): A(f'v_cndmask_b32_e64 v{p+i}, v{p+i}, v18, s[58:59]')
            if br:
                A('s_nop 1\n' + f'buffer_store_dwordx4 {vr(p,4)}, v2, s[32:35], s{so} offen{ST()}')
                A(f'buffer_store_dwordx4 {vr(p+4,4)}, v2, s[32:35], s{so} offen offset:1024{ST()}')
        return L
    g('s_mul_i32 s52, s23, 3')
    g('s_mul_i32 s63, s69, 3')
    T0, T1, T2 = ('QK','QK','QK'), ('QK','QK','V'), ('V','V','V')
    variants = [{1: T0, 0: T0}, {1: T0, 0: T1}, {1: T1, 0: T2}, {1: T2, 0: T2}, {1: T2, 0: T0}]
    g('s_cmp_eq_u32 s23, 9')
    g('s_cbranch_scc1 Lqkv_v1')
    g('s_cmp_eq_u32 s23, 10')
    g('s_cbranch_scc1 Lqkv_v2')
    g('s_cmp_eq_u32 s23, 15')
    g('s_cbranch_scc1 Lqkv_v4')
    g('s_cmp_gt_u32 s23, 10')
    g('s_cbranch_scc1 Lqkv_v3')
    NS = NCH * 4
    SIG_AT = OPT.get('sig_at', 32)
    for vi, types in enumerate(variants):
        if vi: g.label(f'Lqkv_v{vi}')
        g('s_barrier')
        if vi == 0: stamp(g, 2)
        for part in range(3): reads(0, 0, part)
        prefetch()
        epi = []
        EP0, EPN = OPT.get('ep0', 28), OPT.get('epn', 3)
        def fill(k):
            for _ in range(k):
                if epi: g(epi.pop(0))
        for n in range(NS):
            br = 1 if n < 28 else 0
            boundary = (n + 1) % 4 == 0 and n + 1 < NS
            nxt = n + 1 < NS
            buf = n & 1
            first = n % 28 == 0
            if n == EP0:
                epi = ['s_nop 7'] + epilogue_list(1, types)
                per = -(-len(epi) // (EPN * 3))
            inter = EP0 <= n < EP0 + EPN
            if boundary:
                if OPT.get('qkvst') and vi == 0 and n + 1 == SIG_AT: stamp(g, 11)
                g('s_waitcnt vmcnt(0) lgkmcnt(0)' if n + 1 in (SIG_AT, 24) else 's_waitcnt lgkmcnt(0)')
                if OPT.get('qkvst') and vi == 0 and n + 1 == SIG_AT: stamp(g, 12)
                g('s_barrier')
                if OPT.get('qkvst') and vi == 0:
                    c1 = (n + 1) // 4
                    m = {2: 5, 4: 6, 6: 7, 8: 8, 10: 9, 11: 10, 12: 13}
                    if c1 in m: stamp(g, m[c1])
                if n + 1 == SIG_AT:
                    sk = newlab('sigB'); ok = newlab('inited'); lp = newlab('initspin')
                    g('s_cmp_lg_u32 s3, 0')
                    g(f's_cbranch_scc1 {sk}')
                    g('v_readfirstlane_b32 s47, v31')
                    g('s_cmp_lg_u32 s47, 0')
                    g(f's_cbranch_scc1 {ok}')
                    g(f's_mov_b32 s68, {OPT["spin"]}')
                    g.label(lp)
                    g('buffer_load_dword v31, v30, s[36:39], 0 offen sc1')
                    g('s_waitcnt vmcnt(0)')
                    g('v_readfirstlane_b32 s47, v31')
                    g('s_cmp_lg_u32 s47, 0')
                    g(f's_cbranch_scc1 {ok}')
                    g('s_sub_u32 s68, s68, 1')
                    g('s_cmp_lg_u32 s68, 0')
                    g(f's_cbranch_scc1 {lp}')
                    g.label(ok)
                    g('s_mov_b64 exec, 1')
                    g('v_mov_b32 v1, 1')
                    g('s_lshl_b32 s47, s23, 8')
                    g(f's_add_u32 s47, s47, {CNT_B}')
                    g('v_mov_b32 v29, s47')
                    g('buffer_atomic_add v1, v29, s[64:67], 0 offen sc1')
                    g('s_mov_b64 exec, -1')
                    g.label(sk)
            else:
                g('s_waitcnt lgkmcnt(4)')
            mfma1(br, buf, 0, first, types)
            if nxt: reads(n + 1, buf ^ 1, 0)
            if inter: fill(per)
            if not boundary: g(f's_waitcnt lgkmcnt({5 if nxt else 2})')
            mfma1(br, buf, 1, first, types)
            if nxt: reads(n + 1, buf ^ 1, 1)
            if inter: fill(per)
            if not boundary: g(f's_waitcnt lgkmcnt({5 if nxt else 0})')
            mfma1(br, buf, 2, first, types)
            if nxt: reads(n + 1, buf ^ 1, 2)
            if inter: fill(per)
            if n == 27 and vi == 0: stamp(g, 3)
            if OPT.get('sbar', 0) and n == EP0 + EPN - 1:
                g('s_barrier')
        assert not epi
        if vi == 0: stamp(g, 14)
        g('s_barrier')
        if vi == 0: stamp(g, 4)
        init_dma_compute(g)
        for x in epilogue_list(0, types): g(x)
        if vi < 4: g('s_branch Lqkv_fin')
    g.label('Lqkv_fin')
    g('s_branch Lattn_setup')

def qkv_loader(g):
    g.label('Lloader')
    g('s_sub_u32 s43, s3, 4')
    g('s_lshl_b32 s44, s22, 7')
    g('s_lshl_b32 s45, s43, 5')
    g('s_add_u32 s44, s44, s45')
    g('v_lshrrev_b32 v10, 3, v0')
    g('v_add_u32 v10, s44, v10')
    g('v_mul_u32_u24 v10, 896, v10')
    g('v_lshrrev_b32 v11, 4, v0')
    g('v_and_b32 v12, 7, v0')
    g('v_xor_b32 v12, v12, v11')
    g('v_lshl_add_u32 v2, v12, 4, v10')
    g('v_xor_b32 v12, 4, v12')
    g('v_lshl_add_u32 v3, v12, 4, v10')
    g('v_add_u32 v3, 7168, v3')
    g('v_add_u32 v4, 14336, v2')
    g('v_add_u32 v5, 14336, v3')
    g('s_lshl_b32 s46, s43, 12')
    g('s_lshl_b32 s47, s43, 10')
    g('s_add_u32 s47, s47, 65536')
    g('s_lshl_b32 s44, s43, 6')
    g('s_mul_i32 s50, s23, 168')
    g('s_mul_i32 s51, s69, 168')
    def wcalc(n):
        g('v_add_u32 v10, s44, v0')
        if n: g(f'v_add_u32 v10, {256*n}, v10')
        g('v_mul_u32_u24 v11, 5958, v10')
        g('v_lshrrev_b32 v11, 16, v11')
        g('v_mul_u32_u24 v12, 11, v11')
        g('v_sub_u32 v12, v10, v12')
        g('v_and_b32 v13, 48, v11')
        g('v_and_b32 v14, 3, v11')
        g('v_lshl_add_u32 v13, v14, 2, v13')
        g('v_bfe_u32 v14, v11, 2, 2')
        g('v_add_u32 v13, v13, v14')
        g('v_mul_u32_u24 v13, 2688, v13')
        g(f'v_lshl_add_u32 v{6+n}, v12, 4, v13')
    wcalc(0)
    g('s_waitcnt lgkmcnt(0)')
    if OPT.get('wsoff'):
        g(f's_add_u32 s20, s20, {OPT["wsoff"] << 20}')
        g('s_addc_u32 s21, s21, 0')
    srd(g, 24, 10, 11, 1835008)
    srd(g, 28, 12, 13, 1204224)
    def rot_init(greg):
        g(f's_add_u32 s52, {greg}, s22')
        g('s_mul_i32 s53, s52, 37')
        g('s_lshr_b32 s53, s53, 8')
        g('s_mul_i32 s53, s53, 7')
        g('s_sub_u32 s52, s52, s53')
    def kc_offsets(c):
        if c == 7:
            if OPT.get('rot', 1): rot_init('s69')
            else: g('s_mov_b32 s52, 0')
        g('s_lshl_b32 s48, s52, 7')
        g('s_mul_i32 s49, s52, 172032')
        g(f's_add_u32 s49, s49, {"s50" if c < 7 else "s51"}')
        g('s_add_u32 s52, s52, 1')
        g('s_cmp_eq_u32 s52, 7')
        g('s_cselect_b32 s52, 0, s52')
    def issueX(c):
        st = c % 4
        sx = 24 if c < 7 else 32
        kc_offsets(c)
        for e in range(4):
            g(f's_add_u32 m0, s46, {st*16384 + e*1024}')
            g('s_nop 0')
            g(f'buffer_load_dwordx4 v{2+e}, s[{sx}:{sx+3}], s48 offen{INL()} lds')
    def issueW(c, ns=(0, 1, 2)):
        st = c % 4
        sw = 28 if c < 7 else 36
        for n in ns:
            if n == 2:
                sk = newlab('qs')
                g('s_cmp_eq_u32 s43, 3')
                g(f's_cbranch_scc1 {sk}')
            g(f's_add_u32 m0, s47, {st*WSTG + n*4096}')
            g('s_nop 0')
            g(f'buffer_load_dwordx4 v{6+n}, s[{sw}:{sw+3}], s49 offen{INL()} lds')
            if n == 2: g.label(sk)
    if OPT.get('rot', 1): rot_init('s23')
    else: g('s_mov_b32 s52, 0')
    def issue(c):
        issueX(c); issueW(c)
    if OPT.get('pfw') == 1: g('s_barrier')
    issueX(0)
    issueW(0, (0,))
    wcalc(1); issueW(0, (1,))
    wcalc(2); issueW(0, (2,))
    srd(g, 32, 4, 5, 1835008)
    srd(g, 36, 6, 7, 1204224)
    srd(g, 64, 20, 21, 0x4000, WS_CNT)
    g('s_and_b32 s40, s2, 7')
    g('s_bfe_u32 s41, s2, 0x10003')
    g('s_lshl_b32 s40, s40, 1')
    g('s_add_u32 s40, s40, s41')
    g('v_min_u32 v30, 2, v0')
    g('v_lshlrev_b32 v30, 4, v30')
    g('v_add_u32 v30, s40, v30')
    g('v_mul_u32_u24 v30, 43, v30')
    g('v_lshrrev_b32 v30, 7, v30')
    g('v_lshlrev_b32 v31, 8, v30')
    g(f'v_add_u32 v203, {CNT_B}, v31')
    if OPT.get('pfw') == 2: g('s_barrier')
    for c in range(1, 3): issue(c)
    issued = 2
    HOLD = OPT.get('hold', 9) if OPT.get('sbar', 0) else 99
    for c in range(NCH):
        rem = issued - c
        if c == 13:
            skq = newlab('w13'); skr = newlab('w13')
            g('s_cmp_lg_u32 s3, 4')
            g(f's_cbranch_scc1 {skq}')
            g('s_waitcnt vmcnt(1)')
            g(f's_branch {skr}')
            g.label(skq)
            g('s_waitcnt vmcnt(0)')
            g.label(skr)
        else:
            g(f's_waitcnt vmcnt({6*rem})')
        g('s_barrier')
        if c + 3 < NCH and not (HOLD <= c + 3 <= 10):
            issue(c + 3); issued = c + 3
        if OPT.get('sbar', 0) and c == 7:
            g('s_barrier')
            for cc in range(HOLD, 11):
                issue(cc); issued = cc
        if c == 10: attn_setup(g)
        if c == 11: set_mask(g, 32, 'first')
        if c == 12:
            skp = newlab('p12')
            g('s_cmp_lg_u32 s3, 4')
            g(f's_cbranch_scc1 {skp}')
            g('buffer_load_dword v201, v203, s[64:67], 0 offen sc1')
            g.label(skp)
    g('s_cmp_lg_u32 s3, 4')
    g('s_cbranch_scc1 Lh1_polled')
    g('s_waitcnt vmcnt(0)')
    g('v_cmp_ne_u32 vcc, 16, v201')
    g('s_nop 4')
    g('s_cbranch_vccz Lh1_polled')
    spin_until(g, 201, 203, 16)
    g.label('Lh1_polled')
    g('s_barrier')
    stamp(g, 4)
    g('s_add_u32 s47, s44, 0x200000')
    g('s_mov_b32 m0, s51')
    g('s_nop 0')
    for i in range(2):
        g(f'buffer_load_dwordx4 v2, s[24:27], s47 offen offset:{i*1024}{LD()} lds')
    stage_tile(g, 0)
    stage_tile(g, 1)
    stamp(g, 5)
    g('s_waitcnt vmcnt(4)')
    g('s_barrier')
    g('s_branch Lattn_go')

K2_SCR = 131072
QL = 200
def set_mask(g, dst, kind):
    for r in range(16):
        br_ = (r & 3) + 8 * (r >> 2)
        op = 'v_cmp_le_i32' if kind == 'diag' else 'v_cmp_gt_i32'
        g(f'{op} vcc, {br_}, v24')
        g('s_nop 1')
        g(f'v_cndmask_b32_e64 v{dst+r}, v25, 0, vcc')
def attn_setup(g):
    kvb_srd(g)
    g('s_lshr_b32 s41, s2, 4')
    g('s_and_b32 s42, s3, 3')
    g('s_lshr_b32 s43, s3, 2')
    g('v_lshlrev_b32 v2, 4, v0')
    g('s_lshl_b32 s44, s40, 6')
    g('s_lshl_b32 s45, s41, 2')
    g('s_add_u32 s45, s45, s42')
    g('s_add_u32 s44, s44, s45')
    g('s_lshl_b32 s44, s44, 11')
    srd(g, 24, 20, 21, 0x400000)
    g('s_sub_u32 s28, s32, 0x400000')
    g('s_subb_u32 s29, s33, 0')
    g('s_mov_b32 s30, 0x40000')
    g('s_mov_b32 s31, 0x20000')
    srd(g, 36, 20, 21, 0x400000, WS_O)
    g('v_min_u32 v30, 2, v0')
    g('v_lshlrev_b32 v30, 4, v30')
    g('v_add_u32 v30, s40, v30')
    g('v_mul_u32_u24 v30, 43, v30')
    g('v_lshrrev_b32 v30, 7, v30')
    g('v_lshlrev_b32 v31, 8, v30')
    g(f'v_add_u32 v203, {CNT_B}, v31')
    g('s_lshl_b32 s47, s41, 2')
    g('s_add_u32 s47, s47, s3')
    g('s_sub_u32 s47, s47, 8')
    g('s_lshl_b32 s50, s47, 12')
    g('s_cmp_lt_i32 s47, 0')
    g('s_cselect_b32 s50, 0x40000000, s50')
    g('v_add_u32 v28, s50, v2')
    g('s_add_u32 s47, s47, 8')
    g('s_lshl_b32 s50, s47, 12')
    g('v_add_u32 v29, s50, v2')
    g('s_lshl_b32 s47, s42, 12')
    g('v_add_u32 v3, s47, v2')
    g('s_lshl_b32 s47, s43, 14')
    g('v_add_u32 v4, s47, v2')
    g('v_add_u32 v5, 32768, v4')
    g(f'v_add_u32 v6, {K2_SCR}, v3')
    g('s_lshl_b32 s47, s42, 8')
    g(f's_add_u32 s47, s47, {K2_SCR+16384}')
    g('v_lshlrev_b32 v7, 2, v0')
    g('v_add_u32 v7, s47, v7')
    g('s_lshl_b32 s47, s42, 11')
    g(f's_add_u32 s51, s47, {K2_SCR}')
    g(f'v_add_u32 v{QL}, s51, v2')
    g('v_and_b32 v24, 31, v0')
    g('v_lshrrev_b32 v25, 5, v0')
    g('v_lshlrev_b32 v25, 2, v25')
    g('v_sub_u32 v24, v24, v25')
    g(f'v_mov_b32 v25, {NEGBIG:#x}')
    g('s_mov_b32 s60, 0')
    g('s_mov_b32 s61, -1')
    srd(g, 56, 20, 21, 0x1000000)

def phase_attn(g):
    g.label('Lattn_setup')
    QA = 8; QB = 16; MASK = 32; S0 = 48; S1 = 64; P = 80; OA = 88; OB = 104; KF = 120; VF = 128; T = 136
    TK = 144; TS = 152
    MNA = 26; MNB = 27
    SB = [S0, S1]
    attn_setup(g)
    set_mask(g, MASK, 'diag')
    stamp(g, 5)
    g('s_waitcnt vmcnt(4)')
    g('s_barrier')
    g.label('Lattn_go')
    g('s_cmp_eq_u32 s43, 99') if False else None
    def dma4(vreg, s, s_goff, s_m0, n=4, first=0):
        g(f's_mov_b32 m0, {s_m0}')
        g('s_nop 0')
        for i in range(first, first + n):
            g(f'buffer_load_dwordx4 v{vreg}, s[{s}:{s+3}], {s_goff} offen offset:{i*1024}{LD()} lds')
    stamp(g, 6)
    g(f'ds_read_b128 {vr(QB,4)}, v{QL}')
    g(f'ds_read_b128 {vr(QB+4,4)}, v{QL} offset:1024')

    def rowmax(sbuf, t):
        g(f'v_max3_f32 v{t}, v{sbuf}, v{sbuf+1}, v{sbuf+2}')
        for r in range(3, 15, 2):
            g(f'v_max3_f32 v{t}, v{t}, v{sbuf+r}, v{sbuf+r+1}')
        g(f'v_max_f32 v{t}, v{t}, v{sbuf+15}')
        g(f'v_mov_b32 v{t+1}, v{t}')
        g('s_nop 1')
        g(f'v_permlane32_swap_b32 v{t}, v{t+1}')
        g('s_nop 1')
        g(f'v_max_f32 v{t}, v{t}, v{t+1}')
    def set_standin(sbuf, q, mneg):
        t = T
        rowmax(sbuf, t)
        g(f'v_sub_f32 v{t}, 0, v{t}')
        g(f'v_cvt_pk_bf16_f32 v{t}, v{t}, 0')
        g(f'v_lshlrev_b32 v{mneg}, 16, v{t}')
        g('s_mov_b64 exec, s[60:61]')
        g(f'v_mov_b32 v{q+4+2}, v{t}')
        g('s_mov_b64 exec, -1')
    def slots(br, kh):
        if br == 1: return (2048, 0, None) if kh == 0 else (0, 1024, 2048)
        return (0, 1024, None) if kh == 0 else (2048, 0, 3072)
    def write_half(kh, br, O, mn):
        oo, mo, lo = slots(br, kh)
        src = O + 8 if kh == 0 else O
        g(f'ds_write_b128 v6, {vr(src,4)} offset:{oo}')
        g(f'ds_write_b128 v6, {vr(src+4,4)} offset:{oo+1024}')
        g(f'ds_write_b32 v7, v{mn} offset:{mo}')
        if kh == 1: g(f'ds_write_b32 v7, v{O+12} offset:{lo}')
    FB = 168
    def finish_half(tag, kh, br, O, mn, q, tmp):
        base = O + 8*kh
        oo, mo, lo = slots(br, 1 - kh)
        g(f'ds_read_b128 {vr(tmp,4)}, v6 offset:{oo}')
        g(f'ds_read_b128 {vr(tmp+4,4)}, v6 offset:{oo+1024}')
        g(f'ds_read_b32 v{T}, v7 offset:{mo}')
        if kh == 0: g(f'ds_read_b32 v{T+5}, v7 offset:{lo}')
        lp = T + 5 if kh == 0 else tmp + 4
        g('s_waitcnt lgkmcnt(0)')
        g(f'v_min_f32 v{T+1}, v{mn}, v{T}')
        g(f'v_sub_f32 v{T+2}, v{T+1}, v{mn}')
        g(f'v_sub_f32 v{T+3}, v{T+1}, v{T}')
        g(f'v_exp_f32 v{T+2}, v{T+2}')
        g(f'v_exp_f32 v{T+3}, v{T+3}')
        g('s_nop 0')
        g(f'v_mul_f32 v{T}, v{O+12}, v{T+2}')
        g(f'v_fmac_f32 v{T}, v{lp}, v{T+3}')
        for r in range(8): g(f'v_mul_f32 v{base+r}, v{base+r}, v{T+2}')
        g(f'v_mov_b32 v{T+1}, v{T}')
        for r in range(8): g(f'v_fmac_f32 v{base+r}, v{tmp+r}, v{T+3}')
        g(f'v_permlane32_swap_b32 v{T}, v{T+1}')
        g(f'v_mul_f32 v{T+4}, 0, v{base}')
        for r in range(1, 8): g(f'v_fmac_f32 v{T+4}, 0, v{base+r}')
        g(f'v_add_f32 v{T+4}, v{T+4}, v{T+1}')
        g(f's_mov_b32 s47, {f32bits(2.0**100):#x}')
        g(f'v_cmp_ngt_f32 vcc, s47, v{T+4}')
        g('s_nop 4')
        g(f's_cbranch_vccz L{tag}_ok')
        fallback(tag, br, O, q)
        g(f'v_mov_b32 v{T}, v{O+12}')
        g(f'v_mov_b32 v{T+1}, v{O+12}')
        g('s_nop 1')
        g(f'v_permlane32_swap_b32 v{T}, v{T+1}')
        g('s_nop 1')
        g.label(f'L{tag}_ok')
        g(f'v_rcp_f32 v{T+1}, v{T+1}')
        g('s_lshl_b32 s47, s41, 2')
        g('s_add_u32 s47, s47, s42')
        for r in range(8): g(f'v_mul_f32 v{base+r}, v{base+r}, v{T+1}')
        g(f's_add_u32 s47, s47, {br*64}')
        g('s_lshl_b32 s47, s47, 4')
        g('s_add_u32 s47, s47, s40')
        g('s_lshl_b32 s47, s47, 11')
        for i in range(4): g(f'v_cvt_pk_bf16_f32 v{tmp+i}, v{base+2*i}, v{base+2*i+1}')
        if kh == 1:
            g(f'v_cndmask_b32_e64 v{tmp+2}, v{tmp+2}, 0, s[60:61]')
            g(f'v_cndmask_b32_e64 v{tmp+3}, v{tmp+3}, 0, s[60:61]')
        g('s_nop 1')
        g(f'buffer_store_dwordx4 {vr(tmp,4)}, v2, s[36:39], s47 offen offset:{kh*1024}{ST()}')
        g('s_nop 1')
    def fallback(tag, br, O, q):
        FS, FK, FV, FP, FQ, Fm = FB, FB+16, FB+24, FB+32, FB+40, FB+48
        s = 28 if br == 0 else 32
        for i in range(8): g(f'v_mov_b32 v{FQ+i}, v{q+i}')
        g('s_mov_b64 exec, s[60:61]')
        g(f'v_mov_b32 v{FQ+6}, 0')
        g('s_mov_b64 exec, -1')
        for r in range(16): g(f'v_mov_b32 v{O+r}, 0')
        g(f'v_mov_b32 v{Fm}, v25')
        if br == 0:
            g('s_lshl_b32 s52, s41, 2')
            g('s_add_u32 s52, s52, s42')
            g('s_sub_u32 s53, s52, 8')
            g('s_mov_b32 s54, s52')
        else:
            g('s_mov_b32 s54, 63')
        g.label(f'L{tag}_fb_loop')
        g('s_lshl_b32 s55, s54, 12')
        for i in range(2):
            g(f'buffer_load_dwordx4 {vr(FK+4*i,4)}, v2, s[{s}:{s+3}], s55 offen offset:{i*1024}{LD()}')
            g(f'buffer_load_dwordx4 {vr(FV+4*i,4)}, v2, s[{s}:{s+3}], s55 offen offset:{2048+i*1024}{LD()}')
        if br == 0:
            g('s_cmp_eq_u32 s54, s52')
            g(f's_cbranch_scc1 L{tag}_fb_diag')
            g('s_cmp_eq_u32 s54, s53')
            g(f's_cbranch_scc1 L{tag}_fb_first')
        for r in range(16): g(f'v_mov_b32 v{FS+r}, 0')
        if br == 0:
            g(f's_branch L{tag}_fb_go')
            g.label(f'L{tag}_fb_diag')
            set_mask(g, FS, 'diag')
            g(f's_branch L{tag}_fb_go')
            g.label(f'L{tag}_fb_first')
            set_mask(g, FS, 'first')
            g.label(f'L{tag}_fb_go')
        g('s_waitcnt vmcnt(0)')
        g('s_nop 1')
        g(mfma(FS, FK, FQ, FS))
        g(mfma(FS, FK+4, FQ+4, FS))
        g('s_nop 15')
        rowmax(FS, Fm+1)
        g(f'v_max_f32 v{Fm+1}, v{Fm+1}, v{Fm}')
        g(f'v_sub_f32 v{Fm+2}, v{Fm}, v{Fm+1}')
        g(f'v_exp_f32 v{Fm+2}, v{Fm+2}')
        g(f'v_mov_b32 v{Fm}, v{Fm+1}')
        for r in range(16): g(f'v_sub_f32 v{FS+r}, v{FS+r}, v{Fm}')
        for r in range(16): g(f'v_exp_f32 v{FS+r}, v{FS+r}')
        for r in range(16): g(f'v_mul_f32 v{O+r}, v{O+r}, v{Fm+2}')
        for i in range(8): g(f'v_cvt_pk_bf16_f32 v{FP+i}, v{FS+2*i}, v{FS+2*i+1}')
        g('s_nop 1')
        g(mfma(O, FV, FP, O))
        g(mfma(O, FV+4, FP+4, O))
        g('s_nop 15')
        g('s_sub_u32 s54, s54, 1')
        g('s_cmp_lt_i32 s54, 0')
        g(f's_cbranch_scc1 L{tag}_fb_end')
        if br == 0:
            g('s_cmp_lt_i32 s54, s53')
            g(f's_cbranch_scc1 L{tag}_fb_end')
        g(f's_branch L{tag}_fb_loop')
        g.label(f'L{tag}_fb_end')

    g('s_cmp_eq_u32 s43, 0')
    g('s_cbranch_scc0 Lattn_kh1')

    def path(kh):
        tag = f'K{kh}'
        unitsA = [8, 7, 6, 5, 4] if kh == 0 else [3, 2, 1, 0]
        nA = len(unitsA); N = 32 + nA
        def unit(i):
            if i >= 32:
                u = unitsA[i - 32]
                masked = (kh == 0 and u == 8) or (kh == 1 and u == 0)
                return dict(base=3, off=u*4096, Q=QA, O=OA, C=MASK if masked else None, first=(i == 32))
            return dict(b=i, Q=QB, O=OB, C=None, first=(i == 0))
        def addr(i, cs):
            u = unit(i)
            if 'base' in u: return u['base'], u['off']
            b = u['b']; s = b >> 2
            if s == cs: return 4, (b & 3) * 4096
            assert s == cs + 1
            return 5, (b & 3) * 4096
        def rdK(i, cs, dst=KF):
            r, off = addr(i, cs)
            g(f'ds_read_b128 {vr(dst,4)}, v{r} offset:{off}')
            g(f'ds_read_b128 {vr(dst+4,4)}, v{r} offset:{off+1024}')
        def rdV(i, f, cs):
            r, off = addr(i, cs)
            g(f'ds_read_b128 {vr(VF+4*f,4)}, v{r} offset:{off+2048+f*1024}')
        rdK(0, 0)
        g('s_waitcnt lgkmcnt(0)')
        g(mfma(S0, KF, QB, None))
        g(mfma(S0, KF+4, QB+4, S0))
        g('s_nop 15')
        set_standin(S0, QB, MNB)
        g('s_nop 1')
        g(mfma(S0, KF, QB, None))
        g(mfma(S0, KF+4, QB+4, S0))
        rdK(1, 0)
        rdV(0, 0, 0)
        g('s_nop 15')
        if kh == 0: stamp(g, 7)
        if OPT.get('attst'): stamp(g, 2, q=True)
        def wo_piece(it):
            if it == 7:
                sk = newlab('wo7')
                g('s_cmp_lg_u32 s3, 0')
                g(f's_cbranch_scc1 {sk}')
                g(f's_add_u32 m0, s45, {65536 + it*8192}')
                g(f'v_add_u32 v31, {it*64*896}, v30')
                g('buffer_load_dwordx4 v31, s[56:59], 0 offen lds')
                g.label(sk)
            else:
                g(f's_add_u32 m0, s45, {65536 + it*8192}')
                g(f's_mov_b32 s50, {it*64*896}')
                g('buffer_load_dwordx4 v30, s[56:59], s50 offen lds')
        def wo_setup():
            g('s_mov_b32 s56, s14')
            g('s_mov_b32 s57, s15')
            g(f's_mov_b32 s58, {448*896}')
            g('s_mov_b32 s59, 0x20000')
            g('v_lshrrev_b32 v30, 3, v0')
            g('v_and_b32 v31, 7, v0')
            g('v_and_b32 v1, 2, v30')
            g('v_lshlrev_b32 v1, 1, v1')
            g('v_xor_b32 v31, v31, v1')
            g('s_lshl_b32 s50, s3, 3')
            g('v_add_u32 v30, s50, v30')
            g('v_mul_u32_u24 v30, 896, v30')
            g('v_lshl_add_u32 v30, v31, 4, v30')
            g('s_lshr_b32 s50, s2, 5')
            g('s_lshl_b32 s50, s50, 7')
            g('s_cmp_ge_u32 s2, 224')
            g('s_cselect_b32 s50, 0x40000000, s50')
            g('v_add_u32 v30, s50, v30')
            g('s_lshl_b32 s45, s3, 10')
        def dma_slot(i, inloop):
            if i == 0 or i == 1:
                st = i + 2
                g(f's_add_u32 s54, s55, {st*32768}')
                g(f's_add_u32 m0, s55, {(st&3)*32768}')
                g('s_nop 0')
                for k in range(4):
                    g(f'buffer_load_dwordx4 v2, s[32:35], s54 offen offset:{k*1024}{LD()} lds')
                return
            if i == 2 and kh == 0:
                for t in range(3):
                    g(f'buffer_store_dwordx4 {vr(208+8*t,4)}, v2, s[56:59], s{(48,49,53)[t]} offen{ST()}')
                    g(f'buffer_store_dwordx4 {vr(212+8*t,4)}, v2, s[56:59], s{(48,49,53)[t]} offen offset:1024{ST()}')
                return
            if i >= 30:
                if i == 30: wo_setup()
                before34 = {30: [0], 31: [1], 32: [2], 33: [3], 34: [4, 5], 35: [6, 7]}
                for it in before34.get(i, []): wo_piece(it)
                return
            if i < 6: return
            ph = (i - 2) & 3; st = ((i - 2) >> 2) + 3
            if i == 18:
                g('buffer_load_dword v201, v31, s[64:67], 0 offen sc1')
            if st <= 7:
                if ph == 0:
                    g(f's_add_u32 s54, s55, {st*32768}')
                    g(f's_add_u32 m0, s55, {(st&3)*32768}')
                    g('s_nop 0')
                g(f'buffer_load_dwordx4 v2, s[32:35], s54 offen offset:{ph*1024}{LD()} lds')
            elif st == 8:
                if ph == 0:
                    ok = newlab('aok')
                    g('v_cmp_ne_u32 vcc, 16, v201')
                    g('s_nop 4')
                    g(f's_cbranch_vccz {ok}')
                    spin_until(g, 201, 31, 16)
                    g.label(ok)
                    if kh == 1:
                        g('s_add_u32 s47, s51, 8192')
                        dma4(2, 24, 's44', 's47', n=2)
                    g('s_mov_b32 m0, s55')
                    g('s_nop 0')
                g(f'buffer_load_dwordx4 v28, s[28:31], 0 offen offset:{ph*1024}{LD()} lds')
            elif st == 9 and ph == 0 and kh == 0:
                g('s_add_u32 m0, s55, 32768')
                g('s_nop 0')
                for k in range(4):
                    g(f'buffer_load_dwordx4 v29, s[28:31], 0 offen offset:{k*1024}{LD()} lds')
        def body(i, cs, inloop=False):
            u = unit(i)
            sb = SB[i & 1]; sn = SB[(i + 1) & 1]
            e = [f'v_exp_f32 v{sb+r}, v{sb+r}' for r in range(16)]
            c = [f'v_cvt_pk_bf16_f32 v{P+k}, v{sb+2*k}, v{sb+2*k+1}' for k in range(8)]
            has1 = i + 1 < N; has2 = i + 2 < N
            if i < 32 and (i & 3) == 2:
                s = i >> 2
                if s == 7: vm = 0
                elif s == 0: vm = 8
                elif s == 1: vm = 4 if kh == 1 else 10
                elif s == 2: vm = 4 if kh == 1 else 10
                else: vm = 4
                if OPT.get('attst') and s in (0, 1, 2, 3, 5, 7): stamp(g, {0: 3, 1: 5, 2: 7, 3: 9, 5: 11, 7: 13}[s], q=True)
                g(f's_waitcnt vmcnt({vm}) lgkmcnt(0)' if vm is not None else 's_waitcnt lgkmcnt(0)')
                g('s_barrier')
                if OPT.get('attst') and s in (0, 1, 2, 3, 5, 7): stamp(g, {0: 4, 1: 6, 2: 8, 3: 10, 5: 12, 7: 14}[s], q=True)
                if s == 3 and kh == 1:
                    sk = newlab('sigA')
                    g('s_cmp_lg_u32 s3, 4')
                    g(f's_cbranch_scc1 {sk}')
                    g('s_mov_b64 exec, 1')
                    g('v_mov_b32 v1, 1')
                    g('s_lshl_b32 s47, s69, 8')
                    g('v_mov_b32 v202, s47')
                    g('buffer_atomic_add v1, v202, s[64:67], 0 offen sc1')
                    g('s_mov_b64 exec, -1')
                    g.label(sk)
                if s == 6:
                    g(f'ds_read_b128 {vr(QA,4)}, v{QL} offset:8192')
                    g(f'ds_read_b128 {vr(QA+4,4)}, v{QL} offset:9216')
                if s == 7 and kh == 0:
                    g(f'v_mov_b32 v204, {LFLAG}')
                    g('v_mov_b32 v205, 0')
                    g('ds_write_b32 v204, v205')
                    g('ds_write_b32 v204, v205 offset:4')
                    rdK(32, cs, TK)
                    g('s_waitcnt lgkmcnt(0)')
                    g(mfma(TS, TK, QA, unit(32)['C']))
                    g(mfma(TS, TK+4, QA+4, TS))
                    g('s_nop 15')
                    set_standin(TS, QA, MNA)
            elif i == 31 and kh == 1:
                g('s_waitcnt lgkmcnt(0)')
                g(mfma(TS, KF, QA, unit(32)['C']))
                g(mfma(TS, KF+4, QA+4, TS))
                g('s_nop 15')
                set_standin(TS, QA, MNA)
                g('s_lshl_b32 s47, s41, 2')
                g('s_add_u32 s47, s47, s42')
                g('s_cmp_lt_u32 s47, 5')
                g(f's_cbranch_scc0 L{tag}_valid')
                g(f'v_mov_b32 v{MNA}, {POSBIG:#x}')
                g.label(f'L{tag}_valid')
            elif i == 34:
                g('s_waitcnt lgkmcnt(0)')
                g('s_barrier')
                finish_half(f'FB{kh}', kh, 1, OB, MNB, QB, TS)
            else:
                g('s_waitcnt lgkmcnt(0)')
            pm = OPT.get('prio', 'lag')
            if pm == 'lag':
                g(f's_setprio {3 - ((i - 2) & 3)}')
            elif pm == 'lag2' and ((i - 2) & 1) == 0:
                g(f's_setprio {1 - (((i - 2) & 3) >> 1)}')
            elif pm == 'half':
                g(f's_setprio {3 - (((i - 2) & 1) * 2)}')
            g(e[0])
            if i > 0:
                up = unit(i - 1)
                g(mfma(up['O'], VF+4, P+4, up['O']))
            rdV(i, 1, cs)
            g(e[1]); g(e[2]); g(e[3])
            g(c[0])
            if i == 33:
                write_half(kh, 1, OB, MNB)
            if has1:
                un = unit(i + 1)
                g(mfma(sn, KF, un['Q'], un['C']))
            g(e[4]); g(e[5]); g(c[1]); g(e[6]); g(e[7]); g(c[2])
            if has1:
                g(mfma(sn, KF+4, un['Q']+4, sn))
            if has2:
                rdK(i + 2, cs)
            g(e[8]); g(c[3]); g(e[9]); g(e[10])
            dma_slot(i, inloop)
            g(e[11])
            if OPT.get('prio') == 'half':
                g(f's_setprio {2 - (((i - 2) & 1) * 2)}')
            g(mfma(u['O'], VF, P, None if u['first'] else u['O']))
            if has1:
                rdV(i + 1, 0, cs)
            for x in e[12:16]: g(x)
            g(c[4]); g(c[5]); g(c[6]); g(c[7])
        def advance():
            g('v_mov_b32 v4, v5')
            g('v_add_u32 v5, 32768, v5')
            g('v_and_b32 v5, 0x1ffff, v5')
        return body, advance, N, tag
    for kh in (0, 1):
        if kh == 1: g.label('Lattn_kh1')
        body, advance, N, tag = path(kh)
        for s_ in range(7):
            for j in range(4): body(4*s_ + j, s_)
            advance()
        for j in range(4): body(28 + j, 7)
        if kh == 0: stamp(g, 8)
        for i in range(32, N): body(i, 7)
        g('s_waitcnt lgkmcnt(0)')
        g('s_nop 1')
        g(mfma(OA, VF+4, P+4, OA))
        g('s_nop 15')
        write_half(kh, 0, OA, MNA)
        g('s_waitcnt vmcnt(3) lgkmcnt(0)')
        g('s_barrier')
        if kh == 1: signal_o(g, CNT_OB, 4)
        finish_half(f'FA{kh}', kh, 0, OA, MNA, QA, TS)
        g('s_waitcnt vmcnt(0)')
        g('s_mov_b64 exec, 1')
        g('v_mov_b32 v1, 1')
        g('s_lshl_b32 s47, s41, 8')
        g(f's_add_u32 s47, s47, {CNT_OA}')
        g('v_mov_b32 v31, s47')
        g('buffer_atomic_add v1, v31, s[64:67], 0 offen sc1')
        g('s_mov_b64 exec, -1')
        stamp(g, 9)
        if kh == 1:
            proj_group_B(g)
        else:
            proj_group_A(g)
    proj_common(g)

PJ_EX = 131072
def proj_setup(g, br):
    g(f's_mov_b32 s40, {br}')
    g('s_and_b32 s41, s2, 7')
    g('s_lshl_b32 s41, s41, 2')
    g('s_bfe_u32 s42, s2, 0x20003')
    g('s_add_u32 s41, s41, s42')
    g('s_lshr_b32 s42, s2, 5')
    g('s_and_b32 s43, s3, 1')
    g('s_bfe_u32 s44, s3, 0x10001')
    srd(g, 24, 16, 17, 2048 * 1792)
    g('s_lshl_b32 s45, s41, 1')
    g('s_add_u32 s45, s45, s43')
    g(f's_add_u32 s45, s45, {br*64}')
    g('s_lshl_b32 s45, s45, 15')
    g('s_lshl_b32 s46, s44, 14')
    g('s_add_u32 s45, s45, s46')
    g('v_bfe_u32 v4, v0, 2, 2')
    g('v_and_b32 v5, 3, v0')
    g('v_bfe_u32 v7, v0, 4, 1')
    g('v_lshrrev_b32 v6, 5, v0')
    g('v_lshlrev_b32 v7, 5, v7')
    g('v_lshl_add_u32 v7, v5, 3, v7')
    g('v_lshrrev_b32 v11, 4, v7')
    g('v_and_b32 v8, 2, v4')
    g('v_lshlrev_b32 v8, 1, v8')
    g('v_xor_b32 v11, v11, v8')
    g('v_and_b32 v7, 15, v7')
    g('v_lshl_add_u32 v7, v11, 4, v7')
    g('v_lshl_add_u32 v4, v6, 2, v4')
    g('v_lshl_add_u32 v9, v4, 7, v7')
    g('s_mul_i32 s46, s44, 28672')
    if br: g('s_add_u32 s46, s46, 65536')
    g('v_add_u32 v9, s46, v9')
    g('v_xor_b32 v10, 64, v9')
    g('s_lshl_b32 s46, s43, 1')
    g('s_add_u32 s46, s46, s44')
    g(f's_add_u32 s46, s46, {br*4}')
    g('s_lshl_b32 s46, s46, 12')
    g(f's_add_u32 s46, s46, {PJ_EX}')
    g('v_add_u32 v12, s46, v2')
    g('v_xor_b32 v13, 4096, v12')
    g('s_lshr_b32 s46, s41, 1')
    g('s_lshl_b32 s46, s46, 8')
    g(f's_add_u32 s46, s46, {CNT_OB if br else CNT_OA}')
    g('v_mov_b32 v30, s46')
def o_loads(g):
    OF = 64
    for n in range(16):
        if n % 4 == 0 and n > 0: g('s_add_u32 s45, s45, 4096')
        g(f'buffer_load_dwordx4 {vr(OF+4*n,4)}, v2, s[36:39], s45 offen offset:{(n%4)*1024}{LD()}')
def signal_o(g, cnt, wave):
    sk = newlab('sigO')
    g(f's_cmp_lg_u32 s3, {wave}')
    g(f's_cbranch_scc1 {sk}')
    g('s_mov_b64 exec, 1')
    g('v_mov_b32 v1, 1')
    g('s_lshl_b32 s47, s41, 8')
    g(f's_add_u32 s47, s47, {cnt}')
    g('v_mov_b32 v31, s47')
    g('buffer_atomic_add v1, v31, s[64:67], 0 offen sc1')
    g('s_mov_b64 exec, -1')
    g.label(sk)
def proj_group_B(g):
    g('s_cmp_ge_u32 s2, 224')
    g('s_cbranch_scc1 Lpj_idleB')
    srd(g, 56, 8, 9, 448*896)
    g('v_lshrrev_b32 v30, 3, v0')
    g('v_and_b32 v31, 7, v0')
    g('v_and_b32 v1, 2, v30')
    g('v_lshlrev_b32 v1, 1, v1')
    g('v_xor_b32 v31, v31, v1')
    g('s_and_b32 s50, s3, 3')
    g('s_lshl_b32 s51, s50, 3')
    g('v_add_u32 v30, s51, v30')
    g('v_mul_u32_u24 v30, 896, v30')
    g('v_lshl_add_u32 v30, v31, 4, v30')
    g('s_lshr_b32 s51, s2, 5')
    g('s_lshl_b32 s51, s51, 7')
    g('v_add_u32 v30, s51, v30')
    g('s_lshl_b32 s52, s50, 10')
    sk = newlab('woA')
    for it in range(15):
        if it == 14:
            g('s_cmp_lg_u32 s50, 0')
            g(f's_cbranch_scc1 {sk}')
        g(f's_add_u32 m0, s52, {it*4096}')
        if it == 14:
            g(f'v_add_u32 v31, {it*32*896}, v30')
            g('buffer_load_dwordx4 v31, s[56:59], 0 offen lds')
        else:
            g(f's_mov_b32 s51, {it*32*896}')
            g('buffer_load_dwordx4 v30, s[56:59], s51 offen lds')
    g.label(sk)
    proj_setup(g, 1)
    g('s_waitcnt vmcnt(0)')
    g('s_barrier')
    group_wait(g, 4, 1, 1, 30, 16)
    stamp(g, 10)
    o_loads(g)
    g('s_branch Lproj_common')
    g.label('Lpj_idleB')
    g('s_barrier')
    g('s_branch Lend')
def proj_group_A(g):
    g('s_cmp_ge_u32 s2, 224')
    sk = newlab('idleA')
    g(f's_cbranch_scc1 {sk}')
    proj_setup(g, 0)
    g('s_barrier')
    group_wait(g, 0, 0, 1, 30, 128)
    stamp(g, 10)
    o_loads(g)
    g('s_branch Lproj_common')
    g.label(sk)
    g('s_barrier')
    g('s_branch Lend')
def proj_common(g):
    g.label('Lproj_common')
    OF = 64; ACC = 16; WF = 48
    def rd(n, buf):
        h, i = divmod(n, 2)
        for ct in range(2):
            for jj in range(2):
                off = (28*h + 16*i + 8*jj) * 128
                g(f'ds_read_b64_tr_b16 {vr(WF+8*buf+4*ct+2*jj,2)}, v{9+ct} offset:{off}')
    rd(0, 0)
    for n in range(16):
        if n + 1 < 16: rd(n + 1, (n + 1) & 1)
        g(f's_waitcnt vmcnt({15-n}) lgkmcnt({4 if n + 1 < 16 else 0})')
        for ct in range(2):
            g(mfma(ACC + 16*ct, WF + 8*(n & 1) + 4*ct, OF + 4*n, None if n == 0 else ACC + 16*ct))
    g('s_nop 15')
    stamp(g, 12)
    g('s_cmp_eq_u32 s44, 0')
    g('s_cbranch_scc0 Lpj_k1')
    for i in range(4): g(f'ds_write_b128 v12, {vr(ACC+16+4*i,4)} offset:{i*1024}')
    g('s_branch Lpj_k2')
    g.label('Lpj_k1')
    for i in range(4): g(f'ds_write_b128 v12, {vr(ACC+4*i,4)} offset:{i*1024}')
    for r in range(16): g(f'v_mov_b32 v{ACC+r}, v{ACC+16+r}')
    g.label('Lpj_k2')
    g('s_waitcnt lgkmcnt(0)')
    g('s_barrier')
    for i in range(4): g(f'ds_read_b128 {vr(64+4*i,4)}, v13 offset:{i*1024}')
    g('v_and_b32 v4, 31, v0')
    g('s_lshl_b32 s46, s41, 6')
    g('s_lshl_b32 s47, s43, 5')
    g('s_add_u32 s46, s46, s47')
    g('v_add_u32 v4, s46, v4')
    g('v_mul_u32_u24 v4, 1792, v4')
    g('v_lshl_add_u32 v4, v6, 4, v4')
    g('s_mul_i32 s46, s40, 896')
    g('s_lshl_b32 s47, s42, 7')
    g('s_add_u32 s46, s46, s47')
    g('s_lshl_b32 s47, s44, 6')
    g('s_add_u32 s46, s46, s47')
    g('s_waitcnt lgkmcnt(0)')
    for r in range(16): g(f'v_add_f32 v{ACC+r}, v{ACC+r}, v{64+r}')
    P = 48
    for i in range(8): g(f'v_cvt_pk_bf16_f32 v{P+i}, v{ACC+2*i}, v{ACC+2*i+1}')
    g('s_nop 1')
    for k in range(2):
        a = P + 4*k
        g(f'v_permlane32_swap_b32 v{a}, v{a+2}')
        g(f'v_permlane32_swap_b32 v{a+1}, v{a+3}')
    g('s_nop 1')
    for k in range(2):
        g(f'buffer_store_dwordx4 {vr(P+4*k,4)}, v4, s[24:27], s46 offen offset:{32*k}' + ((' ' + OPT['ost']) if OPT.get('ost') else ''))

HEADER = '''; Kernarg layout for this problem (72 bytes, ptrs only, base s[0:1]):
'''
def main(out):
    g = Gen()
    g.raw(f'.globl {NAME}')
    g.raw('.p2align 8')
    g.raw(f'.type {NAME},@function')
    g.label(NAME)
    g('s_cmp_ge_u32 s2, 256')
    g('s_cbranch_scc1 Lexit')
    if OPT.get('tl'):
        for r in range(70, 102): g(f's_mov_b32 s{r}, 0')
    stamp(g, 0); stamp(g, 15, True)
    if OPT.get('tl'): g('s_memtime s[98:99]')
    g('s_load_dwordx16 s[4:19], s[0:1], 0')
    g('s_load_dwordx2 s[20:21], s[0:1], 64')
    g('v_lshrrev_b32 v1, 6, v0')
    g('v_and_b32 v0, 63, v0')
    g('s_nop 0')
    g('v_readfirstlane_b32 s3, v1')
    if OPT.get('swapw'): g('s_xor_b32 s3, s3, 4')
    prologue(g)
    qkv_compute(g)
    qkv_loader(g)
    phase_attn(g)
    g.label('Lend')
    if OPT['stamps'] or OPT.get('tl'): g('s_waitcnt vmcnt(0)')
    stamp(g, 13)
    if OPT.get('tl'):
        sk = newlab('tl')
        g('s_cmp_lg_u32 s3, 0')
        g(f's_cbranch_scc1 {sk}')
        g('s_memtime s[100:101]')
        g('s_waitcnt lgkmcnt(0)')
        srd(g, 56, 18, 19, 256)
        g('s_mov_b64 exec, 1')
        g('s_sub_u32 s100, s100, s98')
        g('s_sub_u32 s99, s96, s70')
        g('v_mov_b32 v20, s100')
        g('v_mov_b32 v21, s99')
        g('v_mov_b32 v3, 0')
        g('buffer_atomic_umax v20, v3, s[56:59], 0 offen offset:52')
        g('buffer_atomic_umax v21, v3, s[56:59], 0 offen offset:56')
        g('s_not_b32 s68, s70')
        g('v_mov_b32 v1, s68')
        g('v_mov_b32 v3, 0')
        g('buffer_atomic_umax v1, v3, s[56:59], 0 offen offset:4')
        for k, i in enumerate((0, 2, 3, 4, 6, 8, 9, 10, 11, 12, 13)):
            g(f'v_mov_b32 v{4+k}, s{70+2*i}')
            g(f'buffer_atomic_umax v{4+k}, v3, s[56:59], 0 offen offset:{8+4*k}')
        g('s_waitcnt vmcnt(0)')
        g.label(sk)
    if OPT['stamps']: g('s_memrealtime s[72:73]')
    stamp_dump(g)
    g.label('Lexit')
    g('s_endpgm')
    txt = HEADER + f'; @launch grid=(256,1,1) block=(512,1,1) lds={LDS_BYTES}\n'
    txt += '.amdgcn_target "amdgcn-amd-amdhsa--gfx950"\n.text\n' + g.text()
    txt += f'''.section .rodata,"a"
.p2align 6
.amdhsa_kernel {NAME}
  .amdhsa_next_free_vgpr 232
  .amdhsa_next_free_sgpr 102
  .amdhsa_accum_offset 232
  .amdhsa_group_segment_fixed_size 0
  .amdhsa_kernarg_size 72
  .amdhsa_user_sgpr_count 2
  .amdhsa_user_sgpr_kernarg_segment_ptr 1
  .amdhsa_system_sgpr_workgroup_id_x 1
.end_amdhsa_kernel
'''
    open(out, 'w').write(txt)

if __name__ == '__main__':
    out = sys.argv[1] if len(sys.argv) > 1 else 'concat_heads__sliding_block__softmax_full_mha__prompt.s'
    for a in sys.argv[2:]:
        if '=' in a:
            k, v = a.split('=', 1)
            OPT[k] = v if k in ('st', 'ld', 'prio', 'ost', 'inl') else (int(v) if v.isdigit() else v)
        else:
            OPT[a] = True
    main(out)
```

```python
import sys, math, struct

def f32bits(x): return struct.unpack('<I', struct.pack('<f', x))[0]

class Gen:
    def __init__(self): self.lines = []
    def __call__(self, s):
        for l in s.split('\n'):
            l = l.strip()
            if l: self.lines.append('  ' + l)
    def label(self, s): self.lines.append(s + ':')
    def raw(self, s): self.lines.append(s)
    def text(self): return '\n'.join(self.lines) + '\n'

def vr(base, n): return f'v[{base}:{base+n-1}]'
def mfma(d, a, b, c):
    cs = '0' if c is None else vr(c, 16)
    return f'v_mfma_f32_32x32x16_bf16 {vr(d,16)}, {vr(a,4)}, {vr(b,4)}, {cs}'

OPT = dict(stamps=False, st='sc1', ld='', spin=200000, pf=5)
NAME = 'concat_heads__sliding_block__softmax_full_mha__prompt_kernel'
STAMP_BASE = 0x2000000
def stamp(g, i, real=False, q=False):
    if OPT.get('tl'):
        if i in (0, 2, 3, 4, 6, 8, 9, 10, 11, 12, 13): g(f's_memrealtime s[{70+2*i}:{71+2*i}]')
        return
    if not OPT['stamps']: return
    import inspect
    if OPT.get('qkvst') and 5 <= i <= 13:
        caller = inspect.stack()[1].function
        if caller != 'qkv_compute': return
    if (OPT.get('attst') or OPT.get('probe') or OPT.get('tailst')) and 2 <= i <= 12 and not q: return
    op = 's_memrealtime' if real else 's_memtime'
    g(f'{op} s[{70+2*i}:{71+2*i}]')
def stamp_dump(g):
    if not OPT['stamps']: return
    g('s_waitcnt lgkmcnt(0) vmcnt(0)')
    g(f's_add_u32 s64, s20, {STAMP_BASE}')
    g(f's_addc_u32 s65, s21, 0')
    g('s_mov_b32 s66, 0x100000')
    g('s_mov_b32 s67, 0x20000')
    g('s_mov_b64 exec, -1')
    g('v_mov_b32 v1, 0')
    for i in range(16):
        g(f'v_writelane_b32 v1, s{70+2*i}, {i}')
    g('s_lshl_b32 s68, s2, 3')
    g('s_add_u32 s68, s68, s3')
    g('s_lshl_b32 s68, s68, 6')
    g('v_lshlrev_b32 v3, 2, v0')
    g('v_cmp_gt_u32 vcc, 16, v0')
    g('s_and_saveexec_b64 s[62:63], vcc')
    g('buffer_store_dword v1, v3, s[64:67], s68 offen')
    g('s_waitcnt vmcnt(0)')

WS_Q = 0
WS_KV = 0x400000
WS_O = 0xC00000
WS_CNT = 0x1000000
CNT_A, CNT_B, CNT_OA, CNT_OB = 0, 16 * 256, 32 * 256, 48 * 256
QSCALE = (28 ** -0.5) * math.log2(math.e)
NEGBIG = 0xf149f2ca
POSBIG = 0x7149f2ca
LDS_BYTES = 163840

def srd(g, dst, lo, hi, nbytes, add=0):
    if add:
        g(f's_add_u32 s{dst}, s{lo}, {add}')
        g(f's_addc_u32 s{dst+1}, s{hi}, 0')
    else:
        g(f's_mov_b32 s{dst}, s{lo}')
        g(f's_mov_b32 s{dst+1}, s{hi}')
    g(f's_mov_b32 s{dst+2}, {nbytes}')
    g(f's_mov_b32 s{dst+3}, 0x20000')
def ST(): return (' ' + OPT['st']) if OPT['st'] else ''
def INL(): return (' ' + OPT['inl']) if OPT.get('inl') else ''
def LD(): return (' ' + OPT['ld']) if OPT['ld'] else ''
lab = [0]
def newlab(p):
    lab[0] += 1
    return f'L{p}_{lab[0]}'

def spin_until(g, vdst, voff, target, tmp=205):
    l0 = newlab('poll'); l1 = newlab('pdone')
    g(f's_mov_b32 s68, {OPT["spin"]}')
    g.label(l0)
    g(f'buffer_load_dword v{vdst}, v{voff}, s[64:67], 0 offen sc1')
    g('s_waitcnt vmcnt(0)')
    g(f'v_cmp_ne_u32 vcc, {target}, v{vdst}')
    g('s_nop 4')
    g(f's_cbranch_vccz {l1}')
    if OPT.get('sleep', 1): g(f's_sleep {OPT.get("sleep", 1)}')
    g('s_sub_u32 s68, s68, 1')
    g('s_cmp_lg_u32 s68, 0')
    g(f's_cbranch_scc1 {l0}')
    g.label(l1)
LFLAG = 65536 - 64
def group_wait(g, leader, word, vdst, voff, target):
    lf = newlab('follow'); ld = newlab('gdone'); lp = newlab('lspin')
    g(f'v_mov_b32 v204, {LFLAG + 4*word}')
    g(f's_cmp_lg_u32 s3, {leader}')
    g(f's_cbranch_scc1 {lf}')
    spin_until(g, vdst, voff, target)
    g('v_mov_b32 v205, 1')
    g('ds_write_b32 v204, v205')
    g('s_waitcnt lgkmcnt(0)')
    g(f's_branch {ld}')
    g.label(lf)
    g(f's_mov_b32 s68, {OPT["spin"] * 16}')
    g.label(lp)
    g('ds_read_b32 v205, v204')
    g('s_waitcnt lgkmcnt(0)')
    g('v_readfirstlane_b32 s47, v205')
    g('s_cmp_lg_u32 s47, 0')
    g(f's_cbranch_scc1 {ld}')
    g('s_sleep 1')
    g('s_sub_u32 s68, s68, 1')
    g('s_cmp_lg_u32 s68, 0')
    g(f's_cbranch_scc1 {lp}')
    g.label(ld)

WROW = 176
WSTG = 64 * WROW
NCH = 14
def prologue(g):
    g('s_and_b32 s40, s2, 7')
    g('s_lshr_b32 s41, s2, 3')
    g('s_lshr_b32 s22, s40, 1')
    g('s_lshl_b32 s22, s22, 2')
    g('s_and_b32 s42, s41, 3')
    g('s_add_u32 s22, s22, s42')
    g('s_and_b32 s23, s40, 1')
    g('s_lshl_b32 s23, s23, 3')
    g('s_lshr_b32 s42, s41, 2')
    g('s_add_u32 s23, s23, s42')
    g('s_add_u32 s69, s23, 1')
    g('s_and_b32 s69, s69, 7')
    g('s_and_b32 s42, s23, 8')
    g('s_or_b32 s69, s69, s42')
    g('s_cmp_ge_u32 s3, 4')
    g('s_cbranch_scc1 Lloader')

def kvb_srd(g):
    g('s_and_b32 s40, s2, 7')
    g('s_bfe_u32 s41, s2, 0x10003')
    g('s_lshl_b32 s40, s40, 1')
    g('s_add_u32 s40, s40, s41')
    g('s_lshl_b32 s47, s40, 18')
    g(f's_add_u32 s47, s47, {WS_KV + 0x400000}')
    g('s_add_u32 s32, s20, s47')
    g('s_addc_u32 s33, s21, 0')
    g('s_mov_b32 s34, 0x40000')
    g('s_mov_b32 s35, 0x20000')
    g('s_lshl_b32 s55, s3, 12')
def stage_tile(g, st):
    g(f's_add_u32 s54, s55, {st*32768}')
    g(f's_add_u32 m0, s55, {(st&3)*32768}')
    g('s_nop 0')
    for i in range(4):
        g(f'buffer_load_dwordx4 v2, s[32:35], s54 offen offset:{i*1024}{LD()} lds')
def init_dma_compute(g):
    kvb_srd(g)
    stage_tile(g, 0)
    stage_tile(g, 1)

def pf_lines(g, br, part, vt, vd):
    if part == 'x':
        lo, hi = (10, 11) if br else (4, 5)
        srd(g, 24, lo, hi, 1835008)
        g('s_bfe_u32 s46, s2, 0x20001')
        g('s_mul_i32 s46, s46, 458752')
        g('s_lshr_b32 s47, s2, 3')
        g('s_mul_i32 s47, s47, 14336')
        g('s_add_u32 s46, s46, s47')
        g(f'v_lshlrev_b32 v{vt}, 7, v0')
        g(f'v_add_u32 v{vt}, s46, v{vt}')
        g(f'buffer_load_dword v{vd}, v{vt}, s[24:27], 0 offen')
        g(f'v_add_u32 v{vt}, 8192, v{vt}')
        g('s_mov_b64 exec, 0x0000ffffffffffff') if False else None
        g('v_cmp_gt_u32 vcc, 48, v0')
        g('s_and_saveexec_b64 s[44:45], vcc')
        g(f'buffer_load_dword v{vd+1}, v{vt}, s[24:27], 0 offen')
        g('s_mov_b64 exec, s[44:45]')
    else:
        lo, hi = (12, 13) if br else (6, 7)
        srd(g, 24, lo, hi, 1204224)
        g('s_and_b32 s46, s2, 1')
        g('s_mul_i32 s46, s46, 1280')
        g('s_lshr_b32 s47, s2, 3')
        g('s_mul_i32 s47, s47, 37632')
        g('s_add_u32 s46, s46, s47')
        for k in range(3):
            g(f'v_add_u32 v{vt}, {64*k}, v0')
            g(f'v_mul_u32_u24 v{vt+1}, 5958, v{vt}')
            g(f'v_lshrrev_b32 v{vt+1}, 16, v{vt+1}')
            g(f'v_mul_u32_u24 v{vt+2}, 11, v{vt+1}')
            g(f'v_sub_u32 v{vt+2}, v{vt}, v{vt+2}')
            g(f'v_mul_u32_u24 v{vt+1}, 2688, v{vt+1}')
            g(f'v_lshl_add_u32 v{vt+1}, v{vt+2}, 7, v{vt+1}')
            g(f'v_add_u32 v{vt+1}, s46, v{vt+1}')
            if k == 2:
                g('v_cmp_gt_u32 vcc, 26, v0')
                g('s_and_saveexec_b64 s[44:45], vcc')
            g(f'buffer_load_dword v{vd+k}, v{vt+1}, s[24:27], 0 offen')
            if k == 2: g('s_mov_b64 exec, s[44:45]')

def PREFETCH_A(g):
    l1 = newlab('pf'); l2 = newlab('pf'); ld = newlab('pf')
    g('s_cmp_ge_u32 s3, 2')
    g(f's_cbranch_scc1 {l1}')
    srd(g, 24, 4, 5, 1835008)
    g('s_mul_i32 s46, s2, 7168')
    g('s_lshl_b32 s47, s3, 12')
    g('s_add_u32 s46, s46, s47')
    g('v_add_u32 v20, s46, v2')
    for i in range(4):
        g(f'buffer_load_dwordx4 v[{144+4*i}:{147+4*i}], v20, s[24:27], 0 offen offset:{i*1024}')
    g(f's_branch {ld}')
    g.label(l1)
    g('s_cmp_eq_u32 s3, 2')
    g(f's_cbranch_scc0 {l2}')
    srd(g, 24, 6, 7, 1204224)
    g('s_mul_i32 s46, s2, 4704')
    g('v_add_u32 v20, s46, v2')
    g('v_add_u32 v21, 4096, v20')
    for i in range(5):
        g(f'buffer_load_dwordx4 v[{144+4*i}:{147+4*i}], v{20 if i < 4 else 21}, s[24:27], 0 offen offset:{(i%4)*1024}')
    g(f's_branch {ld}')
    g.label(l2)
    g('s_mul_i32 s46, s2, 1568')
    g('v_add_u32 v20, s46, v2')
    srd(g, 24, 8, 9, 448*896)
    for i in range(2):
        g(f'buffer_load_dwordx4 v[{144+4*i}:{147+4*i}], v20, s[24:27], 0 offen offset:{i*1024}')
    srd(g, 28, 14, 15, 448*896)
    for i in range(2):
        g(f'buffer_load_dwordx4 v[{152+4*i}:{155+4*i}], v20, s[28:31], 0 offen offset:{i*1024}')
    g.label(ld)

def qkv_compute(g):
    g('v_and_b32 v4, 31, v0')
    g('s_lshl_b32 s44, s3, 5')
    g('v_add_u32 v4, s44, v4')
    g('v_lshlrev_b32 v4, 7, v4')
    g('v_bfe_u32 v5, v0, 1, 3')
    g('v_lshrrev_b32 v6, 5, v0')
    for ks in range(4):
        g(f'v_add_u32 v7, {2*ks}, v6')
        g('v_xor_b32 v7, v7, v5')
        g(f'v_lshl_add_u32 v{12+ks}, v7, 4, v4')
    g('v_bfe_u32 v4, v0, 2, 2')
    g('v_and_b32 v5, 3, v0')
    g('v_bfe_u32 v7, v0, 4, 1')
    g('v_lshlrev_b32 v7, 5, v7')
    g('v_lshl_add_u32 v7, v5, 3, v7')
    g('v_lshlrev_b32 v4, 1, v4')
    g('v_add_u32 v4, v4, v6')
    g(f'v_mul_u32_u24 v4, {2*WROW}, v4')
    g('v_add_u32 v4, v4, v7')
    g('v_add_u32 v16, 65536, v4')
    g('v_lshlrev_b32 v2, 4, v0')
    g('s_waitcnt lgkmcnt(0)')
    if OPT.get('wsoff'):
        g(f's_add_u32 s20, s20, {OPT["wsoff"] << 20}')
        g('s_addc_u32 s21, s21, 0')
    stamp(g, 1)
    srd(g, 32, 20, 21, 0x1000000)
    srd(g, 64, 20, 21, 0x4000, WS_CNT)
    g('s_or_b32 s44, s2, s3')
    g('s_cmp_lg_u32 s44, 0')
    g('s_cbranch_scc1 Lnoinit')
    g('v_lshlrev_b32 v20, 8, v0')
    g('v_mov_b32 v21, 0')
    g('buffer_store_dword v21, v20, s[64:67], 0 offen sc1')
    g('s_waitcnt vmcnt(0)')
    srd(g, 36, 18, 19, 256)
    g('s_mov_b64 exec, 1')
    g('v_mov_b32 v21, 1')
    g('v_mov_b32 v20, 0')
    g('buffer_store_dword v21, v20, s[36:39], 0 offen sc1')
    g('s_mov_b64 exec, -1')
    g.label('Lnoinit')
    if OPT.get('codepf'):
        g('s_getpc_b64 s[24:25]')
        g.label('Lpc_here')
        g(f's_sub_u32 s24, s24, Lpc_here-{NAME}')
        g('s_subb_u32 s25, s25, 0')
        g(f's_mov_b32 s26, Lexit-{NAME}')
        g('s_mov_b32 s27, 0x20000')
        g('s_lshr_b32 s46, s2, 3')
        g('s_lshl_b32 s46, s46, 2')
        g('s_add_u32 s46, s46, s3')
        g('s_lshl_b32 s46, s46, 10')
        g('v_add_u32 v20, s46, v2')
        g('buffer_load_dwordx4 v[144:147], v20, s[24:27], 0 offen')
    if OPT.get('probe'):
        g('s_mul_i32 s46, s2, 7168')
        g('v_add_u32 v20, s46, v2')
        stamp(g, 5, q=True)
        srd(g, 24, 10, 11, 1835008)
        g('buffer_load_dword v160, v20, s[24:27], 0 offen'); g('s_waitcnt vmcnt(0)'); stamp(g, 6, q=True)
        srd(g, 24, 12, 13, 1204224)
        g('s_mul_i32 s46, s2, 4704'); g('v_add_u32 v21, s46, v2')
        g('buffer_load_dword v160, v21, s[24:27], 0 offen'); g('s_waitcnt vmcnt(0)'); stamp(g, 7, q=True)
        srd(g, 24, 4, 5, 1835008)
        g('buffer_load_dword v160, v20, s[24:27], 0 offen'); g('s_waitcnt vmcnt(0)'); stamp(g, 8, q=True)
        g('buffer_load_dword v160, v20, s[24:27], 0 offen offset:2048'); g('s_waitcnt vmcnt(0)'); stamp(g, 9, q=True)
        srd(g, 24, 6, 7, 1204224)
        g('buffer_load_dword v160, v21, s[24:27], 0 offen'); g('s_waitcnt vmcnt(0)'); stamp(g, 10, q=True)
        g('buffer_load_dword v160, v21, s[24:27], 0 offen offset:2048'); g('s_waitcnt vmcnt(0)'); stamp(g, 11, q=True)
    if OPT.get('pf', 1) in (2, 4):
        l1 = newlab('pfb'); ld = newlab('pfb')
        g('s_cmp_ge_u32 s3, 2')
        g(f's_cbranch_scc1 {l1}')
        srd(g, 24, 10, 11, 1835008)
        g('s_mul_i32 s46, s2, 7168')
        g('s_lshl_b32 s47, s3, 12')
        g('s_add_u32 s46, s46, s47')
        g('v_add_u32 v20, s46, v2')
        for i in range(4):
            g(f'buffer_load_dwordx4 v[{160+4*i}:{163+4*i}], v20, s[24:27], 0 offen offset:{i*1024}')
        g(f's_branch {ld}')
        g.label(l1)
        srd(g, 24, 12, 13, 1204224)
        g('s_mul_i32 s46, s2, 4704')
        g('s_and_b32 s47, s3, 1')
        g('s_mul_i32 s47, s47, 3072')
        g('s_add_u32 s46, s46, s47')
        g('v_add_u32 v20, s46, v2')
        for i in range(3):
            g(f'buffer_load_dwordx4 v[{160+4*i}:{163+4*i}], v20, s[24:27], 0 offen offset:{i*1024}')
        g.label(ld)
    if OPT.get('pf', 1) == 4:
        PREFETCH_A(g)
    if OPT.get('pfw'):
        g('s_waitcnt vmcnt(%d)' % (0 if OPT.get('pf') != 4 else 4))
        g('s_barrier')
    if OPT.get('pf', 1) == 3:
        l1 = newlab('pf3'); l2 = newlab('pf3'); ld = newlab('pf3')
        g('s_cmp_eq_u32 s3, 0')
        g(f's_cbranch_scc0 {l1}')
        pf_lines(g, 1, 'x', 20, 160)
        g(f's_branch {ld}')
        g.label(l1)
        g('s_cmp_eq_u32 s3, 1')
        g(f's_cbranch_scc0 {ld}')
        pf_lines(g, 1, 'w', 20, 160)
        g.label(ld)
    if OPT.get('tw'):
        g('s_mov_b64 exec, 1')
        g('v_mov_b32 v20, 0')
        g('v_mov_b32 v21, 0')
        for br_, c0r in ((1, 's23'), (0, 's69')):
            g(f's_mul_i32 s46, {c0r}, 3')
            for t in range(3):
                g(f's_add_u32 s47, s46, {t}')
                g('s_and_b32 s44, s47, 15')
                g('s_lshl_b32 s44, s44, 6')
                g('s_lshl_b32 s45, s22, 2')
                g('s_add_u32 s44, s44, s45')
                g('s_add_u32 s44, s44, s3')
                if br_: g('s_add_u32 s44, s44, 1024')
                g('s_cmp_lt_u32 s47, 16')
                g('s_cselect_b32 s45, 11, 12')
                g(f's_cselect_b32 s43, {WS_Q}, {WS_KV}')
                g('s_lshl_b32 s44, s44, s45')
                g('s_add_u32 s44, s44, s43')
                g('s_cmp_ge_u32 s47, 32')
                g('s_cselect_b32 s45, 2048, 0')
                g('s_add_u32 s44, s44, s45')
                g('buffer_store_dword v21, v20, s[32:35], s44 offen sc1')
        g('s_and_b32 s44, s2, 7')
        g('s_bfe_u32 s45, s2, 0x10003')
        g('s_lshl_b32 s44, s44, 1')
        g('s_add_u32 s44, s44, s45')
        g('s_lshr_b32 s45, s2, 4')
        g('s_lshl_b32 s45, s45, 2')
        g('s_add_u32 s45, s45, s3')
        g('s_lshl_b32 s45, s45, 4')
        g('s_add_u32 s45, s45, s44')
        g('s_lshl_b32 s45, s45, 11')
        g(f's_add_u32 s45, s45, {WS_O}')
        g('buffer_store_dword v21, v20, s[32:35], s45 offen sc1')
        g('s_add_u32 s45, s45, 0x200000')
        g('buffer_store_dword v21, v20, s[32:35], s45 offen sc1')
        g('s_mov_b64 exec, -1')
    srd(g, 36, 18, 19, 256)
    g('v_mov_b32 v30, 0')
    g('buffer_load_dword v31, v30, s[36:39], 0 offen sc1')
    def prefetch():
        if not OPT.get('pf', 1) or OPT.get('pf') == 4: return
        if OPT.get('pf') == 5:
            ld = newlab('pf5')
            g('s_cmp_ge_u32 s3, 2')
            g(f's_cbranch_scc1 {ld}')
            g('s_cmp_eq_u32 s3, 0')
            g('s_cselect_b32 s24, s8, s14')
            g('s_cselect_b32 s25, s9, s15')
            g(f's_mov_b32 s26, {448*896}')
            g('s_mov_b32 s27, 0x20000')
            g('s_mul_i32 s46, s2, 1568')
            g('v_add_u32 v20, s46, v2')
            for i in range(2):
                g(f'buffer_load_dwordx4 v[{168+4*i}:{171+4*i}], v20, s[24:27], 0 offen offset:{i*1024}')
            g.label(ld)
            return
        if OPT.get('pf', 1) == 3:
            l1 = newlab('pf3'); l2 = newlab('pf3'); ld = newlab('pf3')
            g('s_cmp_eq_u32 s3, 2')
            g(f's_cbranch_scc0 {l1}')
            pf_lines(g, 0, 'x', 20, 164)
            g(f's_branch {ld}')
            g.label(l1)
            g('s_cmp_eq_u32 s3, 3')
            g(f's_cbranch_scc0 {l2}')
            pf_lines(g, 0, 'w', 20, 164)
            g(f's_branch {ld}')
            g.label(l2)
            g('s_cmp_eq_u32 s3, 0')
            g('s_cselect_b32 s24, s8, s14')
            g('s_cselect_b32 s25, s9, s15')
            g(f's_mov_b32 s26, {448*896}')
            g('s_mov_b32 s27, 0x20000')
            g('s_mul_i32 s46, s2, 1568')
            g('v_add_u32 v20, s46, v2')
            for i in range(2):
                g(f'buffer_load_dwordx4 v[{168+4*i}:{171+4*i}], v20, s[24:27], 0 offen offset:{i*1024}')
            g.label(ld)
            return
        l1 = newlab('pf'); l2 = newlab('pf'); ld = newlab('pf')
        g('s_cmp_ge_u32 s3, 2')
        g(f's_cbranch_scc1 {l1}')
        srd(g, 24, 4, 5, 1835008)
        g('s_mul_i32 s46, s2, 7168')
        g('s_lshl_b32 s47, s3, 12')
        g('s_add_u32 s46, s46, s47')
        g('v_add_u32 v20, s46, v2')
        for i in range(4):
            g(f'buffer_load_dwordx4 v[{144+4*i}:{147+4*i}], v20, s[24:27], 0 offen offset:{i*1024}')
        g(f's_branch {ld}')
        g.label(l1)
        g('s_cmp_eq_u32 s3, 2')
        g(f's_cbranch_scc0 {l2}')
        srd(g, 24, 6, 7, 1204224)
        g('s_mul_i32 s46, s2, 4704')
        g('v_add_u32 v20, s46, v2')
        g('v_add_u32 v21, 4096, v20')
        for i in range(5):
            g(f'buffer_load_dwordx4 v[{144+4*i}:{147+4*i}], v{20 if i < 4 else 21}, s[24:27], 0 offen offset:{(i%4)*1024}')
        g(f's_branch {ld}')
        g.label(l2)
        g('s_mul_i32 s46, s2, 1568')
        g('v_add_u32 v20, s46, v2')
        srd(g, 24, 8, 9, 448*896)
        for i in range(2):
            g(f'buffer_load_dwordx4 v[{144+4*i}:{147+4*i}], v20, s[24:27], 0 offen offset:{i*1024}')
        srd(g, 28, 14, 15, 448*896)
        for i in range(2):
            g(f'buffer_load_dwordx4 v[{152+4*i}:{155+4*i}], v20, s[28:31], 0 offen offset:{i*1024}')
        g.label(ld)
    XF = 80; WF = 88
    ACCS = {1: 32, 0: 144}
    PS = {1: 112, 0: 208}
    g('v_and_b32 v18, 31, v0')
    g('v_cmp_eq_u32 vcc, 28, v18')
    g('v_mov_b32 v19, 0x3f803f80')
    g('s_nop 0')
    g('v_cndmask_b32_e64 v18, 0, v19, vcc')
    g('s_mov_b32 s60, 0')
    g('s_mov_b32 s61, -1')
    g('s_mov_b32 s58, 0xf0000000')
    g('s_mov_b32 s59, 0xf0000000')
    def reads(n, buf, part):
        kc, ks = divmod(n, 4)
        st = kc % 4
        if part == 0:
            g(f'ds_read_b128 {vr(XF+4*buf,4)}, v{12+ks} offset:{st*16384}')
        for jj in range(2):
            off = st * WSTG + (ks*16 + jj) * WROW + part * 56
            g(f'ds_read_b64_tr_b16 {vr(WF+12*buf+4*part+2*jj,2)}, v16 offset:{off}')
    def mfma1(br, buf, t, first, types2):
        types = types2[br]
        x = XF + 4*buf; wf = WF + 12*buf + 4*t; d = ACCS[br] + 16*t
        c = None if first else d
        g(mfma(d, wf, x, c) if types[t] == 'QK' else mfma(d, x, wf, c))
    def epilogue_list(br, types2):
        types = types2[br]
        c0 = 's52' if br else 's63'
        L = []
        A = L.append
        ACC = ACCS[br]; P = PS[br]
        A('s_lshl_b32 s54, s22, 2')
        A('s_add_u32 s54, s54, s3')
        if br: A('s_add_u32 s54, s54, 1024')
        for t in range(3):
            a = ACC + 16*t; p = P + 8*t
            so = (48, 49, 53)[t]
            A(f's_add_u32 s62, {c0}, {t}')
            A('s_and_b32 s56, s62, 15')
            A('s_lshl_b32 s56, s56, 6')
            A('s_add_u32 s56, s56, s54')
            if types[t] == 'QK':
                A('s_cmp_lt_u32 s62, 16\n' + f's_cselect_b32 s57, {f32bits(QSCALE):#x}, 1.0\n' + 's_cselect_b32 s45, 0, 0x3f80\n' +
                  's_cselect_b32 s46, 11, 12\n' + f's_cselect_b32 s47, {WS_Q}, {WS_KV}')
                A('s_lshl_b32 s56, s56, s46')
                A(f's_add_u32 s{so}, s56, s47')
                A('v_mov_b32 v19, s45')
                for r in range(16): A(f'v_mul_f32 v{a+r}, s57, v{a+r}')
                for i in range(8): A(f'v_cvt_pk_bf16_f32 v{p+i}, v{a+2*i}, v{a+2*i+1}')
                A(f'v_cndmask_b32_e64 v{p+6}, v{p+6}, v19, s[60:61]')
                A(f'v_cndmask_b32_e64 v{p+7}, v{p+7}, 0, s[60:61]')
            else:
                A('s_lshl_b32 s56, s56, 12')
                A(f's_add_u32 s{so}, s56, {WS_KV + 2048}')
                for i in range(8): A(f'v_cvt_pk_bf16_f32 v{p+i}, v{a+2*i}, v{a+2*i+1}')
                for i in range(8): A(f'v_cndmask_b32_e64 v{p+i}, v{p+i}, v18, s[58:59]')
            if br:
                A('s_nop 1\n' + f'buffer_store_dwordx4 {vr(p,4)}, v2, s[32:35], s{so} offen{ST()}')
                A(f'buffer_store_dwordx4 {vr(p+4,4)}, v2, s[32:35], s{so} offen offset:1024{ST()}')
        return L
    g('s_mul_i32 s52, s23, 3')
    g('s_mul_i32 s63, s69, 3')
    T0, T1, T2 = ('QK','QK','QK'), ('QK','QK','V'), ('V','V','V')
    variants = [{1: T0, 0: T0}, {1: T0, 0: T1}, {1: T1, 0: T2}, {1: T2, 0: T2}, {1: T2, 0: T0}]
    g('s_cmp_eq_u32 s23, 9')
    g('s_cbranch_scc1 Lqkv_v1')
    g('s_cmp_eq_u32 s23, 10')
    g('s_cbranch_scc1 Lqkv_v2')
    g('s_cmp_eq_u32 s23, 15')
    g('s_cbranch_scc1 Lqkv_v4')
    g('s_cmp_gt_u32 s23, 10')
    g('s_cbranch_scc1 Lqkv_v3')
    NS = NCH * 4
    SIG_AT = OPT.get('sig_at', 36)
    for vi, types in enumerate(variants):
        if vi: g.label(f'Lqkv_v{vi}')
        g('s_barrier')
        if vi == 0: stamp(g, 2)
        for part in range(3): reads(0, 0, part)
        prefetch()
        epi = []
        EP0, EPN = OPT.get('ep0', 28), OPT.get('epn', 2)
        def fill(k):
            for _ in range(k):
                if epi: g(epi.pop(0))
        for n in range(NS):
            br = 1 if n < 28 else 0
            boundary = (n + 1) % 4 == 0 and n + 1 < NS
            nxt = n + 1 < NS
            buf = n & 1
            first = n % 28 == 0
            if n == EP0:
                epi = ['s_nop 7'] + epilogue_list(1, types)
                per = -(-len(epi) // (EPN * 3))
            inter = EP0 <= n < EP0 + EPN
            if boundary:
                if OPT.get('qkvst') and vi == 0 and n + 1 == SIG_AT: stamp(g, 11)
                g('s_waitcnt vmcnt(0) lgkmcnt(0)' if n + 1 in (SIG_AT, 24) else 's_waitcnt lgkmcnt(0)')
                if OPT.get('qkvst') and vi == 0 and n + 1 == SIG_AT: stamp(g, 12)
                g('s_barrier')
                if OPT.get('qkvst') and vi == 0:
                    c1 = (n + 1) // 4
                    m = {2: 5, 4: 6, 6: 7, 8: 8, 10: 9, 11: 10, 12: 13}
                    if c1 in m: stamp(g, m[c1])
                if n + 1 == SIG_AT:
                    sk = newlab('sigB'); ok = newlab('inited'); lp = newlab('initspin')
                    g('s_cmp_lg_u32 s3, 0')
                    g(f's_cbranch_scc1 {sk}')
                    g('v_readfirstlane_b32 s47, v31')
                    g('s_cmp_lg_u32 s47, 0')
                    g(f's_cbranch_scc1 {ok}')
                    g(f's_mov_b32 s68, {OPT["spin"]}')
                    g.label(lp)
                    g('buffer_load_dword v31, v30, s[36:39], 0 offen sc1')
                    g('s_waitcnt vmcnt(0)')
                    g('v_readfirstlane_b32 s47, v31')
                    g('s_cmp_lg_u32 s47, 0')
                    g(f's_cbranch_scc1 {ok}')
                    g('s_sub_u32 s68, s68, 1')
                    g('s_cmp_lg_u32 s68, 0')
                    g(f's_cbranch_scc1 {lp}')
                    g.label(ok)
                    g('s_mov_b64 exec, 1')
                    g('v_mov_b32 v1, 1')
                    g('s_lshl_b32 s47, s23, 8')
                    g(f's_add_u32 s47, s47, {CNT_B}')
                    g('v_mov_b32 v29, s47')
                    g('buffer_atomic_add v1, v29, s[64:67], 0 offen sc1')
                    g('s_mov_b64 exec, -1')
                    g.label(sk)
            else:
                g('s_waitcnt lgkmcnt(4)')
            mfma1(br, buf, 0, first, types)
            if nxt: reads(n + 1, buf ^ 1, 0)
            if inter: fill(per)
            if not boundary: g(f's_waitcnt lgkmcnt({5 if nxt else 2})')
            mfma1(br, buf, 1, first, types)
            if nxt: reads(n + 1, buf ^ 1, 1)
            if inter: fill(per)
            if not boundary: g(f's_waitcnt lgkmcnt({5 if nxt else 0})')
            mfma1(br, buf, 2, first, types)
            if nxt: reads(n + 1, buf ^ 1, 2)
            if inter: fill(per)
            if n == 27 and vi == 0: stamp(g, 3)
            if OPT.get('sbar', 0) and n == EP0 + EPN - 1:
                g('s_barrier')
        assert not epi
        if vi == 0: stamp(g, 14)
        g('s_barrier')
        if vi == 0: stamp(g, 4)
        init_dma_compute(g)
        for x in epilogue_list(0, types): g(x)
        if vi < 4: g('s_branch Lqkv_fin')
    g.label('Lqkv_fin')
    g('s_branch Lattn_setup')

def qkv_loader(g):
    g.label('Lloader')
    g('s_sub_u32 s43, s3, 4')
    g('s_lshl_b32 s44, s22, 7')
    g('s_lshl_b32 s45, s43, 5')
    g('s_add_u32 s44, s44, s45')
    g('v_lshrrev_b32 v10, 3, v0')
    g('v_add_u32 v10, s44, v10')
    g('v_mul_u32_u24 v10, 896, v10')
    g('v_lshrrev_b32 v11, 4, v0')
    g('v_and_b32 v12, 7, v0')
    g('v_xor_b32 v12, v12, v11')
    g('v_lshl_add_u32 v2, v12, 4, v10')
    g('v_xor_b32 v12, 4, v12')
    g('v_lshl_add_u32 v3, v12, 4, v10')
    g('v_add_u32 v3, 7168, v3')
    g('v_add_u32 v4, 14336, v2')
    g('v_add_u32 v5, 14336, v3')
    g('s_lshl_b32 s46, s43, 12')
    g('s_lshl_b32 s47, s43, 10')
    g('s_add_u32 s47, s47, 65536')
    g('s_lshl_b32 s44, s43, 6')
    g('s_mul_i32 s50, s23, 168')
    g('s_mul_i32 s51, s69, 168')
    def wcalc(n):
        g('v_add_u32 v10, s44, v0')
        if n: g(f'v_add_u32 v10, {256*n}, v10')
        g('v_mul_u32_u24 v11, 5958, v10')
        g('v_lshrrev_b32 v11, 16, v11')
        g('v_mul_u32_u24 v12, 11, v11')
        g('v_sub_u32 v12, v10, v12')
        g('v_and_b32 v13, 48, v11')
        g('v_and_b32 v14, 3, v11')
        g('v_lshl_add_u32 v13, v14, 2, v13')
        g('v_bfe_u32 v14, v11, 2, 2')
        g('v_add_u32 v13, v13, v14')
        g('v_mul_u32_u24 v13, 2688, v13')
        g(f'v_lshl_add_u32 v{6+n}, v12, 4, v13')
    wcalc(0)
    g('s_waitcnt lgkmcnt(0)')
    if OPT.get('wsoff'):
        g(f's_add_u32 s20, s20, {OPT["wsoff"] << 20}')
        g('s_addc_u32 s21, s21, 0')
    srd(g, 24, 10, 11, 1835008)
    srd(g, 28, 12, 13, 1204224)
    def rot_init(greg):
        g(f's_add_u32 s52, {greg}, s22')
        g('s_mul_i32 s53, s52, 37')
        g('s_lshr_b32 s53, s53, 8')
        g('s_mul_i32 s53, s53, 7')
        g('s_sub_u32 s52, s52, s53')
    def kc_offsets(c):
        if c == 7:
            if OPT.get('rot', 1): rot_init('s69')
            else: g('s_mov_b32 s52, 0')
        g('s_lshl_b32 s48, s52, 7')
        g('s_mul_i32 s49, s52, 172032')
        g(f's_add_u32 s49, s49, {"s50" if c < 7 else "s51"}')
        g('s_add_u32 s52, s52, 1')
        g('s_cmp_eq_u32 s52, 7')
        g('s_cselect_b32 s52, 0, s52')
    def issueX(c):
        st = c % 4
        sx = 24 if c < 7 else 32
        kc_offsets(c)
        for e in range(4):
            g(f's_add_u32 m0, s46, {st*16384 + e*1024}')
            g('s_nop 0')
            g(f'buffer_load_dwordx4 v{2+e}, s[{sx}:{sx+3}], s48 offen{INL()} lds')
    def issueW(c, ns=(0, 1, 2)):
        st = c % 4
        sw = 28 if c < 7 else 36
        for n in ns:
            if n == 2:
                sk = newlab('qs')
                g('s_cmp_eq_u32 s43, 3')
                g(f's_cbranch_scc1 {sk}')
            g(f's_add_u32 m0, s47, {st*WSTG + n*4096}')
            g('s_nop 0')
            g(f'buffer_load_dwordx4 v{6+n}, s[{sw}:{sw+3}], s49 offen{INL()} lds')
            if n == 2: g.label(sk)
    if OPT.get('rot', 1): rot_init('s23')
    else: g('s_mov_b32 s52, 0')
    def issue(c):
        issueX(c); issueW(c)
    if OPT.get('pfw') == 1: g('s_barrier')
    issueX(0)
    issueW(0, (0,))
    wcalc(1); issueW(0, (1,))
    wcalc(2); issueW(0, (2,))
    srd(g, 32, 4, 5, 1835008)
    srd(g, 36, 6, 7, 1204224)
    srd(g, 64, 20, 21, 0x4000, WS_CNT)
    g('s_and_b32 s40, s2, 7')
    g('s_bfe_u32 s41, s2, 0x10003')
    g('s_lshl_b32 s40, s40, 1')
    g('s_add_u32 s40, s40, s41')
    g('v_min_u32 v30, 2, v0')
    g('v_lshlrev_b32 v30, 4, v30')
    g('v_add_u32 v30, s40, v30')
    g('v_mul_u32_u24 v30, 43, v30')
    g('v_lshrrev_b32 v30, 7, v30')
    g('v_lshlrev_b32 v31, 8, v30')
    g(f'v_add_u32 v203, {CNT_B}, v31')
    if OPT.get('pfw') == 2: g('s_barrier')
    for c in range(1, 3): issue(c)
    issued = 2
    HOLD = OPT.get('hold', 9) if OPT.get('sbar', 0) else 99
    for c in range(NCH):
        rem = issued - c
        if c == 13:
            skq = newlab('w13'); skr = newlab('w13')
            g('s_cmp_lg_u32 s3, 4')
            g(f's_cbranch_scc1 {skq}')
            g('s_waitcnt vmcnt(1)')
            g(f's_branch {skr}')
            g.label(skq)
            g('s_waitcnt vmcnt(0)')
            g.label(skr)
        else:
            g(f's_waitcnt vmcnt({6*rem})')
        g('s_barrier')
        if c + 3 < NCH and not (HOLD <= c + 3 <= 10):
            issue(c + 3); issued = c + 3
        if OPT.get('sbar', 0) and c == 7:
            g('s_barrier')
            for cc in range(HOLD, 11):
                issue(cc); issued = cc
        if c == 10: attn_setup(g)
        if c == 11: set_mask(g, 32, 'first')
        if c == 12:
            skp = newlab('p12')
            g('s_cmp_lg_u32 s3, 4')
            g(f's_cbranch_scc1 {skp}')
            g('buffer_load_dword v201, v203, s[64:67], 0 offen sc1')
            g.label(skp)
    g('s_cmp_lg_u32 s3, 4')
    g('s_cbranch_scc1 Lh1_polled')
    g('s_waitcnt vmcnt(0)')
    g('v_cmp_ne_u32 vcc, 16, v201')
    g('s_nop 4')
    g('s_cbranch_vccz Lh1_polled')
    spin_until(g, 201, 203, 16)
    g.label('Lh1_polled')
    g('s_barrier')
    stamp(g, 4)
    g('s_add_u32 s47, s44, 0x200000')
    g('s_mov_b32 m0, s51')
    g('s_nop 0')
    for i in range(2):
        g(f'buffer_load_dwordx4 v2, s[24:27], s47 offen offset:{i*1024}{LD()} lds')
    stage_tile(g, 0)
    stage_tile(g, 1)
    stamp(g, 5)
    g('s_waitcnt vmcnt(4)')
    g('s_barrier')
    g('s_branch Lattn_go')

K2_SCR = 131072
QL = 200
def set_mask(g, dst, kind):
    for r in range(16):
        br_ = (r & 3) + 8 * (r >> 2)
        op = 'v_cmp_le_i32' if kind == 'diag' else 'v_cmp_gt_i32'
        g(f'{op} vcc, {br_}, v24')
        g('s_nop 1')
        g(f'v_cndmask_b32_e64 v{dst+r}, v25, 0, vcc')
def attn_setup(g):
    kvb_srd(g)
    g('s_lshr_b32 s41, s2, 4')
    g('s_and_b32 s42, s3, 3')
    g('s_lshr_b32 s43, s3, 2')
    g('v_lshlrev_b32 v2, 4, v0')
    g('s_lshl_b32 s44, s40, 6')
    g('s_lshl_b32 s45, s41, 2')
    g('s_add_u32 s45, s45, s42')
    g('s_add_u32 s44, s44, s45')
    g('s_lshl_b32 s44, s44, 11')
    srd(g, 24, 20, 21, 0x400000)
    g('s_sub_u32 s28, s32, 0x400000')
    g('s_subb_u32 s29, s33, 0')
    g('s_mov_b32 s30, 0x40000')
    g('s_mov_b32 s31, 0x20000')
    srd(g, 36, 20, 21, 0x400000, WS_O)
    g('v_min_u32 v30, 2, v0')
    g('v_lshlrev_b32 v30, 4, v30')
    g('v_add_u32 v30, s40, v30')
    g('v_mul_u32_u24 v30, 43, v30')
    g('v_lshrrev_b32 v30, 7, v30')
    g('v_lshlrev_b32 v31, 8, v30')
    g(f'v_add_u32 v203, {CNT_B}, v31')
    g('s_lshl_b32 s47, s41, 2')
    g('s_add_u32 s47, s47, s3')
    g('s_sub_u32 s47, s47, 8')
    g('s_lshl_b32 s50, s47, 12')
    g('s_cmp_lt_i32 s47, 0')
    g('s_cselect_b32 s50, 0x40000000, s50')
    g('v_add_u32 v28, s50, v2')
    g('s_add_u32 s47, s47, 8')
    g('s_lshl_b32 s50, s47, 12')
    g('v_add_u32 v29, s50, v2')
    g('s_lshl_b32 s47, s42, 12')
    g('v_add_u32 v3, s47, v2')
    g('s_lshl_b32 s47, s43, 14')
    g('v_add_u32 v4, s47, v2')
    g('v_add_u32 v5, 32768, v4')
    g(f'v_add_u32 v6, {K2_SCR}, v3')
    g('s_lshl_b32 s47, s42, 8')
    g(f's_add_u32 s47, s47, {K2_SCR+16384}')
    g('v_lshlrev_b32 v7, 2, v0')
    g('v_add_u32 v7, s47, v7')
    g('s_lshl_b32 s47, s42, 11')
    g(f's_add_u32 s51, s47, {K2_SCR}')
    g(f'v_add_u32 v{QL}, s51, v2')
    g('v_and_b32 v24, 31, v0')
    g('v_lshrrev_b32 v25, 5, v0')
    g('v_lshlrev_b32 v25, 2, v25')
    g('v_sub_u32 v24, v24, v25')
    g(f'v_mov_b32 v25, {NEGBIG:#x}')
    g('s_mov_b32 s60, 0')
    g('s_mov_b32 s61, -1')
    srd(g, 56, 20, 21, 0x1000000)

def phase_attn(g):
    g.label('Lattn_setup')
    QA = 8; QB = 16; MASK = 32; S0 = 48; S1 = 64; P = 80; OA = 88; OB = 104; KF = 120; VF = 128; T = 136
    TK = 144; TS = 152
    MNA = 26; MNB = 27
    SB = [S0, S1]
    attn_setup(g)
    set_mask(g, MASK, 'diag')
    stamp(g, 5)
    g('s_waitcnt vmcnt(4)')
    g('s_barrier')
    g.label('Lattn_go')
    g('s_cmp_eq_u32 s43, 99') if False else None
    def dma4(vreg, s, s_goff, s_m0, n=4, first=0):
        g(f's_mov_b32 m0, {s_m0}')
        g('s_nop 0')
        for i in range(first, first + n):
            g(f'buffer_load_dwordx4 v{vreg}, s[{s}:{s+3}], {s_goff} offen offset:{i*1024}{LD()} lds')
    stamp(g, 6)
    g(f'ds_read_b128 {vr(QB,4)}, v{QL}')
    g(f'ds_read_b128 {vr(QB+4,4)}, v{QL} offset:1024')

    def rowmax(sbuf, t):
        g(f'v_max3_f32 v{t}, v{sbuf}, v{sbuf+1}, v{sbuf+2}')
        for r in range(3, 15, 2):
            g(f'v_max3_f32 v{t}, v{t}, v{sbuf+r}, v{sbuf+r+1}')
        g(f'v_max_f32 v{t}, v{t}, v{sbuf+15}')
        g(f'v_mov_b32 v{t+1}, v{t}')
        g('s_nop 1')
        g(f'v_permlane32_swap_b32 v{t}, v{t+1}')
        g('s_nop 1')
        g(f'v_max_f32 v{t}, v{t}, v{t+1}')
    def set_standin(sbuf, q, mneg):
        t = T
        rowmax(sbuf, t)
        g(f'v_sub_f32 v{t}, 0, v{t}')
        g(f'v_cvt_pk_bf16_f32 v{t}, v{t}, 0')
        g(f'v_lshlrev_b32 v{mneg}, 16, v{t}')
        g('s_mov_b64 exec, s[60:61]')
        g(f'v_mov_b32 v{q+4+2}, v{t}')
        g('s_mov_b64 exec, -1')
    def slots(br, kh):
        if br == 1: return (2048, 0, None) if kh == 0 else (0, 1024, 2048)
        return (0, 1024, None) if kh == 0 else (2048, 0, 3072)
    def write_half(kh, br, O, mn):
        oo, mo, lo = slots(br, kh)
        src = O + 8 if kh == 0 else O
        g(f'ds_write_b128 v6, {vr(src,4)} offset:{oo}')
        g(f'ds_write_b128 v6, {vr(src+4,4)} offset:{oo+1024}')
        g(f'ds_write_b32 v7, v{mn} offset:{mo}')
        if kh == 1: g(f'ds_write_b32 v7, v{O+12} offset:{lo}')
    FB = 168
    def finish_half(tag, kh, br, O, mn, q, tmp):
        base = O + 8*kh
        oo, mo, lo = slots(br, 1 - kh)
        g(f'ds_read_b128 {vr(tmp,4)}, v6 offset:{oo}')
        g(f'ds_read_b128 {vr(tmp+4,4)}, v6 offset:{oo+1024}')
        g(f'ds_read_b32 v{T}, v7 offset:{mo}')
        if kh == 0: g(f'ds_read_b32 v{T+5}, v7 offset:{lo}')
        lp = T + 5 if kh == 0 else tmp + 4
        g('s_waitcnt lgkmcnt(0)')
        g(f'v_min_f32 v{T+1}, v{mn}, v{T}')
        g(f'v_sub_f32 v{T+2}, v{T+1}, v{mn}')
        g(f'v_sub_f32 v{T+3}, v{T+1}, v{T}')
        g(f'v_exp_f32 v{T+2}, v{T+2}')
        g(f'v_exp_f32 v{T+3}, v{T+3}')
        g('s_nop 0')
        g(f'v_mul_f32 v{T}, v{O+12}, v{T+2}')
        g(f'v_fmac_f32 v{T}, v{lp}, v{T+3}')
        for r in range(8): g(f'v_mul_f32 v{base+r}, v{base+r}, v{T+2}')
        g(f'v_mov_b32 v{T+1}, v{T}')
        for r in range(8): g(f'v_fmac_f32 v{base+r}, v{tmp+r}, v{T+3}')
        g(f'v_permlane32_swap_b32 v{T}, v{T+1}')
        g(f'v_mul_f32 v{T+4}, 0, v{base}')
        for r in range(1, 8): g(f'v_fmac_f32 v{T+4}, 0, v{base+r}')
        g(f'v_add_f32 v{T+4}, v{T+4}, v{T+1}')
        g(f's_mov_b32 s47, {f32bits(2.0**100):#x}')
        g(f'v_cmp_ngt_f32 vcc, s47, v{T+4}')
        g('s_nop 4')
        g(f's_cbranch_vccz L{tag}_ok')
        fallback(tag, br, O, q)
        g(f'v_mov_b32 v{T}, v{O+12}')
        g(f'v_mov_b32 v{T+1}, v{O+12}')
        g('s_nop 1')
        g(f'v_permlane32_swap_b32 v{T}, v{T+1}')
        g('s_nop 1')
        g.label(f'L{tag}_ok')
        g(f'v_rcp_f32 v{T+1}, v{T+1}')
        g('s_lshl_b32 s47, s41, 2')
        g('s_add_u32 s47, s47, s42')
        for r in range(8): g(f'v_mul_f32 v{base+r}, v{base+r}, v{T+1}')
        g(f's_add_u32 s47, s47, {br*64}')
        g('s_lshl_b32 s47, s47, 4')
        g('s_add_u32 s47, s47, s40')
        g('s_lshl_b32 s47, s47, 11')
        for i in range(4): g(f'v_cvt_pk_bf16_f32 v{tmp+i}, v{base+2*i}, v{base+2*i+1}')
        if kh == 1:
            g(f'v_cndmask_b32_e64 v{tmp+2}, v{tmp+2}, 0, s[60:61]')
            g(f'v_cndmask_b32_e64 v{tmp+3}, v{tmp+3}, 0, s[60:61]')
        g('s_nop 1')
        g(f'buffer_store_dwordx4 {vr(tmp,4)}, v2, s[36:39], s47 offen offset:{kh*1024}{ST()}')
        g('s_nop 1')
    def fallback(tag, br, O, q):
        FS, FK, FV, FP, FQ, Fm = FB, FB+16, FB+24, FB+32, FB+40, FB+48
        s = 28 if br == 0 else 32
        for i in range(8): g(f'v_mov_b32 v{FQ+i}, v{q+i}')
        g('s_mov_b64 exec, s[60:61]')
        g(f'v_mov_b32 v{FQ+6}, 0')
        g('s_mov_b64 exec, -1')
        for r in range(16): g(f'v_mov_b32 v{O+r}, 0')
        g(f'v_mov_b32 v{Fm}, v25')
        if br == 0:
            g('s_lshl_b32 s52, s41, 2')
            g('s_add_u32 s52, s52, s42')
            g('s_sub_u32 s53, s52, 8')
            g('s_mov_b32 s54, s52')
        else:
            g('s_mov_b32 s54, 63')
        g.label(f'L{tag}_fb_loop')
        g('s_lshl_b32 s55, s54, 12')
        for i in range(2):
            g(f'buffer_load_dwordx4 {vr(FK+4*i,4)}, v2, s[{s}:{s+3}], s55 offen offset:{i*1024}{LD()}')
            g(f'buffer_load_dwordx4 {vr(FV+4*i,4)}, v2, s[{s}:{s+3}], s55 offen offset:{2048+i*1024}{LD()}')
        if br == 0:
            g('s_cmp_eq_u32 s54, s52')
            g(f's_cbranch_scc1 L{tag}_fb_diag')
            g('s_cmp_eq_u32 s54, s53')
            g(f's_cbranch_scc1 L{tag}_fb_first')
        for r in range(16): g(f'v_mov_b32 v{FS+r}, 0')
        if br == 0:
            g(f's_branch L{tag}_fb_go')
            g.label(f'L{tag}_fb_diag')
            set_mask(g, FS, 'diag')
            g(f's_branch L{tag}_fb_go')
            g.label(f'L{tag}_fb_first')
            set_mask(g, FS, 'first')
            g.label(f'L{tag}_fb_go')
        g('s_waitcnt vmcnt(0)')
        g('s_nop 1')
        g(mfma(FS, FK, FQ, FS))
        g(mfma(FS, FK+4, FQ+4, FS))
        g('s_nop 15')
        rowmax(FS, Fm+1)
        g(f'v_max_f32 v{Fm+1}, v{Fm+1}, v{Fm}')
        g(f'v_sub_f32 v{Fm+2}, v{Fm}, v{Fm+1}')
        g(f'v_exp_f32 v{Fm+2}, v{Fm+2}')
        g(f'v_mov_b32 v{Fm}, v{Fm+1}')
        for r in range(16): g(f'v_sub_f32 v{FS+r}, v{FS+r}, v{Fm}')
        for r in range(16): g(f'v_exp_f32 v{FS+r}, v{FS+r}')
        for r in range(16): g(f'v_mul_f32 v{O+r}, v{O+r}, v{Fm+2}')
        for i in range(8): g(f'v_cvt_pk_bf16_f32 v{FP+i}, v{FS+2*i}, v{FS+2*i+1}')
        g('s_nop 1')
        g(mfma(O, FV, FP, O))
        g(mfma(O, FV+4, FP+4, O))
        g('s_nop 15')
        g('s_sub_u32 s54, s54, 1')
        g('s_cmp_lt_i32 s54, 0')
        g(f's_cbranch_scc1 L{tag}_fb_end')
        if br == 0:
            g('s_cmp_lt_i32 s54, s53')
            g(f's_cbranch_scc1 L{tag}_fb_end')
        g(f's_branch L{tag}_fb_loop')
        g.label(f'L{tag}_fb_end')

    g('s_cmp_eq_u32 s43, 0')
    g('s_cbranch_scc0 Lattn_kh1')

    def path(kh):
        tag = f'K{kh}'
        unitsA = [8, 7, 6, 5, 4] if kh == 0 else [3, 2, 1, 0]
        nA = len(unitsA); N = 32 + nA
        def unit(i):
            if i >= 32:
                u = unitsA[i - 32]
                masked = (kh == 0 and u == 8) or (kh == 1 and u == 0)
                return dict(base=3, off=u*4096, Q=QA, O=OA, C=MASK if masked else None, first=(i == 32))
            return dict(b=i, Q=QB, O=OB, C=None, first=(i == 0))
        def addr(i, cs):
            u = unit(i)
            if 'base' in u: return u['base'], u['off']
            b = u['b']; s = b >> 2
            if s == cs: return 4, (b & 3) * 4096
            assert s == cs + 1
            return 5, (b & 3) * 4096
        def rdK(i, cs, dst=KF):
            r, off = addr(i, cs)
            g(f'ds_read_b128 {vr(dst,4)}, v{r} offset:{off}')
            g(f'ds_read_b128 {vr(dst+4,4)}, v{r} offset:{off+1024}')
        def rdV(i, f, cs):
            r, off = addr(i, cs)
            g(f'ds_read_b128 {vr(VF+4*f,4)}, v{r} offset:{off+2048+f*1024}')
        rdK(0, 0)
        g('s_waitcnt lgkmcnt(0)')
        g(mfma(S0, KF, QB, None))
        g(mfma(S0, KF+4, QB+4, S0))
        g('s_nop 15')
        set_standin(S0, QB, MNB)
        g('s_nop 1')
        g(mfma(S0, KF, QB, None))
        g(mfma(S0, KF+4, QB+4, S0))
        rdK(1, 0)
        rdV(0, 0, 0)
        g('s_nop 15')
        if kh == 0: stamp(g, 7)
        if OPT.get('attst'): stamp(g, 2, q=True)
        def wo_piece(it):
            if it == 7:
                sk = newlab('wo7')
                g('s_cmp_lg_u32 s3, 0')
                g(f's_cbranch_scc1 {sk}')
                g(f's_add_u32 m0, s45, {65536 + it*8192}')
                g(f'v_add_u32 v31, {it*64*896}, v30')
                g('buffer_load_dwordx4 v31, s[56:59], 0 offen lds')
                g.label(sk)
            else:
                g(f's_add_u32 m0, s45, {65536 + it*8192}')
                g(f's_mov_b32 s50, {it*64*896}')
                g('buffer_load_dwordx4 v30, s[56:59], s50 offen lds')
        def wo_setup():
            g('s_mov_b32 s56, s14')
            g('s_mov_b32 s57, s15')
            g(f's_mov_b32 s58, {448*896}')
            g('s_mov_b32 s59, 0x20000')
            g('v_lshrrev_b32 v30, 3, v0')
            g('v_and_b32 v31, 7, v0')
            g('v_and_b32 v1, 2, v30')
            g('v_lshlrev_b32 v1, 1, v1')
            g('v_xor_b32 v31, v31, v1')
            g('s_lshl_b32 s50, s3, 3')
            g('v_add_u32 v30, s50, v30')
            g('v_mul_u32_u24 v30, 896, v30')
            g('v_lshl_add_u32 v30, v31, 4, v30')
            g('s_lshr_b32 s50, s2, 5')
            g('s_lshl_b32 s50, s50, 7')
            g('s_cmp_ge_u32 s2, 224')
            g('s_cselect_b32 s50, 0x40000000, s50')
            g('v_add_u32 v30, s50, v30')
            g('s_lshl_b32 s45, s3, 10')
        def dma_slot(i, inloop):
            if i == 0 or i == 1:
                st = i + 2
                g(f's_add_u32 s54, s55, {st*32768}')
                g(f's_add_u32 m0, s55, {(st&3)*32768}')
                g('s_nop 0')
                for k in range(4):
                    g(f'buffer_load_dwordx4 v2, s[32:35], s54 offen offset:{k*1024}{LD()} lds')
                return
            if i == 2 and kh == 0:
                for t in range(3):
                    g(f'buffer_store_dwordx4 {vr(208+8*t,4)}, v2, s[56:59], s{(48,49,53)[t]} offen{ST()}')
                    g(f'buffer_store_dwordx4 {vr(212+8*t,4)}, v2, s[56:59], s{(48,49,53)[t]} offen offset:1024{ST()}')
                return
            if i >= 30:
                if i == 30: wo_setup()
                before34 = {30: [0], 31: [1], 32: [2], 33: [3], 34: [4, 5], 35: [6, 7]}
                for it in before34.get(i, []): wo_piece(it)
                return
            if i == 12 and kh == 1 and OPT.get('wol2', 1):
                sk = newlab('wol2')
                g('s_cmp_gt_u32 s3, 5')
                g(f's_cbranch_scc1 {sk}')
                srd(g, 56, 8, 9, 448*896)
                g('s_lshr_b32 s47, s2, 3')
                g('s_mul_i32 s47, s47, 98')
                g('s_sub_u32 s48, s3, 4')
                g('s_lshl_b32 s48, s48, 6')
                g('s_add_u32 s47, s47, s48')
                g('v_add_u32 v204, s47, v0')
                g('v_lshlrev_b32 v204, 7, v204')
                g('buffer_load_dword v205, v204, s[56:59], 0 offen')
                g.label(sk)
            if i < 6: return
            ph = (i - 2) & 3; st = ((i - 2) >> 2) + 3
            if i == 18:
                g('buffer_load_dword v201, v31, s[64:67], 0 offen sc1')
            if st <= 7:
                if ph == 0:
                    g(f's_add_u32 s54, s55, {st*32768}')
                    g(f's_add_u32 m0, s55, {(st&3)*32768}')
                    g('s_nop 0')
                g(f'buffer_load_dwordx4 v2, s[32:35], s54 offen offset:{ph*1024}{LD()} lds')
            elif st == 8:
                if ph == 0:
                    ok = newlab('aok')
                    g('v_cmp_ne_u32 vcc, 16, v201')
                    g('s_nop 4')
                    g(f's_cbranch_vccz {ok}')
                    spin_until(g, 201, 31, 16)
                    g.label(ok)
                    if kh == 1:
                        g('s_add_u32 s47, s51, 8192')
                        dma4(2, 24, 's44', 's47', n=2)
                    g('s_mov_b32 m0, s55')
                    g('s_nop 0')
                g(f'buffer_load_dwordx4 v28, s[28:31], 0 offen offset:{ph*1024}{LD()} lds')
            elif st == 9 and ph <= 1 and kh == 0:
                if ph == 0:
                    g('s_add_u32 m0, s55, 32768')
                    g('s_nop 0')
                for k in range(2):
                    g(f'buffer_load_dwordx4 v29, s[28:31], 0 offen offset:{(2*ph+k)*1024}{LD()} lds')
        def body(i, cs, inloop=False):
            u = unit(i)
            sb = SB[i & 1]; sn = SB[(i + 1) & 1]
            e = [f'v_exp_f32 v{sb+r}, v{sb+r}' for r in range(16)]
            c = [f'v_cvt_pk_bf16_f32 v{P+k}, v{sb+2*k}, v{sb+2*k+1}' for k in range(8)]
            has1 = i + 1 < N; has2 = i + 2 < N
            if i < 32 and (i & 3) == 2:
                s = i >> 2
                if s == 7: vm = 0
                elif s == 0: vm = 8
                elif s == 1: vm = 4 if kh == 1 else 10
                elif s == 2: vm = 4
                else: vm = 4
                if OPT.get('attst') and s in (0, 1, 2, 3, 5, 7): stamp(g, {0: 3, 1: 5, 2: 7, 3: 9, 5: 11, 7: 13}[s], q=True)
                g(f's_waitcnt vmcnt({vm}) lgkmcnt(0)' if vm is not None else 's_waitcnt lgkmcnt(0)')
                g('s_barrier')
                if OPT.get('attst') and s in (0, 1, 2, 3, 5, 7): stamp(g, {0: 4, 1: 6, 2: 8, 3: 10, 5: 12, 7: 14}[s], q=True)
                if s == 2 and kh == 1:
                    sk = newlab('sigA')
                    g('s_cmp_lg_u32 s3, 4')
                    g(f's_cbranch_scc1 {sk}')
                    g('s_mov_b64 exec, 1')
                    g('v_mov_b32 v1, 1')
                    g('s_lshl_b32 s47, s69, 8')
                    g('v_mov_b32 v202, s47')
                    g('buffer_atomic_add v1, v202, s[64:67], 0 offen sc1')
                    g('s_mov_b64 exec, -1')
                    g.label(sk)
                if s == 6:
                    g(f'ds_read_b128 {vr(QA,4)}, v{QL} offset:8192')
                    g(f'ds_read_b128 {vr(QA+4,4)}, v{QL} offset:9216')
                if s == 7 and kh == 0:
                    g(f'v_mov_b32 v204, {LFLAG}')
                    g('v_mov_b32 v205, 0')
                    g('ds_write_b32 v204, v205')
                    g('ds_write_b32 v204, v205 offset:4')
                    rdK(32, cs, TK)
                    g('s_waitcnt lgkmcnt(0)')
                    g(mfma(TS, TK, QA, unit(32)['C']))
                    g(mfma(TS, TK+4, QA+4, TS))
                    g('s_nop 15')
                    set_standin(TS, QA, MNA)
            elif i == 31 and kh == 1:
                g('s_waitcnt lgkmcnt(0)')
                g(mfma(TS, KF, QA, unit(32)['C']))
                g(mfma(TS, KF+4, QA+4, TS))
                g('s_nop 15')
                set_standin(TS, QA, MNA)
                g('s_lshl_b32 s47, s41, 2')
                g('s_add_u32 s47, s47, s42')
                g('s_cmp_lt_u32 s47, 5')
                g(f's_cbranch_scc0 L{tag}_valid')
                g(f'v_mov_b32 v{MNA}, {POSBIG:#x}')
                g.label(f'L{tag}_valid')
            elif i == 34:
                if OPT.get('tailst'): stamp(g, 3, q=True)
                g('s_waitcnt lgkmcnt(0)')
                g('s_barrier')
                if OPT.get('tailst'): stamp(g, 4, q=True)
                finish_half(f'FB{kh}', kh, 1, OB, MNB, QB, TS)
                if OPT.get('tailst'): stamp(g, 5, q=True)
            else:
                g('s_waitcnt lgkmcnt(0)')
            pm = OPT.get('prio', 'lag')
            if pm == 'lag':
                g(f's_setprio {3 - ((i - 2) & 3)}')
            elif pm == 'lag2' and ((i - 2) & 1) == 0:
                g(f's_setprio {1 - (((i - 2) & 3) >> 1)}')
            elif pm == 'half':
                g(f's_setprio {3 - (((i - 2) & 1) * 2)}')
            g(e[0])
            if i > 0:
                up = unit(i - 1)
                g(mfma(up['O'], VF+4, P+4, up['O']))
            rdV(i, 1, cs)
            g(e[1]); g(e[2]); g(e[3])
            g(c[0])
            if i == 33:
                write_half(kh, 1, OB, MNB)
            if has1:
                un = unit(i + 1)
                g(mfma(sn, KF, un['Q'], un['C']))
            g(e[4]); g(e[5]); g(c[1]); g(e[6]); g(e[7]); g(c[2])
            if has1:
                g(mfma(sn, KF+4, un['Q']+4, sn))
            if has2:
                rdK(i + 2, cs)
            g(e[8]); g(c[3]); g(e[9]); g(e[10])
            dma_slot(i, inloop)
            g(e[11])
            if OPT.get('prio') == 'half':
                g(f's_setprio {2 - (((i - 2) & 1) * 2)}')
            g(mfma(u['O'], VF, P, None if u['first'] else u['O']))
            if has1:
                rdV(i + 1, 0, cs)
            for x in e[12:16]: g(x)
            g(c[4]); g(c[5]); g(c[6]); g(c[7])
        def advance():
            g('v_mov_b32 v4, v5')
            g('v_add_u32 v5, 32768, v5')
            g('v_and_b32 v5, 0x1ffff, v5')
        return body, advance, N, tag
    for kh in (0, 1):
        if kh == 1: g.label('Lattn_kh1')
        body, advance, N, tag = path(kh)
        for s_ in range(7):
            for j in range(4): body(4*s_ + j, s_)
            advance()
        for j in range(4): body(28 + j, 7)
        if kh == 0: stamp(g, 8)
        if OPT.get('tailst'): stamp(g, 2, q=True)
        for i in range(32, N): body(i, 7)
        g('s_waitcnt lgkmcnt(0)')
        g('s_nop 1')
        g(mfma(OA, VF+4, P+4, OA))
        g('s_nop 15')
        if OPT.get('tailst'): stamp(g, 6, q=True)
        write_half(kh, 0, OA, MNA)
        g('s_waitcnt vmcnt(3) lgkmcnt(0)')
        g('s_barrier')
        if OPT.get('tailst'): stamp(g, 7, q=True)
        if kh == 1: signal_o(g, CNT_OB, 4)
        finish_half(f'FA{kh}', kh, 0, OA, MNA, QA, TS)
        if OPT.get('tailst'): stamp(g, 8, q=True)
        if OPT.get('woearly', 0):
            woA_issue(g)
            g('s_waitcnt vmcnt(7)')
        else:
            g('s_waitcnt vmcnt(0)')
        if OPT.get('tailst'): stamp(g, 9, q=True)
        g('s_mov_b64 exec, 1')
        g('v_mov_b32 v1, 1')
        g('s_lshl_b32 s47, s41, 8')
        g(f's_add_u32 s47, s47, {CNT_OA}')
        g('v_mov_b32 v31, s47')
        g('buffer_atomic_add v1, v31, s[64:67], 0 offen sc1')
        g('s_mov_b64 exec, -1')
        if not OPT.get('woearly', 0): woA_issue(g)
        stamp(g, 9)
        if kh == 1:
            proj_group_B(g)
        else:
            proj_group_A(g)
    proj_common(g)

PJ_EX = 131072
def proj_setup(g, br):
    g(f's_mov_b32 s40, {br}')
    g('s_and_b32 s41, s2, 7')
    g('s_lshl_b32 s41, s41, 2')
    g('s_bfe_u32 s42, s2, 0x20003')
    g('s_add_u32 s41, s41, s42')
    g('s_lshr_b32 s42, s2, 5')
    g('s_and_b32 s43, s3, 1')
    g('s_bfe_u32 s44, s3, 0x10001')
    srd(g, 24, 16, 17, 2048 * 1792)
    g('s_lshl_b32 s45, s41, 1')
    g('s_add_u32 s45, s45, s43')
    g(f's_add_u32 s45, s45, {br*64}')
    g('s_lshl_b32 s45, s45, 15')
    g('s_lshl_b32 s46, s44, 14')
    g('s_add_u32 s45, s45, s46')
    g('v_bfe_u32 v4, v0, 2, 2')
    g('v_and_b32 v5, 3, v0')
    g('v_bfe_u32 v7, v0, 4, 1')
    g('v_lshrrev_b32 v6, 5, v0')
    g('v_lshlrev_b32 v7, 5, v7')
    g('v_lshl_add_u32 v7, v5, 3, v7')
    g('v_lshrrev_b32 v11, 4, v7')
    g('v_and_b32 v8, 2, v4')
    g('v_lshlrev_b32 v8, 1, v8')
    g('v_xor_b32 v11, v11, v8')
    g('v_and_b32 v7, 15, v7')
    g('v_lshl_add_u32 v7, v11, 4, v7')
    g('v_lshl_add_u32 v4, v6, 2, v4')
    g('v_lshl_add_u32 v9, v4, 7, v7')
    g('s_mul_i32 s46, s44, 28672')
    if br: g('s_add_u32 s46, s46, 65536')
    g('v_add_u32 v9, s46, v9')
    g('v_xor_b32 v10, 64, v9')
    g('s_lshl_b32 s46, s43, 1')
    g('s_add_u32 s46, s46, s44')
    g(f's_add_u32 s46, s46, {br*4}')
    g('s_lshl_b32 s46, s46, 12')
    g(f's_add_u32 s46, s46, {PJ_EX}')
    g('v_add_u32 v12, s46, v2')
    g('v_xor_b32 v13, 4096, v12')
    g('s_lshr_b32 s46, s41, 1')
    g('s_lshl_b32 s46, s46, 8')
    g(f's_add_u32 s46, s46, {CNT_OB if br else CNT_OA}')
    g('v_mov_b32 v30, s46')
def o_loads(g):
    OF = 64
    for n in range(16):
        if n % 4 == 0 and n > 0: g('s_add_u32 s45, s45, 4096')
        g(f'buffer_load_dwordx4 {vr(OF+4*n,4)}, v2, s[36:39], s45 offen offset:{(n%4)*1024}{LD()}')
def signal_o(g, cnt, wave):
    sk = newlab('sigO')
    g(f's_cmp_lg_u32 s3, {wave}')
    g(f's_cbranch_scc1 {sk}')
    g('s_mov_b64 exec, 1')
    g('v_mov_b32 v1, 1')
    g('s_lshl_b32 s47, s41, 8')
    g(f's_add_u32 s47, s47, {cnt}')
    g('v_mov_b32 v31, s47')
    g('buffer_atomic_add v1, v31, s[64:67], 0 offen sc1')
    g('s_mov_b64 exec, -1')
    g.label(sk)
def woA_issue(g):
    srd(g, 56, 8, 9, 448*896)
    g('v_lshrrev_b32 v30, 3, v0')
    g('v_and_b32 v29, 7, v0')
    g('v_and_b32 v1, 2, v30')
    g('v_lshlrev_b32 v1, 1, v1')
    g('v_xor_b32 v29, v29, v1')
    g('s_lshl_b32 s51, s3, 3')
    g('v_add_u32 v30, s51, v30')
    g('v_mul_u32_u24 v30, 896, v30')
    g('v_lshl_add_u32 v30, v29, 4, v30')
    g('s_lshr_b32 s51, s2, 5')
    g('s_lshl_b32 s51, s51, 7')
    g('s_cmp_ge_u32 s2, 224')
    g('s_cselect_b32 s51, 0x40000000, s51')
    g('v_add_u32 v30, s51, v30')
    g('s_lshl_b32 s52, s3, 10')
    sk = newlab('woA')
    for it in range(8):
        if it == 7:
            g('s_cmp_lg_u32 s3, 0')
            g(f's_cbranch_scc1 {sk}')
            g(f's_add_u32 m0, s52, {it*8192}')
            g(f'v_add_u32 v29, {it*64*896}, v30')
            g('buffer_load_dwordx4 v29, s[56:59], 0 offen lds')
        else:
            g(f's_add_u32 m0, s52, {it*8192}')
            g(f's_mov_b32 s51, {it*64*896}')
            g('buffer_load_dwordx4 v30, s[56:59], s51 offen lds')
    g.label(sk)
def proj_group_B(g):
    g('s_cmp_ge_u32 s2, 224')
    g('s_cbranch_scc1 Lpj_idleB')
    proj_setup(g, 1)
    g('s_waitcnt vmcnt(0)')
    g('s_barrier')
    if OPT.get('tailst'): stamp(g, 10, q=True)
    group_wait(g, 4, 1, 1, 30, 16)
    if OPT.get('tailst'): stamp(g, 11, q=True)
    stamp(g, 10)
    o_loads(g)
    g('s_branch Lproj_common')
    g.label('Lpj_idleB')
    g('s_barrier')
    g('s_branch Lend')
def proj_group_A(g):
    g('s_cmp_ge_u32 s2, 224')
    sk = newlab('idleA')
    g(f's_cbranch_scc1 {sk}')
    proj_setup(g, 0)
    g('s_waitcnt vmcnt(0)')
    g('s_barrier')
    if OPT.get('tailst'): stamp(g, 10, q=True)
    group_wait(g, 0, 0, 1, 30, 128)
    if OPT.get('tailst'): stamp(g, 11, q=True)
    stamp(g, 10)
    o_loads(g)
    g('s_branch Lproj_common')
    g.label(sk)
    g('s_barrier')
    g('s_branch Lend')
def proj_common(g):
    g.label('Lproj_common')
    OF = 64; ACC = 16; WF = 48
    def rd(n, buf):
        h, i = divmod(n, 2)
        for ct in range(2):
            for jj in range(2):
                off = (28*h + 16*i + 8*jj) * 128
                g(f'ds_read_b64_tr_b16 {vr(WF+8*buf+4*ct+2*jj,2)}, v{9+ct} offset:{off}')
    rd(0, 0)
    for n in range(16):
        if n + 1 < 16: rd(n + 1, (n + 1) & 1)
        g(f's_waitcnt vmcnt({15-n}) lgkmcnt({4 if n + 1 < 16 else 0})')
        for ct in range(2):
            g(mfma(ACC + 16*ct, WF + 8*(n & 1) + 4*ct, OF + 4*n, None if n == 0 else ACC + 16*ct))
    g('s_nop 15')
    stamp(g, 12, q=True)
    g('s_cmp_eq_u32 s44, 0')
    g('s_cbranch_scc0 Lpj_k1')
    for i in range(4): g(f'ds_write_b128 v12, {vr(ACC+16+4*i,4)} offset:{i*1024}')
    g('s_branch Lpj_k2')
    g.label('Lpj_k1')
    for i in range(4): g(f'ds_write_b128 v12, {vr(ACC+4*i,4)} offset:{i*1024}')
    for r in range(16): g(f'v_mov_b32 v{ACC+r}, v{ACC+16+r}')
    g.label('Lpj_k2')
    g('s_waitcnt lgkmcnt(0)')
    g('s_barrier')
    for i in range(4): g(f'ds_read_b128 {vr(64+4*i,4)}, v13 offset:{i*1024}')
    g('v_and_b32 v4, 31, v0')
    g('s_lshl_b32 s46, s41, 6')
    g('s_lshl_b32 s47, s43, 5')
    g('s_add_u32 s46, s46, s47')
    g('v_add_u32 v4, s46, v4')
    g('v_mul_u32_u24 v4, 1792, v4')
    g('v_lshl_add_u32 v4, v6, 4, v4')
    g('s_mul_i32 s46, s40, 896')
    g('s_lshl_b32 s47, s42, 7')
    g('s_add_u32 s46, s46, s47')
    g('s_lshl_b32 s47, s44, 6')
    g('s_add_u32 s46, s46, s47')
    g('s_waitcnt lgkmcnt(0)')
    for r in range(16): g(f'v_add_f32 v{ACC+r}, v{ACC+r}, v{64+r}')
    P = 48
    for i in range(8): g(f'v_cvt_pk_bf16_f32 v{P+i}, v{ACC+2*i}, v{ACC+2*i+1}')
    g('s_nop 1')
    for k in range(2):
        a = P + 4*k
        g(f'v_permlane32_swap_b32 v{a}, v{a+2}')
        g(f'v_permlane32_swap_b32 v{a+1}, v{a+3}')
    g('s_nop 1')
    for k in range(2):
        g(f'buffer_store_dwordx4 {vr(P+4*k,4)}, v4, s[24:27], s46 offen offset:{32*k}' + ((' ' + OPT['ost']) if OPT.get('ost') else ''))

HEADER = '''; Kernarg layout for this problem (72 bytes, ptrs only, base s[0:1]):
'''
def main(out):
    g = Gen()
    g.raw(f'.globl {NAME}')
    g.raw('.p2align 8')
    g.raw(f'.type {NAME},@function')
    g.label(NAME)
    g('s_cmp_ge_u32 s2, 256')
    g('s_cbranch_scc1 Lexit')
    if OPT.get('tl'):
        for r in range(70, 102): g(f's_mov_b32 s{r}, 0')
    stamp(g, 0); stamp(g, 15, True)
    if OPT.get('tl'): g('s_memtime s[98:99]')
    g('s_load_dwordx16 s[4:19], s[0:1], 0')
    g('s_load_dwordx2 s[20:21], s[0:1], 64')
    g('v_lshrrev_b32 v1, 6, v0')
    g('v_and_b32 v0, 63, v0')
    g('s_nop 0')
    g('v_readfirstlane_b32 s3, v1')
    if OPT.get('swapw'): g('s_xor_b32 s3, s3, 4')
    prologue(g)
    qkv_compute(g)
    qkv_loader(g)
    phase_attn(g)
    g.label('Lend')
    if OPT['stamps'] or OPT.get('tl'): g('s_waitcnt vmcnt(0)')
    stamp(g, 13)
    if OPT.get('tl'):
        sk = newlab('tl')
        g('s_cmp_lg_u32 s3, 0')
        g(f's_cbranch_scc1 {sk}')
        g('s_memtime s[100:101]')
        g('s_waitcnt lgkmcnt(0)')
        srd(g, 56, 18, 19, 256)
        g('s_mov_b64 exec, 1')
        g('s_sub_u32 s100, s100, s98')
        g('s_sub_u32 s99, s96, s70')
        g('v_mov_b32 v20, s100')
        g('v_mov_b32 v21, s99')
        g('v_mov_b32 v3, 0')
        g('buffer_atomic_umax v20, v3, s[56:59], 0 offen offset:52')
        g('buffer_atomic_umax v21, v3, s[56:59], 0 offen offset:56')
        g('s_not_b32 s68, s70')
        g('v_mov_b32 v1, s68')
        g('v_mov_b32 v3, 0')
        g('buffer_atomic_umax v1, v3, s[56:59], 0 offen offset:4')
        for k, i in enumerate((0, 2, 3, 4, 6, 8, 9, 10, 11, 12, 13)):
            g(f'v_mov_b32 v{4+k}, s{70+2*i}')
            g(f'buffer_atomic_umax v{4+k}, v3, s[56:59], 0 offen offset:{8+4*k}')
        g('s_waitcnt vmcnt(0)')
        g.label(sk)
    if OPT['stamps']: g('s_memrealtime s[72:73]')
    stamp_dump(g)
    g.label('Lexit')
    g('s_endpgm')
    txt = HEADER + f'; @launch grid=(256,1,1) block=(512,1,1) lds={LDS_BYTES}\n'
    txt += '.amdgcn_target "amdgcn-amd-amdhsa--gfx950"\n.text\n' + g.text()
    txt += f'''.section .rodata,"a"
.p2align 6
.amdhsa_kernel {NAME}
  .amdhsa_next_free_vgpr 232
  .amdhsa_next_free_sgpr 102
  .amdhsa_accum_offset 232
  .amdhsa_group_segment_fixed_size 0
  .amdhsa_kernarg_size 72
  .amdhsa_user_sgpr_count 2
  .amdhsa_user_sgpr_kernarg_segment_ptr 1
  .amdhsa_system_sgpr_workgroup_id_x 1
.end_amdhsa_kernel
'''
    open(out, 'w').write(txt)

if __name__ == '__main__':
    out = sys.argv[1] if len(sys.argv) > 1 else 'concat_heads__sliding_block__softmax_full_mha__prompt.s'
    for a in sys.argv[2:]:
        if '=' in a:
            k, v = a.split('=', 1)
            OPT[k] = v if k in ('st', 'ld', 'prio', 'ost', 'inl') else (int(v) if v.isdigit() else v)
        else:
            OPT[a] = True
    main(out)
```

```python
import sys, math, struct

def f32bits(x): return struct.unpack('<I', struct.pack('<f', x))[0]

class Gen:
    def __init__(self): self.lines = []
    def __call__(self, s):
        for l in s.split('\n'):
            l = l.strip()
            if l: self.lines.append('  ' + l)
    def label(self, s): self.lines.append(s + ':')
    def raw(self, s): self.lines.append(s)
    def text(self): return '\n'.join(self.lines) + '\n'

def vr(base, n): return f'v[{base}:{base+n-1}]'
def mfma(d, a, b, c):
    cs = '0' if c is None else vr(c, 16)
    return f'v_mfma_f32_32x32x16_bf16 {vr(d,16)}, {vr(a,4)}, {vr(b,4)}, {cs}'

OPT = dict(stamps=False, st='sc1', ld='', spin=200000, pf=5)
NAME = 'concat_heads__sliding_block__softmax_full_mha__prompt_kernel'
STAMP_BASE = 0x2000000
def stamp(g, i, real=False, q=False):
    if OPT.get('tl'):
        if i in (0, 2, 3, 4, 6, 8, 9, 10, 11, 12, 13): g(f's_memrealtime s[{70+2*i}:{71+2*i}]')
        if i == 6: g('s_memtime s[80:81]')
        if i == 8: g('s_memtime s[84:85]')
        return
    if not OPT['stamps']: return
    import inspect
    if OPT.get('qkvst') and 5 <= i <= 13:
        caller = inspect.stack()[1].function
        if caller != 'qkv_compute': return
    if (OPT.get('attst') or OPT.get('probe') or OPT.get('tailst')) and 2 <= i <= 12 and not q: return
    op = 's_memrealtime' if real else 's_memtime'
    g(f'{op} s[{70+2*i}:{71+2*i}]')
def stamp_dump(g):
    if not OPT['stamps']: return
    g('s_waitcnt lgkmcnt(0) vmcnt(0)')
    g(f's_add_u32 s64, s20, {STAMP_BASE}')
    g(f's_addc_u32 s65, s21, 0')
    g('s_mov_b32 s66, 0x100000')
    g('s_mov_b32 s67, 0x20000')
    g('s_mov_b64 exec, -1')
    g('v_mov_b32 v1, 0')
    for i in range(16):
        g(f'v_writelane_b32 v1, s{70+2*i}, {i}')
    g('s_lshl_b32 s68, s2, 3')
    g('s_add_u32 s68, s68, s3')
    g('s_lshl_b32 s68, s68, 6')
    g('v_lshlrev_b32 v3, 2, v0')
    g('v_cmp_gt_u32 vcc, 16, v0')
    g('s_and_saveexec_b64 s[62:63], vcc')
    g('buffer_store_dword v1, v3, s[64:67], s68 offen')
    g('s_waitcnt vmcnt(0)')

WS_Q = 0
WS_KV = 0x400000
WS_O = 0xC00000
WS_CNT = 0x1000000
CNT_A, CNT_B, CNT_OA, CNT_OB = 0, 16 * 256, 32 * 256, 48 * 256
QSCALE = (28 ** -0.5) * math.log2(math.e)
NEGBIG = 0xf149f2ca
POSBIG = 0x7149f2ca
LDS_BYTES = 163840

def srd(g, dst, lo, hi, nbytes, add=0):
    if add:
        g(f's_add_u32 s{dst}, s{lo}, {add}')
        g(f's_addc_u32 s{dst+1}, s{hi}, 0')
    else:
        g(f's_mov_b32 s{dst}, s{lo}')
        g(f's_mov_b32 s{dst+1}, s{hi}')
    g(f's_mov_b32 s{dst+2}, {nbytes}')
    g(f's_mov_b32 s{dst+3}, 0x20000')
def ST(): return (' ' + OPT['st']) if OPT['st'] else ''
def INL(): return (' ' + OPT['inl']) if OPT.get('inl') else ''
def LD(): return (' ' + OPT['ld']) if OPT['ld'] else ''
lab = [0]
def newlab(p):
    lab[0] += 1
    return f'L{p}_{lab[0]}'

def spin_until(g, vdst, voff, target, tmp=205):
    l0 = newlab('poll'); l1 = newlab('pdone')
    g(f's_mov_b32 s68, {OPT["spin"]}')
    g.label(l0)
    g(f'buffer_load_dword v{vdst}, v{voff}, s[64:67], 0 offen sc1')
    g('s_waitcnt vmcnt(0)')
    g(f'v_cmp_ne_u32 vcc, {target}, v{vdst}')
    g('s_nop 4')
    g(f's_cbranch_vccz {l1}')
    if OPT.get('sleep', 1): g(f's_sleep {OPT.get("sleep", 1)}')
    g('s_sub_u32 s68, s68, 1')
    g('s_cmp_lg_u32 s68, 0')
    g(f's_cbranch_scc1 {l0}')
    g.label(l1)
LFLAG = 65536 - 64
def group_wait(g, leader, word, vdst, voff, target):
    lf = newlab('follow'); ld = newlab('gdone'); lp = newlab('lspin')
    g(f'v_mov_b32 v204, {LFLAG + 4*word}')
    g(f's_cmp_lg_u32 s3, {leader}')
    g(f's_cbranch_scc1 {lf}')
    spin_until(g, vdst, voff, target)
    g('v_mov_b32 v205, 1')
    g('ds_write_b32 v204, v205')
    g('s_waitcnt lgkmcnt(0)')
    g(f's_branch {ld}')
    g.label(lf)
    g(f's_mov_b32 s68, {OPT["spin"] * 16}')
    g.label(lp)
    g('ds_read_b32 v205, v204')
    g('s_waitcnt lgkmcnt(0)')
    g('v_readfirstlane_b32 s47, v205')
    g('s_cmp_lg_u32 s47, 0')
    g(f's_cbranch_scc1 {ld}')
    g('s_sleep 1')
    g('s_sub_u32 s68, s68, 1')
    g('s_cmp_lg_u32 s68, 0')
    g(f's_cbranch_scc1 {lp}')
    g.label(ld)

WROW = 176
WSTG = 64 * WROW
NCH = 14
def prologue(g):
    g('s_and_b32 s40, s2, 7')
    g('s_lshr_b32 s41, s2, 3')
    g('s_lshr_b32 s22, s40, 1')
    g('s_lshl_b32 s22, s22, 2')
    g('s_and_b32 s42, s41, 3')
    g('s_add_u32 s22, s22, s42')
    g('s_and_b32 s23, s40, 1')
    g('s_lshl_b32 s23, s23, 3')
    g('s_lshr_b32 s42, s41, 2')
    g('s_add_u32 s23, s23, s42')
    g('s_add_u32 s69, s23, 1')
    g('s_and_b32 s69, s69, 7')
    g('s_and_b32 s42, s23, 8')
    g('s_or_b32 s69, s69, s42')
    g('s_cmp_ge_u32 s3, 4')
    g('s_cbranch_scc1 Lloader')

def kvb_srd(g):
    g('s_and_b32 s40, s2, 7')
    g('s_bfe_u32 s41, s2, 0x10003')
    g('s_lshl_b32 s40, s40, 1')
    g('s_add_u32 s40, s40, s41')
    g('s_lshl_b32 s47, s40, 18')
    g(f's_add_u32 s47, s47, {WS_KV + 0x400000}')
    g('s_add_u32 s32, s20, s47')
    g('s_addc_u32 s33, s21, 0')
    g('s_mov_b32 s34, 0x40000')
    g('s_mov_b32 s35, 0x20000')
    g('s_lshl_b32 s55, s3, 12')
def stage_tile(g, st):
    g(f's_add_u32 s54, s55, {st*32768}')
    g(f's_add_u32 m0, s55, {(st&3)*32768}')
    g('s_nop 0')
    for i in range(4):
        g(f'buffer_load_dwordx4 v2, s[32:35], s54 offen offset:{i*1024}{LD()} lds')
def init_dma_compute(g):
    kvb_srd(g)
    stage_tile(g, 0)
    stage_tile(g, 1)

def pf_lines(g, br, part, vt, vd):
    if part == 'x':
        lo, hi = (10, 11) if br else (4, 5)
        srd(g, 24, lo, hi, 1835008)
        g('s_bfe_u32 s46, s2, 0x20001')
        g('s_mul_i32 s46, s46, 458752')
        g('s_lshr_b32 s47, s2, 3')
        g('s_mul_i32 s47, s47, 14336')
        g('s_add_u32 s46, s46, s47')
        g(f'v_lshlrev_b32 v{vt}, 7, v0')
        g(f'v_add_u32 v{vt}, s46, v{vt}')
        g(f'buffer_load_dword v{vd}, v{vt}, s[24:27], 0 offen')
        g(f'v_add_u32 v{vt}, 8192, v{vt}')
        g('s_mov_b64 exec, 0x0000ffffffffffff') if False else None
        g('v_cmp_gt_u32 vcc, 48, v0')
        g('s_and_saveexec_b64 s[44:45], vcc')
        g(f'buffer_load_dword v{vd+1}, v{vt}, s[24:27], 0 offen')
        g('s_mov_b64 exec, s[44:45]')
    else:
        lo, hi = (12, 13) if br else (6, 7)
        srd(g, 24, lo, hi, 1204224)
        g('s_and_b32 s46, s2, 1')
        g('s_mul_i32 s46, s46, 1280')
        g('s_lshr_b32 s47, s2, 3')
        g('s_mul_i32 s47, s47, 37632')
        g('s_add_u32 s46, s46, s47')
        for k in range(3):
            g(f'v_add_u32 v{vt}, {64*k}, v0')
            g(f'v_mul_u32_u24 v{vt+1}, 5958, v{vt}')
            g(f'v_lshrrev_b32 v{vt+1}, 16, v{vt+1}')
            g(f'v_mul_u32_u24 v{vt+2}, 11, v{vt+1}')
            g(f'v_sub_u32 v{vt+2}, v{vt}, v{vt+2}')
            g(f'v_mul_u32_u24 v{vt+1}, 2688, v{vt+1}')
            g(f'v_lshl_add_u32 v{vt+1}, v{vt+2}, 7, v{vt+1}')
            g(f'v_add_u32 v{vt+1}, s46, v{vt+1}')
            if k == 2:
                g('v_cmp_gt_u32 vcc, 26, v0')
                g('s_and_saveexec_b64 s[44:45], vcc')
            g(f'buffer_load_dword v{vd+k}, v{vt+1}, s[24:27], 0 offen')
            if k == 2: g('s_mov_b64 exec, s[44:45]')

def PREFETCH_A(g):
    l1 = newlab('pf'); l2 = newlab('pf'); ld = newlab('pf')
    g('s_cmp_ge_u32 s3, 2')
    g(f's_cbranch_scc1 {l1}')
    srd(g, 24, 4, 5, 1835008)
    g('s_mul_i32 s46, s2, 7168')
    g('s_lshl_b32 s47, s3, 12')
    g('s_add_u32 s46, s46, s47')
    g('v_add_u32 v20, s46, v2')
    for i in range(4):
        g(f'buffer_load_dwordx4 v[{144+4*i}:{147+4*i}], v20, s[24:27], 0 offen offset:{i*1024}')
    g(f's_branch {ld}')
    g.label(l1)
    g('s_cmp_eq_u32 s3, 2')
    g(f's_cbranch_scc0 {l2}')
    srd(g, 24, 6, 7, 1204224)
    g('s_mul_i32 s46, s2, 4704')
    g('v_add_u32 v20, s46, v2')
    g('v_add_u32 v21, 4096, v20')
    for i in range(5):
        g(f'buffer_load_dwordx4 v[{144+4*i}:{147+4*i}], v{20 if i < 4 else 21}, s[24:27], 0 offen offset:{(i%4)*1024}')
    g(f's_branch {ld}')
    g.label(l2)
    g('s_mul_i32 s46, s2, 1568')
    g('v_add_u32 v20, s46, v2')
    srd(g, 24, 8, 9, 448*896)
    for i in range(2):
        g(f'buffer_load_dwordx4 v[{144+4*i}:{147+4*i}], v20, s[24:27], 0 offen offset:{i*1024}')
    srd(g, 28, 14, 15, 448*896)
    for i in range(2):
        g(f'buffer_load_dwordx4 v[{152+4*i}:{155+4*i}], v20, s[28:31], 0 offen offset:{i*1024}')
    g.label(ld)

def qkv_compute(g):
    g('v_and_b32 v4, 31, v0')
    g('s_lshl_b32 s44, s3, 5')
    g('v_add_u32 v4, s44, v4')
    g('v_lshlrev_b32 v4, 7, v4')
    g('v_bfe_u32 v5, v0, 1, 3')
    g('v_lshrrev_b32 v6, 5, v0')
    for ks in range(4):
        g(f'v_add_u32 v7, {2*ks}, v6')
        g('v_xor_b32 v7, v7, v5')
        g(f'v_lshl_add_u32 v{12+ks}, v7, 4, v4')
    g('v_bfe_u32 v4, v0, 2, 2')
    g('v_and_b32 v5, 3, v0')
    g('v_bfe_u32 v7, v0, 4, 1')
    g('v_lshlrev_b32 v7, 5, v7')
    g('v_lshl_add_u32 v7, v5, 3, v7')
    g('v_lshlrev_b32 v4, 1, v4')
    g('v_add_u32 v4, v4, v6')
    g(f'v_mul_u32_u24 v4, {2*WROW}, v4')
    g('v_add_u32 v4, v4, v7')
    g('v_add_u32 v16, 65536, v4')
    g('v_lshlrev_b32 v2, 4, v0')
    g('s_waitcnt lgkmcnt(0)')
    if OPT.get('wsoff'):
        g(f's_add_u32 s20, s20, {OPT["wsoff"] << 20}')
        g('s_addc_u32 s21, s21, 0')
    stamp(g, 1)
    srd(g, 32, 20, 21, 0x1000000)
    srd(g, 64, 20, 21, 0x4000, WS_CNT)
    g('s_or_b32 s44, s2, s3')
    g('s_cmp_lg_u32 s44, 0')
    g('s_cbranch_scc1 Lnoinit')
    g('v_lshlrev_b32 v20, 8, v0')
    g('v_mov_b32 v21, 0')
    g('buffer_store_dword v21, v20, s[64:67], 0 offen sc1')
    g('s_waitcnt vmcnt(0)')
    srd(g, 36, 18, 19, 256)
    g('s_mov_b64 exec, 1')
    g('v_mov_b32 v21, 1')
    g('v_mov_b32 v20, 0')
    g('buffer_store_dword v21, v20, s[36:39], 0 offen sc1')
    g('s_mov_b64 exec, -1')
    g.label('Lnoinit')
    if OPT.get('codepf'):
        g('s_getpc_b64 s[24:25]')
        g.label('Lpc_here')
        g(f's_sub_u32 s24, s24, Lpc_here-{NAME}')
        g('s_subb_u32 s25, s25, 0')
        g(f's_mov_b32 s26, Lexit-{NAME}')
        g('s_mov_b32 s27, 0x20000')
        g('s_lshr_b32 s46, s2, 3')
        g('s_lshl_b32 s46, s46, 2')
        g('s_add_u32 s46, s46, s3')
        g('s_lshl_b32 s46, s46, 10')
        g('v_add_u32 v20, s46, v2')
        g('buffer_load_dwordx4 v[144:147], v20, s[24:27], 0 offen')
    if OPT.get('probe'):
        g('s_mul_i32 s46, s2, 7168')
        g('v_add_u32 v20, s46, v2')
        stamp(g, 5, q=True)
        srd(g, 24, 10, 11, 1835008)
        g('buffer_load_dword v160, v20, s[24:27], 0 offen'); g('s_waitcnt vmcnt(0)'); stamp(g, 6, q=True)
        srd(g, 24, 12, 13, 1204224)
        g('s_mul_i32 s46, s2, 4704'); g('v_add_u32 v21, s46, v2')
        g('buffer_load_dword v160, v21, s[24:27], 0 offen'); g('s_waitcnt vmcnt(0)'); stamp(g, 7, q=True)
        srd(g, 24, 4, 5, 1835008)
        g('buffer_load_dword v160, v20, s[24:27], 0 offen'); g('s_waitcnt vmcnt(0)'); stamp(g, 8, q=True)
        g('buffer_load_dword v160, v20, s[24:27], 0 offen offset:2048'); g('s_waitcnt vmcnt(0)'); stamp(g, 9, q=True)
        srd(g, 24, 6, 7, 1204224)
        g('buffer_load_dword v160, v21, s[24:27], 0 offen'); g('s_waitcnt vmcnt(0)'); stamp(g, 10, q=True)
        g('buffer_load_dword v160, v21, s[24:27], 0 offen offset:2048'); g('s_waitcnt vmcnt(0)'); stamp(g, 11, q=True)
    if OPT.get('pf', 1) in (2, 4):
        l1 = newlab('pfb'); ld = newlab('pfb')
        g('s_cmp_ge_u32 s3, 2')
        g(f's_cbranch_scc1 {l1}')
        srd(g, 24, 10, 11, 1835008)
        g('s_mul_i32 s46, s2, 7168')
        g('s_lshl_b32 s47, s3, 12')
        g('s_add_u32 s46, s46, s47')
        g('v_add_u32 v20, s46, v2')
        for i in range(4):
            g(f'buffer_load_dwordx4 v[{160+4*i}:{163+4*i}], v20, s[24:27], 0 offen offset:{i*1024}')
        g(f's_branch {ld}')
        g.label(l1)
        srd(g, 24, 12, 13, 1204224)
        g('s_mul_i32 s46, s2, 4704')
        g('s_and_b32 s47, s3, 1')
        g('s_mul_i32 s47, s47, 3072')
        g('s_add_u32 s46, s46, s47')
        g('v_add_u32 v20, s46, v2')
        for i in range(3):
            g(f'buffer_load_dwordx4 v[{160+4*i}:{163+4*i}], v20, s[24:27], 0 offen offset:{i*1024}')
        g.label(ld)
    if OPT.get('pf', 1) == 4:
        PREFETCH_A(g)
    if OPT.get('pfw'):
        g('s_waitcnt vmcnt(%d)' % (0 if OPT.get('pf') != 4 else 4))
        g('s_barrier')
    if OPT.get('pf', 1) == 3:
        l1 = newlab('pf3'); l2 = newlab('pf3'); ld = newlab('pf3')
        g('s_cmp_eq_u32 s3, 0')
        g(f's_cbranch_scc0 {l1}')
        pf_lines(g, 1, 'x', 20, 160)
        g(f's_branch {ld}')
        g.label(l1)
        g('s_cmp_eq_u32 s3, 1')
        g(f's_cbranch_scc0 {ld}')
        pf_lines(g, 1, 'w', 20, 160)
        g.label(ld)
    if OPT.get('tw'):
        g('s_mov_b64 exec, 1')
        g('v_mov_b32 v20, 0')
        g('v_mov_b32 v21, 0')
        for br_, c0r in ((1, 's23'), (0, 's69')):
            g(f's_mul_i32 s46, {c0r}, 3')
            for t in range(3):
                g(f's_add_u32 s47, s46, {t}')
                g('s_and_b32 s44, s47, 15')
                g('s_lshl_b32 s44, s44, 6')
                g('s_lshl_b32 s45, s22, 2')
                g('s_add_u32 s44, s44, s45')
                g('s_add_u32 s44, s44, s3')
                if br_: g('s_add_u32 s44, s44, 1024')
                g('s_cmp_lt_u32 s47, 16')
                g('s_cselect_b32 s45, 11, 12')
                g(f's_cselect_b32 s43, {WS_Q}, {WS_KV}')
                g('s_lshl_b32 s44, s44, s45')
                g('s_add_u32 s44, s44, s43')
                g('s_cmp_ge_u32 s47, 32')
                g('s_cselect_b32 s45, 2048, 0')
                g('s_add_u32 s44, s44, s45')
                g('buffer_store_dword v21, v20, s[32:35], s44 offen sc1')
        g('s_and_b32 s44, s2, 7')
        g('s_bfe_u32 s45, s2, 0x10003')
        g('s_lshl_b32 s44, s44, 1')
        g('s_add_u32 s44, s44, s45')
        g('s_lshr_b32 s45, s2, 4')
        g('s_lshl_b32 s45, s45, 2')
        g('s_add_u32 s45, s45, s3')
        g('s_lshl_b32 s45, s45, 4')
        g('s_add_u32 s45, s45, s44')
        g('s_lshl_b32 s45, s45, 11')
        g(f's_add_u32 s45, s45, {WS_O}')
        g('buffer_store_dword v21, v20, s[32:35], s45 offen sc1')
        g('s_add_u32 s45, s45, 0x200000')
        g('buffer_store_dword v21, v20, s[32:35], s45 offen sc1')
        g('s_mov_b64 exec, -1')
    srd(g, 36, 18, 19, 256)
    g('v_mov_b32 v30, 0')
    g('buffer_load_dword v31, v30, s[36:39], 0 offen sc1')
    def prefetch():
        if not OPT.get('pf', 1) or OPT.get('pf') == 4: return
        if OPT.get('pf') == 5:
            ld = newlab('pf5')
            g('s_cmp_ge_u32 s3, 2')
            g(f's_cbranch_scc1 {ld}')
            g('s_cmp_eq_u32 s3, 0')
            g('s_cselect_b32 s24, s8, s14')
            g('s_cselect_b32 s25, s9, s15')
            g(f's_mov_b32 s26, {448*896}')
            g('s_mov_b32 s27, 0x20000')
            g('s_mul_i32 s46, s2, 1568')
            g('v_add_u32 v20, s46, v2')
            for i in range(2):
                g(f'buffer_load_dwordx4 v[{168+4*i}:{171+4*i}], v20, s[24:27], 0 offen offset:{i*1024}')
            g.label(ld)
            return
        if OPT.get('pf', 1) == 3:
            l1 = newlab('pf3'); l2 = newlab('pf3'); ld = newlab('pf3')
            g('s_cmp_eq_u32 s3, 2')
            g(f's_cbranch_scc0 {l1}')
            pf_lines(g, 0, 'x', 20, 164)
            g(f's_branch {ld}')
            g.label(l1)
            g('s_cmp_eq_u32 s3, 3')
            g(f's_cbranch_scc0 {l2}')
            pf_lines(g, 0, 'w', 20, 164)
            g(f's_branch {ld}')
            g.label(l2)
            g('s_cmp_eq_u32 s3, 0')
            g('s_cselect_b32 s24, s8, s14')
            g('s_cselect_b32 s25, s9, s15')
            g(f's_mov_b32 s26, {448*896}')
            g('s_mov_b32 s27, 0x20000')
            g('s_mul_i32 s46, s2, 1568')
            g('v_add_u32 v20, s46, v2')
            for i in range(2):
                g(f'buffer_load_dwordx4 v[{168+4*i}:{171+4*i}], v20, s[24:27], 0 offen offset:{i*1024}')
            g.label(ld)
            return
        l1 = newlab('pf'); l2 = newlab('pf'); ld = newlab('pf')
        g('s_cmp_ge_u32 s3, 2')
        g(f's_cbranch_scc1 {l1}')
        srd(g, 24, 4, 5, 1835008)
        g('s_mul_i32 s46, s2, 7168')
        g('s_lshl_b32 s47, s3, 12')
        g('s_add_u32 s46, s46, s47')
        g('v_add_u32 v20, s46, v2')
        for i in range(4):
            g(f'buffer_load_dwordx4 v[{144+4*i}:{147+4*i}], v20, s[24:27], 0 offen offset:{i*1024}')
        g(f's_branch {ld}')
        g.label(l1)
        g('s_cmp_eq_u32 s3, 2')
        g(f's_cbranch_scc0 {l2}')
        srd(g, 24, 6, 7, 1204224)
        g('s_mul_i32 s46, s2, 4704')
        g('v_add_u32 v20, s46, v2')
        g('v_add_u32 v21, 4096, v20')
        for i in range(5):
            g(f'buffer_load_dwordx4 v[{144+4*i}:{147+4*i}], v{20 if i < 4 else 21}, s[24:27], 0 offen offset:{(i%4)*1024}')
        g(f's_branch {ld}')
        g.label(l2)
        g('s_mul_i32 s46, s2, 1568')
        g('v_add_u32 v20, s46, v2')
        srd(g, 24, 8, 9, 448*896)
        for i in range(2):
            g(f'buffer_load_dwordx4 v[{144+4*i}:{147+4*i}], v20, s[24:27], 0 offen offset:{i*1024}')
        srd(g, 28, 14, 15, 448*896)
        for i in range(2):
            g(f'buffer_load_dwordx4 v[{152+4*i}:{155+4*i}], v20, s[28:31], 0 offen offset:{i*1024}')
        g.label(ld)
    XF = 80; WF = 88
    ACCS = {1: 32, 0: 144}
    PS = {1: 112, 0: 208}
    g('v_and_b32 v18, 31, v0')
    g('v_cmp_eq_u32 vcc, 28, v18')
    g('v_mov_b32 v19, 0x3f803f80')
    g('s_nop 0')
    g('v_cndmask_b32_e64 v18, 0, v19, vcc')
    g('s_mov_b32 s60, 0')
    g('s_mov_b32 s61, -1')
    g('s_mov_b32 s58, 0xf0000000')
    g('s_mov_b32 s59, 0xf0000000')
    def reads(n, buf, part):
        kc, ks = divmod(n, 4)
        st = kc % 4
        if part == 0:
            g(f'ds_read_b128 {vr(XF+4*buf,4)}, v{12+ks} offset:{st*16384}')
        for jj in range(2):
            off = st * WSTG + (ks*16 + jj) * WROW + part * 56
            g(f'ds_read_b64_tr_b16 {vr(WF+12*buf+4*part+2*jj,2)}, v16 offset:{off}')
    def mfma1(br, buf, t, first, types2):
        types = types2[br]
        x = XF + 4*buf; wf = WF + 12*buf + 4*t; d = ACCS[br] + 16*t
        c = None if first else d
        g(mfma(d, wf, x, c) if types[t] == 'QK' else mfma(d, x, wf, c))
    def epilogue_list(br, types2):
        types = types2[br]
        c0 = 's52' if br else 's63'
        L = []
        A = L.append
        ACC = ACCS[br]; P = PS[br]
        A('s_lshl_b32 s54, s22, 2')
        A('s_add_u32 s54, s54, s3')
        if br: A('s_add_u32 s54, s54, 1024')
        for t in range(3):
            a = ACC + 16*t; p = P + 8*t
            so = (48, 49, 53)[t]
            A(f's_add_u32 s62, {c0}, {t}')
            A('s_and_b32 s56, s62, 15')
            A('s_lshl_b32 s56, s56, 6')
            A('s_add_u32 s56, s56, s54')
            if types[t] == 'QK':
                A('s_cmp_lt_u32 s62, 16\n' + f's_cselect_b32 s57, {f32bits(QSCALE):#x}, 1.0\n' + 's_cselect_b32 s45, 0, 0x3f80\n' +
                  's_cselect_b32 s46, 11, 12\n' + f's_cselect_b32 s47, {WS_Q}, {WS_KV}')
                A('s_lshl_b32 s56, s56, s46')
                A(f's_add_u32 s{so}, s56, s47')
                A('v_mov_b32 v19, s45')
                for r in range(16): A(f'v_mul_f32 v{a+r}, s57, v{a+r}')
                for i in range(8): A(f'v_cvt_pk_bf16_f32 v{p+i}, v{a+2*i}, v{a+2*i+1}')
                A(f'v_cndmask_b32_e64 v{p+6}, v{p+6}, v19, s[60:61]')
                A(f'v_cndmask_b32_e64 v{p+7}, v{p+7}, 0, s[60:61]')
            else:
                A('s_lshl_b32 s56, s56, 12')
                A(f's_add_u32 s{so}, s56, {WS_KV + 2048}')
                for i in range(8): A(f'v_cvt_pk_bf16_f32 v{p+i}, v{a+2*i}, v{a+2*i+1}')
                for i in range(8): A(f'v_cndmask_b32_e64 v{p+i}, v{p+i}, v18, s[58:59]')
            if br:
                A('s_nop 1\n' + f'buffer_store_dwordx4 {vr(p,4)}, v2, s[32:35], s{so} offen{ST()}')
                A(f'buffer_store_dwordx4 {vr(p+4,4)}, v2, s[32:35], s{so} offen offset:1024{ST()}')
        return L
    g('s_mul_i32 s52, s23, 3')
    g('s_mul_i32 s63, s69, 3')
    T0, T1, T2 = ('QK','QK','QK'), ('QK','QK','V'), ('V','V','V')
    variants = [{1: T0, 0: T0}, {1: T0, 0: T1}, {1: T1, 0: T2}, {1: T2, 0: T2}, {1: T2, 0: T0}]
    g('s_cmp_eq_u32 s23, 9')
    g('s_cbranch_scc1 Lqkv_v1')
    g('s_cmp_eq_u32 s23, 10')
    g('s_cbranch_scc1 Lqkv_v2')
    g('s_cmp_eq_u32 s23, 15')
    g('s_cbranch_scc1 Lqkv_v4')
    g('s_cmp_gt_u32 s23, 10')
    g('s_cbranch_scc1 Lqkv_v3')
    NS = NCH * 4
    SIG_AT = OPT.get('sig_at', 36)
    for vi, types in enumerate(variants):
        if vi: g.label(f'Lqkv_v{vi}')
        g('s_barrier')
        if vi == 0: stamp(g, 2)
        for part in range(3): reads(0, 0, part)
        prefetch()
        epi = []
        EP0, EPN = OPT.get('ep0', 28), OPT.get('epn', 2)
        def fill(k):
            for _ in range(k):
                if epi: g(epi.pop(0))
        for n in range(NS):
            br = 1 if n < 28 else 0
            boundary = (n + 1) % 4 == 0 and n + 1 < NS
            nxt = n + 1 < NS
            buf = n & 1
            first = n % 28 == 0
            if n == EP0:
                epi = ['s_nop 7'] + epilogue_list(1, types)
                per = -(-len(epi) // (EPN * 3))
            inter = EP0 <= n < EP0 + EPN
            if boundary:
                if OPT.get('qkvst') and vi == 0 and n + 1 == SIG_AT: stamp(g, 11)
                g('s_waitcnt vmcnt(0) lgkmcnt(0)' if n + 1 in (SIG_AT, 24) else 's_waitcnt lgkmcnt(0)')
                if OPT.get('qkvst') and vi == 0 and n + 1 == SIG_AT: stamp(g, 12)
                g('s_barrier')
                if OPT.get('qkvst') and vi == 0:
                    c1 = (n + 1) // 4
                    m = {2: 5, 4: 6, 6: 7, 8: 8, 10: 9, 11: 10, 12: 13}
                    if c1 in m: stamp(g, m[c1])
                if n + 1 == SIG_AT:
                    sk = newlab('sigB'); ok = newlab('inited'); lp = newlab('initspin')
                    g('s_cmp_lg_u32 s3, 0')
                    g(f's_cbranch_scc1 {sk}')
                    g('v_readfirstlane_b32 s47, v31')
                    g('s_cmp_lg_u32 s47, 0')
                    g(f's_cbranch_scc1 {ok}')
                    g(f's_mov_b32 s68, {OPT["spin"]}')
                    g.label(lp)
                    g('buffer_load_dword v31, v30, s[36:39], 0 offen sc1')
                    g('s_waitcnt vmcnt(0)')
                    g('v_readfirstlane_b32 s47, v31')
                    g('s_cmp_lg_u32 s47, 0')
                    g(f's_cbranch_scc1 {ok}')
                    g('s_sub_u32 s68, s68, 1')
                    g('s_cmp_lg_u32 s68, 0')
                    g(f's_cbranch_scc1 {lp}')
                    g.label(ok)
                    g('s_mov_b64 exec, 1')
                    g('v_mov_b32 v1, 1')
                    g('s_lshl_b32 s47, s23, 8')
                    g(f's_add_u32 s47, s47, {CNT_B}')
                    g('v_mov_b32 v29, s47')
                    g('buffer_atomic_add v1, v29, s[64:67], 0 offen sc1')
                    g('s_mov_b64 exec, -1')
                    g.label(sk)
            else:
                g('s_waitcnt lgkmcnt(4)')
            mfma1(br, buf, 0, first, types)
            if nxt: reads(n + 1, buf ^ 1, 0)
            if inter: fill(per)
            if not boundary: g(f's_waitcnt lgkmcnt({5 if nxt else 2})')
            mfma1(br, buf, 1, first, types)
            if nxt: reads(n + 1, buf ^ 1, 1)
            if inter: fill(per)
            if not boundary: g(f's_waitcnt lgkmcnt({5 if nxt else 0})')
            mfma1(br, buf, 2, first, types)
            if nxt: reads(n + 1, buf ^ 1, 2)
            if inter: fill(per)
            if n == 27 and vi == 0: stamp(g, 3)
            if OPT.get('sbar', 0) and n == EP0 + EPN - 1:
                g('s_barrier')
        assert not epi
        if vi == 0: stamp(g, 14)
        g('s_barrier')
        if vi == 0: stamp(g, 4)
        init_dma_compute(g)
        for x in epilogue_list(0, types): g(x)
        if vi < 4: g('s_branch Lqkv_fin')
    g.label('Lqkv_fin')
    g('s_branch Lattn_setup')

def qkv_loader(g):
    g.label('Lloader')
    g('s_sub_u32 s43, s3, 4')
    g('s_lshl_b32 s44, s22, 7')
    g('s_lshl_b32 s45, s43, 5')
    g('s_add_u32 s44, s44, s45')
    g('v_lshrrev_b32 v10, 3, v0')
    g('v_add_u32 v10, s44, v10')
    g('v_mul_u32_u24 v10, 896, v10')
    g('v_lshrrev_b32 v11, 4, v0')
    g('v_and_b32 v12, 7, v0')
    g('v_xor_b32 v12, v12, v11')
    g('v_lshl_add_u32 v2, v12, 4, v10')
    g('v_xor_b32 v12, 4, v12')
    g('v_lshl_add_u32 v3, v12, 4, v10')
    g('v_add_u32 v3, 7168, v3')
    g('v_add_u32 v4, 14336, v2')
    g('v_add_u32 v5, 14336, v3')
    g('s_lshl_b32 s46, s43, 12')
    g('s_lshl_b32 s47, s43, 10')
    g('s_add_u32 s47, s47, 65536')
    g('s_lshl_b32 s44, s43, 6')
    g('s_mul_i32 s50, s23, 168')
    g('s_mul_i32 s51, s69, 168')
    def wcalc(n):
        g('v_add_u32 v10, s44, v0')
        if n: g(f'v_add_u32 v10, {256*n}, v10')
        g('v_mul_u32_u24 v11, 5958, v10')
        g('v_lshrrev_b32 v11, 16, v11')
        g('v_mul_u32_u24 v12, 11, v11')
        g('v_sub_u32 v12, v10, v12')
        g('v_and_b32 v13, 48, v11')
        g('v_and_b32 v14, 3, v11')
        g('v_lshl_add_u32 v13, v14, 2, v13')
        g('v_bfe_u32 v14, v11, 2, 2')
        g('v_add_u32 v13, v13, v14')
        g('v_mul_u32_u24 v13, 2688, v13')
        g(f'v_lshl_add_u32 v{6+n}, v12, 4, v13')
    wcalc(0)
    g('s_waitcnt lgkmcnt(0)')
    if OPT.get('wsoff'):
        g(f's_add_u32 s20, s20, {OPT["wsoff"] << 20}')
        g('s_addc_u32 s21, s21, 0')
    srd(g, 24, 10, 11, 1835008)
    srd(g, 28, 12, 13, 1204224)
    def rot_init(greg):
        g(f's_add_u32 s52, {greg}, s22')
        g('s_mul_i32 s53, s52, 37')
        g('s_lshr_b32 s53, s53, 8')
        g('s_mul_i32 s53, s53, 7')
        g('s_sub_u32 s52, s52, s53')
    def kc_offsets(c):
        if c == 7:
            if OPT.get('rot', 1): rot_init('s69')
            else: g('s_mov_b32 s52, 0')
        g('s_lshl_b32 s48, s52, 7')
        g('s_mul_i32 s49, s52, 172032')
        g(f's_add_u32 s49, s49, {"s50" if c < 7 else "s51"}')
        g('s_add_u32 s52, s52, 1')
        g('s_cmp_eq_u32 s52, 7')
        g('s_cselect_b32 s52, 0, s52')
    def issueX(c):
        st = c % 4
        sx = 24 if c < 7 else 32
        kc_offsets(c)
        for e in range(4):
            g(f's_add_u32 m0, s46, {st*16384 + e*1024}')
            g('s_nop 0')
            g(f'buffer_load_dwordx4 v{2+e}, s[{sx}:{sx+3}], s48 offen{INL()} lds')
    def issueW(c, ns=(0, 1, 2)):
        st = c % 4
        sw = 28 if c < 7 else 36
        for n in ns:
            if n == 2:
                sk = newlab('qs')
                g('s_cmp_eq_u32 s43, 3')
                g(f's_cbranch_scc1 {sk}')
            g(f's_add_u32 m0, s47, {st*WSTG + n*4096}')
            g('s_nop 0')
            g(f'buffer_load_dwordx4 v{6+n}, s[{sw}:{sw+3}], s49 offen{INL()} lds')
            if n == 2: g.label(sk)
    if OPT.get('rot', 1): rot_init('s23')
    else: g('s_mov_b32 s52, 0')
    def issue(c):
        issueX(c); issueW(c)
    if OPT.get('pfw') == 1: g('s_barrier')
    issueX(0)
    issueW(0, (0,))
    wcalc(1); issueW(0, (1,))
    wcalc(2); issueW(0, (2,))
    srd(g, 32, 4, 5, 1835008)
    srd(g, 36, 6, 7, 1204224)
    srd(g, 64, 20, 21, 0x4000, WS_CNT)
    g('s_and_b32 s40, s2, 7')
    g('s_bfe_u32 s41, s2, 0x10003')
    g('s_lshl_b32 s40, s40, 1')
    g('s_add_u32 s40, s40, s41')
    g('v_min_u32 v30, 2, v0')
    g('v_lshlrev_b32 v30, 4, v30')
    g('v_add_u32 v30, s40, v30')
    g('v_mul_u32_u24 v30, 43, v30')
    g('v_lshrrev_b32 v30, 7, v30')
    g('v_lshlrev_b32 v31, 8, v30')
    g(f'v_add_u32 v203, {CNT_B}, v31')
    if OPT.get('pfw') == 2: g('s_barrier')
    for c in range(1, 3): issue(c)
    issued = 2
    HOLD = OPT.get('hold', 9) if OPT.get('sbar', 0) else 99
    for c in range(NCH):
        rem = issued - c
        if c == 13:
            skq = newlab('w13'); skr = newlab('w13')
            g('s_cmp_lg_u32 s3, 4')
            g(f's_cbranch_scc1 {skq}')
            g('s_waitcnt vmcnt(1)')
            g(f's_branch {skr}')
            g.label(skq)
            g('s_waitcnt vmcnt(0)')
            g.label(skr)
        else:
            g(f's_waitcnt vmcnt({6*rem})')
        g('s_barrier')
        if c + 3 < NCH and not (HOLD <= c + 3 <= 10):
            issue(c + 3); issued = c + 3
        if OPT.get('sbar', 0) and c == 7:
            g('s_barrier')
            for cc in range(HOLD, 11):
                issue(cc); issued = cc
        if c == 10: attn_setup(g)
        if c == 11: set_mask(g, 32, 'first')
        if c == 12:
            skp = newlab('p12')
            g('s_cmp_lg_u32 s3, 4')
            g(f's_cbranch_scc1 {skp}')
            g('buffer_load_dword v201, v203, s[64:67], 0 offen sc1')
            g.label(skp)
    g('s_cmp_lg_u32 s3, 4')
    g('s_cbranch_scc1 Lh1_polled')
    g('s_waitcnt vmcnt(0)')
    g('v_cmp_ne_u32 vcc, 16, v201')
    g('s_nop 4')
    g('s_cbranch_vccz Lh1_polled')
    spin_until(g, 201, 203, 16)
    g.label('Lh1_polled')
    g('s_barrier')
    stamp(g, 4)
    g('s_add_u32 s47, s44, 0x200000')
    g('s_mov_b32 m0, s51')
    g('s_nop 0')
    for i in range(2):
        g(f'buffer_load_dwordx4 v2, s[24:27], s47 offen offset:{i*1024}{LD()} lds')
    stage_tile(g, 0)
    stage_tile(g, 1)
    stamp(g, 5)
    g('s_waitcnt vmcnt(4)')
    g('s_barrier')
    g('s_branch Lattn_go')

K2_SCR = 131072
QL = 200
def set_mask(g, dst, kind):
    for r in range(16):
        br_ = (r & 3) + 8 * (r >> 2)
        op = 'v_cmp_le_i32' if kind == 'diag' else 'v_cmp_gt_i32'
        g(f'{op} vcc, {br_}, v24')
        g('s_nop 1')
        g(f'v_cndmask_b32_e64 v{dst+r}, v25, 0, vcc')
def attn_setup(g):
    kvb_srd(g)
    g('s_lshr_b32 s41, s2, 4')
    g('s_and_b32 s42, s3, 3')
    g('s_lshr_b32 s43, s3, 2')
    g('v_lshlrev_b32 v2, 4, v0')
    g('s_lshl_b32 s44, s40, 6')
    g('s_lshl_b32 s45, s41, 2')
    g('s_add_u32 s45, s45, s42')
    g('s_add_u32 s44, s44, s45')
    g('s_lshl_b32 s44, s44, 11')
    srd(g, 24, 20, 21, 0x400000)
    g('s_sub_u32 s28, s32, 0x400000')
    g('s_subb_u32 s29, s33, 0')
    g('s_mov_b32 s30, 0x40000')
    g('s_mov_b32 s31, 0x20000')
    srd(g, 36, 20, 21, 0x400000, WS_O)
    g('v_min_u32 v30, 2, v0')
    g('v_lshlrev_b32 v30, 4, v30')
    g('v_add_u32 v30, s40, v30')
    g('v_mul_u32_u24 v30, 43, v30')
    g('v_lshrrev_b32 v30, 7, v30')
    g('v_lshlrev_b32 v31, 8, v30')
    g(f'v_add_u32 v203, {CNT_B}, v31')
    g('s_lshl_b32 s47, s41, 2')
    g('s_add_u32 s47, s47, s3')
    g('s_sub_u32 s47, s47, 8')
    g('s_lshl_b32 s50, s47, 12')
    g('s_cmp_lt_i32 s47, 0')
    g('s_cselect_b32 s50, 0x40000000, s50')
    g('v_add_u32 v28, s50, v2')
    g('s_add_u32 s47, s47, 8')
    g('s_lshl_b32 s50, s47, 12')
    g('v_add_u32 v29, s50, v2')
    g('s_lshl_b32 s47, s42, 12')
    g('v_add_u32 v3, s47, v2')
    g('s_lshl_b32 s47, s43, 14')
    g('v_add_u32 v4, s47, v2')
    g('v_add_u32 v5, 32768, v4')
    g(f'v_add_u32 v6, {K2_SCR}, v3')
    g('s_lshl_b32 s47, s42, 8')
    g(f's_add_u32 s47, s47, {K2_SCR+16384}')
    g('v_lshlrev_b32 v7, 2, v0')
    g('v_add_u32 v7, s47, v7')
    g('s_lshl_b32 s47, s42, 11')
    g(f's_add_u32 s51, s47, {K2_SCR}')
    g(f'v_add_u32 v{QL}, s51, v2')
    g('v_and_b32 v24, 31, v0')
    g('v_lshrrev_b32 v25, 5, v0')
    g('v_lshlrev_b32 v25, 2, v25')
    g('v_sub_u32 v24, v24, v25')
    g(f'v_mov_b32 v25, {NEGBIG:#x}')
    g('s_mov_b32 s60, 0')
    g('s_mov_b32 s61, -1')
    srd(g, 56, 20, 21, 0x1000000)

def phase_attn(g):
    g.label('Lattn_setup')
    QA = 8; QB = 16; MASK = 32; S0 = 48; S1 = 64; P = 80; OA = 88; OB = 104; KF = 120; VF = 128; T = 136
    TK = 144; TS = 152
    MNA = 26; MNB = 27
    SB = [S0, S1]
    attn_setup(g)
    set_mask(g, MASK, 'diag')
    stamp(g, 5)
    g('s_waitcnt vmcnt(4)')
    g('s_barrier')
    g.label('Lattn_go')
    g('s_cmp_eq_u32 s43, 99') if False else None
    def dma4(vreg, s, s_goff, s_m0, n=4, first=0):
        g(f's_mov_b32 m0, {s_m0}')
        g('s_nop 0')
        for i in range(first, first + n):
            g(f'buffer_load_dwordx4 v{vreg}, s[{s}:{s+3}], {s_goff} offen offset:{i*1024}{LD()} lds')
    stamp(g, 6)
    g(f'ds_read_b128 {vr(QB,4)}, v{QL}')
    g(f'ds_read_b128 {vr(QB+4,4)}, v{QL} offset:1024')

    def rowmax(sbuf, t):
        g(f'v_max3_f32 v{t}, v{sbuf}, v{sbuf+1}, v{sbuf+2}')
        for r in range(3, 15, 2):
            g(f'v_max3_f32 v{t}, v{t}, v{sbuf+r}, v{sbuf+r+1}')
        g(f'v_max_f32 v{t}, v{t}, v{sbuf+15}')
        g(f'v_mov_b32 v{t+1}, v{t}')
        g('s_nop 1')
        g(f'v_permlane32_swap_b32 v{t}, v{t+1}')
        g('s_nop 1')
        g(f'v_max_f32 v{t}, v{t}, v{t+1}')
    def set_standin(sbuf, q, mneg):
        t = T
        rowmax(sbuf, t)
        g(f'v_sub_f32 v{t}, 0, v{t}')
        g(f'v_cvt_pk_bf16_f32 v{t}, v{t}, 0')
        g(f'v_lshlrev_b32 v{mneg}, 16, v{t}')
        g('s_mov_b64 exec, s[60:61]')
        g(f'v_mov_b32 v{q+4+2}, v{t}')
        g('s_mov_b64 exec, -1')
    def slots(br, kh):
        if br == 1: return (2048, 0, None) if kh == 0 else (0, 1024, 2048)
        return (0, 1024, None) if kh == 0 else (2048, 0, 3072)
    def write_half(kh, br, O, mn):
        oo, mo, lo = slots(br, kh)
        src = O + 8 if kh == 0 else O
        g(f'ds_write_b128 v6, {vr(src,4)} offset:{oo}')
        g(f'ds_write_b128 v6, {vr(src+4,4)} offset:{oo+1024}')
        g(f'ds_write_b32 v7, v{mn} offset:{mo}')
        if kh == 1: g(f'ds_write_b32 v7, v{O+12} offset:{lo}')
    FB = 168
    def finish_half(tag, kh, br, O, mn, q, tmp):
        base = O + 8*kh
        oo, mo, lo = slots(br, 1 - kh)
        g(f'ds_read_b128 {vr(tmp,4)}, v6 offset:{oo}')
        g(f'ds_read_b128 {vr(tmp+4,4)}, v6 offset:{oo+1024}')
        g(f'ds_read_b32 v{T}, v7 offset:{mo}')
        if kh == 0: g(f'ds_read_b32 v{T+5}, v7 offset:{lo}')
        lp = T + 5 if kh == 0 else tmp + 4
        g('s_waitcnt lgkmcnt(0)')
        g(f'v_min_f32 v{T+1}, v{mn}, v{T}')
        g(f'v_sub_f32 v{T+2}, v{T+1}, v{mn}')
        g(f'v_sub_f32 v{T+3}, v{T+1}, v{T}')
        g(f'v_exp_f32 v{T+2}, v{T+2}')
        g(f'v_exp_f32 v{T+3}, v{T+3}')
        g('s_nop 0')
        g(f'v_mul_f32 v{T}, v{O+12}, v{T+2}')
        g(f'v_fmac_f32 v{T}, v{lp}, v{T+3}')
        for r in range(8): g(f'v_mul_f32 v{base+r}, v{base+r}, v{T+2}')
        g(f'v_mov_b32 v{T+1}, v{T}')
        for r in range(8): g(f'v_fmac_f32 v{base+r}, v{tmp+r}, v{T+3}')
        g(f'v_permlane32_swap_b32 v{T}, v{T+1}')
        g(f'v_mul_f32 v{T+4}, 0, v{base}')
        for r in range(1, 8): g(f'v_fmac_f32 v{T+4}, 0, v{base+r}')
        g(f'v_add_f32 v{T+4}, v{T+4}, v{T+1}')
        g(f's_mov_b32 s47, {f32bits(2.0**100):#x}')
        g(f'v_cmp_ngt_f32 vcc, s47, v{T+4}')
        g('s_nop 4')
        g(f's_cbranch_vccz L{tag}_ok')
        fallback(tag, br, O, q)
        g(f'v_mov_b32 v{T}, v{O+12}')
        g(f'v_mov_b32 v{T+1}, v{O+12}')
        g('s_nop 1')
        g(f'v_permlane32_swap_b32 v{T}, v{T+1}')
        g('s_nop 1')
        g.label(f'L{tag}_ok')
        g(f'v_rcp_f32 v{T+1}, v{T+1}')
        g('s_lshl_b32 s47, s41, 2')
        g('s_add_u32 s47, s47, s42')
        for r in range(8): g(f'v_mul_f32 v{base+r}, v{base+r}, v{T+1}')
        g(f's_add_u32 s47, s47, {br*64}')
        g('s_lshl_b32 s47, s47, 4')
        g('s_add_u32 s47, s47, s40')
        g('s_lshl_b32 s47, s47, 11')
        for i in range(4): g(f'v_cvt_pk_bf16_f32 v{tmp+i}, v{base+2*i}, v{base+2*i+1}')
        if kh == 1:
            g(f'v_cndmask_b32_e64 v{tmp+2}, v{tmp+2}, 0, s[60:61]')
            g(f'v_cndmask_b32_e64 v{tmp+3}, v{tmp+3}, 0, s[60:61]')
        g('s_nop 1')
        g(f'buffer_store_dwordx4 {vr(tmp,4)}, v2, s[36:39], s47 offen offset:{kh*1024}{ST()}')
        g('s_nop 1')
    def fallback(tag, br, O, q):
        FS, FK, FV, FP, FQ, Fm = FB, FB+16, FB+24, FB+32, FB+40, FB+48
        s = 28 if br == 0 else 32
        for i in range(8): g(f'v_mov_b32 v{FQ+i}, v{q+i}')
        g('s_mov_b64 exec, s[60:61]')
        g(f'v_mov_b32 v{FQ+6}, 0')
        g('s_mov_b64 exec, -1')
        for r in range(16): g(f'v_mov_b32 v{O+r}, 0')
        g(f'v_mov_b32 v{Fm}, v25')
        if br == 0:
            g('s_lshl_b32 s52, s41, 2')
            g('s_add_u32 s52, s52, s42')
            g('s_sub_u32 s53, s52, 8')
            g('s_mov_b32 s54, s52')
        else:
            g('s_mov_b32 s54, 63')
        g.label(f'L{tag}_fb_loop')
        g('s_lshl_b32 s55, s54, 12')
        for i in range(2):
            g(f'buffer_load_dwordx4 {vr(FK+4*i,4)}, v2, s[{s}:{s+3}], s55 offen offset:{i*1024}{LD()}')
            g(f'buffer_load_dwordx4 {vr(FV+4*i,4)}, v2, s[{s}:{s+3}], s55 offen offset:{2048+i*1024}{LD()}')
        if br == 0:
            g('s_cmp_eq_u32 s54, s52')
            g(f's_cbranch_scc1 L{tag}_fb_diag')
            g('s_cmp_eq_u32 s54, s53')
            g(f's_cbranch_scc1 L{tag}_fb_first')
        for r in range(16): g(f'v_mov_b32 v{FS+r}, 0')
        if br == 0:
            g(f's_branch L{tag}_fb_go')
            g.label(f'L{tag}_fb_diag')
            set_mask(g, FS, 'diag')
            g(f's_branch L{tag}_fb_go')
            g.label(f'L{tag}_fb_first')
            set_mask(g, FS, 'first')
            g.label(f'L{tag}_fb_go')
        g('s_waitcnt vmcnt(0)')
        g('s_nop 1')
        g(mfma(FS, FK, FQ, FS))
        g(mfma(FS, FK+4, FQ+4, FS))
        g('s_nop 15')
        rowmax(FS, Fm+1)
        g(f'v_max_f32 v{Fm+1}, v{Fm+1}, v{Fm}')
        g(f'v_sub_f32 v{Fm+2}, v{Fm}, v{Fm+1}')
        g(f'v_exp_f32 v{Fm+2}, v{Fm+2}')
        g(f'v_mov_b32 v{Fm}, v{Fm+1}')
        for r in range(16): g(f'v_sub_f32 v{FS+r}, v{FS+r}, v{Fm}')
        for r in range(16): g(f'v_exp_f32 v{FS+r}, v{FS+r}')
        for r in range(16): g(f'v_mul_f32 v{O+r}, v{O+r}, v{Fm+2}')
        for i in range(8): g(f'v_cvt_pk_bf16_f32 v{FP+i}, v{FS+2*i}, v{FS+2*i+1}')
        g('s_nop 1')
        g(mfma(O, FV, FP, O))
        g(mfma(O, FV+4, FP+4, O))
        g('s_nop 15')
        g('s_sub_u32 s54, s54, 1')
        g('s_cmp_lt_i32 s54, 0')
        g(f's_cbranch_scc1 L{tag}_fb_end')
        if br == 0:
            g('s_cmp_lt_i32 s54, s53')
            g(f's_cbranch_scc1 L{tag}_fb_end')
        g(f's_branch L{tag}_fb_loop')
        g.label(f'L{tag}_fb_end')

    g('s_cmp_eq_u32 s43, 0')
    g('s_cbranch_scc0 Lattn_kh1')

    def path(kh):
        tag = f'K{kh}'
        unitsA = [8, 7, 6, 5, 4] if kh == 0 else [3, 2, 1, 0]
        nA = len(unitsA); N = 32 + nA
        def unit(i):
            if i >= 32:
                u = unitsA[i - 32]
                masked = (kh == 0 and u == 8) or (kh == 1 and u == 0)
                return dict(base=3, off=u*4096, Q=QA, O=OA, C=MASK if masked else None, first=(i == 32))
            return dict(b=i, Q=QB, O=OB, C=None, first=(i == 0))
        def addr(i, cs):
            u = unit(i)
            if 'base' in u: return u['base'], u['off']
            b = u['b']; s = b >> 2
            if s == cs: return 4, (b & 3) * 4096
            assert s == cs + 1
            return 5, (b & 3) * 4096
        def rdK(i, cs, dst=KF):
            r, off = addr(i, cs)
            g(f'ds_read_b128 {vr(dst,4)}, v{r} offset:{off}')
            g(f'ds_read_b128 {vr(dst+4,4)}, v{r} offset:{off+1024}')
        def rdV(i, f, cs):
            r, off = addr(i, cs)
            g(f'ds_read_b128 {vr(VF+4*f,4)}, v{r} offset:{off+2048+f*1024}')
        rdK(0, 0)
        g('s_waitcnt lgkmcnt(0)')
        g(mfma(S0, KF, QB, None))
        g(mfma(S0, KF+4, QB+4, S0))
        g('s_nop 15')
        set_standin(S0, QB, MNB)
        g('s_nop 1')
        g(mfma(S0, KF, QB, None))
        g(mfma(S0, KF+4, QB+4, S0))
        rdK(1, 0)
        rdV(0, 0, 0)
        g('s_nop 15')
        if kh == 0: stamp(g, 7)
        if OPT.get('attst'): stamp(g, 2, q=True)
        def wo_piece(it):
            if it == 7:
                sk = newlab('wo7')
                g('s_cmp_lg_u32 s3, 0')
                g(f's_cbranch_scc1 {sk}')
                g(f's_add_u32 m0, s45, {65536 + it*8192}')
                g(f'v_add_u32 v31, {it*64*896}, v30')
                g('buffer_load_dwordx4 v31, s[56:59], 0 offen lds')
                g.label(sk)
            else:
                g(f's_add_u32 m0, s45, {65536 + it*8192}')
                g(f's_mov_b32 s50, {it*64*896}')
                g('buffer_load_dwordx4 v30, s[56:59], s50 offen lds')
        def wo_setup():
            g('s_mov_b32 s56, s14')
            g('s_mov_b32 s57, s15')
            g(f's_mov_b32 s58, {448*896}')
            g('s_mov_b32 s59, 0x20000')
            g('v_lshrrev_b32 v30, 3, v0')
            g('v_and_b32 v31, 7, v0')
            g('v_and_b32 v1, 2, v30')
            g('v_lshlrev_b32 v1, 1, v1')
            g('v_xor_b32 v31, v31, v1')
            g('s_lshl_b32 s50, s3, 3')
            g('v_add_u32 v30, s50, v30')
            g('v_mul_u32_u24 v30, 896, v30')
            g('v_lshl_add_u32 v30, v31, 4, v30')
            g('s_lshr_b32 s50, s2, 5')
            g('s_lshl_b32 s50, s50, 7')
            g('s_cmp_ge_u32 s2, 224')
            g('s_cselect_b32 s50, 0x40000000, s50')
            g('v_add_u32 v30, s50, v30')
            g('s_lshl_b32 s45, s3, 10')
        def dma_slot(i, inloop):
            if i == 0 or i == 1:
                st = i + 2
                g(f's_add_u32 s54, s55, {st*32768}')
                g(f's_add_u32 m0, s55, {(st&3)*32768}')
                g('s_nop 0')
                for k in range(4):
                    g(f'buffer_load_dwordx4 v2, s[32:35], s54 offen offset:{k*1024}{LD()} lds')
                return
            if i == 2 and kh == 0:
                for t in range(3):
                    g(f'buffer_store_dwordx4 {vr(208+8*t,4)}, v2, s[56:59], s{(48,49,53)[t]} offen{ST()}')
                    g(f'buffer_store_dwordx4 {vr(212+8*t,4)}, v2, s[56:59], s{(48,49,53)[t]} offen offset:1024{ST()}')
                return
            if i >= 30:
                if i == 30: wo_setup()
                before34 = {30: [0], 31: [1], 32: [2], 33: [3], 34: [4, 5], 35: [6, 7]}
                for it in before34.get(i, []): wo_piece(it)
                return
            if i == 12 and kh == 1 and OPT.get('wol2', 1):
                sk = newlab('wol2')
                g('s_cmp_gt_u32 s3, 5')
                g(f's_cbranch_scc1 {sk}')
                srd(g, 56, 8, 9, 448*896)
                g('s_lshr_b32 s47, s2, 3')
                g('s_mul_i32 s47, s47, 98')
                g('s_sub_u32 s48, s3, 4')
                g('s_lshl_b32 s48, s48, 6')
                g('s_add_u32 s47, s47, s48')
                g('v_add_u32 v204, s47, v0')
                g('v_lshlrev_b32 v204, 7, v204')
                g('buffer_load_dword v205, v204, s[56:59], 0 offen')
                g.label(sk)
            if i < 6: return
            ph = (i - 2) & 3; st = ((i - 2) >> 2) + 3
            if i == 18:
                g('buffer_load_dword v201, v31, s[64:67], 0 offen sc1')
            if st <= 7:
                if ph == 0:
                    g(f's_add_u32 s54, s55, {st*32768}')
                    g(f's_add_u32 m0, s55, {(st&3)*32768}')
                    g('s_nop 0')
                g(f'buffer_load_dwordx4 v2, s[32:35], s54 offen offset:{ph*1024}{LD()} lds')
            elif st == 8:
                if ph == 0:
                    ok = newlab('aok')
                    g('v_cmp_ne_u32 vcc, 16, v201')
                    g('s_nop 4')
                    g(f's_cbranch_vccz {ok}')
                    spin_until(g, 201, 31, 16)
                    g.label(ok)
                    if kh == 1:
                        g('s_add_u32 s47, s51, 8192')
                        dma4(2, 24, 's44', 's47', n=2)
                    g('s_mov_b32 m0, s55')
                    g('s_nop 0')
                g(f'buffer_load_dwordx4 v28, s[28:31], 0 offen offset:{ph*1024}{LD()} lds')
            elif st == 9 and ph <= 1 and kh == 0:
                if ph == 0:
                    g('s_add_u32 m0, s55, 32768')
                    g('s_nop 0')
                for k in range(2):
                    g(f'buffer_load_dwordx4 v29, s[28:31], 0 offen offset:{(2*ph+k)*1024}{LD()} lds')
        def body(i, cs, inloop=False):
            u = unit(i)
            sb = SB[i & 1]; sn = SB[(i + 1) & 1]
            e = [f'v_exp_f32 v{sb+r}, v{sb+r}' for r in range(16)]
            c = [f'v_cvt_pk_bf16_f32 v{P+k}, v{sb+2*k}, v{sb+2*k+1}' for k in range(8)]
            has1 = i + 1 < N; has2 = i + 2 < N
            if i < 32 and (i & 3) == 2:
                s = i >> 2
                if s == 7: vm = 0
                elif s == 0: vm = 8
                elif s == 1: vm = 4 if kh == 1 else 10
                elif s == 2: vm = 4
                else: vm = 4
                if OPT.get('attst') and s in (0, 1, 2, 3, 5, 7): stamp(g, {0: 3, 1: 5, 2: 7, 3: 9, 5: 11, 7: 13}[s], q=True)
                g(f's_waitcnt vmcnt({vm}) lgkmcnt(0)' if vm is not None else 's_waitcnt lgkmcnt(0)')
                g('s_barrier')
                if OPT.get('attst') and s in (0, 1, 2, 3, 5, 7): stamp(g, {0: 4, 1: 6, 2: 8, 3: 10, 5: 12, 7: 14}[s], q=True)
                if s == 2 and kh == 1:
                    sk = newlab('sigA')
                    g('s_cmp_lg_u32 s3, 4')
                    g(f's_cbranch_scc1 {sk}')
                    g('s_mov_b64 exec, 1')
                    g('v_mov_b32 v1, 1')
                    g('s_lshl_b32 s47, s69, 8')
                    g('v_mov_b32 v202, s47')
                    g('buffer_atomic_add v1, v202, s[64:67], 0 offen sc1')
                    g('s_mov_b64 exec, -1')
                    g.label(sk)
                if s == 6:
                    g(f'ds_read_b128 {vr(QA,4)}, v{QL} offset:8192')
                    g(f'ds_read_b128 {vr(QA+4,4)}, v{QL} offset:9216')
                if s == 7 and kh == 0:
                    g(f'v_mov_b32 v204, {LFLAG}')
                    g('v_mov_b32 v205, 0')
                    g('ds_write_b32 v204, v205')
                    g('ds_write_b32 v204, v205 offset:4')
                    rdK(32, cs, TK)
                    g('s_waitcnt lgkmcnt(0)')
                    g(mfma(TS, TK, QA, unit(32)['C']))
                    g(mfma(TS, TK+4, QA+4, TS))
                    g('s_nop 15')
                    set_standin(TS, QA, MNA)
            elif i == 31 and kh == 1:
                g('s_waitcnt lgkmcnt(0)')
                g(mfma(TS, KF, QA, unit(32)['C']))
                g(mfma(TS, KF+4, QA+4, TS))
                g('s_nop 15')
                set_standin(TS, QA, MNA)
                g('s_lshl_b32 s47, s41, 2')
                g('s_add_u32 s47, s47, s42')
                g('s_cmp_lt_u32 s47, 5')
                g(f's_cbranch_scc0 L{tag}_valid')
                g(f'v_mov_b32 v{MNA}, {POSBIG:#x}')
                g.label(f'L{tag}_valid')
            elif i == 34:
                if OPT.get('tailst'): stamp(g, 3, q=True)
                g('s_waitcnt lgkmcnt(0)')
                g('s_barrier')
                if OPT.get('tailst'): stamp(g, 4, q=True)
                finish_half(f'FB{kh}', kh, 1, OB, MNB, QB, TS)
                if OPT.get('tailst'): stamp(g, 5, q=True)
            else:
                g('s_waitcnt lgkmcnt(0)')
            pm = OPT.get('prio', 'lag')
            if pm == 'lag':
                g(f's_setprio {3 - ((i - 2) & 3)}')
            elif pm == 'lag2' and ((i - 2) & 1) == 0:
                g(f's_setprio {1 - (((i - 2) & 3) >> 1)}')
            elif pm == 'half':
                g(f's_setprio {3 - (((i - 2) & 1) * 2)}')
            g(e[0])
            if i > 0:
                up = unit(i - 1)
                g(mfma(up['O'], VF+4, P+4, up['O']))
            rdV(i, 1, cs)
            g(e[1]); g(e[2]); g(e[3])
            g(c[0])
            if i == 33:
                write_half(kh, 1, OB, MNB)
            if has1:
                un = unit(i + 1)
                g(mfma(sn, KF, un['Q'], un['C']))
            g(e[4]); g(e[5]); g(c[1]); g(e[6]); g(e[7]); g(c[2])
            if has1:
                g(mfma(sn, KF+4, un['Q']+4, sn))
            if has2:
                rdK(i + 2, cs)
            g(e[8]); g(c[3]); g(e[9]); g(e[10])
            dma_slot(i, inloop)
            g(e[11])
            if OPT.get('prio') == 'half':
                g(f's_setprio {2 - (((i - 2) & 1) * 2)}')
            g(mfma(u['O'], VF, P, None if u['first'] else u['O']))
            if has1:
                rdV(i + 1, 0, cs)
            for x in e[12:16]: g(x)
            g(c[4]); g(c[5]); g(c[6]); g(c[7])
        def advance():
            g('v_mov_b32 v4, v5')
            g('v_add_u32 v5, 32768, v5')
            g('v_and_b32 v5, 0x1ffff, v5')
        return body, advance, N, tag
    for kh in (0, 1):
        if kh == 1: g.label('Lattn_kh1')
        body, advance, N, tag = path(kh)
        for s_ in range(7):
            for j in range(4): body(4*s_ + j, s_)
            advance()
        for j in range(4): body(28 + j, 7)
        if kh == 0: stamp(g, 8)
        if OPT.get('tailst'): stamp(g, 2, q=True)
        for i in range(32, N): body(i, 7)
        g('s_waitcnt lgkmcnt(0)')
        g('s_nop 1')
        g(mfma(OA, VF+4, P+4, OA))
        g('s_nop 15')
        if OPT.get('tailst'): stamp(g, 6, q=True)
        write_half(kh, 0, OA, MNA)
        g('s_waitcnt vmcnt(3) lgkmcnt(0)')
        g('s_barrier')
        if OPT.get('tailst'): stamp(g, 7, q=True)
        if kh == 1: signal_o(g, CNT_OB, 4)
        finish_half(f'FA{kh}', kh, 0, OA, MNA, QA, TS)
        if OPT.get('tailst'): stamp(g, 8, q=True)
        if OPT.get('woearly', 0):
            woA_issue(g)
            g('s_waitcnt vmcnt(7)')
        else:
            g('s_waitcnt vmcnt(0)')
        if OPT.get('tailst'): stamp(g, 9, q=True)
        g('s_mov_b64 exec, 1')
        g('v_mov_b32 v1, 1')
        g('s_lshl_b32 s47, s41, 8')
        g(f's_add_u32 s47, s47, {CNT_OA}')
        g('v_mov_b32 v31, s47')
        g('buffer_atomic_add v1, v31, s[64:67], 0 offen sc1')
        g('s_mov_b64 exec, -1')
        if not OPT.get('woearly', 0): woA_issue(g)
        stamp(g, 9)
        if kh == 1:
            proj_group_B(g)
        else:
            proj_group_A(g)
    proj_common(g)

PJ_EX = 131072
def proj_setup(g, br):
    g(f's_mov_b32 s40, {br}')
    g('s_and_b32 s41, s2, 7')
    g('s_lshl_b32 s41, s41, 2')
    g('s_bfe_u32 s42, s2, 0x20003')
    g('s_add_u32 s41, s41, s42')
    g('s_lshr_b32 s42, s2, 5')
    g('s_and_b32 s43, s3, 1')
    g('s_bfe_u32 s44, s3, 0x10001')
    srd(g, 24, 16, 17, 2048 * 1792)
    g('s_lshl_b32 s45, s41, 1')
    g('s_add_u32 s45, s45, s43')
    g(f's_add_u32 s45, s45, {br*64}')
    g('s_lshl_b32 s45, s45, 15')
    g('s_lshl_b32 s46, s44, 14')
    g('s_add_u32 s45, s45, s46')
    g('v_bfe_u32 v4, v0, 2, 2')
    g('v_and_b32 v5, 3, v0')
    g('v_bfe_u32 v7, v0, 4, 1')
    g('v_lshrrev_b32 v6, 5, v0')
    g('v_lshlrev_b32 v7, 5, v7')
    g('v_lshl_add_u32 v7, v5, 3, v7')
    g('v_lshrrev_b32 v11, 4, v7')
    g('v_and_b32 v8, 2, v4')
    g('v_lshlrev_b32 v8, 1, v8')
    g('v_xor_b32 v11, v11, v8')
    g('v_and_b32 v7, 15, v7')
    g('v_lshl_add_u32 v7, v11, 4, v7')
    g('v_lshl_add_u32 v4, v6, 2, v4')
    g('v_lshl_add_u32 v9, v4, 7, v7')
    g('s_mul_i32 s46, s44, 28672')
    if br: g('s_add_u32 s46, s46, 65536')
    g('v_add_u32 v9, s46, v9')
    g('v_xor_b32 v10, 64, v9')
    g('s_lshl_b32 s46, s43, 1')
    g('s_add_u32 s46, s46, s44')
    g(f's_add_u32 s46, s46, {br*4}')
    g('s_lshl_b32 s46, s46, 12')
    g(f's_add_u32 s46, s46, {PJ_EX}')
    g('v_add_u32 v12, s46, v2')
    g('v_xor_b32 v13, 4096, v12')
    g('s_lshr_b32 s46, s41, 1')
    g('s_lshl_b32 s46, s46, 8')
    g(f's_add_u32 s46, s46, {CNT_OB if br else CNT_OA}')
    g('v_mov_b32 v30, s46')
def o_loads(g):
    OF = 64
    for n in range(16):
        if n % 4 == 0 and n > 0: g('s_add_u32 s45, s45, 4096')
        g(f'buffer_load_dwordx4 {vr(OF+4*n,4)}, v2, s[36:39], s45 offen offset:{(n%4)*1024}{LD()}')
def signal_o(g, cnt, wave):
    sk = newlab('sigO')
    g(f's_cmp_lg_u32 s3, {wave}')
    g(f's_cbranch_scc1 {sk}')
    g('s_mov_b64 exec, 1')
    g('v_mov_b32 v1, 1')
    g('s_lshl_b32 s47, s41, 8')
    g(f's_add_u32 s47, s47, {cnt}')
    g('v_mov_b32 v31, s47')
    g('buffer_atomic_add v1, v31, s[64:67], 0 offen sc1')
    g('s_mov_b64 exec, -1')
    g.label(sk)
def woA_issue(g):
    srd(g, 56, 8, 9, 448*896)
    g('v_lshrrev_b32 v30, 3, v0')
    g('v_and_b32 v29, 7, v0')
    g('v_and_b32 v1, 2, v30')
    g('v_lshlrev_b32 v1, 1, v1')
    g('v_xor_b32 v29, v29, v1')
    g('s_lshl_b32 s51, s3, 3')
    g('v_add_u32 v30, s51, v30')
    g('v_mul_u32_u24 v30, 896, v30')
    g('v_lshl_add_u32 v30, v29, 4, v30')
    g('s_lshr_b32 s51, s2, 5')
    g('s_lshl_b32 s51, s51, 7')
    g('s_cmp_ge_u32 s2, 224')
    g('s_cselect_b32 s51, 0x40000000, s51')
    g('v_add_u32 v30, s51, v30')
    g('s_lshl_b32 s52, s3, 10')
    sk = newlab('woA')
    for it in range(8):
        if it == 7:
            g('s_cmp_lg_u32 s3, 0')
            g(f's_cbranch_scc1 {sk}')
            g(f's_add_u32 m0, s52, {it*8192}')
            g(f'v_add_u32 v29, {it*64*896}, v30')
            g('buffer_load_dwordx4 v29, s[56:59], 0 offen lds')
        else:
            g(f's_add_u32 m0, s52, {it*8192}')
            g(f's_mov_b32 s51, {it*64*896}')
            g('buffer_load_dwordx4 v30, s[56:59], s51 offen lds')
    g.label(sk)
def proj_group_B(g):
    g('s_cmp_ge_u32 s2, 224')
    g('s_cbranch_scc1 Lpj_idleB')
    proj_setup(g, 1)
    g('s_waitcnt vmcnt(0)')
    g('s_barrier')
    if OPT.get('tailst'): stamp(g, 10, q=True)
    group_wait(g, 4, 1, 1, 30, 16)
    if OPT.get('tailst'): stamp(g, 11, q=True)
    stamp(g, 10)
    o_loads(g)
    g('s_branch Lproj_common')
    g.label('Lpj_idleB')
    g('s_barrier')
    g('s_branch Lend')
def proj_group_A(g):
    g('s_cmp_ge_u32 s2, 224')
    sk = newlab('idleA')
    g(f's_cbranch_scc1 {sk}')
    proj_setup(g, 0)
    g('s_waitcnt vmcnt(0)')
    g('s_barrier')
    if OPT.get('tailst'): stamp(g, 10, q=True)
    group_wait(g, 0, 0, 1, 30, 128)
    if OPT.get('tailst'): stamp(g, 11, q=True)
    stamp(g, 10)
    o_loads(g)
    g('s_branch Lproj_common')
    g.label(sk)
    g('s_barrier')
    g('s_branch Lend')
def proj_common(g):
    g.label('Lproj_common')
    OF = 64; ACC = 16; WF = 48
    def rd(n, buf):
        h, i = divmod(n, 2)
        for ct in range(2):
            for jj in range(2):
                off = (28*h + 16*i + 8*jj) * 128
                g(f'ds_read_b64_tr_b16 {vr(WF+8*buf+4*ct+2*jj,2)}, v{9+ct} offset:{off}')
    rd(0, 0)
    for n in range(16):
        if n + 1 < 16: rd(n + 1, (n + 1) & 1)
        g(f's_waitcnt vmcnt({15-n}) lgkmcnt({4 if n + 1 < 16 else 0})')
        for ct in range(2):
            g(mfma(ACC + 16*ct, WF + 8*(n & 1) + 4*ct, OF + 4*n, None if n == 0 else ACC + 16*ct))
    g('s_nop 15')
    stamp(g, 12, q=True)
    g('s_cmp_eq_u32 s44, 0')
    g('s_cbranch_scc0 Lpj_k1')
    for i in range(4): g(f'ds_write_b128 v12, {vr(ACC+16+4*i,4)} offset:{i*1024}')
    g('s_branch Lpj_k2')
    g.label('Lpj_k1')
    for i in range(4): g(f'ds_write_b128 v12, {vr(ACC+4*i,4)} offset:{i*1024}')
    for r in range(16): g(f'v_mov_b32 v{ACC+r}, v{ACC+16+r}')
    g.label('Lpj_k2')
    g('s_waitcnt lgkmcnt(0)')
    g('s_barrier')
    for i in range(4): g(f'ds_read_b128 {vr(64+4*i,4)}, v13 offset:{i*1024}')
    g('v_and_b32 v4, 31, v0')
    g('s_lshl_b32 s46, s41, 6')
    g('s_lshl_b32 s47, s43, 5')
    g('s_add_u32 s46, s46, s47')
    g('v_add_u32 v4, s46, v4')
    g('v_mul_u32_u24 v4, 1792, v4')
    g('v_lshl_add_u32 v4, v6, 4, v4')
    g('s_mul_i32 s46, s40, 896')
    g('s_lshl_b32 s47, s42, 7')
    g('s_add_u32 s46, s46, s47')
    g('s_lshl_b32 s47, s44, 6')
    g('s_add_u32 s46, s46, s47')
    g('s_waitcnt lgkmcnt(0)')
    for r in range(16): g(f'v_add_f32 v{ACC+r}, v{ACC+r}, v{64+r}')
    P = 48
    for i in range(8): g(f'v_cvt_pk_bf16_f32 v{P+i}, v{ACC+2*i}, v{ACC+2*i+1}')
    g('s_nop 1')
    for k in range(2):
        a = P + 4*k
        g(f'v_permlane32_swap_b32 v{a}, v{a+2}')
        g(f'v_permlane32_swap_b32 v{a+1}, v{a+3}')
    g('s_nop 1')
    for k in range(2):
        g(f'buffer_store_dwordx4 {vr(P+4*k,4)}, v4, s[24:27], s46 offen offset:{32*k}' + ((' ' + OPT['ost']) if OPT.get('ost') else ''))

HEADER = '''; Kernarg layout for this problem (72 bytes, ptrs only, base s[0:1]):
'''
def main(out):
    g = Gen()
    g.raw(f'.globl {NAME}')
    g.raw('.p2align 8')
    g.raw(f'.type {NAME},@function')
    g.label(NAME)
    g('s_cmp_ge_u32 s2, 256')
    g('s_cbranch_scc1 Lexit')
    if OPT.get('tl'):
        for r in range(70, 102): g(f's_mov_b32 s{r}, 0')
    stamp(g, 0); stamp(g, 15, True)
    if OPT.get('tl'): g('s_memtime s[98:99]')
    g('s_load_dwordx16 s[4:19], s[0:1], 0')
    g('s_load_dwordx2 s[20:21], s[0:1], 64')
    g('v_lshrrev_b32 v1, 6, v0')
    g('v_and_b32 v0, 63, v0')
    g('s_nop 0')
    g('v_readfirstlane_b32 s3, v1')
    if OPT.get('swapw'): g('s_xor_b32 s3, s3, 4')
    prologue(g)
    qkv_compute(g)
    qkv_loader(g)
    phase_attn(g)
    g.label('Lend')
    if OPT['stamps'] or OPT.get('tl'): g('s_waitcnt vmcnt(0)')
    stamp(g, 13)
    if OPT.get('tl'):
        sk = newlab('tl')
        g('s_cmp_lg_u32 s3, 0')
        g(f's_cbranch_scc1 {sk}')
        g('s_memtime s[100:101]')
        g('s_waitcnt lgkmcnt(0)')
        srd(g, 56, 18, 19, 256)
        g('s_mov_b64 exec, 1')
        g('s_sub_u32 s100, s84, s80')
        g('s_sub_u32 s99, s86, s82')
        g('v_mov_b32 v20, s100')
        g('v_mov_b32 v21, s99')
        g('v_mov_b32 v3, 0')
        g('buffer_atomic_umax v20, v3, s[56:59], 0 offen offset:52')
        g('buffer_atomic_umax v21, v3, s[56:59], 0 offen offset:56')
        g('s_not_b32 s68, s70')
        g('v_mov_b32 v1, s68')
        g('v_mov_b32 v3, 0')
        g('buffer_atomic_umax v1, v3, s[56:59], 0 offen offset:4')
        for k, i in enumerate((0, 2, 3, 4, 6, 8, 9, 10, 11, 12, 13)):
            g(f'v_mov_b32 v{4+k}, s{70+2*i}')
            g(f'buffer_atomic_umax v{4+k}, v3, s[56:59], 0 offen offset:{8+4*k}')
        g('s_waitcnt vmcnt(0)')
        g.label(sk)
    if OPT['stamps']: g('s_memrealtime s[72:73]')
    stamp_dump(g)
    g.label('Lexit')
    g('s_endpgm')
    txt = HEADER + f'; @launch grid=(256,1,1) block=(512,1,1) lds={LDS_BYTES}\n'
    txt += '.amdgcn_target "amdgcn-amd-amdhsa--gfx950"\n.text\n' + g.text()
    txt += f'''.section .rodata,"a"
.p2align 6
.amdhsa_kernel {NAME}
  .amdhsa_next_free_vgpr 232
  .amdhsa_next_free_sgpr 102
  .amdhsa_accum_offset 232
  .amdhsa_group_segment_fixed_size 0
  .amdhsa_kernarg_size 72
  .amdhsa_user_sgpr_count 2
  .amdhsa_user_sgpr_kernarg_segment_ptr 1
  .amdhsa_system_sgpr_workgroup_id_x 1
.end_amdhsa_kernel
'''
    open(out, 'w').write(txt)

if __name__ == '__main__':
    out = sys.argv[1] if len(sys.argv) > 1 else 'concat_heads__sliding_block__softmax_full_mha__prompt.s'
    for a in sys.argv[2:]:
        if '=' in a:
            k, v = a.split('=', 1)
            OPT[k] = v if k in ('st', 'ld', 'prio', 'ost', 'inl') else (int(v) if v.isdigit() else v)
        else:
            OPT[a] = True
    main(out)
```

```python
import sys, math, struct

def f32bits(x): return struct.unpack('<I', struct.pack('<f', x))[0]

class Gen:
    def __init__(self): self.lines = []
    def __call__(self, s):
        for l in s.split('\n'):
            l = l.strip()
            if l: self.lines.append('  ' + l)
    def label(self, s): self.lines.append(s + ':')
    def raw(self, s): self.lines.append(s)
    def text(self): return '\n'.join(self.lines) + '\n'

def vr(base, n): return f'v[{base}:{base+n-1}]'
def mfma(d, a, b, c):
    cs = '0' if c is None else vr(c, 16)
    return f'v_mfma_f32_32x32x16_bf16 {vr(d,16)}, {vr(a,4)}, {vr(b,4)}, {cs}'

OPT = dict(stamps=False, st='sc1', ld='', spin=200000, pf=5)
NAME = 'concat_heads__sliding_block__softmax_full_mha__prompt_kernel'
STAMP_BASE = 0x2000000
def stamp(g, i, real=False, q=False):
    if OPT.get('tl'):
        if i in (0, 2, 3, 4, 6, 8, 9, 10, 11, 12, 13): g(f's_memrealtime s[{70+2*i}:{71+2*i}]')
        if i == 6: g('s_memtime s[80:81]')
        if i == 8: g('s_memtime s[84:85]')
        return
    if not OPT['stamps']: return
    import inspect
    if OPT.get('qkvst') and 5 <= i <= 13:
        caller = inspect.stack()[1].function
        if caller != 'qkv_compute': return
    if (OPT.get('attst') or OPT.get('probe') or OPT.get('tailst')) and 2 <= i <= 12 and not q: return
    op = 's_memrealtime' if real else 's_memtime'
    g(f'{op} s[{70+2*i}:{71+2*i}]')
def stamp_dump(g):
    if not OPT['stamps']: return
    g('s_waitcnt lgkmcnt(0) vmcnt(0)')
    g(f's_add_u32 s64, s20, {STAMP_BASE}')
    g(f's_addc_u32 s65, s21, 0')
    g('s_mov_b32 s66, 0x100000')
    g('s_mov_b32 s67, 0x20000')
    g('s_mov_b64 exec, -1')
    g('v_mov_b32 v1, 0')
    for i in range(16):
        g(f'v_writelane_b32 v1, s{70+2*i}, {i}')
    g('s_lshl_b32 s68, s2, 3')
    g('s_add_u32 s68, s68, s3')
    g('s_lshl_b32 s68, s68, 6')
    g('v_lshlrev_b32 v3, 2, v0')
    g('v_cmp_gt_u32 vcc, 16, v0')
    g('s_and_saveexec_b64 s[62:63], vcc')
    g('buffer_store_dword v1, v3, s[64:67], s68 offen')
    g('s_waitcnt vmcnt(0)')

WS_Q = 0
WS_KV = 0x400000
WS_O = 0xC00000
WS_CNT = 0x1000000
CNT_A, CNT_B, CNT_OA, CNT_OB = 0, 16 * 256, 32 * 256, 48 * 256
QSCALE = (28 ** -0.5) * math.log2(math.e)
NEGBIG = 0xf149f2ca
POSBIG = 0x7149f2ca
LDS_BYTES = 163840

def srd(g, dst, lo, hi, nbytes, add=0):
    if add:
        g(f's_add_u32 s{dst}, s{lo}, {add}')
        g(f's_addc_u32 s{dst+1}, s{hi}, 0')
    else:
        g(f's_mov_b32 s{dst}, s{lo}')
        g(f's_mov_b32 s{dst+1}, s{hi}')
    g(f's_mov_b32 s{dst+2}, {nbytes}')
    g(f's_mov_b32 s{dst+3}, 0x20000')
def ST(): return (' ' + OPT['st']) if OPT['st'] else ''
def INL(): return (' ' + OPT['inl']) if OPT.get('inl') else ''
def LD(): return (' ' + OPT['ld']) if OPT['ld'] else ''
lab = [0]
def newlab(p):
    lab[0] += 1
    return f'L{p}_{lab[0]}'

def spin_until(g, vdst, voff, target, tmp=205):
    l0 = newlab('poll'); l1 = newlab('pdone')
    g(f's_mov_b32 s68, {OPT["spin"]}')
    g.label(l0)
    g(f'buffer_load_dword v{vdst}, v{voff}, s[64:67], 0 offen sc1')
    g('s_waitcnt vmcnt(0)')
    g(f'v_cmp_ne_u32 vcc, {target}, v{vdst}')
    g('s_nop 4')
    g(f's_cbranch_vccz {l1}')
    if OPT.get('sleep', 1): g(f's_sleep {OPT.get("sleep", 1)}')
    g('s_sub_u32 s68, s68, 1')
    g('s_cmp_lg_u32 s68, 0')
    g(f's_cbranch_scc1 {l0}')
    g.label(l1)
LFLAG = 65536 - 64
def group_wait(g, leader, word, vdst, voff, target):
    lf = newlab('follow'); ld = newlab('gdone'); lp = newlab('lspin')
    g(f'v_mov_b32 v204, {LFLAG + 4*word}')
    g(f's_cmp_lg_u32 s3, {leader}')
    g(f's_cbranch_scc1 {lf}')
    spin_until(g, vdst, voff, target)
    g('v_mov_b32 v205, 1')
    g('ds_write_b32 v204, v205')
    g('s_waitcnt lgkmcnt(0)')
    g(f's_branch {ld}')
    g.label(lf)
    g(f's_mov_b32 s68, {OPT["spin"] * 16}')
    g.label(lp)
    g('ds_read_b32 v205, v204')
    g('s_waitcnt lgkmcnt(0)')
    g('v_readfirstlane_b32 s47, v205')
    g('s_cmp_lg_u32 s47, 0')
    g(f's_cbranch_scc1 {ld}')
    g('s_sleep 1')
    g('s_sub_u32 s68, s68, 1')
    g('s_cmp_lg_u32 s68, 0')
    g(f's_cbranch_scc1 {lp}')
    g.label(ld)

WROW = 176
WSTG = 64 * WROW
NCH = 14
def prologue(g):
    g('s_and_b32 s40, s2, 7')
    g('s_lshr_b32 s41, s2, 3')
    g('s_lshr_b32 s22, s40, 1')
    g('s_lshl_b32 s22, s22, 2')
    g('s_and_b32 s42, s41, 3')
    g('s_add_u32 s22, s22, s42')
    g('s_and_b32 s23, s40, 1')
    g('s_lshl_b32 s23, s23, 3')
    g('s_lshr_b32 s42, s41, 2')
    g('s_add_u32 s23, s23, s42')
    g('s_add_u32 s69, s23, 1')
    g('s_and_b32 s69, s69, 7')
    g('s_and_b32 s42, s23, 8')
    g('s_or_b32 s69, s69, s42')
    g('s_cmp_lt_u32 s3, 4')
    g('s_cbranch_scc1 Lcompute')

def kvb_srd(g):
    g('s_and_b32 s40, s2, 7')
    g('s_bfe_u32 s41, s2, 0x10003')
    g('s_lshl_b32 s40, s40, 1')
    g('s_add_u32 s40, s40, s41')
    g('s_lshl_b32 s47, s40, 18')
    g(f's_add_u32 s47, s47, {WS_KV + 0x400000}')
    g('s_add_u32 s32, s20, s47')
    g('s_addc_u32 s33, s21, 0')
    g('s_mov_b32 s34, 0x40000')
    g('s_mov_b32 s35, 0x20000')
    g('s_lshl_b32 s55, s3, 12')
def stage_tile(g, st):
    g(f's_add_u32 s54, s55, {st*32768}')
    g(f's_add_u32 m0, s55, {(st&3)*32768}')
    g('s_nop 0')
    for i in range(4):
        g(f'buffer_load_dwordx4 v2, s[32:35], s54 offen offset:{i*1024}{LD()} lds')
def init_dma_compute(g):
    kvb_srd(g)
    stage_tile(g, 0)
    stage_tile(g, 1)

def pf_lines(g, br, part, vt, vd):
    if part == 'x':
        lo, hi = (10, 11) if br else (4, 5)
        srd(g, 24, lo, hi, 1835008)
        g('s_bfe_u32 s46, s2, 0x20001')
        g('s_mul_i32 s46, s46, 458752')
        g('s_lshr_b32 s47, s2, 3')
        g('s_mul_i32 s47, s47, 14336')
        g('s_add_u32 s46, s46, s47')
        g(f'v_lshlrev_b32 v{vt}, 7, v0')
        g(f'v_add_u32 v{vt}, s46, v{vt}')
        g(f'buffer_load_dword v{vd}, v{vt}, s[24:27], 0 offen')
        g(f'v_add_u32 v{vt}, 8192, v{vt}')
        g('s_mov_b64 exec, 0x0000ffffffffffff') if False else None
        g('v_cmp_gt_u32 vcc, 48, v0')
        g('s_and_saveexec_b64 s[44:45], vcc')
        g(f'buffer_load_dword v{vd+1}, v{vt}, s[24:27], 0 offen')
        g('s_mov_b64 exec, s[44:45]')
    else:
        lo, hi = (12, 13) if br else (6, 7)
        srd(g, 24, lo, hi, 1204224)
        g('s_and_b32 s46, s2, 1')
        g('s_mul_i32 s46, s46, 1280')
        g('s_lshr_b32 s47, s2, 3')
        g('s_mul_i32 s47, s47, 37632')
        g('s_add_u32 s46, s46, s47')
        for k in range(3):
            g(f'v_add_u32 v{vt}, {64*k}, v0')
            g(f'v_mul_u32_u24 v{vt+1}, 5958, v{vt}')
            g(f'v_lshrrev_b32 v{vt+1}, 16, v{vt+1}')
            g(f'v_mul_u32_u24 v{vt+2}, 11, v{vt+1}')
            g(f'v_sub_u32 v{vt+2}, v{vt}, v{vt+2}')
            g(f'v_mul_u32_u24 v{vt+1}, 2688, v{vt+1}')
            g(f'v_lshl_add_u32 v{vt+1}, v{vt+2}, 7, v{vt+1}')
            g(f'v_add_u32 v{vt+1}, s46, v{vt+1}')
            if k == 2:
                g('v_cmp_gt_u32 vcc, 26, v0')
                g('s_and_saveexec_b64 s[44:45], vcc')
            g(f'buffer_load_dword v{vd+k}, v{vt+1}, s[24:27], 0 offen')
            if k == 2: g('s_mov_b64 exec, s[44:45]')

def PREFETCH_A(g):
    l1 = newlab('pf'); l2 = newlab('pf'); ld = newlab('pf')
    g('s_cmp_ge_u32 s3, 2')
    g(f's_cbranch_scc1 {l1}')
    srd(g, 24, 4, 5, 1835008)
    g('s_mul_i32 s46, s2, 7168')
    g('s_lshl_b32 s47, s3, 12')
    g('s_add_u32 s46, s46, s47')
    g('v_add_u32 v20, s46, v2')
    for i in range(4):
        g(f'buffer_load_dwordx4 v[{144+4*i}:{147+4*i}], v20, s[24:27], 0 offen offset:{i*1024}')
    g(f's_branch {ld}')
    g.label(l1)
    g('s_cmp_eq_u32 s3, 2')
    g(f's_cbranch_scc0 {l2}')
    srd(g, 24, 6, 7, 1204224)
    g('s_mul_i32 s46, s2, 4704')
    g('v_add_u32 v20, s46, v2')
    g('v_add_u32 v21, 4096, v20')
    for i in range(5):
        g(f'buffer_load_dwordx4 v[{144+4*i}:{147+4*i}], v{20 if i < 4 else 21}, s[24:27], 0 offen offset:{(i%4)*1024}')
    g(f's_branch {ld}')
    g.label(l2)
    g('s_mul_i32 s46, s2, 1568')
    g('v_add_u32 v20, s46, v2')
    srd(g, 24, 8, 9, 448*896)
    for i in range(2):
        g(f'buffer_load_dwordx4 v[{144+4*i}:{147+4*i}], v20, s[24:27], 0 offen offset:{i*1024}')
    srd(g, 28, 14, 15, 448*896)
    for i in range(2):
        g(f'buffer_load_dwordx4 v[{152+4*i}:{155+4*i}], v20, s[28:31], 0 offen offset:{i*1024}')
    g.label(ld)

def qkv_compute(g):
    g.label('Lcompute')
    g('v_and_b32 v4, 31, v0')
    g('s_lshl_b32 s44, s3, 5')
    g('v_add_u32 v4, s44, v4')
    g('v_lshlrev_b32 v4, 7, v4')
    g('v_bfe_u32 v5, v0, 1, 3')
    g('v_lshrrev_b32 v6, 5, v0')
    for ks in range(4):
        g(f'v_add_u32 v7, {2*ks}, v6')
        g('v_xor_b32 v7, v7, v5')
        g(f'v_lshl_add_u32 v{12+ks}, v7, 4, v4')
    g('v_bfe_u32 v4, v0, 2, 2')
    g('v_and_b32 v5, 3, v0')
    g('v_bfe_u32 v7, v0, 4, 1')
    g('v_lshlrev_b32 v7, 5, v7')
    g('v_lshl_add_u32 v7, v5, 3, v7')
    g('v_lshlrev_b32 v4, 1, v4')
    g('v_add_u32 v4, v4, v6')
    g(f'v_mul_u32_u24 v4, {2*WROW}, v4')
    g('v_add_u32 v4, v4, v7')
    g('v_add_u32 v16, 65536, v4')
    g('v_lshlrev_b32 v2, 4, v0')
    g('s_waitcnt lgkmcnt(0)')
    if OPT.get('wsoff'):
        g(f's_add_u32 s20, s20, {OPT["wsoff"] << 20}')
        g('s_addc_u32 s21, s21, 0')
    stamp(g, 1)
    srd(g, 32, 20, 21, 0x1000000)
    srd(g, 64, 20, 21, 0x4000, WS_CNT)
    g('s_or_b32 s44, s2, s3')
    g('s_cmp_lg_u32 s44, 0')
    g('s_cbranch_scc1 Lnoinit')
    g('v_lshlrev_b32 v20, 8, v0')
    g('v_mov_b32 v21, 0')
    g('buffer_store_dword v21, v20, s[64:67], 0 offen sc1')
    g('s_waitcnt vmcnt(0)')
    srd(g, 36, 18, 19, 256)
    g('s_mov_b64 exec, 1')
    g('v_mov_b32 v21, 1')
    g('v_mov_b32 v20, 0')
    g('buffer_store_dword v21, v20, s[36:39], 0 offen sc1')
    g('s_mov_b64 exec, -1')
    g.label('Lnoinit')
    if OPT.get('codepf'):
        g('s_getpc_b64 s[24:25]')
        g.label('Lpc_here')
        g(f's_sub_u32 s24, s24, Lpc_here-{NAME}')
        g('s_subb_u32 s25, s25, 0')
        g(f's_mov_b32 s26, Lexit-{NAME}')
        g('s_mov_b32 s27, 0x20000')
        g('s_lshr_b32 s46, s2, 3')
        g('s_lshl_b32 s46, s46, 2')
        g('s_add_u32 s46, s46, s3')
        g('s_lshl_b32 s46, s46, 10')
        g('v_add_u32 v20, s46, v2')
        g('buffer_load_dwordx4 v[144:147], v20, s[24:27], 0 offen')
    if OPT.get('probe'):
        g('s_mul_i32 s46, s2, 7168')
        g('v_add_u32 v20, s46, v2')
        stamp(g, 5, q=True)
        srd(g, 24, 10, 11, 1835008)
        g('buffer_load_dword v160, v20, s[24:27], 0 offen'); g('s_waitcnt vmcnt(0)'); stamp(g, 6, q=True)
        srd(g, 24, 12, 13, 1204224)
        g('s_mul_i32 s46, s2, 4704'); g('v_add_u32 v21, s46, v2')
        g('buffer_load_dword v160, v21, s[24:27], 0 offen'); g('s_waitcnt vmcnt(0)'); stamp(g, 7, q=True)
        srd(g, 24, 4, 5, 1835008)
        g('buffer_load_dword v160, v20, s[24:27], 0 offen'); g('s_waitcnt vmcnt(0)'); stamp(g, 8, q=True)
        g('buffer_load_dword v160, v20, s[24:27], 0 offen offset:2048'); g('s_waitcnt vmcnt(0)'); stamp(g, 9, q=True)
        srd(g, 24, 6, 7, 1204224)
        g('buffer_load_dword v160, v21, s[24:27], 0 offen'); g('s_waitcnt vmcnt(0)'); stamp(g, 10, q=True)
        g('buffer_load_dword v160, v21, s[24:27], 0 offen offset:2048'); g('s_waitcnt vmcnt(0)'); stamp(g, 11, q=True)
    if OPT.get('pf', 1) in (2, 4):
        l1 = newlab('pfb'); ld = newlab('pfb')
        g('s_cmp_ge_u32 s3, 2')
        g(f's_cbranch_scc1 {l1}')
        srd(g, 24, 10, 11, 1835008)
        g('s_mul_i32 s46, s2, 7168')
        g('s_lshl_b32 s47, s3, 12')
        g('s_add_u32 s46, s46, s47')
        g('v_add_u32 v20, s46, v2')
        for i in range(4):
            g(f'buffer_load_dwordx4 v[{160+4*i}:{163+4*i}], v20, s[24:27], 0 offen offset:{i*1024}')
        g(f's_branch {ld}')
        g.label(l1)
        srd(g, 24, 12, 13, 1204224)
        g('s_mul_i32 s46, s2, 4704')
        g('s_and_b32 s47, s3, 1')
        g('s_mul_i32 s47, s47, 3072')
        g('s_add_u32 s46, s46, s47')
        g('v_add_u32 v20, s46, v2')
        for i in range(3):
            g(f'buffer_load_dwordx4 v[{160+4*i}:{163+4*i}], v20, s[24:27], 0 offen offset:{i*1024}')
        g.label(ld)
    if OPT.get('pf', 1) == 4:
        PREFETCH_A(g)
    if OPT.get('pfw'):
        g('s_waitcnt vmcnt(%d)' % (0 if OPT.get('pf') != 4 else 4))
        g('s_barrier')
    if OPT.get('pf', 1) == 3:
        l1 = newlab('pf3'); l2 = newlab('pf3'); ld = newlab('pf3')
        g('s_cmp_eq_u32 s3, 0')
        g(f's_cbranch_scc0 {l1}')
        pf_lines(g, 1, 'x', 20, 160)
        g(f's_branch {ld}')
        g.label(l1)
        g('s_cmp_eq_u32 s3, 1')
        g(f's_cbranch_scc0 {ld}')
        pf_lines(g, 1, 'w', 20, 160)
        g.label(ld)
    if OPT.get('tw'):
        g('s_mov_b64 exec, 1')
        g('v_mov_b32 v20, 0')
        g('v_mov_b32 v21, 0')
        for br_, c0r in ((1, 's23'), (0, 's69')):
            g(f's_mul_i32 s46, {c0r}, 3')
            for t in range(3):
                g(f's_add_u32 s47, s46, {t}')
                g('s_and_b32 s44, s47, 15')
                g('s_lshl_b32 s44, s44, 6')
                g('s_lshl_b32 s45, s22, 2')
                g('s_add_u32 s44, s44, s45')
                g('s_add_u32 s44, s44, s3')
                if br_: g('s_add_u32 s44, s44, 1024')
                g('s_cmp_lt_u32 s47, 16')
                g('s_cselect_b32 s45, 11, 12')
                g(f's_cselect_b32 s43, {WS_Q}, {WS_KV}')
                g('s_lshl_b32 s44, s44, s45')
                g('s_add_u32 s44, s44, s43')
                g('s_cmp_ge_u32 s47, 32')
                g('s_cselect_b32 s45, 2048, 0')
                g('s_add_u32 s44, s44, s45')
                g('buffer_store_dword v21, v20, s[32:35], s44 offen sc1')
        g('s_and_b32 s44, s2, 7')
        g('s_bfe_u32 s45, s2, 0x10003')
        g('s_lshl_b32 s44, s44, 1')
        g('s_add_u32 s44, s44, s45')
        g('s_lshr_b32 s45, s2, 4')
        g('s_lshl_b32 s45, s45, 2')
        g('s_add_u32 s45, s45, s3')
        g('s_lshl_b32 s45, s45, 4')
        g('s_add_u32 s45, s45, s44')
        g('s_lshl_b32 s45, s45, 11')
        g(f's_add_u32 s45, s45, {WS_O}')
        g('buffer_store_dword v21, v20, s[32:35], s45 offen sc1')
        g('s_add_u32 s45, s45, 0x200000')
        g('buffer_store_dword v21, v20, s[32:35], s45 offen sc1')
        g('s_mov_b64 exec, -1')
    srd(g, 36, 18, 19, 256)
    g('v_mov_b32 v30, 0')
    g('buffer_load_dword v31, v30, s[36:39], 0 offen sc1')
    def prefetch():
        if not OPT.get('pf', 1) or OPT.get('pf') == 4: return
        if OPT.get('pf') == 5:
            ld = newlab('pf5')
            g('s_cmp_ge_u32 s3, 2')
            g(f's_cbranch_scc1 {ld}')
            g('s_cmp_eq_u32 s3, 0')
            g('s_cselect_b32 s24, s8, s14')
            g('s_cselect_b32 s25, s9, s15')
            g(f's_mov_b32 s26, {448*896}')
            g('s_mov_b32 s27, 0x20000')
            g('s_mul_i32 s46, s2, 1568')
            g('v_add_u32 v20, s46, v2')
            for i in range(2):
                g(f'buffer_load_dwordx4 v[{168+4*i}:{171+4*i}], v20, s[24:27], 0 offen offset:{i*1024}')
            g.label(ld)
            return
        if OPT.get('pf', 1) == 3:
            l1 = newlab('pf3'); l2 = newlab('pf3'); ld = newlab('pf3')
            g('s_cmp_eq_u32 s3, 2')
            g(f's_cbranch_scc0 {l1}')
            pf_lines(g, 0, 'x', 20, 164)
            g(f's_branch {ld}')
            g.label(l1)
            g('s_cmp_eq_u32 s3, 3')
            g(f's_cbranch_scc0 {l2}')
            pf_lines(g, 0, 'w', 20, 164)
            g(f's_branch {ld}')
            g.label(l2)
            g('s_cmp_eq_u32 s3, 0')
            g('s_cselect_b32 s24, s8, s14')
            g('s_cselect_b32 s25, s9, s15')
            g(f's_mov_b32 s26, {448*896}')
            g('s_mov_b32 s27, 0x20000')
            g('s_mul_i32 s46, s2, 1568')
            g('v_add_u32 v20, s46, v2')
            for i in range(2):
                g(f'buffer_load_dwordx4 v[{168+4*i}:{171+4*i}], v20, s[24:27], 0 offen offset:{i*1024}')
            g.label(ld)
            return
        l1 = newlab('pf'); l2 = newlab('pf'); ld = newlab('pf')
        g('s_cmp_ge_u32 s3, 2')
        g(f's_cbranch_scc1 {l1}')
        srd(g, 24, 4, 5, 1835008)
        g('s_mul_i32 s46, s2, 7168')
        g('s_lshl_b32 s47, s3, 12')
        g('s_add_u32 s46, s46, s47')
        g('v_add_u32 v20, s46, v2')
        for i in range(4):
            g(f'buffer_load_dwordx4 v[{144+4*i}:{147+4*i}], v20, s[24:27], 0 offen offset:{i*1024}')
        g(f's_branch {ld}')
        g.label(l1)
        g('s_cmp_eq_u32 s3, 2')
        g(f's_cbranch_scc0 {l2}')
        srd(g, 24, 6, 7, 1204224)
        g('s_mul_i32 s46, s2, 4704')
        g('v_add_u32 v20, s46, v2')
        g('v_add_u32 v21, 4096, v20')
        for i in range(5):
            g(f'buffer_load_dwordx4 v[{144+4*i}:{147+4*i}], v{20 if i < 4 else 21}, s[24:27], 0 offen offset:{(i%4)*1024}')
        g(f's_branch {ld}')
        g.label(l2)
        g('s_mul_i32 s46, s2, 1568')
        g('v_add_u32 v20, s46, v2')
        srd(g, 24, 8, 9, 448*896)
        for i in range(2):
            g(f'buffer_load_dwordx4 v[{144+4*i}:{147+4*i}], v20, s[24:27], 0 offen offset:{i*1024}')
        srd(g, 28, 14, 15, 448*896)
        for i in range(2):
            g(f'buffer_load_dwordx4 v[{152+4*i}:{155+4*i}], v20, s[28:31], 0 offen offset:{i*1024}')
        g.label(ld)
    XF = 80; WF = 88
    ACCS = {1: 32, 0: 144}
    PS = {1: 112, 0: 208}
    g('v_and_b32 v18, 31, v0')
    g('v_cmp_eq_u32 vcc, 28, v18')
    g('v_mov_b32 v19, 0x3f803f80')
    g('s_nop 0')
    g('v_cndmask_b32_e64 v18, 0, v19, vcc')
    g('s_mov_b32 s60, 0')
    g('s_mov_b32 s61, -1')
    g('s_mov_b32 s58, 0xf0000000')
    g('s_mov_b32 s59, 0xf0000000')
    def reads(n, buf, part):
        kc, ks = divmod(n, 4)
        st = kc % 4
        if part == 0:
            g(f'ds_read_b128 {vr(XF+4*buf,4)}, v{12+ks} offset:{st*16384}')
        for jj in range(2):
            off = st * WSTG + (ks*16 + jj) * WROW + part * 56
            g(f'ds_read_b64_tr_b16 {vr(WF+12*buf+4*part+2*jj,2)}, v16 offset:{off}')
    def mfma1(br, buf, t, first, types2):
        types = types2[br]
        x = XF + 4*buf; wf = WF + 12*buf + 4*t; d = ACCS[br] + 16*t
        c = None if first else d
        g(mfma(d, wf, x, c) if types[t] == 'QK' else mfma(d, x, wf, c))
    def epilogue_list(br, types2):
        types = types2[br]
        c0 = 's52' if br else 's63'
        L = []
        A = L.append
        ACC = ACCS[br]; P = PS[br]
        A('s_lshl_b32 s54, s22, 2')
        A('s_add_u32 s54, s54, s3')
        if br: A('s_add_u32 s54, s54, 1024')
        for t in range(3):
            a = ACC + 16*t; p = P + 8*t
            so = (48, 49, 53)[t]
            A(f's_add_u32 s62, {c0}, {t}')
            A('s_and_b32 s56, s62, 15')
            A('s_lshl_b32 s56, s56, 6')
            A('s_add_u32 s56, s56, s54')
            if types[t] == 'QK':
                A('s_cmp_lt_u32 s62, 16\n' + f's_cselect_b32 s57, {f32bits(QSCALE):#x}, 1.0\n' + 's_cselect_b32 s45, 0, 0x3f80\n' +
                  's_cselect_b32 s46, 11, 12\n' + f's_cselect_b32 s47, {WS_Q}, {WS_KV}')
                A('s_lshl_b32 s56, s56, s46')
                A(f's_add_u32 s{so}, s56, s47')
                A('v_mov_b32 v19, s45')
                for r in range(16): A(f'v_mul_f32 v{a+r}, s57, v{a+r}')
                for i in range(8): A(f'v_cvt_pk_bf16_f32 v{p+i}, v{a+2*i}, v{a+2*i+1}')
                A(f'v_cndmask_b32_e64 v{p+6}, v{p+6}, v19, s[60:61]')
                A(f'v_cndmask_b32_e64 v{p+7}, v{p+7}, 0, s[60:61]')
            else:
                A('s_lshl_b32 s56, s56, 12')
                A(f's_add_u32 s{so}, s56, {WS_KV + 2048}')
                for i in range(8): A(f'v_cvt_pk_bf16_f32 v{p+i}, v{a+2*i}, v{a+2*i+1}')
                for i in range(8): A(f'v_cndmask_b32_e64 v{p+i}, v{p+i}, v18, s[58:59]')
            if br:
                A('s_nop 1\n' + f'buffer_store_dwordx4 {vr(p,4)}, v2, s[32:35], s{so} offen{ST()}')
                A(f'buffer_store_dwordx4 {vr(p+4,4)}, v2, s[32:35], s{so} offen offset:1024{ST()}')
        return L
    g('s_mul_i32 s52, s23, 3')
    g('s_mul_i32 s63, s69, 3')
    T0, T1, T2 = ('QK','QK','QK'), ('QK','QK','V'), ('V','V','V')
    variants = [{1: T0, 0: T0}, {1: T0, 0: T1}, {1: T1, 0: T2}, {1: T2, 0: T2}, {1: T2, 0: T0}]
    g('s_cmp_eq_u32 s23, 9')
    g('s_cbranch_scc1 Lqkv_v1')
    g('s_cmp_eq_u32 s23, 10')
    g('s_cbranch_scc1 Lqkv_v2')
    g('s_cmp_eq_u32 s23, 15')
    g('s_cbranch_scc1 Lqkv_v4')
    g('s_cmp_gt_u32 s23, 10')
    g('s_cbranch_scc1 Lqkv_v3')
    NS = NCH * 4
    SIG_AT = OPT.get('sig_at', 36)
    for vi, types in enumerate(variants):
        if vi: g.label(f'Lqkv_v{vi}')
        g('s_barrier')
        if vi == 0: stamp(g, 2)
        for part in range(3): reads(0, 0, part)
        prefetch()
        epi = []
        EP0, EPN = OPT.get('ep0', 28), OPT.get('epn', 2)
        def fill(k):
            for _ in range(k):
                if epi: g(epi.pop(0))
        for n in range(NS):
            br = 1 if n < 28 else 0
            boundary = (n + 1) % 4 == 0 and n + 1 < NS
            nxt = n + 1 < NS
            buf = n & 1
            first = n % 28 == 0
            if n == EP0:
                epi = ['s_nop 7'] + epilogue_list(1, types)
                per = -(-len(epi) // (EPN * 3))
            inter = EP0 <= n < EP0 + EPN
            if boundary:
                if OPT.get('qkvst') and vi == 0 and n + 1 == SIG_AT: stamp(g, 11)
                g('s_waitcnt vmcnt(0) lgkmcnt(0)' if n + 1 in (SIG_AT, 24) else 's_waitcnt lgkmcnt(0)')
                if OPT.get('qkvst') and vi == 0 and n + 1 == SIG_AT: stamp(g, 12)
                g('s_barrier')
                if OPT.get('qkvst') and vi == 0:
                    c1 = (n + 1) // 4
                    m = {2: 5, 4: 6, 6: 7, 8: 8, 10: 9, 11: 10, 12: 13}
                    if c1 in m: stamp(g, m[c1])
                if n + 1 == SIG_AT:
                    sk = newlab('sigB'); ok = newlab('inited'); lp = newlab('initspin')
                    g('s_cmp_lg_u32 s3, 0')
                    g(f's_cbranch_scc1 {sk}')
                    g('v_readfirstlane_b32 s47, v31')
                    g('s_cmp_lg_u32 s47, 0')
                    g(f's_cbranch_scc1 {ok}')
                    g(f's_mov_b32 s68, {OPT["spin"]}')
                    g.label(lp)
                    g('buffer_load_dword v31, v30, s[36:39], 0 offen sc1')
                    g('s_waitcnt vmcnt(0)')
                    g('v_readfirstlane_b32 s47, v31')
                    g('s_cmp_lg_u32 s47, 0')
                    g(f's_cbranch_scc1 {ok}')
                    g('s_sub_u32 s68, s68, 1')
                    g('s_cmp_lg_u32 s68, 0')
                    g(f's_cbranch_scc1 {lp}')
                    g.label(ok)
                    g('s_mov_b64 exec, 1')
                    g('v_mov_b32 v1, 1')
                    g('s_lshl_b32 s47, s23, 8')
                    g(f's_add_u32 s47, s47, {CNT_B}')
                    g('v_mov_b32 v29, s47')
                    g('buffer_atomic_add v1, v29, s[64:67], 0 offen sc1')
                    g('s_mov_b64 exec, -1')
                    g.label(sk)
            else:
                g('s_waitcnt lgkmcnt(4)')
            mfma1(br, buf, 0, first, types)
            if nxt: reads(n + 1, buf ^ 1, 0)
            if inter: fill(per)
            if not boundary: g(f's_waitcnt lgkmcnt({5 if nxt else 2})')
            mfma1(br, buf, 1, first, types)
            if nxt: reads(n + 1, buf ^ 1, 1)
            if inter: fill(per)
            if not boundary: g(f's_waitcnt lgkmcnt({5 if nxt else 0})')
            mfma1(br, buf, 2, first, types)
            if nxt: reads(n + 1, buf ^ 1, 2)
            if inter: fill(per)
            if n == 27 and vi == 0: stamp(g, 3)
            if OPT.get('sbar', 0) and n == EP0 + EPN - 1:
                g('s_barrier')
        assert not epi
        if vi == 0: stamp(g, 14)
        g('s_barrier')
        if vi == 0: stamp(g, 4)
        init_dma_compute(g)
        for x in epilogue_list(0, types): g(x)
        if vi < 4: g('s_branch Lqkv_fin')
    g.label('Lqkv_fin')
    g('s_branch Lattn_setup')

def qkv_loader(g):
    g.label('Lloader')
    g('s_sub_u32 s43, s3, 4')
    g('s_lshl_b32 s44, s22, 7')
    g('s_lshl_b32 s45, s43, 5')
    g('s_add_u32 s44, s44, s45')
    g('v_lshrrev_b32 v10, 3, v0')
    g('v_add_u32 v10, s44, v10')
    g('v_mul_u32_u24 v10, 896, v10')
    g('v_lshrrev_b32 v11, 4, v0')
    g('v_and_b32 v12, 7, v0')
    g('v_xor_b32 v12, v12, v11')
    g('v_lshl_add_u32 v2, v12, 4, v10')
    g('v_xor_b32 v12, 4, v12')
    g('v_lshl_add_u32 v3, v12, 4, v10')
    g('v_add_u32 v3, 7168, v3')
    g('v_add_u32 v4, 14336, v2')
    g('v_add_u32 v5, 14336, v3')
    g('s_lshl_b32 s46, s43, 12')
    g('s_lshl_b32 s47, s43, 10')
    g('s_add_u32 s47, s47, 65536')
    g('s_lshl_b32 s44, s43, 6')
    g('s_mul_i32 s50, s23, 168')
    g('s_mul_i32 s51, s69, 168')
    def wcalc(n):
        g('v_add_u32 v10, s44, v0')
        if n: g(f'v_add_u32 v10, {256*n}, v10')
        g('v_mul_u32_u24 v11, 5958, v10')
        g('v_lshrrev_b32 v11, 16, v11')
        g('v_mul_u32_u24 v12, 11, v11')
        g('v_sub_u32 v12, v10, v12')
        g('v_and_b32 v13, 48, v11')
        g('v_and_b32 v14, 3, v11')
        g('v_lshl_add_u32 v13, v14, 2, v13')
        g('v_bfe_u32 v14, v11, 2, 2')
        g('v_add_u32 v13, v13, v14')
        g('v_mul_u32_u24 v13, 2688, v13')
        g(f'v_lshl_add_u32 v{6+n}, v12, 4, v13')
    wcalc(0)
    g('s_waitcnt lgkmcnt(0)')
    if OPT.get('wsoff'):
        g(f's_add_u32 s20, s20, {OPT["wsoff"] << 20}')
        g('s_addc_u32 s21, s21, 0')
    srd(g, 24, 10, 11, 1835008)
    srd(g, 28, 12, 13, 1204224)
    def rot_init(greg):
        g(f's_add_u32 s52, {greg}, s22')
        g('s_mul_i32 s53, s52, 37')
        g('s_lshr_b32 s53, s53, 8')
        g('s_mul_i32 s53, s53, 7')
        g('s_sub_u32 s52, s52, s53')
    def kc_offsets(c):
        if c == 7:
            if OPT.get('rot', 1): rot_init('s69')
            else: g('s_mov_b32 s52, 0')
        g('s_lshl_b32 s48, s52, 7')
        g('s_mul_i32 s49, s52, 172032')
        g(f's_add_u32 s49, s49, {"s50" if c < 7 else "s51"}')
        g('s_add_u32 s52, s52, 1')
        g('s_cmp_eq_u32 s52, 7')
        g('s_cselect_b32 s52, 0, s52')
    def issueX(c):
        st = c % 4
        sx = 24 if c < 7 else 32
        kc_offsets(c)
        for e in range(4):
            g(f's_add_u32 m0, s46, {st*16384 + e*1024}')
            g('s_nop 0')
            g(f'buffer_load_dwordx4 v{2+e}, s[{sx}:{sx+3}], s48 offen{INL()} lds')
    def issueW(c, ns=(0, 1, 2)):
        st = c % 4
        sw = 28 if c < 7 else 36
        for n in ns:
            if n == 2:
                sk = newlab('qs')
                g('s_cmp_eq_u32 s43, 3')
                g(f's_cbranch_scc1 {sk}')
            g(f's_add_u32 m0, s47, {st*WSTG + n*4096}')
            g('s_nop 0')
            g(f'buffer_load_dwordx4 v{6+n}, s[{sw}:{sw+3}], s49 offen{INL()} lds')
            if n == 2: g.label(sk)
    if OPT.get('rot', 1): rot_init('s23')
    else: g('s_mov_b32 s52, 0')
    def issue(c):
        issueX(c); issueW(c)
    if OPT.get('pfw') == 1: g('s_barrier')
    issueX(0)
    issueW(0, (0,))
    wcalc(1); issueW(0, (1,))
    wcalc(2); issueW(0, (2,))
    srd(g, 32, 4, 5, 1835008)
    srd(g, 36, 6, 7, 1204224)
    srd(g, 64, 20, 21, 0x4000, WS_CNT)
    g('s_and_b32 s40, s2, 7')
    g('s_bfe_u32 s41, s2, 0x10003')
    g('s_lshl_b32 s40, s40, 1')
    g('s_add_u32 s40, s40, s41')
    g('v_min_u32 v30, 2, v0')
    g('v_lshlrev_b32 v30, 4, v30')
    g('v_add_u32 v30, s40, v30')
    g('v_mul_u32_u24 v30, 43, v30')
    g('v_lshrrev_b32 v30, 7, v30')
    g('v_lshlrev_b32 v31, 8, v30')
    g(f'v_add_u32 v203, {CNT_B}, v31')
    if OPT.get('pfw') == 2: g('s_barrier')
    for c in range(1, 3): issue(c)
    issued = 2
    HOLD = OPT.get('hold', 9) if OPT.get('sbar', 0) else 99
    for c in range(NCH):
        rem = issued - c
        if c == 13:
            skq = newlab('w13'); skr = newlab('w13')
            g('s_cmp_lg_u32 s3, 4')
            g(f's_cbranch_scc1 {skq}')
            g('s_waitcnt vmcnt(1)')
            g(f's_branch {skr}')
            g.label(skq)
            g('s_waitcnt vmcnt(0)')
            g.label(skr)
        else:
            g(f's_waitcnt vmcnt({6*rem})')
        g('s_barrier')
        if c + 3 < NCH and not (HOLD <= c + 3 <= 10):
            issue(c + 3); issued = c + 3
        if OPT.get('sbar', 0) and c == 7:
            g('s_barrier')
            for cc in range(HOLD, 11):
                issue(cc); issued = cc
        if c == 10: attn_setup(g)
        if c == 11: set_mask(g, 32, 'first')
        if c == 12:
            skp = newlab('p12')
            g('s_cmp_lg_u32 s3, 4')
            g(f's_cbranch_scc1 {skp}')
            g('buffer_load_dword v201, v203, s[64:67], 0 offen sc1')
            g.label(skp)
    g('s_cmp_lg_u32 s3, 4')
    g('s_cbranch_scc1 Lh1_polled')
    g('s_waitcnt vmcnt(0)')
    g('v_cmp_ne_u32 vcc, 16, v201')
    g('s_nop 4')
    g('s_cbranch_vccz Lh1_polled')
    spin_until(g, 201, 203, 16)
    g.label('Lh1_polled')
    g('s_barrier')
    stamp(g, 4)
    g('s_add_u32 s47, s44, 0x200000')
    g('s_mov_b32 m0, s51')
    g('s_nop 0')
    for i in range(2):
        g(f'buffer_load_dwordx4 v2, s[24:27], s47 offen offset:{i*1024}{LD()} lds')
    stage_tile(g, 0)
    stage_tile(g, 1)
    stamp(g, 5)
    g('s_waitcnt vmcnt(4)')
    g('s_barrier')
    g('s_branch Lattn_go')

K2_SCR = 131072
QL = 200
def set_mask(g, dst, kind):
    for r in range(16):
        br_ = (r & 3) + 8 * (r >> 2)
        op = 'v_cmp_le_i32' if kind == 'diag' else 'v_cmp_gt_i32'
        g(f'{op} vcc, {br_}, v24')
        g('s_nop 1')
        g(f'v_cndmask_b32_e64 v{dst+r}, v25, 0, vcc')
def attn_setup(g):
    kvb_srd(g)
    g('s_lshr_b32 s41, s2, 4')
    g('s_and_b32 s42, s3, 3')
    g('s_lshr_b32 s43, s3, 2')
    g('v_lshlrev_b32 v2, 4, v0')
    g('s_lshl_b32 s44, s40, 6')
    g('s_lshl_b32 s45, s41, 2')
    g('s_add_u32 s45, s45, s42')
    g('s_add_u32 s44, s44, s45')
    g('s_lshl_b32 s44, s44, 11')
    srd(g, 24, 20, 21, 0x400000)
    g('s_sub_u32 s28, s32, 0x400000')
    g('s_subb_u32 s29, s33, 0')
    g('s_mov_b32 s30, 0x40000')
    g('s_mov_b32 s31, 0x20000')
    srd(g, 36, 20, 21, 0x400000, WS_O)
    g('v_min_u32 v30, 2, v0')
    g('v_lshlrev_b32 v30, 4, v30')
    g('v_add_u32 v30, s40, v30')
    g('v_mul_u32_u24 v30, 43, v30')
    g('v_lshrrev_b32 v30, 7, v30')
    g('v_lshlrev_b32 v31, 8, v30')
    g(f'v_add_u32 v203, {CNT_B}, v31')
    g('s_lshl_b32 s47, s41, 2')
    g('s_add_u32 s47, s47, s3')
    g('s_sub_u32 s47, s47, 8')
    g('s_lshl_b32 s50, s47, 12')
    g('s_cmp_lt_i32 s47, 0')
    g('s_cselect_b32 s50, 0x40000000, s50')
    g('v_add_u32 v28, s50, v2')
    g('s_add_u32 s47, s47, 8')
    g('s_lshl_b32 s50, s47, 12')
    g('v_add_u32 v29, s50, v2')
    g('s_lshl_b32 s47, s42, 12')
    g('v_add_u32 v3, s47, v2')
    g('s_lshl_b32 s47, s43, 14')
    g('v_add_u32 v4, s47, v2')
    g('v_add_u32 v5, 32768, v4')
    g(f'v_add_u32 v6, {K2_SCR}, v3')
    g('s_lshl_b32 s47, s42, 8')
    g(f's_add_u32 s47, s47, {K2_SCR+16384}')
    g('v_lshlrev_b32 v7, 2, v0')
    g('v_add_u32 v7, s47, v7')
    g('s_lshl_b32 s47, s42, 11')
    g(f's_add_u32 s51, s47, {K2_SCR}')
    g(f'v_add_u32 v{QL}, s51, v2')
    g('v_and_b32 v24, 31, v0')
    g('v_lshrrev_b32 v25, 5, v0')
    g('v_lshlrev_b32 v25, 2, v25')
    g('v_sub_u32 v24, v24, v25')
    g(f'v_mov_b32 v25, {NEGBIG:#x}')
    g('s_mov_b32 s60, 0')
    g('s_mov_b32 s61, -1')
    srd(g, 56, 20, 21, 0x1000000)

def phase_attn(g):
    g.label('Lattn_setup')
    QA = 8; QB = 16; MASK = 32; S0 = 48; S1 = 64; P = 80; OA = 88; OB = 104; KF = 120; VF = 128; T = 136
    TK = 144; TS = 152
    MNA = 26; MNB = 27
    SB = [S0, S1]
    attn_setup(g)
    set_mask(g, MASK, 'diag')
    stamp(g, 5)
    g('s_waitcnt vmcnt(4)')
    g('s_barrier')
    g.label('Lattn_go')
    g('s_cmp_eq_u32 s43, 99') if False else None
    def dma4(vreg, s, s_goff, s_m0, n=4, first=0):
        g(f's_mov_b32 m0, {s_m0}')
        g('s_nop 0')
        for i in range(first, first + n):
            g(f'buffer_load_dwordx4 v{vreg}, s[{s}:{s+3}], {s_goff} offen offset:{i*1024}{LD()} lds')
    stamp(g, 6)
    g(f'ds_read_b128 {vr(QB,4)}, v{QL}')
    g(f'ds_read_b128 {vr(QB+4,4)}, v{QL} offset:1024')

    def rowmax(sbuf, t):
        g(f'v_max3_f32 v{t}, v{sbuf}, v{sbuf+1}, v{sbuf+2}')
        for r in range(3, 15, 2):
            g(f'v_max3_f32 v{t}, v{t}, v{sbuf+r}, v{sbuf+r+1}')
        g(f'v_max_f32 v{t}, v{t}, v{sbuf+15}')
        g(f'v_mov_b32 v{t+1}, v{t}')
        g('s_nop 1')
        g(f'v_permlane32_swap_b32 v{t}, v{t+1}')
        g('s_nop 1')
        g(f'v_max_f32 v{t}, v{t}, v{t+1}')
    def set_standin(sbuf, q, mneg):
        t = T
        rowmax(sbuf, t)
        g(f'v_sub_f32 v{t}, 0, v{t}')
        g(f'v_cvt_pk_bf16_f32 v{t}, v{t}, 0')
        g(f'v_lshlrev_b32 v{mneg}, 16, v{t}')
        g('s_mov_b64 exec, s[60:61]')
        g(f'v_mov_b32 v{q+4+2}, v{t}')
        g('s_mov_b64 exec, -1')
    def slots(br, kh):
        if br == 1: return (2048, 0, None) if kh == 0 else (0, 1024, 2048)
        return (0, 1024, None) if kh == 0 else (2048, 0, 3072)
    def write_half(kh, br, O, mn):
        oo, mo, lo = slots(br, kh)
        src = O + 8 if kh == 0 else O
        g(f'ds_write_b128 v6, {vr(src,4)} offset:{oo}')
        g(f'ds_write_b128 v6, {vr(src+4,4)} offset:{oo+1024}')
        g(f'ds_write_b32 v7, v{mn} offset:{mo}')
        if kh == 1: g(f'ds_write_b32 v7, v{O+12} offset:{lo}')
    FB = 168
    def finish_half(tag, kh, br, O, mn, q, tmp):
        base = O + 8*kh
        oo, mo, lo = slots(br, 1 - kh)
        g(f'ds_read_b128 {vr(tmp,4)}, v6 offset:{oo}')
        g(f'ds_read_b128 {vr(tmp+4,4)}, v6 offset:{oo+1024}')
        g(f'ds_read_b32 v{T}, v7 offset:{mo}')
        if kh == 0: g(f'ds_read_b32 v{T+5}, v7 offset:{lo}')
        lp = T + 5 if kh == 0 else tmp + 4
        g('s_waitcnt lgkmcnt(0)')
        g(f'v_min_f32 v{T+1}, v{mn}, v{T}')
        g(f'v_sub_f32 v{T+2}, v{T+1}, v{mn}')
        g(f'v_sub_f32 v{T+3}, v{T+1}, v{T}')
        g(f'v_exp_f32 v{T+2}, v{T+2}')
        g(f'v_exp_f32 v{T+3}, v{T+3}')
        g('s_nop 0')
        g(f'v_mul_f32 v{T}, v{O+12}, v{T+2}')
        g(f'v_fmac_f32 v{T}, v{lp}, v{T+3}')
        for r in range(8): g(f'v_mul_f32 v{base+r}, v{base+r}, v{T+2}')
        g(f'v_mov_b32 v{T+1}, v{T}')
        for r in range(8): g(f'v_fmac_f32 v{base+r}, v{tmp+r}, v{T+3}')
        g(f'v_permlane32_swap_b32 v{T}, v{T+1}')
        g(f'v_mul_f32 v{T+4}, 0, v{base}')
        for r in range(1, 8): g(f'v_fmac_f32 v{T+4}, 0, v{base+r}')
        g(f'v_add_f32 v{T+4}, v{T+4}, v{T+1}')
        g(f's_mov_b32 s47, {f32bits(2.0**100):#x}')
        g(f'v_cmp_ngt_f32 vcc, s47, v{T+4}')
        g('s_nop 4')
        g(f's_cbranch_vccz L{tag}_ok')
        fallback(tag, br, O, q)
        g(f'v_mov_b32 v{T}, v{O+12}')
        g(f'v_mov_b32 v{T+1}, v{O+12}')
        g('s_nop 1')
        g(f'v_permlane32_swap_b32 v{T}, v{T+1}')
        g('s_nop 1')
        g.label(f'L{tag}_ok')
        g(f'v_rcp_f32 v{T+1}, v{T+1}')
        g('s_lshl_b32 s47, s41, 2')
        g('s_add_u32 s47, s47, s42')
        for r in range(8): g(f'v_mul_f32 v{base+r}, v{base+r}, v{T+1}')
        g(f's_add_u32 s47, s47, {br*64}')
        g('s_lshl_b32 s47, s47, 4')
        g('s_add_u32 s47, s47, s40')
        g('s_lshl_b32 s47, s47, 11')
        for i in range(4): g(f'v_cvt_pk_bf16_f32 v{tmp+i}, v{base+2*i}, v{base+2*i+1}')
        if kh == 1:
            g(f'v_cndmask_b32_e64 v{tmp+2}, v{tmp+2}, 0, s[60:61]')
            g(f'v_cndmask_b32_e64 v{tmp+3}, v{tmp+3}, 0, s[60:61]')
        g('s_nop 1')
        g(f'buffer_store_dwordx4 {vr(tmp,4)}, v2, s[36:39], s47 offen offset:{kh*1024}{ST()}')
        g('s_nop 1')
    def fallback(tag, br, O, q):
        FS, FK, FV, FP, FQ, Fm = FB, FB+16, FB+24, FB+32, FB+40, FB+48
        s = 28 if br == 0 else 32
        for i in range(8): g(f'v_mov_b32 v{FQ+i}, v{q+i}')
        g('s_mov_b64 exec, s[60:61]')
        g(f'v_mov_b32 v{FQ+6}, 0')
        g('s_mov_b64 exec, -1')
        for r in range(16): g(f'v_mov_b32 v{O+r}, 0')
        g(f'v_mov_b32 v{Fm}, v25')
        if br == 0:
            g('s_lshl_b32 s52, s41, 2')
            g('s_add_u32 s52, s52, s42')
            g('s_sub_u32 s53, s52, 8')
            g('s_mov_b32 s54, s52')
        else:
            g('s_mov_b32 s54, 63')
        g.label(f'L{tag}_fb_loop')
        g('s_lshl_b32 s55, s54, 12')
        for i in range(2):
            g(f'buffer_load_dwordx4 {vr(FK+4*i,4)}, v2, s[{s}:{s+3}], s55 offen offset:{i*1024}{LD()}')
            g(f'buffer_load_dwordx4 {vr(FV+4*i,4)}, v2, s[{s}:{s+3}], s55 offen offset:{2048+i*1024}{LD()}')
        if br == 0:
            g('s_cmp_eq_u32 s54, s52')
            g(f's_cbranch_scc1 L{tag}_fb_diag')
            g('s_cmp_eq_u32 s54, s53')
            g(f's_cbranch_scc1 L{tag}_fb_first')
        for r in range(16): g(f'v_mov_b32 v{FS+r}, 0')
        if br == 0:
            g(f's_branch L{tag}_fb_go')
            g.label(f'L{tag}_fb_diag')
            set_mask(g, FS, 'diag')
            g(f's_branch L{tag}_fb_go')
            g.label(f'L{tag}_fb_first')
            set_mask(g, FS, 'first')
            g.label(f'L{tag}_fb_go')
        g('s_waitcnt vmcnt(0)')
        g('s_nop 1')
        g(mfma(FS, FK, FQ, FS))
        g(mfma(FS, FK+4, FQ+4, FS))
        g('s_nop 15')
        rowmax(FS, Fm+1)
        g(f'v_max_f32 v{Fm+1}, v{Fm+1}, v{Fm}')
        g(f'v_sub_f32 v{Fm+2}, v{Fm}, v{Fm+1}')
        g(f'v_exp_f32 v{Fm+2}, v{Fm+2}')
        g(f'v_mov_b32 v{Fm}, v{Fm+1}')
        for r in range(16): g(f'v_sub_f32 v{FS+r}, v{FS+r}, v{Fm}')
        for r in range(16): g(f'v_exp_f32 v{FS+r}, v{FS+r}')
        for r in range(16): g(f'v_mul_f32 v{O+r}, v{O+r}, v{Fm+2}')
        for i in range(8): g(f'v_cvt_pk_bf16_f32 v{FP+i}, v{FS+2*i}, v{FS+2*i+1}')
        g('s_nop 1')
        g(mfma(O, FV, FP, O))
        g(mfma(O, FV+4, FP+4, O))
        g('s_nop 15')
        g('s_sub_u32 s54, s54, 1')
        g('s_cmp_lt_i32 s54, 0')
        g(f's_cbranch_scc1 L{tag}_fb_end')
        if br == 0:
            g('s_cmp_lt_i32 s54, s53')
            g(f's_cbranch_scc1 L{tag}_fb_end')
        g(f's_branch L{tag}_fb_loop')
        g.label(f'L{tag}_fb_end')

    g('s_cmp_eq_u32 s43, 0')
    g('s_cbranch_scc0 Lattn_kh1')

    def path(kh):
        tag = f'K{kh}'
        unitsA = [8, 7, 6, 5, 4] if kh == 0 else [3, 2, 1, 0]
        nA = len(unitsA); N = 32 + nA
        def unit(i):
            if i >= 32:
                u = unitsA[i - 32]
                masked = (kh == 0 and u == 8) or (kh == 1 and u == 0)
                return dict(base=3, off=u*4096, Q=QA, O=OA, C=MASK if masked else None, first=(i == 32))
            return dict(b=i, Q=QB, O=OB, C=None, first=(i == 0))
        def addr(i, cs):
            u = unit(i)
            if 'base' in u: return u['base'], u['off']
            b = u['b']; s = b >> 2
            if s == cs: return 4, (b & 3) * 4096
            assert s == cs + 1
            return 5, (b & 3) * 4096
        def rdK(i, cs, dst=KF):
            r, off = addr(i, cs)
            g(f'ds_read_b128 {vr(dst,4)}, v{r} offset:{off}')
            g(f'ds_read_b128 {vr(dst+4,4)}, v{r} offset:{off+1024}')
        def rdV(i, f, cs):
            r, off = addr(i, cs)
            g(f'ds_read_b128 {vr(VF+4*f,4)}, v{r} offset:{off+2048+f*1024}')
        rdK(0, 0)
        g('s_waitcnt lgkmcnt(0)')
        g(mfma(S0, KF, QB, None))
        g(mfma(S0, KF+4, QB+4, S0))
        g('s_nop 15')
        set_standin(S0, QB, MNB)
        g('s_nop 1')
        g(mfma(S0, KF, QB, None))
        g(mfma(S0, KF+4, QB+4, S0))
        rdK(1, 0)
        rdV(0, 0, 0)
        g('s_nop 15')
        if kh == 0: stamp(g, 7)
        if OPT.get('attst'): stamp(g, 2, q=True)
        def wo_piece(it):
            if it == 7:
                sk = newlab('wo7')
                g('s_cmp_lg_u32 s3, 0')
                g(f's_cbranch_scc1 {sk}')
                g(f's_add_u32 m0, s45, {65536 + it*8192}')
                g(f'v_add_u32 v31, {it*64*896}, v30')
                g('buffer_load_dwordx4 v31, s[56:59], 0 offen lds')
                g.label(sk)
            else:
                g(f's_add_u32 m0, s45, {65536 + it*8192}')
                g(f's_mov_b32 s50, {it*64*896}')
                g('buffer_load_dwordx4 v30, s[56:59], s50 offen lds')
        def wo_setup():
            g('s_mov_b32 s56, s14')
            g('s_mov_b32 s57, s15')
            g(f's_mov_b32 s58, {448*896}')
            g('s_mov_b32 s59, 0x20000')
            g('v_lshrrev_b32 v30, 3, v0')
            g('v_and_b32 v31, 7, v0')
            g('v_and_b32 v1, 2, v30')
            g('v_lshlrev_b32 v1, 1, v1')
            g('v_xor_b32 v31, v31, v1')
            g('s_lshl_b32 s50, s3, 3')
            g('v_add_u32 v30, s50, v30')
            g('v_mul_u32_u24 v30, 896, v30')
            g('v_lshl_add_u32 v30, v31, 4, v30')
            g('s_lshr_b32 s50, s2, 5')
            g('s_lshl_b32 s50, s50, 7')
            g('s_cmp_ge_u32 s2, 224')
            g('s_cselect_b32 s50, 0x40000000, s50')
            g('v_add_u32 v30, s50, v30')
            g('s_lshl_b32 s45, s3, 10')
        def dma_slot(i, inloop):
            if i == 0 or i == 1:
                st = i + 2
                g(f's_add_u32 s54, s55, {st*32768}')
                g(f's_add_u32 m0, s55, {(st&3)*32768}')
                g('s_nop 0')
                for k in range(4):
                    g(f'buffer_load_dwordx4 v2, s[32:35], s54 offen offset:{k*1024}{LD()} lds')
                return
            if i == 2 and kh == 0:
                for t in range(3):
                    g(f'buffer_store_dwordx4 {vr(208+8*t,4)}, v2, s[56:59], s{(48,49,53)[t]} offen{ST()}')
                    g(f'buffer_store_dwordx4 {vr(212+8*t,4)}, v2, s[56:59], s{(48,49,53)[t]} offen offset:1024{ST()}')
                return
            if i >= 30:
                if i == 30: wo_setup()
                before34 = {30: [0], 31: [1], 32: [2], 33: [3], 34: [4, 5], 35: [6, 7]}
                for it in before34.get(i, []): wo_piece(it)
                return
            if i == 12 and kh == 1 and OPT.get('wol2', 1):
                sk = newlab('wol2')
                g('s_cmp_gt_u32 s3, 5')
                g(f's_cbranch_scc1 {sk}')
                srd(g, 56, 8, 9, 448*896)
                g('s_lshr_b32 s47, s2, 3')
                g('s_mul_i32 s47, s47, 98')
                g('s_sub_u32 s48, s3, 4')
                g('s_lshl_b32 s48, s48, 6')
                g('s_add_u32 s47, s47, s48')
                g('v_add_u32 v204, s47, v0')
                g('v_lshlrev_b32 v204, 7, v204')
                g('buffer_load_dword v205, v204, s[56:59], 0 offen')
                g.label(sk)
            if i < 6: return
            ph = (i - 2) & 3; st = ((i - 2) >> 2) + 3
            if i == 18:
                g('buffer_load_dword v201, v31, s[64:67], 0 offen sc1')
            if st <= 7:
                if ph == 0:
                    g(f's_add_u32 s54, s55, {st*32768}')
                    g(f's_add_u32 m0, s55, {(st&3)*32768}')
                    g('s_nop 0')
                g(f'buffer_load_dwordx4 v2, s[32:35], s54 offen offset:{ph*1024}{LD()} lds')
            elif st == 8:
                if ph == 0:
                    ok = newlab('aok')
                    g('v_cmp_ne_u32 vcc, 16, v201')
                    g('s_nop 4')
                    g(f's_cbranch_vccz {ok}')
                    spin_until(g, 201, 31, 16)
                    g.label(ok)
                    if kh == 1:
                        g('s_add_u32 s47, s51, 8192')
                        dma4(2, 24, 's44', 's47', n=2)
                    g('s_mov_b32 m0, s55')
                    g('s_nop 0')
                g(f'buffer_load_dwordx4 v28, s[28:31], 0 offen offset:{ph*1024}{LD()} lds')
            elif st == 9 and ph <= 1 and kh == 0:
                if ph == 0:
                    g('s_add_u32 m0, s55, 32768')
                    g('s_nop 0')
                for k in range(2):
                    g(f'buffer_load_dwordx4 v29, s[28:31], 0 offen offset:{(2*ph+k)*1024}{LD()} lds')
        def body(i, cs, inloop=False):
            u = unit(i)
            sb = SB[i & 1]; sn = SB[(i + 1) & 1]
            e = [f'v_exp_f32 v{sb+r}, v{sb+r}' for r in range(16)]
            c = [f'v_cvt_pk_bf16_f32 v{P+k}, v{sb+2*k}, v{sb+2*k+1}' for k in range(8)]
            has1 = i + 1 < N; has2 = i + 2 < N
            if i < 32 and (i & 3) == 2:
                s = i >> 2
                if s == 7: vm = 0
                elif s == 0: vm = 8
                elif s == 1: vm = 4 if kh == 1 else 10
                elif s == 2: vm = 4
                else: vm = 4
                if OPT.get('attst') and s in (0, 1, 2, 3, 5, 7): stamp(g, {0: 3, 1: 5, 2: 7, 3: 9, 5: 11, 7: 13}[s], q=True)
                g(f's_waitcnt vmcnt({vm}) lgkmcnt(0)' if vm is not None else 's_waitcnt lgkmcnt(0)')
                g('s_barrier')
                if OPT.get('attst') and s in (0, 1, 2, 3, 5, 7): stamp(g, {0: 4, 1: 6, 2: 8, 3: 10, 5: 12, 7: 14}[s], q=True)
                if s == 2 and kh == 1:
                    sk = newlab('sigA')
                    g('s_cmp_lg_u32 s3, 4')
                    g(f's_cbranch_scc1 {sk}')
                    g('s_mov_b64 exec, 1')
                    g('v_mov_b32 v1, 1')
                    g('s_lshl_b32 s47, s69, 8')
                    g('v_mov_b32 v202, s47')
                    g('buffer_atomic_add v1, v202, s[64:67], 0 offen sc1')
                    g('s_mov_b64 exec, -1')
                    g.label(sk)
                if s == 6:
                    g(f'ds_read_b128 {vr(QA,4)}, v{QL} offset:8192')
                    g(f'ds_read_b128 {vr(QA+4,4)}, v{QL} offset:9216')
                if s == 7 and kh == 0:
                    g(f'v_mov_b32 v204, {LFLAG}')
                    g('v_mov_b32 v205, 0')
                    g('ds_write_b32 v204, v205')
                    g('ds_write_b32 v204, v205 offset:4')
                    rdK(32, cs, TK)
                    g('s_waitcnt lgkmcnt(0)')
                    g(mfma(TS, TK, QA, unit(32)['C']))
                    g(mfma(TS, TK+4, QA+4, TS))
                    g('s_nop 15')
                    set_standin(TS, QA, MNA)
            elif i == 31 and kh == 1:
                g('s_waitcnt lgkmcnt(0)')
                g(mfma(TS, KF, QA, unit(32)['C']))
                g(mfma(TS, KF+4, QA+4, TS))
                g('s_nop 15')
                set_standin(TS, QA, MNA)
                g('s_lshl_b32 s47, s41, 2')
                g('s_add_u32 s47, s47, s42')
                g('s_cmp_lt_u32 s47, 5')
                g(f's_cbranch_scc0 L{tag}_valid')
                g(f'v_mov_b32 v{MNA}, {POSBIG:#x}')
                g.label(f'L{tag}_valid')
            elif i == 34:
                if OPT.get('tailst'): stamp(g, 3, q=True)
                g('s_waitcnt lgkmcnt(0)')
                g('s_barrier')
                if OPT.get('tailst'): stamp(g, 4, q=True)
                if kh == 1 or not OPT.get('stag', 0):
                    finish_half(f'FB{kh}', kh, 1, OB, MNB, QB, TS)
                if OPT.get('tailst'): stamp(g, 5, q=True)
            elif i == 35 and kh == 0 and OPT.get('stag', 0):
                g('s_waitcnt lgkmcnt(0)')
                finish_half(f'FB{kh}', kh, 1, OB, MNB, QB, TS)
            else:
                g('s_waitcnt lgkmcnt(0)')
            pm = OPT.get('prio', 'lag')
            if pm == 'lag':
                g(f's_setprio {3 - ((i - 2) & 3)}')
            elif pm == 'lag2' and ((i - 2) & 1) == 0:
                g(f's_setprio {1 - (((i - 2) & 3) >> 1)}')
            elif pm == 'half':
                g(f's_setprio {3 - (((i - 2) & 1) * 2)}')
            g(e[0])
            if i > 0:
                up = unit(i - 1)
                g(mfma(up['O'], VF+4, P+4, up['O']))
            rdV(i, 1, cs)
            g(e[1]); g(e[2]); g(e[3])
            g(c[0])
            if i == 33:
                write_half(kh, 1, OB, MNB)
            if has1:
                un = unit(i + 1)
                g(mfma(sn, KF, un['Q'], un['C']))
            g(e[4]); g(e[5]); g(c[1]); g(e[6]); g(e[7]); g(c[2])
            if has1:
                g(mfma(sn, KF+4, un['Q']+4, sn))
            if has2:
                rdK(i + 2, cs)
            g(e[8]); g(c[3]); g(e[9]); g(e[10])
            dma_slot(i, inloop)
            g(e[11])
            if OPT.get('prio') == 'half':
                g(f's_setprio {2 - (((i - 2) & 1) * 2)}')
            g(mfma(u['O'], VF, P, None if u['first'] else u['O']))
            if has1:
                rdV(i + 1, 0, cs)
            for x in e[12:16]: g(x)
            g(c[4]); g(c[5]); g(c[6]); g(c[7])
        def advance():
            g('v_mov_b32 v4, v5')
            g('v_add_u32 v5, 32768, v5')
            g('v_and_b32 v5, 0x1ffff, v5')
        return body, advance, N, tag
    for kh in (0, 1):
        if kh == 1: g.label('Lattn_kh1')
        body, advance, N, tag = path(kh)
        for s_ in range(7):
            for j in range(4): body(4*s_ + j, s_)
            advance()
        for j in range(4): body(28 + j, 7)
        if kh == 0: stamp(g, 8)
        if OPT.get('tailst'): stamp(g, 2, q=True)
        for i in range(32, N): body(i, 7)
        g('s_waitcnt lgkmcnt(0)')
        g('s_nop 1')
        g(mfma(OA, VF+4, P+4, OA))
        g('s_nop 15')
        if OPT.get('tailst'): stamp(g, 6, q=True)
        write_half(kh, 0, OA, MNA)
        g(f's_waitcnt vmcnt({1 if (kh == 0 and OPT.get("stag", 0)) else 3}) lgkmcnt(0)')
        g('s_barrier')
        if OPT.get('tailst'): stamp(g, 7, q=True)
        if kh == 1: signal_o(g, CNT_OB, 4)
        finish_half(f'FA{kh}', kh, 0, OA, MNA, QA, TS)
        if OPT.get('tailst'): stamp(g, 8, q=True)
        if OPT.get('woearly', 0):
            woA_issue(g)
            g('s_waitcnt vmcnt(7)')
        else:
            g('s_waitcnt vmcnt(0)')
        if OPT.get('tailst'): stamp(g, 9, q=True)
        g('s_mov_b64 exec, 1')
        g('v_mov_b32 v1, 1')
        g('s_lshl_b32 s47, s41, 8')
        g(f's_add_u32 s47, s47, {CNT_OA}')
        g('v_mov_b32 v31, s47')
        g('buffer_atomic_add v1, v31, s[64:67], 0 offen sc1')
        g('s_mov_b64 exec, -1')
        if not OPT.get('woearly', 0): woA_issue(g)
        stamp(g, 9)
        if kh == 1:
            proj_group_B(g)
        else:
            proj_group_A(g)
    proj_common(g)

PJ_EX = 131072
def proj_setup(g, br):
    g(f's_mov_b32 s40, {br}')
    g('s_and_b32 s41, s2, 7')
    g('s_lshl_b32 s41, s41, 2')
    g('s_bfe_u32 s42, s2, 0x20003')
    g('s_add_u32 s41, s41, s42')
    g('s_lshr_b32 s42, s2, 5')
    g('s_and_b32 s43, s3, 1')
    g('s_bfe_u32 s44, s3, 0x10001')
    srd(g, 24, 16, 17, 2048 * 1792)
    g('s_lshl_b32 s45, s41, 1')
    g('s_add_u32 s45, s45, s43')
    g(f's_add_u32 s45, s45, {br*64}')
    g('s_lshl_b32 s45, s45, 15')
    g('s_lshl_b32 s46, s44, 14')
    g('s_add_u32 s45, s45, s46')
    g('v_bfe_u32 v4, v0, 2, 2')
    g('v_and_b32 v5, 3, v0')
    g('v_bfe_u32 v7, v0, 4, 1')
    g('v_lshrrev_b32 v6, 5, v0')
    g('v_lshlrev_b32 v7, 5, v7')
    g('v_lshl_add_u32 v7, v5, 3, v7')
    g('v_lshrrev_b32 v11, 4, v7')
    g('v_and_b32 v8, 2, v4')
    g('v_lshlrev_b32 v8, 1, v8')
    g('v_xor_b32 v11, v11, v8')
    g('v_and_b32 v7, 15, v7')
    g('v_lshl_add_u32 v7, v11, 4, v7')
    g('v_lshl_add_u32 v4, v6, 2, v4')
    g('v_lshl_add_u32 v9, v4, 7, v7')
    g('s_mul_i32 s46, s44, 28672')
    if br: g('s_add_u32 s46, s46, 65536')
    g('v_add_u32 v9, s46, v9')
    g('v_xor_b32 v10, 64, v9')
    g('s_lshl_b32 s46, s43, 1')
    g('s_add_u32 s46, s46, s44')
    g(f's_add_u32 s46, s46, {br*4}')
    g('s_lshl_b32 s46, s46, 12')
    g(f's_add_u32 s46, s46, {PJ_EX}')
    g('v_add_u32 v12, s46, v2')
    g('v_xor_b32 v13, 4096, v12')
    g('s_lshr_b32 s46, s41, 1')
    g('s_lshl_b32 s46, s46, 8')
    g(f's_add_u32 s46, s46, {CNT_OB if br else CNT_OA}')
    g('v_mov_b32 v30, s46')
def o_loads(g):
    OF = 64
    for n in range(16):
        if n % 4 == 0 and n > 0: g('s_add_u32 s45, s45, 4096')
        g(f'buffer_load_dwordx4 {vr(OF+4*n,4)}, v2, s[36:39], s45 offen offset:{(n%4)*1024}{LD()}')
def signal_o(g, cnt, wave):
    sk = newlab('sigO')
    g(f's_cmp_lg_u32 s3, {wave}')
    g(f's_cbranch_scc1 {sk}')
    g('s_mov_b64 exec, 1')
    g('v_mov_b32 v1, 1')
    g('s_lshl_b32 s47, s41, 8')
    g(f's_add_u32 s47, s47, {cnt}')
    g('v_mov_b32 v31, s47')
    g('buffer_atomic_add v1, v31, s[64:67], 0 offen sc1')
    g('s_mov_b64 exec, -1')
    g.label(sk)
def woA_issue(g):
    srd(g, 56, 8, 9, 448*896)
    g('v_lshrrev_b32 v30, 3, v0')
    g('v_and_b32 v29, 7, v0')
    g('v_and_b32 v1, 2, v30')
    g('v_lshlrev_b32 v1, 1, v1')
    g('v_xor_b32 v29, v29, v1')
    g('s_lshl_b32 s51, s3, 3')
    g('v_add_u32 v30, s51, v30')
    g('v_mul_u32_u24 v30, 896, v30')
    g('v_lshl_add_u32 v30, v29, 4, v30')
    g('s_lshr_b32 s51, s2, 5')
    g('s_lshl_b32 s51, s51, 7')
    g('s_cmp_ge_u32 s2, 224')
    g('s_cselect_b32 s51, 0x40000000, s51')
    g('v_add_u32 v30, s51, v30')
    g('s_lshl_b32 s52, s3, 10')
    sk = newlab('woA')
    for it in range(8):
        if it == 7:
            g('s_cmp_lg_u32 s3, 0')
            g(f's_cbranch_scc1 {sk}')
            g(f's_add_u32 m0, s52, {it*8192}')
            g(f'v_add_u32 v29, {it*64*896}, v30')
            g('buffer_load_dwordx4 v29, s[56:59], 0 offen lds')
        else:
            g(f's_add_u32 m0, s52, {it*8192}')
            g(f's_mov_b32 s51, {it*64*896}')
            g('buffer_load_dwordx4 v30, s[56:59], s51 offen lds')
    g.label(sk)
def proj_group_B(g):
    g('s_cmp_ge_u32 s2, 224')
    g('s_cbranch_scc1 Lpj_idleB')
    proj_setup(g, 1)
    g('s_waitcnt vmcnt(0)')
    g('s_barrier')
    if OPT.get('tailst'): stamp(g, 10, q=True)
    group_wait(g, 4, 1, 1, 30, 16)
    if OPT.get('tailst'): stamp(g, 11, q=True)
    stamp(g, 10)
    o_loads(g)
    g('s_branch Lproj_common')
    g.label('Lpj_idleB')
    g('s_barrier')
    g('s_branch Lend')
def proj_group_A(g):
    g('s_cmp_ge_u32 s2, 224')
    sk = newlab('idleA')
    g(f's_cbranch_scc1 {sk}')
    proj_setup(g, 0)
    g('s_waitcnt vmcnt(0)')
    g('s_barrier')
    if OPT.get('tailst'): stamp(g, 10, q=True)
    group_wait(g, 0, 0, 1, 30, 128)
    if OPT.get('tailst'): stamp(g, 11, q=True)
    stamp(g, 10)
    o_loads(g)
    g('s_branch Lproj_common')
    g.label(sk)
    g('s_barrier')
    g('s_branch Lend')
def proj_common(g):
    g.label('Lproj_common')
    OF = 64; ACC = 16; WF = 48
    def rd(n, buf):
        h, i = divmod(n, 2)
        for ct in range(2):
            for jj in range(2):
                off = (28*h + 16*i + 8*jj) * 128
                g(f'ds_read_b64_tr_b16 {vr(WF+8*buf+4*ct+2*jj,2)}, v{9+ct} offset:{off}')
    rd(0, 0)
    for n in range(16):
        if n + 1 < 16: rd(n + 1, (n + 1) & 1)
        g(f's_waitcnt vmcnt({15-n}) lgkmcnt({4 if n + 1 < 16 else 0})')
        for ct in range(2):
            g(mfma(ACC + 16*ct, WF + 8*(n & 1) + 4*ct, OF + 4*n, None if n == 0 else ACC + 16*ct))
    g('s_nop 15')
    stamp(g, 12, q=True)
    g('s_cmp_eq_u32 s44, 0')
    g('s_cbranch_scc0 Lpj_k1')
    for i in range(4): g(f'ds_write_b128 v12, {vr(ACC+16+4*i,4)} offset:{i*1024}')
    g('s_branch Lpj_k2')
    g.label('Lpj_k1')
    for i in range(4): g(f'ds_write_b128 v12, {vr(ACC+4*i,4)} offset:{i*1024}')
    for r in range(16): g(f'v_mov_b32 v{ACC+r}, v{ACC+16+r}')
    g.label('Lpj_k2')
    g('s_waitcnt lgkmcnt(0)')
    g('s_barrier')
    for i in range(4): g(f'ds_read_b128 {vr(64+4*i,4)}, v13 offset:{i*1024}')
    g('v_and_b32 v4, 31, v0')
    g('s_lshl_b32 s46, s41, 6')
    g('s_lshl_b32 s47, s43, 5')
    g('s_add_u32 s46, s46, s47')
    g('v_add_u32 v4, s46, v4')
    g('v_mul_u32_u24 v4, 1792, v4')
    g('v_lshl_add_u32 v4, v6, 4, v4')
    g('s_mul_i32 s46, s40, 896')
    g('s_lshl_b32 s47, s42, 7')
    g('s_add_u32 s46, s46, s47')
    g('s_lshl_b32 s47, s44, 6')
    g('s_add_u32 s46, s46, s47')
    g('s_waitcnt lgkmcnt(0)')
    for r in range(16): g(f'v_add_f32 v{ACC+r}, v{ACC+r}, v{64+r}')
    P = 48
    for i in range(8): g(f'v_cvt_pk_bf16_f32 v{P+i}, v{ACC+2*i}, v{ACC+2*i+1}')
    g('s_nop 1')
    for k in range(2):
        a = P + 4*k
        g(f'v_permlane32_swap_b32 v{a}, v{a+2}')
        g(f'v_permlane32_swap_b32 v{a+1}, v{a+3}')
    g('s_nop 1')
    for k in range(2):
        g(f'buffer_store_dwordx4 {vr(P+4*k,4)}, v4, s[24:27], s46 offen offset:{32*k}' + ((' ' + OPT['ost']) if OPT.get('ost') else ''))

HEADER = '''; Kernarg layout for this problem (72 bytes, ptrs only, base s[0:1]):
'''
def main(out):
    g = Gen()
    g.raw(f'.globl {NAME}')
    g.raw('.p2align 8')
    g.raw(f'.type {NAME},@function')
    g.label(NAME)
    g('s_cmp_ge_u32 s2, 256')
    g('s_cbranch_scc1 Lexit')
    if OPT.get('tl'):
        for r in range(70, 102): g(f's_mov_b32 s{r}, 0')
    stamp(g, 0); stamp(g, 15, True)
    if OPT.get('tl'): g('s_memtime s[98:99]')
    g('s_load_dwordx16 s[4:19], s[0:1], 0')
    g('s_load_dwordx2 s[20:21], s[0:1], 64')
    g('v_lshrrev_b32 v1, 6, v0')
    g('v_and_b32 v0, 63, v0')
    g('s_nop 0')
    g('v_readfirstlane_b32 s3, v1')
    if OPT.get('swapw'): g('s_xor_b32 s3, s3, 4')
    prologue(g)
    qkv_loader(g)
    qkv_compute(g)
    phase_attn(g)
    g.label('Lend')
    if OPT['stamps'] or OPT.get('tl'): g('s_waitcnt vmcnt(0)')
    stamp(g, 13)
    if OPT.get('tl'):
        sk = newlab('tl')
        g('s_cmp_lg_u32 s3, 0')
        g(f's_cbranch_scc1 {sk}')
        g('s_memtime s[100:101]')
        g('s_waitcnt lgkmcnt(0)')
        srd(g, 56, 18, 19, 256)
        g('s_mov_b64 exec, 1')
        g('s_sub_u32 s100, s84, s80')
        g('s_sub_u32 s99, s86, s82')
        g('v_mov_b32 v20, s100')
        g('v_mov_b32 v21, s99')
        g('v_mov_b32 v3, 0')
        g('buffer_atomic_umax v20, v3, s[56:59], 0 offen offset:52')
        g('buffer_atomic_umax v21, v3, s[56:59], 0 offen offset:56')
        g('s_not_b32 s68, s70')
        g('v_mov_b32 v1, s68')
        g('v_mov_b32 v3, 0')
        g('buffer_atomic_umax v1, v3, s[56:59], 0 offen offset:4')
        for k, i in enumerate((0, 2, 3, 4, 6, 8, 9, 10, 11, 12, 13)):
            g(f'v_mov_b32 v{4+k}, s{70+2*i}')
            g(f'buffer_atomic_umax v{4+k}, v3, s[56:59], 0 offen offset:{8+4*k}')
        g('s_waitcnt vmcnt(0)')
        g.label(sk)
    if OPT['stamps']: g('s_memrealtime s[72:73]')
    stamp_dump(g)
    g.label('Lexit')
    g('s_endpgm')
    txt = HEADER + f'; @launch grid=(256,1,1) block=(512,1,1) lds={LDS_BYTES}\n'
    txt += '.amdgcn_target "amdgcn-amd-amdhsa--gfx950"\n.text\n' + g.text()
    txt += f'''.section .rodata,"a"
.p2align 6
.amdhsa_kernel {NAME}
  .amdhsa_next_free_vgpr 232
  .amdhsa_next_free_sgpr 102
  .amdhsa_accum_offset 232
  .amdhsa_group_segment_fixed_size 0
  .amdhsa_kernarg_size 72
  .amdhsa_user_sgpr_count 2
  .amdhsa_user_sgpr_kernarg_segment_ptr 1
  .amdhsa_system_sgpr_workgroup_id_x 1
.end_amdhsa_kernel
'''
    open(out, 'w').write(txt)

if __name__ == '__main__':
    out = sys.argv[1] if len(sys.argv) > 1 else 'concat_heads__sliding_block__softmax_full_mha__prompt.s'
    for a in sys.argv[2:]:
        if '=' in a:
            k, v = a.split('=', 1)
            OPT[k] = v if k in ('st', 'ld', 'prio', 'ost', 'inl') else (int(v) if v.isdigit() else v)
        else:
            OPT[a] = True
    main(out)
```

```python
import sys, math, struct

def f32bits(x): return struct.unpack('<I', struct.pack('<f', x))[0]

class Gen:
    def __init__(self): self.lines = []
    def __call__(self, s):
        for l in s.split('\n'):
            l = l.strip()
            if l: self.lines.append('  ' + l)
    def label(self, s): self.lines.append(s + ':')
    def raw(self, s): self.lines.append(s)
    def text(self): return '\n'.join(self.lines) + '\n'

def vr(base, n): return f'v[{base}:{base+n-1}]'
def mfma(d, a, b, c):
    cs = '0' if c is None else vr(c, 16)
    return f'v_mfma_f32_32x32x16_bf16 {vr(d,16)}, {vr(a,4)}, {vr(b,4)}, {cs}'

OPT = dict(stamps=False, st='sc1', ld='', spin=200000, pf=5)
NAME = 'concat_heads__sliding_block__softmax_full_mha__prompt_kernel'
STAMP_BASE = 0x2000000
def stamp(g, i, real=False, q=False):
    if OPT.get('tl'):
        if i in (0, 2, 3, 4, 6, 8, 9, 10, 11, 12, 13): g(f's_memrealtime s[{70+2*i}:{71+2*i}]')
        if i == 6: g('s_memtime s[80:81]')
        if i == 8: g('s_memtime s[84:85]')
        return
    if not OPT['stamps']: return
    import inspect
    if OPT.get('qkvst') and 5 <= i <= 13:
        caller = inspect.stack()[1].function
        if caller != 'qkv_compute': return
    if (OPT.get('attst') or OPT.get('probe') or OPT.get('tailst')) and 2 <= i <= 12 and not q: return
    op = 's_memrealtime' if real else 's_memtime'
    g(f'{op} s[{70+2*i}:{71+2*i}]')
def stamp_dump(g):
    if not OPT['stamps']: return
    g('s_waitcnt lgkmcnt(0) vmcnt(0)')
    g(f's_add_u32 s64, s20, {STAMP_BASE}')
    g(f's_addc_u32 s65, s21, 0')
    g('s_mov_b32 s66, 0x100000')
    g('s_mov_b32 s67, 0x20000')
    g('s_mov_b64 exec, -1')
    g('v_mov_b32 v1, 0')
    for i in range(16):
        g(f'v_writelane_b32 v1, s{70+2*i}, {i}')
    g('s_lshl_b32 s68, s2, 3')
    g('s_add_u32 s68, s68, s3')
    g('s_lshl_b32 s68, s68, 6')
    g('v_lshlrev_b32 v3, 2, v0')
    g('v_cmp_gt_u32 vcc, 16, v0')
    g('s_and_saveexec_b64 s[62:63], vcc')
    g('buffer_store_dword v1, v3, s[64:67], s68 offen')
    g('s_waitcnt vmcnt(0)')

WS_Q = 0
WS_KV = 0x400000
WS_O = 0xC00000
WS_CNT = 0x1000000
CNT_A, CNT_B, CNT_OA, CNT_OB = 0, 16 * 256, 32 * 256, 48 * 256
QSCALE = (28 ** -0.5) * math.log2(math.e)
NEGBIG = 0xf149f2ca
POSBIG = 0x7149f2ca
LDS_BYTES = 163840

def srd(g, dst, lo, hi, nbytes, add=0):
    if add:
        g(f's_add_u32 s{dst}, s{lo}, {add}')
        g(f's_addc_u32 s{dst+1}, s{hi}, 0')
    else:
        g(f's_mov_b32 s{dst}, s{lo}')
        g(f's_mov_b32 s{dst+1}, s{hi}')
    g(f's_mov_b32 s{dst+2}, {nbytes}')
    g(f's_mov_b32 s{dst+3}, 0x20000')
def ST(): return (' ' + OPT['st']) if OPT['st'] else ''
def INL(): return (' ' + OPT['inl']) if OPT.get('inl') else ''
def LD(): return (' ' + OPT['ld']) if OPT['ld'] else ''
lab = [0]
def newlab(p):
    lab[0] += 1
    return f'L{p}_{lab[0]}'

def spin_until(g, vdst, voff, target, tmp=205):
    l0 = newlab('poll'); l1 = newlab('pdone')
    g(f's_mov_b32 s68, {OPT["spin"]}')
    g.label(l0)
    g(f'buffer_load_dword v{vdst}, v{voff}, s[64:67], 0 offen sc1')
    g('s_waitcnt vmcnt(0)')
    g(f'v_cmp_ne_u32 vcc, {target}, v{vdst}')
    g('s_nop 4')
    g(f's_cbranch_vccz {l1}')
    if OPT.get('sleep', 1): g(f's_sleep {OPT.get("sleep", 1)}')
    g('s_sub_u32 s68, s68, 1')
    g('s_cmp_lg_u32 s68, 0')
    g(f's_cbranch_scc1 {l0}')
    g.label(l1)
LFLAG = 65536 - 64
def group_wait(g, leader, word, vdst, voff, target):
    lf = newlab('follow'); ld = newlab('gdone'); lp = newlab('lspin')
    g(f'v_mov_b32 v204, {LFLAG + 4*word}')
    g(f's_cmp_lg_u32 s3, {leader}')
    g(f's_cbranch_scc1 {lf}')
    spin_until(g, vdst, voff, target)
    g('v_mov_b32 v205, 1')
    g('ds_write_b32 v204, v205')
    g('s_waitcnt lgkmcnt(0)')
    g(f's_branch {ld}')
    g.label(lf)
    g(f's_mov_b32 s68, {OPT["spin"] * 16}')
    g.label(lp)
    g('ds_read_b32 v205, v204')
    g('s_waitcnt lgkmcnt(0)')
    g('v_readfirstlane_b32 s47, v205')
    g('s_cmp_lg_u32 s47, 0')
    g(f's_cbranch_scc1 {ld}')
    g('s_sleep 1')
    g('s_sub_u32 s68, s68, 1')
    g('s_cmp_lg_u32 s68, 0')
    g(f's_cbranch_scc1 {lp}')
    g.label(ld)

WROW = 176
WSTG = 64 * WROW
NCH = 14
def prologue(g):
    g('s_and_b32 s40, s2, 7')
    g('s_lshr_b32 s41, s2, 3')
    g('s_lshr_b32 s22, s40, 1')
    g('s_lshl_b32 s22, s22, 2')
    g('s_and_b32 s42, s41, 3')
    g('s_add_u32 s22, s22, s42')
    g('s_and_b32 s23, s40, 1')
    g('s_lshl_b32 s23, s23, 3')
    g('s_lshr_b32 s42, s41, 2')
    g('s_add_u32 s23, s23, s42')
    g('s_add_u32 s69, s23, 1')
    g('s_and_b32 s69, s69, 7')
    g('s_and_b32 s42, s23, 8')
    g('s_or_b32 s69, s69, s42')
    g('s_cmp_lt_u32 s3, 4')
    g('s_cbranch_scc1 Lcompute')

def kvb_srd(g):
    g('s_and_b32 s40, s2, 7')
    g('s_bfe_u32 s41, s2, 0x10003')
    g('s_lshl_b32 s40, s40, 1')
    g('s_add_u32 s40, s40, s41')
    g('s_lshl_b32 s47, s40, 18')
    g(f's_add_u32 s47, s47, {WS_KV + 0x400000}')
    g('s_add_u32 s32, s20, s47')
    g('s_addc_u32 s33, s21, 0')
    g('s_mov_b32 s34, 0x40000')
    g('s_mov_b32 s35, 0x20000')
    g('s_lshl_b32 s55, s3, 12')
def stage_tile(g, st):
    g(f's_add_u32 s54, s55, {st*32768}')
    g(f's_add_u32 m0, s55, {(st&3)*32768}')
    g('s_nop 0')
    for i in range(4):
        g(f'buffer_load_dwordx4 v2, s[32:35], s54 offen offset:{i*1024}{LD()} lds')
def init_dma_compute(g):
    kvb_srd(g)
    stage_tile(g, 0)
    stage_tile(g, 1)

def pf_lines(g, br, part, vt, vd):
    if part == 'x':
        lo, hi = (10, 11) if br else (4, 5)
        srd(g, 24, lo, hi, 1835008)
        g('s_bfe_u32 s46, s2, 0x20001')
        g('s_mul_i32 s46, s46, 458752')
        g('s_lshr_b32 s47, s2, 3')
        g('s_mul_i32 s47, s47, 14336')
        g('s_add_u32 s46, s46, s47')
        g(f'v_lshlrev_b32 v{vt}, 7, v0')
        g(f'v_add_u32 v{vt}, s46, v{vt}')
        g(f'buffer_load_dword v{vd}, v{vt}, s[24:27], 0 offen')
        g(f'v_add_u32 v{vt}, 8192, v{vt}')
        g('s_mov_b64 exec, 0x0000ffffffffffff') if False else None
        g('v_cmp_gt_u32 vcc, 48, v0')
        g('s_and_saveexec_b64 s[44:45], vcc')
        g(f'buffer_load_dword v{vd+1}, v{vt}, s[24:27], 0 offen')
        g('s_mov_b64 exec, s[44:45]')
    else:
        lo, hi = (12, 13) if br else (6, 7)
        srd(g, 24, lo, hi, 1204224)
        g('s_and_b32 s46, s2, 1')
        g('s_mul_i32 s46, s46, 1280')
        g('s_lshr_b32 s47, s2, 3')
        g('s_mul_i32 s47, s47, 37632')
        g('s_add_u32 s46, s46, s47')
        for k in range(3):
            g(f'v_add_u32 v{vt}, {64*k}, v0')
            g(f'v_mul_u32_u24 v{vt+1}, 5958, v{vt}')
            g(f'v_lshrrev_b32 v{vt+1}, 16, v{vt+1}')
            g(f'v_mul_u32_u24 v{vt+2}, 11, v{vt+1}')
            g(f'v_sub_u32 v{vt+2}, v{vt}, v{vt+2}')
            g(f'v_mul_u32_u24 v{vt+1}, 2688, v{vt+1}')
            g(f'v_lshl_add_u32 v{vt+1}, v{vt+2}, 7, v{vt+1}')
            g(f'v_add_u32 v{vt+1}, s46, v{vt+1}')
            if k == 2:
                g('v_cmp_gt_u32 vcc, 26, v0')
                g('s_and_saveexec_b64 s[44:45], vcc')
            g(f'buffer_load_dword v{vd+k}, v{vt+1}, s[24:27], 0 offen')
            if k == 2: g('s_mov_b64 exec, s[44:45]')

def PREFETCH_A(g):
    l1 = newlab('pf'); l2 = newlab('pf'); ld = newlab('pf')
    g('s_cmp_ge_u32 s3, 2')
    g(f's_cbranch_scc1 {l1}')
    srd(g, 24, 4, 5, 1835008)
    g('s_mul_i32 s46, s2, 7168')
    g('s_lshl_b32 s47, s3, 12')
    g('s_add_u32 s46, s46, s47')
    g('v_add_u32 v20, s46, v2')
    for i in range(4):
        g(f'buffer_load_dwordx4 v[{144+4*i}:{147+4*i}], v20, s[24:27], 0 offen offset:{i*1024}')
    g(f's_branch {ld}')
    g.label(l1)
    g('s_cmp_eq_u32 s3, 2')
    g(f's_cbranch_scc0 {l2}')
    srd(g, 24, 6, 7, 1204224)
    g('s_mul_i32 s46, s2, 4704')
    g('v_add_u32 v20, s46, v2')
    g('v_add_u32 v21, 4096, v20')
    for i in range(5):
        g(f'buffer_load_dwordx4 v[{144+4*i}:{147+4*i}], v{20 if i < 4 else 21}, s[24:27], 0 offen offset:{(i%4)*1024}')
    g(f's_branch {ld}')
    g.label(l2)
    g('s_mul_i32 s46, s2, 1568')
    g('v_add_u32 v20, s46, v2')
    srd(g, 24, 8, 9, 448*896)
    for i in range(2):
        g(f'buffer_load_dwordx4 v[{144+4*i}:{147+4*i}], v20, s[24:27], 0 offen offset:{i*1024}')
    srd(g, 28, 14, 15, 448*896)
    for i in range(2):
        g(f'buffer_load_dwordx4 v[{152+4*i}:{155+4*i}], v20, s[28:31], 0 offen offset:{i*1024}')
    g.label(ld)

def qkv_compute(g):
    g.label('Lcompute')
    g('v_and_b32 v4, 31, v0')
    g('s_lshl_b32 s44, s3, 5')
    g('v_add_u32 v4, s44, v4')
    g('v_lshlrev_b32 v4, 7, v4')
    g('v_bfe_u32 v5, v0, 1, 3')
    g('v_lshrrev_b32 v6, 5, v0')
    for ks in range(4):
        g(f'v_add_u32 v7, {2*ks}, v6')
        g('v_xor_b32 v7, v7, v5')
        g(f'v_lshl_add_u32 v{12+ks}, v7, 4, v4')
    g('v_bfe_u32 v4, v0, 2, 2')
    g('v_and_b32 v5, 3, v0')
    g('v_bfe_u32 v7, v0, 4, 1')
    g('v_lshlrev_b32 v7, 5, v7')
    g('v_lshl_add_u32 v7, v5, 3, v7')
    g('v_lshlrev_b32 v4, 1, v4')
    g('v_add_u32 v4, v4, v6')
    g(f'v_mul_u32_u24 v4, {2*WROW}, v4')
    g('v_add_u32 v4, v4, v7')
    g('v_add_u32 v16, 65536, v4')
    g('v_lshlrev_b32 v2, 4, v0')
    g('s_waitcnt lgkmcnt(0)')
    if OPT.get('wsoff'):
        g(f's_add_u32 s20, s20, {OPT["wsoff"] << 20}')
        g('s_addc_u32 s21, s21, 0')
    stamp(g, 1)
    srd(g, 32, 20, 21, 0x1000000)
    srd(g, 64, 20, 21, 0x4000, WS_CNT)
    g('s_or_b32 s44, s2, s3')
    g('s_cmp_lg_u32 s44, 0')
    g('s_cbranch_scc1 Lnoinit')
    g('v_lshlrev_b32 v20, 8, v0')
    g('v_mov_b32 v21, 0')
    g('buffer_store_dword v21, v20, s[64:67], 0 offen sc1')
    g('s_waitcnt vmcnt(0)')
    srd(g, 36, 18, 19, 256)
    g('s_mov_b64 exec, 1')
    g('v_mov_b32 v21, 1')
    g('v_mov_b32 v20, 0')
    g('buffer_store_dword v21, v20, s[36:39], 0 offen sc1')
    g('s_mov_b64 exec, -1')
    g.label('Lnoinit')
    if OPT.get('codepf'):
        g('s_getpc_b64 s[24:25]')
        g.label('Lpc_here')
        g(f's_sub_u32 s24, s24, Lpc_here-{NAME}')
        g('s_subb_u32 s25, s25, 0')
        g(f's_mov_b32 s26, Lexit-{NAME}')
        g('s_mov_b32 s27, 0x20000')
        g('s_lshr_b32 s46, s2, 3')
        g('s_lshl_b32 s46, s46, 2')
        g('s_add_u32 s46, s46, s3')
        g('s_lshl_b32 s46, s46, 10')
        g('v_add_u32 v20, s46, v2')
        g('buffer_load_dwordx4 v[144:147], v20, s[24:27], 0 offen')
    if OPT.get('probe'):
        g('s_mul_i32 s46, s2, 7168')
        g('v_add_u32 v20, s46, v2')
        stamp(g, 5, q=True)
        srd(g, 24, 10, 11, 1835008)
        g('buffer_load_dword v160, v20, s[24:27], 0 offen'); g('s_waitcnt vmcnt(0)'); stamp(g, 6, q=True)
        srd(g, 24, 12, 13, 1204224)
        g('s_mul_i32 s46, s2, 4704'); g('v_add_u32 v21, s46, v2')
        g('buffer_load_dword v160, v21, s[24:27], 0 offen'); g('s_waitcnt vmcnt(0)'); stamp(g, 7, q=True)
        srd(g, 24, 4, 5, 1835008)
        g('buffer_load_dword v160, v20, s[24:27], 0 offen'); g('s_waitcnt vmcnt(0)'); stamp(g, 8, q=True)
        g('buffer_load_dword v160, v20, s[24:27], 0 offen offset:2048'); g('s_waitcnt vmcnt(0)'); stamp(g, 9, q=True)
        srd(g, 24, 6, 7, 1204224)
        g('buffer_load_dword v160, v21, s[24:27], 0 offen'); g('s_waitcnt vmcnt(0)'); stamp(g, 10, q=True)
        g('buffer_load_dword v160, v21, s[24:27], 0 offen offset:2048'); g('s_waitcnt vmcnt(0)'); stamp(g, 11, q=True)
    if OPT.get('pf', 1) in (2, 4):
        l1 = newlab('pfb'); ld = newlab('pfb')
        g('s_cmp_ge_u32 s3, 2')
        g(f's_cbranch_scc1 {l1}')
        srd(g, 24, 10, 11, 1835008)
        g('s_mul_i32 s46, s2, 7168')
        g('s_lshl_b32 s47, s3, 12')
        g('s_add_u32 s46, s46, s47')
        g('v_add_u32 v20, s46, v2')
        for i in range(4):
            g(f'buffer_load_dwordx4 v[{160+4*i}:{163+4*i}], v20, s[24:27], 0 offen offset:{i*1024}')
        g(f's_branch {ld}')
        g.label(l1)
        srd(g, 24, 12, 13, 1204224)
        g('s_mul_i32 s46, s2, 4704')
        g('s_and_b32 s47, s3, 1')
        g('s_mul_i32 s47, s47, 3072')
        g('s_add_u32 s46, s46, s47')
        g('v_add_u32 v20, s46, v2')
        for i in range(3):
            g(f'buffer_load_dwordx4 v[{160+4*i}:{163+4*i}], v20, s[24:27], 0 offen offset:{i*1024}')
        g.label(ld)
    if OPT.get('pf', 1) == 4:
        PREFETCH_A(g)
    if OPT.get('pfw'):
        g('s_waitcnt vmcnt(%d)' % (0 if OPT.get('pf') != 4 else 4))
        g('s_barrier')
    if OPT.get('pf', 1) == 3:
        l1 = newlab('pf3'); l2 = newlab('pf3'); ld = newlab('pf3')
        g('s_cmp_eq_u32 s3, 0')
        g(f's_cbranch_scc0 {l1}')
        pf_lines(g, 1, 'x', 20, 160)
        g(f's_branch {ld}')
        g.label(l1)
        g('s_cmp_eq_u32 s3, 1')
        g(f's_cbranch_scc0 {ld}')
        pf_lines(g, 1, 'w', 20, 160)
        g.label(ld)
    if OPT.get('tw'):
        g('s_mov_b64 exec, 1')
        g('v_mov_b32 v20, 0')
        g('v_mov_b32 v21, 0')
        for br_, c0r in ((1, 's23'), (0, 's69')):
            g(f's_mul_i32 s46, {c0r}, 3')
            for t in range(3):
                g(f's_add_u32 s47, s46, {t}')
                g('s_and_b32 s44, s47, 15')
                g('s_lshl_b32 s44, s44, 6')
                g('s_lshl_b32 s45, s22, 2')
                g('s_add_u32 s44, s44, s45')
                g('s_add_u32 s44, s44, s3')
                if br_: g('s_add_u32 s44, s44, 1024')
                g('s_cmp_lt_u32 s47, 16')
                g('s_cselect_b32 s45, 11, 12')
                g(f's_cselect_b32 s43, {WS_Q}, {WS_KV}')
                g('s_lshl_b32 s44, s44, s45')
                g('s_add_u32 s44, s44, s43')
                g('s_cmp_ge_u32 s47, 32')
                g('s_cselect_b32 s45, 2048, 0')
                g('s_add_u32 s44, s44, s45')
                g('buffer_store_dword v21, v20, s[32:35], s44 offen sc1')
        g('s_and_b32 s44, s2, 7')
        g('s_bfe_u32 s45, s2, 0x10003')
        g('s_lshl_b32 s44, s44, 1')
        g('s_add_u32 s44, s44, s45')
        g('s_lshr_b32 s45, s2, 4')
        g('s_lshl_b32 s45, s45, 2')
        g('s_add_u32 s45, s45, s3')
        g('s_lshl_b32 s45, s45, 4')
        g('s_add_u32 s45, s45, s44')
        g('s_lshl_b32 s45, s45, 11')
        g(f's_add_u32 s45, s45, {WS_O}')
        g('buffer_store_dword v21, v20, s[32:35], s45 offen sc1')
        g('s_add_u32 s45, s45, 0x200000')
        g('buffer_store_dword v21, v20, s[32:35], s45 offen sc1')
        g('s_mov_b64 exec, -1')
    srd(g, 36, 18, 19, 256)
    g('v_mov_b32 v30, 0')
    g('buffer_load_dword v31, v30, s[36:39], 0 offen sc1')
    def prefetch():
        if not OPT.get('pf', 1) or OPT.get('pf') == 4: return
        if OPT.get('pf') == 5:
            ld = newlab('pf5')
            g('s_cmp_ge_u32 s3, 2')
            g(f's_cbranch_scc1 {ld}')
            g('s_cmp_eq_u32 s3, 0')
            g('s_cselect_b32 s24, s8, s14')
            g('s_cselect_b32 s25, s9, s15')
            g(f's_mov_b32 s26, {448*896}')
            g('s_mov_b32 s27, 0x20000')
            g('s_mul_i32 s46, s2, 1568')
            g('v_add_u32 v20, s46, v2')
            for i in range(2):
                g(f'buffer_load_dwordx4 v[{168+4*i}:{171+4*i}], v20, s[24:27], 0 offen offset:{i*1024}')
            g.label(ld)
            return
        if OPT.get('pf', 1) == 3:
            l1 = newlab('pf3'); l2 = newlab('pf3'); ld = newlab('pf3')
            g('s_cmp_eq_u32 s3, 2')
            g(f's_cbranch_scc0 {l1}')
            pf_lines(g, 0, 'x', 20, 164)
            g(f's_branch {ld}')
            g.label(l1)
            g('s_cmp_eq_u32 s3, 3')
            g(f's_cbranch_scc0 {l2}')
            pf_lines(g, 0, 'w', 20, 164)
            g(f's_branch {ld}')
            g.label(l2)
            g('s_cmp_eq_u32 s3, 0')
            g('s_cselect_b32 s24, s8, s14')
            g('s_cselect_b32 s25, s9, s15')
            g(f's_mov_b32 s26, {448*896}')
            g('s_mov_b32 s27, 0x20000')
            g('s_mul_i32 s46, s2, 1568')
            g('v_add_u32 v20, s46, v2')
            for i in range(2):
                g(f'buffer_load_dwordx4 v[{168+4*i}:{171+4*i}], v20, s[24:27], 0 offen offset:{i*1024}')
            g.label(ld)
            return
        l1 = newlab('pf'); l2 = newlab('pf'); ld = newlab('pf')
        g('s_cmp_ge_u32 s3, 2')
        g(f's_cbranch_scc1 {l1}')
        srd(g, 24, 4, 5, 1835008)
        g('s_mul_i32 s46, s2, 7168')
        g('s_lshl_b32 s47, s3, 12')
        g('s_add_u32 s46, s46, s47')
        g('v_add_u32 v20, s46, v2')
        for i in range(4):
            g(f'buffer_load_dwordx4 v[{144+4*i}:{147+4*i}], v20, s[24:27], 0 offen offset:{i*1024}')
        g(f's_branch {ld}')
        g.label(l1)
        g('s_cmp_eq_u32 s3, 2')
        g(f's_cbranch_scc0 {l2}')
        srd(g, 24, 6, 7, 1204224)
        g('s_mul_i32 s46, s2, 4704')
        g('v_add_u32 v20, s46, v2')
        g('v_add_u32 v21, 4096, v20')
        for i in range(5):
            g(f'buffer_load_dwordx4 v[{144+4*i}:{147+4*i}], v{20 if i < 4 else 21}, s[24:27], 0 offen offset:{(i%4)*1024}')
        g(f's_branch {ld}')
        g.label(l2)
        g('s_mul_i32 s46, s2, 1568')
        g('v_add_u32 v20, s46, v2')
        srd(g, 24, 8, 9, 448*896)
        for i in range(2):
            g(f'buffer_load_dwordx4 v[{144+4*i}:{147+4*i}], v20, s[24:27], 0 offen offset:{i*1024}')
        srd(g, 28, 14, 15, 448*896)
        for i in range(2):
            g(f'buffer_load_dwordx4 v[{152+4*i}:{155+4*i}], v20, s[28:31], 0 offen offset:{i*1024}')
        g.label(ld)
    XF = 80; WF = 88
    ACCS = {1: 32, 0: 144}
    PS = {1: 112, 0: 208}
    g('v_and_b32 v18, 31, v0')
    g('v_cmp_eq_u32 vcc, 28, v18')
    g('v_mov_b32 v19, 0x3f803f80')
    g('s_nop 0')
    g('v_cndmask_b32_e64 v18, 0, v19, vcc')
    g('s_mov_b32 s60, 0')
    g('s_mov_b32 s61, -1')
    g('s_mov_b32 s58, 0xf0000000')
    g('s_mov_b32 s59, 0xf0000000')
    def reads(n, buf, part):
        kc, ks = divmod(n, 4)
        st = kc % 4
        if part == 0:
            g(f'ds_read_b128 {vr(XF+4*buf,4)}, v{12+ks} offset:{st*16384}')
        for jj in range(2):
            off = st * WSTG + (ks*16 + jj) * WROW + part * 56
            g(f'ds_read_b64_tr_b16 {vr(WF+12*buf+4*part+2*jj,2)}, v16 offset:{off}')
    def mfma1(br, buf, t, first, types2):
        types = types2[br]
        x = XF + 4*buf; wf = WF + 12*buf + 4*t; d = ACCS[br] + 16*t
        c = None if first else d
        g(mfma(d, wf, x, c) if types[t] == 'QK' else mfma(d, x, wf, c))
    def epilogue_list(br, types2):
        types = types2[br]
        c0 = 's52' if br else 's63'
        L = []
        A = L.append
        ACC = ACCS[br]; P = PS[br]
        A('s_lshl_b32 s54, s22, 2')
        A('s_add_u32 s54, s54, s3')
        if br: A('s_add_u32 s54, s54, 1024')
        for t in range(3):
            a = ACC + 16*t; p = P + 8*t
            so = (48, 49, 53)[t]
            A(f's_add_u32 s62, {c0}, {t}')
            A('s_and_b32 s56, s62, 15')
            A('s_lshl_b32 s56, s56, 6')
            A('s_add_u32 s56, s56, s54')
            if types[t] == 'QK':
                A('s_cmp_lt_u32 s62, 16\n' + f's_cselect_b32 s57, {f32bits(QSCALE):#x}, 1.0\n' + 's_cselect_b32 s45, 0, 0x3f80\n' +
                  's_cselect_b32 s46, 11, 12\n' + f's_cselect_b32 s47, {WS_Q}, {WS_KV}')
                A('s_lshl_b32 s56, s56, s46')
                A(f's_add_u32 s{so}, s56, s47')
                A('v_mov_b32 v19, s45')
                for r in range(16): A(f'v_mul_f32 v{a+r}, s57, v{a+r}')
                for i in range(8): A(f'v_cvt_pk_bf16_f32 v{p+i}, v{a+2*i}, v{a+2*i+1}')
                A(f'v_cndmask_b32_e64 v{p+6}, v{p+6}, v19, s[60:61]')
                A(f'v_cndmask_b32_e64 v{p+7}, v{p+7}, 0, s[60:61]')
            else:
                A('s_lshl_b32 s56, s56, 12')
                A(f's_add_u32 s{so}, s56, {WS_KV + 2048}')
                for i in range(8): A(f'v_cvt_pk_bf16_f32 v{p+i}, v{a+2*i}, v{a+2*i+1}')
                for i in range(8): A(f'v_cndmask_b32_e64 v{p+i}, v{p+i}, v18, s[58:59]')
            if br:
                A('s_nop 1\n' + f'buffer_store_dwordx4 {vr(p,4)}, v2, s[32:35], s{so} offen{ST()}')
                A(f'buffer_store_dwordx4 {vr(p+4,4)}, v2, s[32:35], s{so} offen offset:1024{ST()}')
        return L
    g('s_mul_i32 s52, s23, 3')
    g('s_mul_i32 s63, s69, 3')
    T0, T1, T2 = ('QK','QK','QK'), ('QK','QK','V'), ('V','V','V')
    variants = [{1: T0, 0: T0}, {1: T0, 0: T1}, {1: T1, 0: T2}, {1: T2, 0: T2}, {1: T2, 0: T0}]
    g('s_cmp_eq_u32 s23, 9')
    g('s_cbranch_scc1 Lqkv_v1')
    g('s_cmp_eq_u32 s23, 10')
    g('s_cbranch_scc1 Lqkv_v2')
    g('s_cmp_eq_u32 s23, 15')
    g('s_cbranch_scc1 Lqkv_v4')
    g('s_cmp_gt_u32 s23, 10')
    g('s_cbranch_scc1 Lqkv_v3')
    NS = NCH * 4
    SIG_AT = OPT.get('sig_at', 36)
    for vi, types in enumerate(variants):
        if vi: g.label(f'Lqkv_v{vi}')
        g('s_barrier')
        if vi == 0: stamp(g, 2)
        for part in range(3): reads(0, 0, part)
        prefetch()
        epi = []
        EP0, EPN = OPT.get('ep0', 28), OPT.get('epn', 2)
        def fill(k):
            for _ in range(k):
                if epi: g(epi.pop(0))
        for n in range(NS):
            br = 1 if n < 28 else 0
            boundary = (n + 1) % 4 == 0 and n + 1 < NS
            nxt = n + 1 < NS
            buf = n & 1
            first = n % 28 == 0
            if n == EP0:
                epi = ['s_nop 7'] + epilogue_list(1, types)
                per = -(-len(epi) // (EPN * 3))
            inter = EP0 <= n < EP0 + EPN
            if boundary:
                if OPT.get('qkvst') and vi == 0 and n + 1 == SIG_AT: stamp(g, 11)
                g('s_waitcnt vmcnt(0) lgkmcnt(0)' if n + 1 in (SIG_AT, 24) else 's_waitcnt lgkmcnt(0)')
                if OPT.get('qkvst') and vi == 0 and n + 1 == SIG_AT: stamp(g, 12)
                g('s_barrier')
                if OPT.get('qkvst') and vi == 0:
                    c1 = (n + 1) // 4
                    m = {2: 5, 4: 6, 6: 7, 8: 8, 10: 9, 11: 10, 12: 13}
                    if c1 in m: stamp(g, m[c1])
                if n + 1 == SIG_AT:
                    sk = newlab('sigB'); ok = newlab('inited'); lp = newlab('initspin')
                    g('s_cmp_lg_u32 s3, 0')
                    g(f's_cbranch_scc1 {sk}')
                    g('v_readfirstlane_b32 s47, v31')
                    g('s_cmp_lg_u32 s47, 0')
                    g(f's_cbranch_scc1 {ok}')
                    g(f's_mov_b32 s68, {OPT["spin"]}')
                    g.label(lp)
                    g('buffer_load_dword v31, v30, s[36:39], 0 offen sc1')
                    g('s_waitcnt vmcnt(0)')
                    g('v_readfirstlane_b32 s47, v31')
                    g('s_cmp_lg_u32 s47, 0')
                    g(f's_cbranch_scc1 {ok}')
                    g('s_sub_u32 s68, s68, 1')
                    g('s_cmp_lg_u32 s68, 0')
                    g(f's_cbranch_scc1 {lp}')
                    g.label(ok)
                    g('s_mov_b64 exec, 1')
                    g('v_mov_b32 v1, 1')
                    g('s_lshl_b32 s47, s23, 8')
                    g(f's_add_u32 s47, s47, {CNT_B}')
                    g('v_mov_b32 v29, s47')
                    g('buffer_atomic_add v1, v29, s[64:67], 0 offen sc1')
                    g('s_mov_b64 exec, -1')
                    g.label(sk)
            else:
                g('s_waitcnt lgkmcnt(4)')
            mfma1(br, buf, 0, first, types)
            if nxt: reads(n + 1, buf ^ 1, 0)
            if inter: fill(per)
            if not boundary: g(f's_waitcnt lgkmcnt({5 if nxt else 2})')
            mfma1(br, buf, 1, first, types)
            if nxt: reads(n + 1, buf ^ 1, 1)
            if inter: fill(per)
            if not boundary: g(f's_waitcnt lgkmcnt({5 if nxt else 0})')
            mfma1(br, buf, 2, first, types)
            if nxt: reads(n + 1, buf ^ 1, 2)
            if inter: fill(per)
            if n == 27 and vi == 0: stamp(g, 3)
            if OPT.get('sbar', 0) and n == EP0 + EPN - 1:
                g('s_barrier')
        assert not epi
        if vi == 0: stamp(g, 14)
        g('s_barrier')
        if vi == 0: stamp(g, 4)
        init_dma_compute(g)
        for x in epilogue_list(0, types): g(x)
        if vi < 4: g('s_branch Lqkv_fin')
    g.label('Lqkv_fin')
    g('s_branch Lattn_setup')

def qkv_loader(g):
    g.label('Lloader')
    g('s_sub_u32 s43, s3, 4')
    g('s_lshl_b32 s44, s22, 7')
    g('s_lshl_b32 s45, s43, 5')
    g('s_add_u32 s44, s44, s45')
    g('v_lshrrev_b32 v10, 3, v0')
    g('v_add_u32 v10, s44, v10')
    g('v_mul_u32_u24 v10, 896, v10')
    g('v_lshrrev_b32 v11, 4, v0')
    g('v_and_b32 v12, 7, v0')
    g('v_xor_b32 v12, v12, v11')
    g('v_lshl_add_u32 v2, v12, 4, v10')
    g('v_xor_b32 v12, 4, v12')
    g('v_lshl_add_u32 v3, v12, 4, v10')
    g('v_add_u32 v3, 7168, v3')
    g('v_add_u32 v4, 14336, v2')
    g('v_add_u32 v5, 14336, v3')
    g('s_lshl_b32 s46, s43, 12')
    g('s_lshl_b32 s47, s43, 10')
    g('s_add_u32 s47, s47, 65536')
    g('s_lshl_b32 s44, s43, 6')
    g('s_mul_i32 s50, s23, 168')
    g('s_mul_i32 s51, s69, 168')
    def wcalc(n):
        g('v_add_u32 v10, s44, v0')
        if n: g(f'v_add_u32 v10, {256*n}, v10')
        g('v_mul_u32_u24 v11, 5958, v10')
        g('v_lshrrev_b32 v11, 16, v11')
        g('v_mul_u32_u24 v12, 11, v11')
        g('v_sub_u32 v12, v10, v12')
        g('v_and_b32 v13, 48, v11')
        g('v_and_b32 v14, 3, v11')
        g('v_lshl_add_u32 v13, v14, 2, v13')
        g('v_bfe_u32 v14, v11, 2, 2')
        g('v_add_u32 v13, v13, v14')
        g('v_mul_u32_u24 v13, 2688, v13')
        g(f'v_lshl_add_u32 v{6+n}, v12, 4, v13')
    wcalc(0)
    g('s_waitcnt lgkmcnt(0)')
    if OPT.get('tlw') == 4: g('s_memrealtime s[74:75]')
    if OPT.get('wsoff'):
        g(f's_add_u32 s20, s20, {OPT["wsoff"] << 20}')
        g('s_addc_u32 s21, s21, 0')
    srd(g, 24, 10, 11, 1835008)
    srd(g, 28, 12, 13, 1204224)
    def rot_init(greg):
        g(f's_add_u32 s52, {greg}, s22')
        g('s_mul_i32 s53, s52, 37')
        g('s_lshr_b32 s53, s53, 8')
        g('s_mul_i32 s53, s53, 7')
        g('s_sub_u32 s52, s52, s53')
    def kc_offsets(c):
        if c == 7:
            if OPT.get('rot', 1): rot_init('s69')
            else: g('s_mov_b32 s52, 0')
        g('s_lshl_b32 s48, s52, 7')
        g('s_mul_i32 s49, s52, 172032')
        g(f's_add_u32 s49, s49, {"s50" if c < 7 else "s51"}')
        g('s_add_u32 s52, s52, 1')
        g('s_cmp_eq_u32 s52, 7')
        g('s_cselect_b32 s52, 0, s52')
    def issueX(c):
        st = c % 4
        sx = 24 if c < 7 else 32
        kc_offsets(c)
        for e in range(4):
            g(f's_add_u32 m0, s46, {st*16384 + e*1024}')
            g('s_nop 0')
            g(f'buffer_load_dwordx4 v{2+e}, s[{sx}:{sx+3}], s48 offen{INL()} lds')
    def issueW(c, ns=(0, 1, 2)):
        st = c % 4
        sw = 28 if c < 7 else 36
        for n in ns:
            if n == 2:
                sk = newlab('qs')
                g('s_cmp_eq_u32 s43, 3')
                g(f's_cbranch_scc1 {sk}')
            g(f's_add_u32 m0, s47, {st*WSTG + n*4096}')
            g('s_nop 0')
            g(f'buffer_load_dwordx4 v{6+n}, s[{sw}:{sw+3}], s49 offen{INL()} lds')
            if n == 2: g.label(sk)
    if OPT.get('rot', 1): rot_init('s23')
    else: g('s_mov_b32 s52, 0')
    def issue(c):
        issueX(c); issueW(c)
    if OPT.get('pfw') == 1: g('s_barrier')
    issueX(0)
    issueW(0, (0,))
    wcalc(1); issueW(0, (1,))
    wcalc(2); issueW(0, (2,))
    if OPT.get('tlw') == 4: g('s_memrealtime s[76:77]')
    srd(g, 32, 4, 5, 1835008)
    srd(g, 36, 6, 7, 1204224)
    srd(g, 64, 20, 21, 0x4000, WS_CNT)
    g('s_and_b32 s40, s2, 7')
    g('s_bfe_u32 s41, s2, 0x10003')
    g('s_lshl_b32 s40, s40, 1')
    g('s_add_u32 s40, s40, s41')
    g('v_min_u32 v30, 2, v0')
    g('v_lshlrev_b32 v30, 4, v30')
    g('v_add_u32 v30, s40, v30')
    g('v_mul_u32_u24 v30, 43, v30')
    g('v_lshrrev_b32 v30, 7, v30')
    g('v_lshlrev_b32 v31, 8, v30')
    g(f'v_add_u32 v203, {CNT_B}, v31')
    if OPT.get('pfw') == 2: g('s_barrier')
    for c in range(1, 3): issue(c)
    issued = 2
    HOLD = OPT.get('hold', 9) if OPT.get('sbar', 0) else 99
    for c in range(NCH):
        rem = issued - c
        if c == 13:
            skq = newlab('w13'); skr = newlab('w13')
            g('s_cmp_lg_u32 s3, 4')
            g(f's_cbranch_scc1 {skq}')
            g('s_waitcnt vmcnt(1)')
            g(f's_branch {skr}')
            g.label(skq)
            g('s_waitcnt vmcnt(0)')
            g.label(skr)
        else:
            g(f's_waitcnt vmcnt({6*rem})')
        if OPT.get('tlw') == 4 and c == 0: g('s_memrealtime s[86:87]')
        g('s_barrier')
        if c + 3 < NCH and not (HOLD <= c + 3 <= 10):
            issue(c + 3); issued = c + 3
        if OPT.get('sbar', 0) and c == 7:
            g('s_barrier')
            for cc in range(HOLD, 11):
                issue(cc); issued = cc
        if c == 10: attn_setup(g)
        if c == 11: set_mask(g, 32, 'first')
        if c == 12:
            skp = newlab('p12')
            g('s_cmp_lg_u32 s3, 4')
            g(f's_cbranch_scc1 {skp}')
            g('buffer_load_dword v201, v203, s[64:67], 0 offen sc1')
            g.label(skp)
    g('s_cmp_lg_u32 s3, 4')
    g('s_cbranch_scc1 Lh1_polled')
    g('s_waitcnt vmcnt(0)')
    g('v_cmp_ne_u32 vcc, 16, v201')
    g('s_nop 4')
    g('s_cbranch_vccz Lh1_polled')
    spin_until(g, 201, 203, 16)
    g.label('Lh1_polled')
    g('s_barrier')
    stamp(g, 4)
    g('s_add_u32 s47, s44, 0x200000')
    g('s_mov_b32 m0, s51')
    g('s_nop 0')
    for i in range(2):
        g(f'buffer_load_dwordx4 v2, s[24:27], s47 offen offset:{i*1024}{LD()} lds')
    stage_tile(g, 0)
    stage_tile(g, 1)
    stamp(g, 5)
    g('s_waitcnt vmcnt(4)')
    g('s_barrier')
    g('s_branch Lattn_go')

K2_SCR = 131072
QL = 200
def set_mask(g, dst, kind):
    for r in range(16):
        br_ = (r & 3) + 8 * (r >> 2)
        op = 'v_cmp_le_i32' if kind == 'diag' else 'v_cmp_gt_i32'
        g(f'{op} vcc, {br_}, v24')
        g('s_nop 1')
        g(f'v_cndmask_b32_e64 v{dst+r}, v25, 0, vcc')
def attn_setup(g):
    kvb_srd(g)
    g('s_lshr_b32 s41, s2, 4')
    g('s_and_b32 s42, s3, 3')
    g('s_lshr_b32 s43, s3, 2')
    g('v_lshlrev_b32 v2, 4, v0')
    g('s_lshl_b32 s44, s40, 6')
    g('s_lshl_b32 s45, s41, 2')
    g('s_add_u32 s45, s45, s42')
    g('s_add_u32 s44, s44, s45')
    g('s_lshl_b32 s44, s44, 11')
    srd(g, 24, 20, 21, 0x400000)
    g('s_sub_u32 s28, s32, 0x400000')
    g('s_subb_u32 s29, s33, 0')
    g('s_mov_b32 s30, 0x40000')
    g('s_mov_b32 s31, 0x20000')
    srd(g, 36, 20, 21, 0x400000, WS_O)
    g('v_min_u32 v30, 2, v0')
    g('v_lshlrev_b32 v30, 4, v30')
    g('v_add_u32 v30, s40, v30')
    g('v_mul_u32_u24 v30, 43, v30')
    g('v_lshrrev_b32 v30, 7, v30')
    g('v_lshlrev_b32 v31, 8, v30')
    g(f'v_add_u32 v203, {CNT_B}, v31')
    g('s_lshl_b32 s47, s41, 2')
    g('s_add_u32 s47, s47, s3')
    g('s_sub_u32 s47, s47, 8')
    g('s_lshl_b32 s50, s47, 12')
    g('s_cmp_lt_i32 s47, 0')
    g('s_cselect_b32 s50, 0x40000000, s50')
    g('v_add_u32 v28, s50, v2')
    g('s_add_u32 s47, s47, 8')
    g('s_lshl_b32 s50, s47, 12')
    g('v_add_u32 v29, s50, v2')
    g('s_lshl_b32 s47, s42, 12')
    g('v_add_u32 v3, s47, v2')
    g('s_lshl_b32 s47, s43, 14')
    g('v_add_u32 v4, s47, v2')
    g('v_add_u32 v5, 32768, v4')
    g(f'v_add_u32 v6, {K2_SCR}, v3')
    g('s_lshl_b32 s47, s42, 8')
    g(f's_add_u32 s47, s47, {K2_SCR+16384}')
    g('v_lshlrev_b32 v7, 2, v0')
    g('v_add_u32 v7, s47, v7')
    g('s_lshl_b32 s47, s42, 11')
    g(f's_add_u32 s51, s47, {K2_SCR}')
    g(f'v_add_u32 v{QL}, s51, v2')
    g('v_and_b32 v24, 31, v0')
    g('v_lshrrev_b32 v25, 5, v0')
    g('v_lshlrev_b32 v25, 2, v25')
    g('v_sub_u32 v24, v24, v25')
    g(f'v_mov_b32 v25, {NEGBIG:#x}')
    g('s_mov_b32 s60, 0')
    g('s_mov_b32 s61, -1')
    srd(g, 56, 20, 21, 0x1000000)

def phase_attn(g):
    g.label('Lattn_setup')
    QA = 8; QB = 16; MASK = 32; S0 = 48; S1 = 64; P = 80; OA = 88; OB = 104; KF = 120; VF = 128; T = 136
    TK = 144; TS = 152
    MNA = 26; MNB = 27
    SB = [S0, S1]
    attn_setup(g)
    set_mask(g, MASK, 'diag')
    stamp(g, 5)
    g('s_waitcnt vmcnt(4)')
    g('s_barrier')
    g.label('Lattn_go')
    g('s_cmp_eq_u32 s43, 99') if False else None
    def dma4(vreg, s, s_goff, s_m0, n=4, first=0):
        g(f's_mov_b32 m0, {s_m0}')
        g('s_nop 0')
        for i in range(first, first + n):
            g(f'buffer_load_dwordx4 v{vreg}, s[{s}:{s+3}], {s_goff} offen offset:{i*1024}{LD()} lds')
    stamp(g, 6)
    g(f'ds_read_b128 {vr(QB,4)}, v{QL}')
    g(f'ds_read_b128 {vr(QB+4,4)}, v{QL} offset:1024')

    def rowmax(sbuf, t):
        g(f'v_max3_f32 v{t}, v{sbuf}, v{sbuf+1}, v{sbuf+2}')
        for r in range(3, 15, 2):
            g(f'v_max3_f32 v{t}, v{t}, v{sbuf+r}, v{sbuf+r+1}')
        g(f'v_max_f32 v{t}, v{t}, v{sbuf+15}')
        g(f'v_mov_b32 v{t+1}, v{t}')
        g('s_nop 1')
        g(f'v_permlane32_swap_b32 v{t}, v{t+1}')
        g('s_nop 1')
        g(f'v_max_f32 v{t}, v{t}, v{t+1}')
    def set_standin(sbuf, q, mneg):
        t = T
        rowmax(sbuf, t)
        g(f'v_sub_f32 v{t}, 0, v{t}')
        g(f'v_cvt_pk_bf16_f32 v{t}, v{t}, 0')
        g(f'v_lshlrev_b32 v{mneg}, 16, v{t}')
        g('s_mov_b64 exec, s[60:61]')
        g(f'v_mov_b32 v{q+4+2}, v{t}')
        g('s_mov_b64 exec, -1')
    def slots(br, kh):
        if br == 1: return (2048, 0, None) if kh == 0 else (0, 1024, 2048)
        return (0, 1024, None) if kh == 0 else (2048, 0, 3072)
    def write_half(kh, br, O, mn):
        oo, mo, lo = slots(br, kh)
        src = O + 8 if kh == 0 else O
        g(f'ds_write_b128 v6, {vr(src,4)} offset:{oo}')
        g(f'ds_write_b128 v6, {vr(src+4,4)} offset:{oo+1024}')
        g(f'ds_write_b32 v7, v{mn} offset:{mo}')
        if kh == 1: g(f'ds_write_b32 v7, v{O+12} offset:{lo}')
    FB = 168
    def finish_half(tag, kh, br, O, mn, q, tmp):
        base = O + 8*kh
        oo, mo, lo = slots(br, 1 - kh)
        g(f'ds_read_b128 {vr(tmp,4)}, v6 offset:{oo}')
        g(f'ds_read_b128 {vr(tmp+4,4)}, v6 offset:{oo+1024}')
        g(f'ds_read_b32 v{T}, v7 offset:{mo}')
        if kh == 0: g(f'ds_read_b32 v{T+5}, v7 offset:{lo}')
        lp = T + 5 if kh == 0 else tmp + 4
        g('s_waitcnt lgkmcnt(0)')
        g(f'v_min_f32 v{T+1}, v{mn}, v{T}')
        g(f'v_sub_f32 v{T+2}, v{T+1}, v{mn}')
        g(f'v_sub_f32 v{T+3}, v{T+1}, v{T}')
        g(f'v_exp_f32 v{T+2}, v{T+2}')
        g(f'v_exp_f32 v{T+3}, v{T+3}')
        g('s_nop 0')
        g(f'v_mul_f32 v{T}, v{O+12}, v{T+2}')
        g(f'v_fmac_f32 v{T}, v{lp}, v{T+3}')
        for r in range(8): g(f'v_mul_f32 v{base+r}, v{base+r}, v{T+2}')
        g(f'v_mov_b32 v{T+1}, v{T}')
        for r in range(8): g(f'v_fmac_f32 v{base+r}, v{tmp+r}, v{T+3}')
        g(f'v_permlane32_swap_b32 v{T}, v{T+1}')
        g(f'v_mul_f32 v{T+4}, 0, v{base}')
        for r in range(1, 8): g(f'v_fmac_f32 v{T+4}, 0, v{base+r}')
        g(f'v_add_f32 v{T+4}, v{T+4}, v{T+1}')
        g(f's_mov_b32 s47, {f32bits(2.0**100):#x}')
        g(f'v_cmp_ngt_f32 vcc, s47, v{T+4}')
        g('s_nop 4')
        g(f's_cbranch_vccz L{tag}_ok')
        fallback(tag, br, O, q)
        g(f'v_mov_b32 v{T}, v{O+12}')
        g(f'v_mov_b32 v{T+1}, v{O+12}')
        g('s_nop 1')
        g(f'v_permlane32_swap_b32 v{T}, v{T+1}')
        g('s_nop 1')
        g.label(f'L{tag}_ok')
        g(f'v_rcp_f32 v{T+1}, v{T+1}')
        g('s_lshl_b32 s47, s41, 2')
        g('s_add_u32 s47, s47, s42')
        for r in range(8): g(f'v_mul_f32 v{base+r}, v{base+r}, v{T+1}')
        g(f's_add_u32 s47, s47, {br*64}')
        g('s_lshl_b32 s47, s47, 4')
        g('s_add_u32 s47, s47, s40')
        g('s_lshl_b32 s47, s47, 11')
        for i in range(4): g(f'v_cvt_pk_bf16_f32 v{tmp+i}, v{base+2*i}, v{base+2*i+1}')
        if kh == 1:
            g(f'v_cndmask_b32_e64 v{tmp+2}, v{tmp+2}, 0, s[60:61]')
            g(f'v_cndmask_b32_e64 v{tmp+3}, v{tmp+3}, 0, s[60:61]')
        g('s_nop 1')
        g(f'buffer_store_dwordx4 {vr(tmp,4)}, v2, s[36:39], s47 offen offset:{kh*1024}{ST()}')
        g('s_nop 1')
    def fallback(tag, br, O, q):
        FS, FK, FV, FP, FQ, Fm = FB, FB+16, FB+24, FB+32, FB+40, FB+48
        s = 28 if br == 0 else 32
        for i in range(8): g(f'v_mov_b32 v{FQ+i}, v{q+i}')
        g('s_mov_b64 exec, s[60:61]')
        g(f'v_mov_b32 v{FQ+6}, 0')
        g('s_mov_b64 exec, -1')
        for r in range(16): g(f'v_mov_b32 v{O+r}, 0')
        g(f'v_mov_b32 v{Fm}, v25')
        if br == 0:
            g('s_lshl_b32 s52, s41, 2')
            g('s_add_u32 s52, s52, s42')
            g('s_sub_u32 s53, s52, 8')
            g('s_mov_b32 s54, s52')
        else:
            g('s_mov_b32 s54, 63')
        g.label(f'L{tag}_fb_loop')
        g('s_lshl_b32 s55, s54, 12')
        for i in range(2):
            g(f'buffer_load_dwordx4 {vr(FK+4*i,4)}, v2, s[{s}:{s+3}], s55 offen offset:{i*1024}{LD()}')
            g(f'buffer_load_dwordx4 {vr(FV+4*i,4)}, v2, s[{s}:{s+3}], s55 offen offset:{2048+i*1024}{LD()}')
        if br == 0:
            g('s_cmp_eq_u32 s54, s52')
            g(f's_cbranch_scc1 L{tag}_fb_diag')
            g('s_cmp_eq_u32 s54, s53')
            g(f's_cbranch_scc1 L{tag}_fb_first')
        for r in range(16): g(f'v_mov_b32 v{FS+r}, 0')
        if br == 0:
            g(f's_branch L{tag}_fb_go')
            g.label(f'L{tag}_fb_diag')
            set_mask(g, FS, 'diag')
            g(f's_branch L{tag}_fb_go')
            g.label(f'L{tag}_fb_first')
            set_mask(g, FS, 'first')
            g.label(f'L{tag}_fb_go')
        g('s_waitcnt vmcnt(0)')
        g('s_nop 1')
        g(mfma(FS, FK, FQ, FS))
        g(mfma(FS, FK+4, FQ+4, FS))
        g('s_nop 15')
        rowmax(FS, Fm+1)
        g(f'v_max_f32 v{Fm+1}, v{Fm+1}, v{Fm}')
        g(f'v_sub_f32 v{Fm+2}, v{Fm}, v{Fm+1}')
        g(f'v_exp_f32 v{Fm+2}, v{Fm+2}')
        g(f'v_mov_b32 v{Fm}, v{Fm+1}')
        for r in range(16): g(f'v_sub_f32 v{FS+r}, v{FS+r}, v{Fm}')
        for r in range(16): g(f'v_exp_f32 v{FS+r}, v{FS+r}')
        for r in range(16): g(f'v_mul_f32 v{O+r}, v{O+r}, v{Fm+2}')
        for i in range(8): g(f'v_cvt_pk_bf16_f32 v{FP+i}, v{FS+2*i}, v{FS+2*i+1}')
        g('s_nop 1')
        g(mfma(O, FV, FP, O))
        g(mfma(O, FV+4, FP+4, O))
        g('s_nop 15')
        g('s_sub_u32 s54, s54, 1')
        g('s_cmp_lt_i32 s54, 0')
        g(f's_cbranch_scc1 L{tag}_fb_end')
        if br == 0:
            g('s_cmp_lt_i32 s54, s53')
            g(f's_cbranch_scc1 L{tag}_fb_end')
        g(f's_branch L{tag}_fb_loop')
        g.label(f'L{tag}_fb_end')

    g('s_cmp_eq_u32 s43, 0')
    g('s_cbranch_scc0 Lattn_kh1')

    def path(kh):
        tag = f'K{kh}'
        unitsA = [8, 7, 6, 5, 4] if kh == 0 else [3, 2, 1, 0]
        nA = len(unitsA); N = 32 + nA
        def unit(i):
            if i >= 32:
                u = unitsA[i - 32]
                masked = (kh == 0 and u == 8) or (kh == 1 and u == 0)
                return dict(base=3, off=u*4096, Q=QA, O=OA, C=MASK if masked else None, first=(i == 32))
            return dict(b=i, Q=QB, O=OB, C=None, first=(i == 0))
        def addr(i, cs):
            u = unit(i)
            if 'base' in u: return u['base'], u['off']
            b = u['b']; s = b >> 2
            if s == cs: return 4, (b & 3) * 4096
            assert s == cs + 1
            return 5, (b & 3) * 4096
        def rdK(i, cs, dst=KF):
            r, off = addr(i, cs)
            g(f'ds_read_b128 {vr(dst,4)}, v{r} offset:{off}')
            g(f'ds_read_b128 {vr(dst+4,4)}, v{r} offset:{off+1024}')
        def rdV(i, f, cs):
            r, off = addr(i, cs)
            g(f'ds_read_b128 {vr(VF+4*f,4)}, v{r} offset:{off+2048+f*1024}')
        rdK(0, 0)
        g('s_waitcnt lgkmcnt(0)')
        g(mfma(S0, KF, QB, None))
        g(mfma(S0, KF+4, QB+4, S0))
        g('s_nop 15')
        set_standin(S0, QB, MNB)
        g('s_nop 1')
        g(mfma(S0, KF, QB, None))
        g(mfma(S0, KF+4, QB+4, S0))
        rdK(1, 0)
        rdV(0, 0, 0)
        g('s_nop 15')
        if kh == 0: stamp(g, 7)
        if OPT.get('attst'): stamp(g, 2, q=True)
        def wo_piece(it):
            if it == 7:
                sk = newlab('wo7')
                g('s_cmp_lg_u32 s3, 0')
                g(f's_cbranch_scc1 {sk}')
                g(f's_add_u32 m0, s45, {65536 + it*8192}')
                g(f'v_add_u32 v31, {it*64*896}, v30')
                g('buffer_load_dwordx4 v31, s[56:59], 0 offen lds')
                g.label(sk)
            else:
                g(f's_add_u32 m0, s45, {65536 + it*8192}')
                g(f's_mov_b32 s50, {it*64*896}')
                g('buffer_load_dwordx4 v30, s[56:59], s50 offen lds')
        def wo_setup():
            g('s_mov_b32 s56, s14')
            g('s_mov_b32 s57, s15')
            g(f's_mov_b32 s58, {448*896}')
            g('s_mov_b32 s59, 0x20000')
            g('v_lshrrev_b32 v30, 3, v0')
            g('v_and_b32 v31, 7, v0')
            g('v_and_b32 v1, 2, v30')
            g('v_lshlrev_b32 v1, 1, v1')
            g('v_xor_b32 v31, v31, v1')
            g('s_lshl_b32 s50, s3, 3')
            g('v_add_u32 v30, s50, v30')
            g('v_mul_u32_u24 v30, 896, v30')
            g('v_lshl_add_u32 v30, v31, 4, v30')
            g('s_lshr_b32 s50, s2, 5')
            g('s_lshl_b32 s50, s50, 7')
            g('s_cmp_ge_u32 s2, 224')
            g('s_cselect_b32 s50, 0x40000000, s50')
            g('v_add_u32 v30, s50, v30')
            g('s_lshl_b32 s45, s3, 10')
        def dma_slot(i, inloop):
            if i == 0 or i == 1:
                st = i + 2
                g(f's_add_u32 s54, s55, {st*32768}')
                g(f's_add_u32 m0, s55, {(st&3)*32768}')
                g('s_nop 0')
                for k in range(4):
                    g(f'buffer_load_dwordx4 v2, s[32:35], s54 offen offset:{k*1024}{LD()} lds')
                return
            if i == 2 and kh == 0:
                for t in range(3):
                    g(f'buffer_store_dwordx4 {vr(208+8*t,4)}, v2, s[56:59], s{(48,49,53)[t]} offen{ST()}')
                    g(f'buffer_store_dwordx4 {vr(212+8*t,4)}, v2, s[56:59], s{(48,49,53)[t]} offen offset:1024{ST()}')
                return
            if i >= 30:
                if i == 30: wo_setup()
                before34 = {30: [0], 31: [1], 32: [2], 33: [3], 34: [4, 5], 35: [6, 7]}
                for it in before34.get(i, []): wo_piece(it)
                return
            if i == 12 and kh == 1 and OPT.get('wol2', 1):
                sk = newlab('wol2')
                g('s_cmp_gt_u32 s3, 5')
                g(f's_cbranch_scc1 {sk}')
                srd(g, 56, 8, 9, 448*896)
                g('s_lshr_b32 s47, s2, 3')
                g('s_mul_i32 s47, s47, 98')
                g('s_sub_u32 s48, s3, 4')
                g('s_lshl_b32 s48, s48, 6')
                g('s_add_u32 s47, s47, s48')
                g('v_add_u32 v204, s47, v0')
                g('v_lshlrev_b32 v204, 7, v204')
                g('buffer_load_dword v205, v204, s[56:59], 0 offen')
                g.label(sk)
            if i < 6: return
            ph = (i - 2) & 3; st = ((i - 2) >> 2) + 3
            if i == 18:
                g('buffer_load_dword v201, v31, s[64:67], 0 offen sc1')
            if st <= 7:
                if ph == 0:
                    g(f's_add_u32 s54, s55, {st*32768}')
                    g(f's_add_u32 m0, s55, {(st&3)*32768}')
                    g('s_nop 0')
                g(f'buffer_load_dwordx4 v2, s[32:35], s54 offen offset:{ph*1024}{LD()} lds')
            elif st == 8:
                if ph == 0:
                    ok = newlab('aok')
                    g('v_cmp_ne_u32 vcc, 16, v201')
                    g('s_nop 4')
                    g(f's_cbranch_vccz {ok}')
                    spin_until(g, 201, 31, 16)
                    g.label(ok)
                    if kh == 1:
                        g('s_add_u32 s47, s51, 8192')
                        dma4(2, 24, 's44', 's47', n=2)
                    g('s_mov_b32 m0, s55')
                    g('s_nop 0')
                g(f'buffer_load_dwordx4 v28, s[28:31], 0 offen offset:{ph*1024}{LD()} lds')
            elif st == 9 and ph <= 1 and kh == 0:
                if ph == 0:
                    g('s_add_u32 m0, s55, 32768')
                    g('s_nop 0')
                for k in range(2):
                    g(f'buffer_load_dwordx4 v29, s[28:31], 0 offen offset:{(2*ph+k)*1024}{LD()} lds')
        def body(i, cs, inloop=False):
            u = unit(i)
            sb = SB[i & 1]; sn = SB[(i + 1) & 1]
            e = [f'v_exp_f32 v{sb+r}, v{sb+r}' for r in range(16)]
            c = [f'v_cvt_pk_bf16_f32 v{P+k}, v{sb+2*k}, v{sb+2*k+1}' for k in range(8)]
            has1 = i + 1 < N; has2 = i + 2 < N
            if i < 32 and (i & 3) == 2:
                s = i >> 2
                if s == 7: vm = 0
                elif s == 0: vm = 8
                elif s == 1: vm = 4 if kh == 1 else 10
                elif s == 2: vm = 4
                else: vm = 4
                if OPT.get('attst') and s in (0, 1, 2, 3, 5, 7): stamp(g, {0: 3, 1: 5, 2: 7, 3: 9, 5: 11, 7: 13}[s], q=True)
                g(f's_waitcnt vmcnt({vm}) lgkmcnt(0)' if vm is not None else 's_waitcnt lgkmcnt(0)')
                g('s_barrier')
                if OPT.get('attst') and s in (0, 1, 2, 3, 5, 7): stamp(g, {0: 4, 1: 6, 2: 8, 3: 10, 5: 12, 7: 14}[s], q=True)
                if s == 2 and kh == 1:
                    sk = newlab('sigA')
                    g('s_cmp_lg_u32 s3, 4')
                    g(f's_cbranch_scc1 {sk}')
                    g('s_mov_b64 exec, 1')
                    g('v_mov_b32 v1, 1')
                    g('s_lshl_b32 s47, s69, 8')
                    g('v_mov_b32 v202, s47')
                    g('buffer_atomic_add v1, v202, s[64:67], 0 offen sc1')
                    g('s_mov_b64 exec, -1')
                    g.label(sk)
                if s == 6:
                    g(f'ds_read_b128 {vr(QA,4)}, v{QL} offset:8192')
                    g(f'ds_read_b128 {vr(QA+4,4)}, v{QL} offset:9216')
                if s == 7 and kh == 0:
                    g(f'v_mov_b32 v204, {LFLAG}')
                    g('v_mov_b32 v205, 0')
                    g('ds_write_b32 v204, v205')
                    g('ds_write_b32 v204, v205 offset:4')
                    rdK(32, cs, TK)
                    g('s_waitcnt lgkmcnt(0)')
                    g(mfma(TS, TK, QA, unit(32)['C']))
                    g(mfma(TS, TK+4, QA+4, TS))
                    g('s_nop 15')
                    set_standin(TS, QA, MNA)
            elif i == 31 and kh == 1:
                g('s_waitcnt lgkmcnt(0)')
                g(mfma(TS, KF, QA, unit(32)['C']))
                g(mfma(TS, KF+4, QA+4, TS))
                g('s_nop 15')
                set_standin(TS, QA, MNA)
                g('s_lshl_b32 s47, s41, 2')
                g('s_add_u32 s47, s47, s42')
                g('s_cmp_lt_u32 s47, 5')
                g(f's_cbranch_scc0 L{tag}_valid')
                g(f'v_mov_b32 v{MNA}, {POSBIG:#x}')
                g.label(f'L{tag}_valid')
            elif i == 34:
                if OPT.get('tailst'): stamp(g, 3, q=True)
                g('s_waitcnt lgkmcnt(0)')
                g('s_barrier')
                if OPT.get('tailst'): stamp(g, 4, q=True)
                if kh == 1 or not OPT.get('stag', 0):
                    finish_half(f'FB{kh}', kh, 1, OB, MNB, QB, TS)
                if OPT.get('tailst'): stamp(g, 5, q=True)
            elif i == 35 and kh == 0 and OPT.get('stag', 0):
                g('s_waitcnt lgkmcnt(0)')
                finish_half(f'FB{kh}', kh, 1, OB, MNB, QB, TS)
            else:
                g('s_waitcnt lgkmcnt(0)')
            pm = OPT.get('prio', 'lag')
            if pm == 'lag':
                g(f's_setprio {3 - ((i - 2) & 3)}')
            elif pm == 'lag2' and ((i - 2) & 1) == 0:
                g(f's_setprio {1 - (((i - 2) & 3) >> 1)}')
            elif pm == 'half':
                g(f's_setprio {3 - (((i - 2) & 1) * 2)}')
            g(e[0])
            if i > 0:
                up = unit(i - 1)
                g(mfma(up['O'], VF+4, P+4, up['O']))
            rdV(i, 1, cs)
            g(e[1]); g(e[2]); g(e[3])
            g(c[0])
            if i == 33:
                write_half(kh, 1, OB, MNB)
            if has1:
                un = unit(i + 1)
                g(mfma(sn, KF, un['Q'], un['C']))
            g(e[4]); g(e[5]); g(c[1]); g(e[6]); g(e[7]); g(c[2])
            if has1:
                g(mfma(sn, KF+4, un['Q']+4, sn))
            if has2:
                rdK(i + 2, cs)
            g(e[8]); g(c[3]); g(e[9]); g(e[10])
            dma_slot(i, inloop)
            g(e[11])
            if OPT.get('prio') == 'half':
                g(f's_setprio {2 - (((i - 2) & 1) * 2)}')
            g(mfma(u['O'], VF, P, None if u['first'] else u['O']))
            if has1:
                rdV(i + 1, 0, cs)
            for x in e[12:16]: g(x)
            g(c[4]); g(c[5]); g(c[6]); g(c[7])
        def advance():
            g('v_mov_b32 v4, v5')
            g('v_add_u32 v5, 32768, v5')
            g('v_and_b32 v5, 0x1ffff, v5')
        return body, advance, N, tag
    for kh in (0, 1):
        if kh == 1: g.label('Lattn_kh1')
        body, advance, N, tag = path(kh)
        for s_ in range(7):
            for j in range(4): body(4*s_ + j, s_)
            advance()
        for j in range(4): body(28 + j, 7)
        if kh == 0: stamp(g, 8)
        if OPT.get('tailst'): stamp(g, 2, q=True)
        for i in range(32, N): body(i, 7)
        g('s_waitcnt lgkmcnt(0)')
        g('s_nop 1')
        g(mfma(OA, VF+4, P+4, OA))
        g('s_nop 15')
        if OPT.get('tailst'): stamp(g, 6, q=True)
        write_half(kh, 0, OA, MNA)
        g(f's_waitcnt vmcnt({1 if (kh == 0 and OPT.get("stag", 0)) else 3}) lgkmcnt(0)')
        g('s_barrier')
        if OPT.get('tailst'): stamp(g, 7, q=True)
        if kh == 1: signal_o(g, CNT_OB, 4)
        finish_half(f'FA{kh}', kh, 0, OA, MNA, QA, TS)
        if OPT.get('tailst'): stamp(g, 8, q=True)
        if OPT.get('woearly', 0):
            woA_issue(g)
            g('s_waitcnt vmcnt(7)')
        else:
            g('s_waitcnt vmcnt(0)')
        if OPT.get('tailst'): stamp(g, 9, q=True)
        g('s_mov_b64 exec, 1')
        g('v_mov_b32 v1, 1')
        g('s_lshl_b32 s47, s41, 8')
        g(f's_add_u32 s47, s47, {CNT_OA}')
        g('v_mov_b32 v31, s47')
        g('buffer_atomic_add v1, v31, s[64:67], 0 offen sc1')
        g('s_mov_b64 exec, -1')
        if not OPT.get('woearly', 0): woA_issue(g)
        stamp(g, 9)
        if kh == 1:
            proj_group_B(g)
        else:
            proj_group_A(g)
    proj_common(g)

PJ_EX = 131072
def proj_setup(g, br):
    g(f's_mov_b32 s40, {br}')
    g('s_and_b32 s41, s2, 7')
    g('s_lshl_b32 s41, s41, 2')
    g('s_bfe_u32 s42, s2, 0x20003')
    g('s_add_u32 s41, s41, s42')
    g('s_lshr_b32 s42, s2, 5')
    g('s_and_b32 s43, s3, 1')
    g('s_bfe_u32 s44, s3, 0x10001')
    srd(g, 24, 16, 17, 2048 * 1792)
    g('s_lshl_b32 s45, s41, 1')
    g('s_add_u32 s45, s45, s43')
    g(f's_add_u32 s45, s45, {br*64}')
    g('s_lshl_b32 s45, s45, 15')
    g('s_lshl_b32 s46, s44, 14')
    g('s_add_u32 s45, s45, s46')
    g('v_bfe_u32 v4, v0, 2, 2')
    g('v_and_b32 v5, 3, v0')
    g('v_bfe_u32 v7, v0, 4, 1')
    g('v_lshrrev_b32 v6, 5, v0')
    g('v_lshlrev_b32 v7, 5, v7')
    g('v_lshl_add_u32 v7, v5, 3, v7')
    g('v_lshrrev_b32 v11, 4, v7')
    g('v_and_b32 v8, 2, v4')
    g('v_lshlrev_b32 v8, 1, v8')
    g('v_xor_b32 v11, v11, v8')
    g('v_and_b32 v7, 15, v7')
    g('v_lshl_add_u32 v7, v11, 4, v7')
    g('v_lshl_add_u32 v4, v6, 2, v4')
    g('v_lshl_add_u32 v9, v4, 7, v7')
    g('s_mul_i32 s46, s44, 28672')
    if br: g('s_add_u32 s46, s46, 65536')
    g('v_add_u32 v9, s46, v9')
    g('v_xor_b32 v10, 64, v9')
    g('s_lshl_b32 s46, s43, 1')
    g('s_add_u32 s46, s46, s44')
    g(f's_add_u32 s46, s46, {br*4}')
    g('s_lshl_b32 s46, s46, 12')
    g(f's_add_u32 s46, s46, {PJ_EX}')
    g('v_add_u32 v12, s46, v2')
    g('v_xor_b32 v13, 4096, v12')
    g('s_lshr_b32 s46, s41, 1')
    g('s_lshl_b32 s46, s46, 8')
    g(f's_add_u32 s46, s46, {CNT_OB if br else CNT_OA}')
    g('v_mov_b32 v30, s46')
def o_loads(g):
    OF = 64
    for n in range(16):
        if n % 4 == 0 and n > 0: g('s_add_u32 s45, s45, 4096')
        g(f'buffer_load_dwordx4 {vr(OF+4*n,4)}, v2, s[36:39], s45 offen offset:{(n%4)*1024}{LD()}')
def signal_o(g, cnt, wave):
    sk = newlab('sigO')
    g(f's_cmp_lg_u32 s3, {wave}')
    g(f's_cbranch_scc1 {sk}')
    g('s_mov_b64 exec, 1')
    g('v_mov_b32 v1, 1')
    g('s_lshl_b32 s47, s41, 8')
    g(f's_add_u32 s47, s47, {cnt}')
    g('v_mov_b32 v31, s47')
    g('buffer_atomic_add v1, v31, s[64:67], 0 offen sc1')
    g('s_mov_b64 exec, -1')
    g.label(sk)
def woA_issue(g):
    srd(g, 56, 8, 9, 448*896)
    g('v_lshrrev_b32 v30, 3, v0')
    g('v_and_b32 v29, 7, v0')
    g('v_and_b32 v1, 2, v30')
    g('v_lshlrev_b32 v1, 1, v1')
    g('v_xor_b32 v29, v29, v1')
    g('s_lshl_b32 s51, s3, 3')
    g('v_add_u32 v30, s51, v30')
    g('v_mul_u32_u24 v30, 896, v30')
    g('v_lshl_add_u32 v30, v29, 4, v30')
    g('s_lshr_b32 s51, s2, 5')
    g('s_lshl_b32 s51, s51, 7')
    g('s_cmp_ge_u32 s2, 224')
    g('s_cselect_b32 s51, 0x40000000, s51')
    g('v_add_u32 v30, s51, v30')
    g('s_lshl_b32 s52, s3, 10')
    sk = newlab('woA')
    for it in range(8):
        if it == 7:
            g('s_cmp_lg_u32 s3, 0')
            g(f's_cbranch_scc1 {sk}')
            g(f's_add_u32 m0, s52, {it*8192}')
            g(f'v_add_u32 v29, {it*64*896}, v30')
            g('buffer_load_dwordx4 v29, s[56:59], 0 offen lds')
        else:
            g(f's_add_u32 m0, s52, {it*8192}')
            g(f's_mov_b32 s51, {it*64*896}')
            g('buffer_load_dwordx4 v30, s[56:59], s51 offen lds')
    g.label(sk)
def proj_group_B(g):
    g('s_cmp_ge_u32 s2, 224')
    g('s_cbranch_scc1 Lpj_idleB')
    proj_setup(g, 1)
    g('s_waitcnt vmcnt(0)')
    g('s_barrier')
    if OPT.get('tailst'): stamp(g, 10, q=True)
    group_wait(g, 4, 1, 1, 30, 16)
    if OPT.get('tailst'): stamp(g, 11, q=True)
    stamp(g, 10)
    o_loads(g)
    g('s_branch Lproj_common')
    g.label('Lpj_idleB')
    g('s_barrier')
    g('s_branch Lend')
def proj_group_A(g):
    g('s_cmp_ge_u32 s2, 224')
    sk = newlab('idleA')
    g(f's_cbranch_scc1 {sk}')
    proj_setup(g, 0)
    g('s_waitcnt vmcnt(0)')
    g('s_barrier')
    if OPT.get('tailst'): stamp(g, 10, q=True)
    group_wait(g, 0, 0, 1, 30, 128)
    if OPT.get('tailst'): stamp(g, 11, q=True)
    stamp(g, 10)
    o_loads(g)
    g('s_branch Lproj_common')
    g.label(sk)
    g('s_barrier')
    g('s_branch Lend')
def proj_common(g):
    g.label('Lproj_common')
    OF = 64; ACC = 16; WF = 48
    def rd(n, buf):
        h, i = divmod(n, 2)
        for ct in range(2):
            for jj in range(2):
                off = (28*h + 16*i + 8*jj) * 128
                g(f'ds_read_b64_tr_b16 {vr(WF+8*buf+4*ct+2*jj,2)}, v{9+ct} offset:{off}')
    rd(0, 0)
    for n in range(16):
        if n + 1 < 16: rd(n + 1, (n + 1) & 1)
        g(f's_waitcnt vmcnt({15-n}) lgkmcnt({4 if n + 1 < 16 else 0})')
        for ct in range(2):
            g(mfma(ACC + 16*ct, WF + 8*(n & 1) + 4*ct, OF + 4*n, None if n == 0 else ACC + 16*ct))
    g('s_nop 15')
    stamp(g, 12, q=True)
    g('s_cmp_eq_u32 s44, 0')
    g('s_cbranch_scc0 Lpj_k1')
    for i in range(4): g(f'ds_write_b128 v12, {vr(ACC+16+4*i,4)} offset:{i*1024}')
    g('s_branch Lpj_k2')
    g.label('Lpj_k1')
    for i in range(4): g(f'ds_write_b128 v12, {vr(ACC+4*i,4)} offset:{i*1024}')
    for r in range(16): g(f'v_mov_b32 v{ACC+r}, v{ACC+16+r}')
    g.label('Lpj_k2')
    g('s_waitcnt lgkmcnt(0)')
    g('s_barrier')
    for i in range(4): g(f'ds_read_b128 {vr(64+4*i,4)}, v13 offset:{i*1024}')
    g('v_and_b32 v4, 31, v0')
    g('s_lshl_b32 s46, s41, 6')
    g('s_lshl_b32 s47, s43, 5')
    g('s_add_u32 s46, s46, s47')
    g('v_add_u32 v4, s46, v4')
    g('v_mul_u32_u24 v4, 1792, v4')
    g('v_lshl_add_u32 v4, v6, 4, v4')
    g('s_mul_i32 s46, s40, 896')
    g('s_lshl_b32 s47, s42, 7')
    g('s_add_u32 s46, s46, s47')
    g('s_lshl_b32 s47, s44, 6')
    g('s_add_u32 s46, s46, s47')
    g('s_waitcnt lgkmcnt(0)')
    for r in range(16): g(f'v_add_f32 v{ACC+r}, v{ACC+r}, v{64+r}')
    P = 48
    for i in range(8): g(f'v_cvt_pk_bf16_f32 v{P+i}, v{ACC+2*i}, v{ACC+2*i+1}')
    g('s_nop 1')
    for k in range(2):
        a = P + 4*k
        g(f'v_permlane32_swap_b32 v{a}, v{a+2}')
        g(f'v_permlane32_swap_b32 v{a+1}, v{a+3}')
    g('s_nop 1')
    for k in range(2):
        g(f'buffer_store_dwordx4 {vr(P+4*k,4)}, v4, s[24:27], s46 offen offset:{32*k}' + ((' ' + OPT['ost']) if OPT.get('ost') else ''))

HEADER = '''; Kernarg layout for this problem (72 bytes, ptrs only, base s[0:1]):
'''
def main(out):
    g = Gen()
    g.raw(f'.globl {NAME}')
    g.raw('.p2align 8')
    g.raw(f'.type {NAME},@function')
    g.label(NAME)
    g('s_cmp_ge_u32 s2, 256')
    g('s_cbranch_scc1 Lexit')
    if OPT.get('tl'):
        for r in range(70, 102): g(f's_mov_b32 s{r}, 0')
    stamp(g, 0); stamp(g, 15, True)
    if OPT.get('tl'): g('s_memtime s[98:99]')
    g('s_load_dwordx16 s[4:19], s[0:1], 0')
    g('s_load_dwordx2 s[20:21], s[0:1], 64')
    g('v_lshrrev_b32 v1, 6, v0')
    g('v_and_b32 v0, 63, v0')
    g('s_nop 0')
    g('v_readfirstlane_b32 s3, v1')
    if OPT.get('swapw'): g('s_xor_b32 s3, s3, 4')
    prologue(g)
    qkv_loader(g)
    qkv_compute(g)
    phase_attn(g)
    g.label('Lend')
    if OPT['stamps'] or OPT.get('tl'): g('s_waitcnt vmcnt(0)')
    stamp(g, 13)
    if OPT.get('tl'):
        sk = newlab('tl')
        g(f's_cmp_lg_u32 s3, {OPT.get("tlw", 0)}')
        g(f's_cbranch_scc1 {sk}')
        g('s_memtime s[100:101]')
        g('s_waitcnt lgkmcnt(0)')
        srd(g, 56, 18, 19, 256)
        g('s_mov_b64 exec, 1')
        g('s_sub_u32 s100, s84, s80')
        g('s_sub_u32 s99, s86, s82')
        g('v_mov_b32 v20, s100')
        g('v_mov_b32 v21, s99')
        g('v_mov_b32 v3, 0')
        g('buffer_atomic_umax v20, v3, s[56:59], 0 offen offset:52')
        g('buffer_atomic_umax v21, v3, s[56:59], 0 offen offset:56')
        g('s_not_b32 s68, s70')
        g('v_mov_b32 v1, s68')
        g('v_mov_b32 v3, 0')
        g('buffer_atomic_umax v1, v3, s[56:59], 0 offen offset:4')
        for k, i in enumerate((0, 2, 3, 4, 6, 8, 9, 10, 11, 12, 13)):
            g(f'v_mov_b32 v{4+k}, s{70+2*i}')
            g(f'buffer_atomic_umax v{4+k}, v3, s[56:59], 0 offen offset:{8+4*k}')
        g('s_waitcnt vmcnt(0)')
        g.label(sk)
    if OPT['stamps']: g('s_memrealtime s[72:73]')
    stamp_dump(g)
    g.label('Lexit')
    g('s_endpgm')
    txt = HEADER + f'; @launch grid=(256,1,1) block=(512,1,1) lds={LDS_BYTES}\n'
    txt += '.amdgcn_target "amdgcn-amd-amdhsa--gfx950"\n.text\n' + g.text()
    txt += f'''.section .rodata,"a"
.p2align 6
.amdhsa_kernel {NAME}
  .amdhsa_next_free_vgpr 232
  .amdhsa_next_free_sgpr 102
  .amdhsa_accum_offset 232
  .amdhsa_group_segment_fixed_size 0
  .amdhsa_kernarg_size 72
  .amdhsa_user_sgpr_count 2
  .amdhsa_user_sgpr_kernarg_segment_ptr 1
  .amdhsa_system_sgpr_workgroup_id_x 1
.end_amdhsa_kernel
'''
    open(out, 'w').write(txt)

if __name__ == '__main__':
    out = sys.argv[1] if len(sys.argv) > 1 else 'concat_heads__sliding_block__softmax_full_mha__prompt.s'
    for a in sys.argv[2:]:
        if '=' in a:
            k, v = a.split('=', 1)
            OPT[k] = v if k in ('st', 'ld', 'prio', 'ost', 'inl') else (int(v) if v.isdigit() else v)
        else:
            OPT[a] = True
    main(out)
```

```python
import sys, math, struct

def f32bits(x): return struct.unpack('<I', struct.pack('<f', x))[0]

class Gen:
    def __init__(self): self.lines = []
    def __call__(self, s):
        for l in s.split('\n'):
            l = l.strip()
            if l: self.lines.append('  ' + l)
    def label(self, s): self.lines.append(s + ':')
    def raw(self, s): self.lines.append(s)
    def text(self): return '\n'.join(self.lines) + '\n'

def vr(base, n): return f'v[{base}:{base+n-1}]'
def mfma(d, a, b, c):
    cs = '0' if c is None else vr(c, 16)
    return f'v_mfma_f32_32x32x16_bf16 {vr(d,16)}, {vr(a,4)}, {vr(b,4)}, {cs}'

OPT = dict(stamps=False, st='sc1', ld='', spin=200000, pf=5)
NAME = 'concat_heads__sliding_block__softmax_full_mha__prompt_kernel'
STAMP_BASE = 0x2000000
def stamp(g, i, real=False, q=False):
    if OPT.get('tl'):
        if i in (0, 2, 3, 4, 6, 8, 9, 10, 11, 12, 13): g(f's_memrealtime s[{70+2*i}:{71+2*i}]')
        if i == 6: g('s_memtime s[80:81]')
        if i == 8: g('s_memtime s[84:85]')
        return
    if not OPT['stamps']: return
    import inspect
    if OPT.get('qkvst') and 5 <= i <= 13:
        caller = inspect.stack()[1].function
        if caller != 'qkv_compute': return
    if (OPT.get('attst') or OPT.get('probe') or OPT.get('tailst')) and 2 <= i <= 12 and not q: return
    op = 's_memrealtime' if real else 's_memtime'
    g(f'{op} s[{70+2*i}:{71+2*i}]')
def stamp_dump(g):
    if not OPT['stamps']: return
    g('s_waitcnt lgkmcnt(0) vmcnt(0)')
    g(f's_add_u32 s64, s20, {STAMP_BASE}')
    g(f's_addc_u32 s65, s21, 0')
    g('s_mov_b32 s66, 0x100000')
    g('s_mov_b32 s67, 0x20000')
    g('s_mov_b64 exec, -1')
    g('v_mov_b32 v1, 0')
    for i in range(16):
        g(f'v_writelane_b32 v1, s{70+2*i}, {i}')
    g('s_lshl_b32 s68, s2, 3')
    g('s_add_u32 s68, s68, s3')
    g('s_lshl_b32 s68, s68, 6')
    g('v_lshlrev_b32 v3, 2, v0')
    g('v_cmp_gt_u32 vcc, 16, v0')
    g('s_and_saveexec_b64 s[62:63], vcc')
    g('buffer_store_dword v1, v3, s[64:67], s68 offen')
    g('s_waitcnt vmcnt(0)')

WS_Q = 0
WS_KV = 0x400000
WS_O = 0xC00000
WS_CNT = 0x1000000
CNT_A, CNT_B, CNT_OA, CNT_OB = 0, 16 * 256, 32 * 256, 48 * 256
QSCALE = (28 ** -0.5) * math.log2(math.e)
NEGBIG = 0xf149f2ca
POSBIG = 0x7149f2ca
LDS_BYTES = 163840

def srd(g, dst, lo, hi, nbytes, add=0):
    if add:
        g(f's_add_u32 s{dst}, s{lo}, {add}')
        g(f's_addc_u32 s{dst+1}, s{hi}, 0')
    else:
        g(f's_mov_b32 s{dst}, s{lo}')
        g(f's_mov_b32 s{dst+1}, s{hi}')
    g(f's_mov_b32 s{dst+2}, {nbytes}')
    g(f's_mov_b32 s{dst+3}, 0x20000')
def ST(): return (' ' + OPT['st']) if OPT['st'] else ''
def INL(): return (' ' + OPT['inl']) if OPT.get('inl') else ''
def LD(): return (' ' + OPT['ld']) if OPT['ld'] else ''
lab = [0]
def newlab(p):
    lab[0] += 1
    return f'L{p}_{lab[0]}'

def spin_until(g, vdst, voff, target, tmp=205):
    l0 = newlab('poll'); l1 = newlab('pdone')
    g(f's_mov_b32 s68, {OPT["spin"]}')
    g.label(l0)
    g(f'buffer_load_dword v{vdst}, v{voff}, s[64:67], 0 offen sc1')
    g('s_waitcnt vmcnt(0)')
    g(f'v_cmp_ne_u32 vcc, {target}, v{vdst}')
    g('s_nop 4')
    g(f's_cbranch_vccz {l1}')
    if OPT.get('sleep', 1): g(f's_sleep {OPT.get("sleep", 1)}')
    g('s_sub_u32 s68, s68, 1')
    g('s_cmp_lg_u32 s68, 0')
    g(f's_cbranch_scc1 {l0}')
    g.label(l1)
LFLAG = 65536 - 64
def group_wait(g, leader, word, vdst, voff, target):
    lf = newlab('follow'); ld = newlab('gdone'); lp = newlab('lspin')
    g(f'v_mov_b32 v204, {LFLAG + 4*word}')
    g(f's_cmp_lg_u32 s3, {leader}')
    g(f's_cbranch_scc1 {lf}')
    spin_until(g, vdst, voff, target)
    g('v_mov_b32 v205, 1')
    g('ds_write_b32 v204, v205')
    g('s_waitcnt lgkmcnt(0)')
    g(f's_branch {ld}')
    g.label(lf)
    g(f's_mov_b32 s68, {OPT["spin"] * 16}')
    g.label(lp)
    g('ds_read_b32 v205, v204')
    g('s_waitcnt lgkmcnt(0)')
    g('v_readfirstlane_b32 s47, v205')
    g('s_cmp_lg_u32 s47, 0')
    g(f's_cbranch_scc1 {ld}')
    g('s_sleep 1')
    g('s_sub_u32 s68, s68, 1')
    g('s_cmp_lg_u32 s68, 0')
    g(f's_cbranch_scc1 {lp}')
    g.label(ld)

WROW = 176
WSTG = 64 * WROW
NCH = 14
def prologue(g):
    g('s_and_b32 s40, s2, 7')
    g('s_lshr_b32 s41, s2, 3')
    g('s_lshr_b32 s22, s40, 1')
    g('s_lshl_b32 s22, s22, 2')
    g('s_and_b32 s42, s41, 3')
    g('s_add_u32 s22, s22, s42')
    g('s_and_b32 s23, s40, 1')
    g('s_lshl_b32 s23, s23, 3')
    g('s_lshr_b32 s42, s41, 2')
    g('s_add_u32 s23, s23, s42')
    g('s_add_u32 s69, s23, 1')
    g('s_and_b32 s69, s69, 7')
    g('s_and_b32 s42, s23, 8')
    g('s_or_b32 s69, s69, s42')
    g('s_cmp_lt_u32 s3, 4')
    g('s_cbranch_scc1 Lcompute')

def kvb_srd(g):
    g('s_and_b32 s40, s2, 7')
    g('s_bfe_u32 s41, s2, 0x10003')
    g('s_lshl_b32 s40, s40, 1')
    g('s_add_u32 s40, s40, s41')
    g('s_lshl_b32 s47, s40, 18')
    g(f's_add_u32 s47, s47, {WS_KV + 0x400000}')
    g('s_add_u32 s32, s20, s47')
    g('s_addc_u32 s33, s21, 0')
    g('s_mov_b32 s34, 0x40000')
    g('s_mov_b32 s35, 0x20000')
    g('s_lshl_b32 s55, s3, 12')
def stage_tile(g, st):
    g(f's_add_u32 s54, s55, {st*32768}')
    g(f's_add_u32 m0, s55, {(st&3)*32768}')
    g('s_nop 0')
    for i in range(4):
        g(f'buffer_load_dwordx4 v2, s[32:35], s54 offen offset:{i*1024}{LD()} lds')
def init_dma_compute(g):
    kvb_srd(g)
    stage_tile(g, 0)
    stage_tile(g, 1)

def pf_lines(g, br, part, vt, vd):
    if part == 'x':
        lo, hi = (10, 11) if br else (4, 5)
        srd(g, 24, lo, hi, 1835008)
        g('s_bfe_u32 s46, s2, 0x20001')
        g('s_mul_i32 s46, s46, 458752')
        g('s_lshr_b32 s47, s2, 3')
        g('s_mul_i32 s47, s47, 14336')
        g('s_add_u32 s46, s46, s47')
        g(f'v_lshlrev_b32 v{vt}, 7, v0')
        g(f'v_add_u32 v{vt}, s46, v{vt}')
        g(f'buffer_load_dword v{vd}, v{vt}, s[24:27], 0 offen')
        g(f'v_add_u32 v{vt}, 8192, v{vt}')
        g('s_mov_b64 exec, 0x0000ffffffffffff') if False else None
        g('v_cmp_gt_u32 vcc, 48, v0')
        g('s_and_saveexec_b64 s[44:45], vcc')
        g(f'buffer_load_dword v{vd+1}, v{vt}, s[24:27], 0 offen')
        g('s_mov_b64 exec, s[44:45]')
    else:
        lo, hi = (12, 13) if br else (6, 7)
        srd(g, 24, lo, hi, 1204224)
        g('s_and_b32 s46, s2, 1')
        g('s_mul_i32 s46, s46, 1280')
        g('s_lshr_b32 s47, s2, 3')
        g('s_mul_i32 s47, s47, 37632')
        g('s_add_u32 s46, s46, s47')
        for k in range(3):
            g(f'v_add_u32 v{vt}, {64*k}, v0')
            g(f'v_mul_u32_u24 v{vt+1}, 5958, v{vt}')
            g(f'v_lshrrev_b32 v{vt+1}, 16, v{vt+1}')
            g(f'v_mul_u32_u24 v{vt+2}, 11, v{vt+1}')
            g(f'v_sub_u32 v{vt+2}, v{vt}, v{vt+2}')
            g(f'v_mul_u32_u24 v{vt+1}, 2688, v{vt+1}')
            g(f'v_lshl_add_u32 v{vt+1}, v{vt+2}, 7, v{vt+1}')
            g(f'v_add_u32 v{vt+1}, s46, v{vt+1}')
            if k == 2:
                g('v_cmp_gt_u32 vcc, 26, v0')
                g('s_and_saveexec_b64 s[44:45], vcc')
            g(f'buffer_load_dword v{vd+k}, v{vt+1}, s[24:27], 0 offen')
            if k == 2: g('s_mov_b64 exec, s[44:45]')

def PREFETCH_A(g):
    l1 = newlab('pf'); l2 = newlab('pf'); ld = newlab('pf')
    g('s_cmp_ge_u32 s3, 2')
    g(f's_cbranch_scc1 {l1}')
    srd(g, 24, 4, 5, 1835008)
    g('s_mul_i32 s46, s2, 7168')
    g('s_lshl_b32 s47, s3, 12')
    g('s_add_u32 s46, s46, s47')
    g('v_add_u32 v20, s46, v2')
    for i in range(4):
        g(f'buffer_load_dwordx4 v[{144+4*i}:{147+4*i}], v20, s[24:27], 0 offen offset:{i*1024}')
    g(f's_branch {ld}')
    g.label(l1)
    g('s_cmp_eq_u32 s3, 2')
    g(f's_cbranch_scc0 {l2}')
    srd(g, 24, 6, 7, 1204224)
    g('s_mul_i32 s46, s2, 4704')
    g('v_add_u32 v20, s46, v2')
    g('v_add_u32 v21, 4096, v20')
    for i in range(5):
        g(f'buffer_load_dwordx4 v[{144+4*i}:{147+4*i}], v{20 if i < 4 else 21}, s[24:27], 0 offen offset:{(i%4)*1024}')
    g(f's_branch {ld}')
    g.label(l2)
    g('s_mul_i32 s46, s2, 1568')
    g('v_add_u32 v20, s46, v2')
    srd(g, 24, 8, 9, 448*896)
    for i in range(2):
        g(f'buffer_load_dwordx4 v[{144+4*i}:{147+4*i}], v20, s[24:27], 0 offen offset:{i*1024}')
    srd(g, 28, 14, 15, 448*896)
    for i in range(2):
        g(f'buffer_load_dwordx4 v[{152+4*i}:{155+4*i}], v20, s[28:31], 0 offen offset:{i*1024}')
    g.label(ld)

def qkv_compute(g):
    g.label('Lcompute')
    g('v_and_b32 v4, 31, v0')
    g('s_lshl_b32 s44, s3, 5')
    g('v_add_u32 v4, s44, v4')
    g('v_lshlrev_b32 v4, 7, v4')
    g('v_bfe_u32 v5, v0, 1, 3')
    g('v_lshrrev_b32 v6, 5, v0')
    for ks in range(4):
        g(f'v_add_u32 v7, {2*ks}, v6')
        g('v_xor_b32 v7, v7, v5')
        g(f'v_lshl_add_u32 v{12+ks}, v7, 4, v4')
    g('v_bfe_u32 v4, v0, 2, 2')
    g('v_and_b32 v5, 3, v0')
    g('v_bfe_u32 v7, v0, 4, 1')
    g('v_lshlrev_b32 v7, 5, v7')
    g('v_lshl_add_u32 v7, v5, 3, v7')
    g('v_lshlrev_b32 v4, 1, v4')
    g('v_add_u32 v4, v4, v6')
    g(f'v_mul_u32_u24 v4, {2*WROW}, v4')
    g('v_add_u32 v4, v4, v7')
    g('v_add_u32 v16, 65536, v4')
    g('v_lshlrev_b32 v2, 4, v0')
    g('s_waitcnt lgkmcnt(0)')
    if OPT.get('wsoff'):
        g(f's_add_u32 s20, s20, {OPT["wsoff"] << 20}')
        g('s_addc_u32 s21, s21, 0')
    stamp(g, 1)
    srd(g, 32, 20, 21, 0x1000000)
    srd(g, 64, 20, 21, 0x4000, WS_CNT)
    g('s_or_b32 s44, s2, s3')
    g('s_cmp_lg_u32 s44, 0')
    g('s_cbranch_scc1 Lnoinit')
    g('v_lshlrev_b32 v20, 8, v0')
    g('v_mov_b32 v21, 0')
    g('buffer_store_dword v21, v20, s[64:67], 0 offen sc1')
    g('s_waitcnt vmcnt(0)')
    srd(g, 36, 18, 19, 256)
    g('s_mov_b64 exec, 1')
    g('v_mov_b32 v21, 1')
    g('v_mov_b32 v20, 0')
    g('buffer_store_dword v21, v20, s[36:39], 0 offen sc1')
    g('s_mov_b64 exec, -1')
    g.label('Lnoinit')
    if OPT.get('codepf'):
        g('s_getpc_b64 s[24:25]')
        g.label('Lpc_here')
        g(f's_sub_u32 s24, s24, Lpc_here-{NAME}')
        g('s_subb_u32 s25, s25, 0')
        g(f's_mov_b32 s26, Lexit-{NAME}')
        g('s_mov_b32 s27, 0x20000')
        g('s_lshr_b32 s46, s2, 3')
        g('s_lshl_b32 s46, s46, 2')
        g('s_add_u32 s46, s46, s3')
        g('s_lshl_b32 s46, s46, 10')
        g('v_add_u32 v20, s46, v2')
        g('buffer_load_dwordx4 v[144:147], v20, s[24:27], 0 offen')
    if OPT.get('probe'):
        g('s_mul_i32 s46, s2, 7168')
        g('v_add_u32 v20, s46, v2')
        stamp(g, 5, q=True)
        srd(g, 24, 10, 11, 1835008)
        g('buffer_load_dword v160, v20, s[24:27], 0 offen'); g('s_waitcnt vmcnt(0)'); stamp(g, 6, q=True)
        srd(g, 24, 12, 13, 1204224)
        g('s_mul_i32 s46, s2, 4704'); g('v_add_u32 v21, s46, v2')
        g('buffer_load_dword v160, v21, s[24:27], 0 offen'); g('s_waitcnt vmcnt(0)'); stamp(g, 7, q=True)
        srd(g, 24, 4, 5, 1835008)
        g('buffer_load_dword v160, v20, s[24:27], 0 offen'); g('s_waitcnt vmcnt(0)'); stamp(g, 8, q=True)
        g('buffer_load_dword v160, v20, s[24:27], 0 offen offset:2048'); g('s_waitcnt vmcnt(0)'); stamp(g, 9, q=True)
        srd(g, 24, 6, 7, 1204224)
        g('buffer_load_dword v160, v21, s[24:27], 0 offen'); g('s_waitcnt vmcnt(0)'); stamp(g, 10, q=True)
        g('buffer_load_dword v160, v21, s[24:27], 0 offen offset:2048'); g('s_waitcnt vmcnt(0)'); stamp(g, 11, q=True)
    if OPT.get('pf', 1) in (2, 4):
        l1 = newlab('pfb'); ld = newlab('pfb')
        g('s_cmp_ge_u32 s3, 2')
        g(f's_cbranch_scc1 {l1}')
        srd(g, 24, 10, 11, 1835008)
        g('s_mul_i32 s46, s2, 7168')
        g('s_lshl_b32 s47, s3, 12')
        g('s_add_u32 s46, s46, s47')
        g('v_add_u32 v20, s46, v2')
        for i in range(4):
            g(f'buffer_load_dwordx4 v[{160+4*i}:{163+4*i}], v20, s[24:27], 0 offen offset:{i*1024}')
        g(f's_branch {ld}')
        g.label(l1)
        srd(g, 24, 12, 13, 1204224)
        g('s_mul_i32 s46, s2, 4704')
        g('s_and_b32 s47, s3, 1')
        g('s_mul_i32 s47, s47, 3072')
        g('s_add_u32 s46, s46, s47')
        g('v_add_u32 v20, s46, v2')
        for i in range(3):
            g(f'buffer_load_dwordx4 v[{160+4*i}:{163+4*i}], v20, s[24:27], 0 offen offset:{i*1024}')
        g.label(ld)
    if OPT.get('pf', 1) == 4:
        PREFETCH_A(g)
    if OPT.get('pfw'):
        g('s_waitcnt vmcnt(%d)' % (0 if OPT.get('pf') != 4 else 4))
        g('s_barrier')
    if OPT.get('pf', 1) == 3:
        l1 = newlab('pf3'); l2 = newlab('pf3'); ld = newlab('pf3')
        g('s_cmp_eq_u32 s3, 0')
        g(f's_cbranch_scc0 {l1}')
        pf_lines(g, 1, 'x', 20, 160)
        g(f's_branch {ld}')
        g.label(l1)
        g('s_cmp_eq_u32 s3, 1')
        g(f's_cbranch_scc0 {ld}')
        pf_lines(g, 1, 'w', 20, 160)
        g.label(ld)
    if OPT.get('tw'):
        g('s_mov_b64 exec, 1')
        g('v_mov_b32 v20, 0')
        g('v_mov_b32 v21, 0')
        for br_, c0r in ((1, 's23'), (0, 's69')):
            g(f's_mul_i32 s46, {c0r}, 3')
            for t in range(3):
                g(f's_add_u32 s47, s46, {t}')
                g('s_and_b32 s44, s47, 15')
                g('s_lshl_b32 s44, s44, 6')
                g('s_lshl_b32 s45, s22, 2')
                g('s_add_u32 s44, s44, s45')
                g('s_add_u32 s44, s44, s3')
                if br_: g('s_add_u32 s44, s44, 1024')
                g('s_cmp_lt_u32 s47, 16')
                g('s_cselect_b32 s45, 11, 12')
                g(f's_cselect_b32 s43, {WS_Q}, {WS_KV}')
                g('s_lshl_b32 s44, s44, s45')
                g('s_add_u32 s44, s44, s43')
                g('s_cmp_ge_u32 s47, 32')
                g('s_cselect_b32 s45, 2048, 0')
                g('s_add_u32 s44, s44, s45')
                g('buffer_store_dword v21, v20, s[32:35], s44 offen sc1')
        g('s_and_b32 s44, s2, 7')
        g('s_bfe_u32 s45, s2, 0x10003')
        g('s_lshl_b32 s44, s44, 1')
        g('s_add_u32 s44, s44, s45')
        g('s_lshr_b32 s45, s2, 4')
        g('s_lshl_b32 s45, s45, 2')
        g('s_add_u32 s45, s45, s3')
        g('s_lshl_b32 s45, s45, 4')
        g('s_add_u32 s45, s45, s44')
        g('s_lshl_b32 s45, s45, 11')
        g(f's_add_u32 s45, s45, {WS_O}')
        g('buffer_store_dword v21, v20, s[32:35], s45 offen sc1')
        g('s_add_u32 s45, s45, 0x200000')
        g('buffer_store_dword v21, v20, s[32:35], s45 offen sc1')
        g('s_mov_b64 exec, -1')
    srd(g, 36, 18, 19, 256)
    g('v_mov_b32 v30, 0')
    g('buffer_load_dword v31, v30, s[36:39], 0 offen sc1')
    def prefetch():
        if not OPT.get('pf', 1) or OPT.get('pf') == 4: return
        if OPT.get('pf') == 5:
            ld = newlab('pf5')
            g('s_cmp_ge_u32 s3, 2')
            g(f's_cbranch_scc1 {ld}')
            g('s_cmp_eq_u32 s3, 0')
            g('s_cselect_b32 s24, s8, s14')
            g('s_cselect_b32 s25, s9, s15')
            g(f's_mov_b32 s26, {448*896}')
            g('s_mov_b32 s27, 0x20000')
            g('s_mul_i32 s46, s2, 1568')
            g('v_add_u32 v20, s46, v2')
            for i in range(2):
                g(f'buffer_load_dwordx4 v[{168+4*i}:{171+4*i}], v20, s[24:27], 0 offen offset:{i*1024}')
            g.label(ld)
            return
        if OPT.get('pf', 1) == 3:
            l1 = newlab('pf3'); l2 = newlab('pf3'); ld = newlab('pf3')
            g('s_cmp_eq_u32 s3, 2')
            g(f's_cbranch_scc0 {l1}')
            pf_lines(g, 0, 'x', 20, 164)
            g(f's_branch {ld}')
            g.label(l1)
            g('s_cmp_eq_u32 s3, 3')
            g(f's_cbranch_scc0 {l2}')
            pf_lines(g, 0, 'w', 20, 164)
            g(f's_branch {ld}')
            g.label(l2)
            g('s_cmp_eq_u32 s3, 0')
            g('s_cselect_b32 s24, s8, s14')
            g('s_cselect_b32 s25, s9, s15')
            g(f's_mov_b32 s26, {448*896}')
            g('s_mov_b32 s27, 0x20000')
            g('s_mul_i32 s46, s2, 1568')
            g('v_add_u32 v20, s46, v2')
            for i in range(2):
                g(f'buffer_load_dwordx4 v[{168+4*i}:{171+4*i}], v20, s[24:27], 0 offen offset:{i*1024}')
            g.label(ld)
            return
        l1 = newlab('pf'); l2 = newlab('pf'); ld = newlab('pf')
        g('s_cmp_ge_u32 s3, 2')
        g(f's_cbranch_scc1 {l1}')
        srd(g, 24, 4, 5, 1835008)
        g('s_mul_i32 s46, s2, 7168')
        g('s_lshl_b32 s47, s3, 12')
        g('s_add_u32 s46, s46, s47')
        g('v_add_u32 v20, s46, v2')
        for i in range(4):
            g(f'buffer_load_dwordx4 v[{144+4*i}:{147+4*i}], v20, s[24:27], 0 offen offset:{i*1024}')
        g(f's_branch {ld}')
        g.label(l1)
        g('s_cmp_eq_u32 s3, 2')
        g(f's_cbranch_scc0 {l2}')
        srd(g, 24, 6, 7, 1204224)
        g('s_mul_i32 s46, s2, 4704')
        g('v_add_u32 v20, s46, v2')
        g('v_add_u32 v21, 4096, v20')
        for i in range(5):
            g(f'buffer_load_dwordx4 v[{144+4*i}:{147+4*i}], v{20 if i < 4 else 21}, s[24:27], 0 offen offset:{(i%4)*1024}')
        g(f's_branch {ld}')
        g.label(l2)
        g('s_mul_i32 s46, s2, 1568')
        g('v_add_u32 v20, s46, v2')
        srd(g, 24, 8, 9, 448*896)
        for i in range(2):
            g(f'buffer_load_dwordx4 v[{144+4*i}:{147+4*i}], v20, s[24:27], 0 offen offset:{i*1024}')
        srd(g, 28, 14, 15, 448*896)
        for i in range(2):
            g(f'buffer_load_dwordx4 v[{152+4*i}:{155+4*i}], v20, s[28:31], 0 offen offset:{i*1024}')
        g.label(ld)
    XF = 80; WF = 88
    ACCS = {1: 32, 0: 144}
    PS = {1: 112, 0: 208}
    g('v_and_b32 v18, 31, v0')
    g('v_cmp_eq_u32 vcc, 28, v18')
    g('v_mov_b32 v19, 0x3f803f80')
    g('s_nop 0')
    g('v_cndmask_b32_e64 v18, 0, v19, vcc')
    g('s_mov_b32 s60, 0')
    g('s_mov_b32 s61, -1')
    g('s_mov_b32 s58, 0xf0000000')
    g('s_mov_b32 s59, 0xf0000000')
    def reads(n, buf, part):
        kc, ks = divmod(n, 4)
        st = kc % 4
        if part == 0:
            g(f'ds_read_b128 {vr(XF+4*buf,4)}, v{12+ks} offset:{st*16384}')
        for jj in range(2):
            off = st * WSTG + (ks*16 + jj) * WROW + part * 56
            g(f'ds_read_b64_tr_b16 {vr(WF+12*buf+4*part+2*jj,2)}, v16 offset:{off}')
    def mfma1(br, buf, t, first, types2):
        types = types2[br]
        x = XF + 4*buf; wf = WF + 12*buf + 4*t; d = ACCS[br] + 16*t
        c = None if first else d
        g(mfma(d, wf, x, c) if types[t] == 'QK' else mfma(d, x, wf, c))
    def epilogue_list(br, types2):
        types = types2[br]
        c0 = 's52' if br else 's63'
        L = []
        A = L.append
        ACC = ACCS[br]; P = PS[br]
        A('s_lshl_b32 s54, s22, 2')
        A('s_add_u32 s54, s54, s3')
        if br: A('s_add_u32 s54, s54, 1024')
        for t in range(3):
            a = ACC + 16*t; p = P + 8*t
            so = (48, 49, 53)[t]
            A(f's_add_u32 s62, {c0}, {t}')
            A('s_and_b32 s56, s62, 15')
            A('s_lshl_b32 s56, s56, 6')
            A('s_add_u32 s56, s56, s54')
            if types[t] == 'QK':
                A('s_cmp_lt_u32 s62, 16\n' + f's_cselect_b32 s57, {f32bits(QSCALE):#x}, 1.0\n' + 's_cselect_b32 s45, 0, 0x3f80\n' +
                  's_cselect_b32 s46, 11, 12\n' + f's_cselect_b32 s47, {WS_Q}, {WS_KV}')
                A('s_lshl_b32 s56, s56, s46')
                A(f's_add_u32 s{so}, s56, s47')
                A('v_mov_b32 v19, s45')
                for r in range(16): A(f'v_mul_f32 v{a+r}, s57, v{a+r}')
                for i in range(8): A(f'v_cvt_pk_bf16_f32 v{p+i}, v{a+2*i}, v{a+2*i+1}')
                A(f'v_cndmask_b32_e64 v{p+6}, v{p+6}, v19, s[60:61]')
                A(f'v_cndmask_b32_e64 v{p+7}, v{p+7}, 0, s[60:61]')
            else:
                A('s_lshl_b32 s56, s56, 12')
                A(f's_add_u32 s{so}, s56, {WS_KV + 2048}')
                for i in range(8): A(f'v_cvt_pk_bf16_f32 v{p+i}, v{a+2*i}, v{a+2*i+1}')
                for i in range(8): A(f'v_cndmask_b32_e64 v{p+i}, v{p+i}, v18, s[58:59]')
            if br:
                A('s_nop 1\n' + f'buffer_store_dwordx4 {vr(p,4)}, v2, s[32:35], s{so} offen{ST()}')
                A(f'buffer_store_dwordx4 {vr(p+4,4)}, v2, s[32:35], s{so} offen offset:1024{ST()}')
        return L
    g('s_mul_i32 s52, s23, 3')
    g('s_mul_i32 s63, s69, 3')
    T0, T1, T2 = ('QK','QK','QK'), ('QK','QK','V'), ('V','V','V')
    variants = [{1: T0, 0: T0}, {1: T0, 0: T1}, {1: T1, 0: T2}, {1: T2, 0: T2}, {1: T2, 0: T0}]
    g('s_cmp_eq_u32 s23, 9')
    g('s_cbranch_scc1 Lqkv_v1')
    g('s_cmp_eq_u32 s23, 10')
    g('s_cbranch_scc1 Lqkv_v2')
    g('s_cmp_eq_u32 s23, 15')
    g('s_cbranch_scc1 Lqkv_v4')
    g('s_cmp_gt_u32 s23, 10')
    g('s_cbranch_scc1 Lqkv_v3')
    NS = NCH * 4
    SIG_AT = OPT.get('sig_at', 36)
    for vi, types in enumerate(variants):
        if vi: g.label(f'Lqkv_v{vi}')
        g('s_barrier')
        if vi == 0: stamp(g, 2)
        for part in range(3): reads(0, 0, part)
        prefetch()
        epi = []
        EP0, EPN = OPT.get('ep0', 28), OPT.get('epn', 2)
        def fill(k):
            for _ in range(k):
                if epi: g(epi.pop(0))
        for n in range(NS):
            br = 1 if n < 28 else 0
            boundary = (n + 1) % 4 == 0 and n + 1 < NS
            nxt = n + 1 < NS
            buf = n & 1
            first = n % 28 == 0
            if n == EP0:
                epi = ['s_nop 7'] + epilogue_list(1, types)
                per = -(-len(epi) // (EPN * 3))
            inter = EP0 <= n < EP0 + EPN
            if boundary:
                if OPT.get('qkvst') and vi == 0 and n + 1 == SIG_AT: stamp(g, 11)
                g('s_waitcnt vmcnt(0) lgkmcnt(0)' if n + 1 in (SIG_AT, 24) else 's_waitcnt lgkmcnt(0)')
                if OPT.get('qkvst') and vi == 0 and n + 1 == SIG_AT: stamp(g, 12)
                g('s_barrier')
                if OPT.get('qkvst') and vi == 0:
                    c1 = (n + 1) // 4
                    m = {2: 5, 4: 6, 6: 7, 8: 8, 10: 9, 11: 10, 12: 13}
                    if c1 in m: stamp(g, m[c1])
                if n + 1 == SIG_AT:
                    sk = newlab('sigB'); ok = newlab('inited'); lp = newlab('initspin')
                    g('s_cmp_lg_u32 s3, 0')
                    g(f's_cbranch_scc1 {sk}')
                    g('v_readfirstlane_b32 s47, v31')
                    g('s_cmp_lg_u32 s47, 0')
                    g(f's_cbranch_scc1 {ok}')
                    g(f's_mov_b32 s68, {OPT["spin"]}')
                    g.label(lp)
                    g('buffer_load_dword v31, v30, s[36:39], 0 offen sc1')
                    g('s_waitcnt vmcnt(0)')
                    g('v_readfirstlane_b32 s47, v31')
                    g('s_cmp_lg_u32 s47, 0')
                    g(f's_cbranch_scc1 {ok}')
                    g('s_sub_u32 s68, s68, 1')
                    g('s_cmp_lg_u32 s68, 0')
                    g(f's_cbranch_scc1 {lp}')
                    g.label(ok)
                    g('s_mov_b64 exec, 1')
                    g('v_mov_b32 v1, 1')
                    g('s_lshl_b32 s47, s23, 8')
                    g(f's_add_u32 s47, s47, {CNT_B}')
                    g('v_mov_b32 v29, s47')
                    g('buffer_atomic_add v1, v29, s[64:67], 0 offen sc1')
                    g('s_mov_b64 exec, -1')
                    g.label(sk)
            else:
                g('s_waitcnt lgkmcnt(4)')
            mfma1(br, buf, 0, first, types)
            if nxt: reads(n + 1, buf ^ 1, 0)
            if inter: fill(per)
            if not boundary: g(f's_waitcnt lgkmcnt({5 if nxt else 2})')
            mfma1(br, buf, 1, first, types)
            if nxt: reads(n + 1, buf ^ 1, 1)
            if inter: fill(per)
            if not boundary: g(f's_waitcnt lgkmcnt({5 if nxt else 0})')
            mfma1(br, buf, 2, first, types)
            if nxt: reads(n + 1, buf ^ 1, 2)
            if inter: fill(per)
            if n == 27 and vi == 0: stamp(g, 3)
            if OPT.get('sbar', 0) and n == EP0 + EPN - 1:
                g('s_barrier')
        assert not epi
        if vi == 0: stamp(g, 14)
        g('s_barrier')
        if vi == 0: stamp(g, 4)
        init_dma_compute(g)
        for x in epilogue_list(0, types): g(x)
        if vi < 4: g('s_branch Lqkv_fin')
    g.label('Lqkv_fin')
    g('s_branch Lattn_setup')

def qkv_loader(g):
    g.label('Lloader')
    g('s_sub_u32 s43, s3, 4')
    g('s_lshl_b32 s44, s22, 7')
    g('s_lshl_b32 s45, s43, 5')
    g('s_add_u32 s44, s44, s45')
    g('v_lshrrev_b32 v10, 3, v0')
    g('v_add_u32 v10, s44, v10')
    g('v_mul_u32_u24 v10, 896, v10')
    g('v_lshrrev_b32 v11, 4, v0')
    g('v_and_b32 v12, 7, v0')
    g('v_xor_b32 v12, v12, v11')
    g('v_lshl_add_u32 v2, v12, 4, v10')
    g('v_xor_b32 v12, 4, v12')
    g('v_lshl_add_u32 v3, v12, 4, v10')
    g('v_add_u32 v3, 7168, v3')
    g('v_add_u32 v4, 14336, v2')
    g('v_add_u32 v5, 14336, v3')
    g('s_lshl_b32 s46, s43, 12')
    g('s_lshl_b32 s47, s43, 10')
    g('s_add_u32 s47, s47, 65536')
    g('s_lshl_b32 s44, s43, 6')
    g('s_mul_i32 s50, s23, 168')
    g('s_mul_i32 s51, s69, 168')
    def wcalc(n):
        g('v_add_u32 v10, s44, v0')
        if n: g(f'v_add_u32 v10, {256*n}, v10')
        g('v_mul_u32_u24 v11, 5958, v10')
        g('v_lshrrev_b32 v11, 16, v11')
        g('v_mul_u32_u24 v12, 11, v11')
        g('v_sub_u32 v12, v10, v12')
        g('v_and_b32 v13, 48, v11')
        g('v_and_b32 v14, 3, v11')
        g('v_lshl_add_u32 v13, v14, 2, v13')
        g('v_bfe_u32 v14, v11, 2, 2')
        g('v_add_u32 v13, v13, v14')
        g('v_mul_u32_u24 v13, 2688, v13')
        g(f'v_lshl_add_u32 v{6+n}, v12, 4, v13')
    wcalc(0)
    g('s_waitcnt lgkmcnt(0)')
    if OPT.get('tlw') == 4: g('s_memrealtime s[74:75]')
    if OPT.get('wsoff'):
        g(f's_add_u32 s20, s20, {OPT["wsoff"] << 20}')
        g('s_addc_u32 s21, s21, 0')
    srd(g, 24, 10, 11, 1835008)
    srd(g, 28, 12, 13, 1204224)
    def rot_init(greg):
        g(f's_add_u32 s52, {greg}, s22')
        g('s_mul_i32 s53, s52, 37')
        g('s_lshr_b32 s53, s53, 8')
        g('s_mul_i32 s53, s53, 7')
        g('s_sub_u32 s52, s52, s53')
    def kc_offsets(c):
        if c == 7:
            if OPT.get('rot', 1): rot_init('s69')
            else: g('s_mov_b32 s52, 0')
        g('s_lshl_b32 s48, s52, 7')
        g('s_mul_i32 s49, s52, 172032')
        g(f's_add_u32 s49, s49, {"s50" if c < 7 else "s51"}')
        g('s_add_u32 s52, s52, 1')
        g('s_cmp_eq_u32 s52, 7')
        g('s_cselect_b32 s52, 0, s52')
    def issueX(c):
        st = c % 4
        sx = 24 if c < 7 else 32
        kc_offsets(c)
        for e in range(4):
            g(f's_add_u32 m0, s46, {st*16384 + e*1024}')
            g('s_nop 0')
            g(f'buffer_load_dwordx4 v{2+e}, s[{sx}:{sx+3}], s48 offen{INL()} lds')
    def issueW(c, ns=(0, 1, 2)):
        st = c % 4
        sw = 28 if c < 7 else 36
        for n in ns:
            if n == 2:
                sk = newlab('qs')
                g('s_cmp_eq_u32 s43, 3')
                g(f's_cbranch_scc1 {sk}')
            g(f's_add_u32 m0, s47, {st*WSTG + n*4096}')
            g('s_nop 0')
            g(f'buffer_load_dwordx4 v{6+n}, s[{sw}:{sw+3}], s49 offen{INL()} lds')
            if n == 2: g.label(sk)
    if OPT.get('rot', 1): rot_init('s23')
    else: g('s_mov_b32 s52, 0')
    def issue(c):
        issueX(c); issueW(c)
    if OPT.get('pfw') == 1: g('s_barrier')
    issueX(0)
    issueW(0, (0,))
    wcalc(1); issueW(0, (1,))
    wcalc(2); issueW(0, (2,))
    if OPT.get('tlw') == 4: g('s_memrealtime s[76:77]')
    srd(g, 32, 4, 5, 1835008)
    srd(g, 36, 6, 7, 1204224)
    srd(g, 64, 20, 21, 0x4000, WS_CNT)
    g('s_and_b32 s40, s2, 7')
    g('s_bfe_u32 s41, s2, 0x10003')
    g('s_lshl_b32 s40, s40, 1')
    g('s_add_u32 s40, s40, s41')
    g('v_min_u32 v30, 2, v0')
    g('v_lshlrev_b32 v30, 4, v30')
    g('v_add_u32 v30, s40, v30')
    g('v_mul_u32_u24 v30, 43, v30')
    g('v_lshrrev_b32 v30, 7, v30')
    g('v_lshlrev_b32 v31, 8, v30')
    g(f'v_add_u32 v203, {CNT_B}, v31')
    if OPT.get('pfw') == 2: g('s_barrier')
    for c in range(1, 3): issue(c)
    issued = 2
    HOLD = OPT.get('hold', 9) if OPT.get('sbar', 0) else 99
    for c in range(NCH):
        rem = issued - c
        if c == 13:
            skq = newlab('w13'); skr = newlab('w13')
            g('s_cmp_lg_u32 s3, 4')
            g(f's_cbranch_scc1 {skq}')
            g('s_waitcnt vmcnt(1)')
            g(f's_branch {skr}')
            g.label(skq)
            g('s_waitcnt vmcnt(0)')
            g.label(skr)
        else:
            g(f's_waitcnt vmcnt({6*rem})')
        if OPT.get('tlw') == 4 and c == 0: g('s_memrealtime s[86:87]')
        g('s_barrier')
        if c + 3 < NCH and not (HOLD <= c + 3 <= 10):
            issue(c + 3); issued = c + 3
        if OPT.get('sbar', 0) and c == 7:
            g('s_barrier')
            for cc in range(HOLD, 11):
                issue(cc); issued = cc
        if c == 10: attn_setup(g)
        if c == 11: set_mask(g, 32, 'first')
        if c == 12:
            skp = newlab('p12')
            g('s_cmp_lg_u32 s3, 4')
            g(f's_cbranch_scc1 {skp}')
            g('buffer_load_dword v201, v203, s[64:67], 0 offen sc1')
            g.label(skp)
    g('s_cmp_lg_u32 s3, 4')
    g('s_cbranch_scc1 Lh1_polled')
    g('s_waitcnt vmcnt(0)')
    g('v_cmp_ne_u32 vcc, 16, v201')
    g('s_nop 4')
    g('s_cbranch_vccz Lh1_polled')
    spin_until(g, 201, 203, 16)
    g.label('Lh1_polled')
    g('s_barrier')
    stamp(g, 4)
    g('s_add_u32 s47, s44, 0x200000')
    g('s_mov_b32 m0, s51')
    g('s_nop 0')
    for i in range(2):
        g(f'buffer_load_dwordx4 v2, s[24:27], s47 offen offset:{i*1024}{LD()} lds')
    stage_tile(g, 0)
    stage_tile(g, 1)
    stamp(g, 5)
    g('s_waitcnt vmcnt(4)')
    g('s_barrier')
    g('s_branch Lattn_go')

K2_SCR = 131072
QL = 200
def set_mask(g, dst, kind):
    for r in range(16):
        br_ = (r & 3) + 8 * (r >> 2)
        op = 'v_cmp_le_i32' if kind == 'diag' else 'v_cmp_gt_i32'
        g(f'{op} vcc, {br_}, v24')
        g('s_nop 1')
        g(f'v_cndmask_b32_e64 v{dst+r}, v25, 0, vcc')
def attn_setup(g):
    kvb_srd(g)
    g('s_lshr_b32 s41, s2, 4')
    g('s_and_b32 s42, s3, 3')
    g('s_lshr_b32 s43, s3, 2')
    g('v_lshlrev_b32 v2, 4, v0')
    g('s_lshl_b32 s44, s40, 6')
    g('s_lshl_b32 s45, s41, 2')
    g('s_add_u32 s45, s45, s42')
    g('s_add_u32 s44, s44, s45')
    g('s_lshl_b32 s44, s44, 11')
    srd(g, 24, 20, 21, 0x400000)
    g('s_sub_u32 s28, s32, 0x400000')
    g('s_subb_u32 s29, s33, 0')
    g('s_mov_b32 s30, 0x40000')
    g('s_mov_b32 s31, 0x20000')
    srd(g, 36, 20, 21, 0x400000, WS_O)
    g('v_min_u32 v30, 2, v0')
    g('v_lshlrev_b32 v30, 4, v30')
    g('v_add_u32 v30, s40, v30')
    g('v_mul_u32_u24 v30, 43, v30')
    g('v_lshrrev_b32 v30, 7, v30')
    g('v_lshlrev_b32 v31, 8, v30')
    g(f'v_add_u32 v203, {CNT_B}, v31')
    g('s_lshl_b32 s47, s41, 2')
    g('s_add_u32 s47, s47, s3')
    g('s_sub_u32 s47, s47, 8')
    g('s_lshl_b32 s50, s47, 12')
    g('s_cmp_lt_i32 s47, 0')
    g('s_cselect_b32 s50, 0x40000000, s50')
    g('v_add_u32 v28, s50, v2')
    g('s_add_u32 s47, s47, 8')
    g('s_lshl_b32 s50, s47, 12')
    g('v_add_u32 v29, s50, v2')
    g('s_lshl_b32 s47, s42, 12')
    g('v_add_u32 v3, s47, v2')
    g('s_lshl_b32 s47, s43, 14')
    g('v_add_u32 v4, s47, v2')
    g('v_add_u32 v5, 32768, v4')
    g(f'v_add_u32 v6, {K2_SCR}, v3')
    g('s_lshl_b32 s47, s42, 8')
    g(f's_add_u32 s47, s47, {K2_SCR+16384}')
    g('v_lshlrev_b32 v7, 2, v0')
    g('v_add_u32 v7, s47, v7')
    g('s_lshl_b32 s47, s42, 11')
    g(f's_add_u32 s51, s47, {K2_SCR}')
    g(f'v_add_u32 v{QL}, s51, v2')
    g('v_and_b32 v24, 31, v0')
    g('v_lshrrev_b32 v25, 5, v0')
    g('v_lshlrev_b32 v25, 2, v25')
    g('v_sub_u32 v24, v24, v25')
    g(f'v_mov_b32 v25, {NEGBIG:#x}')
    g('s_mov_b32 s60, 0')
    g('s_mov_b32 s61, -1')
    srd(g, 56, 20, 21, 0x1000000)

def phase_attn(g):
    g.label('Lattn_setup')
    QA = 8; QB = 16; MASK = 32; S0 = 48; S1 = 64; P = 80; OA = 88; OB = 104; KF = 120; VF = 128; T = 136
    TK = 144; TS = 152
    MNA = 26; MNB = 27
    SB = [S0, S1]
    attn_setup(g)
    set_mask(g, MASK, 'diag')
    stamp(g, 5)
    g('s_waitcnt vmcnt(4)')
    g('s_barrier')
    g.label('Lattn_go')
    g('s_cmp_eq_u32 s43, 99') if False else None
    def dma4(vreg, s, s_goff, s_m0, n=4, first=0):
        g(f's_mov_b32 m0, {s_m0}')
        g('s_nop 0')
        for i in range(first, first + n):
            g(f'buffer_load_dwordx4 v{vreg}, s[{s}:{s+3}], {s_goff} offen offset:{i*1024}{LD()} lds')
    stamp(g, 6)
    g(f'ds_read_b128 {vr(QB,4)}, v{QL}')
    g(f'ds_read_b128 {vr(QB+4,4)}, v{QL} offset:1024')

    def rowmax(sbuf, t):
        g(f'v_max3_f32 v{t}, v{sbuf}, v{sbuf+1}, v{sbuf+2}')
        for r in range(3, 15, 2):
            g(f'v_max3_f32 v{t}, v{t}, v{sbuf+r}, v{sbuf+r+1}')
        g(f'v_max_f32 v{t}, v{t}, v{sbuf+15}')
        g(f'v_mov_b32 v{t+1}, v{t}')
        g('s_nop 1')
        g(f'v_permlane32_swap_b32 v{t}, v{t+1}')
        g('s_nop 1')
        g(f'v_max_f32 v{t}, v{t}, v{t+1}')
    def set_standin(sbuf, q, mneg):
        t = T
        rowmax(sbuf, t)
        g(f'v_sub_f32 v{t}, 0, v{t}')
        g(f'v_cvt_pk_bf16_f32 v{t}, v{t}, 0')
        g(f'v_lshlrev_b32 v{mneg}, 16, v{t}')
        g('s_mov_b64 exec, s[60:61]')
        g(f'v_mov_b32 v{q+4+2}, v{t}')
        g('s_mov_b64 exec, -1')
    def slots(br, kh):
        if br == 1: return (2048, 0, None) if kh == 0 else (0, 1024, 2048)
        return (0, 1024, None) if kh == 0 else (2048, 0, 3072)
    def write_half(kh, br, O, mn):
        oo, mo, lo = slots(br, kh)
        src = O + 8 if kh == 0 else O
        g(f'ds_write_b128 v6, {vr(src,4)} offset:{oo}')
        g(f'ds_write_b128 v6, {vr(src+4,4)} offset:{oo+1024}')
        g(f'ds_write_b32 v7, v{mn} offset:{mo}')
        if kh == 1: g(f'ds_write_b32 v7, v{O+12} offset:{lo}')
    FB = 168
    def finish_half(tag, kh, br, O, mn, q, tmp):
        base = O + 8*kh
        oo, mo, lo = slots(br, 1 - kh)
        g(f'ds_read_b128 {vr(tmp,4)}, v6 offset:{oo}')
        g(f'ds_read_b128 {vr(tmp+4,4)}, v6 offset:{oo+1024}')
        g(f'ds_read_b32 v{T}, v7 offset:{mo}')
        if kh == 0: g(f'ds_read_b32 v{T+5}, v7 offset:{lo}')
        lp = T + 5 if kh == 0 else tmp + 4
        g('s_waitcnt lgkmcnt(0)')
        g(f'v_min_f32 v{T+1}, v{mn}, v{T}')
        g(f'v_sub_f32 v{T+2}, v{T+1}, v{mn}')
        g(f'v_sub_f32 v{T+3}, v{T+1}, v{T}')
        g(f'v_exp_f32 v{T+2}, v{T+2}')
        g(f'v_exp_f32 v{T+3}, v{T+3}')
        g('s_nop 0')
        g(f'v_mul_f32 v{T}, v{O+12}, v{T+2}')
        g(f'v_fmac_f32 v{T}, v{lp}, v{T+3}')
        for r in range(8): g(f'v_mul_f32 v{base+r}, v{base+r}, v{T+2}')
        g(f'v_mov_b32 v{T+1}, v{T}')
        for r in range(8): g(f'v_fmac_f32 v{base+r}, v{tmp+r}, v{T+3}')
        g(f'v_permlane32_swap_b32 v{T}, v{T+1}')
        g(f'v_mul_f32 v{T+4}, 0, v{base}')
        for r in range(1, 8): g(f'v_fmac_f32 v{T+4}, 0, v{base+r}')
        g(f'v_add_f32 v{T+4}, v{T+4}, v{T+1}')
        g(f's_mov_b32 s47, {f32bits(2.0**100):#x}')
        g(f'v_cmp_ngt_f32 vcc, s47, v{T+4}')
        g('s_nop 4')
        g(f's_cbranch_vccz L{tag}_ok')
        fallback(tag, br, O, q)
        g(f'v_mov_b32 v{T}, v{O+12}')
        g(f'v_mov_b32 v{T+1}, v{O+12}')
        g('s_nop 1')
        g(f'v_permlane32_swap_b32 v{T}, v{T+1}')
        g('s_nop 1')
        g.label(f'L{tag}_ok')
        g(f'v_rcp_f32 v{T+1}, v{T+1}')
        g('s_lshl_b32 s47, s41, 2')
        g('s_add_u32 s47, s47, s42')
        for r in range(8): g(f'v_mul_f32 v{base+r}, v{base+r}, v{T+1}')
        g(f's_add_u32 s47, s47, {br*64}')
        g('s_lshl_b32 s47, s47, 4')
        g('s_add_u32 s47, s47, s40')
        g('s_lshl_b32 s47, s47, 11')
        for i in range(4): g(f'v_cvt_pk_bf16_f32 v{tmp+i}, v{base+2*i}, v{base+2*i+1}')
        if kh == 1:
            g(f'v_cndmask_b32_e64 v{tmp+2}, v{tmp+2}, 0, s[60:61]')
            g(f'v_cndmask_b32_e64 v{tmp+3}, v{tmp+3}, 0, s[60:61]')
        g('s_nop 1')
        g(f'buffer_store_dwordx4 {vr(tmp,4)}, v2, s[36:39], s47 offen offset:{kh*1024}{ST()}')
        g('s_nop 1')
    def fallback(tag, br, O, q):
        FS, FK, FV, FP, FQ, Fm = FB, FB+16, FB+24, FB+32, FB+40, FB+48
        s = 28 if br == 0 else 32
        for i in range(8): g(f'v_mov_b32 v{FQ+i}, v{q+i}')
        g('s_mov_b64 exec, s[60:61]')
        g(f'v_mov_b32 v{FQ+6}, 0')
        g('s_mov_b64 exec, -1')
        for r in range(16): g(f'v_mov_b32 v{O+r}, 0')
        g(f'v_mov_b32 v{Fm}, v25')
        if br == 0:
            g('s_lshl_b32 s52, s41, 2')
            g('s_add_u32 s52, s52, s42')
            g('s_sub_u32 s53, s52, 8')
            g('s_mov_b32 s54, s52')
        else:
            g('s_mov_b32 s54, 63')
        g.label(f'L{tag}_fb_loop')
        g('s_lshl_b32 s55, s54, 12')
        for i in range(2):
            g(f'buffer_load_dwordx4 {vr(FK+4*i,4)}, v2, s[{s}:{s+3}], s55 offen offset:{i*1024}{LD()}')
            g(f'buffer_load_dwordx4 {vr(FV+4*i,4)}, v2, s[{s}:{s+3}], s55 offen offset:{2048+i*1024}{LD()}')
        if br == 0:
            g('s_cmp_eq_u32 s54, s52')
            g(f's_cbranch_scc1 L{tag}_fb_diag')
            g('s_cmp_eq_u32 s54, s53')
            g(f's_cbranch_scc1 L{tag}_fb_first')
        for r in range(16): g(f'v_mov_b32 v{FS+r}, 0')
        if br == 0:
            g(f's_branch L{tag}_fb_go')
            g.label(f'L{tag}_fb_diag')
            set_mask(g, FS, 'diag')
            g(f's_branch L{tag}_fb_go')
            g.label(f'L{tag}_fb_first')
            set_mask(g, FS, 'first')
            g.label(f'L{tag}_fb_go')
        g('s_waitcnt vmcnt(0)')
        g('s_nop 1')
        g(mfma(FS, FK, FQ, FS))
        g(mfma(FS, FK+4, FQ+4, FS))
        g('s_nop 15')
        rowmax(FS, Fm+1)
        g(f'v_max_f32 v{Fm+1}, v{Fm+1}, v{Fm}')
        g(f'v_sub_f32 v{Fm+2}, v{Fm}, v{Fm+1}')
        g(f'v_exp_f32 v{Fm+2}, v{Fm+2}')
        g(f'v_mov_b32 v{Fm}, v{Fm+1}')
        for r in range(16): g(f'v_sub_f32 v{FS+r}, v{FS+r}, v{Fm}')
        for r in range(16): g(f'v_exp_f32 v{FS+r}, v{FS+r}')
        for r in range(16): g(f'v_mul_f32 v{O+r}, v{O+r}, v{Fm+2}')
        for i in range(8): g(f'v_cvt_pk_bf16_f32 v{FP+i}, v{FS+2*i}, v{FS+2*i+1}')
        g('s_nop 1')
        g(mfma(O, FV, FP, O))
        g(mfma(O, FV+4, FP+4, O))
        g('s_nop 15')
        g('s_sub_u32 s54, s54, 1')
        g('s_cmp_lt_i32 s54, 0')
        g(f's_cbranch_scc1 L{tag}_fb_end')
        if br == 0:
            g('s_cmp_lt_i32 s54, s53')
            g(f's_cbranch_scc1 L{tag}_fb_end')
        g(f's_branch L{tag}_fb_loop')
        g.label(f'L{tag}_fb_end')

    g('s_cmp_eq_u32 s43, 0')
    g('s_cbranch_scc0 Lattn_kh1')

    def path(kh):
        tag = f'K{kh}'
        unitsA = [8, 7, 6, 5, 4] if kh == 0 else [3, 2, 1, 0]
        nA = len(unitsA); N = 32 + nA
        def unit(i):
            if i >= 32:
                u = unitsA[i - 32]
                masked = (kh == 0 and u == 8) or (kh == 1 and u == 0)
                return dict(base=3, off=u*4096, Q=QA, O=OA, C=MASK if masked else None, first=(i == 32))
            return dict(b=i, Q=QB, O=OB, C=None, first=(i == 0))
        def addr(i, cs):
            u = unit(i)
            if 'base' in u: return u['base'], u['off']
            b = u['b']; s = b >> 2
            if s == cs: return 4, (b & 3) * 4096
            assert s == cs + 1
            return 5, (b & 3) * 4096
        def rdK(i, cs, dst=KF):
            r, off = addr(i, cs)
            g(f'ds_read_b128 {vr(dst,4)}, v{r} offset:{off}')
            g(f'ds_read_b128 {vr(dst+4,4)}, v{r} offset:{off+1024}')
        def rdV(i, f, cs):
            r, off = addr(i, cs)
            g(f'ds_read_b128 {vr(VF+4*f,4)}, v{r} offset:{off+2048+f*1024}')
        rdK(0, 0)
        g('s_waitcnt lgkmcnt(0)')
        g(mfma(S0, KF, QB, None))
        g(mfma(S0, KF+4, QB+4, S0))
        g('s_nop 15')
        set_standin(S0, QB, MNB)
        g('s_nop 1')
        g(mfma(S0, KF, QB, None))
        g(mfma(S0, KF+4, QB+4, S0))
        rdK(1, 0)
        rdV(0, 0, 0)
        g('s_nop 15')
        if kh == 0: stamp(g, 7)
        if OPT.get('attst'): stamp(g, 2, q=True)
        def wo_piece(it):
            if it == 7:
                sk = newlab('wo7')
                g('s_cmp_lg_u32 s3, 0')
                g(f's_cbranch_scc1 {sk}')
                g(f's_add_u32 m0, s45, {65536 + it*8192}')
                g(f'v_add_u32 v31, {it*64*896}, v30')
                g('buffer_load_dwordx4 v31, s[56:59], 0 offen lds')
                g.label(sk)
            else:
                g(f's_add_u32 m0, s45, {65536 + it*8192}')
                g(f's_mov_b32 s50, {it*64*896}')
                g('buffer_load_dwordx4 v30, s[56:59], s50 offen lds')
        def wo_setup():
            g('s_mov_b32 s56, s14')
            g('s_mov_b32 s57, s15')
            g(f's_mov_b32 s58, {448*896}')
            g('s_mov_b32 s59, 0x20000')
            g('v_lshrrev_b32 v30, 3, v0')
            g('v_and_b32 v31, 7, v0')
            g('v_and_b32 v1, 2, v30')
            g('v_lshlrev_b32 v1, 1, v1')
            g('v_xor_b32 v31, v31, v1')
            g('s_lshl_b32 s50, s3, 3')
            g('v_add_u32 v30, s50, v30')
            g('v_mul_u32_u24 v30, 896, v30')
            g('v_lshl_add_u32 v30, v31, 4, v30')
            g('s_lshr_b32 s50, s2, 5')
            g('s_lshl_b32 s50, s50, 7')
            g('s_cmp_ge_u32 s2, 224')
            g('s_cselect_b32 s50, 0x40000000, s50')
            g('v_add_u32 v30, s50, v30')
            g('s_lshl_b32 s45, s3, 10')
        def dma_slot(i, inloop):
            if i == 0 or i == 1:
                st = i + 2
                g(f's_add_u32 s54, s55, {st*32768}')
                g(f's_add_u32 m0, s55, {(st&3)*32768}')
                g('s_nop 0')
                for k in range(4):
                    g(f'buffer_load_dwordx4 v2, s[32:35], s54 offen offset:{k*1024}{LD()} lds')
                return
            if i == 2 and kh == 0:
                for t in range(3):
                    g(f'buffer_store_dwordx4 {vr(208+8*t,4)}, v2, s[56:59], s{(48,49,53)[t]} offen{ST()}')
                    g(f'buffer_store_dwordx4 {vr(212+8*t,4)}, v2, s[56:59], s{(48,49,53)[t]} offen offset:1024{ST()}')
                return
            if i >= 30:
                if i == 30: wo_setup()
                before34 = {30: [0], 31: [1], 32: [2], 33: [3], 34: [4, 5], 35: [6, 7]}
                for it in before34.get(i, []): wo_piece(it)
                return
            if i == 12 and kh == 1 and OPT.get('wol2', 1):
                sk = newlab('wol2')
                g('s_cmp_gt_u32 s3, 5')
                g(f's_cbranch_scc1 {sk}')
                srd(g, 56, 8, 9, 448*896)
                g('s_lshr_b32 s47, s2, 3')
                g('s_mul_i32 s47, s47, 98')
                g('s_sub_u32 s48, s3, 4')
                g('s_lshl_b32 s48, s48, 6')
                g('s_add_u32 s47, s47, s48')
                g('v_add_u32 v204, s47, v0')
                g('v_lshlrev_b32 v204, 7, v204')
                g('buffer_load_dword v205, v204, s[56:59], 0 offen')
                g.label(sk)
            if i < 6: return
            ph = (i - 2) & 3; st = ((i - 2) >> 2) + 3
            if i == 18:
                g('buffer_load_dword v201, v31, s[64:67], 0 offen sc1')
            if st <= 7:
                if ph == 0:
                    g(f's_add_u32 s54, s55, {st*32768}')
                    g(f's_add_u32 m0, s55, {(st&3)*32768}')
                    g('s_nop 0')
                g(f'buffer_load_dwordx4 v2, s[32:35], s54 offen offset:{ph*1024}{LD()} lds')
            elif st == 8:
                if ph == 0:
                    ok = newlab('aok')
                    g('v_cmp_ne_u32 vcc, 16, v201')
                    g('s_nop 4')
                    g(f's_cbranch_vccz {ok}')
                    spin_until(g, 201, 31, 16)
                    g.label(ok)
                    if kh == 1:
                        g('s_add_u32 s47, s51, 8192')
                        dma4(2, 24, 's44', 's47', n=2)
                    g('s_mov_b32 m0, s55')
                    g('s_nop 0')
                g(f'buffer_load_dwordx4 v28, s[28:31], 0 offen offset:{ph*1024}{LD()} lds')
            elif st == 9 and ph <= 1 and kh == 0:
                if ph == 0:
                    g('s_add_u32 m0, s55, 32768')
                    g('s_nop 0')
                for k in range(2):
                    g(f'buffer_load_dwordx4 v29, s[28:31], 0 offen offset:{(2*ph+k)*1024}{LD()} lds')
        def body(i, cs, inloop=False):
            u = unit(i)
            sb = SB[i & 1]; sn = SB[(i + 1) & 1]
            e = [f'v_exp_f32 v{sb+r}, v{sb+r}' for r in range(16)]
            c = [f'v_cvt_pk_bf16_f32 v{P+k}, v{sb+2*k}, v{sb+2*k+1}' for k in range(8)]
            has1 = i + 1 < N; has2 = i + 2 < N
            if i < 32 and (i & 3) == 2:
                s = i >> 2
                if s == 7: vm = 0
                elif s == 0: vm = 8
                elif s == 1: vm = 4 if kh == 1 else 10
                elif s == 2: vm = 4
                else: vm = 4
                if OPT.get('attst') and s in (0, 1, 2, 3, 5, 7): stamp(g, {0: 3, 1: 5, 2: 7, 3: 9, 5: 11, 7: 13}[s], q=True)
                g(f's_waitcnt vmcnt({vm}) lgkmcnt(0)' if vm is not None else 's_waitcnt lgkmcnt(0)')
                g('s_barrier')
                if OPT.get('attst') and s in (0, 1, 2, 3, 5, 7): stamp(g, {0: 4, 1: 6, 2: 8, 3: 10, 5: 12, 7: 14}[s], q=True)
                if s == 2 and kh == 1:
                    sk = newlab('sigA')
                    g('s_cmp_lg_u32 s3, 4')
                    g(f's_cbranch_scc1 {sk}')
                    g('s_mov_b64 exec, 1')
                    g('v_mov_b32 v1, 1')
                    g('s_lshl_b32 s47, s69, 8')
                    g('v_mov_b32 v202, s47')
                    g('buffer_atomic_add v1, v202, s[64:67], 0 offen sc1')
                    g('s_mov_b64 exec, -1')
                    g.label(sk)
                if s == 6:
                    g(f'ds_read_b128 {vr(QA,4)}, v{QL} offset:8192')
                    g(f'ds_read_b128 {vr(QA+4,4)}, v{QL} offset:9216')
                if s == 7 and kh == 0:
                    g(f'v_mov_b32 v204, {LFLAG}')
                    g('v_mov_b32 v205, 0')
                    g('ds_write_b32 v204, v205')
                    g('ds_write_b32 v204, v205 offset:4')
                    rdK(32, cs, TK)
                    g('s_waitcnt lgkmcnt(0)')
                    g(mfma(TS, TK, QA, unit(32)['C']))
                    g(mfma(TS, TK+4, QA+4, TS))
                    g('s_nop 15')
                    set_standin(TS, QA, MNA)
            elif i == 31 and kh == 1:
                g('s_waitcnt lgkmcnt(0)')
                g(mfma(TS, KF, QA, unit(32)['C']))
                g(mfma(TS, KF+4, QA+4, TS))
                g('s_nop 15')
                set_standin(TS, QA, MNA)
                g('s_lshl_b32 s47, s41, 2')
                g('s_add_u32 s47, s47, s42')
                g('s_cmp_lt_u32 s47, 5')
                g(f's_cbranch_scc0 L{tag}_valid')
                g(f'v_mov_b32 v{MNA}, {POSBIG:#x}')
                g.label(f'L{tag}_valid')
            elif i == 34:
                if OPT.get('tailst'): stamp(g, 3, q=True)
                g('s_waitcnt lgkmcnt(0)')
                g('s_barrier')
                if OPT.get('tailst'): stamp(g, 4, q=True)
                if kh == 1 or not OPT.get('stag', 0):
                    finish_half(f'FB{kh}', kh, 1, OB, MNB, QB, TS)
                if OPT.get('tailst'): stamp(g, 5, q=True)
            elif i == 35 and kh == 0 and OPT.get('stag', 0):
                g('s_waitcnt lgkmcnt(0)')
                finish_half(f'FB{kh}', kh, 1, OB, MNB, QB, TS)
            else:
                g('s_waitcnt lgkmcnt(0)')
            pm = OPT.get('prio', 'lag')
            if pm == 'lag':
                g(f's_setprio {3 - ((i - 2) & 3)}')
            elif pm == 'lag2' and ((i - 2) & 1) == 0:
                g(f's_setprio {1 - (((i - 2) & 3) >> 1)}')
            elif pm == 'half':
                g(f's_setprio {3 - (((i - 2) & 1) * 2)}')
            g(e[0])
            if i > 0:
                up = unit(i - 1)
                g(mfma(up['O'], VF+4, P+4, up['O']))
            rdV(i, 1, cs)
            g(e[1]); g(e[2]); g(e[3])
            g(c[0])
            if i == 33:
                write_half(kh, 1, OB, MNB)
            if has1:
                un = unit(i + 1)
                g(mfma(sn, KF, un['Q'], un['C']))
            g(e[4]); g(e[5]); g(c[1]); g(e[6]); g(e[7]); g(c[2])
            if has1:
                g(mfma(sn, KF+4, un['Q']+4, sn))
            if has2:
                rdK(i + 2, cs)
            g(e[8]); g(c[3]); g(e[9]); g(e[10])
            dma_slot(i, inloop)
            g(e[11])
            if OPT.get('prio') == 'half':
                g(f's_setprio {2 - (((i - 2) & 1) * 2)}')
            g(mfma(u['O'], VF, P, None if u['first'] else u['O']))
            if has1:
                rdV(i + 1, 0, cs)
            for x in e[12:16]: g(x)
            g(c[4]); g(c[5]); g(c[6]); g(c[7])
        def advance():
            g('v_mov_b32 v4, v5')
            g('v_add_u32 v5, 32768, v5')
            g('v_and_b32 v5, 0x1ffff, v5')
        return body, advance, N, tag
    for kh in (0, 1):
        if kh == 1: g.label('Lattn_kh1')
        body, advance, N, tag = path(kh)
        for s_ in range(7):
            for j in range(4): body(4*s_ + j, s_)
            advance()
        for j in range(4): body(28 + j, 7)
        if kh == 0: stamp(g, 8)
        if OPT.get('tailst'): stamp(g, 2, q=True)
        for i in range(32, N): body(i, 7)
        g('s_waitcnt lgkmcnt(0)')
        g('s_nop 1')
        g(mfma(OA, VF+4, P+4, OA))
        g('s_nop 15')
        if OPT.get('tailst'): stamp(g, 6, q=True)
        write_half(kh, 0, OA, MNA)
        g(f's_waitcnt vmcnt({1 if (kh == 0 and OPT.get("stag", 0)) else 3}) lgkmcnt(0)')
        g('s_barrier')
        if OPT.get('tailst'): stamp(g, 7, q=True)
        if kh == 1: signal_o(g, CNT_OB, 4)
        finish_half(f'FA{kh}', kh, 0, OA, MNA, QA, TS)
        if OPT.get('tailst'): stamp(g, 8, q=True)
        if OPT.get('woearly', 0):
            woA_issue(g)
            g('s_waitcnt vmcnt(7)')
        else:
            g('s_waitcnt vmcnt(0)')
        if OPT.get('tailst'): stamp(g, 9, q=True)
        g('s_mov_b64 exec, 1')
        g('v_mov_b32 v1, 1')
        g('s_lshl_b32 s47, s41, 8')
        g(f's_add_u32 s47, s47, {CNT_OA}')
        g('v_mov_b32 v31, s47')
        g('buffer_atomic_add v1, v31, s[64:67], 0 offen sc1')
        g('s_mov_b64 exec, -1')
        if not OPT.get('woearly', 0): woA_issue(g)
        stamp(g, 9)
        if kh == 1:
            proj_group_B(g)
        else:
            proj_group_A(g)
    proj_common(g)

PJ_EX = 131072
def proj_setup(g, br):
    g(f's_mov_b32 s40, {br}')
    g('s_and_b32 s41, s2, 7')
    g('s_lshl_b32 s41, s41, 2')
    g('s_bfe_u32 s42, s2, 0x20003')
    g('s_add_u32 s41, s41, s42')
    g('s_lshr_b32 s42, s2, 5')
    g('s_and_b32 s43, s3, 1')
    g('s_bfe_u32 s44, s3, 0x10001')
    srd(g, 24, 16, 17, 2048 * 1792)
    g('s_lshl_b32 s45, s41, 1')
    g('s_add_u32 s45, s45, s43')
    g(f's_add_u32 s45, s45, {br*64}')
    g('s_lshl_b32 s45, s45, 15')
    g('s_lshl_b32 s46, s44, 14')
    g('s_add_u32 s45, s45, s46')
    g('v_bfe_u32 v4, v0, 2, 2')
    g('v_and_b32 v5, 3, v0')
    g('v_bfe_u32 v7, v0, 4, 1')
    g('v_lshrrev_b32 v6, 5, v0')
    g('v_lshlrev_b32 v7, 5, v7')
    g('v_lshl_add_u32 v7, v5, 3, v7')
    g('v_lshrrev_b32 v11, 4, v7')
    g('v_and_b32 v8, 2, v4')
    g('v_lshlrev_b32 v8, 1, v8')
    g('v_xor_b32 v11, v11, v8')
    g('v_and_b32 v7, 15, v7')
    g('v_lshl_add_u32 v7, v11, 4, v7')
    g('v_lshl_add_u32 v4, v6, 2, v4')
    g('v_lshl_add_u32 v9, v4, 7, v7')
    g('s_mul_i32 s46, s44, 28672')
    if br: g('s_add_u32 s46, s46, 65536')
    g('v_add_u32 v9, s46, v9')
    g('v_xor_b32 v10, 64, v9')
    g('s_lshl_b32 s46, s43, 1')
    g('s_add_u32 s46, s46, s44')
    g(f's_add_u32 s46, s46, {br*4}')
    g('s_lshl_b32 s46, s46, 12')
    g(f's_add_u32 s46, s46, {PJ_EX}')
    g('v_add_u32 v12, s46, v2')
    g('v_xor_b32 v13, 4096, v12')
    g('s_lshr_b32 s46, s41, 1')
    g('s_lshl_b32 s46, s46, 8')
    g(f's_add_u32 s46, s46, {CNT_OB if br else CNT_OA}')
    g('v_mov_b32 v30, s46')
def o_loads(g):
    OF = 64
    for n in range(16):
        if n % 4 == 0 and n > 0: g('s_add_u32 s45, s45, 4096')
        g(f'buffer_load_dwordx4 {vr(OF+4*n,4)}, v2, s[36:39], s45 offen offset:{(n%4)*1024}{LD()}')
def signal_o(g, cnt, wave):
    sk = newlab('sigO')
    g(f's_cmp_lg_u32 s3, {wave}')
    g(f's_cbranch_scc1 {sk}')
    g('s_mov_b64 exec, 1')
    g('v_mov_b32 v1, 1')
    g('s_lshl_b32 s47, s41, 8')
    g(f's_add_u32 s47, s47, {cnt}')
    g('v_mov_b32 v31, s47')
    g('buffer_atomic_add v1, v31, s[64:67], 0 offen sc1')
    g('s_mov_b64 exec, -1')
    g.label(sk)
def woA_issue(g):
    srd(g, 56, 8, 9, 448*896)
    g('v_lshrrev_b32 v30, 3, v0')
    g('v_and_b32 v29, 7, v0')
    g('v_and_b32 v1, 2, v30')
    g('v_lshlrev_b32 v1, 1, v1')
    g('v_xor_b32 v29, v29, v1')
    g('s_lshl_b32 s51, s3, 3')
    g('v_add_u32 v30, s51, v30')
    g('v_mul_u32_u24 v30, 896, v30')
    g('v_lshl_add_u32 v30, v29, 4, v30')
    g('s_lshr_b32 s51, s2, 5')
    g('s_lshl_b32 s51, s51, 7')
    g('s_cmp_ge_u32 s2, 224')
    g('s_cselect_b32 s51, 0x40000000, s51')
    g('v_add_u32 v30, s51, v30')
    g('s_lshl_b32 s52, s3, 10')
    sk = newlab('woA')
    for it in range(8):
        if it == 7:
            g('s_cmp_lg_u32 s3, 0')
            g(f's_cbranch_scc1 {sk}')
            g(f's_add_u32 m0, s52, {it*8192}')
            g(f'v_add_u32 v29, {it*64*896}, v30')
            g('buffer_load_dwordx4 v29, s[56:59], 0 offen lds')
        else:
            g(f's_add_u32 m0, s52, {it*8192}')
            g(f's_mov_b32 s51, {it*64*896}')
            g('buffer_load_dwordx4 v30, s[56:59], s51 offen lds')
    g.label(sk)
def proj_group_B(g):
    g('s_cmp_ge_u32 s2, 224')
    g('s_cbranch_scc1 Lpj_idleB')
    proj_setup(g, 1)
    g('s_waitcnt vmcnt(0)')
    g('s_barrier')
    if OPT.get('tailst'): stamp(g, 10, q=True)
    group_wait(g, 4, 1, 1, 30, 16)
    if OPT.get('tailst'): stamp(g, 11, q=True)
    stamp(g, 10)
    o_loads(g)
    g('s_branch Lproj_common')
    g.label('Lpj_idleB')
    g('s_barrier')
    g('s_branch Lend')
def proj_group_A(g):
    g('s_cmp_ge_u32 s2, 224')
    sk = newlab('idleA')
    g(f's_cbranch_scc1 {sk}')
    proj_setup(g, 0)
    g('s_waitcnt vmcnt(0)')
    g('s_barrier')
    if OPT.get('tailst'): stamp(g, 10, q=True)
    group_wait(g, 0, 0, 1, 30, 128)
    if OPT.get('tailst'): stamp(g, 11, q=True)
    stamp(g, 10)
    o_loads(g)
    g('s_branch Lproj_common')
    g.label(sk)
    g('s_barrier')
    g('s_branch Lend')
def proj_common(g):
    g.label('Lproj_common')
    OF = 64; ACC = 16; WF = 48
    def rd(n, buf):
        h, i = divmod(n, 2)
        for ct in range(2):
            for jj in range(2):
                off = (28*h + 16*i + 8*jj) * 128
                g(f'ds_read_b64_tr_b16 {vr(WF+8*buf+4*ct+2*jj,2)}, v{9+ct} offset:{off}')
    rd(0, 0)
    for n in range(16):
        if n + 1 < 16: rd(n + 1, (n + 1) & 1)
        g(f's_waitcnt vmcnt({15-n}) lgkmcnt({4 if n + 1 < 16 else 0})')
        for ct in range(2):
            g(mfma(ACC + 16*ct, WF + 8*(n & 1) + 4*ct, OF + 4*n, None if n == 0 else ACC + 16*ct))
    g('s_nop 15')
    stamp(g, 12, q=True)
    g('s_cmp_eq_u32 s44, 0')
    g('s_cbranch_scc0 Lpj_k1')
    for i in range(4): g(f'ds_write_b128 v12, {vr(ACC+16+4*i,4)} offset:{i*1024}')
    g('s_branch Lpj_k2')
    g.label('Lpj_k1')
    for i in range(4): g(f'ds_write_b128 v12, {vr(ACC+4*i,4)} offset:{i*1024}')
    for r in range(16): g(f'v_mov_b32 v{ACC+r}, v{ACC+16+r}')
    g.label('Lpj_k2')
    g('s_waitcnt lgkmcnt(0)')
    g('s_barrier')
    for i in range(4): g(f'ds_read_b128 {vr(64+4*i,4)}, v13 offset:{i*1024}')
    g('v_and_b32 v4, 31, v0')
    g('s_lshl_b32 s46, s41, 6')
    g('s_lshl_b32 s47, s43, 5')
    g('s_add_u32 s46, s46, s47')
    g('v_add_u32 v4, s46, v4')
    g('v_mul_u32_u24 v4, 1792, v4')
    g('v_lshl_add_u32 v4, v6, 4, v4')
    g('s_mul_i32 s46, s40, 896')
    g('s_lshl_b32 s47, s42, 7')
    g('s_add_u32 s46, s46, s47')
    g('s_lshl_b32 s47, s44, 6')
    g('s_add_u32 s46, s46, s47')
    g('s_waitcnt lgkmcnt(0)')
    for r in range(16): g(f'v_add_f32 v{ACC+r}, v{ACC+r}, v{64+r}')
    P = 48
    for i in range(8): g(f'v_cvt_pk_bf16_f32 v{P+i}, v{ACC+2*i}, v{ACC+2*i+1}')
    g('s_nop 1')
    for k in range(2):
        a = P + 4*k
        g(f'v_permlane32_swap_b32 v{a}, v{a+2}')
        g(f'v_permlane32_swap_b32 v{a+1}, v{a+3}')
    g('s_nop 1')
    for k in range(2):
        g(f'buffer_store_dwordx4 {vr(P+4*k,4)}, v4, s[24:27], s46 offen offset:{32*k}' + ((' ' + OPT['ost']) if OPT.get('ost') else ''))

HEADER = '''; Kernarg layout for this problem (72 bytes, ptrs only, base s[0:1]):
'''
DESIGN = """; Design: one persistent launch, 256 workgroups (one per CU), 8 waves each.
;  phase 1  QKV projection, branch B then branch A (waves 4-7 stage x / W tiles into LDS by LDS-DMA, waves 0-3 run the MFMAs);
;           Q (pre-scaled by log2(e)/sqrt(28)), K, V are written to d_ws in MFMA fragment order (write-through stores + counters).
;           m = row max over the first key tile of each wave (a running max that is not updated); a run-time check (l >= 2^100 or a
"""
def main(out):
    g = Gen()
    g.raw(f'.globl {NAME}')
    g.raw('.p2align 8')
    g.raw(f'.type {NAME},@function')
    g.label(NAME)
    g('s_cmp_ge_u32 s2, 256')
    g('s_cbranch_scc1 Lexit')
    if OPT.get('tl'):
        for r in range(70, 102): g(f's_mov_b32 s{r}, 0')
    stamp(g, 0); stamp(g, 15, True)
    if OPT.get('tl'): g('s_memtime s[98:99]')
    g('s_load_dwordx16 s[4:19], s[0:1], 0')
    g('s_load_dwordx2 s[20:21], s[0:1], 64')
    g('v_lshrrev_b32 v1, 6, v0')
    g('v_and_b32 v0, 63, v0')
    g('s_nop 0')
    g('v_readfirstlane_b32 s3, v1')
    if OPT.get('swapw'): g('s_xor_b32 s3, s3, 4')
    prologue(g)
    qkv_loader(g)
    qkv_compute(g)
    phase_attn(g)
    g.label('Lend')
    if OPT['stamps'] or OPT.get('tl'): g('s_waitcnt vmcnt(0)')
    stamp(g, 13)
    if OPT.get('tl'):
        sk = newlab('tl')
        g(f's_cmp_lg_u32 s3, {OPT.get("tlw", 0)}')
        g(f's_cbranch_scc1 {sk}')
        g('s_memtime s[100:101]')
        g('s_waitcnt lgkmcnt(0)')
        srd(g, 56, 18, 19, 256)
        g('s_mov_b64 exec, 1')
        g('s_sub_u32 s100, s84, s80')
        g('s_sub_u32 s99, s86, s82')
        g('v_mov_b32 v20, s100')
        g('v_mov_b32 v21, s99')
        g('v_mov_b32 v3, 0')
        g('buffer_atomic_umax v20, v3, s[56:59], 0 offen offset:52')
        g('buffer_atomic_umax v21, v3, s[56:59], 0 offen offset:56')
        g('s_not_b32 s68, s70')
        g('v_mov_b32 v1, s68')
        g('v_mov_b32 v3, 0')
        g('buffer_atomic_umax v1, v3, s[56:59], 0 offen offset:4')
        for k, i in enumerate((0, 2, 3, 4, 6, 8, 9, 10, 11, 12, 13)):
            g(f'v_mov_b32 v{4+k}, s{70+2*i}')
            g(f'buffer_atomic_umax v{4+k}, v3, s[56:59], 0 offen offset:{8+4*k}')
        g('s_waitcnt vmcnt(0)')
        g.label(sk)
    if OPT['stamps']: g('s_memrealtime s[72:73]')
    stamp_dump(g)
    g.label('Lexit')
    g('s_endpgm')
    txt = HEADER + f'; @launch grid=(256,1,1) block=(512,1,1) lds={LDS_BYTES}\n'
    txt += DESIGN
    txt += '.amdgcn_target "amdgcn-amd-amdhsa--gfx950"\n.text\n' + g.text()
    txt += f'''.section .rodata,"a"
.p2align 6
.amdhsa_kernel {NAME}
  .amdhsa_next_free_vgpr 232
  .amdhsa_next_free_sgpr 102
  .amdhsa_accum_offset 232
  .amdhsa_group_segment_fixed_size 0
  .amdhsa_kernarg_size 72
  .amdhsa_user_sgpr_count 2
  .amdhsa_user_sgpr_kernarg_segment_ptr 1
  .amdhsa_system_sgpr_workgroup_id_x 1
.end_amdhsa_kernel
'''
    open(out, 'w').write(txt)

if __name__ == '__main__':
    out = sys.argv[1] if len(sys.argv) > 1 else 'concat_heads__sliding_block__softmax_full_mha__prompt.s'
    for a in sys.argv[2:]:
        if '=' in a:
            k, v = a.split('=', 1)
            OPT[k] = v if k in ('st', 'ld', 'prio', 'ost', 'inl') else (int(v) if v.isdigit() else v)
        else:
            OPT[a] = True
    main(out)
```

```python
import sys, math, struct

def f32bits(x): return struct.unpack('<I', struct.pack('<f', x))[0]

class Gen:
    def __init__(self): self.lines = []
    def __call__(self, s):
        for l in s.split('\n'):
            l = l.strip()
            if l: self.lines.append('  ' + l)
    def label(self, s): self.lines.append(s + ':')
    def raw(self, s): self.lines.append(s)
    def text(self): return '\n'.join(self.lines) + '\n'

def vr(base, n): return f'v[{base}:{base+n-1}]'
def mfma(d, a, b, c):
    cs = '0' if c is None else vr(c, 16)
    return f'v_mfma_f32_32x32x16_bf16 {vr(d,16)}, {vr(a,4)}, {vr(b,4)}, {cs}'

OPT = dict(stamps=False, st='sc1', ld='', spin=200000, pf=5)
NAME = 'concat_heads__sliding_block__softmax_full_mha__prompt_kernel'
STAMP_BASE = 0x2000000
def stamp(g, i, real=False, q=False):
    if OPT.get('tl'):
        if i in (0, 2, 3, 4, 6, 8, 9, 10, 11, 12, 13): g(f's_memrealtime s[{70+2*i}:{71+2*i}]')
        if i == 6: g('s_memtime s[80:81]')
        if i == 8: g('s_memtime s[84:85]')
        return
    if not OPT['stamps']: return
    import inspect
    if OPT.get('qkvst') and 5 <= i <= 13:
        caller = inspect.stack()[1].function
        if caller != 'qkv_compute': return
    if (OPT.get('attst') or OPT.get('probe') or OPT.get('tailst')) and 2 <= i <= 12 and not q: return
    op = 's_memrealtime' if real else 's_memtime'
    g(f'{op} s[{70+2*i}:{71+2*i}]')
def stamp_dump(g):
    if not OPT['stamps']: return
    g('s_waitcnt lgkmcnt(0) vmcnt(0)')
    g(f's_add_u32 s64, s20, {STAMP_BASE}')
    g(f's_addc_u32 s65, s21, 0')
    g('s_mov_b32 s66, 0x100000')
    g('s_mov_b32 s67, 0x20000')
    g('s_mov_b64 exec, -1')
    g('v_mov_b32 v1, 0')
    for i in range(16):
        g(f'v_writelane_b32 v1, s{70+2*i}, {i}')
    g('s_lshl_b32 s68, s2, 3')
    g('s_add_u32 s68, s68, s3')
    g('s_lshl_b32 s68, s68, 6')
    g('v_lshlrev_b32 v3, 2, v0')
    g('v_cmp_gt_u32 vcc, 16, v0')
    g('s_and_saveexec_b64 s[62:63], vcc')
    g('buffer_store_dword v1, v3, s[64:67], s68 offen')
    g('s_waitcnt vmcnt(0)')

WS_Q = 0
WS_KV = 0x400000
WS_O = 0xC00000
WS_CNT = 0x1000000
CNT_A, CNT_B, CNT_OA, CNT_OB = 0, 16 * 256, 32 * 256, 48 * 256
QSCALE = (28 ** -0.5) * math.log2(math.e)
NEGBIG = 0xf149f2ca
POSBIG = 0x7149f2ca
LDS_BYTES = 163840

def srd(g, dst, lo, hi, nbytes, add=0):
    if add:
        g(f's_add_u32 s{dst}, s{lo}, {add}')
        g(f's_addc_u32 s{dst+1}, s{hi}, 0')
    else:
        g(f's_mov_b32 s{dst}, s{lo}')
        g(f's_mov_b32 s{dst+1}, s{hi}')
    g(f's_mov_b32 s{dst+2}, {nbytes}')
    g(f's_mov_b32 s{dst+3}, 0x20000')
def ST(): return (' ' + OPT['st']) if OPT['st'] else ''
def INL(): return (' ' + OPT['inl']) if OPT.get('inl') else ''
def LD(): return (' ' + OPT['ld']) if OPT['ld'] else ''
lab = [0]
def newlab(p):
    lab[0] += 1
    return f'L{p}_{lab[0]}'

def spin_until(g, vdst, voff, target, tmp=205):
    l0 = newlab('poll'); l1 = newlab('pdone')
    g(f's_mov_b32 s68, {OPT["spin"]}')
    g.label(l0)
    g(f'buffer_load_dword v{vdst}, v{voff}, s[64:67], 0 offen sc1')
    g('s_waitcnt vmcnt(0)')
    g(f'v_cmp_ne_u32 vcc, {target}, v{vdst}')
    g('s_nop 4')
    g(f's_cbranch_vccz {l1}')
    if OPT.get('sleep', 1): g(f's_sleep {OPT.get("sleep", 1)}')
    g('s_sub_u32 s68, s68, 1')
    g('s_cmp_lg_u32 s68, 0')
    g(f's_cbranch_scc1 {l0}')
    g.label(l1)
LFLAG = 65536 - 64
def group_wait(g, leader, word, vdst, voff, target):
    lf = newlab('follow'); ld = newlab('gdone'); lp = newlab('lspin')
    g(f'v_mov_b32 v204, {LFLAG + 4*word}')
    g(f's_cmp_lg_u32 s3, {leader}')
    g(f's_cbranch_scc1 {lf}')
    spin_until(g, vdst, voff, target)
    g('v_mov_b32 v205, 1')
    g('ds_write_b32 v204, v205')
    g('s_waitcnt lgkmcnt(0)')
    g(f's_branch {ld}')
    g.label(lf)
    g(f's_mov_b32 s68, {OPT["spin"] * 16}')
    g.label(lp)
    g('ds_read_b32 v205, v204')
    g('s_waitcnt lgkmcnt(0)')
    g('v_readfirstlane_b32 s47, v205')
    g('s_cmp_lg_u32 s47, 0')
    g(f's_cbranch_scc1 {ld}')
    g('s_sleep 1')
    g('s_sub_u32 s68, s68, 1')
    g('s_cmp_lg_u32 s68, 0')
    g(f's_cbranch_scc1 {lp}')
    g.label(ld)

WROW = 176
WSTG = 64 * WROW
NCH = 14
def prologue(g):
    g('s_and_b32 s40, s2, 7')
    g('s_lshr_b32 s41, s2, 3')
    g('s_lshr_b32 s22, s40, 1')
    g('s_lshl_b32 s22, s22, 2')
    g('s_and_b32 s42, s41, 3')
    g('s_add_u32 s22, s22, s42')
    g('s_and_b32 s23, s40, 1')
    g('s_lshl_b32 s23, s23, 3')
    g('s_lshr_b32 s42, s41, 2')
    g('s_add_u32 s23, s23, s42')
    g('s_add_u32 s69, s23, 1')
    g('s_and_b32 s69, s69, 7')
    g('s_and_b32 s42, s23, 8')
    g('s_or_b32 s69, s69, s42')
    g('s_cmp_lt_u32 s3, 4')
    g('s_cbranch_scc1 Lcompute')

def kvb_srd(g):
    g('s_and_b32 s40, s2, 7')
    g('s_bfe_u32 s41, s2, 0x10003')
    g('s_lshl_b32 s40, s40, 1')
    g('s_add_u32 s40, s40, s41')
    g('s_lshl_b32 s47, s40, 18')
    g(f's_add_u32 s47, s47, {WS_KV + 0x400000}')
    g('s_add_u32 s32, s20, s47')
    g('s_addc_u32 s33, s21, 0')
    g('s_mov_b32 s34, 0x40000')
    g('s_mov_b32 s35, 0x20000')
    g('s_lshl_b32 s55, s3, 12')
def stage_tile(g, st):
    g(f's_add_u32 s54, s55, {st*32768}')
    g(f's_add_u32 m0, s55, {(st&3)*32768}')
    g('s_nop 0')
    for i in range(4):
        g(f'buffer_load_dwordx4 v2, s[32:35], s54 offen offset:{i*1024}{LD()} lds')
def init_dma_compute(g):
    kvb_srd(g)
    stage_tile(g, 0)
    stage_tile(g, 1)

def pf_lines(g, br, part, vt, vd):
    if part == 'x':
        lo, hi = (10, 11) if br else (4, 5)
        srd(g, 24, lo, hi, 1835008)
        g('s_bfe_u32 s46, s2, 0x20001')
        g('s_mul_i32 s46, s46, 458752')
        g('s_lshr_b32 s47, s2, 3')
        g('s_mul_i32 s47, s47, 14336')
        g('s_add_u32 s46, s46, s47')
        g(f'v_lshlrev_b32 v{vt}, 7, v0')
        g(f'v_add_u32 v{vt}, s46, v{vt}')
        g(f'buffer_load_dword v{vd}, v{vt}, s[24:27], 0 offen')
        g(f'v_add_u32 v{vt}, 8192, v{vt}')
        g('s_mov_b64 exec, 0x0000ffffffffffff') if False else None
        g('v_cmp_gt_u32 vcc, 48, v0')
        g('s_and_saveexec_b64 s[44:45], vcc')
        g(f'buffer_load_dword v{vd+1}, v{vt}, s[24:27], 0 offen')
        g('s_mov_b64 exec, s[44:45]')
    else:
        lo, hi = (12, 13) if br else (6, 7)
        srd(g, 24, lo, hi, 1204224)
        g('s_and_b32 s46, s2, 1')
        g('s_mul_i32 s46, s46, 1280')
        g('s_lshr_b32 s47, s2, 3')
        g('s_mul_i32 s47, s47, 37632')
        g('s_add_u32 s46, s46, s47')
        for k in range(3):
            g(f'v_add_u32 v{vt}, {64*k}, v0')
            g(f'v_mul_u32_u24 v{vt+1}, 5958, v{vt}')
            g(f'v_lshrrev_b32 v{vt+1}, 16, v{vt+1}')
            g(f'v_mul_u32_u24 v{vt+2}, 11, v{vt+1}')
            g(f'v_sub_u32 v{vt+2}, v{vt}, v{vt+2}')
            g(f'v_mul_u32_u24 v{vt+1}, 2688, v{vt+1}')
            g(f'v_lshl_add_u32 v{vt+1}, v{vt+2}, 7, v{vt+1}')
            g(f'v_add_u32 v{vt+1}, s46, v{vt+1}')
            if k == 2:
                g('v_cmp_gt_u32 vcc, 26, v0')
                g('s_and_saveexec_b64 s[44:45], vcc')
            g(f'buffer_load_dword v{vd+k}, v{vt+1}, s[24:27], 0 offen')
            if k == 2: g('s_mov_b64 exec, s[44:45]')

def PREFETCH_A(g):
    l1 = newlab('pf'); l2 = newlab('pf'); ld = newlab('pf')
    g('s_cmp_ge_u32 s3, 2')
    g(f's_cbranch_scc1 {l1}')
    srd(g, 24, 4, 5, 1835008)
    g('s_mul_i32 s46, s2, 7168')
    g('s_lshl_b32 s47, s3, 12')
    g('s_add_u32 s46, s46, s47')
    g('v_add_u32 v20, s46, v2')
    for i in range(4):
        g(f'buffer_load_dwordx4 v[{144+4*i}:{147+4*i}], v20, s[24:27], 0 offen offset:{i*1024}')
    g(f's_branch {ld}')
    g.label(l1)
    g('s_cmp_eq_u32 s3, 2')
    g(f's_cbranch_scc0 {l2}')
    srd(g, 24, 6, 7, 1204224)
    g('s_mul_i32 s46, s2, 4704')
    g('v_add_u32 v20, s46, v2')
    g('v_add_u32 v21, 4096, v20')
    for i in range(5):
        g(f'buffer_load_dwordx4 v[{144+4*i}:{147+4*i}], v{20 if i < 4 else 21}, s[24:27], 0 offen offset:{(i%4)*1024}')
    g(f's_branch {ld}')
    g.label(l2)
    g('s_mul_i32 s46, s2, 1568')
    g('v_add_u32 v20, s46, v2')
    srd(g, 24, 8, 9, 448*896)
    for i in range(2):
        g(f'buffer_load_dwordx4 v[{144+4*i}:{147+4*i}], v20, s[24:27], 0 offen offset:{i*1024}')
    srd(g, 28, 14, 15, 448*896)
    for i in range(2):
        g(f'buffer_load_dwordx4 v[{152+4*i}:{155+4*i}], v20, s[28:31], 0 offen offset:{i*1024}')
    g.label(ld)

def qkv_compute(g):
    g.label('Lcompute')
    g('v_and_b32 v4, 31, v0')
    g('s_lshl_b32 s44, s3, 5')
    g('v_add_u32 v4, s44, v4')
    g('v_lshlrev_b32 v4, 7, v4')
    g('v_bfe_u32 v5, v0, 1, 3')
    g('v_lshrrev_b32 v6, 5, v0')
    for ks in range(4):
        g(f'v_add_u32 v7, {2*ks}, v6')
        g('v_xor_b32 v7, v7, v5')
        g(f'v_lshl_add_u32 v{12+ks}, v7, 4, v4')
    g('v_bfe_u32 v4, v0, 2, 2')
    g('v_and_b32 v5, 3, v0')
    g('v_bfe_u32 v7, v0, 4, 1')
    g('v_lshlrev_b32 v7, 5, v7')
    g('v_lshl_add_u32 v7, v5, 3, v7')
    g('v_lshlrev_b32 v4, 1, v4')
    g('v_add_u32 v4, v4, v6')
    g(f'v_mul_u32_u24 v4, {2*WROW}, v4')
    g('v_add_u32 v4, v4, v7')
    g('v_add_u32 v16, 65536, v4')
    g('v_lshlrev_b32 v2, 4, v0')
    g('s_waitcnt lgkmcnt(0)')
    if OPT.get('wsoff'):
        g(f's_add_u32 s20, s20, {OPT["wsoff"] << 20}')
        g('s_addc_u32 s21, s21, 0')
    stamp(g, 1)
    srd(g, 32, 20, 21, 0x1000000)
    srd(g, 64, 20, 21, 0x4000, WS_CNT)
    g('s_or_b32 s44, s2, s3')
    g('s_cmp_lg_u32 s44, 0')
    g('s_cbranch_scc1 Lnoinit')
    g('v_lshlrev_b32 v20, 8, v0')
    g('v_mov_b32 v21, 0')
    g('buffer_store_dword v21, v20, s[64:67], 0 offen sc1')
    g('s_waitcnt vmcnt(0)')
    srd(g, 36, 18, 19, 256)
    g('s_mov_b64 exec, 1')
    g('v_mov_b32 v21, 1')
    g('v_mov_b32 v20, 0')
    g('buffer_store_dword v21, v20, s[36:39], 0 offen sc1')
    g('s_mov_b64 exec, -1')
    g.label('Lnoinit')
    if OPT.get('codepf'):
        g('s_getpc_b64 s[24:25]')
        g.label('Lpc_here')
        g(f's_sub_u32 s24, s24, Lpc_here-{NAME}')
        g('s_subb_u32 s25, s25, 0')
        g(f's_mov_b32 s26, Lexit-{NAME}')
        g('s_mov_b32 s27, 0x20000')
        g('s_lshr_b32 s46, s2, 3')
        g('s_lshl_b32 s46, s46, 2')
        g('s_add_u32 s46, s46, s3')
        g('s_lshl_b32 s46, s46, 10')
        g('v_add_u32 v20, s46, v2')
        g('buffer_load_dwordx4 v[144:147], v20, s[24:27], 0 offen')
    if OPT.get('probe'):
        g('s_mul_i32 s46, s2, 7168')
        g('v_add_u32 v20, s46, v2')
        stamp(g, 5, q=True)
        srd(g, 24, 10, 11, 1835008)
        g('buffer_load_dword v160, v20, s[24:27], 0 offen'); g('s_waitcnt vmcnt(0)'); stamp(g, 6, q=True)
        srd(g, 24, 12, 13, 1204224)
        g('s_mul_i32 s46, s2, 4704'); g('v_add_u32 v21, s46, v2')
        g('buffer_load_dword v160, v21, s[24:27], 0 offen'); g('s_waitcnt vmcnt(0)'); stamp(g, 7, q=True)
        srd(g, 24, 4, 5, 1835008)
        g('buffer_load_dword v160, v20, s[24:27], 0 offen'); g('s_waitcnt vmcnt(0)'); stamp(g, 8, q=True)
        g('buffer_load_dword v160, v20, s[24:27], 0 offen offset:2048'); g('s_waitcnt vmcnt(0)'); stamp(g, 9, q=True)
        srd(g, 24, 6, 7, 1204224)
        g('buffer_load_dword v160, v21, s[24:27], 0 offen'); g('s_waitcnt vmcnt(0)'); stamp(g, 10, q=True)
        g('buffer_load_dword v160, v21, s[24:27], 0 offen offset:2048'); g('s_waitcnt vmcnt(0)'); stamp(g, 11, q=True)
    if OPT.get('pf', 1) in (2, 4):
        l1 = newlab('pfb'); ld = newlab('pfb')
        g('s_cmp_ge_u32 s3, 2')
        g(f's_cbranch_scc1 {l1}')
        srd(g, 24, 10, 11, 1835008)
        g('s_mul_i32 s46, s2, 7168')
        g('s_lshl_b32 s47, s3, 12')
        g('s_add_u32 s46, s46, s47')
        g('v_add_u32 v20, s46, v2')
        for i in range(4):
            g(f'buffer_load_dwordx4 v[{160+4*i}:{163+4*i}], v20, s[24:27], 0 offen offset:{i*1024}')
        g(f's_branch {ld}')
        g.label(l1)
        srd(g, 24, 12, 13, 1204224)
        g('s_mul_i32 s46, s2, 4704')
        g('s_and_b32 s47, s3, 1')
        g('s_mul_i32 s47, s47, 3072')
        g('s_add_u32 s46, s46, s47')
        g('v_add_u32 v20, s46, v2')
        for i in range(3):
            g(f'buffer_load_dwordx4 v[{160+4*i}:{163+4*i}], v20, s[24:27], 0 offen offset:{i*1024}')
        g.label(ld)
    if OPT.get('pf', 1) == 4:
        PREFETCH_A(g)
    if OPT.get('pfw'):
        g('s_waitcnt vmcnt(%d)' % (0 if OPT.get('pf') != 4 else 4))
        g('s_barrier')
    if OPT.get('pf', 1) == 3:
        l1 = newlab('pf3'); l2 = newlab('pf3'); ld = newlab('pf3')
        g('s_cmp_eq_u32 s3, 0')
        g(f's_cbranch_scc0 {l1}')
        pf_lines(g, 1, 'x', 20, 160)
        g(f's_branch {ld}')
        g.label(l1)
        g('s_cmp_eq_u32 s3, 1')
        g(f's_cbranch_scc0 {ld}')
        pf_lines(g, 1, 'w', 20, 160)
        g.label(ld)
    if OPT.get('tw'):
        g('s_mov_b64 exec, 1')
        g('v_mov_b32 v20, 0')
        g('v_mov_b32 v21, 0')
        for br_, c0r in ((1, 's23'), (0, 's69')):
            g(f's_mul_i32 s46, {c0r}, 3')
            for t in range(3):
                g(f's_add_u32 s47, s46, {t}')
                g('s_and_b32 s44, s47, 15')
                g('s_lshl_b32 s44, s44, 6')
                g('s_lshl_b32 s45, s22, 2')
                g('s_add_u32 s44, s44, s45')
                g('s_add_u32 s44, s44, s3')
                if br_: g('s_add_u32 s44, s44, 1024')
                g('s_cmp_lt_u32 s47, 16')
                g('s_cselect_b32 s45, 11, 12')
                g(f's_cselect_b32 s43, {WS_Q}, {WS_KV}')
                g('s_lshl_b32 s44, s44, s45')
                g('s_add_u32 s44, s44, s43')
                g('s_cmp_ge_u32 s47, 32')
                g('s_cselect_b32 s45, 2048, 0')
                g('s_add_u32 s44, s44, s45')
                g('buffer_store_dword v21, v20, s[32:35], s44 offen sc1')
        g('s_and_b32 s44, s2, 7')
        g('s_bfe_u32 s45, s2, 0x10003')
        g('s_lshl_b32 s44, s44, 1')
        g('s_add_u32 s44, s44, s45')
        g('s_lshr_b32 s45, s2, 4')
        g('s_lshl_b32 s45, s45, 2')
        g('s_add_u32 s45, s45, s3')
        g('s_lshl_b32 s45, s45, 4')
        g('s_add_u32 s45, s45, s44')
        g('s_lshl_b32 s45, s45, 11')
        g(f's_add_u32 s45, s45, {WS_O}')
        g('buffer_store_dword v21, v20, s[32:35], s45 offen sc1')
        g('s_add_u32 s45, s45, 0x200000')
        g('buffer_store_dword v21, v20, s[32:35], s45 offen sc1')
        g('s_mov_b64 exec, -1')
    srd(g, 36, 18, 19, 256)
    g('v_mov_b32 v30, 0')
    g('buffer_load_dword v31, v30, s[36:39], 0 offen sc1')
    def prefetch():
        if not OPT.get('pf', 1) or OPT.get('pf') == 4: return
        if OPT.get('pf') == 5:
            ld = newlab('pf5')
            g('s_cmp_ge_u32 s3, 2')
            g(f's_cbranch_scc1 {ld}')
            g('s_cmp_eq_u32 s3, 0')
            g('s_cselect_b32 s24, s8, s14')
            g('s_cselect_b32 s25, s9, s15')
            g(f's_mov_b32 s26, {448*896}')
            g('s_mov_b32 s27, 0x20000')
            g('s_mul_i32 s46, s2, 1568')
            g('v_add_u32 v20, s46, v2')
            for i in range(2):
                g(f'buffer_load_dwordx4 v[{168+4*i}:{171+4*i}], v20, s[24:27], 0 offen offset:{i*1024}')
            g.label(ld)
            return
        if OPT.get('pf', 1) == 3:
            l1 = newlab('pf3'); l2 = newlab('pf3'); ld = newlab('pf3')
            g('s_cmp_eq_u32 s3, 2')
            g(f's_cbranch_scc0 {l1}')
            pf_lines(g, 0, 'x', 20, 164)
            g(f's_branch {ld}')
            g.label(l1)
            g('s_cmp_eq_u32 s3, 3')
            g(f's_cbranch_scc0 {l2}')
            pf_lines(g, 0, 'w', 20, 164)
            g(f's_branch {ld}')
            g.label(l2)
            g('s_cmp_eq_u32 s3, 0')
            g('s_cselect_b32 s24, s8, s14')
            g('s_cselect_b32 s25, s9, s15')
            g(f's_mov_b32 s26, {448*896}')
            g('s_mov_b32 s27, 0x20000')
            g('s_mul_i32 s46, s2, 1568')
            g('v_add_u32 v20, s46, v2')
            for i in range(2):
                g(f'buffer_load_dwordx4 v[{168+4*i}:{171+4*i}], v20, s[24:27], 0 offen offset:{i*1024}')
            g.label(ld)
            return
        l1 = newlab('pf'); l2 = newlab('pf'); ld = newlab('pf')
        g('s_cmp_ge_u32 s3, 2')
        g(f's_cbranch_scc1 {l1}')
        srd(g, 24, 4, 5, 1835008)
        g('s_mul_i32 s46, s2, 7168')
        g('s_lshl_b32 s47, s3, 12')
        g('s_add_u32 s46, s46, s47')
        g('v_add_u32 v20, s46, v2')
        for i in range(4):
            g(f'buffer_load_dwordx4 v[{144+4*i}:{147+4*i}], v20, s[24:27], 0 offen offset:{i*1024}')
        g(f's_branch {ld}')
        g.label(l1)
        g('s_cmp_eq_u32 s3, 2')
        g(f's_cbranch_scc0 {l2}')
        srd(g, 24, 6, 7, 1204224)
        g('s_mul_i32 s46, s2, 4704')
        g('v_add_u32 v20, s46, v2')
        g('v_add_u32 v21, 4096, v20')
        for i in range(5):
            g(f'buffer_load_dwordx4 v[{144+4*i}:{147+4*i}], v{20 if i < 4 else 21}, s[24:27], 0 offen offset:{(i%4)*1024}')
        g(f's_branch {ld}')
        g.label(l2)
        g('s_mul_i32 s46, s2, 1568')
        g('v_add_u32 v20, s46, v2')
        srd(g, 24, 8, 9, 448*896)
        for i in range(2):
            g(f'buffer_load_dwordx4 v[{144+4*i}:{147+4*i}], v20, s[24:27], 0 offen offset:{i*1024}')
        srd(g, 28, 14, 15, 448*896)
        for i in range(2):
            g(f'buffer_load_dwordx4 v[{152+4*i}:{155+4*i}], v20, s[28:31], 0 offen offset:{i*1024}')
        g.label(ld)
    XF = 80; WF = 88
    ACCS = {1: 32, 0: 144}
    PS = {1: 112, 0: 208}
    g('v_and_b32 v18, 31, v0')
    g('v_cmp_eq_u32 vcc, 28, v18')
    g('v_mov_b32 v19, 0x3f803f80')
    g('s_nop 0')
    g('v_cndmask_b32_e64 v18, 0, v19, vcc')
    g('s_mov_b32 s60, 0')
    g('s_mov_b32 s61, -1')
    g('s_mov_b32 s58, 0xf0000000')
    g('s_mov_b32 s59, 0xf0000000')
    def reads(n, buf, part):
        kc, ks = divmod(n, 4)
        st = kc % 4
        if part == 0:
            g(f'ds_read_b128 {vr(XF+4*buf,4)}, v{12+ks} offset:{st*16384}')
        for jj in range(2):
            off = st * WSTG + (ks*16 + jj) * WROW + part * 56
            g(f'ds_read_b64_tr_b16 {vr(WF+12*buf+4*part+2*jj,2)}, v16 offset:{off}')
    def mfma1(br, buf, t, first, types2):
        types = types2[br]
        x = XF + 4*buf; wf = WF + 12*buf + 4*t; d = ACCS[br] + 16*t
        c = None if first else d
        g(mfma(d, wf, x, c) if types[t] == 'QK' else mfma(d, x, wf, c))
    def epilogue_list(br, types2):
        types = types2[br]
        c0 = 's52' if br else 's63'
        L = []
        A = L.append
        ACC = ACCS[br]; P = PS[br]
        A('s_lshl_b32 s54, s22, 2')
        A('s_add_u32 s54, s54, s3')
        if br: A('s_add_u32 s54, s54, 1024')
        for t in range(3):
            a = ACC + 16*t; p = P + 8*t
            so = (48, 49, 53)[t]
            A(f's_add_u32 s62, {c0}, {t}')
            A('s_and_b32 s56, s62, 15')
            A('s_lshl_b32 s56, s56, 6')
            A('s_add_u32 s56, s56, s54')
            if types[t] == 'QK':
                A('s_cmp_lt_u32 s62, 16\n' + f's_cselect_b32 s57, {f32bits(QSCALE):#x}, 1.0\n' + 's_cselect_b32 s45, 0, 0x3f80\n' +
                  's_cselect_b32 s46, 11, 12\n' + f's_cselect_b32 s47, {WS_Q}, {WS_KV}')
                A('s_lshl_b32 s56, s56, s46')
                A(f's_add_u32 s{so}, s56, s47')
                A('v_mov_b32 v19, s45')
                for r in range(16): A(f'v_mul_f32 v{a+r}, s57, v{a+r}')
                for i in range(8): A(f'v_cvt_pk_bf16_f32 v{p+i}, v{a+2*i}, v{a+2*i+1}')
                A(f'v_cndmask_b32_e64 v{p+6}, v{p+6}, v19, s[60:61]')
                A(f'v_cndmask_b32_e64 v{p+7}, v{p+7}, 0, s[60:61]')
            else:
                A('s_lshl_b32 s56, s56, 12')
                A(f's_add_u32 s{so}, s56, {WS_KV + 2048}')
                for i in range(8): A(f'v_cvt_pk_bf16_f32 v{p+i}, v{a+2*i}, v{a+2*i+1}')
                for i in range(8): A(f'v_cndmask_b32_e64 v{p+i}, v{p+i}, v18, s[58:59]')
            if br:
                A('s_nop 1\n' + f'buffer_store_dwordx4 {vr(p,4)}, v2, s[32:35], s{so} offen{ST()}')
                A(f'buffer_store_dwordx4 {vr(p+4,4)}, v2, s[32:35], s{so} offen offset:1024{ST()}')
        return L
    g('s_mul_i32 s52, s23, 3')
    g('s_mul_i32 s63, s69, 3')
    T0, T1, T2 = ('QK','QK','QK'), ('QK','QK','V'), ('V','V','V')
    variants = [{1: T0, 0: T0}, {1: T0, 0: T1}, {1: T1, 0: T2}, {1: T2, 0: T2}, {1: T2, 0: T0}]
    g('s_cmp_eq_u32 s23, 9')
    g('s_cbranch_scc1 Lqkv_v1')
    g('s_cmp_eq_u32 s23, 10')
    g('s_cbranch_scc1 Lqkv_v2')
    g('s_cmp_eq_u32 s23, 15')
    g('s_cbranch_scc1 Lqkv_v4')
    g('s_cmp_gt_u32 s23, 10')
    g('s_cbranch_scc1 Lqkv_v3')
    NS = NCH * 4
    SIG_AT = OPT.get('sig_at', 36)
    for vi, types in enumerate(variants):
        if vi: g.label(f'Lqkv_v{vi}')
        g('s_barrier')
        if vi == 0: stamp(g, 2)
        for part in range(3): reads(0, 0, part)
        prefetch()
        epi = []
        EP0, EPN = OPT.get('ep0', 28), OPT.get('epn', 2)
        def fill(k):
            for _ in range(k):
                if epi: g(epi.pop(0))
        for n in range(NS):
            br = 1 if n < 28 else 0
            boundary = (n + 1) % 4 == 0 and n + 1 < NS
            nxt = n + 1 < NS
            buf = n & 1
            first = n % 28 == 0
            if n == EP0:
                epi = ['s_nop 7'] + epilogue_list(1, types)
                per = -(-len(epi) // (EPN * 3))
            inter = EP0 <= n < EP0 + EPN
            if boundary:
                if OPT.get('qkvst') and vi == 0 and n + 1 == SIG_AT: stamp(g, 11)
                g('s_waitcnt vmcnt(0) lgkmcnt(0)' if n + 1 in (SIG_AT, 24) else 's_waitcnt lgkmcnt(0)')
                if OPT.get('qkvst') and vi == 0 and n + 1 == SIG_AT: stamp(g, 12)
                g('s_barrier')
                if OPT.get('qkvst') and vi == 0:
                    c1 = (n + 1) // 4
                    m = {2: 5, 4: 6, 6: 7, 8: 8, 10: 9, 11: 10, 12: 13}
                    if c1 in m: stamp(g, m[c1])
                if n + 1 == SIG_AT:
                    sk = newlab('sigB'); ok = newlab('inited'); lp = newlab('initspin')
                    g('s_cmp_lg_u32 s3, 0')
                    g(f's_cbranch_scc1 {sk}')
                    g('v_readfirstlane_b32 s47, v31')
                    g('s_cmp_lg_u32 s47, 0')
                    g(f's_cbranch_scc1 {ok}')
                    g(f's_mov_b32 s68, {OPT["spin"]}')
                    g.label(lp)
                    g('buffer_load_dword v31, v30, s[36:39], 0 offen sc1')
                    g('s_waitcnt vmcnt(0)')
                    g('v_readfirstlane_b32 s47, v31')
                    g('s_cmp_lg_u32 s47, 0')
                    g(f's_cbranch_scc1 {ok}')
                    g('s_sub_u32 s68, s68, 1')
                    g('s_cmp_lg_u32 s68, 0')
                    g(f's_cbranch_scc1 {lp}')
                    g.label(ok)
                    g('s_mov_b64 exec, 1')
                    g('v_mov_b32 v1, 1')
                    g('s_lshl_b32 s47, s23, 8')
                    g(f's_add_u32 s47, s47, {CNT_B}')
                    g('v_mov_b32 v29, s47')
                    g('buffer_atomic_add v1, v29, s[64:67], 0 offen sc1')
                    g('s_mov_b64 exec, -1')
                    g.label(sk)
            else:
                g('s_waitcnt lgkmcnt(4)')
            mfma1(br, buf, 0, first, types)
            if nxt: reads(n + 1, buf ^ 1, 0)
            if inter: fill(per)
            if not boundary: g(f's_waitcnt lgkmcnt({5 if nxt else 2})')
            mfma1(br, buf, 1, first, types)
            if nxt: reads(n + 1, buf ^ 1, 1)
            if inter: fill(per)
            if not boundary: g(f's_waitcnt lgkmcnt({5 if nxt else 0})')
            mfma1(br, buf, 2, first, types)
            if nxt: reads(n + 1, buf ^ 1, 2)
            if inter: fill(per)
            if n == 27 and vi == 0: stamp(g, 3)
            if OPT.get('sbar', 0) and n == EP0 + EPN - 1:
                g('s_barrier')
        assert not epi
        if vi == 0: stamp(g, 14)
        g('s_barrier')
        if vi == 0: stamp(g, 4)
        init_dma_compute(g)
        for x in epilogue_list(0, types): g(x)
        if vi < 4: g('s_branch Lqkv_fin')
    g.label('Lqkv_fin')
    g('s_branch Lattn_setup')

def qkv_loader(g):
    g.label('Lloader')
    g('s_sub_u32 s43, s3, 4')
    g('s_lshl_b32 s44, s22, 7')
    g('s_lshl_b32 s45, s43, 5')
    g('s_add_u32 s44, s44, s45')
    g('v_lshrrev_b32 v10, 3, v0')
    g('v_add_u32 v10, s44, v10')
    g('v_mul_u32_u24 v10, 896, v10')
    g('v_lshrrev_b32 v11, 4, v0')
    g('v_and_b32 v12, 7, v0')
    g('v_xor_b32 v12, v12, v11')
    g('v_lshl_add_u32 v2, v12, 4, v10')
    g('v_xor_b32 v12, 4, v12')
    g('v_lshl_add_u32 v3, v12, 4, v10')
    g('v_add_u32 v3, 7168, v3')
    g('v_add_u32 v4, 14336, v2')
    g('v_add_u32 v5, 14336, v3')
    g('s_lshl_b32 s46, s43, 12')
    g('s_lshl_b32 s47, s43, 10')
    g('s_add_u32 s47, s47, 65536')
    g('s_lshl_b32 s44, s43, 6')
    g('s_mul_i32 s50, s23, 168')
    g('s_mul_i32 s51, s69, 168')
    def wcalc(n):
        g('v_add_u32 v10, s44, v0')
        if n: g(f'v_add_u32 v10, {256*n}, v10')
        g('v_mul_u32_u24 v11, 5958, v10')
        g('v_lshrrev_b32 v11, 16, v11')
        g('v_mul_u32_u24 v12, 11, v11')
        g('v_sub_u32 v12, v10, v12')
        g('v_and_b32 v13, 48, v11')
        g('v_and_b32 v14, 3, v11')
        g('v_lshl_add_u32 v13, v14, 2, v13')
        g('v_bfe_u32 v14, v11, 2, 2')
        g('v_add_u32 v13, v13, v14')
        g('v_mul_u32_u24 v13, 2688, v13')
        g(f'v_lshl_add_u32 v{6+n}, v12, 4, v13')
    wcalc(0)
    g('s_waitcnt lgkmcnt(0)')
    if OPT.get('tlw') == 4: g('s_memrealtime s[74:75]')
    if OPT.get('wsoff'):
        g(f's_add_u32 s20, s20, {OPT["wsoff"] << 20}')
        g('s_addc_u32 s21, s21, 0')
    srd(g, 24, 10, 11, 1835008)
    srd(g, 28, 12, 13, 1204224)
    def rot_init(greg):
        g(f's_add_u32 s52, {greg}, s22')
        g('s_mul_i32 s53, s52, 37')
        g('s_lshr_b32 s53, s53, 8')
        g('s_mul_i32 s53, s53, 7')
        g('s_sub_u32 s52, s52, s53')
    def kc_offsets(c):
        if c == 7:
            if OPT.get('rot', 1): rot_init('s69')
            else: g('s_mov_b32 s52, 0')
        g('s_lshl_b32 s48, s52, 7')
        g('s_mul_i32 s49, s52, 172032')
        g(f's_add_u32 s49, s49, {"s50" if c < 7 else "s51"}')
        g('s_add_u32 s52, s52, 1')
        g('s_cmp_eq_u32 s52, 7')
        g('s_cselect_b32 s52, 0, s52')
    def issueX(c):
        st = c % 4
        sx = 24 if c < 7 else 32
        kc_offsets(c)
        for e in range(4):
            g(f's_add_u32 m0, s46, {st*16384 + e*1024}')
            g('s_nop 0')
            g(f'buffer_load_dwordx4 v{2+e}, s[{sx}:{sx+3}], s48 offen{INL()} lds')
    def issueW(c, ns=(0, 1, 2)):
        st = c % 4
        sw = 28 if c < 7 else 36
        for n in ns:
            if n == 2:
                sk = newlab('qs')
                g('s_cmp_eq_u32 s43, 3')
                g(f's_cbranch_scc1 {sk}')
            g(f's_add_u32 m0, s47, {st*WSTG + n*4096}')
            g('s_nop 0')
            g(f'buffer_load_dwordx4 v{6+n}, s[{sw}:{sw+3}], s49 offen{INL()} lds')
            if n == 2: g.label(sk)
    if OPT.get('rot', 1): rot_init('s23')
    else: g('s_mov_b32 s52, 0')
    def issue(c):
        issueX(c); issueW(c)
    if OPT.get('pfw') == 1: g('s_barrier')
    issueX(0)
    issueW(0, (0,))
    wcalc(1); issueW(0, (1,))
    wcalc(2); issueW(0, (2,))
    if OPT.get('tlw') == 4: g('s_memrealtime s[76:77]')
    srd(g, 32, 4, 5, 1835008)
    srd(g, 36, 6, 7, 1204224)
    srd(g, 64, 20, 21, 0x4000, WS_CNT)
    g('s_and_b32 s40, s2, 7')
    g('s_bfe_u32 s41, s2, 0x10003')
    g('s_lshl_b32 s40, s40, 1')
    g('s_add_u32 s40, s40, s41')
    g('v_min_u32 v30, 2, v0')
    g('v_lshlrev_b32 v30, 4, v30')
    g('v_add_u32 v30, s40, v30')
    g('v_mul_u32_u24 v30, 43, v30')
    g('v_lshrrev_b32 v30, 7, v30')
    g('v_lshlrev_b32 v31, 8, v30')
    g(f'v_add_u32 v203, {CNT_B}, v31')
    if OPT.get('pfw') == 2: g('s_barrier')
    for c in range(1, 3): issue(c)
    issued = 2
    HOLD = OPT.get('hold', 9) if OPT.get('sbar', 0) else 99
    for c in range(NCH):
        rem = issued - c
        if c == 13:
            skq = newlab('w13'); skr = newlab('w13')
            g('s_cmp_lg_u32 s3, 4')
            g(f's_cbranch_scc1 {skq}')
            g('s_waitcnt vmcnt(1)')
            g(f's_branch {skr}')
            g.label(skq)
            g('s_waitcnt vmcnt(0)')
            g.label(skr)
        else:
            g(f's_waitcnt vmcnt({6*rem})')
        if OPT.get('tlw') == 4 and c == 0: g('s_memrealtime s[86:87]')
        g('s_barrier')
        if c + 3 < NCH and not (HOLD <= c + 3 <= 10):
            issue(c + 3); issued = c + 3
        if OPT.get('sbar', 0) and c == 7:
            g('s_barrier')
            for cc in range(HOLD, 11):
                issue(cc); issued = cc
        if c == 10: attn_setup(g)
        if c == 11: set_mask(g, 32, 'first')
        if c == 12:
            skp = newlab('p12')
            g('s_cmp_lg_u32 s3, 4')
            g(f's_cbranch_scc1 {skp}')
            g('buffer_load_dword v201, v203, s[64:67], 0 offen sc1')
            g.label(skp)
    g('s_cmp_lg_u32 s3, 4')
    g('s_cbranch_scc1 Lh1_polled')
    g('s_waitcnt vmcnt(0)')
    g('v_cmp_ne_u32 vcc, 16, v201')
    g('s_nop 4')
    g('s_cbranch_vccz Lh1_polled')
    spin_until(g, 201, 203, 16)
    g.label('Lh1_polled')
    g('s_barrier')
    stamp(g, 4)
    g('s_add_u32 s47, s44, 0x200000')
    g('s_mov_b32 m0, s51')
    g('s_nop 0')
    for i in range(2):
        g(f'buffer_load_dwordx4 v2, s[24:27], s47 offen offset:{i*1024}{LD()} lds')
    stage_tile(g, 0)
    stage_tile(g, 1)
    stamp(g, 5)
    g('s_waitcnt vmcnt(4)')
    g('s_barrier')
    g('s_branch Lattn_go')

K2_SCR = 131072
QL = 200
def set_mask(g, dst, kind):
    for r in range(16):
        br_ = (r & 3) + 8 * (r >> 2)
        op = 'v_cmp_le_i32' if kind == 'diag' else 'v_cmp_gt_i32'
        g(f'{op} vcc, {br_}, v24')
        g('s_nop 1')
        g(f'v_cndmask_b32_e64 v{dst+r}, v25, 0, vcc')
def attn_setup(g):
    kvb_srd(g)
    g('s_lshr_b32 s41, s2, 4')
    g('s_and_b32 s42, s3, 3')
    g('s_lshr_b32 s43, s3, 2')
    g('v_lshlrev_b32 v2, 4, v0')
    g('s_lshl_b32 s44, s40, 6')
    g('s_lshl_b32 s45, s41, 2')
    g('s_add_u32 s45, s45, s42')
    g('s_add_u32 s44, s44, s45')
    g('s_lshl_b32 s44, s44, 11')
    srd(g, 24, 20, 21, 0x400000)
    g('s_sub_u32 s28, s32, 0x400000')
    g('s_subb_u32 s29, s33, 0')
    g('s_mov_b32 s30, 0x40000')
    g('s_mov_b32 s31, 0x20000')
    srd(g, 36, 20, 21, 0x400000, WS_O)
    g('v_min_u32 v30, 2, v0')
    g('v_lshlrev_b32 v30, 4, v30')
    g('v_add_u32 v30, s40, v30')
    g('v_mul_u32_u24 v30, 43, v30')
    g('v_lshrrev_b32 v30, 7, v30')
    g('v_lshlrev_b32 v31, 8, v30')
    g(f'v_add_u32 v203, {CNT_B}, v31')
    g('s_lshl_b32 s47, s41, 2')
    g('s_add_u32 s47, s47, s3')
    g('s_sub_u32 s47, s47, 8')
    g('s_lshl_b32 s50, s47, 12')
    g('s_cmp_lt_i32 s47, 0')
    g('s_cselect_b32 s50, 0x40000000, s50')
    g('v_add_u32 v28, s50, v2')
    g('s_add_u32 s47, s47, 8')
    g('s_lshl_b32 s50, s47, 12')
    g('v_add_u32 v29, s50, v2')
    g('s_lshl_b32 s47, s42, 12')
    g('v_add_u32 v3, s47, v2')
    g('s_lshl_b32 s47, s43, 14')
    g('v_add_u32 v4, s47, v2')
    g('v_add_u32 v5, 32768, v4')
    g(f'v_add_u32 v6, {K2_SCR}, v3')
    g('s_lshl_b32 s47, s42, 8')
    g(f's_add_u32 s47, s47, {K2_SCR+16384}')
    g('v_lshlrev_b32 v7, 2, v0')
    g('v_add_u32 v7, s47, v7')
    g('s_lshl_b32 s47, s42, 11')
    g(f's_add_u32 s51, s47, {K2_SCR}')
    g(f'v_add_u32 v{QL}, s51, v2')
    g('v_and_b32 v24, 31, v0')
    g('v_lshrrev_b32 v25, 5, v0')
    g('v_lshlrev_b32 v25, 2, v25')
    g('v_sub_u32 v24, v24, v25')
    g(f'v_mov_b32 v25, {NEGBIG:#x}')
    g('s_mov_b32 s60, 0')
    g('s_mov_b32 s61, -1')
    srd(g, 56, 20, 21, 0x1000000)

def phase_attn(g):
    g.label('Lattn_setup')
    QA = 8; QB = 16; MASK = 32; S0 = 48; S1 = 64; P = 80; OA = 88; OB = 104; KF = 120; VF = 128; T = 136
    TK = 144; TS = 152
    MNA = 26; MNB = 27
    SB = [S0, S1]
    attn_setup(g)
    set_mask(g, MASK, 'diag')
    stamp(g, 5)
    g('s_waitcnt vmcnt(4)')
    g('s_barrier')
    g.label('Lattn_go')
    g('s_cmp_eq_u32 s43, 99') if False else None
    def dma4(vreg, s, s_goff, s_m0, n=4, first=0):
        g(f's_mov_b32 m0, {s_m0}')
        g('s_nop 0')
        for i in range(first, first + n):
            g(f'buffer_load_dwordx4 v{vreg}, s[{s}:{s+3}], {s_goff} offen offset:{i*1024}{LD()} lds')
    stamp(g, 6)
    g(f'ds_read_b128 {vr(QB,4)}, v{QL}')
    g(f'ds_read_b128 {vr(QB+4,4)}, v{QL} offset:1024')

    def rowmax(sbuf, t):
        g(f'v_max3_f32 v{t}, v{sbuf}, v{sbuf+1}, v{sbuf+2}')
        for r in range(3, 15, 2):
            g(f'v_max3_f32 v{t}, v{t}, v{sbuf+r}, v{sbuf+r+1}')
        g(f'v_max_f32 v{t}, v{t}, v{sbuf+15}')
        g(f'v_mov_b32 v{t+1}, v{t}')
        g('s_nop 1')
        g(f'v_permlane32_swap_b32 v{t}, v{t+1}')
        g('s_nop 1')
        g(f'v_max_f32 v{t}, v{t}, v{t+1}')
    def set_standin(sbuf, q, mneg):
        t = T
        rowmax(sbuf, t)
        g(f'v_sub_f32 v{t}, 0, v{t}')
        g(f'v_cvt_pk_bf16_f32 v{t}, v{t}, 0')
        g(f'v_lshlrev_b32 v{mneg}, 16, v{t}')
        g('s_mov_b64 exec, s[60:61]')
        g(f'v_mov_b32 v{q+4+2}, v{t}')
        g('s_mov_b64 exec, -1')
    def slots(br, kh):
        if br == 1: return (2048, 0, None) if kh == 0 else (0, 1024, 2048)
        return (0, 1024, None) if kh == 0 else (2048, 0, 3072)
    def write_half(kh, br, O, mn):
        oo, mo, lo = slots(br, kh)
        src = O + 8 if kh == 0 else O
        g(f'ds_write_b128 v6, {vr(src,4)} offset:{oo}')
        g(f'ds_write_b128 v6, {vr(src+4,4)} offset:{oo+1024}')
        g(f'ds_write_b32 v7, v{mn} offset:{mo}')
        if kh == 1: g(f'ds_write_b32 v7, v{O+12} offset:{lo}')
    FB = 168
    def finish_half(tag, kh, br, O, mn, q, tmp):
        base = O + 8*kh
        oo, mo, lo = slots(br, 1 - kh)
        g(f'ds_read_b128 {vr(tmp,4)}, v6 offset:{oo}')
        g(f'ds_read_b128 {vr(tmp+4,4)}, v6 offset:{oo+1024}')
        g(f'ds_read_b32 v{T}, v7 offset:{mo}')
        if kh == 0: g(f'ds_read_b32 v{T+5}, v7 offset:{lo}')
        lp = T + 5 if kh == 0 else tmp + 4
        g('s_waitcnt lgkmcnt(0)')
        g(f'v_min_f32 v{T+1}, v{mn}, v{T}')
        g(f'v_sub_f32 v{T+2}, v{T+1}, v{mn}')
        g(f'v_sub_f32 v{T+3}, v{T+1}, v{T}')
        g(f'v_exp_f32 v{T+2}, v{T+2}')
        g(f'v_exp_f32 v{T+3}, v{T+3}')
        g('s_nop 0')
        g(f'v_mul_f32 v{T}, v{O+12}, v{T+2}')
        g(f'v_fmac_f32 v{T}, v{lp}, v{T+3}')
        for r in range(8): g(f'v_mul_f32 v{base+r}, v{base+r}, v{T+2}')
        g(f'v_mov_b32 v{T+1}, v{T}')
        for r in range(8): g(f'v_fmac_f32 v{base+r}, v{tmp+r}, v{T+3}')
        g(f'v_permlane32_swap_b32 v{T}, v{T+1}')
        g(f'v_mul_f32 v{T+4}, 0, v{base}')
        for r in range(1, 8): g(f'v_fmac_f32 v{T+4}, 0, v{base+r}')
        g(f'v_add_f32 v{T+4}, v{T+4}, v{T+1}')
        g(f's_mov_b32 s47, {f32bits(2.0**100):#x}')
        g(f's_mov_b32 s50, {f32bits(2.0**-40):#x}')
        g(f'v_cmp_ngt_f32 vcc, s47, v{T+4}')
        g(f'v_cmp_nlt_f32 s[48:49], s50, v{T+4}')
        g('s_nop 4')
        g('s_or_b64 vcc, vcc, s[48:49]')
        g('s_nop 4')
        g(f's_cbranch_vccz L{tag}_ok')
        fallback(tag, br, O, q)
        g(f'v_mov_b32 v{T}, v{O+12}')
        g(f'v_mov_b32 v{T+1}, v{O+12}')
        g('s_nop 1')
        g(f'v_permlane32_swap_b32 v{T}, v{T+1}')
        g('s_nop 1')
        g.label(f'L{tag}_ok')
        g(f'v_rcp_f32 v{T+1}, v{T+1}')
        g('s_lshl_b32 s47, s41, 2')
        g('s_add_u32 s47, s47, s42')
        for r in range(8): g(f'v_mul_f32 v{base+r}, v{base+r}, v{T+1}')
        g(f's_add_u32 s47, s47, {br*64}')
        g('s_lshl_b32 s47, s47, 4')
        g('s_add_u32 s47, s47, s40')
        g('s_lshl_b32 s47, s47, 11')
        for i in range(4): g(f'v_cvt_pk_bf16_f32 v{tmp+i}, v{base+2*i}, v{base+2*i+1}')
        if kh == 1:
            g(f'v_cndmask_b32_e64 v{tmp+2}, v{tmp+2}, 0, s[60:61]')
            g(f'v_cndmask_b32_e64 v{tmp+3}, v{tmp+3}, 0, s[60:61]')
        g('s_nop 1')
        g(f'buffer_store_dwordx4 {vr(tmp,4)}, v2, s[36:39], s47 offen offset:{kh*1024}{ST()}')
        g('s_nop 1')
    def fallback(tag, br, O, q):
        FS, FK, FV, FP, FQ, Fm = FB, FB+16, FB+24, FB+32, FB+40, FB+48
        s = 28 if br == 0 else 32
        for i in range(8): g(f'v_mov_b32 v{FQ+i}, v{q+i}')
        g('s_mov_b64 exec, s[60:61]')
        g(f'v_mov_b32 v{FQ+6}, 0')
        g('s_mov_b64 exec, -1')
        for r in range(16): g(f'v_mov_b32 v{O+r}, 0')
        g(f'v_mov_b32 v{Fm}, v25')
        if br == 0:
            g('s_lshl_b32 s52, s41, 2')
            g('s_add_u32 s52, s52, s42')
            g('s_sub_u32 s53, s52, 8')
            g('s_mov_b32 s54, s52')
        else:
            g('s_mov_b32 s54, 63')
        g.label(f'L{tag}_fb_loop')
        g('s_lshl_b32 s55, s54, 12')
        for i in range(2):
            g(f'buffer_load_dwordx4 {vr(FK+4*i,4)}, v2, s[{s}:{s+3}], s55 offen offset:{i*1024}{LD()}')
            g(f'buffer_load_dwordx4 {vr(FV+4*i,4)}, v2, s[{s}:{s+3}], s55 offen offset:{2048+i*1024}{LD()}')
        if br == 0:
            g('s_cmp_eq_u32 s54, s52')
            g(f's_cbranch_scc1 L{tag}_fb_diag')
            g('s_cmp_eq_u32 s54, s53')
            g(f's_cbranch_scc1 L{tag}_fb_first')
        for r in range(16): g(f'v_mov_b32 v{FS+r}, 0')
        if br == 0:
            g(f's_branch L{tag}_fb_go')
            g.label(f'L{tag}_fb_diag')
            set_mask(g, FS, 'diag')
            g(f's_branch L{tag}_fb_go')
            g.label(f'L{tag}_fb_first')
            set_mask(g, FS, 'first')
            g.label(f'L{tag}_fb_go')
        g('s_waitcnt vmcnt(0)')
        g('s_nop 1')
        g(mfma(FS, FK, FQ, FS))
        g(mfma(FS, FK+4, FQ+4, FS))
        g('s_nop 15')
        rowmax(FS, Fm+1)
        g(f'v_max_f32 v{Fm+1}, v{Fm+1}, v{Fm}')
        g(f'v_sub_f32 v{Fm+2}, v{Fm}, v{Fm+1}')
        g(f'v_exp_f32 v{Fm+2}, v{Fm+2}')
        g(f'v_mov_b32 v{Fm}, v{Fm+1}')
        for r in range(16): g(f'v_sub_f32 v{FS+r}, v{FS+r}, v{Fm}')
        for r in range(16): g(f'v_exp_f32 v{FS+r}, v{FS+r}')
        for r in range(16): g(f'v_mul_f32 v{O+r}, v{O+r}, v{Fm+2}')
        for i in range(8): g(f'v_cvt_pk_bf16_f32 v{FP+i}, v{FS+2*i}, v{FS+2*i+1}')
        g('s_nop 1')
        g(mfma(O, FV, FP, O))
        g(mfma(O, FV+4, FP+4, O))
        g('s_nop 15')
        g('s_sub_u32 s54, s54, 1')
        g('s_cmp_lt_i32 s54, 0')
        g(f's_cbranch_scc1 L{tag}_fb_end')
        if br == 0:
            g('s_cmp_lt_i32 s54, s53')
            g(f's_cbranch_scc1 L{tag}_fb_end')
        g(f's_branch L{tag}_fb_loop')
        g.label(f'L{tag}_fb_end')

    g('s_cmp_eq_u32 s43, 0')
    g('s_cbranch_scc0 Lattn_kh1')

    def path(kh):
        tag = f'K{kh}'
        unitsA = [8, 7, 6, 5, 4] if kh == 0 else [3, 2, 1, 0]
        nA = len(unitsA); N = 32 + nA
        def unit(i):
            if i >= 32:
                u = unitsA[i - 32]
                masked = (kh == 0 and u == 8) or (kh == 1 and u == 0)
                return dict(base=3, off=u*4096, Q=QA, O=OA, C=MASK if masked else None, first=(i == 32))
            return dict(b=i, Q=QB, O=OB, C=None, first=(i == 0))
        def addr(i, cs):
            u = unit(i)
            if 'base' in u: return u['base'], u['off']
            b = u['b']; s = b >> 2
            if s == cs: return 4, (b & 3) * 4096
            assert s == cs + 1
            return 5, (b & 3) * 4096
        def rdK(i, cs, dst=KF):
            r, off = addr(i, cs)
            g(f'ds_read_b128 {vr(dst,4)}, v{r} offset:{off}')
            g(f'ds_read_b128 {vr(dst+4,4)}, v{r} offset:{off+1024}')
        def rdV(i, f, cs):
            r, off = addr(i, cs)
            g(f'ds_read_b128 {vr(VF+4*f,4)}, v{r} offset:{off+2048+f*1024}')
        rdK(0, 0)
        g('s_waitcnt lgkmcnt(0)')
        g(mfma(S0, KF, QB, None))
        g(mfma(S0, KF+4, QB+4, S0))
        g('s_nop 15')
        set_standin(S0, QB, MNB)
        g('s_nop 1')
        g(mfma(S0, KF, QB, None))
        g(mfma(S0, KF+4, QB+4, S0))
        rdK(1, 0)
        rdV(0, 0, 0)
        g('s_nop 15')
        if kh == 0: stamp(g, 7)
        if OPT.get('attst'): stamp(g, 2, q=True)
        def wo_piece(it):
            if it == 7:
                sk = newlab('wo7')
                g('s_cmp_lg_u32 s3, 0')
                g(f's_cbranch_scc1 {sk}')
                g(f's_add_u32 m0, s45, {65536 + it*8192}')
                g(f'v_add_u32 v31, {it*64*896}, v30')
                g('buffer_load_dwordx4 v31, s[56:59], 0 offen lds')
                g.label(sk)
            else:
                g(f's_add_u32 m0, s45, {65536 + it*8192}')
                g(f's_mov_b32 s50, {it*64*896}')
                g('buffer_load_dwordx4 v30, s[56:59], s50 offen lds')
        def wo_setup():
            g('s_mov_b32 s56, s14')
            g('s_mov_b32 s57, s15')
            g(f's_mov_b32 s58, {448*896}')
            g('s_mov_b32 s59, 0x20000')
            g('v_lshrrev_b32 v30, 3, v0')
            g('v_and_b32 v31, 7, v0')
            g('v_and_b32 v1, 2, v30')
            g('v_lshlrev_b32 v1, 1, v1')
            g('v_xor_b32 v31, v31, v1')
            g('s_lshl_b32 s50, s3, 3')
            g('v_add_u32 v30, s50, v30')
            g('v_mul_u32_u24 v30, 896, v30')
            g('v_lshl_add_u32 v30, v31, 4, v30')
            g('s_lshr_b32 s50, s2, 5')
            g('s_lshl_b32 s50, s50, 7')
            g('s_cmp_ge_u32 s2, 224')
            g('s_cselect_b32 s50, 0x40000000, s50')
            g('v_add_u32 v30, s50, v30')
            g('s_lshl_b32 s45, s3, 10')
        def dma_slot(i, inloop):
            if i == 0 or i == 1:
                st = i + 2
                g(f's_add_u32 s54, s55, {st*32768}')
                g(f's_add_u32 m0, s55, {(st&3)*32768}')
                g('s_nop 0')
                for k in range(4):
                    g(f'buffer_load_dwordx4 v2, s[32:35], s54 offen offset:{k*1024}{LD()} lds')
                return
            if i == 2 and kh == 0:
                for t in range(3):
                    g(f'buffer_store_dwordx4 {vr(208+8*t,4)}, v2, s[56:59], s{(48,49,53)[t]} offen{ST()}')
                    g(f'buffer_store_dwordx4 {vr(212+8*t,4)}, v2, s[56:59], s{(48,49,53)[t]} offen offset:1024{ST()}')
                return
            if i >= 30:
                if i == 30: wo_setup()
                before34 = {30: [0], 31: [1], 32: [2], 33: [3], 34: [4, 5], 35: [6, 7]}
                for it in before34.get(i, []): wo_piece(it)
                return
            if i == 12 and kh == 1 and OPT.get('wol2', 1):
                sk = newlab('wol2')
                g('s_cmp_gt_u32 s3, 5')
                g(f's_cbranch_scc1 {sk}')
                srd(g, 56, 8, 9, 448*896)
                g('s_lshr_b32 s47, s2, 3')
                g('s_mul_i32 s47, s47, 98')
                g('s_sub_u32 s48, s3, 4')
                g('s_lshl_b32 s48, s48, 6')
                g('s_add_u32 s47, s47, s48')
                g('v_add_u32 v204, s47, v0')
                g('v_lshlrev_b32 v204, 7, v204')
                g('buffer_load_dword v205, v204, s[56:59], 0 offen')
                g.label(sk)
            if i < 6: return
            ph = (i - 2) & 3; st = ((i - 2) >> 2) + 3
            if i == 18:
                g('buffer_load_dword v201, v31, s[64:67], 0 offen sc1')
            if st <= 7:
                if ph == 0:
                    g(f's_add_u32 s54, s55, {st*32768}')
                    g(f's_add_u32 m0, s55, {(st&3)*32768}')
                    g('s_nop 0')
                g(f'buffer_load_dwordx4 v2, s[32:35], s54 offen offset:{ph*1024}{LD()} lds')
            elif st == 8:
                if ph == 0:
                    ok = newlab('aok')
                    g('v_cmp_ne_u32 vcc, 16, v201')
                    g('s_nop 4')
                    g(f's_cbranch_vccz {ok}')
                    spin_until(g, 201, 31, 16)
                    g.label(ok)
                    if kh == 1:
                        g('s_add_u32 s47, s51, 8192')
                        dma4(2, 24, 's44', 's47', n=2)
                    g('s_mov_b32 m0, s55')
                    g('s_nop 0')
                g(f'buffer_load_dwordx4 v28, s[28:31], 0 offen offset:{ph*1024}{LD()} lds')
            elif st == 9 and ph <= 1 and kh == 0:
                if ph == 0:
                    g('s_add_u32 m0, s55, 32768')
                    g('s_nop 0')
                for k in range(2):
                    g(f'buffer_load_dwordx4 v29, s[28:31], 0 offen offset:{(2*ph+k)*1024}{LD()} lds')
        def body(i, cs, inloop=False):
            u = unit(i)
            sb = SB[i & 1]; sn = SB[(i + 1) & 1]
            e = [f'v_exp_f32 v{sb+r}, v{sb+r}' for r in range(16)]
            c = [f'v_cvt_pk_bf16_f32 v{P+k}, v{sb+2*k}, v{sb+2*k+1}' for k in range(8)]
            has1 = i + 1 < N; has2 = i + 2 < N
            if i < 32 and (i & 3) == 2:
                s = i >> 2
                if s == 7: vm = 0
                elif s == 0: vm = 8
                elif s == 1: vm = 4 if kh == 1 else 10
                elif s == 2: vm = 4
                else: vm = 4
                if OPT.get('attst') and s in (0, 1, 2, 3, 5, 7): stamp(g, {0: 3, 1: 5, 2: 7, 3: 9, 5: 11, 7: 13}[s], q=True)
                g(f's_waitcnt vmcnt({vm}) lgkmcnt(0)' if vm is not None else 's_waitcnt lgkmcnt(0)')
                g('s_barrier')
                if OPT.get('attst') and s in (0, 1, 2, 3, 5, 7): stamp(g, {0: 4, 1: 6, 2: 8, 3: 10, 5: 12, 7: 14}[s], q=True)
                if s == 2 and kh == 1:
                    sk = newlab('sigA')
                    g('s_cmp_lg_u32 s3, 4')
                    g(f's_cbranch_scc1 {sk}')
                    g('s_mov_b64 exec, 1')
                    g('v_mov_b32 v1, 1')
                    g('s_lshl_b32 s47, s69, 8')
                    g('v_mov_b32 v202, s47')
                    g('buffer_atomic_add v1, v202, s[64:67], 0 offen sc1')
                    g('s_mov_b64 exec, -1')
                    g.label(sk)
                if s == 6:
                    g(f'ds_read_b128 {vr(QA,4)}, v{QL} offset:8192')
                    g(f'ds_read_b128 {vr(QA+4,4)}, v{QL} offset:9216')
                if s == 7 and kh == 0:
                    g(f'v_mov_b32 v204, {LFLAG}')
                    g('v_mov_b32 v205, 0')
                    g('ds_write_b32 v204, v205')
                    g('ds_write_b32 v204, v205 offset:4')
                    rdK(32, cs, TK)
                    g('s_waitcnt lgkmcnt(0)')
                    g(mfma(TS, TK, QA, unit(32)['C']))
                    g(mfma(TS, TK+4, QA+4, TS))
                    g('s_nop 15')
                    set_standin(TS, QA, MNA)
            elif i == 31 and kh == 1:
                g('s_waitcnt lgkmcnt(0)')
                g(mfma(TS, KF, QA, unit(32)['C']))
                g(mfma(TS, KF+4, QA+4, TS))
                g('s_nop 15')
                set_standin(TS, QA, MNA)
                g('s_lshl_b32 s47, s41, 2')
                g('s_add_u32 s47, s47, s42')
                g('s_cmp_lt_u32 s47, 5')
                g(f's_cbranch_scc0 L{tag}_valid')
                g(f'v_mov_b32 v{MNA}, {POSBIG:#x}')
                g.label(f'L{tag}_valid')
            elif i == 34:
                if OPT.get('tailst'): stamp(g, 3, q=True)
                g('s_waitcnt lgkmcnt(0)')
                g('s_barrier')
                if OPT.get('tailst'): stamp(g, 4, q=True)
                if kh == 1 or not OPT.get('stag', 0):
                    finish_half(f'FB{kh}', kh, 1, OB, MNB, QB, TS)
                if OPT.get('tailst'): stamp(g, 5, q=True)
            elif i == 35 and kh == 0 and OPT.get('stag', 0):
                g('s_waitcnt lgkmcnt(0)')
                finish_half(f'FB{kh}', kh, 1, OB, MNB, QB, TS)
            else:
                g('s_waitcnt lgkmcnt(0)')
            pm = OPT.get('prio', 'lag')
            if pm == 'lag':
                g(f's_setprio {3 - ((i - 2) & 3)}')
            elif pm == 'lag2' and ((i - 2) & 1) == 0:
                g(f's_setprio {1 - (((i - 2) & 3) >> 1)}')
            elif pm == 'half':
                g(f's_setprio {3 - (((i - 2) & 1) * 2)}')
            g(e[0])
            if i > 0:
                up = unit(i - 1)
                g(mfma(up['O'], VF+4, P+4, up['O']))
            rdV(i, 1, cs)
            g(e[1]); g(e[2]); g(e[3])
            g(c[0])
            if i == 33:
                write_half(kh, 1, OB, MNB)
            if has1:
                un = unit(i + 1)
                g(mfma(sn, KF, un['Q'], un['C']))
            g(e[4]); g(e[5]); g(c[1]); g(e[6]); g(e[7]); g(c[2])
            if has1:
                g(mfma(sn, KF+4, un['Q']+4, sn))
            if has2:
                rdK(i + 2, cs)
            g(e[8]); g(c[3]); g(e[9]); g(e[10])
            dma_slot(i, inloop)
            g(e[11])
            if OPT.get('prio') == 'half':
                g(f's_setprio {2 - (((i - 2) & 1) * 2)}')
            g(mfma(u['O'], VF, P, None if u['first'] else u['O']))
            if has1:
                rdV(i + 1, 0, cs)
            for x in e[12:16]: g(x)
            g(c[4]); g(c[5]); g(c[6]); g(c[7])
        def advance():
            g('v_mov_b32 v4, v5')
            g('v_add_u32 v5, 32768, v5')
            g('v_and_b32 v5, 0x1ffff, v5')
        return body, advance, N, tag
    for kh in (0, 1):
        if kh == 1: g.label('Lattn_kh1')
        body, advance, N, tag = path(kh)
        for s_ in range(7):
            for j in range(4): body(4*s_ + j, s_)
            advance()
        for j in range(4): body(28 + j, 7)
        if kh == 0: stamp(g, 8)
        if OPT.get('tailst'): stamp(g, 2, q=True)
        for i in range(32, N): body(i, 7)
        g('s_waitcnt lgkmcnt(0)')
        g('s_nop 1')
        g(mfma(OA, VF+4, P+4, OA))
        g('s_nop 15')
        if OPT.get('tailst'): stamp(g, 6, q=True)
        write_half(kh, 0, OA, MNA)
        g(f's_waitcnt vmcnt({1 if (kh == 0 and OPT.get("stag", 0)) else 3}) lgkmcnt(0)')
        g('s_barrier')
        if OPT.get('tailst'): stamp(g, 7, q=True)
        if kh == 1: signal_o(g, CNT_OB, 4)
        finish_half(f'FA{kh}', kh, 0, OA, MNA, QA, TS)
        if OPT.get('tailst'): stamp(g, 8, q=True)
        if OPT.get('woearly', 0):
            woA_issue(g)
            g('s_waitcnt vmcnt(7)')
        else:
            g('s_waitcnt vmcnt(0)')
        if OPT.get('tailst'): stamp(g, 9, q=True)
        g('s_mov_b64 exec, 1')
        g('v_mov_b32 v1, 1')
        g('s_lshl_b32 s47, s41, 8')
        g(f's_add_u32 s47, s47, {CNT_OA}')
        g('v_mov_b32 v31, s47')
        g('buffer_atomic_add v1, v31, s[64:67], 0 offen sc1')
        g('s_mov_b64 exec, -1')
        if not OPT.get('woearly', 0): woA_issue(g)
        stamp(g, 9)
        if kh == 1:
            proj_group_B(g)
        else:
            proj_group_A(g)
    proj_common(g)

PJ_EX = 131072
def proj_setup(g, br):
    g(f's_mov_b32 s40, {br}')
    g('s_and_b32 s41, s2, 7')
    g('s_lshl_b32 s41, s41, 2')
    g('s_bfe_u32 s42, s2, 0x20003')
    g('s_add_u32 s41, s41, s42')
    g('s_lshr_b32 s42, s2, 5')
    g('s_and_b32 s43, s3, 1')
    g('s_bfe_u32 s44, s3, 0x10001')
    srd(g, 24, 16, 17, 2048 * 1792)
    g('s_lshl_b32 s45, s41, 1')
    g('s_add_u32 s45, s45, s43')
    g(f's_add_u32 s45, s45, {br*64}')
    g('s_lshl_b32 s45, s45, 15')
    g('s_lshl_b32 s46, s44, 14')
    g('s_add_u32 s45, s45, s46')
    g('v_bfe_u32 v4, v0, 2, 2')
    g('v_and_b32 v5, 3, v0')
    g('v_bfe_u32 v7, v0, 4, 1')
    g('v_lshrrev_b32 v6, 5, v0')
    g('v_lshlrev_b32 v7, 5, v7')
    g('v_lshl_add_u32 v7, v5, 3, v7')
    g('v_lshrrev_b32 v11, 4, v7')
    g('v_and_b32 v8, 2, v4')
    g('v_lshlrev_b32 v8, 1, v8')
    g('v_xor_b32 v11, v11, v8')
    g('v_and_b32 v7, 15, v7')
    g('v_lshl_add_u32 v7, v11, 4, v7')
    g('v_lshl_add_u32 v4, v6, 2, v4')
    g('v_lshl_add_u32 v9, v4, 7, v7')
    g('s_mul_i32 s46, s44, 28672')
    if br: g('s_add_u32 s46, s46, 65536')
    g('v_add_u32 v9, s46, v9')
    g('v_xor_b32 v10, 64, v9')
    g('s_lshl_b32 s46, s43, 1')
    g('s_add_u32 s46, s46, s44')
    g(f's_add_u32 s46, s46, {br*4}')
    g('s_lshl_b32 s46, s46, 12')
    g(f's_add_u32 s46, s46, {PJ_EX}')
    g('v_add_u32 v12, s46, v2')
    g('v_xor_b32 v13, 4096, v12')
    g('s_lshr_b32 s46, s41, 1')
    g('s_lshl_b32 s46, s46, 8')
    g(f's_add_u32 s46, s46, {CNT_OB if br else CNT_OA}')
    g('v_mov_b32 v30, s46')
def o_loads(g):
    OF = 64
    for n in range(16):
        if n % 4 == 0 and n > 0: g('s_add_u32 s45, s45, 4096')
        g(f'buffer_load_dwordx4 {vr(OF+4*n,4)}, v2, s[36:39], s45 offen offset:{(n%4)*1024}{LD()}')
def signal_o(g, cnt, wave):
    sk = newlab('sigO')
    g(f's_cmp_lg_u32 s3, {wave}')
    g(f's_cbranch_scc1 {sk}')
    g('s_mov_b64 exec, 1')
    g('v_mov_b32 v1, 1')
    g('s_lshl_b32 s47, s41, 8')
    g(f's_add_u32 s47, s47, {cnt}')
    g('v_mov_b32 v31, s47')
    g('buffer_atomic_add v1, v31, s[64:67], 0 offen sc1')
    g('s_mov_b64 exec, -1')
    g.label(sk)
def woA_issue(g):
    srd(g, 56, 8, 9, 448*896)
    g('v_lshrrev_b32 v30, 3, v0')
    g('v_and_b32 v29, 7, v0')
    g('v_and_b32 v1, 2, v30')
    g('v_lshlrev_b32 v1, 1, v1')
    g('v_xor_b32 v29, v29, v1')
    g('s_lshl_b32 s51, s3, 3')
    g('v_add_u32 v30, s51, v30')
    g('v_mul_u32_u24 v30, 896, v30')
    g('v_lshl_add_u32 v30, v29, 4, v30')
    g('s_lshr_b32 s51, s2, 5')
    g('s_lshl_b32 s51, s51, 7')
    g('s_cmp_ge_u32 s2, 224')
    g('s_cselect_b32 s51, 0x40000000, s51')
    g('v_add_u32 v30, s51, v30')
    g('s_lshl_b32 s52, s3, 10')
    sk = newlab('woA')
    for it in range(8):
        if it == 7:
            g('s_cmp_lg_u32 s3, 0')
            g(f's_cbranch_scc1 {sk}')
            g(f's_add_u32 m0, s52, {it*8192}')
            g(f'v_add_u32 v29, {it*64*896}, v30')
            g('buffer_load_dwordx4 v29, s[56:59], 0 offen lds')
        else:
            g(f's_add_u32 m0, s52, {it*8192}')
            g(f's_mov_b32 s51, {it*64*896}')
            g('buffer_load_dwordx4 v30, s[56:59], s51 offen lds')
    g.label(sk)
def proj_group_B(g):
    g('s_cmp_ge_u32 s2, 224')
    g('s_cbranch_scc1 Lpj_idleB')
    proj_setup(g, 1)
    g('s_waitcnt vmcnt(0)')
    g('s_barrier')
    if OPT.get('tailst'): stamp(g, 10, q=True)
    group_wait(g, 4, 1, 1, 30, 16)
    if OPT.get('tailst'): stamp(g, 11, q=True)
    stamp(g, 10)
    o_loads(g)
    g('s_branch Lproj_common')
    g.label('Lpj_idleB')
    g('s_barrier')
    g('s_branch Lend')
def proj_group_A(g):
    g('s_cmp_ge_u32 s2, 224')
    sk = newlab('idleA')
    g(f's_cbranch_scc1 {sk}')
    proj_setup(g, 0)
    g('s_waitcnt vmcnt(0)')
    g('s_barrier')
    if OPT.get('tailst'): stamp(g, 10, q=True)
    group_wait(g, 0, 0, 1, 30, 128)
    if OPT.get('tailst'): stamp(g, 11, q=True)
    stamp(g, 10)
    o_loads(g)
    g('s_branch Lproj_common')
    g.label(sk)
    g('s_barrier')
    g('s_branch Lend')
def proj_common(g):
    g.label('Lproj_common')
    OF = 64; ACC = 16; WF = 48
    def rd(n, buf):
        h, i = divmod(n, 2)
        for ct in range(2):
            for jj in range(2):
                off = (28*h + 16*i + 8*jj) * 128
                g(f'ds_read_b64_tr_b16 {vr(WF+8*buf+4*ct+2*jj,2)}, v{9+ct} offset:{off}')
    rd(0, 0)
    for n in range(16):
        if n + 1 < 16: rd(n + 1, (n + 1) & 1)
        g(f's_waitcnt vmcnt({15-n}) lgkmcnt({4 if n + 1 < 16 else 0})')
        for ct in range(2):
            g(mfma(ACC + 16*ct, WF + 8*(n & 1) + 4*ct, OF + 4*n, None if n == 0 else ACC + 16*ct))
    g('s_nop 15')
    stamp(g, 12, q=True)
    g('s_cmp_eq_u32 s44, 0')
    g('s_cbranch_scc0 Lpj_k1')
    for i in range(4): g(f'ds_write_b128 v12, {vr(ACC+16+4*i,4)} offset:{i*1024}')
    g('s_branch Lpj_k2')
    g.label('Lpj_k1')
    for i in range(4): g(f'ds_write_b128 v12, {vr(ACC+4*i,4)} offset:{i*1024}')
    for r in range(16): g(f'v_mov_b32 v{ACC+r}, v{ACC+16+r}')
    g.label('Lpj_k2')
    g('s_waitcnt lgkmcnt(0)')
    g('s_barrier')
    for i in range(4): g(f'ds_read_b128 {vr(64+4*i,4)}, v13 offset:{i*1024}')
    g('v_and_b32 v4, 31, v0')
    g('s_lshl_b32 s46, s41, 6')
    g('s_lshl_b32 s47, s43, 5')
    g('s_add_u32 s46, s46, s47')
    g('v_add_u32 v4, s46, v4')
    g('v_mul_u32_u24 v4, 1792, v4')
    g('v_lshl_add_u32 v4, v6, 4, v4')
    g('s_mul_i32 s46, s40, 896')
    g('s_lshl_b32 s47, s42, 7')
    g('s_add_u32 s46, s46, s47')
    g('s_lshl_b32 s47, s44, 6')
    g('s_add_u32 s46, s46, s47')
    g('s_waitcnt lgkmcnt(0)')
    for r in range(16): g(f'v_add_f32 v{ACC+r}, v{ACC+r}, v{64+r}')
    P = 48
    for i in range(8): g(f'v_cvt_pk_bf16_f32 v{P+i}, v{ACC+2*i}, v{ACC+2*i+1}')
    g('s_nop 1')
    for k in range(2):
        a = P + 4*k
        g(f'v_permlane32_swap_b32 v{a}, v{a+2}')
        g(f'v_permlane32_swap_b32 v{a+1}, v{a+3}')
    g('s_nop 1')
    for k in range(2):
        g(f'buffer_store_dwordx4 {vr(P+4*k,4)}, v4, s[24:27], s46 offen offset:{32*k}' + ((' ' + OPT['ost']) if OPT.get('ost') else ''))

HEADER = '''; Kernarg layout for this problem (72 bytes, ptrs only, base s[0:1]):
'''
DESIGN = """; Design: one persistent launch, 256 workgroups (one per CU), 8 waves each.
;  phase 1  QKV projection, branch B then branch A (waves 4-7 stage x / W tiles into LDS by LDS-DMA, waves 0-3 run the MFMAs);
;           Q (pre-scaled by log2(e)/sqrt(28)), K, V are written to d_ws in MFMA fragment order (write-through stores + counters).
;           m = row max over the first key tile of each wave (a running max that is not updated); a run-time check (l >= 2^100, l <= 2^-40 or a
"""
def main(out):
    g = Gen()
    g.raw(f'.globl {NAME}')
    g.raw('.p2align 8')
    g.raw(f'.type {NAME},@function')
    g.label(NAME)
    g('s_cmp_ge_u32 s2, 256')
    g('s_cbranch_scc1 Lexit')
    if OPT.get('tl'):
        for r in range(70, 102): g(f's_mov_b32 s{r}, 0')
    stamp(g, 0); stamp(g, 15, True)
    if OPT.get('tl'): g('s_memtime s[98:99]')
    g('s_load_dwordx16 s[4:19], s[0:1], 0')
    g('s_load_dwordx2 s[20:21], s[0:1], 64')
    g('v_lshrrev_b32 v1, 6, v0')
    g('v_and_b32 v0, 63, v0')
    g('s_nop 0')
    g('v_readfirstlane_b32 s3, v1')
    if OPT.get('swapw'): g('s_xor_b32 s3, s3, 4')
    prologue(g)
    qkv_loader(g)
    qkv_compute(g)
    phase_attn(g)
    g.label('Lend')
    if OPT['stamps'] or OPT.get('tl'): g('s_waitcnt vmcnt(0)')
    stamp(g, 13)
    if OPT.get('tl'):
        sk = newlab('tl')
        g(f's_cmp_lg_u32 s3, {OPT.get("tlw", 0)}')
        g(f's_cbranch_scc1 {sk}')
        g('s_memtime s[100:101]')
        g('s_waitcnt lgkmcnt(0)')
        srd(g, 56, 18, 19, 256)
        g('s_mov_b64 exec, 1')
        g('s_sub_u32 s100, s84, s80')
        g('s_sub_u32 s99, s86, s82')
        g('v_mov_b32 v20, s100')
        g('v_mov_b32 v21, s99')
        g('v_mov_b32 v3, 0')
        g('buffer_atomic_umax v20, v3, s[56:59], 0 offen offset:52')
        g('buffer_atomic_umax v21, v3, s[56:59], 0 offen offset:56')
        g('s_not_b32 s68, s70')
        g('v_mov_b32 v1, s68')
        g('v_mov_b32 v3, 0')
        g('buffer_atomic_umax v1, v3, s[56:59], 0 offen offset:4')
        for k, i in enumerate((0, 2, 3, 4, 6, 8, 9, 10, 11, 12, 13)):
            g(f'v_mov_b32 v{4+k}, s{70+2*i}')
            g(f'buffer_atomic_umax v{4+k}, v3, s[56:59], 0 offen offset:{8+4*k}')
        g('s_waitcnt vmcnt(0)')
        g.label(sk)
    if OPT['stamps']: g('s_memrealtime s[72:73]')
    stamp_dump(g)
    g.label('Lexit')
    g('s_endpgm')
    txt = HEADER + f'; @launch grid=(256,1,1) block=(512,1,1) lds={LDS_BYTES}\n'
    txt += DESIGN
    txt += '.amdgcn_target "amdgcn-amd-amdhsa--gfx950"\n.text\n' + g.text()
    txt += f'''.section .rodata,"a"
.p2align 6
.amdhsa_kernel {NAME}
  .amdhsa_next_free_vgpr 232
  .amdhsa_next_free_sgpr 102
  .amdhsa_accum_offset 232
  .amdhsa_group_segment_fixed_size 0
  .amdhsa_kernarg_size 72
  .amdhsa_user_sgpr_count 2
  .amdhsa_user_sgpr_kernarg_segment_ptr 1
  .amdhsa_system_sgpr_workgroup_id_x 1
.end_amdhsa_kernel
'''
    open(out, 'w').write(txt)

if __name__ == '__main__':
    out = sys.argv[1] if len(sys.argv) > 1 else 'concat_heads__sliding_block__softmax_full_mha__prompt.s'
    for a in sys.argv[2:]:
        if '=' in a:
            k, v = a.split('=', 1)
            OPT[k] = v if k in ('st', 'ld', 'prio', 'ost', 'inl') else (int(v) if v.isdigit() else v)
        else:
            OPT[a] = True
    main(out)
```

```python
import sys, math, struct

def f32bits(x): return struct.unpack('<I', struct.pack('<f', x))[0]

class Gen:
    def __init__(self): self.lines = []
    def __call__(self, s):
        for l in s.split('\n'):
            l = l.strip()
            if l: self.lines.append('  ' + l)
    def label(self, s): self.lines.append(s + ':')
    def raw(self, s): self.lines.append(s)
    def text(self): return '\n'.join(self.lines) + '\n'

def vr(base, n): return f'v[{base}:{base+n-1}]'
def mfma(d, a, b, c):
    cs = '0' if c is None else vr(c, 16)
    return f'v_mfma_f32_32x32x16_bf16 {vr(d,16)}, {vr(a,4)}, {vr(b,4)}, {cs}'

OPT = dict(stamps=False, st='sc1', ld='', spin=200000, pf=5)
NAME = 'concat_heads__sliding_block__softmax_full_mha__prompt_kernel'
STAMP_BASE = 0x2000000
def stamp(g, i, real=False, q=False):
    if OPT.get('tl'):
        if i in (0, 2, 3, 4, 6, 8, 9, 10, 11, 12, 13): g(f's_memrealtime s[{70+2*i}:{71+2*i}]')
        if i == 6: g('s_memtime s[80:81]')
        if i == 8: g('s_memtime s[84:85]')
        return
    if not OPT['stamps']: return
    import inspect
    if OPT.get('qkvst') and 5 <= i <= 13:
        caller = inspect.stack()[1].function
        if caller != 'qkv_compute': return
    if (OPT.get('attst') or OPT.get('probe') or OPT.get('tailst')) and 2 <= i <= 12 and not q: return
    op = 's_memrealtime' if real else 's_memtime'
    g(f'{op} s[{70+2*i}:{71+2*i}]')
def stamp_dump(g):
    if not OPT['stamps']: return
    g('s_waitcnt lgkmcnt(0) vmcnt(0)')
    g(f's_add_u32 s64, s20, {STAMP_BASE}')
    g(f's_addc_u32 s65, s21, 0')
    g('s_mov_b32 s66, 0x100000')
    g('s_mov_b32 s67, 0x20000')
    g('s_mov_b64 exec, -1')
    g('v_mov_b32 v1, 0')
    for i in range(16):
        g(f'v_writelane_b32 v1, s{70+2*i}, {i}')
    g('s_lshl_b32 s68, s2, 3')
    g('s_add_u32 s68, s68, s3')
    g('s_lshl_b32 s68, s68, 6')
    g('v_lshlrev_b32 v3, 2, v0')
    g('v_cmp_gt_u32 vcc, 16, v0')
    g('s_and_saveexec_b64 s[62:63], vcc')
    g('buffer_store_dword v1, v3, s[64:67], s68 offen')
    g('s_waitcnt vmcnt(0)')

WS_Q = 0
WS_KV = 0x400000
WS_O = 0xC00000
WS_CNT = 0x1000000
CNT_A, CNT_B, CNT_OA, CNT_OB = 0, 16 * 256, 32 * 256, 48 * 256
QSCALE = (28 ** -0.5) * math.log2(math.e)
NEGBIG = 0xf149f2ca
POSBIG = 0x7149f2ca
LDS_BYTES = 163840

def srd(g, dst, lo, hi, nbytes, add=0):
    if add:
        g(f's_add_u32 s{dst}, s{lo}, {add}')
        g(f's_addc_u32 s{dst+1}, s{hi}, 0')
    else:
        g(f's_mov_b32 s{dst}, s{lo}')
        g(f's_mov_b32 s{dst+1}, s{hi}')
    g(f's_mov_b32 s{dst+2}, {nbytes}')
    g(f's_mov_b32 s{dst+3}, 0x20000')
def ST(): return (' ' + OPT['st']) if OPT['st'] else ''
def INL(): return (' ' + OPT['inl']) if OPT.get('inl') else ''
def LD(): return (' ' + OPT['ld']) if OPT['ld'] else ''
lab = [0]
def newlab(p):
    lab[0] += 1
    return f'L{p}_{lab[0]}'

def spin_until(g, vdst, voff, target, tmp=205):
    l0 = newlab('poll'); l1 = newlab('pdone')
    g(f's_mov_b32 s68, {OPT["spin"]}')
    g.label(l0)
    g(f'buffer_load_dword v{vdst}, v{voff}, s[64:67], 0 offen sc1')
    g('s_waitcnt vmcnt(0)')
    g(f'v_cmp_ne_u32 vcc, {target}, v{vdst}')
    g('s_nop 4')
    g(f's_cbranch_vccz {l1}')
    if OPT.get('sleep', 1): g(f's_sleep {OPT.get("sleep", 1)}')
    g('s_sub_u32 s68, s68, 1')
    g('s_cmp_lg_u32 s68, 0')
    g(f's_cbranch_scc1 {l0}')
    g.label(l1)
LFLAG = 65536 - 64
def group_wait(g, leader, word, vdst, voff, target):
    lf = newlab('follow'); ld = newlab('gdone'); lp = newlab('lspin')
    g(f'v_mov_b32 v204, {LFLAG + 4*word}')
    g(f's_cmp_lg_u32 s3, {leader}')
    g(f's_cbranch_scc1 {lf}')
    spin_until(g, vdst, voff, target)
    g('v_mov_b32 v205, 1')
    g('ds_write_b32 v204, v205')
    g('s_waitcnt lgkmcnt(0)')
    g(f's_branch {ld}')
    g.label(lf)
    g(f's_mov_b32 s68, {OPT["spin"] * 16}')
    g.label(lp)
    g('ds_read_b32 v205, v204')
    g('s_waitcnt lgkmcnt(0)')
    g('v_readfirstlane_b32 s47, v205')
    g('s_cmp_lg_u32 s47, 0')
    g(f's_cbranch_scc1 {ld}')
    g('s_sleep 1')
    g('s_sub_u32 s68, s68, 1')
    g('s_cmp_lg_u32 s68, 0')
    g(f's_cbranch_scc1 {lp}')
    g.label(ld)

WROW = 176
WSTG = 64 * WROW
NCH = 14
def prologue(g):
    g('s_and_b32 s40, s2, 7')
    g('s_lshr_b32 s41, s2, 3')
    g('s_lshr_b32 s22, s40, 1')
    g('s_lshl_b32 s22, s22, 2')
    g('s_and_b32 s42, s41, 3')
    g('s_add_u32 s22, s22, s42')
    g('s_and_b32 s23, s40, 1')
    g('s_lshl_b32 s23, s23, 3')
    g('s_lshr_b32 s42, s41, 2')
    g('s_add_u32 s23, s23, s42')
    g('s_add_u32 s69, s23, 1')
    g('s_and_b32 s69, s69, 7')
    g('s_and_b32 s42, s23, 8')
    g('s_or_b32 s69, s69, s42')
    g('s_cmp_lt_u32 s3, 4')
    g('s_cbranch_scc1 Lcompute')

def kvb_srd(g):
    g('s_and_b32 s40, s2, 7')
    g('s_bfe_u32 s41, s2, 0x10003')
    g('s_lshl_b32 s40, s40, 1')
    g('s_add_u32 s40, s40, s41')
    g('s_lshl_b32 s47, s40, 18')
    g(f's_add_u32 s47, s47, {WS_KV + 0x400000}')
    g('s_add_u32 s32, s20, s47')
    g('s_addc_u32 s33, s21, 0')
    g('s_mov_b32 s34, 0x40000')
    g('s_mov_b32 s35, 0x20000')
    g('s_lshl_b32 s55, s3, 12')
def stage_tile(g, st):
    g(f's_add_u32 s54, s55, {st*32768}')
    g(f's_add_u32 m0, s55, {(st&3)*32768}')
    g('s_nop 0')
    for i in range(4):
        g(f'buffer_load_dwordx4 v2, s[32:35], s54 offen offset:{i*1024}{LD()} lds')
def init_dma_compute(g):
    kvb_srd(g)
    stage_tile(g, 0)
    stage_tile(g, 1)

def pf_lines(g, br, part, vt, vd):
    if part == 'x':
        lo, hi = (10, 11) if br else (4, 5)
        srd(g, 24, lo, hi, 1835008)
        g('s_bfe_u32 s46, s2, 0x20001')
        g('s_mul_i32 s46, s46, 458752')
        g('s_lshr_b32 s47, s2, 3')
        g('s_mul_i32 s47, s47, 14336')
        g('s_add_u32 s46, s46, s47')
        g(f'v_lshlrev_b32 v{vt}, 7, v0')
        g(f'v_add_u32 v{vt}, s46, v{vt}')
        g(f'buffer_load_dword v{vd}, v{vt}, s[24:27], 0 offen')
        g(f'v_add_u32 v{vt}, 8192, v{vt}')
        g('s_mov_b64 exec, 0x0000ffffffffffff') if False else None
        g('v_cmp_gt_u32 vcc, 48, v0')
        g('s_and_saveexec_b64 s[44:45], vcc')
        g(f'buffer_load_dword v{vd+1}, v{vt}, s[24:27], 0 offen')
        g('s_mov_b64 exec, s[44:45]')
    else:
        lo, hi = (12, 13) if br else (6, 7)
        srd(g, 24, lo, hi, 1204224)
        g('s_and_b32 s46, s2, 1')
        g('s_mul_i32 s46, s46, 1280')
        g('s_lshr_b32 s47, s2, 3')
        g('s_mul_i32 s47, s47, 37632')
        g('s_add_u32 s46, s46, s47')
        for k in range(3):
            g(f'v_add_u32 v{vt}, {64*k}, v0')
            g(f'v_mul_u32_u24 v{vt+1}, 5958, v{vt}')
            g(f'v_lshrrev_b32 v{vt+1}, 16, v{vt+1}')
            g(f'v_mul_u32_u24 v{vt+2}, 11, v{vt+1}')
            g(f'v_sub_u32 v{vt+2}, v{vt}, v{vt+2}')
            g(f'v_mul_u32_u24 v{vt+1}, 2688, v{vt+1}')
            g(f'v_lshl_add_u32 v{vt+1}, v{vt+2}, 7, v{vt+1}')
            g(f'v_add_u32 v{vt+1}, s46, v{vt+1}')
            if k == 2:
                g('v_cmp_gt_u32 vcc, 26, v0')
                g('s_and_saveexec_b64 s[44:45], vcc')
            g(f'buffer_load_dword v{vd+k}, v{vt+1}, s[24:27], 0 offen')
            if k == 2: g('s_mov_b64 exec, s[44:45]')

def PREFETCH_A(g):
    l1 = newlab('pf'); l2 = newlab('pf'); ld = newlab('pf')
    g('s_cmp_ge_u32 s3, 2')
    g(f's_cbranch_scc1 {l1}')
    srd(g, 24, 4, 5, 1835008)
    g('s_mul_i32 s46, s2, 7168')
    g('s_lshl_b32 s47, s3, 12')
    g('s_add_u32 s46, s46, s47')
    g('v_add_u32 v20, s46, v2')
    for i in range(4):
        g(f'buffer_load_dwordx4 v[{144+4*i}:{147+4*i}], v20, s[24:27], 0 offen offset:{i*1024}')
    g(f's_branch {ld}')
    g.label(l1)
    g('s_cmp_eq_u32 s3, 2')
    g(f's_cbranch_scc0 {l2}')
    srd(g, 24, 6, 7, 1204224)
    g('s_mul_i32 s46, s2, 4704')
    g('v_add_u32 v20, s46, v2')
    g('v_add_u32 v21, 4096, v20')
    for i in range(5):
        g(f'buffer_load_dwordx4 v[{144+4*i}:{147+4*i}], v{20 if i < 4 else 21}, s[24:27], 0 offen offset:{(i%4)*1024}')
    g(f's_branch {ld}')
    g.label(l2)
    g('s_mul_i32 s46, s2, 1568')
    g('v_add_u32 v20, s46, v2')
    srd(g, 24, 8, 9, 448*896)
    for i in range(2):
        g(f'buffer_load_dwordx4 v[{144+4*i}:{147+4*i}], v20, s[24:27], 0 offen offset:{i*1024}')
    srd(g, 28, 14, 15, 448*896)
    for i in range(2):
        g(f'buffer_load_dwordx4 v[{152+4*i}:{155+4*i}], v20, s[28:31], 0 offen offset:{i*1024}')
    g.label(ld)

def qkv_compute(g):
    g.label('Lcompute')
    g('v_and_b32 v4, 31, v0')
    g('s_lshl_b32 s44, s3, 5')
    g('v_add_u32 v4, s44, v4')
    g('v_lshlrev_b32 v4, 7, v4')
    g('v_bfe_u32 v5, v0, 1, 3')
    g('v_lshrrev_b32 v6, 5, v0')
    for ks in range(4):
        g(f'v_add_u32 v7, {2*ks}, v6')
        g('v_xor_b32 v7, v7, v5')
        g(f'v_lshl_add_u32 v{12+ks}, v7, 4, v4')
    g('v_bfe_u32 v4, v0, 2, 2')
    g('v_and_b32 v5, 3, v0')
    g('v_bfe_u32 v7, v0, 4, 1')
    g('v_lshlrev_b32 v7, 5, v7')
    g('v_lshl_add_u32 v7, v5, 3, v7')
    g('v_lshlrev_b32 v4, 1, v4')
    g('v_add_u32 v4, v4, v6')
    g(f'v_mul_u32_u24 v4, {2*WROW}, v4')
    g('v_add_u32 v4, v4, v7')
    g('v_add_u32 v16, 65536, v4')
    g('v_lshlrev_b32 v2, 4, v0')
    g('s_waitcnt lgkmcnt(0)')
    if OPT.get('wsoff'):
        g(f's_add_u32 s20, s20, {OPT["wsoff"] << 20}')
        g('s_addc_u32 s21, s21, 0')
    stamp(g, 1)
    srd(g, 32, 20, 21, 0x1000000)
    srd(g, 64, 20, 21, 0x4000, WS_CNT)
    g('s_or_b32 s44, s2, s3')
    g('s_cmp_lg_u32 s44, 0')
    g('s_cbranch_scc1 Lnoinit')
    g('v_lshlrev_b32 v20, 8, v0')
    g('v_mov_b32 v21, 0')
    g('buffer_store_dword v21, v20, s[64:67], 0 offen sc1')
    g('s_waitcnt vmcnt(0)')
    srd(g, 36, 18, 19, 256)
    g('s_mov_b64 exec, 1')
    g('v_mov_b32 v21, 1')
    g('v_mov_b32 v20, 0')
    g('buffer_store_dword v21, v20, s[36:39], 0 offen sc1')
    g('s_mov_b64 exec, -1')
    g.label('Lnoinit')
    if OPT.get('codepf'):
        g('s_getpc_b64 s[24:25]')
        g.label('Lpc_here')
        g(f's_sub_u32 s24, s24, Lpc_here-{NAME}')
        g('s_subb_u32 s25, s25, 0')
        g(f's_mov_b32 s26, Lexit-{NAME}')
        g('s_mov_b32 s27, 0x20000')
        g('s_lshr_b32 s46, s2, 3')
        g('s_lshl_b32 s46, s46, 2')
        g('s_add_u32 s46, s46, s3')
        g('s_lshl_b32 s46, s46, 10')
        g('v_add_u32 v20, s46, v2')
        g('buffer_load_dwordx4 v[144:147], v20, s[24:27], 0 offen')
    if OPT.get('probe'):
        g('s_mul_i32 s46, s2, 7168')
        g('v_add_u32 v20, s46, v2')
        stamp(g, 5, q=True)
        srd(g, 24, 10, 11, 1835008)
        g('buffer_load_dword v160, v20, s[24:27], 0 offen'); g('s_waitcnt vmcnt(0)'); stamp(g, 6, q=True)
        srd(g, 24, 12, 13, 1204224)
        g('s_mul_i32 s46, s2, 4704'); g('v_add_u32 v21, s46, v2')
        g('buffer_load_dword v160, v21, s[24:27], 0 offen'); g('s_waitcnt vmcnt(0)'); stamp(g, 7, q=True)
        srd(g, 24, 4, 5, 1835008)
        g('buffer_load_dword v160, v20, s[24:27], 0 offen'); g('s_waitcnt vmcnt(0)'); stamp(g, 8, q=True)
        g('buffer_load_dword v160, v20, s[24:27], 0 offen offset:2048'); g('s_waitcnt vmcnt(0)'); stamp(g, 9, q=True)
        srd(g, 24, 6, 7, 1204224)
        g('buffer_load_dword v160, v21, s[24:27], 0 offen'); g('s_waitcnt vmcnt(0)'); stamp(g, 10, q=True)
        g('buffer_load_dword v160, v21, s[24:27], 0 offen offset:2048'); g('s_waitcnt vmcnt(0)'); stamp(g, 11, q=True)
    if OPT.get('pf', 1) in (2, 4):
        l1 = newlab('pfb'); ld = newlab('pfb')
        g('s_cmp_ge_u32 s3, 2')
        g(f's_cbranch_scc1 {l1}')
        srd(g, 24, 10, 11, 1835008)
        g('s_mul_i32 s46, s2, 7168')
        g('s_lshl_b32 s47, s3, 12')
        g('s_add_u32 s46, s46, s47')
        g('v_add_u32 v20, s46, v2')
        for i in range(4):
            g(f'buffer_load_dwordx4 v[{160+4*i}:{163+4*i}], v20, s[24:27], 0 offen offset:{i*1024}')
        g(f's_branch {ld}')
        g.label(l1)
        srd(g, 24, 12, 13, 1204224)
        g('s_mul_i32 s46, s2, 4704')
        g('s_and_b32 s47, s3, 1')
        g('s_mul_i32 s47, s47, 3072')
        g('s_add_u32 s46, s46, s47')
        g('v_add_u32 v20, s46, v2')
        for i in range(3):
            g(f'buffer_load_dwordx4 v[{160+4*i}:{163+4*i}], v20, s[24:27], 0 offen offset:{i*1024}')
        g.label(ld)
    if OPT.get('pf', 1) == 4:
        PREFETCH_A(g)
    if OPT.get('pfw'):
        g('s_waitcnt vmcnt(%d)' % (0 if OPT.get('pf') != 4 else 4))
        g('s_barrier')
    if OPT.get('pf', 1) == 3:
        l1 = newlab('pf3'); l2 = newlab('pf3'); ld = newlab('pf3')
        g('s_cmp_eq_u32 s3, 0')
        g(f's_cbranch_scc0 {l1}')
        pf_lines(g, 1, 'x', 20, 160)
        g(f's_branch {ld}')
        g.label(l1)
        g('s_cmp_eq_u32 s3, 1')
        g(f's_cbranch_scc0 {ld}')
        pf_lines(g, 1, 'w', 20, 160)
        g.label(ld)
    if OPT.get('tw'):
        g('s_mov_b64 exec, 1')
        g('v_mov_b32 v20, 0')
        g('v_mov_b32 v21, 0')
        for br_, c0r in ((1, 's23'), (0, 's69')):
            g(f's_mul_i32 s46, {c0r}, 3')
            for t in range(3):
                g(f's_add_u32 s47, s46, {t}')
                g('s_and_b32 s44, s47, 15')
                g('s_lshl_b32 s44, s44, 6')
                g('s_lshl_b32 s45, s22, 2')
                g('s_add_u32 s44, s44, s45')
                g('s_add_u32 s44, s44, s3')
                if br_: g('s_add_u32 s44, s44, 1024')
                g('s_cmp_lt_u32 s47, 16')
                g('s_cselect_b32 s45, 11, 12')
                g(f's_cselect_b32 s43, {WS_Q}, {WS_KV}')
                g('s_lshl_b32 s44, s44, s45')
                g('s_add_u32 s44, s44, s43')
                g('s_cmp_ge_u32 s47, 32')
                g('s_cselect_b32 s45, 2048, 0')
                g('s_add_u32 s44, s44, s45')
                g('buffer_store_dword v21, v20, s[32:35], s44 offen sc1')
        g('s_and_b32 s44, s2, 7')
        g('s_bfe_u32 s45, s2, 0x10003')
        g('s_lshl_b32 s44, s44, 1')
        g('s_add_u32 s44, s44, s45')
        g('s_lshr_b32 s45, s2, 4')
        g('s_lshl_b32 s45, s45, 2')
        g('s_add_u32 s45, s45, s3')
        g('s_lshl_b32 s45, s45, 4')
        g('s_add_u32 s45, s45, s44')
        g('s_lshl_b32 s45, s45, 11')
        g(f's_add_u32 s45, s45, {WS_O}')
        g('buffer_store_dword v21, v20, s[32:35], s45 offen sc1')
        g('s_add_u32 s45, s45, 0x200000')
        g('buffer_store_dword v21, v20, s[32:35], s45 offen sc1')
        g('s_mov_b64 exec, -1')
    srd(g, 36, 18, 19, 256)
    g('v_mov_b32 v30, 0')
    g('buffer_load_dword v31, v30, s[36:39], 0 offen sc1')
    def prefetch():
        if not OPT.get('pf', 1) or OPT.get('pf') == 4: return
        if OPT.get('pf') == 5:
            ld = newlab('pf5')
            g('s_cmp_ge_u32 s3, 2')
            g(f's_cbranch_scc1 {ld}')
            g('s_cmp_eq_u32 s3, 0')
            g('s_cselect_b32 s24, s8, s14')
            g('s_cselect_b32 s25, s9, s15')
            g(f's_mov_b32 s26, {448*896}')
            g('s_mov_b32 s27, 0x20000')
            g('s_mul_i32 s46, s2, 1568')
            g('v_add_u32 v20, s46, v2')
            for i in range(2):
                g(f'buffer_load_dwordx4 v[{168+4*i}:{171+4*i}], v20, s[24:27], 0 offen offset:{i*1024}')
            g.label(ld)
            return
        if OPT.get('pf', 1) == 3:
            l1 = newlab('pf3'); l2 = newlab('pf3'); ld = newlab('pf3')
            g('s_cmp_eq_u32 s3, 2')
            g(f's_cbranch_scc0 {l1}')
            pf_lines(g, 0, 'x', 20, 164)
            g(f's_branch {ld}')
            g.label(l1)
            g('s_cmp_eq_u32 s3, 3')
            g(f's_cbranch_scc0 {l2}')
            pf_lines(g, 0, 'w', 20, 164)
            g(f's_branch {ld}')
            g.label(l2)
            g('s_cmp_eq_u32 s3, 0')
            g('s_cselect_b32 s24, s8, s14')
            g('s_cselect_b32 s25, s9, s15')
            g(f's_mov_b32 s26, {448*896}')
            g('s_mov_b32 s27, 0x20000')
            g('s_mul_i32 s46, s2, 1568')
            g('v_add_u32 v20, s46, v2')
            for i in range(2):
                g(f'buffer_load_dwordx4 v[{168+4*i}:{171+4*i}], v20, s[24:27], 0 offen offset:{i*1024}')
            g.label(ld)
            return
        l1 = newlab('pf'); l2 = newlab('pf'); ld = newlab('pf')
        g('s_cmp_ge_u32 s3, 2')
        g(f's_cbranch_scc1 {l1}')
        srd(g, 24, 4, 5, 1835008)
        g('s_mul_i32 s46, s2, 7168')
        g('s_lshl_b32 s47, s3, 12')
        g('s_add_u32 s46, s46, s47')
        g('v_add_u32 v20, s46, v2')
        for i in range(4):
            g(f'buffer_load_dwordx4 v[{144+4*i}:{147+4*i}], v20, s[24:27], 0 offen offset:{i*1024}')
        g(f's_branch {ld}')
        g.label(l1)
        g('s_cmp_eq_u32 s3, 2')
        g(f's_cbranch_scc0 {l2}')
        srd(g, 24, 6, 7, 1204224)
        g('s_mul_i32 s46, s2, 4704')
        g('v_add_u32 v20, s46, v2')
        g('v_add_u32 v21, 4096, v20')
        for i in range(5):
            g(f'buffer_load_dwordx4 v[{144+4*i}:{147+4*i}], v{20 if i < 4 else 21}, s[24:27], 0 offen offset:{(i%4)*1024}')
        g(f's_branch {ld}')
        g.label(l2)
        g('s_mul_i32 s46, s2, 1568')
        g('v_add_u32 v20, s46, v2')
        srd(g, 24, 8, 9, 448*896)
        for i in range(2):
            g(f'buffer_load_dwordx4 v[{144+4*i}:{147+4*i}], v20, s[24:27], 0 offen offset:{i*1024}')
        srd(g, 28, 14, 15, 448*896)
        for i in range(2):
            g(f'buffer_load_dwordx4 v[{152+4*i}:{155+4*i}], v20, s[28:31], 0 offen offset:{i*1024}')
        g.label(ld)
    XF = 80; WF = 88
    ACCS = {1: 32, 0: 144}
    PS = {1: 112, 0: 208}
    g('v_and_b32 v18, 31, v0')
    g('v_cmp_eq_u32 vcc, 28, v18')
    g('v_mov_b32 v19, 0x3f803f80')
    g('s_nop 0')
    g('v_cndmask_b32_e64 v18, 0, v19, vcc')
    g('s_mov_b32 s60, 0')
    g('s_mov_b32 s61, -1')
    g('s_mov_b32 s58, 0xf0000000')
    g('s_mov_b32 s59, 0xf0000000')
    def reads(n, buf, part):
        kc, ks = divmod(n, 4)
        st = kc % 4
        if part == 0:
            g(f'ds_read_b128 {vr(XF+4*buf,4)}, v{12+ks} offset:{st*16384}')
        for jj in range(2):
            off = st * WSTG + (ks*16 + jj) * WROW + part * 56
            g(f'ds_read_b64_tr_b16 {vr(WF+12*buf+4*part+2*jj,2)}, v16 offset:{off}')
    def mfma1(br, buf, t, first, types2):
        types = types2[br]
        x = XF + 4*buf; wf = WF + 12*buf + 4*t; d = ACCS[br] + 16*t
        c = None if first else d
        g(mfma(d, wf, x, c) if types[t] == 'QK' else mfma(d, x, wf, c))
    def epilogue_list(br, types2):
        types = types2[br]
        c0 = 's52' if br else 's63'
        L = []
        A = L.append
        ACC = ACCS[br]; P = PS[br]
        A('s_lshl_b32 s54, s22, 2')
        A('s_add_u32 s54, s54, s3')
        if br: A('s_add_u32 s54, s54, 1024')
        for t in range(3):
            a = ACC + 16*t; p = P + 8*t
            so = (48, 49, 53)[t]
            A(f's_add_u32 s62, {c0}, {t}')
            A('s_and_b32 s56, s62, 15')
            A('s_lshl_b32 s56, s56, 6')
            A('s_add_u32 s56, s56, s54')
            if types[t] == 'QK':
                A('s_cmp_lt_u32 s62, 16\n' + f's_cselect_b32 s57, {f32bits(QSCALE):#x}, 1.0\n' + 's_cselect_b32 s45, 0, 0x3f80\n' +
                  's_cselect_b32 s46, 11, 12\n' + f's_cselect_b32 s47, {WS_Q}, {WS_KV}')
                A('s_lshl_b32 s56, s56, s46')
                A(f's_add_u32 s{so}, s56, s47')
                A('v_mov_b32 v19, s45')
                for r in range(16): A(f'v_mul_f32 v{a+r}, s57, v{a+r}')
                for i in range(8): A(f'v_cvt_pk_bf16_f32 v{p+i}, v{a+2*i}, v{a+2*i+1}')
                A(f'v_cndmask_b32_e64 v{p+6}, v{p+6}, v19, s[60:61]')
                A(f'v_cndmask_b32_e64 v{p+7}, v{p+7}, 0, s[60:61]')
            else:
                A('s_lshl_b32 s56, s56, 12')
                A(f's_add_u32 s{so}, s56, {WS_KV + 2048}')
                for i in range(8): A(f'v_cvt_pk_bf16_f32 v{p+i}, v{a+2*i}, v{a+2*i+1}')
                for i in range(8): A(f'v_cndmask_b32_e64 v{p+i}, v{p+i}, v18, s[58:59]')
            if br:
                A('s_nop 1\n' + f'buffer_store_dwordx4 {vr(p,4)}, v2, s[32:35], s{so} offen{ST()}')
                A(f'buffer_store_dwordx4 {vr(p+4,4)}, v2, s[32:35], s{so} offen offset:1024{ST()}')
        return L
    g('s_mul_i32 s52, s23, 3')
    g('s_mul_i32 s63, s69, 3')
    T0, T1, T2 = ('QK','QK','QK'), ('QK','QK','V'), ('V','V','V')
    variants = [{1: T0, 0: T0}, {1: T0, 0: T1}, {1: T1, 0: T2}, {1: T2, 0: T2}, {1: T2, 0: T0}]
    g('s_cmp_eq_u32 s23, 9')
    g('s_cbranch_scc1 Lqkv_v1')
    g('s_cmp_eq_u32 s23, 10')
    g('s_cbranch_scc1 Lqkv_v2')
    g('s_cmp_eq_u32 s23, 15')
    g('s_cbranch_scc1 Lqkv_v4')
    g('s_cmp_gt_u32 s23, 10')
    g('s_cbranch_scc1 Lqkv_v3')
    NS = NCH * 4
    SIG_AT = OPT.get('sig_at', 36)
    for vi, types in enumerate(variants):
        if vi: g.label(f'Lqkv_v{vi}')
        g('s_barrier')
        if vi == 0: stamp(g, 2)
        for part in range(3): reads(0, 0, part)
        prefetch()
        epi = []
        EP0, EPN = OPT.get('ep0', 28), OPT.get('epn', 2)
        def fill(k):
            for _ in range(k):
                if epi: g(epi.pop(0))
        for n in range(NS):
            br = 1 if n < 28 else 0
            boundary = (n + 1) % 4 == 0 and n + 1 < NS
            nxt = n + 1 < NS
            buf = n & 1
            first = n % 28 == 0
            if n == EP0:
                epi = ['s_nop 7'] + epilogue_list(1, types)
                per = -(-len(epi) // (EPN * 3))
            inter = EP0 <= n < EP0 + EPN
            if boundary:
                if OPT.get('qkvst') and vi == 0 and n + 1 == SIG_AT: stamp(g, 11)
                g('s_waitcnt vmcnt(0) lgkmcnt(0)' if n + 1 in (SIG_AT, 24) else 's_waitcnt lgkmcnt(0)')
                if OPT.get('qkvst') and vi == 0 and n + 1 == SIG_AT: stamp(g, 12)
                g('s_barrier')
                if OPT.get('qkvst') and vi == 0:
                    c1 = (n + 1) // 4
                    m = {2: 5, 4: 6, 6: 7, 8: 8, 10: 9, 11: 10, 12: 13}
                    if c1 in m: stamp(g, m[c1])
                if n + 1 == SIG_AT:
                    sk = newlab('sigB'); ok = newlab('inited'); lp = newlab('initspin')
                    g('s_cmp_lg_u32 s3, 0')
                    g(f's_cbranch_scc1 {sk}')
                    g('v_readfirstlane_b32 s47, v31')
                    g('s_cmp_lg_u32 s47, 0')
                    g(f's_cbranch_scc1 {ok}')
                    g(f's_mov_b32 s68, {OPT["spin"]}')
                    g.label(lp)
                    g('buffer_load_dword v31, v30, s[36:39], 0 offen sc1')
                    g('s_waitcnt vmcnt(0)')
                    g('v_readfirstlane_b32 s47, v31')
                    g('s_cmp_lg_u32 s47, 0')
                    g(f's_cbranch_scc1 {ok}')
                    g('s_sub_u32 s68, s68, 1')
                    g('s_cmp_lg_u32 s68, 0')
                    g(f's_cbranch_scc1 {lp}')
                    g.label(ok)
                    g('s_mov_b64 exec, 1')
                    g('v_mov_b32 v1, 1')
                    g('s_lshl_b32 s47, s23, 8')
                    g(f's_add_u32 s47, s47, {CNT_B}')
                    g('v_mov_b32 v29, s47')
                    g('buffer_atomic_add v1, v29, s[64:67], 0 offen sc1')
                    g('s_mov_b64 exec, -1')
                    g.label(sk)
            else:
                g('s_waitcnt lgkmcnt(4)')
            mfma1(br, buf, 0, first, types)
            if nxt: reads(n + 1, buf ^ 1, 0)
            if inter: fill(per)
            if not boundary: g(f's_waitcnt lgkmcnt({5 if nxt else 2})')
            mfma1(br, buf, 1, first, types)
            if nxt: reads(n + 1, buf ^ 1, 1)
            if inter: fill(per)
            if not boundary: g(f's_waitcnt lgkmcnt({5 if nxt else 0})')
            mfma1(br, buf, 2, first, types)
            if nxt: reads(n + 1, buf ^ 1, 2)
            if inter: fill(per)
            if n == 27 and vi == 0: stamp(g, 3)
            if OPT.get('sbar', 0) and n == EP0 + EPN - 1:
                g('s_barrier')
        assert not epi
        if vi == 0: stamp(g, 14)
        g('s_barrier')
        if vi == 0: stamp(g, 4)
        init_dma_compute(g)
        for x in epilogue_list(0, types): g(x)
        if vi < 4: g('s_branch Lqkv_fin')
    g.label('Lqkv_fin')
    g('s_branch Lattn_setup')

def qkv_loader(g):
    g.label('Lloader')
    g('s_sub_u32 s43, s3, 4')
    g('s_lshl_b32 s44, s22, 7')
    g('s_lshl_b32 s45, s43, 5')
    g('s_add_u32 s44, s44, s45')
    g('v_lshrrev_b32 v10, 3, v0')
    g('v_add_u32 v10, s44, v10')
    g('v_mul_u32_u24 v10, 896, v10')
    g('v_lshrrev_b32 v11, 4, v0')
    g('v_and_b32 v12, 7, v0')
    g('v_xor_b32 v12, v12, v11')
    g('v_lshl_add_u32 v2, v12, 4, v10')
    g('v_xor_b32 v12, 4, v12')
    g('v_lshl_add_u32 v3, v12, 4, v10')
    g('v_add_u32 v3, 7168, v3')
    g('v_add_u32 v4, 14336, v2')
    g('v_add_u32 v5, 14336, v3')
    g('s_lshl_b32 s46, s43, 12')
    g('s_lshl_b32 s47, s43, 10')
    g('s_add_u32 s47, s47, 65536')
    g('s_lshl_b32 s44, s43, 6')
    g('s_mul_i32 s50, s23, 168')
    g('s_mul_i32 s51, s69, 168')
    def wcalc(n):
        g('v_add_u32 v10, s44, v0')
        if n: g(f'v_add_u32 v10, {256*n}, v10')
        g('v_mul_u32_u24 v11, 5958, v10')
        g('v_lshrrev_b32 v11, 16, v11')
        g('v_mul_u32_u24 v12, 11, v11')
        g('v_sub_u32 v12, v10, v12')
        g('v_and_b32 v13, 48, v11')
        g('v_and_b32 v14, 3, v11')
        g('v_lshl_add_u32 v13, v14, 2, v13')
        g('v_bfe_u32 v14, v11, 2, 2')
        g('v_add_u32 v13, v13, v14')
        g('v_mul_u32_u24 v13, 2688, v13')
        g(f'v_lshl_add_u32 v{6+n}, v12, 4, v13')
    wcalc(0)
    g('s_waitcnt lgkmcnt(0)')
    if OPT.get('tlw') == 4: g('s_memrealtime s[74:75]')
    if OPT.get('wsoff'):
        g(f's_add_u32 s20, s20, {OPT["wsoff"] << 20}')
        g('s_addc_u32 s21, s21, 0')
    srd(g, 24, 10, 11, 1835008)
    srd(g, 28, 12, 13, 1204224)
    def rot_init(greg):
        g(f's_add_u32 s52, {greg}, s22')
        g('s_mul_i32 s53, s52, 37')
        g('s_lshr_b32 s53, s53, 8')
        g('s_mul_i32 s53, s53, 7')
        g('s_sub_u32 s52, s52, s53')
    def kc_offsets(c):
        if c == 7:
            if OPT.get('rot', 1): rot_init('s69')
            else: g('s_mov_b32 s52, 0')
        g('s_lshl_b32 s48, s52, 7')
        g('s_mul_i32 s49, s52, 172032')
        g(f's_add_u32 s49, s49, {"s50" if c < 7 else "s51"}')
        g('s_add_u32 s52, s52, 1')
        g('s_cmp_eq_u32 s52, 7')
        g('s_cselect_b32 s52, 0, s52')
    def issueX(c):
        st = c % 4
        sx = 24 if c < 7 else 32
        kc_offsets(c)
        for e in range(4):
            g(f's_add_u32 m0, s46, {st*16384 + e*1024}')
            g('s_nop 0')
            g(f'buffer_load_dwordx4 v{2+e}, s[{sx}:{sx+3}], s48 offen{INL()} lds')
    def issueW(c, ns=(0, 1, 2)):
        st = c % 4
        sw = 28 if c < 7 else 36
        for n in ns:
            if n == 2:
                sk = newlab('qs')
                g('s_cmp_eq_u32 s43, 3')
                g(f's_cbranch_scc1 {sk}')
            g(f's_add_u32 m0, s47, {st*WSTG + n*4096}')
            g('s_nop 0')
            g(f'buffer_load_dwordx4 v{6+n}, s[{sw}:{sw+3}], s49 offen{INL()} lds')
            if n == 2: g.label(sk)
    if OPT.get('rot', 1): rot_init('s23')
    else: g('s_mov_b32 s52, 0')
    def issue(c):
        issueX(c); issueW(c)
    if OPT.get('pfw') == 1: g('s_barrier')
    issueX(0)
    issueW(0, (0,))
    wcalc(1); issueW(0, (1,))
    wcalc(2); issueW(0, (2,))
    if OPT.get('tlw') == 4: g('s_memrealtime s[76:77]')
    srd(g, 32, 4, 5, 1835008)
    srd(g, 36, 6, 7, 1204224)
    srd(g, 64, 20, 21, 0x4000, WS_CNT)
    g('s_and_b32 s40, s2, 7')
    g('s_bfe_u32 s41, s2, 0x10003')
    g('s_lshl_b32 s40, s40, 1')
    g('s_add_u32 s40, s40, s41')
    g('v_min_u32 v30, 2, v0')
    g('v_lshlrev_b32 v30, 4, v30')
    g('v_add_u32 v30, s40, v30')
    g('v_mul_u32_u24 v30, 43, v30')
    g('v_lshrrev_b32 v30, 7, v30')
    g('v_lshlrev_b32 v31, 8, v30')
    g(f'v_add_u32 v203, {CNT_B}, v31')
    if OPT.get('pfw') == 2: g('s_barrier')
    for c in range(1, 3): issue(c)
    issued = 2
    HOLD = OPT.get('hold', 9) if OPT.get('sbar', 0) else 99
    for c in range(NCH):
        rem = issued - c
        if c == 13:
            skq = newlab('w13'); skr = newlab('w13')
            g('s_cmp_lg_u32 s3, 4')
            g(f's_cbranch_scc1 {skq}')
            g('s_waitcnt vmcnt(1)')
            g(f's_branch {skr}')
            g.label(skq)
            g('s_waitcnt vmcnt(0)')
            g.label(skr)
        else:
            g(f's_waitcnt vmcnt({6*rem})')
        if OPT.get('tlw') == 4 and c == 0: g('s_memrealtime s[86:87]')
        g('s_barrier')
        if c + 3 < NCH and not (HOLD <= c + 3 <= 10):
            issue(c + 3); issued = c + 3
        if OPT.get('sbar', 0) and c == 7:
            g('s_barrier')
            for cc in range(HOLD, 11):
                issue(cc); issued = cc
        if c == 10: attn_setup(g)
        if c == 11: set_mask(g, 32, 'first')
        if c == 12:
            skp = newlab('p12')
            g('s_cmp_lg_u32 s3, 4')
            g(f's_cbranch_scc1 {skp}')
            g('buffer_load_dword v201, v203, s[64:67], 0 offen sc1')
            g.label(skp)
    g('s_cmp_lg_u32 s3, 4')
    g('s_cbranch_scc1 Lh1_polled')
    g('s_waitcnt vmcnt(0)')
    g('v_cmp_ne_u32 vcc, 16, v201')
    g('s_nop 4')
    g('s_cbranch_vccz Lh1_polled')
    spin_until(g, 201, 203, 16)
    g.label('Lh1_polled')
    g('s_barrier')
    stamp(g, 4)
    g('s_add_u32 s47, s44, 0x200000')
    g('s_mov_b32 m0, s51')
    g('s_nop 0')
    for i in range(2):
        g(f'buffer_load_dwordx4 v2, s[24:27], s47 offen offset:{i*1024}{LD()} lds')
    stage_tile(g, 0)
    stage_tile(g, 1)
    stamp(g, 5)
    g('s_waitcnt vmcnt(4)')
    g('s_barrier')
    g('s_branch Lattn_go')

K2_SCR = 131072
QL = 200
def set_mask(g, dst, kind):
    for r in range(16):
        br_ = (r & 3) + 8 * (r >> 2)
        op = 'v_cmp_le_i32' if kind == 'diag' else 'v_cmp_gt_i32'
        g(f'{op} vcc, {br_}, v24')
        g('s_nop 1')
        g(f'v_cndmask_b32_e64 v{dst+r}, v25, 0, vcc')
def attn_setup(g):
    kvb_srd(g)
    g('s_lshr_b32 s41, s2, 4')
    g('s_and_b32 s42, s3, 3')
    g('s_lshr_b32 s43, s3, 2')
    g('v_lshlrev_b32 v2, 4, v0')
    g('s_lshl_b32 s44, s40, 6')
    g('s_lshl_b32 s45, s41, 2')
    g('s_add_u32 s45, s45, s42')
    g('s_add_u32 s44, s44, s45')
    g('s_lshl_b32 s44, s44, 11')
    srd(g, 24, 20, 21, 0x400000)
    g('s_sub_u32 s28, s32, 0x400000')
    g('s_subb_u32 s29, s33, 0')
    g('s_mov_b32 s30, 0x40000')
    g('s_mov_b32 s31, 0x20000')
    srd(g, 36, 20, 21, 0x400000, WS_O)
    g('v_min_u32 v30, 2, v0')
    g('v_lshlrev_b32 v30, 4, v30')
    g('v_add_u32 v30, s40, v30')
    g('v_mul_u32_u24 v30, 43, v30')
    g('v_lshrrev_b32 v30, 7, v30')
    g('v_lshlrev_b32 v31, 8, v30')
    g(f'v_add_u32 v203, {CNT_B}, v31')
    g('s_lshl_b32 s47, s41, 2')
    g('s_add_u32 s47, s47, s3')
    g('s_sub_u32 s47, s47, 8')
    g('s_lshl_b32 s50, s47, 12')
    g('s_cmp_lt_i32 s47, 0')
    g('s_cselect_b32 s50, 0x40000000, s50')
    g('v_add_u32 v28, s50, v2')
    g('s_add_u32 s47, s47, 8')
    g('s_lshl_b32 s50, s47, 12')
    g('v_add_u32 v29, s50, v2')
    g('s_lshl_b32 s47, s42, 12')
    g('v_add_u32 v3, s47, v2')
    g('s_lshl_b32 s47, s43, 14')
    g('v_add_u32 v4, s47, v2')
    g('v_add_u32 v5, 32768, v4')
    g(f'v_add_u32 v6, {K2_SCR}, v3')
    g('s_lshl_b32 s47, s42, 8')
    g(f's_add_u32 s47, s47, {K2_SCR+16384}')
    g('v_lshlrev_b32 v7, 2, v0')
    g('v_add_u32 v7, s47, v7')
    g('s_lshl_b32 s47, s42, 11')
    g(f's_add_u32 s51, s47, {K2_SCR}')
    g(f'v_add_u32 v{QL}, s51, v2')
    g('v_and_b32 v24, 31, v0')
    g('v_lshrrev_b32 v25, 5, v0')
    g('v_lshlrev_b32 v25, 2, v25')
    g('v_sub_u32 v24, v24, v25')
    g(f'v_mov_b32 v25, {NEGBIG:#x}')
    g('s_mov_b32 s60, 0')
    g('s_mov_b32 s61, -1')
    srd(g, 56, 20, 21, 0x1000000)

def phase_attn(g):
    g.label('Lattn_setup')
    QA = 8; QB = 16; MASK = 32; S0 = 48; S1 = 64; P = 80; OA = 88; OB = 104; KF = 120; VF = 128; T = 136
    TK = 144; TS = 152
    MNA = 26; MNB = 27
    SB = [S0, S1]
    attn_setup(g)
    set_mask(g, MASK, 'diag')
    stamp(g, 5)
    g('s_waitcnt vmcnt(4)')
    g('s_barrier')
    g.label('Lattn_go')
    g('s_cmp_eq_u32 s43, 99') if False else None
    def dma4(vreg, s, s_goff, s_m0, n=4, first=0):
        g(f's_mov_b32 m0, {s_m0}')
        g('s_nop 0')
        for i in range(first, first + n):
            g(f'buffer_load_dwordx4 v{vreg}, s[{s}:{s+3}], {s_goff} offen offset:{i*1024}{LD()} lds')
    stamp(g, 6)
    g(f'ds_read_b128 {vr(QB,4)}, v{QL}')
    g(f'ds_read_b128 {vr(QB+4,4)}, v{QL} offset:1024')

    def rowmax(sbuf, t):
        g(f'v_max3_f32 v{t}, v{sbuf}, v{sbuf+1}, v{sbuf+2}')
        for r in range(3, 15, 2):
            g(f'v_max3_f32 v{t}, v{t}, v{sbuf+r}, v{sbuf+r+1}')
        g(f'v_max_f32 v{t}, v{t}, v{sbuf+15}')
        g(f'v_mov_b32 v{t+1}, v{t}')
        g('s_nop 1')
        g(f'v_permlane32_swap_b32 v{t}, v{t+1}')
        g('s_nop 1')
        g(f'v_max_f32 v{t}, v{t}, v{t+1}')
    def set_standin(sbuf, q, mneg):
        t = T
        rowmax(sbuf, t)
        g(f'v_sub_f32 v{t}, 0, v{t}')
        g(f'v_cvt_pk_bf16_f32 v{t}, v{t}, 0')
        g(f'v_lshlrev_b32 v{mneg}, 16, v{t}')
        g('s_mov_b64 exec, s[60:61]')
        g(f'v_mov_b32 v{q+4+2}, v{t}')
        g('s_mov_b64 exec, -1')
    def slots(br, kh):
        if br == 1: return (2048, 0, None) if kh == 0 else (0, 1024, 2048)
        return (0, 1024, None) if kh == 0 else (2048, 0, 3072)
    def write_half(kh, br, O, mn):
        oo, mo, lo = slots(br, kh)
        src = O + 8 if kh == 0 else O
        g(f'ds_write_b128 v6, {vr(src,4)} offset:{oo}')
        g(f'ds_write_b128 v6, {vr(src+4,4)} offset:{oo+1024}')
        g(f'ds_write_b32 v7, v{mn} offset:{mo}')
        if kh == 1: g(f'ds_write_b32 v7, v{O+12} offset:{lo}')
    FB = 168
    def finish_half(tag, kh, br, O, mn, q, tmp):
        base = O + 8*kh
        oo, mo, lo = slots(br, 1 - kh)
        g(f'ds_read_b128 {vr(tmp,4)}, v6 offset:{oo}')
        g(f'ds_read_b128 {vr(tmp+4,4)}, v6 offset:{oo+1024}')
        g(f'ds_read_b32 v{T}, v7 offset:{mo}')
        if kh == 0: g(f'ds_read_b32 v{T+5}, v7 offset:{lo}')
        lp = T + 5 if kh == 0 else tmp + 4
        g('s_waitcnt lgkmcnt(0)')
        g(f'v_min_f32 v{T+1}, v{mn}, v{T}')
        g(f'v_sub_f32 v{T+2}, v{T+1}, v{mn}')
        g(f'v_sub_f32 v{T+3}, v{T+1}, v{T}')
        g(f'v_exp_f32 v{T+2}, v{T+2}')
        g(f'v_exp_f32 v{T+3}, v{T+3}')
        g('s_nop 0')
        g(f'v_mul_f32 v{T}, v{O+12}, v{T+2}')
        g(f'v_fmac_f32 v{T}, v{lp}, v{T+3}')
        for r in range(8): g(f'v_mul_f32 v{base+r}, v{base+r}, v{T+2}')
        g(f'v_mov_b32 v{T+1}, v{T}')
        for r in range(8): g(f'v_fmac_f32 v{base+r}, v{tmp+r}, v{T+3}')
        g(f'v_permlane32_swap_b32 v{T}, v{T+1}')
        g(f'v_mul_f32 v{T+4}, 0, v{base}')
        for r in range(1, 8): g(f'v_fmac_f32 v{T+4}, 0, v{base+r}')
        g(f'v_add_f32 v{T+4}, v{T+4}, v{T+1}')
        g(f'v_subrev_u32 v{T+4}, {f32bits(2.0**-40):#x}, v{T+4}')
        g(f'v_cmp_le_u32 vcc, {f32bits(2.0**100) - f32bits(2.0**-40):#x}, v{T+4}')
        g('s_nop 4')
        g(f's_cbranch_vccz L{tag}_ok')
        fallback(tag, br, O, q)
        g(f'v_mov_b32 v{T}, v{O+12}')
        g(f'v_mov_b32 v{T+1}, v{O+12}')
        g('s_nop 1')
        g(f'v_permlane32_swap_b32 v{T}, v{T+1}')
        g('s_nop 1')
        g.label(f'L{tag}_ok')
        g(f'v_rcp_f32 v{T+1}, v{T+1}')
        g('s_lshl_b32 s47, s41, 2')
        g('s_add_u32 s47, s47, s42')
        for r in range(8): g(f'v_mul_f32 v{base+r}, v{base+r}, v{T+1}')
        g(f's_add_u32 s47, s47, {br*64}')
        g('s_lshl_b32 s47, s47, 4')
        g('s_add_u32 s47, s47, s40')
        g('s_lshl_b32 s47, s47, 11')
        for i in range(4): g(f'v_cvt_pk_bf16_f32 v{tmp+i}, v{base+2*i}, v{base+2*i+1}')
        if kh == 1:
            g(f'v_cndmask_b32_e64 v{tmp+2}, v{tmp+2}, 0, s[60:61]')
            g(f'v_cndmask_b32_e64 v{tmp+3}, v{tmp+3}, 0, s[60:61]')
        g('s_nop 1')
        g(f'buffer_store_dwordx4 {vr(tmp,4)}, v2, s[36:39], s47 offen offset:{kh*1024}{ST()}')
        g('s_nop 1')
    def fallback(tag, br, O, q):
        FS, FK, FV, FP, FQ, Fm = FB, FB+16, FB+24, FB+32, FB+40, FB+48
        s = 28 if br == 0 else 32
        for i in range(8): g(f'v_mov_b32 v{FQ+i}, v{q+i}')
        g('s_mov_b64 exec, s[60:61]')
        g(f'v_mov_b32 v{FQ+6}, 0')
        g('s_mov_b64 exec, -1')
        for r in range(16): g(f'v_mov_b32 v{O+r}, 0')
        g(f'v_mov_b32 v{Fm}, v25')
        if br == 0:
            g('s_lshl_b32 s52, s41, 2')
            g('s_add_u32 s52, s52, s42')
            g('s_sub_u32 s53, s52, 8')
            g('s_mov_b32 s54, s52')
        else:
            g('s_mov_b32 s54, 63')
        g.label(f'L{tag}_fb_loop')
        g('s_lshl_b32 s55, s54, 12')
        for i in range(2):
            g(f'buffer_load_dwordx4 {vr(FK+4*i,4)}, v2, s[{s}:{s+3}], s55 offen offset:{i*1024}{LD()}')
            g(f'buffer_load_dwordx4 {vr(FV+4*i,4)}, v2, s[{s}:{s+3}], s55 offen offset:{2048+i*1024}{LD()}')
        if br == 0:
            g('s_cmp_eq_u32 s54, s52')
            g(f's_cbranch_scc1 L{tag}_fb_diag')
            g('s_cmp_eq_u32 s54, s53')
            g(f's_cbranch_scc1 L{tag}_fb_first')
        for r in range(16): g(f'v_mov_b32 v{FS+r}, 0')
        if br == 0:
            g(f's_branch L{tag}_fb_go')
            g.label(f'L{tag}_fb_diag')
            set_mask(g, FS, 'diag')
            g(f's_branch L{tag}_fb_go')
            g.label(f'L{tag}_fb_first')
            set_mask(g, FS, 'first')
            g.label(f'L{tag}_fb_go')
        g('s_waitcnt vmcnt(0)')
        g('s_nop 1')
        g(mfma(FS, FK, FQ, FS))
        g(mfma(FS, FK+4, FQ+4, FS))
        g('s_nop 15')
        rowmax(FS, Fm+1)
        g(f'v_max_f32 v{Fm+1}, v{Fm+1}, v{Fm}')
        g(f'v_sub_f32 v{Fm+2}, v{Fm}, v{Fm+1}')
        g(f'v_exp_f32 v{Fm+2}, v{Fm+2}')
        g(f'v_mov_b32 v{Fm}, v{Fm+1}')
        for r in range(16): g(f'v_sub_f32 v{FS+r}, v{FS+r}, v{Fm}')
        for r in range(16): g(f'v_exp_f32 v{FS+r}, v{FS+r}')
        for r in range(16): g(f'v_mul_f32 v{O+r}, v{O+r}, v{Fm+2}')
        for i in range(8): g(f'v_cvt_pk_bf16_f32 v{FP+i}, v{FS+2*i}, v{FS+2*i+1}')
        g('s_nop 1')
        g(mfma(O, FV, FP, O))
        g(mfma(O, FV+4, FP+4, O))
        g('s_nop 15')
        g('s_sub_u32 s54, s54, 1')
        g('s_cmp_lt_i32 s54, 0')
        g(f's_cbranch_scc1 L{tag}_fb_end')
        if br == 0:
            g('s_cmp_lt_i32 s54, s53')
            g(f's_cbranch_scc1 L{tag}_fb_end')
        g(f's_branch L{tag}_fb_loop')
        g.label(f'L{tag}_fb_end')

    g('s_cmp_eq_u32 s43, 0')
    g('s_cbranch_scc0 Lattn_kh1')

    def path(kh):
        tag = f'K{kh}'
        unitsA = [8, 7, 6, 5, 4] if kh == 0 else [3, 2, 1, 0]
        nA = len(unitsA); N = 32 + nA
        def unit(i):
            if i >= 32:
                u = unitsA[i - 32]
                masked = (kh == 0 and u == 8) or (kh == 1 and u == 0)
                return dict(base=3, off=u*4096, Q=QA, O=OA, C=MASK if masked else None, first=(i == 32))
            return dict(b=i, Q=QB, O=OB, C=None, first=(i == 0))
        def addr(i, cs):
            u = unit(i)
            if 'base' in u: return u['base'], u['off']
            b = u['b']; s = b >> 2
            if s == cs: return 4, (b & 3) * 4096
            assert s == cs + 1
            return 5, (b & 3) * 4096
        def rdK(i, cs, dst=KF):
            r, off = addr(i, cs)
            g(f'ds_read_b128 {vr(dst,4)}, v{r} offset:{off}')
            g(f'ds_read_b128 {vr(dst+4,4)}, v{r} offset:{off+1024}')
        def rdV(i, f, cs):
            r, off = addr(i, cs)
            g(f'ds_read_b128 {vr(VF+4*f,4)}, v{r} offset:{off+2048+f*1024}')
        rdK(0, 0)
        g('s_waitcnt lgkmcnt(0)')
        g(mfma(S0, KF, QB, None))
        g(mfma(S0, KF+4, QB+4, S0))
        g('s_nop 15')
        set_standin(S0, QB, MNB)
        g('s_nop 1')
        g(mfma(S0, KF, QB, None))
        g(mfma(S0, KF+4, QB+4, S0))
        rdK(1, 0)
        rdV(0, 0, 0)
        g('s_nop 15')
        if kh == 0: stamp(g, 7)
        if OPT.get('attst'): stamp(g, 2, q=True)
        def wo_piece(it):
            if it == 7:
                sk = newlab('wo7')
                g('s_cmp_lg_u32 s3, 0')
                g(f's_cbranch_scc1 {sk}')
                g(f's_add_u32 m0, s45, {65536 + it*8192}')
                g(f'v_add_u32 v31, {it*64*896}, v30')
                g('buffer_load_dwordx4 v31, s[56:59], 0 offen lds')
                g.label(sk)
            else:
                g(f's_add_u32 m0, s45, {65536 + it*8192}')
                g(f's_mov_b32 s50, {it*64*896}')
                g('buffer_load_dwordx4 v30, s[56:59], s50 offen lds')
        def wo_setup():
            g('s_mov_b32 s56, s14')
            g('s_mov_b32 s57, s15')
            g(f's_mov_b32 s58, {448*896}')
            g('s_mov_b32 s59, 0x20000')
            g('v_lshrrev_b32 v30, 3, v0')
            g('v_and_b32 v31, 7, v0')
            g('v_and_b32 v1, 2, v30')
            g('v_lshlrev_b32 v1, 1, v1')
            g('v_xor_b32 v31, v31, v1')
            g('s_lshl_b32 s50, s3, 3')
            g('v_add_u32 v30, s50, v30')
            g('v_mul_u32_u24 v30, 896, v30')
            g('v_lshl_add_u32 v30, v31, 4, v30')
            g('s_lshr_b32 s50, s2, 5')
            g('s_lshl_b32 s50, s50, 7')
            g('s_cmp_ge_u32 s2, 224')
            g('s_cselect_b32 s50, 0x40000000, s50')
            g('v_add_u32 v30, s50, v30')
            g('s_lshl_b32 s45, s3, 10')
        def dma_slot(i, inloop):
            if i == 0 or i == 1:
                st = i + 2
                g(f's_add_u32 s54, s55, {st*32768}')
                g(f's_add_u32 m0, s55, {(st&3)*32768}')
                g('s_nop 0')
                for k in range(4):
                    g(f'buffer_load_dwordx4 v2, s[32:35], s54 offen offset:{k*1024}{LD()} lds')
                return
            if i == 2 and kh == 0:
                for t in range(3):
                    g(f'buffer_store_dwordx4 {vr(208+8*t,4)}, v2, s[56:59], s{(48,49,53)[t]} offen{ST()}')
                    g(f'buffer_store_dwordx4 {vr(212+8*t,4)}, v2, s[56:59], s{(48,49,53)[t]} offen offset:1024{ST()}')
                return
            if i >= 30:
                if i == 30: wo_setup()
                before34 = {30: [0], 31: [1], 32: [2], 33: [3], 34: [4, 5], 35: [6, 7]}
                for it in before34.get(i, []): wo_piece(it)
                return
            if i == 12 and kh == 1 and OPT.get('wol2', 1):
                sk = newlab('wol2')
                g('s_cmp_gt_u32 s3, 5')
                g(f's_cbranch_scc1 {sk}')
                srd(g, 56, 8, 9, 448*896)
                g('s_lshr_b32 s47, s2, 3')
                g('s_mul_i32 s47, s47, 98')
                g('s_sub_u32 s48, s3, 4')
                g('s_lshl_b32 s48, s48, 6')
                g('s_add_u32 s47, s47, s48')
                g('v_add_u32 v204, s47, v0')
                g('v_lshlrev_b32 v204, 7, v204')
                g('buffer_load_dword v205, v204, s[56:59], 0 offen')
                g.label(sk)
            if i < 6: return
            ph = (i - 2) & 3; st = ((i - 2) >> 2) + 3
            if i == 18:
                g('buffer_load_dword v201, v31, s[64:67], 0 offen sc1')
            if st <= 7:
                if ph == 0:
                    g(f's_add_u32 s54, s55, {st*32768}')
                    g(f's_add_u32 m0, s55, {(st&3)*32768}')
                    g('s_nop 0')
                g(f'buffer_load_dwordx4 v2, s[32:35], s54 offen offset:{ph*1024}{LD()} lds')
            elif st == 8:
                if ph == 0:
                    ok = newlab('aok')
                    g('v_cmp_ne_u32 vcc, 16, v201')
                    g('s_nop 4')
                    g(f's_cbranch_vccz {ok}')
                    spin_until(g, 201, 31, 16)
                    g.label(ok)
                    if kh == 1:
                        g('s_add_u32 s47, s51, 8192')
                        dma4(2, 24, 's44', 's47', n=2)
                    g('s_mov_b32 m0, s55')
                    g('s_nop 0')
                g(f'buffer_load_dwordx4 v28, s[28:31], 0 offen offset:{ph*1024}{LD()} lds')
            elif st == 9 and ph <= 1 and kh == 0:
                if ph == 0:
                    g('s_add_u32 m0, s55, 32768')
                    g('s_nop 0')
                for k in range(2):
                    g(f'buffer_load_dwordx4 v29, s[28:31], 0 offen offset:{(2*ph+k)*1024}{LD()} lds')
        def body(i, cs, inloop=False):
            u = unit(i)
            sb = SB[i & 1]; sn = SB[(i + 1) & 1]
            e = [f'v_exp_f32 v{sb+r}, v{sb+r}' for r in range(16)]
            c = [f'v_cvt_pk_bf16_f32 v{P+k}, v{sb+2*k}, v{sb+2*k+1}' for k in range(8)]
            has1 = i + 1 < N; has2 = i + 2 < N
            if i < 32 and (i & 3) == 2:
                s = i >> 2
                if s == 7: vm = 0
                elif s == 0: vm = 8
                elif s == 1: vm = 4 if kh == 1 else 10
                elif s == 2: vm = 4
                else: vm = 4
                if OPT.get('attst') and s in (0, 1, 2, 3, 5, 7): stamp(g, {0: 3, 1: 5, 2: 7, 3: 9, 5: 11, 7: 13}[s], q=True)
                g(f's_waitcnt vmcnt({vm}) lgkmcnt(0)' if vm is not None else 's_waitcnt lgkmcnt(0)')
                g('s_barrier')
                if OPT.get('attst') and s in (0, 1, 2, 3, 5, 7): stamp(g, {0: 4, 1: 6, 2: 8, 3: 10, 5: 12, 7: 14}[s], q=True)
                if s == 2 and kh == 1:
                    sk = newlab('sigA')
                    g('s_cmp_lg_u32 s3, 4')
                    g(f's_cbranch_scc1 {sk}')
                    g('s_mov_b64 exec, 1')
                    g('v_mov_b32 v1, 1')
                    g('s_lshl_b32 s47, s69, 8')
                    g('v_mov_b32 v202, s47')
                    g('buffer_atomic_add v1, v202, s[64:67], 0 offen sc1')
                    g('s_mov_b64 exec, -1')
                    g.label(sk)
                if s == 6:
                    g(f'ds_read_b128 {vr(QA,4)}, v{QL} offset:8192')
                    g(f'ds_read_b128 {vr(QA+4,4)}, v{QL} offset:9216')
                if s == 7 and kh == 0:
                    g(f'v_mov_b32 v204, {LFLAG}')
                    g('v_mov_b32 v205, 0')
                    g('ds_write_b32 v204, v205')
                    g('ds_write_b32 v204, v205 offset:4')
                    rdK(32, cs, TK)
                    g('s_waitcnt lgkmcnt(0)')
                    g(mfma(TS, TK, QA, unit(32)['C']))
                    g(mfma(TS, TK+4, QA+4, TS))
                    g('s_nop 15')
                    set_standin(TS, QA, MNA)
            elif i == 31 and kh == 1:
                g('s_waitcnt lgkmcnt(0)')
                g(mfma(TS, KF, QA, unit(32)['C']))
                g(mfma(TS, KF+4, QA+4, TS))
                g('s_nop 15')
                set_standin(TS, QA, MNA)
                g('s_lshl_b32 s47, s41, 2')
                g('s_add_u32 s47, s47, s42')
                g('s_cmp_lt_u32 s47, 5')
                g(f's_cbranch_scc0 L{tag}_valid')
                g(f'v_mov_b32 v{MNA}, {POSBIG:#x}')
                g.label(f'L{tag}_valid')
            elif i == 34:
                if OPT.get('tailst'): stamp(g, 3, q=True)
                g('s_waitcnt lgkmcnt(0)')
                g('s_barrier')
                if OPT.get('tailst'): stamp(g, 4, q=True)
                if kh == 1 or not OPT.get('stag', 0):
                    finish_half(f'FB{kh}', kh, 1, OB, MNB, QB, TS)
                if OPT.get('tailst'): stamp(g, 5, q=True)
            elif i == 35 and kh == 0 and OPT.get('stag', 0):
                g('s_waitcnt lgkmcnt(0)')
                finish_half(f'FB{kh}', kh, 1, OB, MNB, QB, TS)
            else:
                g('s_waitcnt lgkmcnt(0)')
            pm = OPT.get('prio', 'lag')
            if pm == 'lag':
                g(f's_setprio {3 - ((i - 2) & 3)}')
            elif pm == 'lag2' and ((i - 2) & 1) == 0:
                g(f's_setprio {1 - (((i - 2) & 3) >> 1)}')
            elif pm == 'half':
                g(f's_setprio {3 - (((i - 2) & 1) * 2)}')
            g(e[0])
            if i > 0:
                up = unit(i - 1)
                g(mfma(up['O'], VF+4, P+4, up['O']))
            rdV(i, 1, cs)
            g(e[1]); g(e[2]); g(e[3])
            g(c[0])
            if i == 33:
                write_half(kh, 1, OB, MNB)
            if has1:
                un = unit(i + 1)
                g(mfma(sn, KF, un['Q'], un['C']))
            g(e[4]); g(e[5]); g(c[1]); g(e[6]); g(e[7]); g(c[2])
            if has1:
                g(mfma(sn, KF+4, un['Q']+4, sn))
            if has2:
                rdK(i + 2, cs)
            g(e[8]); g(c[3]); g(e[9]); g(e[10])
            dma_slot(i, inloop)
            g(e[11])
            if OPT.get('prio') == 'half':
                g(f's_setprio {2 - (((i - 2) & 1) * 2)}')
            g(mfma(u['O'], VF, P, None if u['first'] else u['O']))
            if has1:
                rdV(i + 1, 0, cs)
            for x in e[12:16]: g(x)
            g(c[4]); g(c[5]); g(c[6]); g(c[7])
        def advance():
            g('v_mov_b32 v4, v5')
            g('v_add_u32 v5, 32768, v5')
            g('v_and_b32 v5, 0x1ffff, v5')
        return body, advance, N, tag
    for kh in (0, 1):
        if kh == 1: g.label('Lattn_kh1')
        body, advance, N, tag = path(kh)
        for s_ in range(7):
            for j in range(4): body(4*s_ + j, s_)
            advance()
        for j in range(4): body(28 + j, 7)
        if kh == 0: stamp(g, 8)
        if OPT.get('tailst'): stamp(g, 2, q=True)
        for i in range(32, N): body(i, 7)
        g('s_waitcnt lgkmcnt(0)')
        g('s_nop 1')
        g(mfma(OA, VF+4, P+4, OA))
        g('s_nop 15')
        if OPT.get('tailst'): stamp(g, 6, q=True)
        write_half(kh, 0, OA, MNA)
        g(f's_waitcnt vmcnt({1 if (kh == 0 and OPT.get("stag", 0)) else 3}) lgkmcnt(0)')
        g('s_barrier')
        if OPT.get('tailst'): stamp(g, 7, q=True)
        if kh == 1: signal_o(g, CNT_OB, 4)
        finish_half(f'FA{kh}', kh, 0, OA, MNA, QA, TS)
        if OPT.get('tailst'): stamp(g, 8, q=True)
        if OPT.get('woearly', 0):
            woA_issue(g)
            g('s_waitcnt vmcnt(7)')
        else:
            g('s_waitcnt vmcnt(0)')
        if OPT.get('tailst'): stamp(g, 9, q=True)
        g('s_mov_b64 exec, 1')
        g('v_mov_b32 v1, 1')
        g('s_lshl_b32 s47, s41, 8')
        g(f's_add_u32 s47, s47, {CNT_OA}')
        g('v_mov_b32 v31, s47')
        g('buffer_atomic_add v1, v31, s[64:67], 0 offen sc1')
        g('s_mov_b64 exec, -1')
        if not OPT.get('woearly', 0): woA_issue(g)
        stamp(g, 9)
        if kh == 1:
            proj_group_B(g)
        else:
            proj_group_A(g)
    proj_common(g)

PJ_EX = 131072
def proj_setup(g, br):
    g(f's_mov_b32 s40, {br}')
    g('s_and_b32 s41, s2, 7')
    g('s_lshl_b32 s41, s41, 2')
    g('s_bfe_u32 s42, s2, 0x20003')
    g('s_add_u32 s41, s41, s42')
    g('s_lshr_b32 s42, s2, 5')
    g('s_and_b32 s43, s3, 1')
    g('s_bfe_u32 s44, s3, 0x10001')
    srd(g, 24, 16, 17, 2048 * 1792)
    g('s_lshl_b32 s45, s41, 1')
    g('s_add_u32 s45, s45, s43')
    g(f's_add_u32 s45, s45, {br*64}')
    g('s_lshl_b32 s45, s45, 15')
    g('s_lshl_b32 s46, s44, 14')
    g('s_add_u32 s45, s45, s46')
    g('v_bfe_u32 v4, v0, 2, 2')
    g('v_and_b32 v5, 3, v0')
    g('v_bfe_u32 v7, v0, 4, 1')
    g('v_lshrrev_b32 v6, 5, v0')
    g('v_lshlrev_b32 v7, 5, v7')
    g('v_lshl_add_u32 v7, v5, 3, v7')
    g('v_lshrrev_b32 v11, 4, v7')
    g('v_and_b32 v8, 2, v4')
    g('v_lshlrev_b32 v8, 1, v8')
    g('v_xor_b32 v11, v11, v8')
    g('v_and_b32 v7, 15, v7')
    g('v_lshl_add_u32 v7, v11, 4, v7')
    g('v_lshl_add_u32 v4, v6, 2, v4')
    g('v_lshl_add_u32 v9, v4, 7, v7')
    g('s_mul_i32 s46, s44, 28672')
    if br: g('s_add_u32 s46, s46, 65536')
    g('v_add_u32 v9, s46, v9')
    g('v_xor_b32 v10, 64, v9')
    g('s_lshl_b32 s46, s43, 1')
    g('s_add_u32 s46, s46, s44')
    g(f's_add_u32 s46, s46, {br*4}')
    g('s_lshl_b32 s46, s46, 12')
    g(f's_add_u32 s46, s46, {PJ_EX}')
    g('v_add_u32 v12, s46, v2')
    g('v_xor_b32 v13, 4096, v12')
    g('s_lshr_b32 s46, s41, 1')
    g('s_lshl_b32 s46, s46, 8')
    g(f's_add_u32 s46, s46, {CNT_OB if br else CNT_OA}')
    g('v_mov_b32 v30, s46')
def o_loads(g):
    OF = 64
    for n in range(16):
        if n % 4 == 0 and n > 0: g('s_add_u32 s45, s45, 4096')
        g(f'buffer_load_dwordx4 {vr(OF+4*n,4)}, v2, s[36:39], s45 offen offset:{(n%4)*1024}{LD()}')
def signal_o(g, cnt, wave):
    sk = newlab('sigO')
    g(f's_cmp_lg_u32 s3, {wave}')
    g(f's_cbranch_scc1 {sk}')
    g('s_mov_b64 exec, 1')
    g('v_mov_b32 v1, 1')
    g('s_lshl_b32 s47, s41, 8')
    g(f's_add_u32 s47, s47, {cnt}')
    g('v_mov_b32 v31, s47')
    g('buffer_atomic_add v1, v31, s[64:67], 0 offen sc1')
    g('s_mov_b64 exec, -1')
    g.label(sk)
def woA_issue(g):
    srd(g, 56, 8, 9, 448*896)
    g('v_lshrrev_b32 v30, 3, v0')
    g('v_and_b32 v29, 7, v0')
    g('v_and_b32 v1, 2, v30')
    g('v_lshlrev_b32 v1, 1, v1')
    g('v_xor_b32 v29, v29, v1')
    g('s_lshl_b32 s51, s3, 3')
    g('v_add_u32 v30, s51, v30')
    g('v_mul_u32_u24 v30, 896, v30')
    g('v_lshl_add_u32 v30, v29, 4, v30')
    g('s_lshr_b32 s51, s2, 5')
    g('s_lshl_b32 s51, s51, 7')
    g('s_cmp_ge_u32 s2, 224')
    g('s_cselect_b32 s51, 0x40000000, s51')
    g('v_add_u32 v30, s51, v30')
    g('s_lshl_b32 s52, s3, 10')
    sk = newlab('woA')
    for it in range(8):
        if it == 7:
            g('s_cmp_lg_u32 s3, 0')
            g(f's_cbranch_scc1 {sk}')
            g(f's_add_u32 m0, s52, {it*8192}')
            g(f'v_add_u32 v29, {it*64*896}, v30')
            g('buffer_load_dwordx4 v29, s[56:59], 0 offen lds')
        else:
            g(f's_add_u32 m0, s52, {it*8192}')
            g(f's_mov_b32 s51, {it*64*896}')
            g('buffer_load_dwordx4 v30, s[56:59], s51 offen lds')
    g.label(sk)
def proj_group_B(g):
    g('s_cmp_ge_u32 s2, 224')
    g('s_cbranch_scc1 Lpj_idleB')
    proj_setup(g, 1)
    g('s_waitcnt vmcnt(0)')
    g('s_barrier')
    if OPT.get('tailst'): stamp(g, 10, q=True)
    group_wait(g, 4, 1, 1, 30, 16)
    if OPT.get('tailst'): stamp(g, 11, q=True)
    stamp(g, 10)
    o_loads(g)
    g('s_branch Lproj_common')
    g.label('Lpj_idleB')
    g('s_barrier')
    g('s_branch Lend')
def proj_group_A(g):
    g('s_cmp_ge_u32 s2, 224')
    sk = newlab('idleA')
    g(f's_cbranch_scc1 {sk}')
    proj_setup(g, 0)
    g('s_waitcnt vmcnt(0)')
    g('s_barrier')
    if OPT.get('tailst'): stamp(g, 10, q=True)
    group_wait(g, 0, 0, 1, 30, 128)
    if OPT.get('tailst'): stamp(g, 11, q=True)
    stamp(g, 10)
    o_loads(g)
    g('s_branch Lproj_common')
    g.label(sk)
    g('s_barrier')
    g('s_branch Lend')
def proj_common(g):
    g.label('Lproj_common')
    OF = 64; ACC = 16; WF = 48
    def rd(n, buf):
        h, i = divmod(n, 2)
        for ct in range(2):
            for jj in range(2):
                off = (28*h + 16*i + 8*jj) * 128
                g(f'ds_read_b64_tr_b16 {vr(WF+8*buf+4*ct+2*jj,2)}, v{9+ct} offset:{off}')
    rd(0, 0)
    for n in range(16):
        if n + 1 < 16: rd(n + 1, (n + 1) & 1)
        g(f's_waitcnt vmcnt({15-n}) lgkmcnt({4 if n + 1 < 16 else 0})')
        for ct in range(2):
            g(mfma(ACC + 16*ct, WF + 8*(n & 1) + 4*ct, OF + 4*n, None if n == 0 else ACC + 16*ct))
    g('s_nop 15')
    stamp(g, 12, q=True)
    g('s_cmp_eq_u32 s44, 0')
    g('s_cbranch_scc0 Lpj_k1')
    for i in range(4): g(f'ds_write_b128 v12, {vr(ACC+16+4*i,4)} offset:{i*1024}')
    g('s_branch Lpj_k2')
    g.label('Lpj_k1')
    for i in range(4): g(f'ds_write_b128 v12, {vr(ACC+4*i,4)} offset:{i*1024}')
    for r in range(16): g(f'v_mov_b32 v{ACC+r}, v{ACC+16+r}')
    g.label('Lpj_k2')
    g('s_waitcnt lgkmcnt(0)')
    g('s_barrier')
    for i in range(4): g(f'ds_read_b128 {vr(64+4*i,4)}, v13 offset:{i*1024}')
    g('v_and_b32 v4, 31, v0')
    g('s_lshl_b32 s46, s41, 6')
    g('s_lshl_b32 s47, s43, 5')
    g('s_add_u32 s46, s46, s47')
    g('v_add_u32 v4, s46, v4')
    g('v_mul_u32_u24 v4, 1792, v4')
    g('v_lshl_add_u32 v4, v6, 4, v4')
    g('s_mul_i32 s46, s40, 896')
    g('s_lshl_b32 s47, s42, 7')
    g('s_add_u32 s46, s46, s47')
    g('s_lshl_b32 s47, s44, 6')
    g('s_add_u32 s46, s46, s47')
    g('s_waitcnt lgkmcnt(0)')
    for r in range(16): g(f'v_add_f32 v{ACC+r}, v{ACC+r}, v{64+r}')
    P = 48
    for i in range(8): g(f'v_cvt_pk_bf16_f32 v{P+i}, v{ACC+2*i}, v{ACC+2*i+1}')
    g('s_nop 1')
    for k in range(2):
        a = P + 4*k
        g(f'v_permlane32_swap_b32 v{a}, v{a+2}')
        g(f'v_permlane32_swap_b32 v{a+1}, v{a+3}')
    g('s_nop 1')
    for k in range(2):
        g(f'buffer_store_dwordx4 {vr(P+4*k,4)}, v4, s[24:27], s46 offen offset:{32*k}' + ((' ' + OPT['ost']) if OPT.get('ost') else ''))

HEADER = '''; Kernarg layout for this problem (72 bytes, ptrs only, base s[0:1]):
'''
DESIGN = """; Design: one persistent launch, 256 workgroups (one per CU), 8 waves each.
;  phase 1  QKV projection, branch B then branch A (waves 4-7 stage x / W tiles into LDS by LDS-DMA, waves 0-3 run the MFMAs);
;           Q (pre-scaled by log2(e)/sqrt(28)), K, V are written to d_ws in MFMA fragment order (write-through stores + counters).
;           m = row max over the first key tile of each wave (a running max that is not updated); a run-time check (l >= 2^100, l <= 2^-40 or a
"""
def main(out):
    g = Gen()
    g.raw(f'.globl {NAME}')
    g.raw('.p2align 8')
    g.raw(f'.type {NAME},@function')
    g.label(NAME)
    g('s_cmp_ge_u32 s2, 256')
    g('s_cbranch_scc1 Lexit')
    if OPT.get('tl'):
        for r in range(70, 102): g(f's_mov_b32 s{r}, 0')
    stamp(g, 0); stamp(g, 15, True)
    if OPT.get('tl'): g('s_memtime s[98:99]')
    g('s_load_dwordx16 s[4:19], s[0:1], 0')
    g('s_load_dwordx2 s[20:21], s[0:1], 64')
    g('v_lshrrev_b32 v1, 6, v0')
    g('v_and_b32 v0, 63, v0')
    g('s_nop 0')
    g('v_readfirstlane_b32 s3, v1')
    if OPT.get('swapw'): g('s_xor_b32 s3, s3, 4')
    prologue(g)
    qkv_loader(g)
    qkv_compute(g)
    phase_attn(g)
    g.label('Lend')
    if OPT['stamps'] or OPT.get('tl'): g('s_waitcnt vmcnt(0)')
    stamp(g, 13)
    if OPT.get('tl'):
        sk = newlab('tl')
        g(f's_cmp_lg_u32 s3, {OPT.get("tlw", 0)}')
        g(f's_cbranch_scc1 {sk}')
        g('s_memtime s[100:101]')
        g('s_waitcnt lgkmcnt(0)')
        srd(g, 56, 18, 19, 256)
        g('s_mov_b64 exec, 1')
        g('s_sub_u32 s100, s84, s80')
        g('s_sub_u32 s99, s86, s82')
        g('v_mov_b32 v20, s100')
        g('v_mov_b32 v21, s99')
        g('v_mov_b32 v3, 0')
        g('buffer_atomic_umax v20, v3, s[56:59], 0 offen offset:52')
        g('buffer_atomic_umax v21, v3, s[56:59], 0 offen offset:56')
        g('s_not_b32 s68, s70')
        g('v_mov_b32 v1, s68')
        g('v_mov_b32 v3, 0')
        g('buffer_atomic_umax v1, v3, s[56:59], 0 offen offset:4')
        for k, i in enumerate((0, 2, 3, 4, 6, 8, 9, 10, 11, 12, 13)):
            g(f'v_mov_b32 v{4+k}, s{70+2*i}')
            g(f'buffer_atomic_umax v{4+k}, v3, s[56:59], 0 offen offset:{8+4*k}')
        g('s_waitcnt vmcnt(0)')
        g.label(sk)
    if OPT['stamps']: g('s_memrealtime s[72:73]')
    stamp_dump(g)
    g.label('Lexit')
    g('s_endpgm')
    txt = HEADER + f'; @launch grid=(256,1,1) block=(512,1,1) lds={LDS_BYTES}\n'
    txt += DESIGN
    txt += '.amdgcn_target "amdgcn-amd-amdhsa--gfx950"\n.text\n' + g.text()
    txt += f'''.section .rodata,"a"
.p2align 6
.amdhsa_kernel {NAME}
  .amdhsa_next_free_vgpr 232
  .amdhsa_next_free_sgpr 102
  .amdhsa_accum_offset 232
  .amdhsa_group_segment_fixed_size 0
  .amdhsa_kernarg_size 72
  .amdhsa_user_sgpr_count 2
  .amdhsa_user_sgpr_kernarg_segment_ptr 1
  .amdhsa_system_sgpr_workgroup_id_x 1
.end_amdhsa_kernel
'''
    open(out, 'w').write(txt)

if __name__ == '__main__':
    out = sys.argv[1] if len(sys.argv) > 1 else 'concat_heads__sliding_block__softmax_full_mha__prompt.s'
    for a in sys.argv[2:]:
        if '=' in a:
            k, v = a.split('=', 1)
            OPT[k] = v if k in ('st', 'ld', 'prio', 'ost', 'inl') else (int(v) if v.isdigit() else v)
        else:
            OPT[a] = True
    main(out)
```
